```python
import torch

def _softmax(x, axis=-1):
    return torch.softmax(x, dim=axis)
def _gelu(x):
    return torch.nn.functional.gelu(x, approximate="tanh")
def _silu(x):
    return torch.nn.functional.silu(x)
def _sigmoid(x):
    return torch.sigmoid(x)
def _layernorm(x, axis=-1, eps=1e-5):
    m = x.mean(dim=axis, keepdim=True)
    v = x.var(dim=axis, keepdim=True, unbiased=False)
    return (x - m) / torch.sqrt(v + eps)
def _scatter_add(tgt, idx, src, axis=0):
    return tgt.clone().index_add_(axis, idx, src)
def _segment_sum(src, seg, n):
    out = torch.zeros((n,) + src.shape[1:], dtype=src.dtype)
    return out.index_add_(0, seg, src)
def _pad(x, pw):
    flat = tuple(v for pair in reversed(pw) for v in pair)
    return torch.nn.functional.pad(x, flat)

kernel_name = 'concat_heads__sliding_block__sliding_block__prompt'

def setup_inputs():

    _w = (lambda a: (lambda t: t.to(torch.bfloat16) if t.is_floating_point() else t)(torch.as_tensor(a)))
    def _A_setup():
        B, S, D = 1, 2048, 576
        return {
            "x": _w((lambda *s: torch.randn(*s, dtype=torch.bfloat16) * 0.2)(B, S, D)),
            "wqkv": _w((lambda *s: torch.randn(*s, dtype=torch.bfloat16) * 0.2)(D, 3 * D)),
            "wo": _w((lambda *s: torch.randn(*s, dtype=torch.bfloat16) * 0.05)(D, D)),
        }
    _A_in = _A_setup()

    def _B_setup():
        B, S, D = 1, 2048, 576
        return {
            "x": _w((lambda *s: torch.randn(*s, dtype=torch.bfloat16) * 0.2)(B, S, D)),
            "wqkv": _w((lambda *s: torch.randn(*s, dtype=torch.bfloat16) * 0.2)(D, 3 * D)),
            "wo": _w((lambda *s: torch.randn(*s, dtype=torch.bfloat16) * 0.05)(D, D)),
        }
    _B_in = _B_setup()

    return {
        "A_x": _A_in["x"],
        "A_wqkv": _A_in["wqkv"],
        "A_wo": _A_in["wo"],
        "B_x": _B_in["x"],
        "B_wqkv": _B_in["wqkv"],
        "B_wo": _B_in["wo"],
    }

def reference(A_x, A_wqkv, A_wo, B_x, B_wqkv, B_wo):
    def _A_ref(x, wqkv, wo):
        B, S, D = x.shape
        H = 32; Dh = D // H; W = 256
        qkv = (lambda x, *d: x.permute(*d))((x @ wqkv).reshape(B, S, 3, H, Dh), 2, 0, 3, 1, 4)
        q, k, v = qkv[0], qkv[1], qkv[2]
        scores = torch.einsum("bhqd,bhkd->bhqk", q, k) * (Dh ** -0.5)
        idx = torch.arange(S)
        mask = (idx[:, None] - idx[None, :] >= 0) & (idx[:, None] - idx[None, :] < W)
        scores = torch.where(mask[None, None], scores, -1e9)
        p = _softmax(scores, axis=-1)
        o = torch.einsum("bhqk,bhkd->bhqd", p, v)
        return (lambda x, *d: x.permute(*d))(o, 0, 2, 1, 3).reshape(B, S, D) @ wo

    def _B_ref(x, wqkv, wo):
        B, S, D = x.shape
        H = 32; Dh = D // H; W = 256
        qkv = (lambda x, *d: x.permute(*d))((x @ wqkv).reshape(B, S, 3, H, Dh), 2, 0, 3, 1, 4)
        q, k, v = qkv[0], qkv[1], qkv[2]
        scores = torch.einsum("bhqd,bhkd->bhqk", q, k) * (Dh ** -0.5)
        idx = torch.arange(S)
        mask = (idx[:, None] - idx[None, :] >= 0) & (idx[:, None] - idx[None, :] < W)
        scores = torch.where(mask[None, None], scores, -1e9)
        p = _softmax(scores, axis=-1)
        o = torch.einsum("bhqk,bhkd->bhqd", p, v)
        return (lambda x, *d: x.permute(*d))(o, 0, 2, 1, 3).reshape(B, S, D) @ wo

    a = _A_ref(A_x, A_wqkv, A_wo)
    b = _B_ref(B_x, B_wqkv, B_wo)
    return torch.concatenate([a, b], axis=-1)
```

```python
import re

def _regs(tok):
    tok = tok.strip()
    neg = tok.lstrip('-')
    if neg.startswith('abs(') and neg.endswith(')'): neg = neg[4:-1]
    if neg.startswith('|') and neg.endswith('|'): neg = neg[1:-1]
    m = re.fullmatch(r'([vas])\[(\d+):(\d+)\]', neg)
    if m: return [f"{m.group(1)}{i}" for i in range(int(m.group(2)), int(m.group(3))+1)]
    m = re.fullmatch(r'([vas])(\d+)', neg)
    if m: return [neg]
    if neg == 'vcc': return ['vcc']
    if neg == 'exec': return ['exec']
    if neg == 'm0': return ['m0']
    if neg in ('vcc_lo','vcc_hi'): return ['vcc']
    if neg in ('exec_lo','exec_hi'): return ['exec']
    return []

TRANS = ('v_exp_f32','v_log_f32','v_rcp_f32','v_rsq_f32','v_sqrt_f32','v_sin_f32','v_cos_f32')

class Ins:
    __slots__=('text','op','ops','wr','rd','kind','tag','mods')
    def __init__(self, text, tag=None):
        self.text = text; self.tag = tag
        t = text.split(';')[0].strip()
        parts = t.split(None,1)
        self.op = parts[0]
        rest = parts[1] if len(parts)>1 else ''
        ops=[]; cur=''; depth=0
        for ch in rest:
            if ch in '[(': depth+=1
            if ch in '])': depth-=1
            if ch==',' and depth==0: ops.append(cur.strip()); cur=''
            else: cur+=ch
        if cur.strip(): ops.append(cur.strip())
        mods=[]
        if ops:
            last = ops[-1].split()
            ops[-1] = last[0]; mods = last[1:]
        self.ops=ops; self.mods=mods
        op=self.op
        wr=[]; rd=[]
        R=lambda i: _regs(ops[i]) if i < len(ops) else []
        if op.startswith('v_mfma'):
            self.kind='mfma'; wr=R(0); rd=R(1)+R(2)+R(3)
        elif op.startswith('buffer_load') or op.startswith('global_load'):
            self.kind='vmem'
            if 'lds' in mods or (ops and ops[-1]=='lds'):
                rd=R(0)+R(1)+R(2)+['m0']
            else:
                wr=R(0); rd=R(1)+R(2)+R(3)
        elif op.startswith('buffer_store') or op.startswith('global_store') or op.startswith('buffer_atomic'):
            self.kind='vmem'; rd=R(0)+R(1)+R(2)+R(3)
        elif op.startswith('ds_read'):
            self.kind='ds'; wr=R(0); rd=R(1)
        elif op.startswith('ds_write'):
            self.kind='ds'; rd=R(0)+R(1)+R(2)
        elif op.startswith('s_load') :
            self.kind='smem'; wr=R(0); rd=R(1)+R(2)
        elif op in ('s_memtime','s_memrealtime'):
            self.kind='smem'; wr=R(0)
        elif op.startswith('s_cmp') or op.startswith('s_bitcmp'):
            self.kind='salu'; rd=R(0)+R(1); wr=['scc']
        elif op.startswith('s_cbranch') or op=='s_branch':
            self.kind='branch'
        elif op in ('s_waitcnt','s_nop','s_barrier','s_endpgm','s_sleep','s_setprio'):
            self.kind='ctl'
        elif op.startswith('s_'):
            self.kind='salu'; wr=R(0)+['scc']; rd=sum((R(i) for i in range(1,len(ops))),[])
            if op.startswith('s_cselect'): rd+=['scc']
            if 'saveexec' in op: wr+=['exec']; rd+=['exec']
        elif op.startswith('v_cmp'):
            self.kind='valu'; wr=R(0); rd=R(1)+R(2)
        elif op.startswith('v_readfirstlane') or op.startswith('v_readlane'):
            self.kind='valu'; wr=R(0); rd=R(1)+R(2)
        elif op.startswith('v_'):
            self.kind='valu'; wr=R(0); rd=sum((R(i) for i in range(1,len(ops))),[])
            if op.startswith('v_add_co') or op.startswith('v_sub_co') or op.startswith('v_addc_co'):
                wr=R(0)+R(1); rd=sum((R(i) for i in range(2,len(ops))),[])
            if op.startswith('v_fmac') or op.startswith('v_writelane') : rd+=R(0)
            if op.startswith('v_permlane') : wr=R(0)+R(1); rd=R(0)+R(1)
            if op.startswith('v_cndmask') and len(ops)==3: rd+=['vcc']
            if op.endswith('_d16_hi') : rd+=R(0)
        else:
            raise ValueError("unknown op "+text)
        self.wr=wr; self.rd=rd

def mfma_passes(op):
    if '32x32x16' in op: return 8
    if '16x16x32' in op: return 4
    raise ValueError(op)

class Asm:
    def __init__(self):
        self.items=[]
        self.vm=[]
        self.lg=[]
        self.lgdone=set()
    def raw(self, s): self.items.append(s)
    def label(self, name): self.items.append(name+':')
    def c(self, s): self.items.append('    ; '+s)
    def i(self, text, tag=None, cond=False):
        ins=Ins(text, tag)
        self.items.append(ins)
        if ins.kind=='vmem' and not cond: self.vm.append(tag)
        if ins.kind=='ds': self.lg.append(tag)
        if ins.kind=='smem': self.lg.append('SMEM')
        return ins
    def many(self, lst):
        for x in lst:
            if isinstance(x,tuple): self.i(*x)
            else: self.i(x)
    def vm_n(self, tags):
        if isinstance(tags,str): tags=[tags]
        idx=[k for k,t in enumerate(self.vm) if t in tags]
        assert idx, f"no vm op with tags {tags}"
        return len(self.vm)-1-idx[-1]
    def lg_clear(self):
        self.lgdone.update(self.lg); self.lg=[]
    def lg_n(self, tags):
        if isinstance(tags,str): tags=[tags]
        idx=[k for k,t in enumerate(self.lg) if t in tags]
        if not idx and all(t in self.lgdone for t in tags): return None
        assert idx, f"no lgkm op with tags {tags}"
        n=len(self.lg)-1-idx[-1]
        assert 'SMEM' not in self.lg[idx[-1]+1:] , "smem after"
        return n
    def wait(self, vm=None, lg=None):
        parts=[]
        if vm is not None:
            n = vm if isinstance(vm,int) else self.vm_n(vm)
            parts.append(f"vmcnt({min(n,63)})")
        if lg is not None:
            n = lg if isinstance(lg,int) else self.lg_n(lg)
            if n is not None: parts.append(f"lgkmcnt({min(n,15)})")
            if n==0: self.lg_clear()
        if parts: self.i("s_waitcnt "+" ".join(parts))
    def nop(self, n):
        while n>0:
            k=min(n,16); self.i(f"s_nop {k-1}"); n-=k
    def text(self):
        out=[]
        for x in self.items:
            out.append(x if isinstance(x,str) else "    "+x.text)
        return "\n".join(out)+"\n"
    def check(self, verbose=True):
        errs=[]
        last={}
        lastrdC={}
        laststore={}
        pos=0
        seq=[x for x in self.items if not isinstance(x,str)]
        vmq=[]; lgq=[]
        for ins in seq:
            if ins.op=='s_waitcnt':
                m=re.search(r'vmcnt\((\d+)\)', ins.text)
                if m:
                    n=int(m.group(1))
                    while len(vmq)>n: vmq.pop(0)
                m=re.search(r'lgkmcnt\((\d+)\)', ins.text)
                if m:
                    n=int(m.group(1))
                    if n==0: lgq.clear()
                    else:
                        while len(lgq)>n: lgq.pop(0)
            pend=set()
            for q in vmq: pend.update(q)
            for q in lgq: pend.update(q)
            for r in ins.rd+ins.wr:
                if r in pend and r not in ('scc','v255'):
                    errs.append(f"PENDING LOAD reg {r} touched by [{ins.text}]")
            if ins.kind=='vmem': vmq.append(list(ins.wr))
            if ins.kind=='ds' or (ins.kind=='smem' and ins.op.startswith('s_load')): lgq.append(list(ins.wr))
            def need(reg, n, why):
                p,k,e = last[reg]
                d = pos-p-1
                if d < n: errs.append(f"HAZARD {why}: need {n} have {d}: reg {reg} at [{ins.text}]")
            if ins.kind=='ctl' and ins.op=='s_nop':
                pos += int(ins.ops[0])+1; continue
            op=ins.op
            for r in ins.rd:
                if r in last:
                    p,k,e=last[r]
                    if k=='mfma':
                        if ins.kind=='mfma':
                            cregs=_regs(ins.ops[3]); dregs_prev=e[1]
                            if r in cregs and r not in _regs(ins.ops[1])+_regs(ins.ops[2]):
                                if cregs==dregs_prev and mfma_passes(op)==e[0]: pass
                                else: need(r, {4:6,8:10}[e[0]], "mfmaD->mfmaC overlap")
                            else: need(r, {4:8,8:12}[e[0]], "mfmaD->mfmaAB")
                        elif ins.kind in ('valu','vmem','ds'): need(r,{4:8,8:12}[e[0]],"mfmaD->read")
                    elif k=='valu':
                        if ins.kind=='mfma' and r[0] in 'va': need(r,2,"valu->mfma")
                        if r[0]=='s' or r=='vcc':
                            if ins.kind=='vmem': need(r,5,"valu sgpr->vmem")
                            elif ins.kind=='valu':
                                if op.startswith('v_readlane') or op.startswith('v_writelane'): need(r,4,"valu sgpr->lane select")
                                else: need(r,2,"valu sgpr->valu const")
                            elif ins.kind=='salu': need(r,1,"valu sgpr->salu (soft)")
                        if e=='trans' and ins.kind in('valu',) and op.split('_e')[0] not in TRANS: need(r,1,"trans->valu")
                        if e=='trans' and ins.kind=='mfma': need(r,2,"trans->mfma")
                        if (op.startswith('v_readfirstlane') or op.startswith('v_readlane')) and r[0]=='v': need(r,1,"valu->readlane")
                        if op.startswith('v_permlane') : need(r,2,"valu->permlane")
                        if 'dpp' in ins.text or 'quad_perm' in ins.text or 'row_' in ins.text: need(r,2,"valu->dpp")
                    elif k=='salu':
                        if r=='m0' and ins.kind=='vmem': need(r,1,"m0->ldsdma")
            for r in ins.wr:
                if r in last and last[r][1]=='mfma' and ins.kind in ('valu','vmem','ds'):
                    need(r,{4:8,8:12}[last[r][2][0]],"mfmaD->write(WAW)")
                if r in last and last[r][1]=='mfma' and ins.kind=='mfma':
                    cregs=_regs(ins.ops[3])
                    if not (cregs==last[r][2][1]):
                        need(r,{4:6,8:10}[last[r][2][0]] if False else 0,"mfma WAW")
                if ins.kind=='valu' and r in lastrdC:
                    p,ps=lastrdC[r]; d=pos-p-1; n={4:3,8:7}[ps]
                    if d<n: errs.append(f"HAZARD mfma C WAR: need {n} have {d}: {r} at [{ins.text}]")
                if ins.kind=='valu' and r in laststore:
                    d=pos-laststore[r]-1
                    if d<2: errs.append(f"HAZARD wide store WAR: {r} at [{ins.text}]")
            if ins.kind=='mfma':
                for r in _regs(ins.ops[3]): lastrdC[r]=(pos,mfma_passes(op))
                for r in ins.wr: last[r]=(pos,'mfma',(mfma_passes(op),ins.wr))
            else:
                base=op.split('_e32')[0].split('_e64')[0]
                for r in ins.wr: last[r]=(pos,ins.kind,'trans' if base in TRANS else None)
            if ins.kind=='vmem' and ('store_dwordx3' in op or 'store_dwordx4' in op):
                for r in _regs(ins.ops[0]): laststore[r]=pos
            pos+=1
        if verbose:
            for e in errs[:40]: print(e)
            print(f"hazard check: {len(errs)} issues, {len(seq)} instructions")
        return errs

def interleave(main, side, start=0, every=1, per=1):
    side=list(side); out=[]
    for k,slot in enumerate(main):
        out.extend(slot)
        if k>=start and (k-start)%every==0:
            for _ in range(per):
                if side: out.append(side.pop(0))
    out.extend(side)
    return out
```

```python
import sys, os
sys.path.insert(0, os.path.dirname(os.path.abspath(__file__)))
from asm import *

NAME = "concat_heads__sliding_block__sliding_block__prompt"

XROW=1152; WROW=3456; OUTROW=2304
X_BYTES=2048*1152; W_BYTES=576*3456; WO_BYTES=576*1152; OUT_BYTES=2048*2304
SLOT=36864; WPITCH=320; XOFF=20480
KBASE=0; VBASE=18432; QBASE=110592+8192
WQ_REG=[36864,73728,110592]
LDS_BYTES=163840
WS_KV=0
WS_OM=0x1000000
WS_OL=0x1400000
WS_FKV=0x1800000
WS_FO=0x1840000
WS_DBG=0x2000000
WS_BYTES=0x4000000
CSCALE = 1.4426950408889634/ (18**0.5)
import struct
def f2u(x): return struct.unpack('<I',struct.pack('<f',x))[0]

sX='s[8:11]'; sW='s[12:15]'; sWO='s[16:19]'; sOUT='s[20:23]'; sWS='s[24:27]'; sDBG='s[28:31]'
sB='s32'; sC='s33'; sG='s34'; sWV='s35'
sVM='s[54:55]'
sLO='s[56:57]'
sCI='s58'
sWoff='s59'; sXoff='s60'
sM0='s61'
sKVme='s62'
sT0='s63'; sT1='s64'; sT2='s65'; sT3='s66'
sNON='s[68:69]'; sNONl='s68'; sNONh='s69'
sROT='s70'
sKV1='s71'; sKV2='s72'
sBAD='s[74:75]'
sCNT='s76'
sOM='s77'; sOL='s78'; sFO='s79'
sSC='s80'
sATT='s81'
sPUB0='s82'

vLane='v1'
vWoff=[f'v{10+j}' for j in range(5)]
vXoff=[f'v{15+j}' for j in range(4)]
vQoff=['v19','v20']
vWr=['v21','v22']; vMx=['v23','v24']
vXr=[[f'v{25+t}' for t in range(4)],[f'v{29+t}' for t in range(4)]]
vQr=['v33','v34']
vKw='v35'; vQw='v36'; vVw='v37'; vVt='v38'
vKr='v39'; vKl='v40'; vVr='v41'; vQrd='v42'; vQl='v43'
vPk='v44'; vPl='v45'; vPv='v46'; vOl='v47'
vNON='v[48:49]'
vVC='v50'
vT='v51'
def WF(b,f): r=52+(b*5+f)*4; return f'v[{r}:{r+3}]'
def WFh(b,f,h): r=52+(b*5+f)*4+2*h; return f'v[{r}:{r+1}]'
def QF(b,f): r=52+(b*2+f)*4; return f'v[{r}:{r+3}]'
def QFh(b,f,h): r=52+(b*2+f)*4+2*h; return f'v[{r}:{r+1}]'
ACC={'K0':92,'K1':108,'V0':124,'V1':140,'MX':156,'Q0':172,'Q1':188}
def rng(p,a,n): return f'{p}[{a}:{a+n-1}]'
def XF(t): return rng('a',4*t,4)
OWN=92
HALO=144
S0=52; S1=68
P0=150; P1=158
OACC=172
MASKD=236; MASKF=244

class G(Asm):
    pass

def magic_div(a, dst, src, mul, tmp=None):
    a.i(f"v_mul_u32_u24 {dst}, {mul}, {src}")
    a.i(f"v_lshrrev_b32 {dst}, 20, {dst}")

def prologue(a, opts):
    a.c("---- prologue")
    a.i("s_load_dwordx8 s[36:43], s[0:1], 0")
    a.i("s_load_dwordx8 s[44:51], s[0:1], 32")
    a.i("s_load_dwordx2 s[52:53], s[0:1], 64")
    a.i("s_cmp_ge_u32 s2, 256")
    a.i("s_cbranch_scc1 L_end")
    a.i("s_getpc_b64 s[4:5]")
    a.label("L_pc")
    a.i("v_lshlrev_b32 v2, 7, v0")
    a.raw("    v_min_u32 v2, (L_end-L_pc), v2")
    a.i("global_load_dword v255, v2, s[4:5]", tag='pf')
    a.i(f"v_and_b32 {vLane}, 63, v0")
    a.i("v_lshrrev_b32 v2, 6, v0")
    a.i("s_and_b32 s3, s2, 7")
    a.i(f"v_readfirstlane_b32 {sWV}, v2")
    a.i(f"s_lshr_b32 {sB}, s3, 2")
    a.i("s_lshr_b32 s4, s2, 3")
    a.i("s_bfe_u32 s5, s3, 0x10001")
    a.i(f"s_lshl_b32 {sC}, s5, 3")
    a.i("s_lshr_b32 s5, s4, 2")
    a.i(f"s_add_u32 {sC}, {sC}, s5")
    a.i("s_and_b32 s5, s3, 1")
    a.i(f"s_lshl_b32 {sG}, s5, 2")
    a.i("s_and_b32 s4, s4, 3")
    a.i(f"s_add_u32 {sG}, {sG}, s4")
    a.i(f"s_and_b32 s6, {sC}, 7")
    a.i("s_lshl_b32 s7, s4, 1")
    a.i("s_add_u32 s6, s6, s7")
    a.i("s_add_u32 s6, s6, s5")
    a.i("s_sub_u32 s7, s6, 9")
    a.i("s_cmp_ge_u32 s6, 9")
    a.i(f"s_cselect_b32 {sROT}, s7, s6")
    if opts.get('norot'): a.i(f"s_mov_b32 {sROT}, 0")
    L=vLane
    a.i(f"s_mul_i32 s6, {sWV}, {16*WROW}")
    a.i(f"s_mul_i32 s7, {sG}, 144")
    a.i("s_add_u32 s6, s6, s7")
    for j in range(5):
        d=vWoff[j]
        a.i(f"v_add_u32 v4, {64*j}, {L}")
        a.i(f"v_mul_u32_u24 v5, 52429, v4")
        a.i(f"v_lshrrev_b32 v5, 20, v5")
        a.i(f"v_mul_u32_u24 v6, 20, v5")
        a.i(f"v_sub_u32 v6, v4, v6")
        a.i(f"v_lshlrev_b32 v7, 4, v6")
        a.i(f"v_add_u32 v7, 1152, v7")
        a.i(f"v_add_u32 v8, 1008, v7")
        a.i(f"v_cmp_lt_u32 vcc, 8, v6")
        a.i(f"v_mul_u32_u24 v5, {WROW}, v5")
        a.i(f"v_mov_b32 v9, 128")
        a.i(f"v_cndmask_b32 v7, v7, v8, vcc")
        a.i(f"v_cmp_eq_u32 vcc, 18, v6")
        a.i(f"v_add_u32 v5, s6, v5")
        comp = 1024*j if j<4 else 0
        a.i("s_nop 0")
        a.i(f"v_cndmask_b32 v7, v7, v9, vcc")
        a.i(f"v_cmp_eq_u32 vcc, 19, v6")
        a.i(f"v_add_u32 v7, v7, v5")
        a.i(f"v_subrev_u32 v7, {comp}, v7")
        a.i(f"v_mov_b32 v9, 0x40000000")
        a.i(f"v_cndmask_b32 {d}, v7, v9, vcc")
    a.i(f"s_lshl_b32 s6, {sC}, 7")
    a.i(f"s_lshl_b32 s7, {sWV}, 5")
    a.i("s_add_u32 s6, s6, s7")
    a.i(f"s_mul_i32 s6, s6, {XROW}")
    a.i(f"v_lshrrev_b32 v4, 3, {L}")
    a.i(f"v_lshrrev_b32 v5, 4, {L}")
    a.i(f"v_and_b32 v6, 7, {L}")
    for i in range(4):
        a.i(f"v_add_u32 v7, {4*i}, v5")
        a.i(f"v_and_b32 v7, 7, v7")
        a.i(f"v_xor_b32 v7, v6, v7")
        a.i(f"v_lshlrev_b32 v7, 4, v7")
        a.i(f"v_add_u32 v8, {8*i}, v4")
        a.i(f"v_mul_u32_u24 v8, {XROW}, v8")
        a.i(f"v_add3_u32 v8, v8, v7, s6")
        a.i(f"v_subrev_u32 {vXoff[i]}, {1024*i}, v8")
    a.wait(lg=0)
    a.i(f"s_cmp_eq_u32 {sB}, 0")
    a.i("s_cselect_b32 s8, s36, s42");  a.i("s_cselect_b32 s9, s37, s43")
    a.i("s_cselect_b32 s12, s38, s44"); a.i("s_cselect_b32 s13, s39, s45")
    a.i("s_cselect_b32 s16, s40, s46"); a.i("s_cselect_b32 s17, s41, s47")
    a.i(f"s_mov_b32 s10, {X_BYTES}"); a.i("s_mov_b32 s11, 0x00020000")
    a.i(f"s_mov_b32 s14, {W_BYTES}"); a.i("s_mov_b32 s15, 0x00020000")
    a.i(f"s_mov_b32 {sCI}, {sROT}")
    a.i(f"s_mul_i32 {sWoff}, {sCI}, {64*WROW}")
    a.i(f"s_lshl_b32 {sXoff}, {sCI}, 7")

def dma_chunk_ins(slot, n):
    L=[]
    base=slot*SLOT
    tag=f'ch{n}'
    L.append(f"s_lshl_b32 {sM0}, {sWV}, 12")
    L.append(f"s_add_u32 m0, {sM0}, {base+XOFF}")
    L.append("s_nop 0")
    for i in range(4):
        L.append((f"buffer_load_dwordx4 {vXoff[i]}, {sX}, {sXoff} offen offset:{1024*i} lds", tag))
    L.append(f"s_mul_i32 {sM0}, {sWV}, 5120")
    L.append(f"s_add_u32 m0, {sM0}, {base}")
    L.append("s_nop 0")
    for j in range(4):
        L.append((f"buffer_load_dwordx4 {vWoff[j]}, {sW}, {sWoff} offen offset:{1024*j} lds", tag))
    L.append(f"s_add_u32 m0, {sM0}, {base+4096}")
    L.append("s_nop 0")
    L.append((f"buffer_load_dwordx4 {vWoff[4]}, {sW}, {sWoff} offen lds", tag))
    L+=next_chunk_ins()
    return L

def next_chunk_ins():
    return [f"s_add_u32 {sCI}, {sCI}, 1",
            f"s_cmp_eq_u32 {sCI}, 9",
            f"s_cselect_b32 {sCI}, 0, {sCI}",
            f"s_mul_i32 {sWoff}, {sCI}, {64*WROW}",
            f"s_lshl_b32 {sXoff}, {sCI}, 7"]

def dma_wq_ins(n):
    reg = WQ_REG[n//4] + (n%4)*8192
    L=[f"s_lshl_b32 {sM0}, {sWV}, 11",
       f"s_add_u32 m0, {sM0}, {reg}",
       "s_nop 0"]
    for e in range(2):
        L.append((f"buffer_load_dwordx4 {vQoff[e]}, {sW}, {sWoff} offen offset:{1024*e} lds", f'wq{n}'))
    L+=next_chunk_ins()
    return L

def setup2(a, opts):
    L=vLane
    a.c("---- secondary setup")
    a.i("s_mov_b32 s20, s48"); a.i("s_mov_b32 s21, s49")
    a.i(f"s_mov_b32 s22, {OUT_BYTES}"); a.i("s_mov_b32 s23, 0x00020000")
    a.i("s_mov_b32 s24, s52"); a.i("s_mov_b32 s25, s53")
    a.i(f"s_mov_b32 s26, {WS_BYTES}"); a.i("s_mov_b32 s27, 0x00020000")
    a.i("s_mov_b32 s28, s50"); a.i("s_mov_b32 s29, s51")
    a.i("s_mov_b32 s30, 256"); a.i("s_mov_b32 s31, 0x00020000")
    a.i(f"s_mov_b32 s18, {WO_BYTES}"); a.i("s_mov_b32 s19, 0x00020000")
    a.i("s_mov_b32 s54, 0x3ffff"); a.i("s_mov_b32 s55, 0x3ffff")
    a.i("s_mov_b32 s56, -1"); a.i("s_mov_b32 s57, 0")
    a.i(f"s_mov_b32 {sSC}, {f2u(CSCALE):#x}")
    a.i(f"s_mov_b32 {sATT}, 0")
    a.i(f"s_or_b32 s3, s2, {sWV}")
    a.i("s_cmp_lg_u32 s3, 0")
    a.i("s_cbranch_scc1 L_nononce")
    a.i("s_memrealtime s[4:5]")
    a.i("s_waitcnt lgkmcnt(0)")
    a.i("s_or_b32 s4, s4, 1")
    a.i("v_mov_b32 v2, s4"); a.i("v_mov_b32 v3, s5"); a.i("v_mov_b32 v4, 0")
    a.i("s_mov_b64 exec, 1")
    a.i(f"buffer_store_dwordx2 v[2:3], v4, {sDBG}, 0 offen sc1", cond=True)
    a.i("s_mov_b64 exec, -1")
    a.label("L_nononce")
    a.lg_clear()
    a.i(f"s_mul_i32 s6, {sWV}, {16*WROW}")
    a.i(f"s_mul_i32 s7, {sG}, 144")
    a.i("s_add_u32 s6, s6, s7")
    a.i(f"v_lshrrev_b32 v4, 3, {L}")
    a.i(f"v_bfe_u32 v5, {L}, 4, 1")
    a.i(f"v_lshlrev_b32 v5, 2, v5")
    a.i(f"v_and_b32 v6, 7, {L}")
    a.i(f"v_xor_b32 v6, v6, v5")
    a.i(f"v_lshlrev_b32 v6, 4, v6")
    for e in range(2):
        a.i(f"v_add_u32 v8, {8*e}, v4")
        a.i(f"v_mul_u32_u24 v8, {WROW}, v8")
        a.i(f"v_add3_u32 v8, v8, v6, s6")
        a.i(f"v_subrev_u32 {vQoff[e]}, {1024*e}, v8")
    a.i(f"v_bfe_u32 v4, {L}, 2, 2")
    a.i(f"v_lshrrev_b32 v5, 5, {L}")
    a.i(f"v_lshl_add_u32 v4, v5, 3, v4")
    a.i(f"v_bfe_u32 v6, {L}, 4, 1")
    a.i(f"v_and_b32 v7, 3, {L}")
    a.i(f"v_mul_u32_u24 v8, {WPITCH}, v4")
    a.i(f"v_lshlrev_b32 v9, 5, v6")
    a.i(f"v_lshl_add_u32 v9, v7, 3, v9")
    a.i(f"v_add_u32 {vWr[0]}, v8, v9")
    a.i(f"v_add_u32 {vWr[1]}, {2*SLOT}, {vWr[0]}")
    a.i(f"v_lshl_add_u32 v9, v6, 2, v7")
    a.i(f"v_lshlrev_b32 v2, 3, v9")
    a.i(f"v_add_u32 v2, 128, v2")
    a.i(f"v_add_u32 v3, 128, v2")
    a.i(f"v_cmp_lt_u32 vcc, 1, v9")
    a.i("s_nop 1")
    a.i(f"v_cndmask_b32 v2, v2, v3, vcc")
    a.i(f"v_add_u32 {vMx[0]}, v8, v2")
    a.i(f"v_add_u32 {vMx[1]}, {2*SLOT}, {vMx[0]}")
    a.i(f"v_lshrrev_b32 v2, 1, v7")
    a.i(f"v_lshl_add_u32 v2, v6, 1, v2")
    a.i(f"v_bfe_u32 v3, {L}, 3, 1")
    a.i(f"v_lshlrev_b32 v3, 2, v3")
    a.i(f"v_xor_b32 v2, v2, v3")
    a.i(f"v_lshlrev_b32 v2, 4, v2")
    a.i(f"v_and_b32 v3, 1, {L}")
    a.i(f"v_lshl_add_u32 v2, v3, 3, v2")
    a.i(f"v_lshl_add_u32 v2, v4, 7, v2")
    a.i(f"v_add_u32 {vQr[0]}, {WQ_REG[0]}, v2")
    a.i(f"v_xor_b32 {vQr[1]}, 64, {vQr[0]}")
    a.i(f"v_and_b32 v2, 31, {L}")
    a.i(f"v_bfe_u32 v3, {L}, 1, 3")
    a.i(f"v_xor_b32 v3, v3, v5")
    a.i(f"v_lshlrev_b32 v3, 4, v3")
    a.i(f"v_lshl_add_u32 v3, v2, 7, v3")
    a.i(f"s_lshl_b32 s6, {sWV}, 12")
    a.i(f"s_add_u32 s6, s6, {XOFF}")
    a.i(f"v_add_u32 v3, s6, v3")
    for t in range(4):
        a.i(f"v_xor_b32 {vXr[0][t]}, {32*t}, v3")
        a.i(f"v_add_u32 {vXr[1][t]}, {2*SLOT}, {vXr[0][t]}")
    a.i(f"s_lshl_b32 s6, {sWV}, 5")
    a.i(f"v_add_u32 v3, s6, v2")
    a.i(f"v_mul_u32_u24 v3, 144, v3")
    a.i(f"v_lshl_add_u32 {vKw}, v5, 3, v3")
    a.i(f"v_add_u32 {vQw}, {QBASE}, {vKw}")
    a.i(f"s_mul_i32 s6, {sWV}, 4608")
    a.i(f"s_add_u32 s6, s6, {VBASE}")
    a.i(f"v_mul_u32_u24 v3, 1152, v5")
    a.i(f"v_lshl_add_u32 v3, v2, 4, v3")
    a.i(f"v_add_u32 {vVw}, s6, v3")
    a.i(f"v_lshrrev_b32 v3, 4, v2")
    a.i(f"v_mul_u32_u24 v3, 2304, v3")
    a.i(f"v_bfe_u32 v4, v2, 2, 1")
    a.i(f"v_mul_u32_u24 v4, 1152, v4")
    a.i(f"v_add_u32 v3, v3, v4")
    a.i(f"v_and_b32 v4, 3, v2")
    a.i(f"v_bfe_u32 v6, v2, 3, 1")
    a.i(f"v_lshl_add_u32 v4, v6, 2, v4")
    a.i(f"v_lshl_add_u32 v3, v4, 1, v3")
    a.i(f"v_lshl_add_u32 v3, v5, 6, v3")
    a.i(f"v_add_u32 v3, {64*16}, v3")
    a.i(f"v_add_u32 {vVt}, s6, v3")
    a.i(f"s_mul_i32 s6, {sWV}, 36")
    a.i(f"v_mul_u32_u24 v3, 144, v2")
    a.i(f"v_add_u32 v3, s6, v3")
    a.i(f"v_lshl_add_u32 {vKr}, v5, 4, v3")
    a.i(f"v_add_u32 {vKl}, 32, v3")
    a.i(f"v_add_u32 {vQrd}, {QBASE}, {vKr}")
    a.i(f"v_add_u32 {vQl}, {QBASE}, {vKl}")
    a.i(f"s_mul_i32 s6, {sWV}, {18*16}")
    a.i(f"s_add_u32 s6, s6, {VBASE}")
    a.i(f"v_mul_u32_u24 v3, 1152, v5")
    a.i(f"v_lshl_add_u32 v3, v2, 4, v3")
    a.i(f"v_add_u32 {vVr}, s6, v3")
    a.i(f"v_lshlrev_b32 {vPk}, 4, {L}")
    a.i(f"v_lshlrev_b32 {vPl}, 2, v2")
    a.i(f"v_add_u32 {vPl}, 1024, {vPl}")
    a.i(f"v_mul_u32_u24 v3, 288, v5")
    a.i(f"v_lshl_add_u32 v3, v2, 4, v3")
    a.i(f"v_add_u32 {vPv}, 1152, v3")
    a.i(f"s_lshl_b32 s6, {sWV}, 2")
    a.i(f"v_lshlrev_b32 v3, 4, v2")
    a.i(f"v_add_u32 {vOl}, s6, v3")
    a.i(f"v_and_b32 v3, 27, v2")
    a.i(f"v_cmp_eq_u32 vcc, 18, v3")
    a.i(f"v_mov_b32 v4, 0x3f803f80")
    a.i("s_nop 0")
    a.i(f"v_cndmask_b32 {vVC}, 0, v4, vcc")
    a.i(f"s_lshl_b32 s6, {sB}, 3")
    a.i(f"s_add_u32 s6, s6, {sG}")
    a.i(f"s_lshl_b32 s6, s6, 4")
    a.i(f"s_add_u32 s6, s6, {sC}")
    a.i(f"s_mul_i32 {sKVme}, s6, {SLOT}")
    a.i(f"s_mul_i32 s7, {sWV}, 2304")
    a.i(f"s_add_u32 {sKVme}, {sKVme}, s7")
    a.i(f"s_sub_u32 {sKV1}, {sKVme}, {SLOT}")
    a.i(f"s_sub_u32 {sKV2}, {sKVme}, {2*SLOT}")
    a.i(f"s_cmp_ge_u32 {sC}, 1")
    a.i(f"s_cselect_b32 {sKV1}, {sKV1}, 0x70000000")
    a.i(f"s_cmp_ge_u32 {sC}, 2")
    a.i(f"s_cselect_b32 {sKV2}, {sKV2}, 0x70000000")
    a.i(f"s_lshl_b32 s6, s6, 2")
    a.i(f"s_add_u32 s6, s6, {sWV}")
    a.i(f"s_lshl_b32 s6, s6, 7")
    a.i(f"s_add_u32 {sT3}, s6, {WS_FKV}")
    a.i(f"s_cmp_ge_u32 {sC}, 1")
    a.i(f"s_cselect_b32 s6, -1, 0")
    a.i(f"s_cmp_ge_u32 {sC}, 2")
    a.i(f"s_cselect_b32 s7, -1, 0")
    a.i(f"v_and_b32 v2, s6, {vVC}")
    a.i(f"v_and_b32 v3, s7, {vVC}")
    a.i(f"v_mov_b32 v4, 0x3f803f80")
    for hb in range(8):
        base=HALO+14*hb
        a.i(f"v_accvgpr_write_b32 a{base+5}, v4")
        for r in range(8):
            a.i(f"v_accvgpr_write_b32 a{base+6+r}, {'v3' if hb<4 else 'v2'}")
    a.i(f"v_and_b32 v2, 31, {L}")
    a.i(f"v_lshlrev_b32 v3, 2, v5")
    a.i(f"v_sub_u32 v2, v2, v3")
    for u in range(8):
        r0=2*u; k0=(r0&3)+8*(r0>>2)
        a.i(f"v_cmp_le_i32 vcc, {k0}, v2")
        a.i(f"v_mov_b32 v3, 0xffff")
        a.i(f"v_mov_b32 v4, 0xffff0000")
        a.i(f"v_cndmask_b32 v3, 0, v3, vcc")
        a.i(f"v_cmp_le_i32 vcc, {k0+1}, v2")
        a.i("s_nop 1")
        a.i(f"v_cndmask_b32 v4, 0, v4, vcc")
        a.i(f"v_or_b32 v{MASKD+u}, v3, v4")
        a.i(f"v_not_b32 v{MASKF+u}, v{MASKD+u}")

def phase1a(a, opts):
    a.c("---- phase 1a : K,V,MIX tiles")
    def reads(tau):
        n,t=divmod(tau,4); slot=n%4; hi=slot>=2; base=(slot%2)*SLOT
        b=tau%2
        R=[]
        R.append([(f"ds_read_b128 {XF(tau)}, {vXr[hi][t]} offset:{base}", f'x{tau}')] +
                 [(f"ds_read_b64_tr_b16 {WFh(b,0,h)}, {vWr[hi]} offset:{base+5120*t+1280*h}", f'w{tau}_0') for h in range(2)])
        for f,co in ((1,64),(2,144),(3,208)):
            R.append([(f"ds_read_b64_tr_b16 {WFh(b,f,h)}, {vWr[hi]} offset:{base+5120*t+1280*h+co}", f'w{tau}_{f}') for h in range(2)])
        R.append([(f"ds_read_b64_tr_b16 {WFh(b,4,h)}, {vMx[hi]} offset:{base+5120*t+1280*h}", f'w{tau}_4') for h in range(2)])
        return R
    a.wait(vm='ch0')
    a.i("s_barrier")
    for grp in reads(0):
        for x in grp: a.i(*x)
    side=[]
    names=['K0','K1','V0','V1','MX']
    for tau in range(36):
        n,t=divmod(tau,4); b=tau%2
        if t==3:
            if n<8: a.wait(vm=f'ch{n+1}')
            else: a.wait(vm='wq3')
            a.i("s_barrier")
            if 1<=n<=5: side+=dma_chunk_ins((n+3)%4, n+3)
            elif n==6:
                side.append(f"s_mov_b32 {sCI}, {sROT}")
                side.append(f"s_mul_i32 {sWoff}, {sCI}, {64*WROW}")
                for q in range(4): side+=dma_wq_ins(q)
            elif n==7:
                for q in range(4,8): side+=dma_wq_ins(q)
            elif n==8:
                side+=dma_wq_ins(8)
        if tau<35: R=reads(tau+1)
        else: R=wq_reads(0, first=True)
        for m,nm in enumerate(names):
            need=[f'w{tau}_{m}'] + ([f'x{tau}'] if m==0 else [])
            a.wait(lg=need)
            acc=rng('v',ACC[nm],16); c = '0' if tau==0 else acc
            if nm in ('V0','V1'): a.i(f"v_mfma_f32_32x32x16_bf16 {acc}, {XF(tau)}, {WF(b,m)}, {c}")
            else: a.i(f"v_mfma_f32_32x32x16_bf16 {acc}, {WF(b,m)}, {XF(tau)}, {c}")
            if m<len(R):
                for x in R[m]: a.i(*x)
            k=0
            while side and k<3:
                x=side.pop(0)
                if isinstance(x,tuple): a.i(*x); k+=2
                else: a.i(x); k+=1
        if tau==20 and not opts.get('nononce'):
            a.i(f"v_mov_b32 {vT}, 0")
            a.i(f"buffer_load_dwordx2 {vNON}, {vT}, {sDBG}, 0 offen sc1", tag='nonce')
    return side

def wq_reads(tau, first=False):
    n,t=divmod(tau,4); b=tau%2
    off=(n%4)*8192+2048*t
    R=[]
    for f in range(2):
        R.append([(f"ds_read_b64_tr_b16 {QFh(b,f,h)}, {vQr[f]} offset:{off+512*h}", f'q{tau}_{f}') for h in range(2)])
    return R

def epi1a_lists():
    A=[]
    T=68
    for ti,nm in enumerate(('K0','K1')):
        base=ACC[nm]
        for i in range(4):
            t0=T+2*((ti*4+i)%4)
            A.append(f"v_cvt_pk_bf16_f32 v{t0}, v{base+4*i}, v{base+4*i+1}")
            A.append(f"v_cvt_pk_bf16_f32 v{t0+1}, v{base+4*i+2}, v{base+4*i+3}")
            A.append((f"ds_write_b64 {vKw}, v[{t0}:{t0+1}] offset:{64*ti+16*i}",'e1w'))
    for ti,nm in enumerate(('V0','V1')):
        base=ACC[nm]
        for j in range(2):
            t0=T+8+4*((ti*2+j)%2)
            for u in range(4):
                A.append(f"v_cvt_pk_bf16_f32 v{t0+u}, v{base+8*j+2*u}, v{base+8*j+2*u+1}")
            A.append((f"ds_write_b128 {vVw}, v[{t0}:{t0+3}] offset:{2304*j+512*ti}",'e1w'))
    base=ACC['MX']; t0=T+16
    A.append(f"v_cvt_pk_bf16_f32 v{t0}, v{base}, v{base+1}")
    A.append(f"v_cvt_pk_bf16_f32 v{t0+1}, v{base+2}, v{base+3}")
    A.append((f"ds_write_b64 {vKw}, v[{t0}:{t0+1}] offset:128",'e1w'))
    A.append(f"v_cvt_pk_bf16_f32 v{t0+2}, v{base+4}, v{base+5}")
    A.append(f"v_cvt_pk_bf16_f32 v{t0+3}, v{base+6}, v{base+7}")
    A.append((f"ds_write_b16 {vVt}, v{t0+2}",'e1w'))
    A.append((f"ds_write_b16_d16_hi {vVt}, v{t0+2} offset:16",'e1w'))
    A.append((f"ds_write_b16 {vVt}, v{t0+3} offset:32",'e1w'))
    A.append((f"ds_write_b16_d16_hi {vVt}, v{t0+3} offset:48",'e1w'))
    for r in range(4):
        A.append(f"v_mul_f32 v{base+8+r}, {sSC}, v{base+8+r}")
    A.append(f"v_cvt_pk_bf16_f32 v{t0+4}, v{base+8}, v{base+9}")
    A.append(f"v_cvt_pk_bf16_f32 v{t0+5}, v{base+10}, v{base+11}")
    A.append((f"ds_write_b64 {vQw}, v[{t0+4}:{t0+5}] offset:128",'e1w'))
    return A

def own_presets():
    L=[]
    L.append(f"v_mov_b32 v91, 0x3f803f80")
    for bt in range(4):
        base=OWN+14*bt
        L.append(f"v_mov_b32 v{base+5}, v91")
        for r in range(8): L.append(f"v_mov_b32 v{base+6+r}, {vVC}")
    return L

def own_reads():
    L=[]
    for bt in range(4):
        base=OWN+14*bt
        L.append((f"ds_read_b128 v[{base}:{base+3}], {vKr} offset:{4608*bt}",'own'))
        L.append((f"ds_read_b32 v{base+4}, {vKl} offset:{4608*bt}",'own'))
    L.append(f"s_mov_b64 exec, {sVM}")
    for bt in range(4):
        base=OWN+14*bt
        for j in range(2):
            L.append((f"ds_read_b128 v[{base+6+4*j}:{base+9+4*j}], {vVr} offset:{4608*bt+2304*j}",'own'))
    L.append(f"s_mov_b64 exec, -1")
    return L

def own_stores():
    L=[]
    for bt in range(4):
        base=OWN+14*bt
        L.append(f"s_add_u32 {sT0}, {sKVme}, {9216*bt}")
        L.append((f"buffer_store_dwordx4 v[{base}:{base+3}], {vPk}, {sWS}, {sT0} offen sc1",'pub'))
        L.append(f"s_mov_b64 exec, {sLO}")
        L.append((f"buffer_store_dword v{base+4}, {vPl}, {sWS}, {sT0} offen sc1",'pub'))
        L.append(f"s_mov_b64 exec, {sVM}")
        for j in range(2):
            L.append((f"buffer_store_dwordx4 v[{base+6+4*j}:{base+9+4*j}], {vPv}, {sWS}, {sT0} offen offset:{576*j} sc1",'pub'))
        L.append(f"s_mov_b64 exec, -1")
    return L

def phase1b(a, side, opts):
    a.c("---- phase 1b : Q tiles (+1a epilogue)")
    epiA=epi1a_lists()
    pre=own_presets()
    stage='E1'
    q=list(side)
    for tau in range(36):
        n,t=divmod(tau,4); b=tau%2
        if tau==1:
            a.i("s_barrier")
            q+=epiA
        if tau==11:
            assert not q, len(q)
            a.wait(lg=0)
            a.i("s_barrier")
            q+=pre+own_reads()
        if tau==17:
            assert not q, len(q)
            a.wait(lg='own')
            q+=own_stores()
        if tau in (15,31):
            a.wait(vm='wq7' if tau==15 else 'wq8')
            a.i("s_barrier")
            reg=WQ_REG[1] if tau==15 else WQ_REG[2]
            prev=WQ_REG[0] if tau==15 else WQ_REG[1]
            a.i(f"v_add_u32 {vQr[0]}, {reg-prev}, {vQr[0]}")
            a.i(f"v_add_u32 {vQr[1]}, {reg-prev}, {vQr[1]}")
        R = wq_reads(tau+1) if tau<35 else []
        for m,nm in enumerate(('Q0','Q1')):
            a.wait(lg=[f'q{tau}_{m}'])
            acc=rng('v',ACC[nm],16); c='0' if tau==0 else acc
            a.i(f"v_mfma_f32_32x32x16_bf16 {acc}, {QF(b,m)}, {XF(tau)}, {c}")
            if m<len(R):
                for x in R[m]: a.i(*x)
            k=0
            inexec=False
            while q and (k<4 or inexec):
                x=q.pop(0)
                txt=x[0] if isinstance(x,tuple) else x
                if txt.startswith('s_mov_b64 exec'):
                    inexec = not txt.endswith('-1')
                if isinstance(x,tuple): a.i(*x)
                else: a.i(x)
                k+=1
    assert not q, len(q)
    a.nop(14)
    T=68
    for ti,nm in enumerate(('Q0','Q1')):
        base=ACC[nm]
        for r in range(16): a.i(f"v_mul_f32 v{base+r}, {sSC}, v{base+r}")
        for i in range(4):
            t0=T+2*((ti*4+i)%8)
            a.i(f"v_cvt_pk_bf16_f32 v{t0}, v{base+4*i}, v{base+4*i+1}")
            a.i(f"v_cvt_pk_bf16_f32 v{t0+1}, v{base+4*i+2}, v{base+4*i+3}")
            a.i(f"ds_write_b64 {vQw}, v[{t0}:{t0+1}] offset:{64*ti+16*i}",'e2w')
    a.i(f"v_mov_b32 {vT}, 0")
    for i in range(4):
        for r in range(4,8): a.i(f"v_accvgpr_write_b32 a{8*i+r}, {vT}")
    a.wait(lg=0)
    a.i("s_barrier")
    for i in range(4):
        a.i(f"ds_read_b128 a[{8*i}:{8*i+3}], {vQrd} offset:{4608*i}",'qf')
    a.i(f"s_mov_b64 exec, {sLO}")
    for i in range(4):
        a.i(f"ds_read_b32 a{8*i+4}, {vQl} offset:{4608*i}",'qf')
    a.i("s_mov_b64 exec, -1")

def flag_publish_and_poll(a, opts):
    a.c("---- publish KV flag, poll halo flags, issue halo loads")
    a.wait(vm='pub')
    a.i(f"v_readfirstlane_b32 {sNONl}, v48")
    a.i(f"v_readfirstlane_b32 {sNONh}, v49")
    a.i("s_nop 1")
    a.i(f"s_or_b32 {sT0}, {sNONl}, {sNONh}")
    a.i(f"s_cmp_lg_u32 {sT0}, 0")
    a.i("s_cbranch_scc1 L_have_nonce")
    a.i(f"s_mov_b32 {sCNT}, 100000")
    a.label("L_nonce_poll")
    a.i(f"v_mov_b32 {vT}, 0")
    a.i(f"buffer_load_dwordx2 {vNON}, {vT}, {sDBG}, 0 offen sc1", cond=True)
    a.i("s_waitcnt vmcnt(0)")
    a.i(f"v_readfirstlane_b32 {sNONl}, v48")
    a.i(f"v_readfirstlane_b32 {sNONh}, v49")
    a.i("s_nop 1")
    a.i(f"s_or_b32 {sT0}, {sNONl}, {sNONh}")
    a.i(f"s_cmp_lg_u32 {sT0}, 0")
    a.i("s_cbranch_scc1 L_have_nonce")
    a.i("s_sleep 2")
    a.i(f"s_sub_u32 {sCNT}, {sCNT}, 1")
    a.i(f"s_cmp_lg_u32 {sCNT}, 0")
    a.i("s_cbranch_scc1 L_nonce_poll")
    a.label("L_have_nonce")
    a.i(f"v_mov_b32 v2, {sNONl}")
    a.i(f"v_mov_b32 v3, {sNONh}")
    a.i(f"v_mov_b32 v4, 0")
    a.i("s_mov_b64 exec, 1")
    a.i(f"buffer_store_dwordx2 v[2:3], v4, {sWS}, {sT3} offen sc1", tag='kvflag')
    a.i("s_mov_b64 exec, -1")
    a.i(f"s_cmp_eq_u32 {sC}, 0")
    a.i("s_cbranch_scc1 L_poll_done")
    a.i(f"s_cmp_ge_u32 {sC}, 2")
    a.i(f"s_cselect_b32 {sT1}, 2, 1")
    a.i(f"s_lshl_b32 {sT1}, {sT1}, 9")
    a.i(f"s_sub_u32 {sT0}, {sT3}, 512")
    a.i(f"s_sub_u32 {sT1}, {sT3}, {sT1}")
    a.i(f"v_mov_b32 v4, {sT0}")
    a.i(f"v_mov_b32 v5, {sT1}")
    a.i(f"v_cmp_eq_u32 vcc, 0, {vLane}")
    a.i(f"s_mov_b32 {sCNT}, 200000")
    a.i("s_nop 0")
    a.i(f"v_cndmask_b32 v4, v5, v4, vcc")
    a.label("L_poll")
    a.i("s_mov_b64 exec, 3")
    a.i(f"buffer_load_dwordx2 v[6:7], v4, {sWS}, 0 offen sc1", cond=True)
    a.i("s_waitcnt vmcnt(0)")
    a.i(f"v_cmp_eq_u32 vcc, {sNONl}, v6")
    a.i(f"v_cmp_eq_u32 s[4:5], {sNONh}, v7")
    a.i("s_mov_b64 exec, -1")
    a.i("s_and_b64 s[4:5], s[4:5], vcc")
    a.i("s_and_b32 s4, s4, 3")
    a.i("s_cmp_eq_u32 s4, 3")
    a.i("s_cbranch_scc1 L_poll_done")
    a.i("s_sleep 1")
    a.i(f"s_sub_u32 {sCNT}, {sCNT}, 1")
    a.i(f"s_cmp_lg_u32 {sCNT}, 0")
    a.i("s_cbranch_scc1 L_poll")
    a.label("L_poll_done")
    order = opts.get('halo_order',[0,1,2,3,4,5,6,7])
    for hb in order:
        base=HALO+14*hb
        src = sKV2 if hb<4 else sKV1
        bt=hb%4
        a.i(f"s_add_u32 {sT0}, {src}, {9216*bt}")
        tg=f'h{hb}'
        a.i(f"buffer_load_dwordx4 a[{base}:{base+3}], {vPk}, {sWS}, {sT0} offen sc1", tag=tg)
        a.i(f"buffer_load_dword a{base+4}, {vPl}, {sWS}, {sT0} offen sc1", tag=tg)
        a.i(f"s_mov_b64 exec, {sVM}")
        for j in range(2):
            a.i(f"buffer_load_dwordx4 a[{base+6+4*j}:{base+9+4*j}], {vPv}, {sWS}, {sT0} offen offset:{576*j} sc1", tag=tg)
        a.i("s_mov_b64 exec, -1")

def kv_regs(jb):
    if jb>=0: return 'v', OWN+14*jb
    return 'a', HALO+14*(jb+8)

def tile_list():
    T=[]
    for i in range(4):
        for bt in range(i+1): T.append((i,bt))
    for i in range(4):
        for jb in range(i-8,0): T.append((i,jb))
    return T

def attention(a, opts, after_block=None):
    a.c("---- attention")
    T=tile_list(); n=len(T)
    first={}; last={}
    for k,(i,jb) in enumerate(T):
        first.setdefault(i,k); last[i]=k
    Sreg=lambda k: (S0 if k%2==0 else S1)
    Preg=lambda k: (P0 if k%2==0 else P1)
    waited=set()
    def qk(k):
        i,jb=T[k]; p,base=kv_regs(jb); S=rng('v',Sreg(k),16)
        pre=[]
        return [f"v_mfma_f32_32x32x16_bf16 {S}, {rng(p,base,4)}, a[{8*i}:{8*i+3}], 0",
                f"v_mfma_f32_32x32x16_bf16 {S}, {rng(p,base+4,4)}, a[{8*i+4}:{8*i+7}], {S}"]
    def pv(k):
        i,jb=T[k]; p,base=kv_regs(jb); O=rng('v',OACC+16*i,16); P=Preg(k)
        c0 = '0' if k==first[i] else O
        return [f"v_mfma_f32_32x32x16_bf16 {O}, {rng(p,base+6,4)}, v[{P}:{P+3}], {c0}",
                f"v_mfma_f32_32x32x16_bf16 {O}, {rng(p,base+10,4)}, v[{P+4}:{P+7}], {O}"]
    def need_halo(k):
        i,jb=T[k]
        if jb<0 and jb not in waited:
            waited.add(jb); a.wait(vm=f'h{jb+8}')
    a.wait(lg='qf')
    q0=qk(0); a.i(q0[0]); a.i(q0[1])
    extra=[]
    for k in range(n+1):
        mf=[]
        if k+1<n:
            need_halo(k+1)
            mf+=qk(k+1)
        else: mf+=[None,None]
        if k>=1: mf+=pv(k-1)
        else: mf+=[None,None]
        if k==0: a.nop(12)
        if k==n: a.nop(2)
        S=Sreg(k); P=Preg(k)
        i,jb=T[k] if k<n else (None,None)
        for seg in range(4):
            if mf[seg]: a.i(mf[seg])
            if k<n:
                for e in range(4): a.i(f"v_exp_f32 v{S+4*seg+e}, v{S+4*seg+e}")
                for u in (2*seg,2*seg+1):
                    a.i(f"v_cvt_pk_bf16_f32 v{P+u}, v{S+2*u}, v{S+2*u+1}")
                if jb==i or jb==i-8:
                    M = MASKD if jb==i else MASKF
                    for u in (2*seg,2*seg+1):
                        a.i(f"v_and_b32 v{P+u}, v{M+u}, v{P+u}")
            cnt=0; inexec=False
            while extra and (cnt<(6 if k<n else 1000) or inexec):
                x=extra.pop(0)
                txt=x[0] if isinstance(x,tuple) else x
                if txt.startswith('s_mov_b64 exec'): inexec = not txt.endswith('-1')
                if isinstance(x,tuple): a.i(*x)
                else: a.i(x)
                cnt+=1
        if k>=1:
            ib=T[k-1][0]
            if last[ib]==k-1:
                if k==n:
                    a.nop(14)
                    for x in after_block(ib):
                        if isinstance(x,tuple): a.i(*x)
                        else: a.i(x)
                else:
                    extra += ["s_nop 3"]*0
                    pend=after_block(ib)
                    extra += ["s_nop 0"]*0 + pend
    assert not extra

def norm_block(i):
    O=OACC+16*i
    L=[]
    t=84
    L.append(f"v_rcp_f32 v{t}, v{O+10}")
    L.append(f"v_cmp_nle_f32 vcc, v252, v{O+10}")
    L.append(f"v_cmp_nge_f32 s[4:5], v253, v{O+10}")
    for r in range(10): L.append(f"v_mul_f32 v{O+r}, v{t}, v{O+r}")
    L.append(f"s_or_b64 {sBAD}, {sBAD}, vcc")
    L.append(f"s_or_b64 {sBAD}, {sBAD}, s[4:5]")
    L.append(f"v_mov_b32 v{t+2}, 0"); L.append(f"v_mov_b32 v{t+3}, 0")
    L.append(f"v_mov_b32 v{t+4}, 0"); L.append(f"v_mov_b32 v{t+5}, 0")
    for r in range(0,10,2):
        L.append(f"v_pk_fma_f32 v[{t+2}:{t+3}], v[{O+r}:{O+r+1}], v[{t+4}:{t+5}], v[{t+2}:{t+3}]")
    L.append(f"v_add_f32 v{t+2}, v{t+2}, v{t+3}")
    for u in range(5):
        L.append(f"v_cvt_pk_bf16_f32 v{O+u}, v{O+2*u}, v{O+2*u+1}")
    L.append(f"v_cmp_u_f32 vcc, v{t+2}, v{t+2}")
    L.append(f"s_add_u32 {sT0}, {sOM}, {i*32*1024}")
    L.append(f"s_add_u32 {sT1}, {sOL}, {i*8*512}")
    L.append(f"s_or_b64 {sBAD}, {sBAD}, vcc")
    L.append((f"buffer_store_dwordx4 v[{O}:{O+3}], {vPk}, {sWS}, {sT0} offen sc1", f'o{i}'))
    L.append(f"s_mov_b64 exec, {sLO}")
    L.append((f"buffer_store_dword v{O+4}, {vOl}, {sWS}, {sT1} offen sc1", f'o{i}'))
    L.append(f"s_mov_b64 exec, -1")
    return L

def setup_O(a):
    a.i(f"s_lshl_b32 s6, {sB}, 6")
    a.i(f"s_lshl_b32 s7, {sC}, 2")
    a.i("s_add_u32 s6, s6, s7")
    a.i(f"s_lshl_b32 s7, s6, 5")
    a.i(f"s_lshl_b32 s3, {sG}, 2")
    a.i(f"s_add_u32 s7, s7, s3")
    a.i(f"s_add_u32 s7, s7, {sWV}")
    a.i(f"s_lshl_b32 s7, s7, 10")
    a.i(f"s_add_u32 {sOM}, s7, {WS_OM}")
    a.i(f"s_lshl_b32 s7, s6, 3")
    a.i(f"s_add_u32 s7, s7, {sG}")
    a.i(f"s_lshl_b32 s7, s7, 9")
    a.i(f"s_add_u32 {sOL}, s7, {WS_OL}")
    a.i(f"v_mov_b32 v252, {f2u(2.0**-40):#x}")
    a.i(f"v_mov_b32 v253, {f2u(2.0**40):#x}")
    a.i(f"s_mov_b64 {sBAD}, 0")

def k2_body(a, opts):
    L='v1'
    a.i("s_load_dwordx8 s[36:43], s[0:1], 0")
    a.i("s_load_dwordx8 s[44:51], s[0:1], 32")
    a.i("s_load_dwordx2 s[52:53], s[0:1], 64")
    a.i("s_cmp_ge_u32 s2, 256")
    a.i("s_cbranch_scc1 L2_end")
    a.i(f"v_and_b32 {L}, 63, v0")
    a.i("v_lshrrev_b32 v2, 6, v0")
    a.i("s_and_b32 s3, s2, 7")
    a.i(f"v_readfirstlane_b32 {sWV}, v2")
    a.i(f"s_lshr_b32 {sB}, s3, 2")
    a.i("s_lshr_b32 s4, s2, 3")
    a.i("s_bfe_u32 s5, s3, 0x10001")
    a.i(f"s_lshl_b32 {sC}, s5, 3")
    a.i("s_lshr_b32 s5, s4, 2")
    a.i(f"s_add_u32 {sC}, {sC}, s5")
    a.i("s_and_b32 s5, s3, 1")
    a.i(f"s_lshl_b32 {sG}, s5, 2")
    a.i("s_and_b32 s4, s4, 3")
    a.i(f"s_add_u32 {sG}, {sG}, s4")
    a.i("s_mov_b32 s83, s5")
    a.i("s_mov_b32 s84, s4")
    p3_addresses(a)
    a.wait(lg=0)
    a.i(f"s_cmp_eq_u32 {sB}, 0")
    a.i("s_cselect_b32 s16, s40, s46"); a.i("s_cselect_b32 s17, s41, s47")
    a.i(f"s_mov_b32 s18, {WO_BYTES}"); a.i("s_mov_b32 s19, 0x00020000")
    a.i("s_mov_b32 s20, s48"); a.i("s_mov_b32 s21, s49")
    a.i(f"s_mov_b32 s22, {OUT_BYTES}"); a.i("s_mov_b32 s23, 0x00020000")
    a.i("s_mov_b32 s24, s52"); a.i("s_mov_b32 s25, s53")
    a.i(f"s_mov_b32 s26, {WS_BYTES}"); a.i("s_mov_b32 s27, 0x00020000")
    p3_oloads(a)
    for it in range(5):
        if it==4:
            a.i(f"s_cmp_lg_u32 {sWV}, 0")
            a.i("s_cbranch_scc1 L2_skip16")
            a.i(f"s_mov_b32 {sT0}, 0")
            a.i(f"s_mov_b32 {sT1}, {16*9216}")
            for x in wo_dma(vWO2,cond=True): a.i(*x) if isinstance(x,tuple) else a.i(x)
            a.label("L2_skip16")
        else:
            a.i(f"s_add_u32 {sT2}, {sWV}, {4*it}")
            a.i(f"s_mul_i32 {sT0}, {sT2}, 41472")
            a.i(f"s_mul_i32 {sT1}, {sT2}, 9216")
            for x in wo_dma(vWO1): a.i(*x) if isinstance(x,tuple) else a.i(x)
    a.i("s_waitcnt vmcnt(0)")
    a.i("s_barrier")
    def frag_reads(kap, buf):
        slot = kap if kap<17 else 0
        bi=slot//7; off=(slot%7)*9216
        R=[]
        for t in range(9):
            r=AF+buf*36+4*t
            R.append([(f"ds_read_b64_tr_b16 v[{r+2*h}:{r+2*h+1}], {vAr[bi]} offset:{off+32*t+4608*h}", f'a{kap}_{t}') for h in range(2)])
        return R
    for grp in frag_reads(0,0):
        for x in grp: a.i(*x)
    for kap in range(18):
        buf=kap%2
        if kap==2:
            a.i("s_barrier")
            a.i(f"s_cmp_lg_u32 {sWV}, 1")
            a.i("s_cbranch_scc1 L2_skip17")
            a.i(f"s_mov_b32 {sT0}, 331776")
            a.i(f"s_mov_b32 {sT1}, 0")
            for x in wo_dma(vWO2,cond=True): a.i(*x) if isinstance(x,tuple) else a.i(x)
            a.label("L2_skip17")
        if kap==16:
            a.i("s_waitcnt vmcnt(0)")
            a.i("s_barrier")
        R = frag_reads(kap+1, 1-buf) if kap<17 else None
        for t in range(9):
            a.wait(lg=f'a{kap}_{t}')
            r=AF+buf*36+4*t
            acc=rng('v',DACC+4*t,4); c='0' if kap==0 else acc
            a.i(f"v_mfma_f32_16x16x32_bf16 {acc}, v[{r}:{r+3}], v[{OF+4*kap}:{OF+4*kap+3}], {c}")
            if R:
                for x in R[t]: a.i(*x)
    a.nop(10)
    p3_store(a)
    a.label("L2_end")
    a.i("s_endpgm")

vWO1=[f'v{10+j}' for j in range(9)]
vWO2=[f'v{19+j}' for j in range(9)]
vAr=['v28','v29','v30']
vOf1='v31'; vOf2='v32'; vOut='v33'
OF=40
AF=112
DACC=184

def wo_dma(voffs, cond=False):
    L=[]
    for j in range(9):
        if j%4==0:
            L.append(f"s_add_u32 m0, {sT1}, {4096*(j//4)}")
            L.append("s_nop 0")
        L.append((f"buffer_load_dwordx4 {voffs[j]}, {sWO}, {sT0} offen offset:{1024*(j%4)} lds", 'wo', cond))
    return L

def p3_addresses(a):
    L='v1'
    a.i("s_mul_i32 s6, s84, 288")
    for j in range(9):
        a.i(f"v_add_u32 v4, {64*j}, {L}")
        a.i(f"v_mul_u32_u24 v5, 58255, v4")
        a.i(f"v_lshrrev_b32 v5, 20, v5")
        a.i(f"v_mul_u32_u24 v6, 18, v5")
        a.i(f"v_sub_u32 v6, v4, v6")
        a.i(f"v_lshlrev_b32 v6, 4, v6")
        a.i(f"v_add_u32 v6, s6, v6")
        a.i(f"v_subrev_u32 v6, {1024*(j%4)}, v6")
        a.i(f"v_bfe_u32 v7, v5, 2, 2")
        a.i(f"v_and_b32 v8, 3, v5")
        a.i(f"v_lshrrev_b32 v9, 4, v5")
        a.i(f"v_lshrrev_b32 v2, 1, v7")
        a.i(f"v_mul_u32_u24 v2, 18, v2")
        a.i(f"v_add_u32 v2, v2, v8")
        a.i(f"v_lshl_add_u32 v2, v9, 3, v2")
        a.i(f"v_and_b32 v3, 1, v7")
        a.i(f"v_lshl_add_u32 v2, v3, 2, v2")
        a.i(f"v_mul_u32_u24 v2, {XROW}, v2")
        a.i(f"v_add_u32 {vWO1[j]}, v2, v6")
        a.i(f"v_lshl_add_u32 v8, v9, 2, v8")
        a.i(f"v_lshrrev_b32 v2, 1, v8")
        a.i(f"v_lshl_add_u32 v2, v7, 2, v2")
        a.i(f"v_mul_u32_u24 v2, 18, v2")
        a.i(f"v_and_b32 v3, 1, v8")
        a.i(f"v_add3_u32 v2, v2, v3, 16")
        a.i(f"v_mul_u32_u24 v2, {XROW}, v2")
        a.i(f"v_add_u32 {vWO2[j]}, v2, v6")
    a.i(f"v_lshrrev_b32 v2, 2, {L}")
    a.i(f"v_mul_u32_u24 v2, 288, v2")
    a.i(f"v_and_b32 v3, 3, {L}")
    a.i(f"v_lshl_add_u32 {vAr[0]}, v3, 3, v2")
    a.i(f"v_add_u32 {vAr[1]}, {7*9216}, {vAr[0]}")
    a.i(f"v_add_u32 {vAr[2]}, {14*9216}, {vAr[0]}")
    a.i(f"v_and_b32 v2, 15, {L}")
    a.i(f"v_lshrrev_b32 v3, 4, {L}")
    a.i(f"s_and_b32 s6, {sWV}, 1")
    a.i(f"s_lshl_b32 s6, s6, 8")
    a.i(f"v_lshl_add_u32 v4, v2, 4, s6")
    a.i(f"v_lshl_add_u32 {vOf1}, v3, 9, v4")
    a.i(f"v_mov_b32 {vOf2}, {vOf1}")
    a.i(f"v_mul_u32_u24 v4, {OUTROW}, v2")
    a.i(f"v_lshl_add_u32 {vOut}, v3, 3, v4")
    a.i(f"s_lshl_b32 s6, {sC}, 2")
    a.i("s_lshl_b32 s7, s83, 1")
    a.i("s_add_u32 s6, s6, s7")
    a.i(f"s_lshr_b32 s7, {sWV}, 1")
    a.i("s_add_u32 s6, s6, s7")
    a.i(f"s_lshl_b32 s7, {sB}, 6")
    a.i("s_add_u32 s6, s6, s7")
    a.i("s_lshl_b32 s85, s6, 15")
    a.i(f"s_add_u32 s85, s85, {WS_OM}")
    a.i("s_lshl_b32 s86, s6, 12")
    a.i(f"s_add_u32 s86, s86, {WS_OL}")
    a.i(f"s_lshl_b32 s6, {sC}, 7")
    a.i("s_lshl_b32 s7, s83, 6")
    a.i("s_add_u32 s6, s6, s7")
    a.i(f"s_lshl_b32 s7, {sWV}, 4")
    a.i("s_add_u32 s6, s6, s7")
    a.i(f"s_mul_i32 s87, s6, {OUTROW}")
    a.i(f"s_mul_i32 s7, {sB}, 1152")
    a.i("s_add_u32 s87, s87, s7")
    a.i("s_mul_i32 s7, s84, 288")
    a.i("s_add_u32 s87, s87, s7")

def p3_oloads(a):
    for kap in range(18):
        if kap<16:
            a.i(f"s_add_u32 {sT0}, s85, {2048*kap}")
            a.i(f"buffer_load_dwordx4 v[{OF+4*kap}:{OF+4*kap+3}], {vOf1}, {sWS}, {sT0} offen sc1", tag=f'of{kap}')
        else:
            a.i(f"s_add_u32 {sT0}, s86, {2048*(kap-16)}")
            a.i(f"buffer_load_dwordx4 v[{OF+4*kap}:{OF+4*kap+3}], {vOf2}, {sWS}, {sT0} offen sc1", tag=f'of{kap}')

def p3_store(a):
    for t in range(9):
        d=DACC+4*t
        a.i(f"v_cvt_pk_bf16_f32 v{d}, v{d}, v{d+1}")
        a.i(f"v_cvt_pk_bf16_f32 v{d+1}, v{d+2}, v{d+3}")
        a.i(f"buffer_store_dwordx2 v[{d}:{d+1}], {vOut}, {sOUT}, s87 offen offset:{32*t}")
    a.i("s_waitcnt vmcnt(0)")

def kd(name, vgpr, accum, sgpr=102):
    return f""".section .rodata,"a"
.p2align 6
.amdhsa_kernel {name}
  .amdhsa_next_free_vgpr {vgpr}
  .amdhsa_next_free_sgpr {sgpr}
  .amdhsa_accum_offset {accum}
  .amdhsa_group_segment_fixed_size 0
  .amdhsa_kernarg_size 72
  .amdhsa_user_sgpr_count 2
  .amdhsa_user_sgpr_kernarg_segment_ptr 1
  .amdhsa_system_sgpr_workgroup_id_x 1
.end_amdhsa_kernel
"""

HEADER = """; Kernarg layout for this problem (72 bytes, ptrs only, base s[0:1]):
"""

def build(opts):
    a=G()
    prologue(a,opts)
    for n in range(4):
        for x in dma_chunk_ins(n,n): a.i(*x) if isinstance(x,tuple) else a.i(x)
    setup2(a,opts)
    setup_O(a)
    side=phase1a(a,opts)
    phase1b(a,side,opts)
    flag_publish_and_poll(a,opts)
    attention(a,opts,after_block=norm_block)
    a.i("s_waitcnt vmcnt(0)")
    a.label("L_end")
    a.i("s_endpgm")
    errs=a.check()
    b=G()
    k2_body(b,opts)
    errs2=b.check()
    k1=f"{NAME}_kernel"; k2=f"{NAME}_p3_kernel"
    txt=HEADER
    txt+=f"; @launch kernel={k1} grid=(256,1,1) block=(256,1,1) lds={LDS_BYTES}\n"
    txt+=f"; @launch kernel={k2} grid=(256,1,1) block=(256,1,1) lds={17*9216}\n"
    txt+='.amdgcn_target "amdgcn-amd-amdhsa--gfx950"\n.text\n'
    txt+=f".globl {k1}\n.p2align 8\n.type {k1},@function\n{k1}:\n"+a.text()
    txt+=f".globl {k2}\n.p2align 8\n.type {k2},@function\n{k2}:\n"+b.text()
    txt+=kd(k1,512,256)+kd(k2,256,256)
    return txt

if __name__=="__main__":
    out=sys.argv[1] if len(sys.argv)>1 else f"cdna_kernels/{NAME}.s"
    opts={}
    for x in sys.argv[2:]:
        k,_,v=x.partition('='); opts[k]=int(v) if v.lstrip('-').isdigit() else (v or True)
    open(out,'w').write(build(opts))
    print("written",out)
```

```python
import sys, os, struct
sys.path.insert(0, os.path.dirname(os.path.abspath(__file__)))
from asm import *
NAME = "concat_heads__sliding_block__sliding_block__prompt"
XROW=1152; WROW=3456; OUTROW=2304
X_BYTES=2048*1152; W_BYTES=576*3456; WO_BYTES=576*1152; OUT_BYTES=2048*2304
SLOT=36864; WPITCH=320; XOFF=20480; QPITCH=192; QCH=12288
KBASE=0; VBASE=18432; QBASE=36864
LDS_BYTES=163840
WS_KV=0; WS_OM=0x1000000; WS_OL=0x1400000; WS_FKV=0x1800000; WS_FO=0x1840000; WS_FOL=0x1880000
WS_DBG=0x2000000; WS_BYTES=0x4000000
CSCALE = 1.4426950408889634/(18**0.5)
def f2u(x): return struct.unpack('<I',struct.pack('<f',x))[0]
def rng(p,a,n): return f'{p}[{a}:{a+n-1}]'

sX='s[8:11]'; sW='s[12:15]'; sWO='s[16:19]'; sOUT='s[20:23]'; sWS='s[24:27]'; sDBG='s[28:31]'
sB='s32'; sC='s33'; sG='s34'; sWV='s35'
sVM='s[54:55]'; sLO='s[56:57]'
sCI='s58'; sWoff='s59'; sXoff='s60'; sM0='s61'; sKVme='s62'
sT0='s63'; sT1='s64'; sT2='s65'; sFKV='s66'; sT3='s67'
sNONl='s68'; sNONh='s69'; sROT='s70'; sKV1='s71'; sKV2='s72'; sXCC='s73'
sBAD='s[74:75]'; sCNT='s76'; sOM='s77'; sOL='s78'; sFO='s79'; sSC='s80'; sATT='s81'
sRH='s82'; sNQ='s83'; sPOM='s84'; sPOL='s85'; sOUTB='s86'; sWOs='s87'

vLane='v1'
vWoff=[f'v{10+j}' for j in range(5)]
vXoff=[f'v{15+j}' for j in range(4)]
vQoff=['v19','v20','v21']
vWr=['v22','v23']; vMx=['v24','v25']
vXr=[[f'v{26+t}' for t in range(4)],[f'v{30+t}' for t in range(4)]]
vQr='v34'
vKw='v35'; vQw='v36'; vVw='v37'; vVt='v38'
vKr='v39'; vKl='v40'; vVr='v41'; vQrd='v42'; vQl='v43'
vPk='v44'; vPl='v45'; vPv='v46'; vOl='v47'
vNON='v[48:49]'; vVC='v50'; vT='v51'
def WF(b,f): r=52+(b*5+f)*4; return f'v[{r}:{r+3}]'
def WFh(b,f,h): r=52+(b*5+f)*4+2*h; return f'v[{r}:{r+1}]'
def QF(b,f): r=52+(b*3+f)*4; return f'v[{r}:{r+3}]'
def QFh(b,f,h): r=52+(b*3+f)*4+2*h; return f'v[{r}:{r+1}]'
ACC={'K0':92,'K1':108,'V0':124,'V1':140,'MX':156,'Q0':172,'Q1':188,'Q2':204}
def XF(t): return rng('a',4*t,4)
OWN=92; HALO=144
S0=52; S1=68; P0=150; P1=158; OACC=172; MASKD=236; MASKF=244
vWOm=['v16','v17']; vWOl=['v18','v19']; vWOt=['v20','v21']

class G(Asm):
    stamps=None; sel=None
    def stamp(self, name, real=False):
        if self.stamps is None: return
        if self.sel is not None and not (name.startswith('rt_') or name=='entry' or any(name.startswith(x) for x in self.sel)): return
        k=len(self.stamps)
        regs=[88,90,92,94,96,98,100,36,38,40,42,44,46,48,50][k]
        self.stamps.append((name,regs))
        self.i(f"{'s_memrealtime' if real else 's_memtime'} s[{regs}:{regs+1}]")
        self.i("s_waitcnt lgkmcnt(0)")
        self.lg_clear()
    def dump_stamps(self, base):
        if self.stamps is None: return
        self.i(f"s_lshl_b32 s3, s2, 2"); self.i(f"s_add_u32 s3, s3, {sWV}")
        self.i(f"s_lshl_b32 s3, s3, 6"); self.i(f"s_add_u32 s3, s3, {WS_DBG+base}")
        self.i("s_mov_b64 exec, 1")
        for k,(nm,r) in enumerate(self.stamps):
            self.i(f"v_mov_b32 v2, s{r}"); self.i(f"v_mov_b32 v3, {4*k}")
            self.i(f"buffer_store_dword v2, v3, {sWS}, s3 offen")
        self.i("s_mov_b64 exec, -1"); self.i("s_waitcnt vmcnt(0)")
    def emit(self, lst):
        for x in lst:
            if isinstance(x,tuple): self.i(*x)
            else: self.i(x)
    def drain(self, q, budget):
        k=0; inexec=False
        while q and (k<budget or inexec):
            x=q.pop(0)
            txt=x[0] if isinstance(x,tuple) else x
            if txt.startswith('s_mov_b64 exec'): inexec = not txt.endswith('-1')
            if isinstance(x,tuple): self.i(*x)
            else: self.i(x)
            k+=1

def prologue(a, opts):
    L=vLane
    a.c("---- prologue")
    a.stamp('rt_entry',real=True); a.stamp('entry')
    a.i("s_load_dwordx8 s[36:43], s[0:1], 0")
    a.i("s_load_dwordx8 s[44:51], s[0:1], 32")
    a.i("s_load_dwordx2 s[52:53], s[0:1], 64")
    a.i("s_cmp_ge_u32 s2, 256")
    a.i("s_cbranch_scc1 L_end")
    a.i("s_getpc_b64 s[4:5]")
    a.label("L_pc")
    a.i("v_lshlrev_b32 v2, 7, v0")
    a.raw("    v_min_u32 v2, (L_end-L_pc), v2")
    if not opts.get('nopf'): a.i("global_load_dword v255, v2, s[4:5]", tag='pf')
    a.i(f"v_and_b32 {L}, 63, v0")
    a.i("v_lshrrev_b32 v2, 6, v0")
    a.i("s_and_b32 s3, s2, 7")
    a.i(f"v_readfirstlane_b32 {sWV}, v2")
    a.i(f"s_lshr_b32 {sB}, s3, 2")
    a.i("s_lshr_b32 s4, s2, 3")
    a.i("s_and_b32 s5, s3, 3")
    a.i(f"s_lshl_b32 {sC}, s5, 2")
    a.i("s_lshr_b32 s5, s4, 3")
    a.i(f"s_add_u32 {sC}, {sC}, s5")
    a.i(f"s_and_b32 {sG}, s4, 7")
    a.i("s_lshl_b32 s5, s5, 1")
    a.i(f"s_add_u32 s6, s5, {sG}")
    a.i("s_sub_u32 s7, s6, 9")
    a.i("s_cmp_ge_u32 s6, 9")
    a.i(f"s_cselect_b32 {sROT}, s7, s6")
    if not opts.get('rot'): a.i(f"s_mov_b32 {sROT}, 0")
    a.i(f"s_lshl_b32 s6, {sC}, 7"); a.i(f"s_lshl_b32 s7, {sWV}, 5"); a.i("s_add_u32 s6, s6, s7")
    a.i(f"s_mul_i32 s6, s6, {XROW}")
    a.i(f"v_lshrrev_b32 v4, 3, {L}"); a.i(f"v_lshrrev_b32 v5, 4, {L}"); a.i(f"v_and_b32 v6, 7, {L}")
    a.i(f"v_mul_u32_u24 v4, {XROW}, v4")
    a.i(f"v_add_u32 v4, s6, v4")
    for i in range(4):
        a.i(f"v_add_u32 v7, {4*i}, v5"); a.i(f"v_and_b32 v7, 7, v7"); a.i(f"v_xor_b32 v7, v6, v7")
        a.i(f"v_lshl_add_u32 v7, v7, 4, v4")
        a.i(f"v_add_u32 {vXoff[i]}, {8*i*XROW-1024*i}, v7")
    a.i(f"s_mul_i32 s6, {sWV}, {16*WROW}"); a.i(f"s_mul_i32 s7, {sG}, 144"); a.i("s_add_u32 s6, s6, s7")
    a.i(f"s_add_u32 s6, s6, 1152")
    a.i(f"s_movk_i32 s7, {WROW}")
    a.i("v_mov_b32 v9, 0x40000000"); a.i("v_mov_b32 v8, 1008")
    for j in range(5):
        a.i(f"v_add_u32 v4, {64*j}, {L}")
        a.i(f"v_mul_u32_u24 v5, 52429, v4"); a.i(f"v_lshrrev_b32 v5, 20, v5")
        a.i(f"v_mul_u32_u24 v6, 20, v5"); a.i(f"v_sub_u32 v6, v4, v6")
        a.i(f"v_cmp_lt_u32 vcc, 8, v6")
        a.i(f"v_mul_lo_u32 v5, v5, s7")
        a.i(f"v_lshl_add_u32 v5, v6, 4, v5")
        a.i(f"v_cndmask_b32 v7, 0, v8, vcc")
        a.i(f"v_cmp_lt_u32 vcc, 17, v6")
        a.i(f"v_add3_u32 v5, v5, v7, s6")
        comp=1024*j if j<4 else 0
        if comp: a.i(f"v_subrev_u32 v5, {comp}, v5")
        else: a.i("s_nop 0")
        a.i(f"v_cndmask_b32 {vWoff[j]}, v5, v9, vcc")
    a.stamp('p_pre')
    a.wait(lg=0)
    a.stamp('p_karg')
    a.i(f"s_cmp_eq_u32 {sB}, 0")
    a.i("s_cselect_b32 s8, s36, s42");  a.i("s_cselect_b32 s9, s37, s43")
    a.i("s_cselect_b32 s12, s38, s44"); a.i("s_cselect_b32 s13, s39, s45")
    a.i(f"s_mov_b32 s10, {X_BYTES}"); a.i("s_mov_b32 s11, 0x00020000")
    a.i(f"s_mov_b32 s14, {W_BYTES}"); a.i("s_mov_b32 s15, 0x00020000")
    a.i("s_cselect_b32 s16, s40, s46"); a.i("s_cselect_b32 s17, s41, s47")
    a.i(f"s_mov_b32 {sCI}, {sROT}")
    a.i(f"s_mul_i32 {sWoff}, {sCI}, {64*WROW}")
    a.i(f"s_lshl_b32 {sXoff}, {sCI}, 7")

vTA='v[240:241]'
def touch_setup(a, opts):
    L=vLane
    a.i("s_lshr_b32 s4, s2, 3")
    a.i(f"v_cmp_le_u32 vcc, 18, {L}")
    a.i(f"v_mov_b32 v2, {XROW+18*128}")
    a.i(f"v_lshlrev_b32 v3, 7, {L}")
    a.i(f"v_mov_b32 v2, {WROW-18*128}")
    a.i(f"v_cndmask_b32 v2, 0, v2, vcc")
    a.i(f"v_add_u32 v3, v3, v2")
    a.i(f"s_mul_i32 s5, s4, {2*WROW}"); a.i(f"s_add_u32 s5, s5, {9*128}")
    a.i(f"v_add_u32 v3, s5, v3")
    a.i("s_and_b32 s5, s2, 3"); a.i("s_lshl_b32 s5, s5, 9"); a.i("s_lshl_b32 s6, s4, 4"); a.i("s_add_u32 s5, s5, s6")
    a.i(f"v_subrev_u32 v4, 36, {L}"); a.i(f"v_and_b32 v4, 15, v4"); a.i(f"v_add_u32 v4, s5, v4"); a.i(f"v_mul_u32_u24 v4, {XROW}, v4")
    a.i(f"v_cmp_le_u32 vcc, 36, {L}")
    a.i(f"v_mov_b32 v5, s12"); a.i("v_mov_b32 v6, s8"); a.i("v_mov_b32 v7, s13"); a.i("v_mov_b32 v8, s9")
    a.i(f"v_cndmask_b32 v3, v3, v4, vcc")
    a.i(f"v_cndmask_b32 v5, v5, v6, vcc")
    a.i(f"v_cndmask_b32 v7, v7, v8, vcc")
    a.i(f"v_mov_b32 v9, {64*WROW}"); a.i("v_mov_b32 v6, 128")
    a.i(f"v_cndmask_b32 v242, v9, v6, vcc")
    a.i(f"s_add_u32 s5, {sWV}, 1")
    a.i(f"v_mul_lo_u32 v9, v242, s5")
    a.i(f"v_add_u32 v3, v3, v9")
    a.i(f"v_add_co_u32 v240, vcc, v5, v3"); a.i("s_nop 1"); a.i(f"v_addc_co_u32 v241, vcc, 0, v7, vcc")
    a.i(f"v_lshlrev_b32 v242, 2, v242")
def touch_ins(second):
    L=[]
    if second:
        L+= ["v_add_co_u32 v240, vcc, v240, v242", "s_nop 1", "v_addc_co_u32 v241, vcc, 0, v241, vcc"]
    L+= ["s_mov_b64 exec, 0x000fffffffffffff" if False else "s_mov_b64 exec, s[6:7]", (f"global_load_dword v255, {vTA}, off",'touch'), "s_mov_b64 exec, -1"]
    return L
def touch_q(a):
    L=vLane
    a.i("s_lshr_b32 s4, s2, 3")
    a.i(f"v_mul_u32_u24 v2, 7282, {L}"); a.i("v_lshrrev_b32 v2, 16, v2")
    a.i(f"v_mul_u32_u24 v3, 9, v2"); a.i(f"v_sub_u32 v3, {L}, v3")
    a.i(f"v_min_u32 v2, 5, v2")
    a.i(f"s_min_u32 s5, {sWV}, 2"); a.i("s_mul_i32 s5, s5, 6"); a.i("s_mul_i32 s6, s4, 18"); a.i("s_add_u32 s5, s5, s6")
    a.i(f"v_add_u32 v2, s5, v2"); a.i(f"v_mul_u32_u24 v2, {WROW}, v2"); a.i(f"v_lshl_add_u32 v2, v3, 7, v2")
    a.i(f"buffer_load_dword v255, v2, {sW}, 0 offen", 'touch')
def touch_wo(a):
    L=vLane
    a.i("s_lshr_b32 s4, s2, 3")
    a.i(f"s_min_u32 s5, {sWV}, 2"); a.i("s_mul_i32 s5, s5, 54"); a.i("s_mul_i32 s6, s4, 162"); a.i("s_add_u32 s5, s5, s6")
    a.i(f"v_min_u32 v2, 53, {L}"); a.i(f"v_add_u32 v2, s5, v2"); a.i(f"v_lshlrev_b32 v2, 7, v2")
    a.i(f"buffer_load_dword v255, v2, {sWO}, 0 offen", 'touch')

def next_chunk_ins():
    return [f"s_add_u32 {sCI}, {sCI}, 1", f"s_cmp_eq_u32 {sCI}, 9", f"s_cselect_b32 {sCI}, 0, {sCI}",
            f"s_mul_i32 {sWoff}, {sCI}, {64*WROW}", f"s_lshl_b32 {sXoff}, {sCI}, 7"]

def dma_chunk_groups(slot, n):
    base=slot*SLOT; tag=f'ch{n}'; Gs=[]
    for i in range(4):
        pre=[f"s_lshl_b32 {sM0}, {sWV}, 12", f"s_add_u32 m0, {sM0}, {base+XOFF}", "s_nop 0"] if i==0 else []
        Gs.append(pre+[(f"buffer_load_dwordx4 {vXoff[i]}, {sX}, {sXoff} offen offset:{1024*i} lds", tag)])
    for j in range(4):
        pre=[f"s_mul_i32 {sM0}, {sWV}, 5120", f"s_add_u32 m0, {sM0}, {base}", "s_nop 0"] if j==0 else []
        Gs.append(pre+[(f"buffer_load_dwordx4 {vWoff[j]}, {sW}, {sWoff} offen offset:{1024*j} lds", tag)])
    Gs.append([f"s_add_u32 m0, {sM0}, {base+4096}", "s_nop 0", (f"buffer_load_dwordx4 {vWoff[4]}, {sW}, {sWoff} offen lds", tag)]+next_chunk_ins())
    return Gs

def dma_wq_groups(n):
    reg = SLOT*(1+n//3) + (n%3)*QCH
    Gs=[]
    for e in range(3):
        pre=[f"s_mul_i32 {sM0}, {sWV}, 3072", f"s_add_u32 m0, {sM0}, {reg}", "s_nop 0"] if e==0 else []
        post=next_chunk_ins() if e==2 else []
        Gs.append(pre+[(f"buffer_load_dwordx4 {vQoff[e]}, {sW}, {sWoff} offen offset:{1024*e} lds", f'wq{n}')]+post)
    return Gs

def setupA(a, opts):
    L=vLane
    a.c("---- setup A")
    a.i(f"v_bfe_u32 v4, {L}, 2, 2"); a.i(f"v_lshrrev_b32 v5, 5, {L}")
    a.i(f"v_lshl_add_u32 v4, v5, 3, v4")
    a.i(f"v_bfe_u32 v6, {L}, 4, 1"); a.i(f"v_and_b32 v7, 3, {L}")
    a.i(f"v_mul_u32_u24 v8, {WPITCH}, v4")
    a.i(f"v_lshlrev_b32 v9, 5, v6"); a.i(f"v_lshl_add_u32 v9, v7, 3, v9")
    a.i(f"v_add_u32 {vWr[0]}, v8, v9"); a.i(f"v_add_u32 {vWr[1]}, {2*SLOT}, {vWr[0]}")
    a.i(f"v_mul_u32_u24 v2, {QPITCH}, v4")
    a.i(f"v_add3_u32 {vQr}, v2, v9, 0"); a.i(f"v_add_u32 {vQr}, {SLOT}, {vQr}")
    a.i(f"v_lshl_add_u32 v9, v6, 2, v7")
    a.i(f"v_lshlrev_b32 v2, 3, v9"); a.i(f"v_add_u32 v2, 128, v2"); a.i(f"v_add_u32 v3, 128, v2")
    a.i(f"v_cmp_lt_u32 vcc, 1, v9"); a.i("s_nop 1")
    a.i(f"v_cndmask_b32 v2, v2, v3, vcc")
    a.i(f"v_add_u32 {vMx[0]}, v8, v2"); a.i(f"v_add_u32 {vMx[1]}, {2*SLOT}, {vMx[0]}")
    a.i(f"v_and_b32 v2, 31, {L}"); a.i(f"v_bfe_u32 v3, {L}, 1, 3"); a.i(f"v_xor_b32 v3, v3, v5")
    a.i(f"v_lshlrev_b32 v3, 4, v3"); a.i(f"v_lshl_add_u32 v3, v2, 7, v3")
    a.i(f"s_lshl_b32 s6, {sWV}, 12"); a.i(f"s_add_u32 s6, s6, {XOFF}")
    a.i(f"v_add_u32 v3, s6, v3")
    for t in range(4):
        a.i(f"v_xor_b32 {vXr[0][t]}, {32*t}, v3"); a.i(f"v_add_u32 {vXr[1][t]}, {2*SLOT}, {vXr[0][t]}")

def setupB(a, opts):
    L=vLane
    a.c("---- setup B")
    a.i("s_mov_b32 s20, s48"); a.i("s_mov_b32 s21, s49"); a.i(f"s_mov_b32 s22, {OUT_BYTES}"); a.i("s_mov_b32 s23, 0x00020000")
    a.i("s_mov_b32 s24, s52"); a.i("s_mov_b32 s25, s53"); a.i(f"s_mov_b32 s26, {WS_BYTES}"); a.i("s_mov_b32 s27, 0x00020000")
    a.i("s_mov_b32 s28, s50"); a.i("s_mov_b32 s29, s51"); a.i("s_mov_b32 s30, 256"); a.i("s_mov_b32 s31, 0x00020000")
    a.i(f"s_mov_b32 s18, {WO_BYTES}"); a.i("s_mov_b32 s19, 0x00020000")
    a.i("s_mov_b32 s54, 0x3ffff"); a.i("s_mov_b32 s55, 0x3ffff"); a.i("s_mov_b32 s56, -1"); a.i("s_mov_b32 s57, 0")
    a.i(f"s_mov_b32 {sSC}, {f2u(CSCALE):#x}"); a.i(f"s_mov_b32 {sATT}, 0")
    a.i(f"s_getreg_b32 {sXCC}, hwreg(HW_REG_XCC_ID, 0, 4)")
    a.i(f"s_or_b32 s3, s2, {sWV}"); a.i("s_cmp_lg_u32 s3, 0"); a.i("s_cbranch_scc1 L_nononce")
    a.i("s_memrealtime s[4:5]"); a.i("s_waitcnt lgkmcnt(0)"); a.i("s_or_b32 s4, s4, 1")
    a.i("v_mov_b32 v2, s4"); a.i("v_mov_b32 v3, s5"); a.i("v_mov_b32 v4, 0")
    a.i("s_mov_b64 exec, 1")
    a.i(f"buffer_store_dwordx2 v[2:3], v4, {sDBG}, 0 offen sc1", cond=True)
    a.i("s_mov_b64 exec, -1")
    a.label("L_nononce"); a.lg_clear()
    a.i(f"s_mul_i32 s6, {sWV}, {16*WROW}"); a.i(f"s_mul_i32 s7, {sG}, 144"); a.i("s_add_u32 s6, s6, s7")
    a.i(f"s_movk_i32 s7, {WROW}"); a.i("v_mov_b32 v9, 0x40000000")
    for e in range(3):
        a.i(f"v_add_u32 v4, {64*e}, {L}")
        a.i(f"v_mul_u32_u24 v5, 21846, v4"); a.i(f"v_lshrrev_b32 v5, 18, v5")
        a.i(f"v_mul_u32_u24 v6, 12, v5"); a.i(f"v_sub_u32 v6, v4, v6")
        a.i(f"v_cmp_lt_u32 vcc, 8, v6")
        a.i(f"v_mul_lo_u32 v5, v5, s7"); a.i(f"v_lshl_add_u32 v5, v6, 4, v5")
        a.i(f"v_add_u32 v5, s6, v5"); a.i(f"v_subrev_u32 v5, {1024*e}, v5")
        a.i(f"v_cndmask_b32 {vQoff[e]}, v5, v9, vcc")
    a.i(f"v_and_b32 v2, 31, {L}"); a.i(f"v_lshrrev_b32 v5, 5, {L}")
    a.i(f"s_lshl_b32 s6, {sWV}, 5"); a.i(f"v_add_u32 v3, s6, v2"); a.i(f"v_mul_u32_u24 v3, 144, v3")
    a.i(f"v_lshl_add_u32 {vKw}, v5, 3, v3"); a.i(f"v_add_u32 {vQw}, {QBASE}, {vKw}")
    a.i(f"s_mul_i32 s6, {sWV}, 4608"); a.i(f"s_add_u32 s6, s6, {VBASE}")
    a.i(f"v_mul_u32_u24 v3, 1152, v5"); a.i(f"v_lshl_add_u32 v3, v2, 4, v3"); a.i(f"v_add_u32 {vVw}, s6, v3")
    a.i(f"v_lshrrev_b32 v3, 4, v2"); a.i(f"v_mul_u32_u24 v3, 2304, v3"); a.i(f"v_bfe_u32 v4, v2, 2, 1")
    a.i(f"v_mul_u32_u24 v4, 1152, v4"); a.i(f"v_add_u32 v3, v3, v4"); a.i(f"v_and_b32 v4, 3, v2")
    a.i(f"v_bfe_u32 v6, v2, 3, 1"); a.i(f"v_lshl_add_u32 v4, v6, 2, v4"); a.i(f"v_lshl_add_u32 v3, v4, 1, v3")
    a.i(f"v_lshl_add_u32 v3, v5, 6, v3"); a.i(f"v_add_u32 v3, {64*16}, v3"); a.i(f"v_add_u32 {vVt}, s6, v3")
    a.i(f"s_mul_i32 s6, {sWV}, 36"); a.i(f"v_mul_u32_u24 v3, 144, v2"); a.i(f"v_add_u32 v3, s6, v3")
    a.i(f"v_lshl_add_u32 {vKr}, v5, 4, v3"); a.i(f"v_add_u32 {vKl}, 32, v3")
    a.i(f"v_add_u32 {vQrd}, {QBASE}, {vKr}"); a.i(f"v_add_u32 {vQl}, {QBASE}, {vKl}")
    a.i(f"s_mul_i32 s6, {sWV}, {18*16}"); a.i(f"s_add_u32 s6, s6, {VBASE}")
    a.i(f"v_mul_u32_u24 v3, 1152, v5"); a.i(f"v_lshl_add_u32 v3, v2, 4, v3"); a.i(f"v_add_u32 {vVr}, s6, v3")
    a.i(f"v_lshlrev_b32 {vPk}, 4, {L}"); a.i(f"v_lshlrev_b32 {vPl}, 2, v2"); a.i(f"v_add_u32 {vPl}, 1024, {vPl}")
    a.i(f"v_mul_u32_u24 v3, 288, v5"); a.i(f"v_lshl_add_u32 v3, v2, 4, v3"); a.i(f"v_add_u32 {vPv}, 1152, v3")
    a.i(f"s_lshl_b32 s6, {sWV}, 2"); a.i(f"v_lshlrev_b32 v3, 4, v2"); a.i(f"v_add_u32 {vOl}, s6, v3")
    a.i(f"v_and_b32 v3, 27, v2"); a.i(f"v_cmp_eq_u32 vcc, 18, v3"); a.i(f"v_mov_b32 v4, 0x3f803f80"); a.i("s_nop 0")
    a.i(f"v_cndmask_b32 {vVC}, 0, v4, vcc")
    a.i(f"s_lshl_b32 s6, {sB}, 3"); a.i(f"s_add_u32 s6, s6, {sG}"); a.i(f"s_lshl_b32 s6, s6, 4"); a.i(f"s_add_u32 s6, s6, {sC}")
    a.i(f"s_mul_i32 {sKVme}, s6, {SLOT}"); a.i(f"s_mul_i32 s7, {sWV}, 2304"); a.i(f"s_add_u32 {sKVme}, {sKVme}, s7")
    a.i(f"s_sub_u32 {sKV1}, {sKVme}, {SLOT}"); a.i(f"s_sub_u32 {sKV2}, {sKVme}, {2*SLOT}")
    a.i(f"s_cmp_ge_u32 {sC}, 1"); a.i(f"s_cselect_b32 {sKV1}, {sKV1}, 0x70000000")
    a.i(f"s_cmp_ge_u32 {sC}, 2"); a.i(f"s_cselect_b32 {sKV2}, {sKV2}, 0x70000000")
    a.i(f"s_lshl_b32 s6, s6, 2"); a.i(f"s_add_u32 s6, s6, {sWV}"); a.i(f"s_lshl_b32 s6, s6, 7")
    a.i(f"s_add_u32 {sFKV}, s6, {WS_FKV}")
    a.i(f"s_cmp_ge_u32 {sC}, 1"); a.i(f"s_cselect_b32 s6, -1, 0"); a.i(f"s_cmp_ge_u32 {sC}, 2"); a.i(f"s_cselect_b32 s7, -1, 0")
    a.i(f"v_and_b32 v2, s6, {vVC}"); a.i(f"v_and_b32 v3, s7, {vVC}"); a.i(f"v_mov_b32 v4, 0x3f803f80")
    for hb in range(8):
        base=HALO+14*hb
        a.i(f"v_accvgpr_write_b32 a{base+5}, v4")
        for r in range(8): a.i(f"v_accvgpr_write_b32 a{base+6+r}, {'v3' if hb<4 else 'v2'}")
    a.i(f"v_and_b32 v2, 31, {L}"); a.i(f"v_lshlrev_b32 v3, 2, v5"); a.i(f"v_sub_u32 v2, v2, v3")
    a.i(f"v_mov_b32 v6, 0xffff"); a.i(f"v_mov_b32 v7, 0xffff0000")
    for u in range(8):
        r0=2*u; k0=(r0&3)+8*(r0>>2)
        a.i(f"v_cmp_le_i32 vcc, {k0}, v2"); a.i(f"v_cmp_le_i32 s[4:5], {k0+1}, v2"); a.i("s_nop 0")
        a.i(f"v_cndmask_b32 v3, 0, v6, vcc"); a.i(f"v_cndmask_b32 v4, 0, v7, s[4:5]")
        a.i(f"v_or_b32 v{MASKD+u}, v3, v4"); a.i(f"v_not_b32 v{MASKF+u}, v{MASKD+u}")
    a.i(f"s_lshl_b32 s6, {sB}, 6"); a.i(f"s_lshl_b32 s7, {sC}, 2"); a.i("s_add_u32 s6, s6, s7")
    a.i(f"s_lshl_b32 s7, s6, 5"); a.i(f"s_lshl_b32 s3, {sG}, 2"); a.i(f"s_add_u32 s7, s7, s3"); a.i(f"s_add_u32 s7, s7, {sWV}")
    a.i(f"s_lshl_b32 s7, s7, 10"); a.i(f"s_add_u32 {sOM}, s7, {WS_OM}")
    a.i(f"s_lshl_b32 s7, s6, 3"); a.i(f"s_add_u32 s7, s7, {sG}"); a.i(f"s_lshl_b32 s7, s7, 9"); a.i(f"s_add_u32 {sOL}, s7, {WS_OL}")
    a.i(f"s_lshr_b32 {sRH}, {sG}, 2"); a.i(f"s_and_b32 {sNQ}, {sG}, 3")
    a.i(f"s_lshl_b32 s7, {sRH}, 1"); a.i("s_add_u32 s3, s6, s7"); a.i(f"s_lshr_b32 s7, {sWV}, 1"); a.i("s_add_u32 s3, s3, s7")
    a.i(f"s_lshl_b32 {sPOM}, s3, 15"); a.i(f"s_add_u32 {sPOM}, {sPOM}, {WS_OM}")
    a.i(f"s_lshl_b32 {sPOL}, s3, 12"); a.i(f"s_add_u32 {sPOL}, {sPOL}, {WS_OL}")
    a.i(f"s_lshl_b32 s6, {sC}, 7"); a.i(f"s_lshl_b32 s7, {sRH}, 6"); a.i("s_add_u32 s6, s6, s7")
    a.i(f"s_lshl_b32 s7, {sWV}, 4"); a.i("s_add_u32 s6, s6, s7"); a.i(f"s_mul_i32 {sOUTB}, s6, {OUTROW}")
    a.i(f"s_mul_i32 s7, {sB}, 1152"); a.i(f"s_add_u32 {sOUTB}, {sOUTB}, s7")
    a.i(f"s_mul_i32 s7, {sNQ}, 288"); a.i(f"s_add_u32 {sOUTB}, {sOUTB}, s7")
    a.i(f"s_lshl_b32 s6, {sB}, 4"); a.i(f"s_add_u32 s6, s6, {sC}"); a.i(f"s_lshl_b32 {sFO}, s6, 12")
    a.i(f"s_add_u32 {sFO}, {sFO}, {WS_FO}")
    a.i(f"v_mov_b32 v252, {f2u(2.0**-40):#x}"); a.i(f"v_mov_b32 v253, {f2u(2.0**40):#x}")
    a.i(f"s_mov_b64 {sBAD}, 0")

def wq_reads(tau):
    n,t=divmod(tau,4); b=tau%2
    off=(n%3)*QCH+16*QPITCH*t
    return [[(f"ds_read_b64_tr_b16 {QFh(b,f,h)}, {vQr} offset:{off+4*QPITCH*h+64*f}", f'q{tau}_{f}') for h in range(2)] for f in range(3)]

def phase1a(a, opts, pend):
    a.c("---- phase 1a")
    def reads(tau):
        n,t=divmod(tau,4); slot=n%4; hi=slot>=2; base=(slot%2)*SLOT; b=tau%2
        R=[[(f"ds_read_b128 {XF(tau)}, {vXr[hi][t]} offset:{base}", f'x{tau}')] +
           [(f"ds_read_b64_tr_b16 {WFh(b,0,h)}, {vWr[hi]} offset:{base+5120*t+1280*h}", f'w{tau}_0') for h in range(2)]]
        for f,co in ((1,64),(2,144),(3,208)):
            R.append([(f"ds_read_b64_tr_b16 {WFh(b,f,h)}, {vWr[hi]} offset:{base+5120*t+1280*h+co}", f'w{tau}_{f}') for h in range(2)])
        R.append([(f"ds_read_b64_tr_b16 {WFh(b,4,h)}, {vMx[hi]} offset:{base+5120*t+1280*h}", f'w{tau}_4') for h in range(2)])
        return R
    a.stamp('setup_done')
    a.wait(vm='ch0'); a.i("s_barrier")
    a.stamp('ch0_landed')
    for grp in reads(0): a.emit(grp)
    names=['K0','K1','V0','V1','MX']
    every=opts.get('dma_every',2)
    slotcnt=0
    for tau in range(36):
        n,t=divmod(tau,4); b=tau%2
        if t==0: a.stamp(f'c{n}')
        if t==3:
            a.wait(vm=f'ch{n+1}' if n<8 else 'wq0')
            a.i("s_barrier")
            if n==0: pend += dma_chunk_groups(3,3)
            elif 1<=n<=5: pend += dma_chunk_groups((n+3)%4, n+3)
            elif n==6:
                pend.append([f"s_mov_b32 {sCI}, {sROT}", f"s_mul_i32 {sWoff}, {sCI}, {64*WROW}"])
                for q in range(3): pend += dma_wq_groups(q)
            elif n==7:
                for q in range(3,6): pend += dma_wq_groups(q)
            elif n==8:
                for q in range(6,9): pend += dma_wq_groups(q)
        R = reads(tau+1) if tau<35 else wq_reads(0)
        for m,nm in enumerate(names):
            a.wait(lg=[f'w{tau}_{m}']+([f'x{tau}'] if m==0 else []))
            acc=rng('v',ACC[nm],16); c='0' if tau==0 else acc
            if nm in ('V0','V1'): a.i(f"v_mfma_f32_32x32x16_bf16 {acc}, {XF(tau)}, {WF(b,m)}, {c}")
            else: a.i(f"v_mfma_f32_32x32x16_bf16 {acc}, {WF(b,m)}, {XF(tau)}, {c}")
            if m<len(R): a.emit(R[m])
            slotcnt+=1
            if pend and slotcnt%every==0: a.emit(pend.pop(0))
        if tau==20:
            a.i(f"v_mov_b32 {vT}, 0")
            a.i(f"buffer_load_dwordx2 {vNON}, {vT}, {sDBG}, 0 offen sc1", tag='nonce')
    return pend

def epi1a_list():
    A=[]; T=76
    for ti,nm in enumerate(('K0','K1')):
        base=ACC[nm]
        for i in range(4):
            t0=T+2*(i%2)
            A+= [f"v_cvt_pk_bf16_f32 v{t0}, v{base+4*i}, v{base+4*i+1}", f"v_cvt_pk_bf16_f32 v{t0+1}, v{base+4*i+2}, v{base+4*i+3}",
                 (f"ds_write_b64 {vKw}, v[{t0}:{t0+1}] offset:{64*ti+16*i}",'e1w')]
    for ti,nm in enumerate(('V0','V1')):
        base=ACC[nm]
        for j in range(2):
            t0=T+4+4*j
            for u in range(4): A.append(f"v_cvt_pk_bf16_f32 v{t0+u}, v{base+8*j+2*u}, v{base+8*j+2*u+1}")
            A.append((f"ds_write_b128 {vVw}, v[{t0}:{t0+3}] offset:{2304*j+512*ti}",'e1w'))
    base=ACC['MX']; t0=T+12
    A+= [f"v_cvt_pk_bf16_f32 v{t0}, v{base}, v{base+1}", f"v_cvt_pk_bf16_f32 v{t0+1}, v{base+2}, v{base+3}",
         (f"ds_write_b64 {vKw}, v[{t0}:{t0+1}] offset:128",'e1w'),
         f"v_cvt_pk_bf16_f32 v{t0+2}, v{base+4}, v{base+5}", f"v_cvt_pk_bf16_f32 v{t0+3}, v{base+6}, v{base+7}",
         (f"ds_write_b16 {vVt}, v{t0+2}",'e1w'), (f"ds_write_b16_d16_hi {vVt}, v{t0+2} offset:16",'e1w'),
         (f"ds_write_b16 {vVt}, v{t0+3} offset:32",'e1w'), (f"ds_write_b16_d16_hi {vVt}, v{t0+3} offset:48",'e1w')]
    return A

def own_presets():
    L=[f"v_mov_b32 v91, 0x3f803f80"]
    for bt in range(4):
        base=OWN+14*bt
        L.append(f"v_mov_b32 v{base+5}, v91")
        for r in range(8): L.append(f"v_mov_b32 v{base+6+r}, {vVC}")
    return L
def own_reads():
    L=[]
    for bt in range(4):
        base=OWN+14*bt
        L.append((f"ds_read_b128 v[{base}:{base+3}], {vKr} offset:{4608*bt}",'own'))
        L.append((f"ds_read_b32 v{base+4}, {vKl} offset:{4608*bt}",'own'))
    L.append(f"s_mov_b64 exec, {sVM}")
    for bt in range(4):
        base=OWN+14*bt
        for j in range(2): L.append((f"ds_read_b128 v[{base+6+4*j}:{base+9+4*j}], {vVr} offset:{4608*bt+2304*j}",'own'))
    L.append(f"s_mov_b64 exec, -1")
    return L
def own_store_groups(mod='sc1', tag='pub'):
    Gs=[]
    for bt in range(4):
        base=OWN+14*bt
        Gs.append([f"s_add_u32 {sT0}, {sKVme}, {9216*bt}", (f"buffer_store_dwordx4 v[{base}:{base+3}], {vPk}, {sWS}, {sT0} offen {mod}",tag)])
        Gs.append([f"s_mov_b64 exec, {sLO}", (f"buffer_store_dword v{base+4}, {vPl}, {sWS}, {sT0} offen {mod}",tag), "s_mov_b64 exec, -1"])
        for j in range(2):
            Gs.append([f"s_mov_b64 exec, {sVM}", (f"buffer_store_dwordx4 v[{base+6+4*j}:{base+9+4*j}], {vPv}, {sWS}, {sT0} offen offset:{576*j} {mod}",tag), "s_mov_b64 exec, -1"])
    return Gs

def phase1b(a, pend, opts):
    a.c("---- phase 1b")
    a.stamp('1a_end')
    q=[]; stores=[]
    E2=opts.get('e2',6); OWNW=opts.get('ownw',9)
    for tau in range(36):
        n,t=divmod(tau,4); b=tau%2
        if tau==1:
            a.i("s_barrier"); q+=epi1a_list()
        if tau==E2:
            a.drain(q,1000); a.wait(lg=0); a.i("s_barrier")
            q+=own_presets()+own_reads()
        if tau==OWNW:
            a.drain(q,1000); a.wait(lg='own')
            a.stamp('pub_start')
            stores=own_store_groups()
        if t==3 and tau<35:
            a.wait(vm=f'wq{n+1}')
            a.i("s_barrier")
            if (n+1)%3==0: a.i(f"v_add_u32 {vQr}, {SLOT}, {vQr}")
        R = wq_reads(tau+1) if tau<35 else []
        for m,nm in enumerate(('Q0','Q1','Q2')):
            a.wait(lg=[f'q{tau}_{m}'])
            acc=rng('v',ACC[nm],16); c='0' if tau==0 else acc
            a.i(f"v_mfma_f32_32x32x16_bf16 {acc}, {QF(b,m)}, {XF(tau)}, {c}")
            if m<len(R): a.emit(R[m])
            if pend: a.emit(pend.pop(0))
            elif q: a.drain(q,5)
            elif stores and m==1: a.emit(stores.pop(0))
    assert not pend and not q
    for g in stores: a.emit(g)
    a.stamp('1b_end')
    a.nop(14)
    T=76
    for ti,nm in enumerate(('Q0','Q1','Q2')):
        base=ACC[nm]; ni=4 if ti<2 else 1
        for r in range(4*ni): a.i(f"v_mul_f32 v{base+r}, {sSC}, v{base+r}")
    for ti,nm in enumerate(('Q0','Q1','Q2')):
        base=ACC[nm]; ni=4 if ti<2 else 1
        for i in range(ni):
            t0=T+2*((ti*4+i)%8)
            a.i(f"v_cvt_pk_bf16_f32 v{t0}, v{base+4*i}, v{base+4*i+1}"); a.i(f"v_cvt_pk_bf16_f32 v{t0+1}, v{base+4*i+2}, v{base+4*i+3}")
            a.i(f"ds_write_b64 {vQw}, v[{t0}:{t0+1}] offset:{64*ti+16*i}",'e2w')
    a.i(f"v_mov_b32 {vT}, 0")
    for i in range(4):
        for r in range(4,8): a.i(f"v_accvgpr_write_b32 a{8*i+r}, {vT}")
    a.wait(lg=0); a.i("s_barrier")
    for i in range(4): a.i(f"ds_read_b128 a[{8*i}:{8*i+3}], {vQrd} offset:{4608*i}",'qf')
    a.i(f"s_mov_b64 exec, {sLO}")
    for i in range(4): a.i(f"ds_read_b32 a{8*i+4}, {vQl} offset:{4608*i}",'qf')
    a.i("s_mov_b64 exec, -1")
    L=vLane
    a.i(f"s_mul_i32 s6, {sNQ}, 288")
    a.i(f"v_lshrrev_b32 v4, 4, {L}")
    a.i(f"v_and_b32 v5, 15, {L}")
    for par in range(2):
        a.i(f"v_add_u32 v6, {4*par}, v4"); a.i(f"v_lshlrev_b32 v6, 1, v6"); a.i(f"v_xor_b32 v6, v5, v6")
        a.i(f"v_lshlrev_b32 v6, 4, v6"); a.i(f"v_add_u32 v6, s6, v6")
        a.i(f"v_mul_u32_u24 v7, {XROW}, v4"); a.i(f"v_add_u32 {vWOm[par]}, v6, v7")
        a.i(f"v_lshrrev_b32 v7, 1, v4"); a.i(f"v_mul_u32_u24 v7, 18, v7"); a.i(f"v_and_b32 v8, 1, v4"); a.i(f"v_add_u32 v7, v7, v8")
        a.i(f"v_mul_u32_u24 v7, {XROW}, v7"); a.i(f"v_add_u32 {vWOl[par]}, v6, v7")
    a.i(f"v_lshrrev_b32 v4, 1, {L}")
    a.i(f"v_and_b32 v5, 1, {L}"); a.i(f"v_lshlrev_b32 v5, 4, v5"); a.i(f"v_add_u32 v5, 256, v5"); a.i(f"v_add_u32 v5, s6, v5")
    a.i(f"v_bfe_u32 v6, v4, 2, 2")
    a.i(f"v_and_b32 v7, 3, v4"); a.i(f"v_lshrrev_b32 v8, 4, v4")
    a.i(f"v_lshrrev_b32 v2, 1, v6"); a.i(f"v_mul_u32_u24 v2, 18, v2"); a.i(f"v_add_u32 v2, v2, v7"); a.i(f"v_lshl_add_u32 v2, v8, 3, v2")
    a.i(f"v_and_b32 v3, 1, v6"); a.i(f"v_lshl_add_u32 v2, v3, 2, v2"); a.i(f"v_mul_u32_u24 v2, {XROW}, v2"); a.i(f"v_add_u32 {vWOt[0]}, v2, v5")
    a.i(f"v_lshl_add_u32 v7, v8, 2, v7")
    a.i(f"v_lshrrev_b32 v2, 1, v7"); a.i(f"v_lshl_add_u32 v2, v6, 2, v2"); a.i(f"v_mul_u32_u24 v2, 18, v2")
    a.i(f"v_and_b32 v3, 1, v7"); a.i(f"v_add3_u32 v2, v2, v3, 16"); a.i(f"v_mul_u32_u24 v2, {XROW}, v2"); a.i(f"v_add_u32 {vWOt[1]}, v2, v5")
    a.wait(lg='qf')
    a.i("s_barrier")
    a.stamp('q_ready')

def wo_dma_groups(kap, slot, uniform_setup):
    Gs=[]
    left = kap>=16
    for e in range(8):
        if left: const=((4*(e&3)+2*(e>>2))*18+16)*XROW
        else: const=(((e&3)>>1)*18+8*(e>>2)+4*(e&1))*XROW
        pre = list(uniform_setup) if e==0 else []
        if e%4==0: pre += [f"s_add_u32 m0, {sT3}, {4096*(e//4)}"]
        voff=(vWOl if left else vWOm)[e&1]
        Gs.append(pre+[f"s_add_u32 {sWOs}, {sT2}, {const-1024*(e%4)}" if const-1024*(e%4)>=0 else f"s_sub_u32 {sWOs}, {sT2}, {1024*(e%4)-const}",
                       (f"buffer_load_dwordx4 {voff}, {sWO}, {sWOs} offen offset:{1024*(e%4)} lds",'wo')])
    Gs.append([f"s_add_u32 m0, {sT3}, 8192", "s_nop 0", (f"buffer_load_dwordx4 {vWOt[1 if left else 0]}, {sWO}, {sT2} offen lds",'wo')])
    return Gs

def wo_prefetch_groups():
    Gs=[]
    for it in range(4):
        setup=[f"s_add_u32 {sT1}, {sWV}, {4*it}", f"s_mul_i32 {sT2}, {sT1}, 41472", f"s_mul_i32 {sT3}, {sT1}, 9216"]
        Gs+=wo_dma_groups(0,None,setup)
    return Gs

def halo_load_groups(hb):
    base=HALO+14*hb; src=sKV2 if hb<4 else sKV1; bt=hb%4; tg=f'h{hb}'
    return [[f"s_add_u32 {sT0}, {src}, {9216*bt}",
             (f"buffer_load_dwordx4 a[{base}:{base+3}], {vPk}, {sWS}, {sT0} offen sc1", tg),
             (f"buffer_load_dword a{base+4}, {vPl}, {sWS}, {sT0} offen sc1", tg),
             f"s_mov_b64 exec, {sVM}",
             (f"buffer_load_dwordx4 a[{base+6}:{base+9}], {vPv}, {sWS}, {sT0} offen sc1", tg),
             (f"buffer_load_dwordx4 a[{base+10}:{base+13}], {vPv}, {sWS}, {sT0} offen offset:576 sc1", tg),
             "s_mov_b64 exec, -1"]]

def get_nonce(a):
    a.i(f"v_readfirstlane_b32 {sNONl}, v48"); a.i(f"v_readfirstlane_b32 {sNONh}, v49"); a.i("s_nop 1")
    a.i(f"s_or_b32 {sT0}, {sNONl}, {sNONh}"); a.i(f"s_cmp_lg_u32 {sT0}, 0"); a.i("s_cbranch_scc1 L_have_nonce")
    a.i(f"s_mov_b32 {sCNT}, 100000")
    a.label("L_nonce_poll")
    a.i(f"v_mov_b32 {vT}, 0")
    a.i(f"buffer_load_dwordx2 {vNON}, {vT}, {sDBG}, 0 offen sc1", cond=True)
    a.i("s_waitcnt vmcnt(0)")
    a.i(f"v_readfirstlane_b32 {sNONl}, v48"); a.i(f"v_readfirstlane_b32 {sNONh}, v49"); a.i("s_nop 1")
    a.i(f"s_or_b32 {sT0}, {sNONl}, {sNONh}"); a.i(f"s_cmp_lg_u32 {sT0}, 0"); a.i("s_cbranch_scc1 L_have_nonce")
    a.i("s_sleep 2"); a.i(f"s_sub_u32 {sCNT}, {sCNT}, 1"); a.i(f"s_cmp_lg_u32 {sCNT}, 0"); a.i("s_cbranch_scc1 L_nonce_poll")
    a.label("L_have_nonce")

def kv_flag_store(a):
    a.wait(vm='pub')
    a.stamp('pub_drained')
    get_nonce(a)
    a.i(f"v_mov_b32 v2, {sNONl}"); a.i(f"v_mov_b32 v3, {sNONh}"); a.i(f"v_mov_b32 v4, 0")
    a.i("s_mov_b64 exec, 1")
    a.i(f"buffer_store_dwordx2 v[2:3], v4, {sWS}, {sFKV} offen sc1", tag='kvflag')
    a.i("s_mov_b64 exec, -1")

def kv_poll(a):
    a.i(f"s_cmp_eq_u32 {sC}, 0"); a.i("s_cbranch_scc1 L_poll_done")
    a.i(f"s_cmp_ge_u32 {sC}, 2"); a.i(f"s_cselect_b32 {sT1}, 2, 1"); a.i(f"s_lshl_b32 {sT1}, {sT1}, 9")
    a.i(f"s_sub_u32 {sT0}, {sFKV}, 512"); a.i(f"s_sub_u32 {sT1}, {sFKV}, {sT1}")
    a.i(f"v_mov_b32 v4, {sT0}"); a.i(f"v_mov_b32 v5, {sT1}"); a.i(f"v_cmp_eq_u32 vcc, 0, {vLane}")
    a.i(f"s_mov_b32 {sCNT}, 200000"); a.i("s_nop 0")
    a.i(f"v_cndmask_b32 v4, v5, v4, vcc")
    a.label("L_poll")
    a.i("s_mov_b64 exec, 3")
    a.i(f"buffer_load_dwordx2 v[6:7], v4, {sWS}, 0 offen sc1", cond=True)
    a.i("s_waitcnt vmcnt(0)")
    a.i(f"v_cmp_eq_u32 vcc, {sNONl}, v6"); a.i(f"v_cmp_eq_u32 s[4:5], {sNONh}, v7")
    a.i("s_mov_b64 exec, -1")
    a.i("s_and_b64 s[4:5], s[4:5], vcc"); a.i("s_and_b32 s4, s4, 3"); a.i("s_cmp_eq_u32 s4, 3"); a.i("s_cbranch_scc1 L_poll_done")
    a.i("s_sleep 1"); a.i(f"s_sub_u32 {sCNT}, {sCNT}, 1"); a.i(f"s_cmp_lg_u32 {sCNT}, 0"); a.i("s_cbranch_scc1 L_poll")
    a.label("L_poll_done")
    a.stamp('poll_done')

def kv_regs(jb): return ('v', OWN+14*jb) if jb>=0 else ('a', HALO+14*(jb+8))
HORDER=[-4,-3,-2,-1,-5,-6,-7,-8]
def tile_list():
    T=[(i,bt) for i in range(4) for bt in range(i+1)]
    for jb in HORDER:
        for i in range(4):
            if i-jb<=8: T.append((i,jb))
    return T

def norm_block(i):
    O=OACC+16*i; t=84; L=[]
    L.append(f"v_rcp_f32 v{t}, v{O+10}")
    L.append(f"v_cmp_nle_f32 vcc, v252, v{O+10}")
    L.append(f"v_cmp_nge_f32 s[4:5], v253, v{O+10}")
    for r in range(10): L.append(f"v_mul_f32 v{O+r}, v{t}, v{O+r}")
    L.append(f"s_or_b64 {sBAD}, {sBAD}, vcc"); L.append(f"s_or_b64 {sBAD}, {sBAD}, s[4:5]")
    L.append(f"v_add_f32 v{t+2}, abs(v{O}), abs(v{O+1})")
    for r in range(2,10,2):
        L.append(f"v_add3_f32 v{t+2}, abs(v{O+r}), abs(v{O+r+1}), v{t+2}" if False else f"v_fma_f32 v{t+2}, v{O+r}, 0, v{t+2}")
        L.append(f"v_fma_f32 v{t+2}, v{O+r+1}, 0, v{t+2}")
    for u in range(5): L.append(f"v_cvt_pk_bf16_f32 v{O+u}, v{O+2*u}, v{O+2*u+1}")
    L.append(f"v_cmp_class_f32 vcc, v{t+2}, v254")
    L.append(f"s_add_u32 {sT0}, {sOM}, {i*32*1024}"); L.append(f"s_add_u32 {sT1}, {sOL}, {i*8*512}")
    L.append(f"s_or_b64 {sBAD}, {sBAD}, vcc")
    L.append((f"buffer_store_dwordx4 v[{O}:{O+3}], {vPk}, {sWS}, {sT0} offen sc1", 'ost'))
    L.append(f"s_mov_b64 exec, {sLO}")
    L.append((f"buffer_store_dword v{O+4}, {vOl}, {sWS}, {sT1} offen sc1", 'ost'))
    L.append(f"s_mov_b64 exec, -1")
    return L

def attention(a, opts):
    a.c("---- attention")
    T=tile_list(); n=len(T)
    first={}; last={}; firstuse={}
    for k,(i,jb) in enumerate(T):
        first.setdefault(i,k); last[i]=k; firstuse.setdefault(jb,k)
    Sreg=lambda k: (S0 if k%2==0 else S1)
    Preg=lambda k: (P0 if k%2==0 else P1)
    POLL=opts.get('poll_at',4); LEAD=opts.get('lead',9)
    def qk(k):
        i,jb=T[k]; p,base=kv_regs(jb); S=rng('v',Sreg(k),16)
        return [f"v_mfma_f32_32x32x16_bf16 {S}, {rng(p,base,4)}, a[{8*i}:{8*i+3}], 0",
                f"v_mfma_f32_32x32x16_bf16 {S}, {rng(p,base+4,4)}, a[{8*i+4}:{8*i+7}], {S}"]
    def pv(k):
        i,jb=T[k]; p,base=kv_regs(jb); O=rng('v',OACC+16*i,16); P=Preg(k)
        c0='0' if k==first[i] else O
        return [f"v_mfma_f32_32x32x16_bf16 {O}, {rng(p,base+6,4)}, v[{P}:{P+3}], {c0}",
                f"v_mfma_f32_32x32x16_bf16 {O}, {rng(p,base+10,4)}, v[{P+4}:{P+7}], {O}"]
    waited=set()
    hissue={}
    for jb in HORDER:
        k=max(POLL, firstuse[jb]-LEAD); hissue.setdefault(k,[]).append(jb)
    wo=wo_prefetch_groups()
    WO_START=opts.get('wo_start',12)
    a.i(f"v_mov_b32 v254, 0x207")
    q0=qk(0); a.i(q0[0]); a.i(q0[1])
    extra=[]
    for k in range(n+1):
        if k==opts.get('flag_at',2): kv_flag_store(a)
        if k==POLL: kv_poll(a)
        for jb in hissue.get(k,[]):
            for g in halo_load_groups(jb+8): a.emit(g)
        mf=[]
        if k+1<n:
            i,jb=T[k+1]
            if jb<0 and jb not in waited:
                if not waited: a.stamp('own_done')
                waited.add(jb); a.wait(vm=f'h{jb+8}')
                if len(waited)==1: a.stamp('h0_landed')
            mf+=qk(k+1)
        else: mf+=[None,None]
        mf += pv(k-1) if k>=1 else [None,None]
        if k==0: a.nop(12)
        if k==n: a.nop(2)
        S=Sreg(k); P=Preg(k)
        i,jb=T[k] if k<n else (None,None)
        for seg in range(4):
            if mf[seg]: a.i(mf[seg])
            if k<n:
                for e in range(4): a.i(f"v_exp_f32 v{S+4*seg+e}, v{S+4*seg+e}")
                for u in (2*seg,2*seg+1): a.i(f"v_cvt_pk_bf16_f32 v{P+u}, v{S+2*u}, v{S+2*u+1}")
                if jb==i or jb==i-8:
                    M=MASKD if jb==i else MASKF
                    for u in (2*seg,2*seg+1): a.i(f"v_and_b32 v{P+u}, v{M+u}, v{P+u}")
            a.drain(extra, 6 if k<n else 1000)
            if k>=WO_START and wo and seg in (1,3): a.emit(wo.pop(0))
        if k>=1:
            ib=T[k-1][0]
            if last[ib]==k-1:
                if k==n:
                    a.nop(14); a.emit(norm_block(ib))
                else: extra+=["s_nop 1"]+norm_block(ib)
    assert not extra
    for g in wo: a.emit(g)
    a.stamp('att_end')

OF=16
DACC=88
AFV=124
vAr=[f'v{2+t}' for t in range(9)]
vOf='v11'; vOut='v12'

def phase3(a, opts):
    a.c("---- phase 3")
    L=vLane
    a.wait(vm='ost')
    a.i(f"s_lshl_b32 {sT0}, {sG}, 2"); a.i(f"s_add_u32 {sT0}, {sT0}, {sWV}"); a.i(f"s_lshl_b32 {sT0}, {sT0}, 7"); a.i(f"s_add_u32 {sT0}, {sT0}, {sFO}")
    a.i(f"v_mov_b32 v14, {sNONl}"); a.i(f"v_mov_b32 v15, {sNONh}"); a.i(f"v_mov_b32 v13, 0")
    a.i("s_mov_b64 exec, 1")
    a.i(f"buffer_store_dwordx2 v[14:15], v13, {sWS}, {sT0} offen sc1", tag='oflag')
    a.i("s_mov_b64 exec, -1")
    a.stamp('o_pub')
    a.i(f"s_cmp_lg_u32 {sWV}, 0"); a.i("s_cbranch_scc1 L_skip16")
    for g in wo_dma_groups(16,None,[f"s_mov_b32 {sT2}, 0", f"s_mov_b32 {sT3}, {16*9216}"]):
        for x in g:
            if isinstance(x,tuple): a.i(x[0],x[1],True)
            else: a.i(x)
    a.label("L_skip16")
    a.i(f"v_lshrrev_b32 v13, 2, {L}")
    a.i(f"v_and_b32 v14, 7, v13"); a.i(f"v_lshlrev_b32 v14, 5, v14")
    a.i(f"v_lshl_add_u32 v14, v13, 8, v14")
    a.i(f"v_and_b32 v15, 3, {L}"); a.i(f"v_lshl_add_u32 v14, v15, 3, v14")
    for t in range(8): a.i(f"v_xor_b32 {vAr[t]}, {32*t}, v14")
    a.i(f"v_lshlrev_b32 v13, 5, v13"); a.i(f"v_lshl_add_u32 v13, v15, 3, v13"); a.i(f"v_add_u32 {vAr[8]}, 8192, v13")
    a.i(f"v_and_b32 v13, 15, {L}"); a.i(f"v_lshrrev_b32 v14, 4, {L}")
    a.i(f"s_and_b32 s6, {sWV}, 1"); a.i(f"s_lshl_b32 s6, s6, 8")
    a.i(f"v_lshl_add_u32 v15, v13, 4, s6"); a.i(f"v_lshl_add_u32 {vOf}, v14, 9, v15")
    a.i(f"v_mul_u32_u24 v15, {OUTROW}, v13"); a.i(f"v_lshl_add_u32 {vOut}, v14, 3, v15")
    a.i("s_waitcnt vmcnt(0)")
    a.i("s_barrier")
    a.stamp('wo_ready')
    def frag_reads(kap, dst):
        slot=kap if kap<17 else 0
        R=[]
        for t in range(9):
            p,r=dst(kap,t)
            off=(slot%7)*9216
            hoff=4096 if t<8 else 512
            R.append([(f"ds_read_b64_tr_b16 {p}[{r+2*h}:{r+2*h+1}], {vAr[t]} offset:{off+hoff*h}", f'a{kap}_{t}') for h in range(2)])
        return R
    NA=7
    def dst(kap,t):
        if kap<NA: return 'a', (kap*9+t)*4
        idx=((kap-NA)*9+t)%32
        return 'v', AFV+idx*4
    bump=lambda: [f"v_add_u32 {vAr[t]}, {7*9216}, {vAr[t]}" for t in range(9)]
    for kap in range(NA):
        for grp in frag_reads(kap,dst): a.emit(grp)
        if kap%2==1: a.wait(lg=8)
    a.emit(bump())
    for kap in range(NA,NA+3):
        for grp in frag_reads(kap,dst): a.emit(grp)
    a.wait(lg=0)
    a.i("s_barrier")
    a.i(f"s_cmp_lg_u32 {sWV}, 1"); a.i("s_cbranch_scc1 L_skip17")
    for g in wo_dma_groups(17,None,[f"s_mov_b32 {sT2}, {16*18*XROW}", f"s_mov_b32 {sT3}, 0"]):
        for x in g:
            if isinstance(x,tuple): a.i(x[0],x[1],True)
            else: a.i(x)
    a.label("L_skip17")
    a.stamp('frags_pre')
    a.i(f"v_lshlrev_b32 v13, 7, {L}")
    a.i(f"s_mov_b32 {sCNT}, 200000")
    a.label("L_opoll")
    a.i(f"s_mov_b64 exec, {sLO}")
    a.i(f"buffer_load_dwordx2 v[14:15], v13, {sWS}, {sFO} offen sc1", cond=True)
    a.i("s_waitcnt vmcnt(0)")
    a.i(f"v_cmp_eq_u32 vcc, {sNONl}, v14"); a.i(f"v_cmp_eq_u32 s[4:5], {sNONh}, v15")
    a.i("s_mov_b64 exec, -1")
    a.i("s_and_b64 s[4:5], s[4:5], vcc"); a.i("s_cmp_eq_u32 s4, -1"); a.i("s_cbranch_scc1 L_opoll_done")
    a.i("s_sleep 1"); a.i(f"s_sub_u32 {sCNT}, {sCNT}, 1"); a.i(f"s_cmp_lg_u32 {sCNT}, 0"); a.i("s_cbranch_scc1 L_opoll")
    a.label("L_opoll_done")
    a.stamp('opoll_done')
    for kap in range(18):
        src=sPOM if kap<16 else sPOL
        a.i(f"s_add_u32 {sT0}, {src}, {2048*(kap%16 if kap<16 else kap-16)}")
        a.i(f"buffer_load_dwordx4 v[{OF+4*kap}:{OF+4*kap+3}], {vOf}, {sWS}, {sT0} offen sc1", tag=f'of{kap}')
    rq=[]
    for kap in range(NA+3,18):
        R=frag_reads(kap,dst)
        for t in range(9): rq.append((kap,t,R[t]))
    issued=(NA+3-NA)*9
    consumed=0
    base_slot=7
    for kap in range(18):
        a.wait(vm=f'of{kap}')
        if kap==opts.get('k17_bar',8):
            a.i("s_waitcnt vmcnt(0)") if False else None
        for t in range(9):
            p,r=dst(kap,t)
            if kap>=NA:
                n_=a.lg_n(f'a{kap}_{t}')
                if n_ is not None: a.wait(lg=f'a{kap}_{t}')
            acc=rng('v',DACC+4*t,4); c='0' if kap==0 else acc
            a.i(f"v_mfma_f32_16x16x32_bf16 {acc}, {p}[{r}:{r+3}], v[{OF+4*kap}:{OF+4*kap+3}], {c}")
            if kap>=NA: consumed+=1
            if rq and issued-consumed<31:
                k2,t2,ins=rq[0]
                if k2==14 and t2==0 and base_slot==7:
                    a.emit(bump()); base_slot=14
                if k2==17 and t2==0:
                    a.i("s_waitcnt vmcnt(0)"); a.i("s_barrier")
                    a.emit([f"v_subrev_u32 {vAr[tt]}, {14*9216}, {vAr[tt]}" for tt in range(9)])
                rq.pop(0); a.emit(ins); issued+=1
    assert not rq
    a.stamp('p3_mfma_end')
    a.nop(10)
    for t in range(9):
        d=DACC+4*t
        a.i(f"v_cvt_pk_bf16_f32 v{d}, v{d}, v{d+1}"); a.i(f"v_cvt_pk_bf16_f32 v{d+1}, v{d+2}, v{d+3}")
        a.i(f"buffer_store_dwordx2 v[{d}:{d+1}], {vOut}, {sOUT}, {sOUTB} offen offset:{32*t} {opts.get('outmod','')}")
    a.i("s_waitcnt vmcnt(0)")

def kd(name, vgpr, accum, sgpr=102):
    return f""".section .rodata,"a"
.p2align 6
.amdhsa_kernel {name}
  .amdhsa_next_free_vgpr {vgpr}
  .amdhsa_next_free_sgpr {sgpr}
  .amdhsa_accum_offset {accum}
  .amdhsa_group_segment_fixed_size 0
  .amdhsa_kernarg_size 72
  .amdhsa_user_sgpr_count 2
  .amdhsa_user_sgpr_kernarg_segment_ptr 1
  .amdhsa_system_sgpr_workgroup_id_x 1
.end_amdhsa_kernel
"""
HEADER = """; Kernarg layout (72 bytes, ptrs only, base s[0:1]):
"""
def build(opts):
    a=G()
    if opts.get('stamps'):
        a.stamps=[]
        a.sel = opts['sel'].split(',') if 'sel' in opts else ['ch0_landed','1a_end','1b_end','q_ready','poll_done','own_done','att_end','wo_ready','frags_pre','opoll_done','p3_mfma_end','drained']
    prologue(a,opts)
    for g in dma_chunk_groups(0,0): a.emit(g)
    a.stamp('p_ch0')
    if not opts.get('notouch'):
        touch_setup(a,opts)
        a.i("s_mov_b32 s6, -1"); a.i("s_mov_b32 s7, 0x000fffff")
        a.emit(touch_ins(False))
    if not opts.get('notouch'):
        a.i("v_add_co_u32 v90, vcc, v240, v242"); a.i("s_nop 1"); a.i("v_addc_co_u32 v91, vcc, 0, v241, vcc")
    a.stamp('p_t1')
    setupA(a,opts)
    setupB(a,opts)
    a.stamp('p_B')
    for g in dma_chunk_groups(1,1): a.emit(g)
    if not opts.get('notouch'):
        a.i("s_mov_b32 s6, -1"); a.i("s_mov_b32 s7, 0x000fffff")
        a.emit(["s_mov_b64 exec, s[6:7]", ("global_load_dword v255, v[90:91], off",'touch'), "s_mov_b64 exec, -1"])
        touch_q(a)
    a.stamp('p_ch1')
    pend=dma_chunk_groups(2,2)
    pend=phase1a(a,opts,pend)
    phase1b(a,pend,opts)
    attention(a,opts)
    phase3(a,opts)
    a.stamp('drained'); a.stamp('rt_exit',real=True)
    a.dump_stamps(0)
    a.label("L_end"); a.i("s_endpgm")
    errs=a.check()
    if opts.get('stamps'): print("stamps:",len(a.stamps),[x[0] for x in a.stamps])
    k1=f"{NAME}_kernel"
    txt=HEADER+f"; @launch grid=(256,1,1) block=(256,1,1) lds={LDS_BYTES}\n"
    txt+='.amdgcn_target "amdgcn-amd-amdhsa--gfx950"\n.text\n'
    txt+=f".globl {k1}\n.p2align 8\n.type {k1},@function\n{k1}:\n"+a.text()+kd(k1,512,256)
    return txt
if __name__=="__main__":
    out=sys.argv[1]
    opts={}
    for x in sys.argv[2:]:
        k,_,v=x.partition('='); opts[k]=int(v) if v.lstrip('-').isdigit() else (v or True)
    open(out,'w').write(build(opts)); print("written",out)
```

```python
import sys, os, struct
sys.path.insert(0, os.path.dirname(os.path.abspath(__file__)))
from asm import *
NAME = "concat_heads__sliding_block__sliding_block__prompt"
XROW=1152; WROW=3456; OUTROW=2304
X_BYTES=2048*1152; W_BYTES=576*3456; WO_BYTES=576*1152; OUT_BYTES=2048*2304
SLOT=36864; WPITCH=320; XOFF=20480; QPITCH=192; QCH=12288
VBASE=0; KB3=18432; KB0=147456; KP=148; KBLK=32*148; QBASE=110592
LDS_BYTES=163840
WS_KV=0; WS_OM=0x1000000; WS_OL=0x1400000; WS_FKV=0x1800000; WS_FO=0x1840000; WS_FOL=0x1880000
WS_XT=0x18C0000
WS_DBG=0x2000000; WS_BYTES=0x4000000
CSCALE = 1.4426950408889634/(18**0.5)
def f2u(x): return struct.unpack('<I',struct.pack('<f',x))[0]
def rng(p,a,n): return f'{p}[{a}:{a+n-1}]'

sX='s[8:11]'; sW='s[12:15]'; sWO='s[16:19]'; sOUT='s[20:23]'; sWS='s[24:27]'; sDBG='s[28:31]'
sB='s32'; sC='s33'; sG='s34'; sWV='s35'
sVM='s[54:55]'; sLO='s[56:57]'
sCI='s58'; sWoff='s59'; sXoff='s60'; sM0='s61'; sKVme='s62'
sT0='s63'; sT1='s64'; sT2='s65'; sFKV='s66'; sT3='s67'
sNONl='s68'; sNONh='s69'; sROT='s70'; sKV1='s71'; sKV2='s72'; sXCC='s73'
sBAD='s[74:75]'; sNVM='s[52:53]'; sCNT='s76'; sOM='s77'; sOL='s78'; sFO='s79'; sSC='s80'; sATT='s81'
sLFH='s70'; sLOC='s81'
sRH='s82'; sNQ='s83'; sPOM='s84'; sPOL='s85'; sOUTB='s86'; sWOs='s87'
sIDX='s76'; sOFF='s81'

vLane='v1'
vWoff=[f'v{10+j}' for j in range(5)]
vXoff=[f'v{15+j}' for j in range(4)]
vQoff=['v19','v20','v21']
vWr=['v22','v23']; vMx=['v24','v25']
vXr=[[f'v{26+t}' for t in range(4)],[f'v{30+t}' for t in range(4)]]
vQr='v34'
vKw='v35'; vQw='v36'; vVw='v37'; vVt='v38'
vKr='v39'; vKl='v40'; vVr='v41'; vQrd='v42'; vQl='v43'
vPk='v44'; vPl='v45'; vPv='v46'; vOl='v47'
vNON='v[48:49]'; vVC='v50'; vT='v51'
def WF(b,f): r=52+(b*5+f)*4; return f'v[{r}:{r+3}]'
def WFh(b,f,h): r=52+(b*5+f)*4+2*h; return f'v[{r}:{r+1}]'
def QF(b,f): r=52+(b*3+f)*4; return f'v[{r}:{r+3}]'
def QFh(b,f,h): r=52+(b*3+f)*4+2*h; return f'v[{r}:{r+1}]'
ACC={'K0':92,'K1':108,'V0':124,'V1':140,'MX':156,'Q0':172,'Q1':188,'Q2':204}
def XF(t): return rng('a',4*t,4)
OWN=92; HALO=144
S0=52; S1=68; P0=150; P1=158; OACC=172; MASKD=236; MASKF=244
vWOm=['v10','v11']; vWOl=['v12','v13']; vWOt=['v14','v15']

class G(Asm):
    stamps=None; sel=None; nowait=True
    def stamp(self, name, real=False):
        if self.stamps is None: return
        if self.sel is not None and not (name.startswith('rt_') or name=='entry' or any(name.startswith(x) for x in self.sel)): return
        k=len(self.stamps)
        regs=[88,90,92,94,96,98,100,36,38,40,42,44,46,48,50][k]
        self.stamps.append((name,regs))
        self.i(f"{'s_memrealtime' if real else 's_memtime'} s[{regs}:{regs+1}]")
        if self.nowait and not real and name!='entry':
            self.lg.pop()
        else:
            self.i("s_waitcnt lgkmcnt(0)")
            self.lg_clear()
    def dump_stamps(self, base):
        if self.stamps is None: return
        self.i("s_waitcnt lgkmcnt(0)")
        self.i(f"s_lshl_b32 s3, s2, 2"); self.i(f"s_add_u32 s3, s3, {sWV}")
        self.i(f"s_lshl_b32 s3, s3, 6"); self.i(f"s_add_u32 s3, s3, {WS_DBG+base}")
        self.i("s_mov_b64 exec, 1")
        for k,(nm,r) in enumerate(self.stamps):
            self.i(f"v_mov_b32 v2, s{r}"); self.i(f"v_mov_b32 v3, {4*k}")
            self.i(f"buffer_store_dword v2, v3, {sWS}, s3 offen")
        self.i("s_mov_b64 exec, -1"); self.i("s_waitcnt vmcnt(0)")
    def emit(self, lst):
        for x in lst:
            if isinstance(x,tuple) and x[0]=='OSTORE': emit_ostore(self,x[1])
            elif isinstance(x,tuple): self.i(*x)
            else: self.i(x)
    def drain(self, q, budget):
        k=0; inexec=False
        while q and (k<budget or inexec):
            x=q.pop(0)
            txt=x[0] if isinstance(x,tuple) else x
            if txt.startswith('s_mov_b64 exec'): inexec = not txt.endswith('-1')
            if txt=='OSTORE': emit_ostore(self,x[1])
            elif isinstance(x,tuple): self.i(*x)
            else: self.i(x)
            k+=1

def prologue(a, opts):
    L=vLane
    a.c("---- prologue")
    a.stamp('rt_entry',real=True); a.stamp('entry')
    a.i("s_load_dwordx8 s[36:43], s[0:1], 0")
    a.i("s_load_dwordx8 s[44:51], s[0:1], 32")
    a.i("s_load_dwordx2 s[52:53], s[0:1], 64")
    a.i("s_cmp_ge_u32 s2, 256")
    a.i("s_cbranch_scc1 L_end")
    a.i("s_getpc_b64 s[4:5]")
    a.label("L_pc")
    a.i("v_lshlrev_b32 v2, 7, v0")
    a.raw("    v_min_u32 v2, (L_end-L_pc), v2")
    if not opts.get('nopf'): a.i("global_load_dword v255, v2, s[4:5]", tag='pf')
    a.i(f"v_and_b32 {L}, 63, v0")
    a.i("v_lshrrev_b32 v2, 6, v0")
    a.i("s_and_b32 s3, s2, 7")
    a.i(f"v_readfirstlane_b32 {sWV}, v2")
    a.i(f"s_lshr_b32 {sB}, s3, 2")
    a.i("s_lshr_b32 s4, s2, 3")
    a.i("s_and_b32 s5, s3, 3")
    a.i(f"s_lshl_b32 {sC}, s5, 2")
    a.i("s_lshr_b32 s5, s4, 3")
    a.i(f"s_add_u32 {sC}, {sC}, s5")
    a.i(f"s_and_b32 {sG}, s4, 7")
    a.i("s_lshl_b32 s5, s5, 1")
    a.i(f"s_add_u32 s6, s5, {sG}")
    a.i("s_sub_u32 s7, s6, 9")
    a.i("s_cmp_ge_u32 s6, 9")
    a.i(f"s_cselect_b32 {sROT}, s7, s6")
    if opts.get('order','own')=='own':
        a.i(f"s_add_u32 {sOFF}, s5, {sG}"); a.i(f"s_and_b32 {sOFF}, {sOFF}, 7")
        a.i("s_and_b32 s6, s3, 3"); a.i("s_lshl_b32 s6, s6, 1"); a.i(f"s_and_b32 s7, {sC}, 1"); a.i(f"s_add_u32 {sROT}, s6, s7")
        a.i(f"s_mov_b32 {sIDX}, {sOFF}")
    elif opts.get('order')=='norot': a.i(f"s_mov_b32 {sROT}, 0")
    a.i(f"s_lshl_b32 s6, {sC}, 7"); a.i(f"s_lshl_b32 s7, {sWV}, 5"); a.i("s_add_u32 s6, s6, s7")
    a.i(f"s_mul_i32 s6, s6, {XROW}")
    a.i(f"v_lshrrev_b32 v4, 3, {L}"); a.i(f"v_lshrrev_b32 v5, 4, {L}"); a.i(f"v_and_b32 v6, 7, {L}")
    a.i(f"v_mul_u32_u24 v4, {XROW}, v4")
    a.i(f"v_add_u32 v4, s6, v4")
    for i in range(4):
        a.i(f"v_add_u32 v7, {4*i}, v5"); a.i(f"v_and_b32 v7, 7, v7"); a.i(f"v_xor_b32 v7, v6, v7")
        a.i(f"v_lshl_add_u32 v7, v7, 4, v4")
        a.i(f"v_add_u32 {vXoff[i]}, {8*i*XROW-1024*i}, v7")
    a.i(f"s_mul_i32 s6, {sWV}, {16*WROW}"); a.i(f"s_mul_i32 s7, {sG}, 144"); a.i("s_add_u32 s6, s6, s7")
    a.i(f"s_add_u32 s6, s6, 1152")
    a.i(f"s_movk_i32 s7, {WROW}")
    a.i("v_mov_b32 v9, 0x40000000"); a.i("v_mov_b32 v8, 1008")
    for j in range(5):
        a.i(f"v_add_u32 v4, {64*j}, {L}")
        a.i(f"v_mul_u32_u24 v5, 52429, v4"); a.i(f"v_lshrrev_b32 v5, 20, v5")
        a.i(f"v_mul_u32_u24 v6, 20, v5"); a.i(f"v_sub_u32 v6, v4, v6")
        a.i(f"v_cmp_lt_u32 vcc, 8, v6")
        a.i(f"v_mul_lo_u32 v5, v5, s7")
        a.i(f"v_lshl_add_u32 v5, v6, 4, v5")
        a.i(f"v_cndmask_b32 v7, 0, v8, vcc")
        a.i(f"v_cmp_lt_u32 vcc, 17, v6")
        a.i(f"v_add3_u32 v5, v5, v7, s6")
        comp=1024*j if j<4 else 0
        if comp: a.i(f"v_subrev_u32 v5, {comp}, v5")
        else: a.i("s_nop 0")
        a.i(f"v_cndmask_b32 {vWoff[j]}, v5, v9, vcc")
    a.stamp('p_pre')
    a.wait(lg=0)
    a.stamp('p_karg')
    a.i(f"s_cmp_eq_u32 {sB}, 0")
    a.i("s_cselect_b32 s8, s36, s42");  a.i("s_cselect_b32 s9, s37, s43")
    a.i("s_cselect_b32 s12, s38, s44"); a.i("s_cselect_b32 s13, s39, s45")
    a.i(f"s_mov_b32 s10, {X_BYTES}"); a.i("s_mov_b32 s11, 0x00020000")
    a.i(f"s_mov_b32 s14, {W_BYTES}"); a.i("s_mov_b32 s15, 0x00020000")
    a.i("s_cselect_b32 s16, s40, s46"); a.i("s_cselect_b32 s17, s41, s47")
    a.i(f"s_mov_b32 {sCI}, {sROT}")
    a.i(f"s_mul_i32 {sWoff}, {sCI}, {64*WROW}")
    a.i(f"s_lshl_b32 {sXoff}, {sCI}, 7")

vTA='v[240:241]'
def touch_setup(a, opts):
    L=vLane
    a.i("s_lshr_b32 s4, s2, 3")
    a.i(f"v_cmp_le_u32 vcc, 18, {L}")
    a.i(f"v_mov_b32 v2, {XROW+18*128}")
    a.i(f"v_lshlrev_b32 v3, 7, {L}")
    a.i(f"v_mov_b32 v2, {WROW-18*128}")
    a.i(f"v_cndmask_b32 v2, 0, v2, vcc")
    a.i(f"v_add_u32 v3, v3, v2")
    a.i(f"s_mul_i32 s5, s4, {2*WROW}"); a.i(f"s_add_u32 s5, s5, {9*128}")
    a.i(f"v_add_u32 v3, s5, v3")
    a.i("s_and_b32 s5, s2, 3"); a.i("s_lshl_b32 s5, s5, 9"); a.i("s_lshl_b32 s6, s4, 4"); a.i("s_add_u32 s5, s5, s6")
    a.i(f"v_subrev_u32 v4, 36, {L}"); a.i(f"v_and_b32 v4, 15, v4"); a.i(f"v_add_u32 v4, s5, v4"); a.i(f"v_mul_u32_u24 v4, {XROW}, v4")
    a.i(f"v_cmp_le_u32 vcc, 36, {L}")
    a.i(f"v_mov_b32 v5, s12"); a.i("v_mov_b32 v6, s8"); a.i("v_mov_b32 v7, s13"); a.i("v_mov_b32 v8, s9")
    a.i(f"v_cndmask_b32 v3, v3, v4, vcc")
    a.i(f"v_cndmask_b32 v5, v5, v6, vcc")
    a.i(f"v_cndmask_b32 v7, v7, v8, vcc")
    a.i(f"v_mov_b32 v9, {64*WROW}"); a.i("v_mov_b32 v6, 128")
    a.i(f"v_cndmask_b32 v242, v9, v6, vcc")
    a.i(f"s_add_u32 s5, {sWV}, 1")
    a.i(f"v_mul_lo_u32 v9, v242, s5")
    a.i(f"v_add_u32 v3, v3, v9")
    a.i(f"v_add_co_u32 v240, vcc, v5, v3"); a.i("s_nop 1"); a.i(f"v_addc_co_u32 v241, vcc, 0, v7, vcc")
    a.i(f"v_lshlrev_b32 v242, 2, v242")
def touch_ins(second):
    L=[]
    if second:
        L+= ["v_add_co_u32 v240, vcc, v240, v242", "s_nop 1", "v_addc_co_u32 v241, vcc, 0, v241, vcc"]
    L+= ["s_mov_b64 exec, 0x000fffffffffffff" if False else "s_mov_b64 exec, s[6:7]", (f"global_load_dword v255, {vTA}, off",'touch'), "s_mov_b64 exec, -1"]
    return L
def touch_q(a):
    L=vLane
    a.i("s_lshr_b32 s4, s2, 3")
    a.i(f"v_mul_u32_u24 v2, 7282, {L}"); a.i("v_lshrrev_b32 v2, 16, v2")
    a.i(f"v_mul_u32_u24 v3, 9, v2"); a.i(f"v_sub_u32 v3, {L}, v3")
    a.i(f"v_min_u32 v2, 5, v2")
    a.i(f"s_min_u32 s5, {sWV}, 2"); a.i("s_mul_i32 s5, s5, 6"); a.i("s_mul_i32 s6, s4, 18"); a.i("s_add_u32 s5, s5, s6")
    a.i(f"v_add_u32 v2, s5, v2"); a.i(f"v_mul_u32_u24 v2, {WROW}, v2"); a.i(f"v_lshl_add_u32 v2, v3, 7, v2")
    a.i(f"buffer_load_dword v255, v2, {sW}, 0 offen", 'touch')
def touch_wo(a):
    L=vLane
    a.i(f"s_lshr_b32 {sT0}, s2, 3")
    a.i(f"s_min_u32 {sT1}, {sWV}, 2"); a.i(f"s_mul_i32 {sT1}, {sT1}, 54"); a.i(f"s_mul_i32 {sT0}, {sT0}, 162"); a.i(f"s_add_u32 {sT1}, {sT1}, {sT0}")
    a.i(f"v_min_u32 {vT}, 53, {L}"); a.i(f"v_add_u32 {vT}, {sT1}, {vT}"); a.i(f"v_lshlrev_b32 {vT}, 7, {vT}")
    a.i(f"buffer_load_dword v255, {vT}, {sWO}, 0 offen", 'touch')

ORDER_MODE=['own']
GOPT={}
def next_chunk_ins():
    if ORDER_MODE[0]=='own':
        return [f"s_add_u32 {sCI}, {sROT}, {sIDX}", f"s_add_u32 {sCI}, {sCI}, 1", f"s_sub_u32 {sT3}, {sCI}, 9", f"s_cmp_ge_u32 {sCI}, 9",
                f"s_cselect_b32 {sCI}, {sT3}, {sCI}", f"s_add_u32 {sIDX}, {sIDX}, 1", f"s_and_b32 {sIDX}, {sIDX}, 7",
                f"s_mul_i32 {sWoff}, {sCI}, {64*WROW}", f"s_lshl_b32 {sXoff}, {sCI}, 7"]
    return [f"s_add_u32 {sCI}, {sCI}, 1", f"s_cmp_eq_u32 {sCI}, 9", f"s_cselect_b32 {sCI}, 0, {sCI}",
            f"s_mul_i32 {sWoff}, {sCI}, {64*WROW}", f"s_lshl_b32 {sXoff}, {sCI}, 7"]

def dma_chunk_groups(slot, n):
    base=slot*SLOT; tag=f'ch{n}'; Gs=[]
    for i in range(4):
        pre=[f"s_lshl_b32 {sM0}, {sWV}, 12", f"s_add_u32 m0, {sM0}, {base+XOFF}", "s_nop 0"] if i==0 else []
        Gs.append(pre+[(f"buffer_load_dwordx4 {vXoff[i]}, {sX}, {sXoff} offen offset:{1024*i} lds", tag)])
    for j in range(4):
        pre=[f"s_mul_i32 {sM0}, {sWV}, 5120", f"s_add_u32 m0, {sM0}, {base}", "s_nop 0"] if j==0 else []
        Gs.append(pre+[(f"buffer_load_dwordx4 {vWoff[j]}, {sW}, {sWoff} offen offset:{1024*j} lds", tag)])
    Gs.append([f"s_add_u32 m0, {sM0}, {base+4096}", "s_nop 0", (f"buffer_load_dwordx4 {vWoff[4]}, {sW}, {sWoff} offen lds", tag)]+next_chunk_ins())
    return Gs

def dma_wq_groups(n):
    reg = SLOT*(1+n//3) + (n%3)*QCH
    Gs=[]
    for e in range(3):
        pre=[f"s_mul_i32 {sM0}, {sWV}, 3072", f"s_add_u32 m0, {sM0}, {reg}", "s_nop 0"] if e==0 else []
        post=next_chunk_ins() if e==2 else []
        Gs.append(pre+[(f"buffer_load_dwordx4 {vQoff[e]}, {sW}, {sWoff} offen offset:{1024*e} lds", f'wq{n}')]+post)
    return Gs

def setupA(a, opts):
    L=vLane
    a.c("---- setup A")
    a.i(f"v_bfe_u32 v4, {L}, 2, 2"); a.i(f"v_lshrrev_b32 v5, 5, {L}")
    a.i(f"v_lshl_add_u32 v4, v5, 3, v4")
    a.i(f"v_bfe_u32 v6, {L}, 4, 1"); a.i(f"v_and_b32 v7, 3, {L}")
    a.i(f"v_mul_u32_u24 v8, {WPITCH}, v4")
    a.i(f"v_lshlrev_b32 v9, 5, v6"); a.i(f"v_lshl_add_u32 v9, v7, 3, v9")
    a.i(f"v_add_u32 {vWr[0]}, v8, v9"); a.i(f"v_add_u32 {vWr[1]}, {2*SLOT}, {vWr[0]}")
    a.i(f"v_mul_u32_u24 v2, {QPITCH}, v4")
    a.i(f"v_add3_u32 {vQr}, v2, v9, 0"); a.i(f"v_add_u32 {vQr}, {SLOT}, {vQr}")
    a.i(f"v_lshl_add_u32 v9, v6, 2, v7")
    a.i(f"v_lshlrev_b32 v2, 3, v9"); a.i(f"v_add_u32 v2, 128, v2"); a.i(f"v_add_u32 v3, 128, v2")
    a.i(f"v_cmp_lt_u32 vcc, 1, v9"); a.i("s_nop 1")
    a.i(f"v_cndmask_b32 v2, v2, v3, vcc")
    a.i(f"v_add_u32 {vMx[0]}, v8, v2"); a.i(f"v_add_u32 {vMx[1]}, {2*SLOT}, {vMx[0]}")
    a.i(f"v_and_b32 v2, 31, {L}"); a.i(f"v_bfe_u32 v3, {L}, 1, 3"); a.i(f"v_xor_b32 v3, v3, v5")
    a.i(f"v_lshlrev_b32 v3, 4, v3"); a.i(f"v_lshl_add_u32 v3, v2, 7, v3")
    a.i(f"s_lshl_b32 s6, {sWV}, 12"); a.i(f"s_add_u32 s6, s6, {XOFF}")
    a.i(f"v_add_u32 v3, s6, v3")
    for t in range(4):
        a.i(f"v_xor_b32 {vXr[0][t]}, {32*t}, v3"); a.i(f"v_add_u32 {vXr[1][t]}, {2*SLOT}, {vXr[0][t]}")

class Rec:
    def __init__(self): self.l=[]
    def i(self, t, tag=None, cond=False): self.l.append((t,tag,cond) if tag or cond else t)
    def c(self, s): pass

def setupB0(a, opts):
    a.i("s_mov_b32 s20, s48"); a.i("s_mov_b32 s21, s49"); a.i(f"s_mov_b32 s22, {OUT_BYTES}"); a.i("s_mov_b32 s23, 0x00020000")
    a.i("s_mov_b32 s24, s52"); a.i("s_mov_b32 s25, s53"); a.i(f"s_mov_b32 s26, {WS_BYTES}"); a.i("s_mov_b32 s27, 0x00020000")
    a.i("s_mov_b32 s28, s50"); a.i("s_mov_b32 s29, s51"); a.i("s_mov_b32 s30, 256"); a.i("s_mov_b32 s31, 0x00020000")
    a.i(f"s_mov_b32 s18, {WO_BYTES}"); a.i("s_mov_b32 s19, 0x00020000")
    a.i(f"s_or_b32 s3, s2, {sWV}"); a.i("s_cmp_lg_u32 s3, 0"); a.i("s_cbranch_scc1 L_nononce")
    a.i("s_memrealtime s[4:5]"); a.i("s_waitcnt lgkmcnt(0)"); a.i("s_or_b32 s4, s4, 1")
    a.i("v_mov_b32 v2, s4"); a.i("v_mov_b32 v3, s5"); a.i("v_mov_b32 v4, 0")
    a.i("s_mov_b64 exec, 1")
    a.i(f"buffer_store_dwordx2 v[2:3], v4, {sDBG}, 0 offen sc1", cond=True)
    a.i("s_mov_b64 exec, -1")
    a.label("L_nononce"); a.lg_clear()

def setupB(a, opts):
    L=vLane
    a.c("---- setup B")
    a.i("s_mov_b32 s54, 0x3ffff"); a.i("s_mov_b32 s55, 0x3ffff"); a.i("s_not_b64 s[52:53], s[54:55]"); a.i("s_mov_b32 s56, -1"); a.i("s_mov_b32 s57, 0")
    a.i(f"s_mov_b32 {sSC}, {f2u(CSCALE):#x}")
    a.i(f"s_getreg_b32 {sXCC}, hwreg(HW_REG_XCC_ID, 0, 4)")
    a.i(f"s_mul_i32 s6, {sWV}, {16*WROW}"); a.i(f"s_mul_i32 s7, {sG}, 144"); a.i("s_add_u32 s6, s6, s7")
    a.i(f"s_movk_i32 s7, {WROW}"); a.i("v_mov_b32 v9, 0x40000000")
    for e in range(3):
        a.i(f"v_add_u32 v4, {64*e}, {L}")
        a.i(f"v_mul_u32_u24 v5, 21846, v4"); a.i(f"v_lshrrev_b32 v5, 18, v5")
        a.i(f"v_mul_u32_u24 v6, 12, v5"); a.i(f"v_sub_u32 v6, v4, v6")
        a.i(f"v_cmp_lt_u32 vcc, 8, v6")
        a.i(f"v_mul_lo_u32 v5, v5, s7"); a.i(f"v_lshl_add_u32 v5, v6, 4, v5")
        a.i(f"v_add_u32 v5, s6, v5"); a.i(f"v_subrev_u32 v5, {1024*e}, v5")
        a.i(f"v_cndmask_b32 {vQoff[e]}, v5, v9, vcc")
    a.i(f"v_and_b32 v2, 31, {L}"); a.i(f"v_lshrrev_b32 v5, 5, {L}")
    a.i(f"s_mul_i32 s6, {sWV}, {KBLK}"); a.i(f"s_add_u32 s7, s6, {KB0}"); a.i(f"s_cmp_eq_u32 {sWV}, 3"); a.i(f"s_cselect_b32 s7, {KB3}, s7")
    a.i(f"v_mul_u32_u24 v3, {KP}, v2"); a.i(f"v_lshl_add_u32 v3, v5, 3, v3")
    a.i(f"v_add_u32 {vKw}, s7, v3"); a.i(f"s_add_u32 s6, s6, {QBASE}"); a.i(f"v_add_u32 {vQw}, s6, v3")
    a.i(f"s_mul_i32 s6, {sWV}, 4608"); a.i(f"s_add_u32 s6, s6, {VBASE}")
    a.i(f"v_mul_u32_u24 v3, 1152, v5"); a.i(f"v_lshl_add_u32 v3, v2, 4, v3"); a.i(f"v_add_u32 {vVw}, s6, v3")
    a.i(f"v_lshrrev_b32 v3, 4, v2"); a.i(f"v_mul_u32_u24 v3, 2304, v3"); a.i(f"v_bfe_u32 v4, v2, 2, 1")
    a.i(f"v_mul_u32_u24 v4, 1152, v4"); a.i(f"v_add_u32 v3, v3, v4"); a.i(f"v_and_b32 v4, 3, v2")
    a.i(f"v_bfe_u32 v6, v2, 3, 1"); a.i(f"v_lshl_add_u32 v4, v6, 2, v4"); a.i(f"v_lshl_add_u32 v3, v4, 1, v3")
    a.i(f"v_lshl_add_u32 v3, v5, 6, v3"); a.i(f"v_add_u32 v3, {64*16}, v3"); a.i(f"v_add_u32 {vVt}, s6, v3")
    a.i(f"s_mul_i32 s6, {sWV}, 36"); a.i(f"v_mul_u32_u24 v3, {KP}, v2"); a.i(f"v_add_u32 v3, s6, v3")
    a.i(f"v_lshl_add_u32 {vKr}, v5, 4, v3")
    a.i(f"v_add_u32 {vKl}, 32, v3")
    a.i(f"s_mul_i32 s6, {sWV}, {18*16}"); a.i(f"s_add_u32 s6, s6, {VBASE}")
    a.i(f"v_mul_u32_u24 v3, 1152, v5"); a.i(f"v_lshl_add_u32 v3, v2, 4, v3"); a.i(f"v_add_u32 {vVr}, s6, v3")
    a.i(f"v_lshlrev_b32 {vPk}, 4, {L}"); a.i(f"v_lshlrev_b32 {vPl}, 2, v2"); a.i(f"v_add_u32 {vPl}, 1024, {vPl}")
    a.i(f"v_mul_u32_u24 v3, 288, v5"); a.i(f"v_lshl_add_u32 v3, v2, 4, v3"); a.i(f"v_add_u32 {vPv}, 1152, v3")
    a.i(f"s_lshl_b32 s6, {sWV}, 2"); a.i(f"v_lshlrev_b32 v3, 4, v2"); a.i(f"v_add_u32 {vOl}, s6, v3")
    a.i(f"v_and_b32 v3, 27, v2"); a.i(f"v_cmp_eq_u32 vcc, 18, v3"); a.i(f"v_mov_b32 v4, 0x3f803f80"); a.i("s_nop 0")
    a.i(f"v_cndmask_b32 {vVC}, 0, v4, vcc")
    a.i(f"s_lshl_b32 s6, {sB}, 3"); a.i(f"s_add_u32 s6, s6, {sG}"); a.i(f"s_lshl_b32 s6, s6, 4"); a.i(f"s_add_u32 s6, s6, {sC}")
    a.i(f"s_mul_i32 {sKVme}, s6, {SLOT}"); a.i(f"s_mul_i32 s7, {sWV}, 2304"); a.i(f"s_add_u32 {sKVme}, {sKVme}, s7")
    a.i(f"s_sub_u32 {sKV1}, {sKVme}, {SLOT}"); a.i(f"s_sub_u32 {sKV2}, {sKVme}, {2*SLOT}")
    a.i(f"s_cmp_ge_u32 {sC}, 1"); a.i(f"s_cselect_b32 {sKV1}, {sKV1}, 0x70000000")
    a.i(f"s_cmp_ge_u32 {sC}, 2"); a.i(f"s_cselect_b32 {sKV2}, {sKV2}, 0x70000000")
    a.i(f"s_lshl_b32 s6, s6, 2"); a.i(f"s_add_u32 s6, s6, {sWV}"); a.i(f"s_lshl_b32 s6, s6, 7")
    a.i(f"s_add_u32 {sFKV}, s6, {WS_FKV}")
    a.i(f"s_cmp_ge_u32 {sC}, 1"); a.i(f"s_cselect_b32 s6, -1, 0"); a.i(f"s_cmp_ge_u32 {sC}, 2"); a.i(f"s_cselect_b32 s7, -1, 0")
    a.i(f"v_and_b32 v2, s6, {vVC}"); a.i(f"v_and_b32 v3, s7, {vVC}"); a.i(f"v_mov_b32 v4, 0x3f803f80")
    for hb in range(8):
        base=HALO+14*hb
        a.i(f"v_accvgpr_write_b32 a{base+5}, v4")
        for r in range(8): a.i(f"v_accvgpr_write_b32 a{base+6+r}, {'v3' if hb<4 else 'v2'}")
    a.i(f"v_and_b32 v2, 31, {L}"); a.i(f"v_lshlrev_b32 v3, 2, v5"); a.i(f"v_sub_u32 v2, v2, v3")
    a.i(f"v_mov_b32 v6, 0xffff"); a.i(f"v_mov_b32 v7, 0xffff0000")
    for u in range(8):
        r0=2*u; k0=(r0&3)+8*(r0>>2)
        a.i(f"v_cmp_le_i32 vcc, {k0}, v2"); a.i(f"v_cmp_le_i32 s[4:5], {k0+1}, v2"); a.i("s_nop 0")
        a.i(f"v_cndmask_b32 v3, 0, v6, vcc"); a.i(f"v_cndmask_b32 v4, 0, v7, s[4:5]")
        a.i(f"v_or_b32 v{MASKD+u}, v3, v4"); a.i(f"v_not_b32 v{MASKF+u}, v{MASKD+u}")
    a.i(f"s_lshl_b32 s6, {sB}, 6"); a.i(f"s_lshl_b32 s7, {sC}, 2"); a.i("s_add_u32 s6, s6, s7")
    a.i(f"s_lshl_b32 s7, s6, 5"); a.i(f"s_lshl_b32 s3, {sG}, 2"); a.i(f"s_add_u32 s7, s7, s3"); a.i(f"s_add_u32 s7, s7, {sWV}")
    a.i(f"s_lshl_b32 s7, s7, 10"); a.i(f"s_add_u32 {sOM}, s7, {WS_OM}")
    a.i(f"s_lshl_b32 s7, s6, 3"); a.i(f"s_add_u32 s7, s7, {sG}"); a.i(f"s_lshl_b32 s7, s7, 9"); a.i(f"s_add_u32 {sOL}, s7, {WS_OL}")
    a.i(f"s_lshr_b32 {sRH}, {sG}, 2"); a.i(f"s_and_b32 {sNQ}, {sG}, 3")
    a.i(f"s_lshl_b32 s7, {sRH}, 1"); a.i("s_add_u32 s3, s6, s7"); a.i(f"s_lshr_b32 s7, {sWV}, 1"); a.i("s_add_u32 s3, s3, s7")
    a.i(f"s_lshl_b32 {sPOM}, s3, 15"); a.i(f"s_add_u32 {sPOM}, {sPOM}, {WS_OM}")
    a.i(f"s_lshl_b32 {sPOL}, s3, 12"); a.i(f"s_add_u32 {sPOL}, {sPOL}, {WS_OL}")
    a.i(f"s_lshl_b32 s6, {sC}, 7"); a.i(f"s_lshl_b32 s7, {sRH}, 6"); a.i("s_add_u32 s6, s6, s7")
    a.i(f"s_lshl_b32 s7, {sWV}, 4"); a.i("s_add_u32 s6, s6, s7"); a.i(f"s_mul_i32 {sOUTB}, s6, {OUTROW}")
    a.i(f"s_mul_i32 s7, {sB}, 1152"); a.i(f"s_add_u32 {sOUTB}, {sOUTB}, s7")
    a.i(f"s_mul_i32 s7, {sNQ}, 288"); a.i(f"s_add_u32 {sOUTB}, {sOUTB}, s7")
    a.i(f"s_lshl_b32 s6, {sB}, 4"); a.i(f"s_add_u32 s6, s6, {sC}"); a.i(f"s_lshl_b32 {sFO}, s6, 12")
    a.i(f"s_add_u32 {sFO}, {sFO}, {WS_FO}")
    a.i(f"v_mov_b32 v252, {f2u(2.0**-40):#x}"); a.i(f"v_mov_b32 v253, {f2u(2.0**40):#x}")
    a.i(f"s_mov_b64 {sBAD}, 0")

def wq_reads(tau):
    n,t=divmod(tau,4); b=tau%2
    off=(n%3)*QCH+16*QPITCH*t
    return [[(f"ds_read_b64_tr_b16 {QFh(b,f,h)}, {vQr} offset:{off+4*QPITCH*h+64*f}", f'q{tau}_{f}') for h in range(2)] for f in range(3)]

def drain_side(a, side, n):
    k=0; last=''
    while side and (k<n or last.startswith('s_cmp') or (side[0] if isinstance(side[0],str) else side[0][0]).startswith('s_cselect')):
        x=side.pop(0)
        if isinstance(x,tuple): a.i(*x); last=x[0]
        else: a.i(x); last=x
        k+=1

def phase1a(a, opts, pend):
    a.c("---- phase 1a")
    def reads(tau):
        n,t=divmod(tau,4); slot=n%4; hi=slot>=2; base=(slot%2)*SLOT; b=tau%2
        R=[[(f"ds_read_b128 {XF(tau)}, {vXr[hi][t]} offset:{base}", f'x{tau}')] +
           [(f"ds_read_b64_tr_b16 {WFh(b,0,h)}, {vWr[hi]} offset:{base+5120*t+1280*h}", f'w{tau}_0') for h in range(2)]]
        for f,co in ((1,64),(2,144),(3,208)):
            R.append([(f"ds_read_b64_tr_b16 {WFh(b,f,h)}, {vWr[hi]} offset:{base+5120*t+1280*h+co}", f'w{tau}_{f}') for h in range(2)])
        R.append([(f"ds_read_b64_tr_b16 {WFh(b,4,h)}, {vMx[hi]} offset:{base+5120*t+1280*h}", f'w{tau}_4') for h in range(2)])
        return R
    a.stamp('setup_done')
    a.wait(vm='ch0'); a.i("s_barrier")
    a.stamp('ch0_landed')
    for grp in reads(0): a.emit(grp)
    names=['K0','K1','V0','V1','MX']
    side=opts.get('_side',[])
    every=opts.get('dma_every',2)
    slotcnt=0
    for tau in range(36):
        n,t=divmod(tau,4); b=tau%2
        if t==0: a.stamp(f'c{n}')
        if t==3:
            a.wait(vm=f'ch{n+1}' if n<8 else 'wq0')
            a.i("s_barrier")
            if n<=5:
                pend += dma_chunk_groups((n+3)%4, n+3)
                if n==5 and opts.get('wotouch',1):
                    rec=Rec(); touch_wo(rec); pend.append(rec.l)
            elif n==6:
                pend.append([f"s_mov_b32 {sCI}, {sROT}", f"s_mul_i32 {sWoff}, {sCI}, {64*WROW}", f"s_mov_b32 {sIDX}, {sOFF}"])
                for q in range(3): pend += dma_wq_groups(q)
            elif n==7:
                for q in range(3,6): pend += dma_wq_groups(q)
            elif n==8:
                for q in range(6,9): pend += dma_wq_groups(q)
        R = reads(tau+1) if tau<35 else wq_reads(0)
        for m,nm in enumerate(names):
            a.wait(lg=[f'w{tau}_{m}']+([f'x{tau}'] if m==0 else []))
            acc=rng('v',ACC[nm],16); c='0' if tau==0 else acc
            if nm in ('V0','V1'): a.i(f"v_mfma_f32_32x32x16_bf16 {acc}, {XF(tau)}, {WF(b,m)}, {c}")
            else: a.i(f"v_mfma_f32_32x32x16_bf16 {acc}, {WF(b,m)}, {XF(tau)}, {c}")
            if m<len(R): a.emit(R[m])
            slotcnt+=1
            if pend and slotcnt%every==0: a.emit(pend.pop(0))
            elif side: drain_side(a, side, 4)
        if tau==30:
            a.i(f"v_mov_b32 {vT}, 0")
            a.i(f"buffer_load_dwordx2 {vNON}, {vT}, {sDBG}, 0 offen sc1", tag='nonce')
    assert not side, len(side)
    return pend

def epi1a_list():
    A=[]; T=76
    for ti,nm in enumerate(('K0','K1')):
        base=ACC[nm]
        for i in range(4):
            t0=T+2*(i%2)
            A+= [f"v_cvt_pk_bf16_f32 v{t0}, v{base+4*i}, v{base+4*i+1}", f"v_cvt_pk_bf16_f32 v{t0+1}, v{base+4*i+2}, v{base+4*i+3}",
                 (f"ds_write2_b32 {vKw}, v{t0}, v{t0+1} offset0:{16*ti+4*i} offset1:{16*ti+4*i+1}",'e1w')]
    for ti,nm in enumerate(('V0','V1')):
        base=ACC[nm]
        for j in range(2):
            t0=T+4+4*j
            for u in range(4): A.append(f"v_cvt_pk_bf16_f32 v{t0+u}, v{base+8*j+2*u}, v{base+8*j+2*u+1}")
            A.append((f"ds_write_b128 {vVw}, v[{t0}:{t0+3}] offset:{2304*j+512*ti}",'e1w'))
    base=ACC['MX']; t0=T+12
    A+= [f"v_cvt_pk_bf16_f32 v{t0}, v{base}, v{base+1}", f"v_cvt_pk_bf16_f32 v{t0+1}, v{base+2}, v{base+3}",
         (f"ds_write2_b32 {vKw}, v{t0}, v{t0+1} offset0:32 offset1:33",'e1w'),
         f"v_cvt_pk_bf16_f32 v{t0+2}, v{base+4}, v{base+5}", f"v_cvt_pk_bf16_f32 v{t0+3}, v{base+6}, v{base+7}",
         (f"ds_write_b16 {vVt}, v{t0+2}",'e1w'), (f"ds_write_b16_d16_hi {vVt}, v{t0+2} offset:16",'e1w'),
         (f"ds_write_b16 {vVt}, v{t0+3} offset:32",'e1w'), (f"ds_write_b16_d16_hi {vVt}, v{t0+3} offset:48",'e1w')]
    return A

def own_presets():
    L=[f"v_mov_b32 v91, 0x3f803f80"]
    for bt in range(4):
        base=OWN+14*bt
        L.append(f"v_mov_b32 v{base+5}, v91")
        for hf in range(2):
            L.append(f"s_mov_b64 exec, {sNVM}")
            for r in range(4*hf,4*hf+4): L.append(f"v_mov_b32 v{base+6+r}, {vVC}")
            L.append("s_mov_b64 exec, -1")
    return L
def own_reads():
    L=[]
    for bt in range(4):
        base=OWN+14*bt
        kb = KB0+KBLK*bt if bt<3 else KB3
        L.append(f"v_add_u32 v88, {kb}, {vKr}"); L.append(f"v_add_u32 v89, {kb}, {vKl}")
        L.append((f"ds_read2_b32 v[{base}:{base+1}], v88 offset0:0 offset1:1",'own'))
        L.append((f"ds_read2_b32 v[{base+2}:{base+3}], v88 offset0:2 offset1:3",'own'))
        L.append((f"ds_read_b32 v{base+4}, v89",'own'))
    L.append(f"s_mov_b64 exec, {sVM}")
    for bt in range(4):
        base=OWN+14*bt
        for j in range(2): L.append((f"ds_read_b128 v[{base+6+4*j}:{base+9+4*j}], {vVr} offset:{4608*bt+2304*j}",'own'))
    L.append(f"s_mov_b64 exec, -1")
    return L
def own_store_groups(mod='sc1'):
    Gs=[]
    for bt in range(4):
        base=OWN+14*bt; tag='pubA' if bt<2 else 'pubB'
        Gs.append([f"s_add_u32 {sT0}, {sKVme}, {9216*bt}", (f"buffer_store_dwordx4 v[{base}:{base+3}], {vPk}, {sWS}, {sT0} offen {mod}",tag)])
        Gs.append([f"s_add_u32 {sT0}, {sKVme}, {9216*bt}", f"s_mov_b64 exec, {sLO}", (f"buffer_store_dword v{base+4}, {vPl}, {sWS}, {sT0} offen {mod}",tag), "s_mov_b64 exec, -1"])
        for j in range(2):
            Gs.append([f"s_add_u32 {sT0}, {sKVme}, {9216*bt}", f"s_mov_b64 exec, {sVM}", (f"buffer_store_dwordx4 v[{base+6+4*j}:{base+9+4*j}], {vPv}, {sWS}, {sT0} offen offset:{576*j} {mod}",tag), "s_mov_b64 exec, -1"])
    return Gs

def flag_store_ins(cnt):
    return [f"s_add_u32 {sT1}, {sNONh}, {cnt}", f"v_mov_b32 v2, {sNONl}", f"v_mov_b32 v3, {sT1}", f"v_mov_b32 v4, 0",
            "s_mov_b64 exec, 1", (f"buffer_store_dwordx2 v[2:3], v4, {sWS}, {sFKV} offen sc1", f'kvflag{cnt}'), "s_mov_b64 exec, -1"]

def xt_base():
    return [f"s_lshl_b32 {sT0}, {sB}, 4", f"s_add_u32 {sT0}, {sT0}, {sC}", f"s_lshl_b32 {sT0}, {sT0}, 10", f"s_add_u32 {sT0}, {sT0}, {WS_XT}"]
def xt_store():
    return xt_base()+[f"s_add_u32 {sLFH}, {sXCC}, 1", f"s_lshl_b32 {sLFH}, {sLFH}, 8", f"s_add_u32 {sLFH}, {sLFH}, {sNONh}",
            f"s_lshl_b32 {sT1}, {sG}, 7", f"s_add_u32 {sT0}, {sT0}, {sT1}",
            f"v_mov_b32 v2, {sNONl}", f"v_mov_b32 v3, {sLFH}", f"v_mov_b32 v4, 0",
            "s_mov_b64 exec, 1", (f"buffer_store_dwordx2 v[2:3], v4, {sWS}, {sT0} offen sc1",'xt'), "s_mov_b64 exec, -1"]
def xt_load():
    return xt_base()+[f"v_lshlrev_b32 v2, 7, {vLane}", "s_mov_b64 exec, 0xff",
            (f"buffer_load_dwordx2 v[8:9], v2, {sWS}, {sT0} offen sc1",'xtl'), "s_mov_b64 exec, -1"]
def xt_check(a):
    a.wait(vm='xtl')
    a.i("s_mov_b64 exec, 0xff")
    a.i(f"v_cmp_eq_u32 vcc, {sNONl}, v8"); a.i(f"v_cmp_eq_u32 s[4:5], {sLFH}, v9")
    a.i("s_mov_b64 exec, -1")
    a.i("s_and_b64 s[4:5], s[4:5], vcc"); a.i("s_and_b32 s4, s4, 0xff"); a.i("s_cmp_eq_u32 s4, 0xff")
    a.i(f"s_cselect_b32 {sLOC}, 1, 0")
    if GOPT.get('force_remote'): a.i(f"s_mov_b32 {sLOC}, 0")

def wo_group_for(kbase):
    setup=[f"s_add_u32 {sT1}, {sWV}, {kbase}", f"s_mul_i32 {sT2}, {sT1}, 41472", f"s_mul_i32 {sT3}, {sT1}, 9216"]
    return wo_dma_groups(0,None,setup)

def phase1b(a, pend, opts):
    a.c("---- phase 1b")
    a.stamp('1a_end')
    q=[]; stores=[]; wo=[]
    E2=opts.get('e2',4)
    FAST=opts.get('fastA',1)
    sched={}
    tt=E2+1
    for g in range(16):
        sched.setdefault(tt,[]).append(g)
        tt += 1 if (g<7 and FAST) else 2
    FLAGA=opts.get('flagA',24)
    rec=Rec(); wo_addr(rec); woaddr=rec.l
    for tau in range(36):
        n,t=divmod(tau,4); b=tau%2
        a.stamp(f'b{tau}_')
        if tau==1:
            a.i("s_barrier"); q+=epi1a_list()
        if tau==E2:
            a.drain(q,1000); a.wait(lg=0); a.i("s_barrier")
            a.emit(own_reads())
        if tau==E2+1:
            a.wait(lg='own')
            a.stamp('pub_start')
            stores=own_store_groups()
            q+=woaddr
        if tau==E2+3:
            a.i("s_barrier")
        if tau==E2+6: wo+=wo_group_for(0); q+=own_presets()
        if tau==15: wo+=wo_group_for(4)
        if tau==27: wo+=wo_group_for(8)
        if tau==FLAGA:
            a.wait(vm='pubA'); get_nonce(a); a.emit(flag_store_ins(2)); a.stamp('flagA')
            a.emit(xt_store())
        if t==3 and tau<35:
            a.wait(vm=f'wq{n+1}')
            a.i("s_barrier")
            if (n+1)%3==0: a.i(f"v_add_u32 {vQr}, {SLOT}, {vQr}")
        R = wq_reads(tau+1) if tau<35 else []
        for m,nm in enumerate(('Q0','Q1','Q2')):
            a.wait(lg=[f'q{tau}_{m}'])
            acc=rng('v',ACC[nm],16); c='0' if tau==0 else acc
            a.i(f"v_mfma_f32_32x32x16_bf16 {acc}, {QF(b,m)}, {XF(tau)}, {c}")
            if m<len(R): a.emit(R[m])
            if m==0 and tau in sched:
                for g in sched[tau]:
                    if opts.get('nopub'):
                        for x in stores[g]:
                            if isinstance(x,tuple): a.vm.append(x[1])
                    else: a.emit(stores[g])
            elif q and tau<E2: a.drain(q,7)
            elif pend: a.emit(pend.pop(0))
            elif q: drain_side2(a,q,4)
            elif opts.get('nowo1b'): pass
            elif wo and m==2: a.emit(wo.pop(0))
            elif wo and m==1 and opts.get('wo2',1): a.emit(wo.pop(0))
    assert not pend and not q, (len(pend),len(q))
    opts['_wo_left']=wo
    a.stamp('1b_end')
    a.emit(kv_flag_load(0))
    a.nop(14)
    T=76
    for ti,nm in enumerate(('Q0','Q1','Q2')):
        base=ACC[nm]; ni=4 if ti<2 else 1
        for r in range(4*ni): a.i(f"v_mul_f32 v{base+r}, {sSC}, v{base+r}")
    for ti,nm in enumerate(('Q0','Q1','Q2')):
        base=ACC[nm]; ni=4 if ti<2 else 1
        for i in range(ni):
            t0=T+2*((ti*4+i)%8)
            a.i(f"v_cvt_pk_bf16_f32 v{t0}, v{base+4*i}, v{base+4*i+1}"); a.i(f"v_cvt_pk_bf16_f32 v{t0+1}, v{base+4*i+2}, v{base+4*i+3}")
            if ti==0 and i==0: a.i("s_barrier")
            a.i(f"ds_write2_b32 {vQw}, v{t0}, v{t0+1} offset0:{16*ti+4*i} offset1:{16*ti+4*i+1}",'e2w')
    a.i(f"v_mov_b32 {vT}, 0")
    for i in range(4):
        for r in range(4,8): a.i(f"v_accvgpr_write_b32 a{8*i+r}, {vT}")
    a.wait(lg=0); a.i("s_barrier")
    for i in range(4):
        a.i(f"v_add_u32 v88, {QBASE+KBLK*i}, {vKr}")
        a.i(f"ds_read2_b32 a[{8*i}:{8*i+1}], v88 offset0:0 offset1:1",'qf')
        a.i(f"ds_read2_b32 a[{8*i+2}:{8*i+3}], v88 offset0:2 offset1:3",'qf')
    a.i(f"s_mov_b64 exec, {sLO}")
    for i in range(4):
        a.i(f"v_add_u32 v89, {QBASE+KBLK*i}, {vKl}")
        a.i(f"ds_read_b32 a{8*i+4}, v89",'qf')
    a.i("s_mov_b64 exec, -1")
    a.wait(lg='qf')
    a.i("s_barrier")
    a.stamp('q_ready')

def drain_side2(a, q, n):
    k=0; inexec=False; last=''
    while q and (k<n or inexec or last.startswith('s_cmp') or (q[0] if isinstance(q[0],str) else q[0][0]).startswith('s_cselect')):
        x=q.pop(0)
        txt=x[0] if isinstance(x,tuple) else x
        if txt.startswith('s_mov_b64 exec'): inexec = not txt.endswith('-1')
        if isinstance(x,tuple): a.i(*x)
        else: a.i(x)
        last=txt; k+=1

vFL='v[6:7]'; vFA='v5'
def kv_flag_load(rnd):
    L=[]
    if rnd==0:
        L+= [f"s_cmp_ge_u32 {sC}, 2", f"s_cselect_b32 {sT1}, 2, 1", f"s_lshl_b32 {sT1}, {sT1}, 9",
             f"s_sub_u32 {sT0}, {sFKV}, 512", f"s_sub_u32 {sT1}, {sFKV}, {sT1}",
             f"s_cmp_eq_u32 {sC}, 0", f"s_cselect_b32 {sT0}, {sFKV}, {sT0}", f"s_cselect_b32 {sT1}, {sFKV}, {sT1}",
             f"v_mov_b32 v8, {sT0}", f"v_mov_b32 v9, {sT1}", f"v_cmp_eq_u32 vcc, 0, {vLane}", "s_nop 1",
             f"v_cndmask_b32 {vFA}, v9, v8, vcc"]
    L+= ["s_mov_b64 exec, 3", (f"buffer_load_dwordx2 {vFL}, {vFA}, {sWS}, 0 offen sc1", f'fl{rnd}'), "s_mov_b64 exec, -1"]
    return L

def kv_flag_check(a, rnd, need):
    a.wait(vm=f'fl{rnd}')
    a.i(f"s_mov_b32 {sCNT}, 200000")
    a.label(f"L_chk{rnd}")
    a.i(f"s_cmp_eq_u32 {sC}, 0"); a.i(f"s_cbranch_scc1 L_ok{rnd}")
    a.i("s_mov_b64 exec, 3")
    a.i(f"v_subrev_u32 v8, {sNONh}, v7")
    a.i(f"v_cmp_eq_u32 vcc, {sNONl}, v6")
    a.i(f"v_cmp_le_u32 s[4:5], {need}, v8")
    a.i(f"v_cmp_ge_u32 s[6:7], 4, v8")
    a.i("s_mov_b64 exec, -1")
    a.i("s_and_b64 s[4:5], s[4:5], vcc"); a.i("s_and_b64 s[4:5], s[4:5], s[6:7]"); a.i("s_and_b32 s4, s4, 3")
    a.i("s_cmp_eq_u32 s4, 3"); a.i(f"s_cbranch_scc1 L_ok{rnd}")
    a.i("s_mov_b64 exec, 3")
    a.i(f"buffer_load_dwordx2 {vFL}, {vFA}, {sWS}, 0 offen sc1", cond=True)
    a.i("s_mov_b64 exec, -1")
    a.i("s_waitcnt vmcnt(0)")
    a.i(f"s_sub_u32 {sCNT}, {sCNT}, 1"); a.i(f"s_cmp_lg_u32 {sCNT}, 0"); a.i(f"s_cbranch_scc1 L_chk{rnd}")
    a.label(f"L_ok{rnd}")
    a.stamp(f'chk{rnd}')

def wo_addr(a):
    L=vLane
    a.i(f"s_mul_i32 s6, {sNQ}, 288")
    a.i(f"v_lshrrev_b32 v4, 4, {L}")
    a.i(f"v_and_b32 v5, 15, {L}")
    for par in range(2):
        a.i(f"v_add_u32 v6, {4*par}, v4"); a.i(f"v_lshlrev_b32 v6, 1, v6"); a.i(f"v_xor_b32 v6, v5, v6")
        a.i(f"v_lshlrev_b32 v6, 4, v6"); a.i(f"v_add_u32 v6, s6, v6")
        a.i(f"v_mul_u32_u24 v7, {XROW}, v4"); a.i(f"v_add_u32 {vWOm[par]}, v6, v7")
        a.i(f"v_lshrrev_b32 v7, 1, v4"); a.i(f"v_mul_u32_u24 v7, 18, v7"); a.i(f"v_and_b32 v8, 1, v4"); a.i(f"v_add_u32 v7, v7, v8")
        a.i(f"v_mul_u32_u24 v7, {XROW}, v7"); a.i(f"v_add_u32 {vWOl[par]}, v6, v7")
    a.i(f"v_lshrrev_b32 v4, 1, {L}")
    a.i(f"v_and_b32 v5, 1, {L}"); a.i(f"v_lshlrev_b32 v5, 4, v5"); a.i(f"v_add_u32 v5, 256, v5"); a.i(f"v_add_u32 v5, s6, v5")
    a.i(f"v_bfe_u32 v6, v4, 2, 2")
    a.i(f"v_and_b32 v7, 3, v4"); a.i(f"v_lshrrev_b32 v8, 4, v4")
    a.i(f"v_lshrrev_b32 v2, 1, v6"); a.i(f"v_mul_u32_u24 v2, 18, v2"); a.i(f"v_add_u32 v2, v2, v7"); a.i(f"v_lshl_add_u32 v2, v8, 3, v2")
    a.i(f"v_and_b32 v3, 1, v6"); a.i(f"v_lshl_add_u32 v2, v3, 2, v2"); a.i(f"v_mul_u32_u24 v2, {XROW}, v2"); a.i(f"v_add_u32 {vWOt[0]}, v2, v5")
    a.i(f"v_lshl_add_u32 v7, v8, 2, v7")
    a.i(f"v_lshrrev_b32 v2, 1, v7"); a.i(f"v_lshl_add_u32 v2, v6, 2, v2"); a.i(f"v_mul_u32_u24 v2, 18, v2")
    a.i(f"v_and_b32 v3, 1, v7"); a.i(f"v_add3_u32 v2, v2, v3, 16"); a.i(f"v_mul_u32_u24 v2, {XROW}, v2"); a.i(f"v_add_u32 {vWOt[1]}, v2, v5")

def wo_dma_groups(kap, slot, uniform_setup):
    Gs=[]
    left = kap>=16
    for e in range(8):
        if left: const=((4*(e&3)+2*(e>>2))*18+16)*XROW
        else: const=(((e&3)>>1)*18+8*(e>>2)+4*(e&1))*XROW
        pre = list(uniform_setup) if e==0 else []
        if e%4==0: pre += [f"s_add_u32 m0, {sT3}, {4096*(e//4)}"]
        voff=(vWOl if left else vWOm)[e&1]
        Gs.append(pre+[f"s_add_u32 {sWOs}, {sT2}, {const-1024*(e%4)}" if const-1024*(e%4)>=0 else f"s_sub_u32 {sWOs}, {sT2}, {1024*(e%4)-const}",
                       (f"buffer_load_dwordx4 {voff}, {sWO}, {sWOs} offen offset:{1024*(e%4)} lds",'wo')])
    Gs.append([f"s_add_u32 m0, {sT3}, 8192", "s_nop 0", (f"buffer_load_dwordx4 {vWOt[1 if left else 0]}, {sWO}, {sT2} offen lds",'wo')])
    return Gs

def wo_prefetch_groups():
    Gs=[]
    for it in range(4):
        setup=[f"s_add_u32 {sT1}, {sWV}, {4*it}", f"s_mul_i32 {sT2}, {sT1}, 41472", f"s_mul_i32 {sT3}, {sT1}, 9216"]
        Gs+=wo_dma_groups(0,None,setup)
    return Gs

def wo_left_groups(L_, ldsbase, regs=None):
    vl0,vl1,vt = regs or (vWOl[0],vWOl[1],vWOt[1])
    g0=L_*16*18*XROW
    setup=[f"s_lshl_b32 {sT1}, {sWV}, 1", f"s_and_b32 {sT1}, {sT1}, 3", f"s_lshl_b32 {sT1}, {sT1}, 2",
           f"s_lshr_b32 {sT2}, {sWV}, 1", f"s_lshl_b32 {sT2}, {sT2}, 1", f"s_add_u32 {sT1}, {sT1}, {sT2}",
           f"s_mul_i32 {sT1}, {sT1}, {18*XROW}", f"s_add_u32 {sT2}, {sT1}, {g0+16*XROW}",
           f"s_lshl_b32 {sT1}, {sWV}, 11", f"s_add_u32 m0, {sT1}, {ldsbase}", "s_nop 0"]
    G0=setup+[(f"buffer_load_dwordx4 {vl0}, {sWO}, {sT2} offen lds",'wo')]
    G1=[f"s_add_u32 {sT2}, {sT2}, {4*18*XROW-1024}", (f"buffer_load_dwordx4 {vl1}, {sWO}, {sT2} offen offset:1024 lds",'wo')]
    G2=[f"s_mov_b32 {sT2}, {g0}", f"s_mov_b32 m0, {ldsbase+8192}", "s_nop 0", (f"buffer_load_dwordx4 {vt}, {sWO}, {sT2} offen lds",'wo')]
    return [G0,G1,G2]

def halo_load_groups(hb):
    base=HALO+14*hb; src=sKV2 if hb<4 else sKV1; bt=hb%4; tg=f'h{hb}'
    return [[f"s_add_u32 {sT0}, {src}, {9216*bt}",
             (f"buffer_load_dwordx4 a[{base}:{base+3}], {vPk}, {sWS}, {sT0} offen sc1", tg),
             (f"buffer_load_dword a{base+4}, {vPl}, {sWS}, {sT0} offen sc1", tg),
             f"s_mov_b64 exec, {sVM}",
             (f"buffer_load_dwordx4 a[{base+6}:{base+9}], {vPv}, {sWS}, {sT0} offen sc1", tg),
             (f"buffer_load_dwordx4 a[{base+10}:{base+13}], {vPv}, {sWS}, {sT0} offen offset:576 sc1", tg),
             "s_mov_b64 exec, -1"]]

def get_nonce(a):
    a.i(f"v_readfirstlane_b32 {sNONl}, v48"); a.i(f"v_readfirstlane_b32 {sNONh}, v49"); a.i("s_nop 1")
    a.i(f"s_or_b32 {sT0}, {sNONl}, {sNONh}"); a.i(f"s_cmp_lg_u32 {sT0}, 0"); a.i("s_cbranch_scc1 L_have_nonce")
    a.i(f"s_mov_b32 {sCNT}, 100000")
    a.label("L_nonce_poll")
    a.i(f"v_mov_b32 {vT}, 0")
    a.i(f"buffer_load_dwordx2 {vNON}, {vT}, {sDBG}, 0 offen sc1", cond=True)
    a.i("s_waitcnt vmcnt(0)")
    a.i(f"v_readfirstlane_b32 {sNONl}, v48"); a.i(f"v_readfirstlane_b32 {sNONh}, v49"); a.i("s_nop 1")
    a.i(f"s_or_b32 {sT0}, {sNONl}, {sNONh}"); a.i(f"s_cmp_lg_u32 {sT0}, 0"); a.i("s_cbranch_scc1 L_have_nonce")
    a.i("s_sleep 2"); a.i(f"s_sub_u32 {sCNT}, {sCNT}, 1"); a.i(f"s_cmp_lg_u32 {sCNT}, 0"); a.i("s_cbranch_scc1 L_nonce_poll")
    a.label("L_have_nonce")

def kv_regs(jb): return ('v', OWN+14*jb) if jb>=0 else ('a', HALO+14*(jb+8))
HORDER=[-4,-3,-8,-7,-2,-1,-6,-5]
def tile_list():
    T=[(i,bt) for i in range(4) for bt in range(i+1)]
    for jb in HORDER:
        for i in range(4):
            if i-jb<=8: T.append((i,jb))
    return T

def norm_block(i):
    O=OACC+16*i; t=84; L=[]
    L.append(f"v_rcp_f32 v{t}, v{O+10}")
    L.append(f"v_cmp_nle_f32 vcc, v252, v{O+10}")
    L.append(f"v_cmp_nge_f32 s[4:5], v253, v{O+10}")
    for r in range(10): L.append(f"v_mul_f32 v{O+r}, v{t}, v{O+r}")
    L.append(f"s_or_b64 {sBAD}, {sBAD}, vcc"); L.append(f"s_or_b64 {sBAD}, {sBAD}, s[4:5]")
    L.append(f"v_add_f32 v{t+2}, abs(v{O}), abs(v{O+1})")
    for r in range(2,10,2):
        L.append(f"v_add3_f32 v{t+2}, abs(v{O+r}), abs(v{O+r+1}), v{t+2}" if False else f"v_fma_f32 v{t+2}, v{O+r}, 0, v{t+2}")
        L.append(f"v_fma_f32 v{t+2}, v{O+r+1}, 0, v{t+2}")
    for u in range(5): L.append(f"v_cvt_pk_bf16_f32 v{O+u}, v{O+2*u}, v{O+2*u+1}")
    L.append(f"v_cmp_class_f32 vcc, v{t+2}, v254")
    L.append(f"s_add_u32 {sT0}, {sOM}, {i*32*1024}"); L.append(f"s_add_u32 {sT1}, {sOL}, {i*8*512}")
    L.append(f"s_or_b64 {sBAD}, {sBAD}, vcc")
    L.append(('OSTORE',i))
    return L

def emit_ostore(a, i):
    O=OACC+16*i
    a.i(f"s_cmp_eq_u32 {sLOC}, 1"); a.i(f"s_cbranch_scc1 L_osl{i}")
    a.i(f"buffer_store_dwordx4 v[{O}:{O+3}], {vPk}, {sWS}, {sT0} offen sc1", 'x', True)
    a.i(f"s_mov_b64 exec, {sLO}")
    a.i(f"buffer_store_dword v{O+4}, {vOl}, {sWS}, {sT1} offen sc1", 'x', True)
    a.i(f"s_mov_b64 exec, -1")
    a.i(f"s_branch L_ose{i}")
    a.label(f"L_osl{i}")
    a.i(f"buffer_store_dwordx4 v[{O}:{O+3}], {vPk}, {sWS}, {sT0} offen", 'ost')
    a.i(f"s_mov_b64 exec, {sLO}")
    a.i(f"buffer_store_dword v{O+4}, {vOl}, {sWS}, {sT1} offen", 'ost')
    a.i(f"s_mov_b64 exec, -1")
    a.label(f"L_ose{i}")

def o_pretouch():
    L=vLane
    return [f"v_lshrrev_b32 v2, 3, {L}", f"v_lshlrev_b32 v2, 15, v2", f"v_and_b32 v3, 7, {L}", f"v_lshl_add_u32 v2, v3, 7, v2",
            f"v_add_u32 v2, {sOM}, v2",
            f"v_bfe_u32 v3, {L}, 2, 2", f"v_lshlrev_b32 v3, 12, v3", f"v_and_b32 v4, 3, {L}", f"v_lshl_add_u32 v3, v4, 7, v3",
            f"v_add_u32 v3, {sOL}, v3",
            f"v_cmp_le_u32 vcc, 32, {L}", f"s_lshl_b32 {sT0}, {sG}, 2", f"s_add_u32 {sT0}, {sT0}, {sWV}", f"v_cndmask_b32 v2, v2, v3, vcc",
            f"s_lshl_b32 {sT0}, {sT0}, 7", f"s_add_u32 {sT0}, {sT0}, {sFO}", f"s_add_u32 {sT0}, {sT0}, {WS_FOL-WS_FO}",
            f"v_cmp_le_u32 vcc, 48, {L}", f"v_mov_b32 v3, {sT0}", "s_nop 0", f"v_cndmask_b32 v2, v2, v3, vcc",
            (f"buffer_load_dword v255, v2, {sWS}, 0 offen",'touch'),
            f"v_mov_b32 v4, 0", "s_mov_b64 exec, 1", (f"buffer_load_dword v255, v4, {sOUT}, {sOUTB} offen",'touch'), "s_mov_b64 exec, -1"]

def attention(a, opts):
    a.c("---- attention")
    T=tile_list(); n=len(T)
    first={}; last={}; firstuse={}
    for k,(i,jb) in enumerate(T):
        first.setdefault(i,k); last[i]=k; firstuse.setdefault(jb,k)
    Sreg=lambda k: (S0 if k%2==0 else S1)
    Preg=lambda k: (P0 if k%2==0 else P1)
    def qk(k):
        i,jb=T[k]; p,base=kv_regs(jb); S=rng('v',Sreg(k),16)
        return [f"v_mfma_f32_32x32x16_bf16 {S}, {rng(p,base,4)}, a[{8*i}:{8*i+3}], 0",
                f"v_mfma_f32_32x32x16_bf16 {S}, {rng(p,base+4,4)}, a[{8*i+4}:{8*i+7}], {S}"]
    def pv(k):
        i,jb=T[k]; p,base=kv_regs(jb); O=rng('v',OACC+16*i,16); P=Preg(k)
        c0='0' if k==first[i] else O
        return [f"v_mfma_f32_32x32x16_bf16 {O}, {rng(p,base+6,4)}, v[{P}:{P+3}], {c0}",
                f"v_mfma_f32_32x32x16_bf16 {O}, {rng(p,base+10,4)}, v[{P+4}:{P+7}], {O}"]
    waited=set()
    wo=list(opts.get('_wo_left',[]))+wo_group_for(12)+wo_left_groups(0,16*9216)
    WO_START=opts.get('wo_start',0)
    CHK0=opts.get('chk0',0); FLAGB=opts.get('flagB',3); FL1=opts.get('fl1',9); CHK1=opts.get('chk1',14)
    WO_PAUSE=opts.get('wo_pause',1)
    a.i(f"v_mov_b32 v254, 0x207")
    q0=qk(0); a.i(q0[0]); a.i(q0[1])
    extra=[]
    for k in range(n+1):
        if k==CHK0:
            kv_flag_check(a,0,2)
            for jb in HORDER[:4]:
                for g in halo_load_groups(jb+8): a.emit(g)
            if not opts.get('nopre'): a.emit(o_pretouch())
        if k==FLAGB:
            a.wait(vm='pubB'); a.emit(flag_store_ins(4))
        if k==FL1: a.emit(kv_flag_load(1))
        if k==opts.get('xtl',24): a.emit(xt_load())
        if k==opts.get('xtc',30): xt_check(a)
        if k==CHK1:
            kv_flag_check(a,1,4)
            for jb in HORDER[4:]:
                for g in halo_load_groups(jb+8): a.emit(g)
        mf=[]
        if k+1<n:
            i,jb=T[k+1]
            if jb<0 and jb not in waited:
                if not waited: a.stamp('own_done')
                waited.add(jb); a.wait(vm=f'h{jb+8}')
                if len(waited)==1: a.stamp('h0_landed')
            mf+=qk(k+1)
        else: mf+=[None,None]
        mf += pv(k-1) if k>=1 else [None,None]
        if k==0: a.nop(12)
        S=Sreg(k); P=Preg(k)
        i,jb=T[k] if k<n else (None,None)
        for seg in range(4):
            pk,ps = (k,seg-1) if seg>0 else (k-1,3)
            if pk>=0 and pk<n:
                Sp=Sreg(pk); Pp=Preg(pk); ip,jp=T[pk]
                for u in (2*ps,2*ps+1): a.i(f"v_cvt_pk_bf16_f32 v{Pp+u}, v{Sp+2*u}, v{Sp+2*u+1}")
                if jp==ip or jp==ip-8:
                    M=MASKD if jp==ip else MASKF
                    for u in (2*ps,2*ps+1): a.i(f"v_and_b32 v{Pp+u}, v{M+u}, v{Pp+u}")
            if k==n and seg==2: a.nop(2)
            if mf[seg]: a.i(mf[seg])
            if k<n:
                for e in range(4): a.i(f"v_exp_f32 v{S+4*seg+e}, v{S+4*seg+e}")
            a.drain(extra, 6 if k<n else 1000)
            paused = WO_PAUSE and ((CHK0<=k<10) or (CHK1<=k<CHK1+9))
            if k>=WO_START and wo and not paused and seg in (0,1,3): a.emit(wo.pop(0))
        if k>=1:
            ib=T[k-1][0]
            if last[ib]==k-1:
                if k==n:
                    a.nop(14); a.emit(norm_block(ib))
                else: extra+=["s_nop 1"]+norm_block(ib)
    assert not extra
    for g in wo: a.emit(g)
    a.stamp('att_end')

OF=16
DACC=88
AFV=124
vAr=[f'v{2+t}' for t in range(9)]
vOf='v11'; vOut='v12'

def phase3(a, opts):
    a.c("---- phase 3")
    L=vLane
    a.i(f"v_mov_b32 v88, {vWOl[0]}"); a.i(f"v_mov_b32 v89, {vWOl[1]}"); a.i(f"v_mov_b32 v90, {vWOt[1]}")
    a.i(f"v_lshrrev_b32 v13, 2, {L}")
    a.i(f"v_and_b32 v14, 7, v13"); a.i(f"v_lshlrev_b32 v14, 5, v14")
    a.i(f"v_lshl_add_u32 v14, v13, 8, v14")
    a.i(f"v_and_b32 v15, 3, {L}"); a.i(f"v_lshl_add_u32 v14, v15, 3, v14")
    for t in range(8): a.i(f"v_xor_b32 {vAr[t]}, {32*t}, v14")
    a.i(f"v_lshlrev_b32 v13, 5, v13"); a.i(f"v_lshl_add_u32 v13, v15, 3, v13"); a.i(f"v_add_u32 {vAr[8]}, 8192, v13")
    a.i(f"v_and_b32 v13, 15, {L}"); a.i(f"v_lshrrev_b32 v14, 4, {L}")
    a.i(f"s_and_b32 s6, {sWV}, 1"); a.i(f"s_lshl_b32 s6, s6, 8")
    a.i(f"v_lshl_add_u32 v15, v13, 4, s6"); a.i(f"v_lshl_add_u32 {vOf}, v14, 9, v15")
    a.i(f"v_mul_u32_u24 v15, {OUTROW}, v13"); a.i(f"v_lshl_add_u32 {vOut}, v14, 3, v15")
    a.wait(vm='wo')
    a.i("s_barrier")
    a.stamp('wo_ready')
    if opts.get('dumpwo'):
        a.i("s_cmp_lg_u32 s2, 0"); a.i("s_cbranch_scc1 L_nodump")
        a.i("v_lshlrev_b32 v13, 4, v0")
        for it in range(39):
            a.i(f"ds_read_b128 v[124:127], v13 offset:0")
            a.i("s_waitcnt lgkmcnt(0)")
            a.i(f"v_add_u32 v14, {WS_DBG+0x100000}, v13")
            a.i(f"buffer_store_dwordx4 v[124:127], v14, {sWS}, 0 offen", cond=True)
            a.i("s_waitcnt vmcnt(0)")
            a.i("v_add_u32 v13, 4096, v13")
        a.label("L_nodump"); a.lg_clear()
    def frag_reads(kap, dst):
        slot=kap if kap<17 else 0
        R=[]
        for t in range(9):
            p,r=dst(kap,t)
            off=(slot%7)*9216
            hoff=4096 if t<8 else 512
            R.append([(f"ds_read_b64_tr_b16 {p}[{r+2*h}:{r+2*h+1}], {vAr[t]} offset:{off+hoff*h}", f'a{kap}_{t}') for h in range(2)])
        return R
    NA=7
    def dst(kap,t):
        if kap<NA: return 'a', (kap*9+t)*4
        idx=((kap-NA)*9+t)%32
        return 'v', AFV+idx*4
    bump=lambda: [f"v_add_u32 {vAr[t]}, {7*9216}, {vAr[t]}" for t in range(9)]
    def oflag():
        a.i(f"s_lshl_b32 {sT0}, {sG}, 2"); a.i(f"s_add_u32 {sT0}, {sT0}, {sWV}"); a.i(f"s_lshl_b32 {sT0}, {sT0}, 7"); a.i(f"s_add_u32 {sT0}, {sT0}, {sFO}")
        a.i(f"v_mov_b32 v14, {sNONl}"); a.i(f"v_mov_b32 v13, 0")
        a.i(f"s_cmp_eq_u32 {sLOC}, 1"); a.i("s_cbranch_scc1 L_ofl")
        a.i(f"v_mov_b32 v15, {sNONh}")
        a.i("s_mov_b64 exec, 1")
        a.i(f"buffer_store_dwordx2 v[14:15], v13, {sWS}, {sT0} offen sc1", 'x', True)
        a.i("s_branch L_ofe")
        a.label("L_ofl")
        a.i(f"s_add_u32 {sT0}, {sT0}, {WS_FOL-WS_FO}")
        a.i(f"v_mov_b32 v15, {sLFH}")
        a.i("s_mov_b64 exec, 1")
        a.i(f"buffer_store_dwordx2 v[14:15], v13, {sWS}, {sT0} offen", tag='oflag')
        a.label("L_ofe")
        a.i("s_mov_b64 exec, -1")
    LF_AT=opts.get('lf_at',1)
    for kap in range(NA):
        if kap==LF_AT:
            a.wait(vm='ost'); oflag(); a.stamp('o_lflag')
        for grp in frag_reads(kap,dst): a.emit(grp)
        if kap%2==1: a.wait(lg=8)
    a.emit(bump())
    for kap in range(NA,NA+3):
        for grp in frag_reads(kap,dst): a.emit(grp)
    a.wait(lg=0)
    a.i("s_barrier")
    for g in wo_left_groups(1,0,('v88','v89','v90')): a.emit(g)
    a.stamp('frags_pre')
    a.i(f"v_and_b32 v13, 31, {L}"); a.i(f"v_lshlrev_b32 v13, 7, v13")
    a.i(f"v_add_u32 v14, {WS_FOL-WS_FO}, v13"); a.i(f"v_cmp_le_u32 vcc, 32, {L}")
    a.i(f"v_mov_b32 v91, {sNONh}"); a.i(f"v_mov_b32 v92, {sLFH}")
    a.i(f"v_cndmask_b32 v13, v13, v14, vcc"); a.i(f"v_cndmask_b32 v91, v91, v92, vcc")
    a.i(f"s_mov_b32 {sCNT}, 200000")
    a.label("L_opoll")
    a.i(f"buffer_load_dwordx2 v[14:15], v13, {sWS}, {sFO} offen sc1", cond=True)
    a.i("s_waitcnt vmcnt(0)")
    a.i(f"v_cmp_eq_u32 vcc, {sNONl}, v14"); a.i(f"v_cmp_eq_u32 s[4:5], v91, v15")
    a.i("s_nop 0")
    a.i("s_and_b64 s[4:5], s[4:5], vcc"); a.i("s_or_b32 s4, s4, s5"); a.i("s_cmp_eq_u32 s4, -1"); a.i("s_cbranch_scc1 L_opoll_done")
    a.i(f"s_sub_u32 {sCNT}, {sCNT}, 1"); a.i(f"s_cmp_lg_u32 {sCNT}, 0"); a.i("s_cbranch_scc1 L_opoll")
    a.label("L_opoll_done")
    a.stamp('opoll_done')
    KORD=[7,8,9]+list(range(7))+list(range(10,18))
    for kap in KORD:
        src=sPOM if kap<16 else sPOL
        a.i(f"s_add_u32 {sT0}, {src}, {2048*(kap%16 if kap<16 else kap-16)}")
        a.i(f"buffer_load_dwordx4 v[{OF+4*kap}:{OF+4*kap+3}], {vOf}, {sWS}, {sT0} offen sc1", tag=f'of{kap}')
    rq=[]
    for kap in range(NA+3,18):
        R=frag_reads(kap,dst)
        for t in range(9): rq.append((kap,t,R[t]))
    issued=(NA+3-NA)*9
    consumed=0
    base_slot=7
    for kap in KORD:
        a.wait(vm=f'of{kap}')
        for t in range(9):
            p,r=dst(kap,t)
            if kap>=NA:
                n_=a.lg_n(f'a{kap}_{t}')
                if n_ is not None: a.wait(lg=f'a{kap}_{t}')
            acc=rng('v',DACC+4*t,4); c='0' if kap==KORD[0] else acc
            a.i(f"v_mfma_f32_16x16x32_bf16 {acc}, {p}[{r}:{r+3}], v[{OF+4*kap}:{OF+4*kap+3}], {c}")
            if kap>=NA: consumed+=1
            if rq and issued-consumed<31:
                k2,t2,ins=rq[0]
                if k2==14 and t2==0 and base_slot==7:
                    a.emit(bump()); base_slot=14
                if k2==17 and t2==0:
                    a.i("s_waitcnt vmcnt(0)"); a.i("s_barrier")
                    a.emit([f"v_subrev_u32 {vAr[tt]}, {14*9216}, {vAr[tt]}" for tt in range(9)])
                rq.pop(0); a.emit(ins); issued+=1
    assert not rq
    a.stamp('p3_mfma_end')
    a.nop(10)
    for t in range(9):
        d=DACC+4*t
        a.i(f"v_cvt_pk_bf16_f32 v{d}, v{d}, v{d+1}"); a.i(f"v_cvt_pk_bf16_f32 v{d+1}, v{d+2}, v{d+3}")
        a.i(f"buffer_store_dwordx2 v[{d}:{d+1}], {vOut}, {sOUT}, {sOUTB} offen offset:{32*t} {opts.get('outmod','')}")
    a.i("s_waitcnt vmcnt(0)")

def kd(name, vgpr, accum, sgpr=102):
    return f""".section .rodata,"a"
.p2align 6
.amdhsa_kernel {name}
  .amdhsa_next_free_vgpr {vgpr}
  .amdhsa_next_free_sgpr {sgpr}
  .amdhsa_accum_offset {accum}
  .amdhsa_group_segment_fixed_size 0
  .amdhsa_kernarg_size 72
  .amdhsa_user_sgpr_count 2
  .amdhsa_user_sgpr_kernarg_segment_ptr 1
  .amdhsa_system_sgpr_workgroup_id_x 1
.end_amdhsa_kernel
"""
HEADER = """; Kernarg layout (72 bytes, ptrs only, base s[0:1]):
"""
def build(opts):
    ORDER_MODE[0]=opts.get('order','own'); GOPT.update(opts)
    a=G()
    if opts.get('stamps'):
        a.stamps=[]
        a.sel = opts['sel'].split(',') if 'sel' in opts else ['ch0_landed','1a_end','1b_end','q_ready','poll_done','own_done','att_end','wo_ready','frags_pre','opoll_done','p3_mfma_end','drained']
    prologue(a,opts)
    g0=dma_chunk_groups(0,0)
    for g in g0[:4]: a.emit(g)
    setupA(a,opts)
    setupB0(a,opts)
    for g in g0[4:]: a.emit(g)
    if opts.get('xtouch',1):
        L=vLane
        a.i(f"v_mul_u32_u24 v2, 7282, {L}"); a.i("v_lshrrev_b32 v2, 16, v2")
        a.i(f"v_mul_u32_u24 v3, 9, v2"); a.i(f"v_sub_u32 v3, {L}, v3"); a.i("v_min_u32 v2, 3, v2")
        a.i(f"s_lshl_b32 s5, {sC}, 7"); a.i(f"s_lshl_b32 s6, {sG}, 4"); a.i("s_add_u32 s5, s5, s6"); a.i(f"s_lshl_b32 s6, {sWV}, 2"); a.i("s_add_u32 s5, s5, s6")
        a.i(f"v_add_u32 v2, s5, v2"); a.i(f"v_mul_u32_u24 v2, {XROW}, v2"); a.i(f"v_lshl_add_u32 v2, v3, 7, v2")
        a.i("s_mov_b32 s6, -1"); a.i("s_mov_b32 s7, 15")
        a.emit(["s_mov_b64 exec, s[6:7]", (f"buffer_load_dword v255, v2, {sX}, 0 offen",'touch'), "s_mov_b64 exec, -1"])
    a.stamp('p_ch0')
    for g in dma_chunk_groups(1,1): a.emit(g)
    a.stamp('p_ch1')
    rec=Rec(); setupB(rec,opts)
    opts['_side']=rec.l
    pend=dma_chunk_groups(2,2)
    pend=phase1a(a,opts,pend)
    phase1b(a,pend,opts)
    attention(a,opts)
    phase3(a,opts)
    a.stamp('drained'); a.stamp('rt_exit',real=True)
    a.dump_stamps(0)
    a.label("L_end"); a.i("s_endpgm")
    errs=a.check()
    if opts.get('stamps'): print("stamps:",len(a.stamps),[x[0] for x in a.stamps])
    k1=f"{NAME}_kernel"
    txt=HEADER+f"; @launch grid=(256,1,1) block=(256,1,1) lds={LDS_BYTES}\n"
    txt+='.amdgcn_target "amdgcn-amd-amdhsa--gfx950"\n.text\n'
    txt+=f".globl {k1}\n.p2align 8\n.type {k1},@function\n{k1}:\n"+a.text()+kd(k1,512,256)
    return txt
if __name__=="__main__":
    out=sys.argv[1]
    opts={}
    for x in sys.argv[2:]:
        k,_,v=x.partition('='); opts[k]=int(v) if v.lstrip('-').isdigit() else (v or True)
    open(out,'w').write(build(opts)); print("written",out)
```

```python
import sys, os, struct
sys.path.insert(0, os.path.dirname(os.path.abspath(__file__)))
from asm import *
NAME = "concat_heads__sliding_block__sliding_block__prompt"
XROW=1152; WROW=3456; OUTROW=2304
X_BYTES=2048*1152; W_BYTES=576*3456; WO_BYTES=576*1152; OUT_BYTES=2048*2304
SLOT=36864; WPITCH=320; XOFF=20480; QPITCH=192; QCH=12288
VBASE=0; KB3=18432; KB0=147456; KP=148; KBLK=32*148; QBASE=110592
LDS_BYTES=163840
WS_KV=0; WS_OM=0x1000000; WS_OL=0x1400000; WS_FKV=0x1800000; WS_FO=0x1840000; WS_FOL=0x1880000
WS_XT=0x18C0000
WS_DBG=0x2000000; WS_BYTES=0x4000000
CSCALE = 1.4426950408889634/(18**0.5)
def f2u(x): return struct.unpack('<I',struct.pack('<f',x))[0]
def rng(p,a,n): return f'{p}[{a}:{a+n-1}]'

sX='s[8:11]'; sW='s[12:15]'; sWO='s[16:19]'; sOUT='s[20:23]'; sWS='s[24:27]'; sDBG='s[28:31]'
sB='s32'; sC='s33'; sG='s34'; sWV='s35'
sVM='s[54:55]'; sLO='s[56:57]'
sCI='s58'; sWoff='s59'; sXoff='s60'; sM0='s61'; sKVme='s62'
sT0='s63'; sT1='s64'; sT2='s65'; sFKV='s66'; sT3='s67'
sNONl='s68'; sNONh='s69'; sROT='s70'; sKV1='s71'; sKV2='s72'; sXCC='s73'
sBAD='s[74:75]'; sNVM='s[52:53]'; sCNT='s76'; sOM='s77'; sOL='s78'; sFO='s79'; sSC='s80'; sATT='s81'
sLFH='s70'; sLOC='s81'
sRH='s82'; sNQ='s83'; sPOM='s84'; sPOL='s85'; sOUTB='s86'; sWOs='s87'
sIDX='s76'; sOFF='s81'

vLane='v1'
vWoff=[f'v{10+j}' for j in range(5)]
vXoff=[f'v{15+j}' for j in range(4)]
vQoff=['v19','v20','v21']
vWr=['v22','v23']; vMx=['v24','v25']
vXr=[[f'v{26+t}' for t in range(4)],[f'v{30+t}' for t in range(4)]]
vQr='v34'
vKw='v35'; vQw='v36'; vVw='v37'; vVt='v38'
vKr='v39'; vKl='v40'; vVr='v41'; vQrd='v42'; vQl='v43'
vPk='v44'; vPl='v45'; vPv='v46'; vOl='v47'
vNON='v[48:49]'; vVC='v50'; vT='v51'
def WF(b,f): r=52+(b*5+f)*4; return f'v[{r}:{r+3}]'
def WFh(b,f,h): r=52+(b*5+f)*4+2*h; return f'v[{r}:{r+1}]'
def QF(b,f): r=52+(b*3+f)*4; return f'v[{r}:{r+3}]'
def QFh(b,f,h): r=52+(b*3+f)*4+2*h; return f'v[{r}:{r+1}]'
ACC={'K0':92,'K1':108,'V0':124,'V1':140,'MX':156,'Q0':172,'Q1':188,'Q2':204}
def XF(t): return rng('a',4*t,4)
OWN=92; HALO=144
S0=52; S1=68; P0=150; P1=158; OACC=172; MASKD=236; MASKF=244
vWOm=['v10','v11']; vWOl=['v12','v13']; vWOt=['v14','v15']

class G(Asm):
    stamps=None; sel=None; nowait=True
    def stamp(self, name, real=False):
        if self.stamps is None: return
        if self.sel is not None and not (name.startswith('rt_') or name=='entry' or any(name.startswith(x) for x in self.sel)): return
        k=len(self.stamps)
        regs=[88,90,92,94,96,98,100,36,38,40,42,44,46,48,50][k]
        self.stamps.append((name,regs))
        self.i(f"{'s_memrealtime' if real else 's_memtime'} s[{regs}:{regs+1}]")
        if self.nowait and not real and name!='entry':
            self.lg.pop()
        else:
            self.i("s_waitcnt lgkmcnt(0)")
            self.lg_clear()
    def dump_stamps(self, base):
        if self.stamps is None: return
        self.i("s_waitcnt lgkmcnt(0)")
        self.i(f"s_lshl_b32 s3, s2, 2"); self.i(f"s_add_u32 s3, s3, {sWV}")
        self.i(f"s_lshl_b32 s3, s3, 6"); self.i(f"s_add_u32 s3, s3, {WS_DBG+base}")
        self.i("s_mov_b64 exec, 1")
        for k,(nm,r) in enumerate(self.stamps):
            self.i(f"v_mov_b32 v2, s{r}"); self.i(f"v_mov_b32 v3, {4*k}")
            self.i(f"buffer_store_dword v2, v3, {sWS}, s3 offen")
        self.i("s_mov_b64 exec, -1"); self.i("s_waitcnt vmcnt(0)")
    def emit(self, lst):
        for x in lst:
            if isinstance(x,tuple) and x[0]=='OSTORE': emit_ostore(self,x[1])
            elif isinstance(x,tuple): self.i(*x)
            else: self.i(x)
    def drain(self, q, budget):
        k=0; inexec=False
        while q and (k<budget or inexec):
            x=q.pop(0)
            txt=x[0] if isinstance(x,tuple) else x
            if txt.startswith('s_mov_b64 exec'): inexec = not txt.endswith('-1')
            if txt=='OSTORE': emit_ostore(self,x[1])
            elif isinstance(x,tuple): self.i(*x)
            else: self.i(x)
            k+=1

def prologue(a, opts):
    L=vLane
    a.c("---- prologue")
    a.stamp('rt_entry',real=True); a.stamp('entry')
    a.i("s_load_dwordx8 s[36:43], s[0:1], 0")
    a.i("s_load_dwordx8 s[44:51], s[0:1], 32")
    a.i("s_load_dwordx2 s[52:53], s[0:1], 64")
    a.i("s_cmp_ge_u32 s2, 256")
    a.i("s_cbranch_scc1 L_end")
    a.i("s_getpc_b64 s[4:5]")
    a.label("L_pc")
    a.i("v_lshlrev_b32 v2, 7, v0")
    a.raw("    v_min_u32 v2, (L_end-L_pc), v2")
    if not opts.get('nopf'): a.i("global_load_dword v255, v2, s[4:5]", tag='pf')
    a.i(f"v_and_b32 {L}, 63, v0")
    a.i("v_lshrrev_b32 v2, 6, v0")
    a.i("s_and_b32 s3, s2, 7")
    a.i(f"v_readfirstlane_b32 {sWV}, v2")
    a.i(f"s_lshr_b32 {sB}, s3, 2")
    a.i("s_lshr_b32 s4, s2, 3")
    a.i("s_and_b32 s5, s3, 3")
    a.i(f"s_lshl_b32 {sC}, s5, 2")
    a.i("s_lshr_b32 s5, s4, 3")
    a.i(f"s_add_u32 {sC}, {sC}, s5")
    a.i(f"s_and_b32 {sG}, s4, 7")
    a.i("s_lshl_b32 s5, s5, 1")
    a.i(f"s_add_u32 s6, s5, {sG}")
    a.i("s_sub_u32 s7, s6, 9")
    a.i("s_cmp_ge_u32 s6, 9")
    a.i(f"s_cselect_b32 {sROT}, s7, s6")
    if opts.get('order','own')=='own':
        a.i(f"s_add_u32 {sOFF}, s5, {sG}"); a.i(f"s_and_b32 {sOFF}, {sOFF}, 7")
        a.i("s_and_b32 s6, s3, 3"); a.i("s_lshl_b32 s6, s6, 1"); a.i(f"s_and_b32 s7, {sC}, 1"); a.i(f"s_add_u32 {sROT}, s6, s7")
        a.i(f"s_mov_b32 {sIDX}, {sOFF}")
    elif opts.get('order')=='norot': a.i(f"s_mov_b32 {sROT}, 0")
    a.i(f"s_lshl_b32 s6, {sC}, 7"); a.i(f"s_lshl_b32 s7, {sWV}, 5"); a.i("s_add_u32 s6, s6, s7")
    a.i(f"s_mul_i32 s6, s6, {XROW}")
    a.i(f"v_lshrrev_b32 v4, 3, {L}"); a.i(f"v_lshrrev_b32 v5, 4, {L}"); a.i(f"v_and_b32 v6, 7, {L}")
    a.i(f"v_mul_u32_u24 v4, {XROW}, v4")
    a.i(f"v_add_u32 v4, s6, v4")
    for i in range(4):
        a.i(f"v_add_u32 v7, {4*i}, v5"); a.i(f"v_and_b32 v7, 7, v7"); a.i(f"v_xor_b32 v7, v6, v7")
        a.i(f"v_lshl_add_u32 v7, v7, 4, v4")
        a.i(f"v_add_u32 {vXoff[i]}, {8*i*XROW-1024*i}, v7")
    a.i(f"s_mul_i32 s6, {sWV}, {16*WROW}"); a.i(f"s_mul_i32 s7, {sG}, 144"); a.i("s_add_u32 s6, s6, s7")
    a.i(f"s_add_u32 s6, s6, 1152")
    a.i(f"s_movk_i32 s7, {WROW}")
    a.i("v_mov_b32 v9, 0x40000000"); a.i("v_mov_b32 v8, 1008")
    for j in range(5):
        a.i(f"v_add_u32 v4, {64*j}, {L}")
        a.i(f"v_mul_u32_u24 v5, 52429, v4"); a.i(f"v_lshrrev_b32 v5, 20, v5")
        a.i(f"v_mul_u32_u24 v6, 20, v5"); a.i(f"v_sub_u32 v6, v4, v6")
        a.i(f"v_cmp_lt_u32 vcc, 8, v6")
        a.i(f"v_mul_lo_u32 v5, v5, s7")
        a.i(f"v_lshl_add_u32 v5, v6, 4, v5")
        a.i(f"v_cndmask_b32 v7, 0, v8, vcc")
        a.i(f"v_cmp_lt_u32 vcc, 17, v6")
        a.i(f"v_add3_u32 v5, v5, v7, s6")
        comp=1024*j if j<4 else 0
        if comp: a.i(f"v_subrev_u32 v5, {comp}, v5")
        else: a.i("s_nop 0")
        a.i(f"v_cndmask_b32 {vWoff[j]}, v5, v9, vcc")
    a.stamp('p_pre')
    a.wait(lg=0)
    a.stamp('p_karg')
    a.i(f"s_cmp_eq_u32 {sB}, 0")
    a.i("s_cselect_b32 s8, s36, s42");  a.i("s_cselect_b32 s9, s37, s43")
    a.i("s_cselect_b32 s12, s38, s44"); a.i("s_cselect_b32 s13, s39, s45")
    a.i(f"s_mov_b32 s10, {X_BYTES}"); a.i("s_mov_b32 s11, 0x00020000")
    a.i(f"s_mov_b32 s14, {W_BYTES}"); a.i("s_mov_b32 s15, 0x00020000")
    a.i("s_cselect_b32 s16, s40, s46"); a.i("s_cselect_b32 s17, s41, s47")
    a.i(f"s_mov_b32 {sCI}, {sROT}")
    a.i(f"s_mul_i32 {sWoff}, {sCI}, {64*WROW}")
    a.i(f"s_lshl_b32 {sXoff}, {sCI}, 7")

vTA='v[240:241]'
def touch_setup(a, opts):
    L=vLane
    a.i("s_lshr_b32 s4, s2, 3")
    a.i(f"v_cmp_le_u32 vcc, 18, {L}")
    a.i(f"v_mov_b32 v2, {XROW+18*128}")
    a.i(f"v_lshlrev_b32 v3, 7, {L}")
    a.i(f"v_mov_b32 v2, {WROW-18*128}")
    a.i(f"v_cndmask_b32 v2, 0, v2, vcc")
    a.i(f"v_add_u32 v3, v3, v2")
    a.i(f"s_mul_i32 s5, s4, {2*WROW}"); a.i(f"s_add_u32 s5, s5, {9*128}")
    a.i(f"v_add_u32 v3, s5, v3")
    a.i("s_and_b32 s5, s2, 3"); a.i("s_lshl_b32 s5, s5, 9"); a.i("s_lshl_b32 s6, s4, 4"); a.i("s_add_u32 s5, s5, s6")
    a.i(f"v_subrev_u32 v4, 36, {L}"); a.i(f"v_and_b32 v4, 15, v4"); a.i(f"v_add_u32 v4, s5, v4"); a.i(f"v_mul_u32_u24 v4, {XROW}, v4")
    a.i(f"v_cmp_le_u32 vcc, 36, {L}")
    a.i(f"v_mov_b32 v5, s12"); a.i("v_mov_b32 v6, s8"); a.i("v_mov_b32 v7, s13"); a.i("v_mov_b32 v8, s9")
    a.i(f"v_cndmask_b32 v3, v3, v4, vcc")
    a.i(f"v_cndmask_b32 v5, v5, v6, vcc")
    a.i(f"v_cndmask_b32 v7, v7, v8, vcc")
    a.i(f"v_mov_b32 v9, {64*WROW}"); a.i("v_mov_b32 v6, 128")
    a.i(f"v_cndmask_b32 v242, v9, v6, vcc")
    a.i(f"s_add_u32 s5, {sWV}, 1")
    a.i(f"v_mul_lo_u32 v9, v242, s5")
    a.i(f"v_add_u32 v3, v3, v9")
    a.i(f"v_add_co_u32 v240, vcc, v5, v3"); a.i("s_nop 1"); a.i(f"v_addc_co_u32 v241, vcc, 0, v7, vcc")
    a.i(f"v_lshlrev_b32 v242, 2, v242")
def touch_ins(second):
    L=[]
    if second:
        L+= ["v_add_co_u32 v240, vcc, v240, v242", "s_nop 1", "v_addc_co_u32 v241, vcc, 0, v241, vcc"]
    L+= ["s_mov_b64 exec, 0x000fffffffffffff" if False else "s_mov_b64 exec, s[6:7]", (f"global_load_dword v255, {vTA}, off",'touch'), "s_mov_b64 exec, -1"]
    return L
def touch_q(a):
    L=vLane
    a.i("s_lshr_b32 s4, s2, 3")
    a.i(f"v_mul_u32_u24 v2, 7282, {L}"); a.i("v_lshrrev_b32 v2, 16, v2")
    a.i(f"v_mul_u32_u24 v3, 9, v2"); a.i(f"v_sub_u32 v3, {L}, v3")
    a.i(f"v_min_u32 v2, 5, v2")
    a.i(f"s_min_u32 s5, {sWV}, 2"); a.i("s_mul_i32 s5, s5, 6"); a.i("s_mul_i32 s6, s4, 18"); a.i("s_add_u32 s5, s5, s6")
    a.i(f"v_add_u32 v2, s5, v2"); a.i(f"v_mul_u32_u24 v2, {WROW}, v2"); a.i(f"v_lshl_add_u32 v2, v3, 7, v2")
    a.i(f"buffer_load_dword v255, v2, {sW}, 0 offen", 'touch')
def touch_wo(a):
    L=vLane
    a.i(f"s_lshr_b32 {sT0}, s2, 3")
    a.i(f"s_min_u32 {sT1}, {sWV}, 2"); a.i(f"s_mul_i32 {sT1}, {sT1}, 54"); a.i(f"s_mul_i32 {sT0}, {sT0}, 162"); a.i(f"s_add_u32 {sT1}, {sT1}, {sT0}")
    a.i(f"v_min_u32 {vT}, 53, {L}"); a.i(f"v_add_u32 {vT}, {sT1}, {vT}"); a.i(f"v_lshlrev_b32 {vT}, 7, {vT}")
    a.i(f"buffer_load_dword v255, {vT}, {sWO}, 0 offen", 'touch')

ORDER_MODE=['own']
GOPT={}
def next_chunk_ins():
    if ORDER_MODE[0]=='own':
        return [f"s_add_u32 {sCI}, {sROT}, {sIDX}", f"s_add_u32 {sCI}, {sCI}, 1", f"s_sub_u32 {sT3}, {sCI}, 9", f"s_cmp_ge_u32 {sCI}, 9",
                f"s_cselect_b32 {sCI}, {sT3}, {sCI}", f"s_add_u32 {sIDX}, {sIDX}, 1", f"s_and_b32 {sIDX}, {sIDX}, 7",
                f"s_mul_i32 {sWoff}, {sCI}, {64*WROW}", f"s_lshl_b32 {sXoff}, {sCI}, 7"]
    return [f"s_add_u32 {sCI}, {sCI}, 1", f"s_cmp_eq_u32 {sCI}, 9", f"s_cselect_b32 {sCI}, 0, {sCI}",
            f"s_mul_i32 {sWoff}, {sCI}, {64*WROW}", f"s_lshl_b32 {sXoff}, {sCI}, 7"]

def dma_chunk_groups(slot, n):
    base=slot*SLOT; tag=f'ch{n}'; Gs=[]
    for i in range(4):
        pre=[f"s_lshl_b32 {sM0}, {sWV}, 12", f"s_add_u32 m0, {sM0}, {base+XOFF}", "s_nop 0"] if i==0 else []
        Gs.append(pre+[(f"buffer_load_dwordx4 {vXoff[i]}, {sX}, {sXoff} offen offset:{1024*i} lds", tag)])
    for j in range(4):
        pre=[f"s_mul_i32 {sM0}, {sWV}, 5120", f"s_add_u32 m0, {sM0}, {base}", "s_nop 0"] if j==0 else []
        Gs.append(pre+[(f"buffer_load_dwordx4 {vWoff[j]}, {sW}, {sWoff} offen offset:{1024*j} lds", tag)])
    Gs.append([f"s_add_u32 m0, {sM0}, {base+4096}", "s_nop 0", (f"buffer_load_dwordx4 {vWoff[4]}, {sW}, {sWoff} offen lds", tag)]+next_chunk_ins())
    return Gs

def dma_wq_groups(n):
    reg = SLOT*(1+n//3) + (n%3)*QCH
    Gs=[]
    for e in range(3):
        pre=[f"s_mul_i32 {sM0}, {sWV}, 3072", f"s_add_u32 m0, {sM0}, {reg}", "s_nop 0"] if e==0 else []
        post=next_chunk_ins() if e==2 else []
        Gs.append(pre+[(f"buffer_load_dwordx4 {vQoff[e]}, {sW}, {sWoff} offen offset:{1024*e} lds", f'wq{n}')]+post)
    return Gs

def setupA(a, opts):
    L=vLane
    a.c("---- setup A")
    a.i(f"v_bfe_u32 v4, {L}, 2, 2"); a.i(f"v_lshrrev_b32 v5, 5, {L}")
    a.i(f"v_lshl_add_u32 v4, v5, 3, v4")
    a.i(f"v_bfe_u32 v6, {L}, 4, 1"); a.i(f"v_and_b32 v7, 3, {L}")
    a.i(f"v_mul_u32_u24 v8, {WPITCH}, v4")
    a.i(f"v_lshlrev_b32 v9, 5, v6"); a.i(f"v_lshl_add_u32 v9, v7, 3, v9")
    a.i(f"v_add_u32 {vWr[0]}, v8, v9"); a.i(f"v_add_u32 {vWr[1]}, {2*SLOT}, {vWr[0]}")
    a.i(f"v_mul_u32_u24 v2, {QPITCH}, v4")
    a.i(f"v_add3_u32 {vQr}, v2, v9, 0"); a.i(f"v_add_u32 {vQr}, {SLOT}, {vQr}")
    a.i(f"v_lshl_add_u32 v9, v6, 2, v7")
    a.i(f"v_lshlrev_b32 v2, 3, v9"); a.i(f"v_add_u32 v2, 128, v2"); a.i(f"v_add_u32 v3, 128, v2")
    a.i(f"v_cmp_lt_u32 vcc, 1, v9"); a.i("s_nop 1")
    a.i(f"v_cndmask_b32 v2, v2, v3, vcc")
    a.i(f"v_add_u32 {vMx[0]}, v8, v2"); a.i(f"v_add_u32 {vMx[1]}, {2*SLOT}, {vMx[0]}")
    a.i(f"v_and_b32 v2, 31, {L}"); a.i(f"v_bfe_u32 v3, {L}, 1, 3"); a.i(f"v_xor_b32 v3, v3, v5")
    a.i(f"v_lshlrev_b32 v3, 4, v3"); a.i(f"v_lshl_add_u32 v3, v2, 7, v3")
    a.i(f"s_lshl_b32 s6, {sWV}, 12"); a.i(f"s_add_u32 s6, s6, {XOFF}")
    a.i(f"v_add_u32 v3, s6, v3")
    for t in range(4):
        a.i(f"v_xor_b32 {vXr[0][t]}, {32*t}, v3"); a.i(f"v_add_u32 {vXr[1][t]}, {2*SLOT}, {vXr[0][t]}")

class Rec:
    def __init__(self): self.l=[]
    def i(self, t, tag=None, cond=False): self.l.append((t,tag,cond) if tag or cond else t)
    def c(self, s): pass

def setupB0(a, opts):
    a.i("s_mov_b32 s20, s48"); a.i("s_mov_b32 s21, s49"); a.i(f"s_mov_b32 s22, {OUT_BYTES}"); a.i("s_mov_b32 s23, 0x00020000")
    a.i("s_mov_b32 s24, s52"); a.i("s_mov_b32 s25, s53"); a.i(f"s_mov_b32 s26, {WS_BYTES}"); a.i("s_mov_b32 s27, 0x00020000")
    a.i("s_mov_b32 s28, s50"); a.i("s_mov_b32 s29, s51"); a.i("s_mov_b32 s30, 256"); a.i("s_mov_b32 s31, 0x00020000")
    a.i(f"s_mov_b32 s18, {WO_BYTES}"); a.i("s_mov_b32 s19, 0x00020000")
    a.i(f"s_or_b32 s3, s2, {sWV}"); a.i("s_cmp_lg_u32 s3, 0"); a.i("s_cbranch_scc1 L_nononce")
    a.i("s_memrealtime s[4:5]"); a.i("s_waitcnt lgkmcnt(0)"); a.i("s_or_b32 s4, s4, 1")
    a.i("v_mov_b32 v2, s4"); a.i("v_mov_b32 v3, s5"); a.i("v_mov_b32 v4, 0")
    a.i("s_mov_b64 exec, 1")
    a.i(f"buffer_store_dwordx2 v[2:3], v4, {sDBG}, 0 offen sc1", cond=True)
    a.i("s_mov_b64 exec, -1")
    a.label("L_nononce"); a.lg_clear()

def setupB(a, opts):
    L=vLane
    a.c("---- setup B")
    a.i("s_mov_b32 s54, 0x3ffff"); a.i("s_mov_b32 s55, 0x3ffff"); a.i("s_not_b64 s[52:53], s[54:55]"); a.i("s_mov_b32 s56, -1"); a.i("s_mov_b32 s57, 0")
    a.i(f"s_mov_b32 {sSC}, {f2u(CSCALE):#x}")
    a.i(f"s_getreg_b32 {sXCC}, hwreg(HW_REG_XCC_ID, 0, 4)")
    a.i(f"s_mul_i32 s6, {sWV}, {16*WROW}"); a.i(f"s_mul_i32 s7, {sG}, 144"); a.i("s_add_u32 s6, s6, s7")
    a.i(f"s_movk_i32 s7, {WROW}"); a.i("v_mov_b32 v9, 0x40000000")
    for e in range(3):
        a.i(f"v_add_u32 v4, {64*e}, {L}")
        a.i(f"v_mul_u32_u24 v5, 21846, v4"); a.i(f"v_lshrrev_b32 v5, 18, v5")
        a.i(f"v_mul_u32_u24 v6, 12, v5"); a.i(f"v_sub_u32 v6, v4, v6")
        a.i(f"v_cmp_lt_u32 vcc, 8, v6")
        a.i(f"v_mul_lo_u32 v5, v5, s7"); a.i(f"v_lshl_add_u32 v5, v6, 4, v5")
        a.i(f"v_add_u32 v5, s6, v5"); a.i(f"v_subrev_u32 v5, {1024*e}, v5")
        a.i(f"v_cndmask_b32 {vQoff[e]}, v5, v9, vcc")
    a.i(f"v_and_b32 v2, 31, {L}"); a.i(f"v_lshrrev_b32 v5, 5, {L}")
    a.i(f"s_mul_i32 s6, {sWV}, {KBLK}"); a.i(f"s_add_u32 s7, s6, {KB0}"); a.i(f"s_cmp_eq_u32 {sWV}, 3"); a.i(f"s_cselect_b32 s7, {KB3}, s7")
    a.i(f"v_mul_u32_u24 v3, {KP}, v2"); a.i(f"v_lshl_add_u32 v3, v5, 3, v3")
    a.i(f"v_add_u32 {vKw}, s7, v3"); a.i(f"s_add_u32 s6, s6, {QBASE}"); a.i(f"v_add_u32 {vQw}, s6, v3")
    a.i(f"s_mul_i32 s6, {sWV}, 4608"); a.i(f"s_add_u32 s6, s6, {VBASE}")
    a.i(f"v_mul_u32_u24 v3, 1152, v5"); a.i(f"v_lshl_add_u32 v3, v2, 4, v3"); a.i(f"v_add_u32 {vVw}, s6, v3")
    a.i(f"v_lshrrev_b32 v3, 4, v2"); a.i(f"v_mul_u32_u24 v3, 2304, v3"); a.i(f"v_bfe_u32 v4, v2, 2, 1")
    a.i(f"v_mul_u32_u24 v4, 1152, v4"); a.i(f"v_add_u32 v3, v3, v4"); a.i(f"v_and_b32 v4, 3, v2")
    a.i(f"v_bfe_u32 v6, v2, 3, 1"); a.i(f"v_lshl_add_u32 v4, v6, 2, v4"); a.i(f"v_lshl_add_u32 v3, v4, 1, v3")
    a.i(f"v_lshl_add_u32 v3, v5, 6, v3"); a.i(f"v_add_u32 v3, {64*16}, v3"); a.i(f"v_add_u32 {vVt}, s6, v3")
    a.i(f"s_mul_i32 s6, {sWV}, 36"); a.i(f"v_mul_u32_u24 v3, {KP}, v2"); a.i(f"v_add_u32 v3, s6, v3")
    a.i(f"v_lshl_add_u32 {vKr}, v5, 4, v3")
    a.i(f"v_add_u32 {vKl}, 32, v3")
    a.i(f"s_mul_i32 s6, {sWV}, {18*16}"); a.i(f"s_add_u32 s6, s6, {VBASE}")
    a.i(f"v_mul_u32_u24 v3, 1152, v5"); a.i(f"v_lshl_add_u32 v3, v2, 4, v3"); a.i(f"v_add_u32 {vVr}, s6, v3")
    a.i(f"v_lshlrev_b32 {vPk}, 4, {L}"); a.i(f"v_lshlrev_b32 {vPl}, 2, v2"); a.i(f"v_add_u32 {vPl}, 1024, {vPl}")
    a.i(f"v_mul_u32_u24 v3, 288, v5"); a.i(f"v_lshl_add_u32 v3, v2, 4, v3"); a.i(f"v_add_u32 {vPv}, 1152, v3")
    a.i(f"s_lshl_b32 s6, {sWV}, 2"); a.i(f"v_lshlrev_b32 v3, 4, v2"); a.i(f"v_add_u32 {vOl}, s6, v3")
    a.i(f"v_and_b32 v3, 27, v2"); a.i(f"v_cmp_eq_u32 vcc, 18, v3"); a.i(f"v_mov_b32 v4, 0x3f803f80"); a.i("s_nop 0")
    a.i(f"v_cndmask_b32 {vVC}, 0, v4, vcc")
    a.i(f"s_lshl_b32 s6, {sB}, 3"); a.i(f"s_add_u32 s6, s6, {sG}"); a.i(f"s_lshl_b32 s6, s6, 4"); a.i(f"s_add_u32 s6, s6, {sC}")
    a.i(f"s_mul_i32 {sKVme}, s6, {SLOT}"); a.i(f"s_mul_i32 s7, {sWV}, 2304"); a.i(f"s_add_u32 {sKVme}, {sKVme}, s7")
    a.i(f"s_sub_u32 {sKV1}, {sKVme}, {SLOT}"); a.i(f"s_sub_u32 {sKV2}, {sKVme}, {2*SLOT}")
    a.i(f"s_cmp_ge_u32 {sC}, 1"); a.i(f"s_cselect_b32 {sKV1}, {sKV1}, 0x70000000")
    a.i(f"s_cmp_ge_u32 {sC}, 2"); a.i(f"s_cselect_b32 {sKV2}, {sKV2}, 0x70000000")
    a.i(f"s_lshl_b32 s6, s6, 2"); a.i(f"s_add_u32 s6, s6, {sWV}"); a.i(f"s_lshl_b32 s6, s6, 7")
    a.i(f"s_add_u32 {sFKV}, s6, {WS_FKV}")
    a.i(f"s_cmp_ge_u32 {sC}, 1"); a.i(f"s_cselect_b32 s6, -1, 0"); a.i(f"s_cmp_ge_u32 {sC}, 2"); a.i(f"s_cselect_b32 s7, -1, 0")
    a.i(f"v_and_b32 v2, s6, {vVC}"); a.i(f"v_and_b32 v3, s7, {vVC}"); a.i(f"v_mov_b32 v4, 0x3f803f80")
    for hb in range(8):
        base=HALO+14*hb
        a.i(f"v_accvgpr_write_b32 a{base+5}, v4")
        for r in range(8): a.i(f"v_accvgpr_write_b32 a{base+6+r}, {'v3' if hb<4 else 'v2'}")
    a.i(f"v_and_b32 v2, 31, {L}"); a.i(f"v_lshlrev_b32 v3, 2, v5"); a.i(f"v_sub_u32 v2, v2, v3")
    a.i(f"v_mov_b32 v6, 0xffff"); a.i(f"v_mov_b32 v7, 0xffff0000")
    for u in range(8):
        r0=2*u; k0=(r0&3)+8*(r0>>2)
        a.i(f"v_cmp_le_i32 vcc, {k0}, v2"); a.i(f"v_cmp_le_i32 s[4:5], {k0+1}, v2"); a.i("s_nop 0")
        a.i(f"v_cndmask_b32 v3, 0, v6, vcc"); a.i(f"v_cndmask_b32 v4, 0, v7, s[4:5]")
        a.i(f"v_or_b32 v{MASKD+u}, v3, v4"); a.i(f"v_not_b32 v{MASKF+u}, v{MASKD+u}")
    a.i(f"s_lshl_b32 s6, {sB}, 6"); a.i(f"s_lshl_b32 s7, {sC}, 2"); a.i("s_add_u32 s6, s6, s7")
    a.i(f"s_lshl_b32 s7, s6, 5"); a.i(f"s_lshl_b32 s3, {sG}, 2"); a.i(f"s_add_u32 s7, s7, s3"); a.i(f"s_add_u32 s7, s7, {sWV}")
    a.i(f"s_lshl_b32 s7, s7, 10"); a.i(f"s_add_u32 {sOM}, s7, {WS_OM}")
    a.i(f"s_lshl_b32 s7, s6, 3"); a.i(f"s_add_u32 s7, s7, {sG}"); a.i(f"s_lshl_b32 s7, s7, 9"); a.i(f"s_add_u32 {sOL}, s7, {WS_OL}")
    a.i(f"s_lshr_b32 {sRH}, {sG}, 2"); a.i(f"s_and_b32 {sNQ}, {sG}, 3")
    a.i(f"s_lshl_b32 s7, {sRH}, 1"); a.i("s_add_u32 s3, s6, s7"); a.i(f"s_lshr_b32 s7, {sWV}, 1"); a.i("s_add_u32 s3, s3, s7")
    a.i(f"s_lshl_b32 {sPOM}, s3, 15"); a.i(f"s_add_u32 {sPOM}, {sPOM}, {WS_OM}")
    a.i(f"s_lshl_b32 {sPOL}, s3, 12"); a.i(f"s_add_u32 {sPOL}, {sPOL}, {WS_OL}")
    a.i(f"s_lshl_b32 s6, {sC}, 7"); a.i(f"s_lshl_b32 s7, {sRH}, 6"); a.i("s_add_u32 s6, s6, s7")
    a.i(f"s_lshl_b32 s7, {sWV}, 4"); a.i("s_add_u32 s6, s6, s7"); a.i(f"s_mul_i32 {sOUTB}, s6, {OUTROW}")
    a.i(f"s_mul_i32 s7, {sB}, 1152"); a.i(f"s_add_u32 {sOUTB}, {sOUTB}, s7")
    a.i(f"s_mul_i32 s7, {sNQ}, 288"); a.i(f"s_add_u32 {sOUTB}, {sOUTB}, s7")
    a.i(f"s_lshl_b32 s6, {sB}, 4"); a.i(f"s_add_u32 s6, s6, {sC}"); a.i(f"s_lshl_b32 {sFO}, s6, 12")
    a.i(f"s_add_u32 {sFO}, {sFO}, {WS_FO}")
    a.i(f"v_mov_b32 v252, {f2u(2.0**-40):#x}"); a.i(f"v_mov_b32 v253, {f2u(2.0**40):#x}")
    a.i(f"s_mov_b64 {sBAD}, 0")

def wq_reads(tau):
    n,t=divmod(tau,4); b=tau%2
    off=(n%3)*QCH+16*QPITCH*t
    return [[(f"ds_read_b64_tr_b16 {QFh(b,f,h)}, {vQr} offset:{off+4*QPITCH*h+64*f}", f'q{tau}_{f}') for h in range(2)] for f in range(3)]

def drain_side(a, side, n):
    k=0; last=''
    while side and (k<n or last.startswith('s_cmp') or (side[0] if isinstance(side[0],str) else side[0][0]).startswith('s_cselect')):
        x=side.pop(0)
        if isinstance(x,tuple): a.i(*x); last=x[0]
        else: a.i(x); last=x
        k+=1

def phase1a(a, opts, pend):
    a.c("---- phase 1a")
    def reads(tau):
        n,t=divmod(tau,4); slot=n%4; hi=slot>=2; base=(slot%2)*SLOT; b=tau%2
        R=[[(f"ds_read_b128 {XF(tau)}, {vXr[hi][t]} offset:{base}", f'x{tau}')] +
           [(f"ds_read_b64_tr_b16 {WFh(b,0,h)}, {vWr[hi]} offset:{base+5120*t+1280*h}", f'w{tau}_0') for h in range(2)]]
        for f,co in ((1,64),(2,144),(3,208)):
            R.append([(f"ds_read_b64_tr_b16 {WFh(b,f,h)}, {vWr[hi]} offset:{base+5120*t+1280*h+co}", f'w{tau}_{f}') for h in range(2)])
        R.append([(f"ds_read_b64_tr_b16 {WFh(b,4,h)}, {vMx[hi]} offset:{base+5120*t+1280*h}", f'w{tau}_4') for h in range(2)])
        return R
    a.stamp('setup_done')
    a.wait(vm='ch0'); a.i("s_barrier")
    a.stamp('ch0_landed')
    for grp in reads(0): a.emit(grp)
    names=['K0','K1','V0','V1','MX']
    side=opts.get('_side',[])
    every=opts.get('dma_every',2)
    slotcnt=0
    for tau in range(36):
        n,t=divmod(tau,4); b=tau%2
        if t==0: a.stamp(f'c{n}')
        if t==3:
            a.wait(vm=f'ch{n+1}' if n<8 else 'wq0')
            a.i("s_barrier")
            if n<=5:
                pend += dma_chunk_groups((n+3)%4, n+3)
                if n==5 and opts.get('wotouch',1):
                    rec=Rec(); touch_wo(rec); pend.append(rec.l)
            elif n==6:
                pend.append([f"s_mov_b32 {sCI}, {sROT}", f"s_mul_i32 {sWoff}, {sCI}, {64*WROW}", f"s_mov_b32 {sIDX}, {sOFF}"])
                for q in range(3): pend += dma_wq_groups(q)
            elif n==7:
                for q in range(3,6): pend += dma_wq_groups(q)
            elif n==8:
                for q in range(6,9): pend += dma_wq_groups(q)
        R = reads(tau+1) if tau<35 else wq_reads(0)
        for m,nm in enumerate(names):
            a.wait(lg=[f'w{tau}_{m}']+([f'x{tau}'] if m==0 else []))
            acc=rng('v',ACC[nm],16); c='0' if tau==0 else acc
            if nm in ('V0','V1'): a.i(f"v_mfma_f32_32x32x16_bf16 {acc}, {XF(tau)}, {WF(b,m)}, {c}")
            else: a.i(f"v_mfma_f32_32x32x16_bf16 {acc}, {WF(b,m)}, {XF(tau)}, {c}")
            if m<len(R): a.emit(R[m])
            slotcnt+=1
            if pend and slotcnt%every==0: a.emit(pend.pop(0))
            elif side: drain_side(a, side, 4)
        if tau==30:
            a.i(f"v_mov_b32 {vT}, 0")
            a.i(f"buffer_load_dwordx2 {vNON}, {vT}, {sDBG}, 0 offen sc1", tag='nonce')
    assert not side, len(side)
    return pend

def epi1a_list():
    A=[]; T=76
    for ti,nm in enumerate(('K0','K1')):
        base=ACC[nm]
        for i in range(4):
            t0=T+2*(i%2)
            A+= [f"v_cvt_pk_bf16_f32 v{t0}, v{base+4*i}, v{base+4*i+1}", f"v_cvt_pk_bf16_f32 v{t0+1}, v{base+4*i+2}, v{base+4*i+3}",
                 (f"ds_write2_b32 {vKw}, v{t0}, v{t0+1} offset0:{16*ti+4*i} offset1:{16*ti+4*i+1}",'e1w')]
    for ti,nm in enumerate(('V0','V1')):
        base=ACC[nm]
        for j in range(2):
            t0=T+4+4*j
            for u in range(4): A.append(f"v_cvt_pk_bf16_f32 v{t0+u}, v{base+8*j+2*u}, v{base+8*j+2*u+1}")
            A.append((f"ds_write_b128 {vVw}, v[{t0}:{t0+3}] offset:{2304*j+512*ti}",'e1w'))
    base=ACC['MX']; t0=T+12
    A+= [f"v_cvt_pk_bf16_f32 v{t0}, v{base}, v{base+1}", f"v_cvt_pk_bf16_f32 v{t0+1}, v{base+2}, v{base+3}",
         (f"ds_write2_b32 {vKw}, v{t0}, v{t0+1} offset0:32 offset1:33",'e1w'),
         f"v_cvt_pk_bf16_f32 v{t0+2}, v{base+4}, v{base+5}", f"v_cvt_pk_bf16_f32 v{t0+3}, v{base+6}, v{base+7}",
         (f"ds_write_b16 {vVt}, v{t0+2}",'e1w'), (f"ds_write_b16_d16_hi {vVt}, v{t0+2} offset:16",'e1w'),
         (f"ds_write_b16 {vVt}, v{t0+3} offset:32",'e1w'), (f"ds_write_b16_d16_hi {vVt}, v{t0+3} offset:48",'e1w')]
    return A

def own_presets():
    L=[f"v_mov_b32 v91, 0x3f803f80"]
    for bt in range(4):
        base=OWN+14*bt
        L.append(f"v_mov_b32 v{base+5}, v91")
        for hf in range(2):
            L.append(f"s_mov_b64 exec, {sNVM}")
            for r in range(4*hf,4*hf+4): L.append(f"v_mov_b32 v{base+6+r}, {vVC}")
            L.append("s_mov_b64 exec, -1")
    return L
def own_reads():
    L=[]
    for bt in range(4):
        base=OWN+14*bt
        kb = KB0+KBLK*bt if bt<3 else KB3
        L.append(f"v_add_u32 v88, {kb}, {vKr}"); L.append(f"v_add_u32 v89, {kb}, {vKl}")
        L.append((f"ds_read2_b32 v[{base}:{base+1}], v88 offset0:0 offset1:1",'own'))
        L.append((f"ds_read2_b32 v[{base+2}:{base+3}], v88 offset0:2 offset1:3",'own'))
        L.append((f"ds_read_b32 v{base+4}, v89",'own'))
    L.append(f"s_mov_b64 exec, {sVM}")
    for bt in range(4):
        base=OWN+14*bt
        for j in range(2): L.append((f"ds_read_b128 v[{base+6+4*j}:{base+9+4*j}], {vVr} offset:{4608*bt+2304*j}",'own'))
    L.append(f"s_mov_b64 exec, -1")
    return L
def own_store_groups(mod='sc1'):
    Gs=[]
    for bt in range(4):
        base=OWN+14*bt; tag='pubA' if bt<2 else 'pubB'
        Gs.append([f"s_add_u32 {sT0}, {sKVme}, {9216*bt}", (f"buffer_store_dwordx4 v[{base}:{base+3}], {vPk}, {sWS}, {sT0} offen {mod}",tag)])
        Gs.append([f"s_add_u32 {sT0}, {sKVme}, {9216*bt}", f"s_mov_b64 exec, {sLO}", (f"buffer_store_dword v{base+4}, {vPl}, {sWS}, {sT0} offen {mod}",tag), "s_mov_b64 exec, -1"])
        for j in range(2):
            Gs.append([f"s_add_u32 {sT0}, {sKVme}, {9216*bt}", f"s_mov_b64 exec, {sVM}", (f"buffer_store_dwordx4 v[{base+6+4*j}:{base+9+4*j}], {vPv}, {sWS}, {sT0} offen offset:{576*j} {mod}",tag), "s_mov_b64 exec, -1"])
    return Gs

def flag_store_ins(cnt):
    return [f"s_add_u32 {sT1}, {sNONh}, {cnt}", f"v_mov_b32 v2, {sNONl}", f"v_mov_b32 v3, {sT1}", f"v_mov_b32 v4, 0",
            "s_mov_b64 exec, 1", (f"buffer_store_dwordx2 v[2:3], v4, {sWS}, {sFKV} offen sc1", f'kvflag{cnt}'), "s_mov_b64 exec, -1"]

def xt_base():
    return [f"s_lshl_b32 {sT0}, {sB}, 4", f"s_add_u32 {sT0}, {sT0}, {sC}", f"s_lshl_b32 {sT0}, {sT0}, 10", f"s_add_u32 {sT0}, {sT0}, {WS_XT}"]
def xt_store():
    return xt_base()+[f"s_add_u32 {sLFH}, {sXCC}, 1", f"s_lshl_b32 {sLFH}, {sLFH}, 8", f"s_add_u32 {sLFH}, {sLFH}, {sNONh}",
            f"s_lshl_b32 {sT1}, {sG}, 7", f"s_add_u32 {sT0}, {sT0}, {sT1}",
            f"v_mov_b32 v2, {sNONl}", f"v_mov_b32 v3, {sLFH}", f"v_mov_b32 v4, 0",
            "s_mov_b64 exec, 1", (f"buffer_store_dwordx2 v[2:3], v4, {sWS}, {sT0} offen sc1",'xt'), "s_mov_b64 exec, -1"]
def xt_load():
    return xt_base()+[f"v_lshlrev_b32 v2, 7, {vLane}", "s_mov_b64 exec, 0xff",
            (f"buffer_load_dwordx2 v[8:9], v2, {sWS}, {sT0} offen sc1",'xtl'), "s_mov_b64 exec, -1"]
def xt_check(a):
    a.wait(vm='xtl')
    a.i("s_mov_b64 exec, 0xff")
    a.i(f"v_cmp_eq_u32 vcc, {sNONl}, v8"); a.i(f"v_cmp_eq_u32 s[4:5], {sLFH}, v9")
    a.i("s_mov_b64 exec, -1")
    a.i("s_and_b64 s[4:5], s[4:5], vcc"); a.i("s_and_b32 s4, s4, 0xff"); a.i("s_cmp_eq_u32 s4, 0xff")
    a.i(f"s_cselect_b32 {sLOC}, 1, 0")
    if GOPT.get('force_remote'): a.i(f"s_mov_b32 {sLOC}, 0")

def wo_group_for(kbase):
    setup=[f"s_add_u32 {sT1}, {sWV}, {kbase}", f"s_mul_i32 {sT2}, {sT1}, 41472", f"s_mul_i32 {sT3}, {sT1}, 9216"]
    return wo_dma_groups(0,None,setup)

def phase1b(a, pend, opts):
    a.c("---- phase 1b")
    a.stamp('1a_end')
    q=[]; stores=[]; wo=[]
    E2=opts.get('e2',4)
    FAST=opts.get('fastA',1)
    sched={}
    tt=E2+1
    for g in range(16):
        sched.setdefault(tt,[]).append(g)
        tt += 1 if (g<7 and FAST) else 2
    FLAGA=opts.get('flagA',24)
    rec=Rec(); wo_addr(rec); woaddr=rec.l
    for tau in range(36):
        n,t=divmod(tau,4); b=tau%2
        a.stamp(f'b{tau}_')
        if tau==1:
            a.i("s_barrier"); q+=epi1a_list()
        if tau==E2:
            a.drain(q,1000); a.wait(lg=0); a.i("s_barrier")
            a.emit(own_reads())
        if tau==E2+1:
            a.wait(lg='own')
            a.stamp('pub_start')
            stores=own_store_groups()
            q+=woaddr
        if tau==E2+3:
            a.i("s_barrier")
        if tau==E2+6: wo+=wo_group_for(0); q+=own_presets()
        if tau==15: wo+=wo_group_for(4)
        if tau==27: wo+=wo_group_for(8)
        if tau==FLAGA:
            a.wait(vm='pubA'); get_nonce(a); a.emit(flag_store_ins(2)); a.stamp('flagA')
            a.emit(xt_store())
        if t==3 and tau<35:
            a.wait(vm=f'wq{n+1}')
            a.i("s_barrier")
            if (n+1)%3==0: a.i(f"v_add_u32 {vQr}, {SLOT}, {vQr}")
        R = wq_reads(tau+1) if tau<35 else []
        for m,nm in enumerate(('Q0','Q1','Q2')):
            a.wait(lg=[f'q{tau}_{m}'])
            acc=rng('v',ACC[nm],16); c='0' if tau==0 else acc
            a.i(f"v_mfma_f32_32x32x16_bf16 {acc}, {QF(b,m)}, {XF(tau)}, {c}")
            if m<len(R): a.emit(R[m])
            if m==0 and tau in sched:
                for g in sched[tau]:
                    if opts.get('nopub'):
                        for x in stores[g]:
                            if isinstance(x,tuple): a.vm.append(x[1])
                    else: a.emit(stores[g])
            elif q and tau<E2: a.drain(q,7)
            elif pend: a.emit(pend.pop(0))
            elif q: drain_side2(a,q,4)
            elif opts.get('nowo1b'): pass
            elif wo and m==2: a.emit(wo.pop(0))
            elif wo and m==1 and opts.get('wo2',1): a.emit(wo.pop(0))
    assert not pend and not q, (len(pend),len(q))
    opts['_wo_left']=wo
    a.stamp('1b_end')
    a.emit(kv_flag_load(0))
    a.nop(14)
    T=76
    for ti,nm in enumerate(('Q0','Q1','Q2')):
        base=ACC[nm]; ni=4 if ti<2 else 1
        for r in range(4*ni): a.i(f"v_mul_f32 v{base+r}, {sSC}, v{base+r}")
    for ti,nm in enumerate(('Q0','Q1','Q2')):
        base=ACC[nm]; ni=4 if ti<2 else 1
        for i in range(ni):
            t0=T+2*((ti*4+i)%8)
            a.i(f"v_cvt_pk_bf16_f32 v{t0}, v{base+4*i}, v{base+4*i+1}"); a.i(f"v_cvt_pk_bf16_f32 v{t0+1}, v{base+4*i+2}, v{base+4*i+3}")
            if ti==0 and i==0: a.i("s_barrier")
            a.i(f"ds_write2_b32 {vQw}, v{t0}, v{t0+1} offset0:{16*ti+4*i} offset1:{16*ti+4*i+1}",'e2w')
    a.i(f"v_mov_b32 {vT}, 0")
    for i in range(4):
        for r in range(4,8): a.i(f"v_accvgpr_write_b32 a{8*i+r}, {vT}")
    a.wait(lg=0); a.i("s_barrier")
    for i in range(4):
        a.i(f"v_add_u32 v88, {QBASE+KBLK*i}, {vKr}")
        a.i(f"ds_read2_b32 a[{8*i}:{8*i+1}], v88 offset0:0 offset1:1",'qf')
        a.i(f"ds_read2_b32 a[{8*i+2}:{8*i+3}], v88 offset0:2 offset1:3",'qf')
    a.i(f"s_mov_b64 exec, {sLO}")
    for i in range(4):
        a.i(f"v_add_u32 v89, {QBASE+KBLK*i}, {vKl}")
        a.i(f"ds_read_b32 a{8*i+4}, v89",'qf')
    a.i("s_mov_b64 exec, -1")
    a.wait(lg='qf')
    a.i("s_barrier")
    a.stamp('q_ready')

def drain_side2(a, q, n):
    k=0; inexec=False; last=''
    while q and (k<n or inexec or last.startswith('s_cmp') or (q[0] if isinstance(q[0],str) else q[0][0]).startswith('s_cselect')):
        x=q.pop(0)
        txt=x[0] if isinstance(x,tuple) else x
        if txt.startswith('s_mov_b64 exec'): inexec = not txt.endswith('-1')
        if isinstance(x,tuple): a.i(*x)
        else: a.i(x)
        last=txt; k+=1

vFL='v[6:7]'; vFA='v5'
def kv_flag_load(rnd):
    L=[]
    if rnd==0:
        L+= [f"s_cmp_ge_u32 {sC}, 2", f"s_cselect_b32 {sT1}, 2, 1", f"s_lshl_b32 {sT1}, {sT1}, 9",
             f"s_sub_u32 {sT0}, {sFKV}, 512", f"s_sub_u32 {sT1}, {sFKV}, {sT1}",
             f"s_cmp_eq_u32 {sC}, 0", f"s_cselect_b32 {sT0}, {sFKV}, {sT0}", f"s_cselect_b32 {sT1}, {sFKV}, {sT1}",
             f"v_mov_b32 v8, {sT0}", f"v_mov_b32 v9, {sT1}", f"v_cmp_eq_u32 vcc, 0, {vLane}", "s_nop 1",
             f"v_cndmask_b32 {vFA}, v9, v8, vcc"]
    L+= ["s_mov_b64 exec, 3", (f"buffer_load_dwordx2 {vFL}, {vFA}, {sWS}, 0 offen sc1", f'fl{rnd}'), "s_mov_b64 exec, -1"]
    return L

def kv_flag_check(a, rnd, need):
    a.wait(vm=f'fl{rnd}')
    a.i(f"s_mov_b32 {sCNT}, 200000")
    a.label(f"L_chk{rnd}")
    a.i(f"s_cmp_eq_u32 {sC}, 0"); a.i(f"s_cbranch_scc1 L_ok{rnd}")
    a.i("s_mov_b64 exec, 3")
    a.i(f"v_subrev_u32 v8, {sNONh}, v7")
    a.i(f"v_cmp_eq_u32 vcc, {sNONl}, v6")
    a.i(f"v_cmp_le_u32 s[4:5], {need}, v8")
    a.i(f"v_cmp_ge_u32 s[6:7], 4, v8")
    a.i("s_mov_b64 exec, -1")
    a.i("s_and_b64 s[4:5], s[4:5], vcc"); a.i("s_and_b64 s[4:5], s[4:5], s[6:7]"); a.i("s_and_b32 s4, s4, 3")
    a.i("s_cmp_eq_u32 s4, 3"); a.i(f"s_cbranch_scc1 L_ok{rnd}")
    a.i("s_mov_b64 exec, 3")
    a.i(f"buffer_load_dwordx2 {vFL}, {vFA}, {sWS}, 0 offen sc1", cond=True)
    a.i("s_mov_b64 exec, -1")
    a.i("s_waitcnt vmcnt(0)")
    a.i(f"s_sub_u32 {sCNT}, {sCNT}, 1"); a.i(f"s_cmp_lg_u32 {sCNT}, 0"); a.i(f"s_cbranch_scc1 L_chk{rnd}")
    a.label(f"L_ok{rnd}")
    a.stamp(f'chk{rnd}')

def wo_addr(a):
    L=vLane
    a.i(f"s_mul_i32 s6, {sNQ}, 288")
    a.i(f"v_lshrrev_b32 v4, 4, {L}")
    a.i(f"v_and_b32 v5, 15, {L}")
    for par in range(2):
        a.i(f"v_add_u32 v6, {4*par}, v4"); a.i(f"v_lshlrev_b32 v6, 1, v6"); a.i(f"v_xor_b32 v6, v5, v6")
        a.i(f"v_lshlrev_b32 v6, 4, v6"); a.i(f"v_add_u32 v6, s6, v6")
        a.i(f"v_mul_u32_u24 v7, {XROW}, v4"); a.i(f"v_add_u32 {vWOm[par]}, v6, v7")
        a.i(f"v_lshrrev_b32 v7, 1, v4"); a.i(f"v_mul_u32_u24 v7, 18, v7"); a.i(f"v_and_b32 v8, 1, v4"); a.i(f"v_add_u32 v7, v7, v8")
        a.i(f"v_mul_u32_u24 v7, {XROW}, v7"); a.i(f"v_add_u32 {vWOl[par]}, v6, v7")
    a.i(f"v_lshrrev_b32 v4, 1, {L}")
    a.i(f"v_and_b32 v5, 1, {L}"); a.i(f"v_lshlrev_b32 v5, 4, v5"); a.i(f"v_add_u32 v5, 256, v5"); a.i(f"v_add_u32 v5, s6, v5")
    a.i(f"v_bfe_u32 v6, v4, 2, 2")
    a.i(f"v_and_b32 v7, 3, v4"); a.i(f"v_lshrrev_b32 v8, 4, v4")
    a.i(f"v_lshrrev_b32 v2, 1, v6"); a.i(f"v_mul_u32_u24 v2, 18, v2"); a.i(f"v_add_u32 v2, v2, v7"); a.i(f"v_lshl_add_u32 v2, v8, 3, v2")
    a.i(f"v_and_b32 v3, 1, v6"); a.i(f"v_lshl_add_u32 v2, v3, 2, v2"); a.i(f"v_mul_u32_u24 v2, {XROW}, v2"); a.i(f"v_add_u32 {vWOt[0]}, v2, v5")
    a.i(f"v_lshl_add_u32 v7, v8, 2, v7")
    a.i(f"v_lshrrev_b32 v2, 1, v7"); a.i(f"v_lshl_add_u32 v2, v6, 2, v2"); a.i(f"v_mul_u32_u24 v2, 18, v2")
    a.i(f"v_and_b32 v3, 1, v7"); a.i(f"v_add3_u32 v2, v2, v3, 16"); a.i(f"v_mul_u32_u24 v2, {XROW}, v2"); a.i(f"v_add_u32 {vWOt[1]}, v2, v5")

def wo_dma_groups(kap, slot, uniform_setup):
    Gs=[]
    left = kap>=16
    for e in range(8):
        if left: const=((4*(e&3)+2*(e>>2))*18+16)*XROW
        else: const=(((e&3)>>1)*18+8*(e>>2)+4*(e&1))*XROW
        pre = list(uniform_setup) if e==0 else []
        if e%4==0: pre += [f"s_add_u32 m0, {sT3}, {4096*(e//4)}"]
        voff=(vWOl if left else vWOm)[e&1]
        Gs.append(pre+[f"s_add_u32 {sWOs}, {sT2}, {const-1024*(e%4)}" if const-1024*(e%4)>=0 else f"s_sub_u32 {sWOs}, {sT2}, {1024*(e%4)-const}",
                       (f"buffer_load_dwordx4 {voff}, {sWO}, {sWOs} offen offset:{1024*(e%4)} lds",'wo')])
    Gs.append([f"s_add_u32 m0, {sT3}, 8192", "s_nop 0", (f"buffer_load_dwordx4 {vWOt[1 if left else 0]}, {sWO}, {sT2} offen lds",'wo')])
    return Gs

def wo_prefetch_groups():
    Gs=[]
    for it in range(4):
        setup=[f"s_add_u32 {sT1}, {sWV}, {4*it}", f"s_mul_i32 {sT2}, {sT1}, 41472", f"s_mul_i32 {sT3}, {sT1}, 9216"]
        Gs+=wo_dma_groups(0,None,setup)
    return Gs

def wo_left_groups(L_, ldsbase, regs=None):
    vl0,vl1,vt = regs or (vWOl[0],vWOl[1],vWOt[1])
    g0=L_*16*18*XROW
    setup=[f"s_lshl_b32 {sT1}, {sWV}, 1", f"s_and_b32 {sT1}, {sT1}, 3", f"s_lshl_b32 {sT1}, {sT1}, 2",
           f"s_lshr_b32 {sT2}, {sWV}, 1", f"s_lshl_b32 {sT2}, {sT2}, 1", f"s_add_u32 {sT1}, {sT1}, {sT2}",
           f"s_mul_i32 {sT1}, {sT1}, {18*XROW}", f"s_add_u32 {sT2}, {sT1}, {g0+16*XROW}",
           f"s_lshl_b32 {sT1}, {sWV}, 11", f"s_add_u32 m0, {sT1}, {ldsbase}", "s_nop 0"]
    G0=setup+[(f"buffer_load_dwordx4 {vl0}, {sWO}, {sT2} offen lds",'wo')]
    G1=[f"s_add_u32 {sT2}, {sT2}, {4*18*XROW-1024}", (f"buffer_load_dwordx4 {vl1}, {sWO}, {sT2} offen offset:1024 lds",'wo')]
    G2=[f"s_mov_b32 {sT2}, {g0}", f"s_mov_b32 m0, {ldsbase+8192}", "s_nop 0", (f"buffer_load_dwordx4 {vt}, {sWO}, {sT2} offen lds",'wo')]
    return [G0,G1,G2]

def halo_load_groups(hb):
    base=HALO+14*hb; src=sKV2 if hb<4 else sKV1; bt=hb%4; tg=f'h{hb}'
    return [[f"s_add_u32 {sT0}, {src}, {9216*bt}",
             (f"buffer_load_dwordx4 a[{base}:{base+3}], {vPk}, {sWS}, {sT0} offen sc1", tg),
             (f"buffer_load_dword a{base+4}, {vPl}, {sWS}, {sT0} offen sc1", tg),
             f"s_mov_b64 exec, {sVM}",
             (f"buffer_load_dwordx4 a[{base+6}:{base+9}], {vPv}, {sWS}, {sT0} offen sc1", tg),
             (f"buffer_load_dwordx4 a[{base+10}:{base+13}], {vPv}, {sWS}, {sT0} offen offset:576 sc1", tg),
             "s_mov_b64 exec, -1"]]

def get_nonce(a):
    a.i(f"v_readfirstlane_b32 {sNONl}, v48"); a.i(f"v_readfirstlane_b32 {sNONh}, v49"); a.i("s_nop 1")
    a.i(f"s_or_b32 {sT0}, {sNONl}, {sNONh}"); a.i(f"s_cmp_lg_u32 {sT0}, 0"); a.i("s_cbranch_scc1 L_have_nonce")
    a.i(f"s_mov_b32 {sCNT}, 100000")
    a.label("L_nonce_poll")
    a.i(f"v_mov_b32 {vT}, 0")
    a.i(f"buffer_load_dwordx2 {vNON}, {vT}, {sDBG}, 0 offen sc1", cond=True)
    a.i("s_waitcnt vmcnt(0)")
    a.i(f"v_readfirstlane_b32 {sNONl}, v48"); a.i(f"v_readfirstlane_b32 {sNONh}, v49"); a.i("s_nop 1")
    a.i(f"s_or_b32 {sT0}, {sNONl}, {sNONh}"); a.i(f"s_cmp_lg_u32 {sT0}, 0"); a.i("s_cbranch_scc1 L_have_nonce")
    a.i("s_sleep 2"); a.i(f"s_sub_u32 {sCNT}, {sCNT}, 1"); a.i(f"s_cmp_lg_u32 {sCNT}, 0"); a.i("s_cbranch_scc1 L_nonce_poll")
    a.label("L_have_nonce")

def kv_regs(jb): return ('v', OWN+14*jb) if jb>=0 else ('a', HALO+14*(jb+8))
HORDER=[-4,-3,-8,-7,-2,-1,-6,-5]
def tile_list():
    T=[(i,bt) for i in range(4) for bt in range(i+1)]
    for jb in HORDER:
        for i in range(4):
            if i-jb<=8: T.append((i,jb))
    return T

def norm_block(i):
    O=OACC+16*i; t=84; L=[]
    L.append(f"v_rcp_f32 v{t}, v{O+10}")
    L.append(f"v_cmp_nle_f32 vcc, v252, v{O+10}")
    L.append(f"v_cmp_nge_f32 s[4:5], v253, v{O+10}")
    for r in range(10): L.append(f"v_mul_f32 v{O+r}, v{t}, v{O+r}")
    L.append(f"s_or_b64 {sBAD}, {sBAD}, vcc"); L.append(f"s_or_b64 {sBAD}, {sBAD}, s[4:5]")
    L.append(f"v_add_f32 v{t+2}, abs(v{O}), abs(v{O+1})")
    for r in range(2,10,2):
        L.append(f"v_add3_f32 v{t+2}, abs(v{O+r}), abs(v{O+r+1}), v{t+2}" if False else f"v_fma_f32 v{t+2}, v{O+r}, 0, v{t+2}")
        L.append(f"v_fma_f32 v{t+2}, v{O+r+1}, 0, v{t+2}")
    for u in range(5): L.append(f"v_cvt_pk_bf16_f32 v{O+u}, v{O+2*u}, v{O+2*u+1}")
    L.append(f"v_cmp_class_f32 vcc, v{t+2}, v254")
    L.append(f"s_add_u32 {sT0}, {sOM}, {i*32*1024}"); L.append(f"s_add_u32 {sT1}, {sOL}, {i*8*512}")
    L.append(f"s_or_b64 {sBAD}, {sBAD}, vcc")
    L.append(('OSTORE',i))
    return L

def emit_ostore(a, i):
    O=OACC+16*i
    a.i(f"s_cmp_eq_u32 {sLOC}, 1"); a.i(f"s_cbranch_scc1 L_osl{i}")
    a.i(f"buffer_store_dwordx4 v[{O}:{O+3}], {vPk}, {sWS}, {sT0} offen sc1", 'x', True)
    a.i(f"s_mov_b64 exec, {sLO}")
    a.i(f"buffer_store_dword v{O+4}, {vOl}, {sWS}, {sT1} offen sc1", 'x', True)
    a.i(f"s_mov_b64 exec, -1")
    a.i(f"s_branch L_ose{i}")
    a.label(f"L_osl{i}")
    a.i(f"buffer_store_dwordx4 v[{O}:{O+3}], {vPk}, {sWS}, {sT0} offen", 'ost')
    a.i(f"s_mov_b64 exec, {sLO}")
    a.i(f"buffer_store_dword v{O+4}, {vOl}, {sWS}, {sT1} offen", 'ost')
    a.i(f"s_mov_b64 exec, -1")
    a.label(f"L_ose{i}")

def o_pretouch():
    L=vLane
    return [f"v_lshrrev_b32 v2, 3, {L}", f"v_lshlrev_b32 v2, 15, v2", f"v_and_b32 v3, 7, {L}", f"v_lshl_add_u32 v2, v3, 7, v2",
            f"v_add_u32 v2, {sOM}, v2",
            f"v_bfe_u32 v3, {L}, 2, 2", f"v_lshlrev_b32 v3, 12, v3", f"v_and_b32 v4, 3, {L}", f"v_lshl_add_u32 v3, v4, 7, v3",
            f"v_add_u32 v3, {sOL}, v3",
            f"v_cmp_le_u32 vcc, 32, {L}", f"s_lshl_b32 {sT0}, {sG}, 2", f"s_add_u32 {sT0}, {sT0}, {sWV}", f"v_cndmask_b32 v2, v2, v3, vcc",
            f"s_lshl_b32 {sT0}, {sT0}, 7", f"s_add_u32 {sT0}, {sT0}, {sFO}", f"s_add_u32 {sT0}, {sT0}, {WS_FOL-WS_FO}",
            f"v_cmp_le_u32 vcc, 48, {L}", f"v_mov_b32 v3, {sT0}", "s_nop 0", f"v_cndmask_b32 v2, v2, v3, vcc",
            (f"buffer_load_dword v255, v2, {sWS}, 0 offen",'touch'),
            f"v_mov_b32 v4, 0", "s_mov_b64 exec, 1", (f"buffer_load_dword v255, v4, {sOUT}, {sOUTB} offen",'touch'), "s_mov_b64 exec, -1"]

def attention(a, opts):
    a.c("---- attention")
    T=tile_list(); n=len(T)
    first={}; last={}; firstuse={}
    for k,(i,jb) in enumerate(T):
        first.setdefault(i,k); last[i]=k; firstuse.setdefault(jb,k)
    Sreg=lambda k: (S0 if k%2==0 else S1)
    Preg=lambda k: (P0 if k%2==0 else P1)
    def qk(k):
        i,jb=T[k]; p,base=kv_regs(jb); S=rng('v',Sreg(k),16)
        return [f"v_mfma_f32_32x32x16_bf16 {S}, {rng(p,base,4)}, a[{8*i}:{8*i+3}], 0",
                f"v_mfma_f32_32x32x16_bf16 {S}, {rng(p,base+4,4)}, a[{8*i+4}:{8*i+7}], {S}"]
    def pv(k):
        i,jb=T[k]; p,base=kv_regs(jb); O=rng('v',OACC+16*i,16); P=Preg(k)
        c0='0' if k==first[i] else O
        return [f"v_mfma_f32_32x32x16_bf16 {O}, {rng(p,base+6,4)}, v[{P}:{P+3}], {c0}",
                f"v_mfma_f32_32x32x16_bf16 {O}, {rng(p,base+10,4)}, v[{P+4}:{P+7}], {O}"]
    waited=set()
    wo=list(opts.get('_wo_left',[]))+wo_group_for(12)+wo_left_groups(0,16*9216)
    WO_START=opts.get('wo_start',0)
    CHK0=opts.get('chk0',0); FLAGB=opts.get('flagB',3); FL1=opts.get('fl1',9); CHK1=opts.get('chk1',14)
    WO_PAUSE=opts.get('wo_pause',1)
    a.i(f"v_mov_b32 v254, 0x207")
    q0=qk(0); a.i(q0[0]); a.i(q0[1])
    extra=[]
    for k in range(n+1):
        if k==CHK0:
            kv_flag_check(a,0,2)
            for jb in HORDER[:4]:
                for g in halo_load_groups(jb+8): a.emit(g)
            if not opts.get('nopre'): a.emit(o_pretouch())
        if k==FLAGB:
            a.wait(vm='pubB'); a.emit(flag_store_ins(4))
        if k==FL1: a.emit(kv_flag_load(1))
        if k==opts.get('xtl',24): a.emit(xt_load())
        if k==opts.get('xtc',30): xt_check(a)
        if k==CHK1:
            kv_flag_check(a,1,4)
            for jb in HORDER[4:]:
                for g in halo_load_groups(jb+8): a.emit(g)
        mf=[]
        if k+1<n:
            i,jb=T[k+1]
            if jb<0 and jb not in waited:
                if not waited: a.stamp('own_done')
                waited.add(jb); a.wait(vm=f'h{jb+8}')
                if len(waited)==1: a.stamp('h0_landed')
            mf+=qk(k+1)
        else: mf+=[None,None]
        mf += pv(k-1) if k>=1 else [None,None]
        if k==0: a.nop(12)
        S=Sreg(k); P=Preg(k)
        i,jb=T[k] if k<n else (None,None)
        for seg in range(4):
            pk,ps = (k,seg-1) if seg>0 else (k-1,3)
            if pk>=0 and pk<n:
                Sp=Sreg(pk); Pp=Preg(pk); ip,jp=T[pk]
                for u in (2*ps,2*ps+1): a.i(f"v_cvt_pk_bf16_f32 v{Pp+u}, v{Sp+2*u}, v{Sp+2*u+1}")
                if jp==ip or jp==ip-8:
                    M=MASKD if jp==ip else MASKF
                    for u in (2*ps,2*ps+1): a.i(f"v_and_b32 v{Pp+u}, v{M+u}, v{Pp+u}")
            if k==n and seg==2: a.nop(2)
            if mf[seg]: a.i(mf[seg])
            if k<n:
                for e in range(4): a.i(f"v_exp_f32 v{S+4*seg+e}, v{S+4*seg+e}")
            a.drain(extra, 6 if k<n else 1000)
            paused = WO_PAUSE and ((CHK0<=k<10) or (CHK1<=k<CHK1+9))
            if k>=WO_START and wo and not paused and seg in (0,1,3): a.emit(wo.pop(0))
        if k>=1:
            ib=T[k-1][0]
            if last[ib]==k-1:
                if k==n:
                    a.nop(14); a.emit(norm_block(ib))
                else: extra+=["s_nop 1"]+norm_block(ib)
    assert not extra
    for g in wo: a.emit(g)
    a.stamp('att_end')

OF=16
DACC=88
AFV=124
vAr=[f'v{2+t}' for t in range(9)]
vOf='v11'; vOut='v12'

def phase3(a, opts):
    a.c("---- phase 3")
    L=vLane
    a.i(f"v_mov_b32 v88, {vWOl[0]}"); a.i(f"v_mov_b32 v89, {vWOl[1]}"); a.i(f"v_mov_b32 v90, {vWOt[1]}")
    a.i(f"v_lshrrev_b32 v13, 2, {L}")
    a.i(f"v_and_b32 v14, 7, v13"); a.i(f"v_lshlrev_b32 v14, 5, v14")
    a.i(f"v_lshl_add_u32 v14, v13, 8, v14")
    a.i(f"v_and_b32 v15, 3, {L}"); a.i(f"v_lshl_add_u32 v14, v15, 3, v14")
    for t in range(8): a.i(f"v_xor_b32 {vAr[t]}, {32*t}, v14")
    a.i(f"v_lshlrev_b32 v13, 5, v13"); a.i(f"v_lshl_add_u32 v13, v15, 3, v13"); a.i(f"v_add_u32 {vAr[8]}, 8192, v13")
    a.i(f"v_and_b32 v13, 15, {L}"); a.i(f"v_lshrrev_b32 v14, 4, {L}")
    a.i(f"s_and_b32 s6, {sWV}, 1"); a.i(f"s_lshl_b32 s6, s6, 8")
    a.i(f"v_lshl_add_u32 v15, v13, 4, s6"); a.i(f"v_lshl_add_u32 {vOf}, v14, 9, v15")
    a.i(f"v_mul_u32_u24 v15, {OUTROW}, v13"); a.i(f"v_lshl_add_u32 {vOut}, v14, 3, v15")
    a.wait(vm='wo')
    a.i("s_barrier")
    a.stamp('wo_ready')
    if opts.get('dumpwo'):
        a.i("s_cmp_lg_u32 s2, 0"); a.i("s_cbranch_scc1 L_nodump")
        a.i("v_lshlrev_b32 v13, 4, v0")
        for it in range(39):
            a.i(f"ds_read_b128 v[124:127], v13 offset:0")
            a.i("s_waitcnt lgkmcnt(0)")
            a.i(f"v_add_u32 v14, {WS_DBG+0x100000}, v13")
            a.i(f"buffer_store_dwordx4 v[124:127], v14, {sWS}, 0 offen", cond=True)
            a.i("s_waitcnt vmcnt(0)")
            a.i("v_add_u32 v13, 4096, v13")
        a.label("L_nodump"); a.lg_clear()
    def frag_reads(kap, dst):
        slot=kap if kap<17 else 0
        R=[]
        for t in range(9):
            p,r=dst(kap,t)
            off=(slot%7)*9216
            hoff=4096 if t<8 else 512
            R.append([(f"ds_read_b64_tr_b16 {p}[{r+2*h}:{r+2*h+1}], {vAr[t]} offset:{off+hoff*h}", f'a{kap}_{t}') for h in range(2)])
        return R
    NA=7
    def dst(kap,t):
        if kap<NA: return 'a', (kap*9+t)*4
        idx=((kap-NA)*9+t)%32
        return 'v', AFV+idx*4
    bump=lambda: [f"v_add_u32 {vAr[t]}, {7*9216}, {vAr[t]}" for t in range(9)]
    def oflag():
        a.i(f"s_lshl_b32 {sT0}, {sG}, 2"); a.i(f"s_add_u32 {sT0}, {sT0}, {sWV}"); a.i(f"s_lshl_b32 {sT0}, {sT0}, 7"); a.i(f"s_add_u32 {sT0}, {sT0}, {sFO}")
        a.i(f"v_mov_b32 v14, {sNONl}"); a.i(f"v_mov_b32 v13, 0")
        a.i(f"s_cmp_eq_u32 {sLOC}, 1"); a.i("s_cbranch_scc1 L_ofl")
        a.i(f"v_mov_b32 v15, {sNONh}")
        a.i("s_mov_b64 exec, 1")
        a.i(f"buffer_store_dwordx2 v[14:15], v13, {sWS}, {sT0} offen sc1", 'x', True)
        a.i("s_branch L_ofe")
        a.label("L_ofl")
        a.i(f"s_add_u32 {sT0}, {sT0}, {WS_FOL-WS_FO}")
        a.i(f"v_mov_b32 v15, {sLFH}")
        a.i("s_mov_b64 exec, 1")
        a.i(f"buffer_store_dwordx2 v[14:15], v13, {sWS}, {sT0} offen", tag='oflag')
        a.label("L_ofe")
        a.i("s_mov_b64 exec, -1")
    LF_AT=opts.get('lf_at',1)
    for kap in range(NA):
        if kap==LF_AT:
            a.wait(vm='ost'); oflag(); a.stamp('o_lflag')
        for grp in frag_reads(kap,dst): a.emit(grp)
        if kap%2==1: a.wait(lg=8)
    a.emit(bump())
    for kap in range(NA,NA+3):
        for grp in frag_reads(kap,dst): a.emit(grp)
    a.wait(lg=0)
    a.i("s_barrier")
    for g in wo_left_groups(1,0,('v88','v89','v90')): a.emit(g)
    a.stamp('frags_pre')
    a.i(f"v_and_b32 v13, 31, {L}"); a.i(f"v_lshlrev_b32 v13, 7, v13")
    a.i(f"v_add_u32 v14, {WS_FOL-WS_FO}, v13"); a.i(f"v_cmp_le_u32 vcc, 32, {L}")
    a.i(f"v_mov_b32 v91, {sNONh}"); a.i(f"v_mov_b32 v92, {sLFH}")
    a.i(f"v_cndmask_b32 v13, v13, v14, vcc"); a.i(f"v_cndmask_b32 v91, v91, v92, vcc")
    a.i(f"s_mov_b32 {sCNT}, 200000")
    a.label("L_opoll")
    a.i(f"buffer_load_dwordx2 v[14:15], v13, {sWS}, {sFO} offen sc1", cond=True)
    a.i("s_waitcnt vmcnt(0)")
    a.i(f"v_cmp_eq_u32 vcc, {sNONl}, v14"); a.i(f"v_cmp_eq_u32 s[4:5], v91, v15")
    a.i("s_nop 0")
    a.i("s_and_b64 s[4:5], s[4:5], vcc"); a.i("s_or_b32 s4, s4, s5"); a.i("s_cmp_eq_u32 s4, -1"); a.i("s_cbranch_scc1 L_opoll_done")
    a.i(f"s_sub_u32 {sCNT}, {sCNT}, 1"); a.i(f"s_cmp_lg_u32 {sCNT}, 0"); a.i("s_cbranch_scc1 L_opoll")
    a.label("L_opoll_done")
    a.stamp('opoll_done')
    KORD=[7,8,9]+list(range(7))+list(range(10,18))
    for kap in KORD:
        src=sPOM if kap<16 else sPOL
        a.i(f"s_add_u32 {sT0}, {src}, {2048*(kap%16 if kap<16 else kap-16)}")
        a.i(f"buffer_load_dwordx4 v[{OF+4*kap}:{OF+4*kap+3}], {vOf}, {sWS}, {sT0} offen sc1", tag=f'of{kap}')
    rq=[]
    for kap in range(NA+3,18):
        R=frag_reads(kap,dst)
        for t in range(9): rq.append((kap,t,R[t]))
    issued=(NA+3-NA)*9
    consumed=0
    base_slot=7
    for kap in KORD:
        a.wait(vm=f'of{kap}')
        for t in range(9):
            p,r=dst(kap,t)
            if kap>=NA:
                n_=a.lg_n(f'a{kap}_{t}')
                if n_ is not None: a.wait(lg=f'a{kap}_{t}')
            acc=rng('v',DACC+4*t,4); c='0' if kap==KORD[0] else acc
            a.i(f"v_mfma_f32_16x16x32_bf16 {acc}, {p}[{r}:{r+3}], v[{OF+4*kap}:{OF+4*kap+3}], {c}")
            if kap>=NA: consumed+=1
            if rq and issued-consumed<31:
                k2,t2,ins=rq[0]
                if k2==14 and t2==0 and base_slot==7:
                    a.emit(bump()); base_slot=14
                if k2==17 and t2==0:
                    a.i("s_waitcnt vmcnt(0)"); a.i("s_barrier")
                    a.emit([f"v_subrev_u32 {vAr[tt]}, {14*9216}, {vAr[tt]}" for tt in range(9)])
                rq.pop(0); a.emit(ins); issued+=1
    assert not rq
    a.stamp('p3_mfma_end')
    a.nop(10)
    for t in range(9):
        d=DACC+4*t
        a.i(f"v_cvt_pk_bf16_f32 v{d}, v{d}, v{d+1}"); a.i(f"v_cvt_pk_bf16_f32 v{d+1}, v{d+2}, v{d+3}")
        a.i(f"buffer_store_dwordx2 v[{d}:{d+1}], {vOut}, {sOUT}, {sOUTB} offen offset:{32*t} {opts.get('outmod','')}")
    a.i("s_waitcnt vmcnt(0)")

def kd(name, vgpr, accum, sgpr=102):
    return f""".section .rodata,"a"
.p2align 6
.amdhsa_kernel {name}
  .amdhsa_next_free_vgpr {vgpr}
  .amdhsa_next_free_sgpr {sgpr}
  .amdhsa_accum_offset {accum}
  .amdhsa_group_segment_fixed_size 0
  .amdhsa_kernarg_size 72
  .amdhsa_user_sgpr_count 2
  .amdhsa_user_sgpr_kernarg_segment_ptr 1
  .amdhsa_system_sgpr_workgroup_id_x 1
.end_amdhsa_kernel
"""
HEADER = """; Kernarg layout (72 bytes, ptrs only, base s[0:1]):
"""
def build(opts):
    ORDER_MODE[0]=opts.get('order','own'); GOPT.update(opts)
    a=G()
    if opts.get('stamps'):
        a.stamps=[]
        a.sel = opts['sel'].split(',') if 'sel' in opts else ['ch0_landed','1a_end','1b_end','q_ready','poll_done','own_done','att_end','wo_ready','frags_pre','opoll_done','p3_mfma_end','drained']
    prologue(a,opts)
    g0=dma_chunk_groups(0,0)
    for g in g0[:4]: a.emit(g)
    setupA(a,opts)
    setupB0(a,opts)
    for g in g0[4:]: a.emit(g)
    if opts.get('xtouch',1):
        L=vLane
        a.i(f"v_mul_u32_u24 v2, 7282, {L}"); a.i("v_lshrrev_b32 v2, 16, v2")
        a.i(f"v_mul_u32_u24 v3, 9, v2"); a.i(f"v_sub_u32 v3, {L}, v3"); a.i("v_min_u32 v2, 3, v2")
        a.i(f"s_lshl_b32 s5, {sC}, 7"); a.i(f"s_lshl_b32 s6, {sG}, 4"); a.i("s_add_u32 s5, s5, s6"); a.i(f"s_lshl_b32 s6, {sWV}, 2"); a.i("s_add_u32 s5, s5, s6")
        a.i(f"v_add_u32 v2, s5, v2"); a.i(f"v_mul_u32_u24 v2, {XROW}, v2"); a.i(f"v_lshl_add_u32 v2, v3, 7, v2")
        a.i("s_mov_b32 s6, -1"); a.i("s_mov_b32 s7, 15")
        a.emit(["s_mov_b64 exec, s[6:7]", (f"buffer_load_dword v255, v2, {sX}, 0 offen",'touch'), "s_mov_b64 exec, -1"])
    a.stamp('p_ch0')
    for g in dma_chunk_groups(1,1): a.emit(g)
    a.stamp('p_ch1')
    rec=Rec(); setupB(rec,opts)
    opts['_side']=rec.l
    pend=dma_chunk_groups(2,2)
    pend=phase1a(a,opts,pend)
    phase1b(a,pend,opts)
    attention(a,opts)
    phase3(a,opts)
    a.stamp('drained'); a.stamp('rt_exit',real=True)
    if opts.get('dbgtime'):
        a.i("s_waitcnt lgkmcnt(0)")
        n=len(a.stamps)
        r0=a.stamps[0][1]; r1=a.stamps[-1][1]
        a.i(f"s_not_b32 s3, s{r0}")
        a.i("v_mov_b32 v2, s3"); a.i("v_mov_b32 v3, 8"); a.i(f"v_mov_b32 v4, s{r1}"); a.i("v_mov_b32 v5, 12")
        a.i("s_mov_b64 exec, 1")
        a.i(f"buffer_atomic_umax v2, v3, {sDBG}, 0 offen sc1"); a.i(f"buffer_atomic_umax v4, v5, {sDBG}, 0 offen sc1")
        a.i(f"s_cmp_lg_u32 s2, 77"); a.i("s_cbranch_scc1 L_nodbg"); a.i(f"s_cmp_lg_u32 {sWV}, 0"); a.i("s_cbranch_scc1 L_nodbg")
        e=a.stamps[1][1]
        for k,(nm,r) in enumerate(a.stamps[2:-1][:12]):
            a.i(f"s_sub_u32 s3, s{r}, s{e}"); a.i("v_mov_b32 v2, s3"); a.i(f"v_mov_b32 v3, {16+4*k}")
            a.i(f"buffer_store_dword v2, v3, {sDBG}, 0 offen")
        a.label("L_nodbg")
        a.i("s_mov_b64 exec, -1"); a.i("s_waitcnt vmcnt(0)")
    else: a.dump_stamps(0)
    a.label("L_end"); a.i("s_endpgm")
    errs=a.check()
    if opts.get('stamps'): print("stamps:",len(a.stamps),[x[0] for x in a.stamps])
    k1=f"{NAME}_kernel"
    txt=HEADER+f"; @launch grid=(256,1,1) block=(256,1,1) lds={LDS_BYTES}\n"
    txt+='.amdgcn_target "amdgcn-amd-amdhsa--gfx950"\n.text\n'
    txt+=f".globl {k1}\n.p2align 8\n.type {k1},@function\n{k1}:\n"+a.text()+kd(k1,512,256)
    return txt
if __name__=="__main__":
    out=sys.argv[1]
    opts={}
    for x in sys.argv[2:]:
        k,_,v=x.partition('='); opts[k]=int(v) if v.lstrip('-').isdigit() else (v or True)
    open(out,'w').write(build(opts)); print("written",out)
```

```python
import sys, os, struct
sys.path.insert(0, os.path.dirname(os.path.abspath(__file__)))
from asm import *
NAME = "concat_heads__sliding_block__sliding_block__prompt"
XROW=1152; WROW=3456; OUTROW=2304
X_BYTES=2048*1152; W_BYTES=576*3456; WO_BYTES=576*1152; OUT_BYTES=2048*2304
SLOT=36864; WPITCH=320; XOFF=20480; QPITCH=192; QCH=12288
VBASE=0; VR=1184; VJ=2368; VB=4736; KB3=18944; KB0=147456; KP=148; KBLK=32*148; QBASE=110592
LDS_BYTES=163840
WS_KV=0; WS_OM=0x1000000; WS_OL=0x1400000; WS_FKV=0x1800000; WS_FO=0x1840000; WS_FOL=0x1880000; WS_FW=0x1900000; WS_FWL=0x1940000
WS_XT=0x18C0000
WS_DBG=0x2000000; WS_BYTES=0x4000000
CSCALE = 1.4426950408889634/(18**0.5)
def f2u(x): return struct.unpack('<I',struct.pack('<f',x))[0]
def rng(p,a,n): return f'{p}[{a}:{a+n-1}]'

sX='s[8:11]'; sW='s[12:15]'; sWO='s[16:19]'; sOUT='s[20:23]'; sWS='s[24:27]'; sDBG='s[28:31]'
sB='s32'; sC='s33'; sG='s34'; sWV='s35'
sVM='s[54:55]'; sLO='s[56:57]'
sCI='s58'; sWoff='s59'; sXoff='s60'; sM0='s61'; sKVme='s62'
sT0='s63'; sT1='s64'; sT2='s65'; sFKV='s66'; sT3='s67'
sNONl='s68'; sNONh='s69'; sROT='s70'; sKV1='s71'; sKV2='s72'; sXCC='s73'
sBAD='s[74:75]'; sNVM='s[52:53]'; sCNT='s76'; sOM='s77'; sOL='s78'; sFO='s79'; sSC='s80'; sATT='s81'
sLFH='s70'; sLOC='s81'
sRH='s82'; sNQ='s83'; sPOM='s84'; sPOL='s85'; sOUTB='s86'; sWOs='s87'
sIDX='s76'; sOFF='s81'

vLane='v1'
vWoff=[f'v{10+j}' for j in range(5)]
vXoff=[f'v{15+j}' for j in range(4)]
vQoff=['v19','v20','v21']
vWr=['v22','v23']; vMx=['v24','v25']
vXr=[[f'v{26+t}' for t in range(4)],[f'v{30+t}' for t in range(4)]]
vQr='v34'
vKw='v35'; vQw='v36'; vVw='v37'; vVt='v38'
vKr='v39'; vKl='v40'; vVr='v41'; vCw='v42'; vQl='v43'
vPk='v44'; vPl='v45'; vPv='v46'; vOl='v47'
vNON='v[48:49]'; vVC='v50'; vT='v51'
def WF(b,f): r=52+(b*5+f)*4; return f'v[{r}:{r+3}]'
def WFh(b,f,h): r=52+(b*5+f)*4+2*h; return f'v[{r}:{r+1}]'
def QF(b,f): r=52+(b*3+f)*4; return f'v[{r}:{r+3}]'
def QFh(b,f,h): r=52+(b*3+f)*4+2*h; return f'v[{r}:{r+1}]'
ACC={'K0':92,'K1':108,'V0':124,'V1':140,'MX':156,'Q0':172,'Q1':188,'Q2':204}
def XF(t): return rng('a',4*t,4)
OWN=92; HALO=144
S0=52; S1=68; P0=150; P1=158; OACC=172; MASKD=236; MASKF=244
vWOm=['v10','v11']; vWOl=['v12','v13']; vWOt=['v14','v15']
vWOtmp=['v220','v221','v222','v223','v224','v225']

class G(Asm):
    stamps=None; sel=None; nowait=True
    def stamp(self, name, real=False):
        if self.stamps is None: return
        if self.sel is not None and not (name.startswith('rt_') or name=='entry' or any(name.startswith(x) for x in self.sel)): return
        k=len(self.stamps)
        regs=[88,90,92,94,96,98,100,36,38,40,42,44,46,48,50][k]
        self.stamps.append((name,regs))
        if GOPT.get('allreal'): real_=True
        else: real_=real
        self.i(f"{'s_memrealtime' if real_ else 's_memtime'} s[{regs}:{regs+1}]")
        if self.nowait and not real and name!='entry':
            self.lg.pop()
        else:
            self.i("s_waitcnt lgkmcnt(0)")
            self.lg_clear()
    def dump_stamps(self, base):
        if self.stamps is None: return
        self.i("s_waitcnt lgkmcnt(0)")
        self.i(f"s_lshl_b32 s3, s2, 2"); self.i(f"s_add_u32 s3, s3, {sWV}")
        self.i(f"s_lshl_b32 s3, s3, 6"); self.i(f"s_add_u32 s3, s3, {WS_DBG+base}")
        self.i("s_mov_b64 exec, 1")
        for k,(nm,r) in enumerate(self.stamps):
            self.i(f"v_mov_b32 v2, s{r}"); self.i(f"v_mov_b32 v3, {4*k}")
            self.i(f"buffer_store_dword v2, v3, {sWS}, s3 offen")
        self.i("s_mov_b64 exec, -1"); self.i("s_waitcnt vmcnt(0)")
    def emit(self, lst):
        for x in lst:
            if isinstance(x,tuple) and x[0]=='OSTORE': emit_ostore(self,x[1])
            elif isinstance(x,tuple): self.i(*x)
            else: self.i(x)
    def drain(self, q, budget):
        k=0; inexec=False
        while q and (k<budget or inexec):
            x=q.pop(0)
            txt=x[0] if isinstance(x,tuple) else x
            if txt.startswith('s_mov_b64 exec'): inexec = not txt.endswith('-1')
            if txt=='OSTORE': emit_ostore(self,x[1])
            elif isinstance(x,tuple): self.i(*x)
            else: self.i(x)
            k+=1

def prologue(a, opts):
    L=vLane
    a.c("---- prologue")
    a.stamp('rt_entry',real=True); a.stamp('entry')
    a.i("s_load_dwordx8 s[36:43], s[0:1], 0")
    a.i("s_load_dwordx8 s[44:51], s[0:1], 32")
    a.i("s_load_dwordx2 s[52:53], s[0:1], 64")
    a.i("s_cmp_ge_u32 s2, 256")
    a.i("s_cbranch_scc1 L_end")
    a.i("s_getpc_b64 s[4:5]")
    a.label("L_pc")
    a.i("v_lshlrev_b32 v2, 7, v0")
    a.raw("    v_min_u32 v2, (L_end-L_pc), v2")
    if not opts.get('nopf'): a.i("global_load_dword v255, v2, s[4:5]", tag='pf')
    a.i(f"v_and_b32 {L}, 63, v0")
    a.i("v_lshrrev_b32 v2, 6, v0")
    a.i("s_and_b32 s3, s2, 7")
    a.i(f"v_readfirstlane_b32 {sWV}, v2")
    a.i(f"s_lshr_b32 {sB}, s3, 2")
    a.i("s_lshr_b32 s4, s2, 3")
    a.i("s_and_b32 s5, s3, 3")
    a.i(f"s_lshl_b32 {sC}, s5, 2")
    a.i("s_lshr_b32 s5, s4, 3")
    a.i(f"s_add_u32 {sC}, {sC}, s5")
    a.i(f"s_and_b32 {sG}, s4, 7")
    a.i("s_lshl_b32 s5, s5, 1")
    a.i(f"s_add_u32 s6, s5, {sG}")
    a.i("s_sub_u32 s7, s6, 9")
    a.i("s_cmp_ge_u32 s6, 9")
    a.i(f"s_cselect_b32 {sROT}, s7, s6")
    if opts.get('order','own')=='own':
        a.i(f"s_add_u32 {sOFF}, s5, {sG}"); a.i(f"s_and_b32 {sOFF}, {sOFF}, 7")
        a.i("s_and_b32 s6, s3, 3"); a.i("s_lshl_b32 s6, s6, 1"); a.i(f"s_and_b32 s7, {sC}, 1"); a.i(f"s_add_u32 {sROT}, s6, s7")
        a.i(f"s_mov_b32 {sIDX}, {sOFF}")
    elif opts.get('order')=='norot': a.i(f"s_mov_b32 {sROT}, 0")
    a.i(f"s_lshl_b32 s6, {sC}, 7"); a.i(f"s_lshl_b32 s7, {sWV}, 5"); a.i("s_add_u32 s6, s6, s7")
    a.i(f"s_mul_i32 s6, s6, {XROW}")
    a.i(f"v_lshrrev_b32 v4, 3, {L}"); a.i(f"v_lshrrev_b32 v5, 4, {L}"); a.i(f"v_and_b32 v6, 7, {L}")
    a.i(f"v_mul_u32_u24 v4, {XROW}, v4")
    a.i(f"v_add_u32 v4, s6, v4")
    for i in range(4):
        a.i(f"v_add_u32 v7, {4*i}, v5"); a.i(f"v_and_b32 v7, 7, v7"); a.i(f"v_xor_b32 v7, v6, v7")
        a.i(f"v_lshl_add_u32 v7, v7, 4, v4")
        a.i(f"v_add_u32 {vXoff[i]}, {8*i*XROW-1024*i}, v7")
    a.i(f"s_mul_i32 s6, {sWV}, {16*WROW}"); a.i(f"s_mul_i32 s7, {sG}, 144"); a.i("s_add_u32 s6, s6, s7")
    a.i(f"s_add_u32 s6, s6, 1152")
    a.i(f"s_movk_i32 s7, {WROW}")
    a.i("v_mov_b32 v9, 0x40000000"); a.i("v_mov_b32 v8, 1008")
    for j in range(5):
        a.i(f"v_add_u32 v4, {64*j}, {L}")
        a.i(f"v_mul_u32_u24 v5, 52429, v4"); a.i(f"v_lshrrev_b32 v5, 20, v5")
        a.i(f"v_mul_u32_u24 v6, 20, v5"); a.i(f"v_sub_u32 v6, v4, v6")
        a.i(f"v_cmp_lt_u32 vcc, 8, v6")
        a.i(f"v_mul_lo_u32 v5, v5, s7")
        a.i(f"v_lshl_add_u32 v5, v6, 4, v5")
        a.i(f"v_cndmask_b32 v7, 0, v8, vcc")
        a.i(f"v_cmp_lt_u32 vcc, 17, v6")
        a.i(f"v_add3_u32 v5, v5, v7, s6")
        comp=1024*j if j<4 else 0
        if comp: a.i(f"v_subrev_u32 v5, {comp}, v5")
        else: a.i("s_nop 0")
        a.i(f"v_cndmask_b32 {vWoff[j]}, v5, v9, vcc")
    a.stamp('p_pre')
    a.wait(lg=0)
    a.stamp('p_karg')
    a.i(f"s_cmp_eq_u32 {sB}, 0")
    a.i("s_cselect_b32 s8, s36, s42");  a.i("s_cselect_b32 s9, s37, s43")
    a.i("s_cselect_b32 s12, s38, s44"); a.i("s_cselect_b32 s13, s39, s45")
    a.i(f"s_mov_b32 s10, {X_BYTES}"); a.i("s_mov_b32 s11, 0x00020000")
    a.i(f"s_mov_b32 s14, {W_BYTES}"); a.i("s_mov_b32 s15, 0x00020000")
    a.i("s_cselect_b32 s16, s40, s46"); a.i("s_cselect_b32 s17, s41, s47")
    a.i(f"s_mov_b32 {sCI}, {sROT}")
    a.i(f"s_mul_i32 {sWoff}, {sCI}, {64*WROW}")
    a.i(f"s_lshl_b32 {sXoff}, {sCI}, 7")

vTA='v[240:241]'
def touch_setup(a, opts):
    L=vLane
    a.i("s_lshr_b32 s4, s2, 3")
    a.i(f"v_cmp_le_u32 vcc, 18, {L}")
    a.i(f"v_mov_b32 v2, {XROW+18*128}")
    a.i(f"v_lshlrev_b32 v3, 7, {L}")
    a.i(f"v_mov_b32 v2, {WROW-18*128}")
    a.i(f"v_cndmask_b32 v2, 0, v2, vcc")
    a.i(f"v_add_u32 v3, v3, v2")
    a.i(f"s_mul_i32 s5, s4, {2*WROW}"); a.i(f"s_add_u32 s5, s5, {9*128}")
    a.i(f"v_add_u32 v3, s5, v3")
    a.i("s_and_b32 s5, s2, 3"); a.i("s_lshl_b32 s5, s5, 9"); a.i("s_lshl_b32 s6, s4, 4"); a.i("s_add_u32 s5, s5, s6")
    a.i(f"v_subrev_u32 v4, 36, {L}"); a.i(f"v_and_b32 v4, 15, v4"); a.i(f"v_add_u32 v4, s5, v4"); a.i(f"v_mul_u32_u24 v4, {XROW}, v4")
    a.i(f"v_cmp_le_u32 vcc, 36, {L}")
    a.i(f"v_mov_b32 v5, s12"); a.i("v_mov_b32 v6, s8"); a.i("v_mov_b32 v7, s13"); a.i("v_mov_b32 v8, s9")
    a.i(f"v_cndmask_b32 v3, v3, v4, vcc")
    a.i(f"v_cndmask_b32 v5, v5, v6, vcc")
    a.i(f"v_cndmask_b32 v7, v7, v8, vcc")
    a.i(f"v_mov_b32 v9, {64*WROW}"); a.i("v_mov_b32 v6, 128")
    a.i(f"v_cndmask_b32 v242, v9, v6, vcc")
    a.i(f"s_add_u32 s5, {sWV}, 1")
    a.i(f"v_mul_lo_u32 v9, v242, s5")
    a.i(f"v_add_u32 v3, v3, v9")
    a.i(f"v_add_co_u32 v240, vcc, v5, v3"); a.i("s_nop 1"); a.i(f"v_addc_co_u32 v241, vcc, 0, v7, vcc")
    a.i(f"v_lshlrev_b32 v242, 2, v242")
def touch_ins(second):
    L=[]
    if second:
        L+= ["v_add_co_u32 v240, vcc, v240, v242", "s_nop 1", "v_addc_co_u32 v241, vcc, 0, v241, vcc"]
    L+= ["s_mov_b64 exec, 0x000fffffffffffff" if False else "s_mov_b64 exec, s[6:7]", (f"global_load_dword v255, {vTA}, off",'touch'), "s_mov_b64 exec, -1"]
    return L
def touch_q(a):
    L=vLane
    a.i("s_lshr_b32 s4, s2, 3")
    a.i(f"v_mul_u32_u24 v2, 7282, {L}"); a.i("v_lshrrev_b32 v2, 16, v2")
    a.i(f"v_mul_u32_u24 v3, 9, v2"); a.i(f"v_sub_u32 v3, {L}, v3")
    a.i(f"v_min_u32 v2, 5, v2")
    a.i(f"s_min_u32 s5, {sWV}, 2"); a.i("s_mul_i32 s5, s5, 6"); a.i("s_mul_i32 s6, s4, 18"); a.i("s_add_u32 s5, s5, s6")
    a.i(f"v_add_u32 v2, s5, v2"); a.i(f"v_mul_u32_u24 v2, {WROW}, v2"); a.i(f"v_lshl_add_u32 v2, v3, 7, v2")
    a.i(f"buffer_load_dword v255, v2, {sW}, 0 offen", 'touch')
def touch_wo(a):
    L=vLane
    a.i(f"s_lshr_b32 {sT0}, s2, 3")
    a.i(f"s_min_u32 {sT1}, {sWV}, 2"); a.i(f"s_mul_i32 {sT1}, {sT1}, 54"); a.i(f"s_mul_i32 {sT0}, {sT0}, 162"); a.i(f"s_add_u32 {sT1}, {sT1}, {sT0}")
    a.i(f"v_min_u32 {vT}, 53, {L}"); a.i(f"v_add_u32 {vT}, {sT1}, {vT}"); a.i(f"v_lshlrev_b32 {vT}, 7, {vT}")
    a.i(f"buffer_load_dword v255, {vT}, {sWO}, 0 offen", 'touch')

ORDER_MODE=['own']
GOPT={}
def next_chunk_ins():
    if ORDER_MODE[0]=='own':
        return [f"s_add_u32 {sCI}, {sROT}, {sIDX}", f"s_add_u32 {sCI}, {sCI}, 1", f"s_sub_u32 {sT3}, {sCI}, 9", f"s_cmp_ge_u32 {sCI}, 9",
                f"s_cselect_b32 {sCI}, {sT3}, {sCI}", f"s_add_u32 {sIDX}, {sIDX}, 1", f"s_and_b32 {sIDX}, {sIDX}, 7",
                f"s_mul_i32 {sWoff}, {sCI}, {64*WROW}", f"s_lshl_b32 {sXoff}, {sCI}, 7"]
    return [f"s_add_u32 {sCI}, {sCI}, 1", f"s_cmp_eq_u32 {sCI}, 9", f"s_cselect_b32 {sCI}, 0, {sCI}",
            f"s_mul_i32 {sWoff}, {sCI}, {64*WROW}", f"s_lshl_b32 {sXoff}, {sCI}, 7"]

def dma_chunk_groups(slot, n):
    base=slot*SLOT; tag=f'ch{n}'; Gs=[]
    for i in range(4):
        pre=[f"s_lshl_b32 {sM0}, {sWV}, 12", f"s_add_u32 m0, {sM0}, {base+XOFF}", "s_nop 0"] if i==0 else []
        Gs.append(pre+[(f"buffer_load_dwordx4 {vXoff[i]}, {sX}, {sXoff} offen offset:{1024*i} lds", tag)])
    for j in range(4):
        pre=[f"s_mul_i32 {sM0}, {sWV}, 5120", f"s_add_u32 m0, {sM0}, {base}", "s_nop 0"] if j==0 else []
        Gs.append(pre+[(f"buffer_load_dwordx4 {vWoff[j]}, {sW}, {sWoff} offen offset:{1024*j} lds", tag)])
    Gs.append([f"s_add_u32 m0, {sM0}, {base+4096}", "s_nop 0", (f"buffer_load_dwordx4 {vWoff[4]}, {sW}, {sWoff} offen lds", tag)]+next_chunk_ins())
    return Gs

def dma_wq_groups(n):
    reg = SLOT*(1+n//3) + (n%3)*QCH
    Gs=[]
    for e in range(3):
        pre=[f"s_mul_i32 {sM0}, {sWV}, 3072", f"s_add_u32 m0, {sM0}, {reg}", "s_nop 0"] if e==0 else []
        post=next_chunk_ins() if e==2 else []
        Gs.append(pre+[(f"buffer_load_dwordx4 {vQoff[e]}, {sW}, {sWoff} offen offset:{1024*e} lds", f'wq{n}')]+post)
    return Gs

def setupA(a, opts):
    L=vLane
    a.c("---- setup A")
    a.i(f"v_bfe_u32 v4, {L}, 2, 2"); a.i(f"v_lshrrev_b32 v5, 5, {L}")
    a.i(f"v_lshl_add_u32 v4, v5, 3, v4")
    a.i(f"v_bfe_u32 v6, {L}, 4, 1"); a.i(f"v_and_b32 v7, 3, {L}")
    a.i(f"v_mul_u32_u24 v8, {WPITCH}, v4")
    a.i(f"v_lshlrev_b32 v9, 5, v6"); a.i(f"v_lshl_add_u32 v9, v7, 3, v9")
    a.i(f"v_add_u32 {vWr[0]}, v8, v9"); a.i(f"v_add_u32 {vWr[1]}, {2*SLOT}, {vWr[0]}")
    a.i(f"v_mul_u32_u24 v2, {QPITCH}, v4")
    a.i(f"v_add3_u32 {vQr}, v2, v9, 0"); a.i(f"v_add_u32 {vQr}, {SLOT}, {vQr}")
    a.i(f"v_lshl_add_u32 v9, v6, 2, v7")
    a.i(f"v_lshlrev_b32 v2, 3, v9"); a.i(f"v_add_u32 v2, 128, v2"); a.i(f"v_add_u32 v3, 128, v2")
    a.i(f"v_cmp_lt_u32 vcc, 1, v9"); a.i("s_nop 1")
    a.i(f"v_cndmask_b32 v2, v2, v3, vcc")
    a.i(f"v_add_u32 {vMx[0]}, v8, v2"); a.i(f"v_add_u32 {vMx[1]}, {2*SLOT}, {vMx[0]}")
    a.i(f"v_and_b32 v2, 31, {L}"); a.i(f"v_bfe_u32 v3, {L}, 1, 3"); a.i(f"v_xor_b32 v3, v3, v5")
    a.i(f"v_lshlrev_b32 v3, 4, v3"); a.i(f"v_lshl_add_u32 v3, v2, 7, v3")
    a.i(f"s_lshl_b32 s6, {sWV}, 12"); a.i(f"s_add_u32 s6, s6, {XOFF}")
    a.i(f"v_add_u32 v3, s6, v3")
    for t in range(4):
        a.i(f"v_xor_b32 {vXr[0][t]}, {32*t}, v3"); a.i(f"v_add_u32 {vXr[1][t]}, {2*SLOT}, {vXr[0][t]}")

class Rec:
    def __init__(self): self.l=[]
    def i(self, t, tag=None, cond=False): self.l.append((t,tag,cond) if tag or cond else t)
    def c(self, s): pass

def setupB0(a, opts):
    a.i("s_mov_b32 s20, s48"); a.i("s_mov_b32 s21, s49"); a.i(f"s_mov_b32 s22, {OUT_BYTES}"); a.i("s_mov_b32 s23, 0x00020000")
    a.i("s_mov_b32 s24, s52"); a.i("s_mov_b32 s25, s53"); a.i(f"s_mov_b32 s26, {WS_BYTES}"); a.i("s_mov_b32 s27, 0x00020000")
    a.i("s_mov_b32 s28, s50"); a.i("s_mov_b32 s29, s51"); a.i("s_mov_b32 s30, 256"); a.i("s_mov_b32 s31, 0x00020000")
    a.i(f"s_mov_b32 s18, {WO_BYTES}"); a.i("s_mov_b32 s19, 0x00020000")
    a.i(f"s_or_b32 s3, s2, {sWV}"); a.i("s_cmp_lg_u32 s3, 0"); a.i("s_cbranch_scc1 L_nononce")
    a.i("s_memrealtime s[4:5]"); a.i("s_waitcnt lgkmcnt(0)"); a.i("s_or_b32 s4, s4, 1")
    a.i("v_mov_b32 v2, s4"); a.i("v_mov_b32 v3, s5"); a.i("v_mov_b32 v4, 0")
    a.i("s_mov_b64 exec, 1")
    a.i(f"buffer_store_dwordx2 v[2:3], v4, {sDBG}, 0 offen sc1", cond=True)
    a.i("s_mov_b64 exec, -1")
    a.label("L_nononce"); a.lg_clear()

def setupB(a, opts):
    L=vLane
    a.c("---- setup B")
    a.i("s_mov_b32 s54, 0x3ffff"); a.i("s_mov_b32 s55, 0x3ffff"); a.i("s_not_b64 s[52:53], s[54:55]"); a.i("s_mov_b32 s56, -1"); a.i("s_mov_b32 s57, 0")
    a.i(f"s_mov_b32 {sSC}, {f2u(CSCALE):#x}")
    a.i(f"s_getreg_b32 {sXCC}, hwreg(HW_REG_XCC_ID, 0, 4)")
    a.i(f"s_mul_i32 s6, {sWV}, {16*WROW}"); a.i(f"s_mul_i32 s7, {sG}, 144"); a.i("s_add_u32 s6, s6, s7")
    a.i(f"s_movk_i32 s7, {WROW}"); a.i("v_mov_b32 v9, 0x40000000")
    for e in range(3):
        a.i(f"v_add_u32 v4, {64*e}, {L}")
        a.i(f"v_mul_u32_u24 v5, 21846, v4"); a.i(f"v_lshrrev_b32 v5, 18, v5")
        a.i(f"v_mul_u32_u24 v6, 12, v5"); a.i(f"v_sub_u32 v6, v4, v6")
        a.i(f"v_cmp_lt_u32 vcc, 8, v6")
        a.i(f"v_mul_lo_u32 v5, v5, s7"); a.i(f"v_lshl_add_u32 v5, v6, 4, v5")
        a.i(f"v_add_u32 v5, s6, v5"); a.i(f"v_subrev_u32 v5, {1024*e}, v5")
        a.i(f"v_cndmask_b32 {vQoff[e]}, v5, v9, vcc")
    a.i(f"v_and_b32 v2, 31, {L}"); a.i(f"v_lshrrev_b32 v5, 5, {L}")
    a.i(f"s_mul_i32 s6, {sWV}, {KBLK}"); a.i(f"s_add_u32 s7, s6, {KB0}"); a.i(f"s_cmp_eq_u32 {sWV}, 3"); a.i(f"s_cselect_b32 s7, {KB3}, s7")
    a.i(f"v_mul_u32_u24 v3, {KP}, v2"); a.i(f"v_lshl_add_u32 v3, v5, 3, v3")
    a.i(f"v_add_u32 {vKw}, s7, v3"); a.i(f"s_add_u32 s6, s6, {QBASE}"); a.i(f"v_add_u32 {vQw}, s6, v3")
    a.i(f"s_mul_i32 s6, {sWV}, {VB}"); a.i(f"s_add_u32 s6, s6, {VBASE}")
    a.i(f"v_mul_u32_u24 v3, {VR}, v5"); a.i(f"v_lshl_add_u32 v3, v2, 4, v3"); a.i(f"v_add_u32 {vVw}, s6, v3")
    a.i(f"v_bfe_u32 v3, {L}, 2, 1"); a.i(f"v_mul_u32_u24 v3, {VJ}, v3"); a.i(f"v_bfe_u32 v4, {L}, 1, 1"); a.i(f"v_mul_u32_u24 v4, {VR}, v4")
    a.i(f"v_add_u32 v3, v3, v4"); a.i(f"v_and_b32 v4, 1, {L}"); a.i(f"v_lshl_add_u32 v3, v4, 4, v3"); a.i(f"v_add_u32 v3, {72*16}, v3")
    a.i(f"v_add_u32 {vCw}, s6, v3")
    a.i(f"v_lshrrev_b32 v3, 4, v2"); a.i(f"v_mul_u32_u24 v3, {VJ}, v3"); a.i(f"v_bfe_u32 v4, v2, 2, 1")
    a.i(f"v_mul_u32_u24 v4, {VR}, v4"); a.i(f"v_add_u32 v3, v3, v4"); a.i(f"v_and_b32 v4, 3, v2")
    a.i(f"v_bfe_u32 v6, v2, 3, 1"); a.i(f"v_lshl_add_u32 v4, v6, 2, v4"); a.i(f"v_lshl_add_u32 v3, v4, 1, v3")
    a.i(f"v_lshl_add_u32 v3, v5, 6, v3"); a.i(f"v_add_u32 v3, {64*16}, v3"); a.i(f"v_add_u32 {vVt}, s6, v3")
    a.i(f"s_mul_i32 s6, {sWV}, 36"); a.i(f"v_mul_u32_u24 v3, {KP}, v2"); a.i(f"v_add_u32 v3, s6, v3")
    a.i(f"v_lshl_add_u32 {vKr}, v5, 4, v3")
    a.i(f"v_add_u32 {vKl}, 32, v3")
    a.i(f"s_mul_i32 s6, {sWV}, 18"); a.i(f"v_add_u32 v3, s6, v2"); a.i(f"v_and_b32 v4, 27, v2")
    a.i(f"v_cmp_eq_u32 vcc, 18, v4"); a.i(f"v_mov_b32 v4, 73"); a.i(f"v_mov_b32 v6, 72"); a.i(f"v_cndmask_b32 v4, v4, v6, vcc")
    a.i(f"v_cmp_gt_u32 vcc, 18, v2"); a.i("s_nop 1"); a.i(f"v_cndmask_b32 v3, v4, v3, vcc")
    a.i(f"v_lshlrev_b32 v3, 4, v3"); a.i(f"v_mul_u32_u24 v4, {VR}, v5"); a.i(f"v_add_u32 {vVr}, v3, v4")
    a.i(f"v_lshlrev_b32 {vPk}, 4, {L}"); a.i(f"v_lshlrev_b32 {vPl}, 2, v2"); a.i(f"v_add_u32 {vPl}, 1024, {vPl}")
    a.i(f"v_mul_u32_u24 v3, 288, v5"); a.i(f"v_lshl_add_u32 v3, v2, 4, v3"); a.i(f"v_add_u32 {vPv}, 1152, v3")
    a.i(f"s_lshl_b32 s6, {sWV}, 2"); a.i(f"v_lshrrev_b32 v3, 3, v2"); a.i(f"v_mul_u32_u24 v3, {OUTROW}, v3")
    a.i(f"v_and_b32 v4, 7, v2"); a.i(f"v_lshl_add_u32 v3, v4, 4, v3"); a.i(f"v_add_u32 {vOl}, s6, v3")
    a.i(f"v_and_b32 v3, 27, v2"); a.i(f"v_cmp_eq_u32 vcc, 18, v3"); a.i(f"v_mov_b32 v4, 0x3f803f80"); a.i("s_nop 0")
    a.i(f"v_cndmask_b32 {vVC}, 0, v4, vcc")
    a.i(f"s_lshl_b32 s6, {sB}, 3"); a.i(f"s_add_u32 s6, s6, {sG}"); a.i(f"s_lshl_b32 s6, s6, 4"); a.i(f"s_add_u32 s6, s6, {sC}")
    a.i(f"s_mul_i32 {sKVme}, s6, {SLOT}"); a.i(f"s_mul_i32 s7, {sWV}, 2304"); a.i(f"s_add_u32 {sKVme}, {sKVme}, s7")
    a.i(f"s_sub_u32 {sKV1}, {sKVme}, {SLOT}"); a.i(f"s_sub_u32 {sKV2}, {sKVme}, {2*SLOT}")
    a.i(f"s_cmp_ge_u32 {sC}, 1"); a.i(f"s_cselect_b32 {sKV1}, {sKV1}, 0x70000000")
    a.i(f"s_cmp_ge_u32 {sC}, 2"); a.i(f"s_cselect_b32 {sKV2}, {sKV2}, 0x70000000")
    a.i(f"s_lshl_b32 s6, s6, 2"); a.i(f"s_add_u32 s6, s6, {sWV}"); a.i(f"s_lshl_b32 s6, s6, 7")
    a.i(f"s_add_u32 {sFKV}, s6, {WS_FKV}")
    a.i(f"s_cmp_ge_u32 {sC}, 1"); a.i(f"s_cselect_b32 s6, -1, 0"); a.i(f"s_cmp_ge_u32 {sC}, 2"); a.i(f"s_cselect_b32 s7, -1, 0")
    a.i(f"v_and_b32 v2, s6, {vVC}"); a.i(f"v_and_b32 v3, s7, {vVC}"); a.i(f"v_mov_b32 v4, 0x3f803f80")
    for hb in range(8):
        base=HALO+14*hb
        a.i(f"v_accvgpr_write_b32 a{base+5}, v4")
        for r in range(8): a.i(f"v_accvgpr_write_b32 a{base+6+r}, {'v3' if hb<4 else 'v2'}")
    a.i(f"v_and_b32 v2, 31, {L}"); a.i(f"v_lshlrev_b32 v3, 2, v5"); a.i(f"v_sub_u32 v2, v2, v3")
    a.i(f"v_mov_b32 v6, 0xffff"); a.i(f"v_mov_b32 v7, 0xffff0000")
    for u in range(8):
        r0=2*u; k0=(r0&3)+8*(r0>>2)
        a.i(f"v_cmp_le_i32 vcc, {k0}, v2"); a.i(f"v_cmp_le_i32 s[4:5], {k0+1}, v2"); a.i("s_nop 0")
        a.i(f"v_cndmask_b32 v3, 0, v6, vcc"); a.i(f"v_cndmask_b32 v4, 0, v7, s[4:5]")
        a.i(f"v_or_b32 v{MASKD+u}, v3, v4"); a.i(f"v_not_b32 v{MASKF+u}, v{MASKD+u}")
    a.i(f"s_lshl_b32 s6, {sC}, 7"); a.i(f"s_lshl_b32 s7, {sG}, 2"); a.i("s_add_u32 s6, s6, s7")
    a.i(f"s_mul_i32 s6, s6, {OUTROW}"); a.i(f"s_mul_i32 s7, {sB}, 1152"); a.i("s_add_u32 s6, s6, s7")
    a.i(f"s_add_u32 {sOL}, s6, 1024"); a.i(f"s_mul_i32 s7, {sWV}, {OUTROW}"); a.i(f"s_add_u32 {sOM}, s6, s7")
    a.i(f"s_lshr_b32 {sRH}, {sG}, 2"); a.i(f"s_and_b32 {sNQ}, {sG}, 3")
    a.i(f"s_lshl_b32 s7, {sRH}, 1"); a.i(f"s_lshr_b32 s3, {sWV}, 1"); a.i("s_add_u32 s3, s3, s7"); a.i("s_lshl_b32 s3, s3, 5")
    a.i(f"s_lshl_b32 s7, {sC}, 7"); a.i("s_add_u32 s3, s3, s7"); a.i(f"s_mul_i32 {sPOM}, s3, {OUTROW}")
    a.i(f"s_mul_i32 s7, {sB}, 1152"); a.i(f"s_add_u32 {sPOM}, {sPOM}, s7"); a.i(f"s_add_u32 {sPOL}, {sPOM}, 1024")
    a.i(f"s_lshl_b32 s6, {sC}, 7"); a.i(f"s_lshl_b32 s7, {sRH}, 6"); a.i("s_add_u32 s6, s6, s7")
    a.i(f"s_lshl_b32 s7, {sWV}, 4"); a.i("s_add_u32 s6, s6, s7"); a.i(f"s_mul_i32 {sOUTB}, s6, {OUTROW}")
    a.i(f"s_mul_i32 s7, {sB}, 1152"); a.i(f"s_add_u32 {sOUTB}, {sOUTB}, s7")
    a.i(f"s_mul_i32 s7, {sNQ}, 288"); a.i(f"s_add_u32 {sOUTB}, {sOUTB}, s7")
    a.i(f"s_lshl_b32 s6, {sB}, 4"); a.i(f"s_add_u32 s6, s6, {sC}"); a.i(f"s_lshl_b32 {sFO}, s6, 12")
    a.i(f"s_add_u32 {sFO}, {sFO}, {WS_FO}")
    a.i(f"v_mov_b32 v252, {f2u(2.0**-40):#x}"); a.i(f"v_mov_b32 v253, {f2u(2.0**40):#x}")
    a.i(f"s_mov_b64 {sBAD}, 0")

def wq_reads(tau):
    n,t=divmod(tau,4); b=tau%2
    off=(n%3)*QCH+16*QPITCH*t
    return [[(f"ds_read_b64_tr_b16 {QFh(b,f,h)}, {vQr} offset:{off+4*QPITCH*h+64*f}", f'q{tau}_{f}') for h in range(2)] for f in range(3)]

def drain_side(a, side, n):
    k=0; last=''
    while side and (k<n or last.startswith('s_cmp') or (side[0] if isinstance(side[0],str) else side[0][0]).startswith('s_cselect')):
        x=side.pop(0)
        if isinstance(x,tuple): a.i(*x); last=x[0]
        else: a.i(x); last=x
        k+=1

def phase1a(a, opts, pend):
    a.c("---- phase 1a")
    def reads(tau):
        n,t=divmod(tau,4); slot=n%4; hi=slot>=2; base=(slot%2)*SLOT; b=tau%2
        R=[[(f"ds_read_b128 {XF(tau)}, {vXr[hi][t]} offset:{base}", f'x{tau}')] +
           [(f"ds_read_b64_tr_b16 {WFh(b,0,h)}, {vWr[hi]} offset:{base+5120*t+1280*h}", f'w{tau}_0') for h in range(2)]]
        for f,co in ((1,64),(2,144),(3,208)):
            R.append([(f"ds_read_b64_tr_b16 {WFh(b,f,h)}, {vWr[hi]} offset:{base+5120*t+1280*h+co}", f'w{tau}_{f}') for h in range(2)])
        R.append([(f"ds_read_b64_tr_b16 {WFh(b,4,h)}, {vMx[hi]} offset:{base+5120*t+1280*h}", f'w{tau}_4') for h in range(2)])
        return R
    a.stamp('setup_done')
    a.wait(vm='ch0'); a.i("s_barrier")
    a.stamp('ch0_landed')
    for grp in reads(0): a.emit(grp)
    names=['K0','K1','V0','V1','MX']
    side=opts.get('_side',[])
    every=opts.get('dma_every',2)
    slotcnt=0
    for tau in range(36):
        n,t=divmod(tau,4); b=tau%2
        if t==0: a.stamp(f'c{n}')
        if t==3:
            a.wait(vm=f'ch{n+1}' if n<8 else 'wq0')
            a.i("s_barrier")
            if n<=5:
                pend += dma_chunk_groups((n+3)%4, n+3)
                if n==5 and opts.get('wotouch',2)==1:
                    rec=Rec(); touch_wo(rec); pend.append(rec.l)
            elif n==6:
                pend.append([f"s_mov_b32 {sCI}, {sROT}", f"s_mul_i32 {sWoff}, {sCI}, {64*WROW}", f"s_mov_b32 {sIDX}, {sOFF}"])
                for q in range(3): pend += dma_wq_groups(q)
            elif n==7:
                for q in range(3,6): pend += dma_wq_groups(q)
            elif n==8:
                for q in range(6,9): pend += dma_wq_groups(q)
        R = reads(tau+1) if tau<35 else wq_reads(0)
        for m,nm in enumerate(names):
            a.wait(lg=[f'w{tau}_{m}']+([f'x{tau}'] if m==0 else []))
            acc=rng('v',ACC[nm],16); c='0' if tau==0 else acc
            if nm in ('V0','V1'): a.i(f"v_mfma_f32_32x32x16_bf16 {acc}, {XF(tau)}, {WF(b,m)}, {c}")
            else: a.i(f"v_mfma_f32_32x32x16_bf16 {acc}, {WF(b,m)}, {XF(tau)}, {c}")
            if m<len(R): a.emit(R[m])
            slotcnt+=1
            if pend and slotcnt%every==0: a.emit(pend.pop(0))
            elif side: drain_side(a, side, opts.get('side_n',4))
        if tau==30:
            a.i(f"v_mov_b32 {vT}, 0")
            a.i(f"buffer_load_dwordx2 {vNON}, {vT}, {sDBG}, 0 offen sc1", tag='nonce')
    assert not side, len(side)
    return pend

def epi1a_list():
    A=[]; T=76
    for ti,nm in enumerate(('K0','K1')):
        base=ACC[nm]
        for i in range(4):
            t0=T+2*(i%2)
            A+= [f"v_cvt_pk_bf16_f32 v{t0}, v{base+4*i}, v{base+4*i+1}", f"v_cvt_pk_bf16_f32 v{t0+1}, v{base+4*i+2}, v{base+4*i+3}",
                 (f"ds_write2_b32 {vKw}, v{t0}, v{t0+1} offset0:{16*ti+4*i} offset1:{16*ti+4*i+1}",'e1w')]
    for ti,nm in enumerate(('V0','V1')):
        base=ACC[nm]
        for j in range(2):
            t0=T+4+4*j
            for u in range(4): A.append(f"v_cvt_pk_bf16_f32 v{t0+u}, v{base+8*j+2*u}, v{base+8*j+2*u+1}")
            A.append((f"ds_write_b128 {vVw}, v[{t0}:{t0+3}] offset:{VJ*j+512*ti}",'e1w'))
    base=ACC['MX']; t0=T+12
    A+= [f"v_cvt_pk_bf16_f32 v{t0}, v{base}, v{base+1}", f"v_cvt_pk_bf16_f32 v{t0+1}, v{base+2}, v{base+3}",
         (f"ds_write2_b32 {vKw}, v{t0}, v{t0+1} offset0:32 offset1:33",'e1w'),
         f"v_cvt_pk_bf16_f32 v{t0+2}, v{base+4}, v{base+5}", f"v_cvt_pk_bf16_f32 v{t0+3}, v{base+6}, v{base+7}",
         (f"ds_write_b16 {vVt}, v{t0+2}",'e1w'), (f"ds_write_b16_d16_hi {vVt}, v{t0+2} offset:16",'e1w'),
         (f"ds_write_b16 {vVt}, v{t0+3} offset:32",'e1w'), (f"ds_write_b16_d16_hi {vVt}, v{t0+3} offset:48",'e1w')]
    A+= [f"v_and_b32 v{t0}, 1, {vLane}", f"v_cmp_eq_u32 vcc, 0, v{t0}", f"v_mov_b32 v{t0+1}, 0x3f803f80", "s_nop 0",
         f"v_cndmask_b32 v{t0}, 0, v{t0+1}, vcc", f"v_mov_b32 v{t0+1}, v{t0}", f"v_mov_b32 v{t0+2}, v{t0}", f"v_mov_b32 v{t0+3}, v{t0}",
         "s_mov_b64 exec, 0xff", (f"ds_write_b128 {vCw}, v[{t0}:{t0+3}]",'e1w'), "s_mov_b64 exec, -1"]
    return A

def own_presets():
    L=[f"v_mov_b32 v91, 0x3f803f80"]
    for bt in range(4): L.append(f"v_mov_b32 v{OWN+14*bt+5}, v91")
    return L
def own_reads():
    L=[]
    for bt in range(4):
        base=OWN+14*bt
        kb = KB0+KBLK*bt if bt<3 else KB3
        L.append(f"v_add_u32 v88, {kb}, {vKr}"); L.append(f"v_add_u32 v89, {kb}, {vKl}")
        L.append((f"ds_read2_b32 v[{base}:{base+1}], v88 offset0:0 offset1:1",'own'))
        L.append((f"ds_read2_b32 v[{base+2}:{base+3}], v88 offset0:2 offset1:3",'own'))
        L.append((f"ds_read_b32 v{base+4}, v89",'own'))
    for bt in range(4):
        base=OWN+14*bt
        for j in range(2): L.append((f"ds_read_b128 v[{base+6+4*j}:{base+9+4*j}], {vVr} offset:{VB*bt+VJ*j}",'own'))
    return L
def own_store_groups(mod='sc1'):
    Gs=[]
    for bt in range(4):
        base=OWN+14*bt; tag='pubA' if bt<2 else 'pubB'
        Gs.append([f"s_add_u32 {sT0}, {sKVme}, {9216*bt}", (f"buffer_store_dwordx4 v[{base}:{base+3}], {vPk}, {sWS}, {sT0} offen {mod}",tag)])
        Gs.append([f"s_add_u32 {sT0}, {sKVme}, {9216*bt}", f"s_mov_b64 exec, {sLO}", (f"buffer_store_dword v{base+4}, {vPl}, {sWS}, {sT0} offen {mod}",tag), "s_mov_b64 exec, -1"])
        for j in range(2):
            Gs.append([f"s_add_u32 {sT0}, {sKVme}, {9216*bt}", f"s_mov_b64 exec, {sVM}", (f"buffer_store_dwordx4 v[{base+6+4*j}:{base+9+4*j}], {vPv}, {sWS}, {sT0} offen offset:{576*j} {mod}",tag), "s_mov_b64 exec, -1"])
    return Gs

def flag_store_ins(cnt):
    return [f"s_add_u32 {sT1}, {sNONh}, {cnt}", f"v_mov_b32 v2, {sNONl}", f"v_mov_b32 v3, {sT1}", f"v_mov_b32 v4, 0",
            "s_mov_b64 exec, 1", (f"buffer_store_dwordx2 v[2:3], v4, {sWS}, {sFKV} offen sc1", f'kvflag{cnt}'), "s_mov_b64 exec, -1"]

def xt_base():
    return [f"s_lshl_b32 {sT0}, {sB}, 4", f"s_add_u32 {sT0}, {sT0}, {sC}", f"s_lshl_b32 {sT0}, {sT0}, 10", f"s_add_u32 {sT0}, {sT0}, {WS_XT}"]
def xt_store():
    return xt_base()+[f"s_add_u32 {sLFH}, {sXCC}, 1", f"s_lshl_b32 {sLFH}, {sLFH}, 8", f"s_add_u32 {sLFH}, {sLFH}, {sNONh}",
            f"s_lshl_b32 {sT1}, {sG}, 7", f"s_add_u32 {sT0}, {sT0}, {sT1}",
            f"v_mov_b32 v2, {sNONl}", f"v_mov_b32 v3, {sLFH}", f"v_mov_b32 v4, 0",
            "s_mov_b64 exec, 1", (f"buffer_store_dwordx2 v[2:3], v4, {sWS}, {sT0} offen sc1",'xt'), "s_mov_b64 exec, -1"]
def xt_load():
    return xt_base()+[f"v_lshlrev_b32 v2, 7, {vLane}", "s_mov_b64 exec, 0xff",
            (f"buffer_load_dwordx2 v[8:9], v2, {sWS}, {sT0} offen sc1",'xtl'), "s_mov_b64 exec, -1"]
def xt_check(a):
    a.wait(vm='xtl')
    a.i("s_mov_b64 exec, 0xff")
    a.i(f"v_cmp_eq_u32 vcc, {sNONl}, v8"); a.i(f"v_cmp_eq_u32 s[4:5], {sLFH}, v9")
    a.i("s_mov_b64 exec, -1")
    a.i("s_and_b64 s[4:5], s[4:5], vcc"); a.i("s_and_b32 s4, s4, 0xff"); a.i("s_cmp_eq_u32 s4, 0xff")
    a.i(f"s_cselect_b32 {sLOC}, 1, 0")
    if GOPT.get('force_remote'): a.i(f"s_mov_b32 {sLOC}, 0")

def wo_group_for(kbase):
    setup=[f"s_add_u32 {sT1}, {sWV}, {kbase}", f"s_mul_i32 {sT2}, {sT1}, 41472", f"s_mul_i32 {sT3}, {sT1}, 9216"]
    return wo_dma_groups(0,None,setup)

def phase1b(a, pend, opts):
    a.c("---- phase 1b")
    a.stamp('1a_end')
    q=[]; stores=[]; wo=[]
    E2=opts.get('e2',4)
    FAST=opts.get('fastA',1)
    sched={}
    tt=E2+1
    for g in range(16):
        sched.setdefault(tt,[]).append(g)
        tt += 1 if (g<7 and FAST) else 2
    FLAGA=opts.get('flagA',24)
    woaddr=[f"v_mov_b32 {d_}, {s_}" for d_,s_ in zip(vWOm+vWOl+vWOt,vWOtmp)]
    for tau in range(36):
        n,t=divmod(tau,4); b=tau%2
        a.stamp(f'b{tau}_')
        if tau==1:
            a.i("s_barrier"); q+=epi1a_list()
        if tau==E2:
            a.drain(q,1000); a.wait(lg=0); a.i("s_barrier")
            a.emit(own_reads())
        if tau==E2+1:
            a.wait(lg='own')
            a.stamp('pub_start')
            stores=own_store_groups()
            q+=woaddr
        if tau==E2+3:
            a.i("s_barrier")
        if tau==E2+6: wo+=wo_group_for(0); q+=own_presets()
        if tau==15: wo+=wo_group_for(4)
        if tau==27: wo+=wo_group_for(8)
        if tau==FLAGA:
            a.wait(vm='pubA'); get_nonce(a); a.emit(flag_store_ins(2)); a.stamp('flagA')
            if opts.get('olocal'): a.emit(xt_store())
        if t==3 and tau<35:
            a.wait(vm=f'wq{n+1}')
            a.i("s_barrier")
            if (n+1)%3==0: a.i(f"v_add_u32 {vQr}, {SLOT}, {vQr}")
        R = wq_reads(tau+1) if tau<35 else []
        for m,nm in enumerate(('Q0','Q1','Q2')):
            a.wait(lg=[f'q{tau}_{m}'])
            acc=rng('v',ACC[nm],16); c='0' if tau==0 else acc
            a.i(f"v_mfma_f32_32x32x16_bf16 {acc}, {QF(b,m)}, {XF(tau)}, {c}")
            if m<len(R): a.emit(R[m])
            if m==0 and tau in sched:
                for g in sched[tau]:
                    if opts.get('nopub'):
                        for x in stores[g]:
                            if isinstance(x,tuple): a.vm.append(x[1])
                    else: a.emit(stores[g])
            elif q and tau<E2: a.drain(q,7)
            elif pend: a.emit(pend.pop(0))
            elif q: drain_side2(a,q,4)
            elif opts.get('nowo1b'): pass
            elif wo and m==2: a.emit(wo.pop(0))
            elif wo and m==1 and opts.get('wo2',1): a.emit(wo.pop(0))
    assert not pend and not q, (len(pend),len(q))
    opts['_wo_left']=wo
    a.stamp('1b_end')
    a.emit(kv_flag_load(0))
    a.nop(14)
    T=76
    for ti,nm in enumerate(('Q0','Q1','Q2')):
        base=ACC[nm]; ni=4 if ti<2 else 1
        for r in range(4*ni): a.i(f"v_mul_f32 v{base+r}, {sSC}, v{base+r}")
    for ti,nm in enumerate(('Q0','Q1','Q2')):
        base=ACC[nm]; ni=4 if ti<2 else 1
        for i in range(ni):
            t0=T+2*((ti*4+i)%8)
            a.i(f"v_cvt_pk_bf16_f32 v{t0}, v{base+4*i}, v{base+4*i+1}"); a.i(f"v_cvt_pk_bf16_f32 v{t0+1}, v{base+4*i+2}, v{base+4*i+3}")
            if ti==0 and i==0: a.i("s_barrier")
            a.i(f"ds_write2_b32 {vQw}, v{t0}, v{t0+1} offset0:{16*ti+4*i} offset1:{16*ti+4*i+1}",'e2w')
    a.i(f"v_mov_b32 {vT}, 0")
    for i in range(4):
        for r in range(4,8): a.i(f"v_accvgpr_write_b32 a{8*i+r}, {vT}")
    a.wait(lg=0); a.i("s_barrier")
    for i in range(4):
        a.i(f"v_add_u32 v88, {QBASE+KBLK*i}, {vKr}")
        a.i(f"ds_read2_b32 a[{8*i}:{8*i+1}], v88 offset0:0 offset1:1",'qf')
        a.i(f"ds_read2_b32 a[{8*i+2}:{8*i+3}], v88 offset0:2 offset1:3",'qf')
    a.i(f"s_mov_b64 exec, {sLO}")
    for i in range(4):
        a.i(f"v_add_u32 v89, {QBASE+KBLK*i}, {vKl}")
        a.i(f"ds_read_b32 a{8*i+4}, v89",'qf')
    a.i("s_mov_b64 exec, -1")
    a.wait(lg='qf')
    a.i("s_barrier")
    a.stamp('q_ready')

def drain_side2(a, q, n):
    k=0; inexec=False; last=''
    while q and (k<n or inexec or last.startswith('s_cmp') or (q[0] if isinstance(q[0],str) else q[0][0]).startswith('s_cselect')):
        x=q.pop(0)
        txt=x[0] if isinstance(x,tuple) else x
        if txt.startswith('s_mov_b64 exec'): inexec = not txt.endswith('-1')
        if isinstance(x,tuple): a.i(*x)
        else: a.i(x)
        last=txt; k+=1

vFL='v[6:7]'; vFA='v5'
def kv_flag_load(rnd):
    L=[]
    if rnd==0:
        L+= [f"s_cmp_ge_u32 {sC}, 2", f"s_cselect_b32 {sT1}, 2, 1", f"s_lshl_b32 {sT1}, {sT1}, 9",
             f"s_sub_u32 {sT0}, {sFKV}, 512", f"s_sub_u32 {sT1}, {sFKV}, {sT1}",
             f"s_cmp_eq_u32 {sC}, 0", f"s_cselect_b32 {sT0}, {sFKV}, {sT0}", f"s_cselect_b32 {sT1}, {sFKV}, {sT1}",
             f"v_mov_b32 v8, {sT0}", f"v_mov_b32 v9, {sT1}", f"v_cmp_eq_u32 vcc, 0, {vLane}", "s_nop 1",
             f"v_cndmask_b32 {vFA}, v9, v8, vcc"]
    L+= ["s_mov_b64 exec, 3", (f"buffer_load_dwordx2 {vFL}, {vFA}, {sWS}, 0 offen sc1", f'fl{rnd}'), "s_mov_b64 exec, -1"]
    return L

def kv_flag_check(a, rnd, need):
    a.wait(vm=f'fl{rnd}')
    a.i(f"s_mov_b32 {sCNT}, 200000")
    a.label(f"L_chk{rnd}")
    a.i(f"s_cmp_eq_u32 {sC}, 0"); a.i(f"s_cbranch_scc1 L_ok{rnd}")
    a.i("s_mov_b64 exec, 3")
    a.i(f"v_subrev_u32 v8, {sNONh}, v7")
    a.i(f"v_cmp_eq_u32 vcc, {sNONl}, v6")
    a.i(f"v_cmp_le_u32 s[4:5], {need}, v8")
    a.i(f"v_cmp_ge_u32 s[6:7], 4, v8")
    a.i("s_mov_b64 exec, -1")
    a.i("s_and_b64 s[4:5], s[4:5], vcc"); a.i("s_and_b64 s[4:5], s[4:5], s[6:7]"); a.i("s_and_b32 s4, s4, 3")
    a.i("s_cmp_eq_u32 s4, 3"); a.i(f"s_cbranch_scc1 L_ok{rnd}")
    a.i("s_mov_b64 exec, 3")
    a.i(f"buffer_load_dwordx2 {vFL}, {vFA}, {sWS}, 0 offen sc1", cond=True)
    a.i("s_mov_b64 exec, -1")
    a.i("s_waitcnt vmcnt(0)")
    a.i(f"s_sub_u32 {sCNT}, {sCNT}, 1"); a.i(f"s_cmp_lg_u32 {sCNT}, 0"); a.i(f"s_cbranch_scc1 L_chk{rnd}")
    a.label(f"L_ok{rnd}")
    a.stamp(f'chk{rnd}')

def wo_addr(a):
    L=vLane
    a.i(f"s_mul_i32 s6, {sNQ}, 288")
    a.i(f"v_lshrrev_b32 v4, 4, {L}")
    a.i(f"v_and_b32 v5, 15, {L}")
    for par in range(2):
        a.i(f"v_add_u32 v6, {4*par}, v4"); a.i(f"v_lshlrev_b32 v6, 1, v6"); a.i(f"v_xor_b32 v6, v5, v6")
        a.i(f"v_lshlrev_b32 v6, 4, v6"); a.i(f"v_add_u32 v6, s6, v6")
        a.i(f"v_mul_u32_u24 v7, {XROW}, v4"); a.i(f"v_add_u32 {vWOm[par]}, v6, v7")
        a.i(f"v_lshrrev_b32 v7, 1, v4"); a.i(f"v_mul_u32_u24 v7, 18, v7"); a.i(f"v_and_b32 v8, 1, v4"); a.i(f"v_add_u32 v7, v7, v8")
        a.i(f"v_mul_u32_u24 v7, {XROW}, v7"); a.i(f"v_add_u32 {vWOl[par]}, v6, v7")
    a.i(f"v_lshrrev_b32 v4, 1, {L}")
    a.i(f"v_and_b32 v5, 1, {L}"); a.i(f"v_lshlrev_b32 v5, 4, v5"); a.i(f"v_add_u32 v5, 256, v5"); a.i(f"v_add_u32 v5, s6, v5")
    a.i(f"v_bfe_u32 v6, v4, 2, 2")
    a.i(f"v_and_b32 v7, 3, v4"); a.i(f"v_lshrrev_b32 v8, 4, v4")
    a.i(f"v_lshrrev_b32 v2, 1, v6"); a.i(f"v_mul_u32_u24 v2, 18, v2"); a.i(f"v_add_u32 v2, v2, v7"); a.i(f"v_lshl_add_u32 v2, v8, 3, v2")
    a.i(f"v_and_b32 v3, 1, v6"); a.i(f"v_lshl_add_u32 v2, v3, 2, v2"); a.i(f"v_mul_u32_u24 v2, {XROW}, v2"); a.i(f"v_add_u32 {vWOt[0]}, v2, v5")
    a.i(f"v_lshl_add_u32 v7, v8, 2, v7")
    a.i(f"v_lshrrev_b32 v2, 1, v7"); a.i(f"v_lshl_add_u32 v2, v6, 2, v2"); a.i(f"v_mul_u32_u24 v2, 18, v2")
    a.i(f"v_and_b32 v3, 1, v7"); a.i(f"v_add3_u32 v2, v2, v3, 16"); a.i(f"v_mul_u32_u24 v2, {XROW}, v2"); a.i(f"v_add_u32 {vWOt[1]}, v2, v5")

def wo_dma_groups(kap, slot, uniform_setup):
    Gs=[]
    left = kap>=16
    for e in range(8):
        if left: const=((4*(e&3)+2*(e>>2))*18+16)*XROW
        else: const=(((e&3)>>1)*18+8*(e>>2)+4*(e&1))*XROW
        pre = list(uniform_setup) if e==0 else []
        if e%4==0: pre += [f"s_add_u32 m0, {sT3}, {4096*(e//4)}"]
        voff=(vWOl if left else vWOm)[e&1]
        Gs.append(pre+[f"s_add_u32 {sWOs}, {sT2}, {const-1024*(e%4)}" if const-1024*(e%4)>=0 else f"s_sub_u32 {sWOs}, {sT2}, {1024*(e%4)-const}",
                       (f"buffer_load_dwordx4 {voff}, {sWO}, {sWOs} offen offset:{1024*(e%4)} lds",'wo')])
    Gs.append([f"s_add_u32 m0, {sT3}, 8192", "s_nop 0", (f"buffer_load_dwordx4 {vWOt[1 if left else 0]}, {sWO}, {sT2} offen lds",'wo')])
    return Gs

def wo_prefetch_groups():
    Gs=[]
    for it in range(4):
        setup=[f"s_add_u32 {sT1}, {sWV}, {4*it}", f"s_mul_i32 {sT2}, {sT1}, 41472", f"s_mul_i32 {sT3}, {sT1}, 9216"]
        Gs+=wo_dma_groups(0,None,setup)
    return Gs

def wo_left_groups(L_, ldsbase, regs=None):
    vl0,vl1,vt = regs or (vWOl[0],vWOl[1],vWOt[1])
    g0=L_*16*18*XROW
    setup=[f"s_lshl_b32 {sT1}, {sWV}, 1", f"s_and_b32 {sT1}, {sT1}, 3", f"s_lshl_b32 {sT1}, {sT1}, 2",
           f"s_lshr_b32 {sT2}, {sWV}, 1", f"s_lshl_b32 {sT2}, {sT2}, 1", f"s_add_u32 {sT1}, {sT1}, {sT2}",
           f"s_mul_i32 {sT1}, {sT1}, {18*XROW}", f"s_add_u32 {sT2}, {sT1}, {g0+16*XROW}",
           f"s_lshl_b32 {sT1}, {sWV}, 11", f"s_add_u32 m0, {sT1}, {ldsbase}", "s_nop 0"]
    G0=setup+[(f"buffer_load_dwordx4 {vl0}, {sWO}, {sT2} offen lds",'wo')]
    G1=[f"s_add_u32 {sT2}, {sT2}, {4*18*XROW-1024}", (f"buffer_load_dwordx4 {vl1}, {sWO}, {sT2} offen offset:1024 lds",'wo')]
    G2=[f"s_mov_b32 {sT2}, {g0}", f"s_mov_b32 m0, {ldsbase+8192}", "s_nop 0", (f"buffer_load_dwordx4 {vt}, {sWO}, {sT2} offen lds",'wo')]
    return [G0,G1,G2]

def halo_load_groups(hb):
    base=HALO+14*hb; src=sKV2 if hb<4 else sKV1; bt=hb%4; tg=f'h{hb}'
    return [[f"s_add_u32 {sT0}, {src}, {9216*bt}",
             (f"buffer_load_dwordx4 a[{base}:{base+3}], {vPk}, {sWS}, {sT0} offen sc1", tg),
             (f"buffer_load_dword a{base+4}, {vPl}, {sWS}, {sT0} offen sc1", tg),
             f"s_mov_b64 exec, {sVM}",
             (f"buffer_load_dwordx4 a[{base+6}:{base+9}], {vPv}, {sWS}, {sT0} offen sc1", tg),
             (f"buffer_load_dwordx4 a[{base+10}:{base+13}], {vPv}, {sWS}, {sT0} offen offset:576 sc1", tg),
             "s_mov_b64 exec, -1"]]

def get_nonce(a):
    a.i(f"v_readfirstlane_b32 {sNONl}, v48"); a.i(f"v_readfirstlane_b32 {sNONh}, v49"); a.i("s_nop 1")
    a.i(f"s_or_b32 {sT0}, {sNONl}, {sNONh}"); a.i(f"s_cmp_lg_u32 {sT0}, 0"); a.i("s_cbranch_scc1 L_have_nonce")
    a.i(f"s_mov_b32 {sCNT}, 100000")
    a.label("L_nonce_poll")
    a.i(f"v_mov_b32 {vT}, 0")
    a.i(f"buffer_load_dwordx2 {vNON}, {vT}, {sDBG}, 0 offen sc1", cond=True)
    a.i("s_waitcnt vmcnt(0)")
    a.i(f"v_readfirstlane_b32 {sNONl}, v48"); a.i(f"v_readfirstlane_b32 {sNONh}, v49"); a.i("s_nop 1")
    a.i(f"s_or_b32 {sT0}, {sNONl}, {sNONh}"); a.i(f"s_cmp_lg_u32 {sT0}, 0"); a.i("s_cbranch_scc1 L_have_nonce")
    a.i("s_sleep 2"); a.i(f"s_sub_u32 {sCNT}, {sCNT}, 1"); a.i(f"s_cmp_lg_u32 {sCNT}, 0"); a.i("s_cbranch_scc1 L_nonce_poll")
    a.label("L_have_nonce")

def kv_regs(jb): return ('v', OWN+14*jb) if jb>=0 else ('a', HALO+14*(jb+8))
HORDER=[-4,-3,-8,-7,-2,-1,-6,-5]
def tile_list():
    T=[(i,bt) for i in range(4) for bt in range(i+1)]
    for jb in HORDER:
        for i in range(4):
            if i-jb<=8: T.append((i,jb))
    return T

def norm_block(i):
    O=OACC+16*i; t=84; L=[]
    L.append(f"v_rcp_f32 v{t}, v{O+10}")
    L.append(f"v_cmp_nle_f32 vcc, v252, v{O+10}")
    L.append(f"v_cmp_nge_f32 s[4:5], v253, v{O+10}")
    for r in range(10): L.append(f"v_mul_f32 v{O+r}, v{t}, v{O+r}")
    L.append(f"s_or_b64 {sBAD}, {sBAD}, vcc"); L.append(f"s_or_b64 {sBAD}, {sBAD}, s[4:5]")
    L.append(f"v_pk_add_f32 v[{t+2}:{t+3}], v[{O}:{O+1}], v[{O+2}:{O+3}]")
    L.append(f"v_pk_add_f32 v[{t+4}:{t+5}], v[{O+4}:{O+5}], v[{O+6}:{O+7}]")
    L.append(f"v_pk_add_f32 v[{t+2}:{t+3}], v[{t+2}:{t+3}], v[{O+8}:{O+9}]")
    L.append(f"v_pk_add_f32 v[{t+2}:{t+3}], v[{t+2}:{t+3}], v[{t+4}:{t+5}]")
    L.append(f"v_add_f32 v{t+2}, v{t+2}, v{t+3}")
    for u in range(5): L.append(f"v_cvt_pk_bf16_f32 v{O+u}, v{O+2*u}, v{O+2*u+1}")
    L.append(f"v_cmp_class_f32 vcc, v{t+2}, v254")
    L.append(f"s_add_u32 {sT0}, {sOM}, {i*32*OUTROW}"); L.append(f"s_add_u32 {sT1}, {sOL}, {i*32*OUTROW}")
    L.append(f"s_or_b64 {sBAD}, {sBAD}, vcc")
    L.append(('OSTORE',i))
    return L

def emit_ostore(a, i):
    O=OACC+16*i
    if not GOPT.get('olocal'):
        a.i(f"buffer_store_dwordx4 v[{O}:{O+3}], {vPk}, {sOUT}, {sT0} offen sc1", 'ost')
        a.i(f"s_mov_b64 exec, {sLO}")
        a.i(f"buffer_store_dword v{O+4}, {vOl}, {sOUT}, {sT1} offen sc1", 'ost')
        a.i(f"s_mov_b64 exec, -1")
        return
    a.i(f"s_cmp_eq_u32 {sLOC}, 1"); a.i(f"s_cbranch_scc1 L_osl{i}")
    a.i(f"buffer_store_dwordx4 v[{O}:{O+3}], {vPk}, {sOUT}, {sT0} offen sc1", 'x', True)
    a.i(f"s_mov_b64 exec, {sLO}")
    a.i(f"buffer_store_dword v{O+4}, {vOl}, {sOUT}, {sT1} offen sc1", 'x', True)
    a.i(f"s_mov_b64 exec, -1")
    a.i(f"s_branch L_ose{i}")
    a.label(f"L_osl{i}")
    a.i(f"buffer_store_dwordx4 v[{O}:{O+3}], {vPk}, {sOUT}, {sT0} offen", 'ost')
    a.i(f"s_mov_b64 exec, {sLO}")
    a.i(f"buffer_store_dword v{O+4}, {vOl}, {sOUT}, {sT1} offen", 'ost')
    a.i(f"s_mov_b64 exec, -1")
    a.label(f"L_ose{i}")

def o_pretouch():
    L=vLane
    return [f"v_lshrrev_b32 v2, 3, {L}", f"v_mul_u32_u24 v2, {32*OUTROW}, v2", f"v_and_b32 v3, 7, {L}", f"v_lshl_add_u32 v2, v3, 7, v2",
            f"v_add_u32 v2, {sOM}, v2",
            f"v_bfe_u32 v3, {L}, 2, 2", f"v_mul_u32_u24 v3, {32*OUTROW}, v3", f"v_and_b32 v4, 3, {L}", f"v_mul_u32_u24 v4, {OUTROW}, v4",
            f"v_add3_u32 v3, v3, v4, {sOL}",
            f"v_cmp_le_u32 vcc, 32, {L}", f"s_lshl_b32 {sT0}, {sG}, 2", f"s_add_u32 {sT0}, {sT0}, {sWV}", f"v_cndmask_b32 v2, v2, v3, vcc",
            "s_mov_b32 s4, -1", "s_mov_b32 s5, 0xffff", "s_mov_b64 exec, s[4:5]",
            (f"buffer_load_dword v255, v2, {sOUT}, 0 offen",'touch'), "s_mov_b64 exec, -1",
            f"s_lshl_b32 {sT0}, {sT0}, 7", f"s_add_u32 {sT0}, {sT0}, {sFO}",
            f"v_mul_u32_u24 v2, {WS_FWL-WS_FOL}, {L}", f"v_add_u32 v2, {WS_FOL-WS_FO}, v2",
            "s_mov_b64 exec, 3", (f"buffer_load_dword v255, v2, {sWS}, {sT0} offen",'touch'), "s_mov_b64 exec, -1"]

def attention(a, opts):
    a.c("---- attention")
    T=tile_list(); n=len(T)
    first={}; last={}; firstuse={}
    for k,(i,jb) in enumerate(T):
        first.setdefault(i,k); last[i]=k; firstuse.setdefault(jb,k)
    Sreg=lambda k: (S0 if k%2==0 else S1)
    Preg=lambda k: (P0 if k%2==0 else P1)
    def qk(k):
        i,jb=T[k]; p,base=kv_regs(jb); S=rng('v',Sreg(k),16)
        return [f"v_mfma_f32_32x32x16_bf16 {S}, {rng(p,base,4)}, a[{8*i}:{8*i+3}], 0",
                f"v_mfma_f32_32x32x16_bf16 {S}, {rng(p,base+4,4)}, a[{8*i+4}:{8*i+7}], {S}"]
    def pv(k):
        i,jb=T[k]; p,base=kv_regs(jb); O=rng('v',OACC+16*i,16); P=Preg(k)
        c0='0' if k==first[i] else O
        return [f"v_mfma_f32_32x32x16_bf16 {O}, {rng(p,base+6,4)}, v[{P}:{P+3}], {c0}",
                f"v_mfma_f32_32x32x16_bf16 {O}, {rng(p,base+10,4)}, v[{P+4}:{P+7}], {O}"]
    waited=set()
    wo=list(opts.get('_wo_left',[]))+wo_group_for(12)+wo_left_groups(0,16*9216)
    WO_START=opts.get('wo_start',0)
    CHK0=opts.get('chk0',0); FLAGB=opts.get('flagB',3); FL1=opts.get('fl1',9); CHK1=opts.get('chk1',14)
    WO_PAUSE=opts.get('wo_pause',1)
    a.i(f"v_mov_b32 v254, 0x207")
    q0=qk(0); a.i(q0[0]); a.i(q0[1])
    extra=[]; hq=[]
    for k in range(n+1):
        a.stamp(f't{k}_')
        if k==CHK0:
            kv_flag_check(a,0,2)
            for jb in HORDER[:4]:
                hq += halo_load_groups(jb+8)
        if k==FLAGB:
            a.wait(vm='pubB'); a.emit(flag_store_ins(4))
        if k==FL1: a.emit(kv_flag_load(1))
        if opts.get('olocal') and k==opts.get('pre_at',19): a.emit(o_pretouch())
        if opts.get('olocal') and k==opts.get('xtl',24): a.emit(xt_load())
        if opts.get('olocal') and k==opts.get('xtc',30): xt_check(a)
        if k==CHK1:
            kv_flag_check(a,1,4)
            for jb in HORDER[4:]:
                hq += halo_load_groups(jb+8)
        mf=[]
        if k+1<n:
            i,jb=T[k+1]
            if jb<0 and jb not in waited:
                if not waited: a.stamp('own_done')
                assert any(t==f'h{jb+8}' for t in a.vm), jb
                waited.add(jb); a.wait(vm=f'h{jb+8}')
                if len(waited)==1: a.stamp('h0_landed')
            mf+=qk(k+1)
        else: mf+=[None,None]
        mf += pv(k-1) if k>=1 else [None,None]
        if k==0: a.nop(12)
        S=Sreg(k); P=Preg(k)
        i,jb=T[k] if k<n else (None,None)
        for seg in range(4):
            pk,ps = (k,seg-1) if seg>0 else (k-1,3)
            if pk>=0 and pk<n:
                Sp=Sreg(pk); Pp=Preg(pk); ip,jp=T[pk]
                for u in (2*ps,2*ps+1): a.i(f"v_cvt_pk_bf16_f32 v{Pp+u}, v{Sp+2*u}, v{Sp+2*u+1}")
                if jp==ip or jp==ip-8:
                    M=MASKD if jp==ip else MASKF
                    for u in (2*ps,2*ps+1): a.i(f"v_and_b32 v{Pp+u}, v{M+u}, v{Pp+u}")
            if k==n and seg==2: a.nop(2)
            if mf[seg]: a.i(mf[seg])
            if k<n:
                for e in range(4): a.i(f"v_exp_f32 v{S+4*seg+e}, v{S+4*seg+e}")
            a.drain(extra, 6 if k<n else 1000)
            if hq and seg in (0,2): a.emit(hq.pop(0))
            paused = WO_PAUSE and ((CHK0<=k<10) or (CHK1<=k<CHK1+9))
            if k>=WO_START and wo and not paused and seg in (0,1,3): a.emit(wo.pop(0))
        if k>=1:
            ib=T[k-1][0]
            if last[ib]==k-1:
                if k==n:
                    a.nop(14); a.emit(norm_block(ib))
                else: extra+=["s_nop 1"]+norm_block(ib)
    assert not extra
    for g in wo: a.emit(g)
    a.stamp('att_end')

OF=16
DACC=88
AFV=124
vAr=[f'v{2+t}' for t in range(9)]
vOf='v11'; vOut='v12'; vOf2='v95'

def phase3(a, opts):
    a.c("---- phase 3")
    L=vLane
    a.i(f"v_mov_b32 v88, {vWOl[0]}"); a.i(f"v_mov_b32 v89, {vWOl[1]}"); a.i(f"v_mov_b32 v90, {vWOt[1]}")
    a.i(f"v_lshrrev_b32 v13, 2, {L}")
    a.i(f"v_and_b32 v14, 7, v13"); a.i(f"v_lshlrev_b32 v14, 5, v14")
    a.i(f"v_lshl_add_u32 v14, v13, 8, v14")
    a.i(f"v_and_b32 v15, 3, {L}"); a.i(f"v_lshl_add_u32 v14, v15, 3, v14")
    for t in range(8): a.i(f"v_xor_b32 {vAr[t]}, {32*t}, v14")
    a.i(f"v_lshlrev_b32 v13, 5, v13"); a.i(f"v_lshl_add_u32 v13, v15, 3, v13"); a.i(f"v_add_u32 {vAr[8]}, 8192, v13")
    a.i(f"v_and_b32 v13, 15, {L}"); a.i(f"v_lshrrev_b32 v14, 4, {L}")
    a.i(f"s_and_b32 s6, {sWV}, 1"); a.i(f"s_lshl_b32 s6, s6, 8")
    a.i(f"v_lshl_add_u32 v15, v13, 4, s6")
    a.i(f"v_and_b32 v93, 1, v14"); a.i(f"v_lshl_add_u32 {vOf}, v93, 9, v15"); a.i(f"v_lshrrev_b32 v93, 1, v14")
    a.i(f"v_mul_u32_u24 v93, {OUTROW}, v93"); a.i(f"v_add_u32 {vOf}, {vOf}, v93")
    a.i(f"v_lshrrev_b32 v93, 7, v15"); a.i(f"v_lshl_add_u32 v93, v14, 2, v93"); a.i(f"v_mul_u32_u24 v93, {OUTROW}, v93")
    a.i(f"v_and_b32 v94, 0x70, v15"); a.i(f"v_add_u32 {vOf2}, v93, v94")
    a.i(f"v_mul_u32_u24 v15, {OUTROW}, v13"); a.i(f"v_lshl_add_u32 {vOut}, v14, 3, v15")
    a.wait(vm='wo')
    a.i("s_barrier")
    a.stamp('wo_ready')
    if opts.get('dumpwo'):
        a.i("s_cmp_lg_u32 s2, 0"); a.i("s_cbranch_scc1 L_nodump")
        a.i("v_lshlrev_b32 v13, 4, v0")
        for it in range(39):
            a.i(f"ds_read_b128 v[124:127], v13 offset:0")
            a.i("s_waitcnt lgkmcnt(0)")
            a.i(f"v_add_u32 v14, {WS_DBG+0x100000}, v13")
            a.i(f"buffer_store_dwordx4 v[124:127], v14, {sWS}, 0 offen", cond=True)
            a.i("s_waitcnt vmcnt(0)")
            a.i("v_add_u32 v13, 4096, v13")
        a.label("L_nodump"); a.lg_clear()
    def frag_reads(kap, dst):
        slot=kap if kap<17 else 0
        R=[]
        for t in range(9):
            p,r=dst(kap,t)
            off=(slot%7)*9216
            hoff=4096 if t<8 else 512
            R.append([(f"ds_read_b64_tr_b16 {p}[{r+2*h}:{r+2*h+1}], {vAr[t]} offset:{off+hoff*h}", f'a{kap}_{t}') for h in range(2)])
        return R
    NA=7
    def dst(kap,t):
        if kap<NA: return 'a', (kap*9+t)*4
        idx=((kap-NA)*9+t)%32
        return 'v', AFV+idx*4
    bump=lambda: [f"v_add_u32 {vAr[t]}, {7*9216}, {vAr[t]}" for t in range(9)]
    def oflag():
        a.i(f"s_lshl_b32 {sT0}, {sG}, 2"); a.i(f"s_add_u32 {sT0}, {sT0}, {sWV}"); a.i(f"s_lshl_b32 {sT0}, {sT0}, 7"); a.i(f"s_add_u32 {sT0}, {sT0}, {sFO}")
        a.i(f"v_mov_b32 v14, {sNONl}"); a.i(f"v_mov_b32 v13, 0")
        if not opts.get('olocal'):
            a.i(f"v_mov_b32 v15, {sNONh}"); a.i("s_mov_b64 exec, 1")
            a.i(f"buffer_store_dwordx2 v[14:15], v13, {sWS}, {sT0} offen sc1", 'oflag'); a.i("s_mov_b64 exec, -1")
            return
        a.i(f"s_cmp_eq_u32 {sLOC}, 1"); a.i("s_cbranch_scc1 L_ofl")
        a.i(f"v_mov_b32 v15, {sNONh}")
        a.i("s_mov_b64 exec, 1")
        a.i(f"buffer_store_dwordx2 v[14:15], v13, {sWS}, {sT0} offen sc1", 'x', True)
        a.i("s_branch L_ofe")
        a.label("L_ofl")
        a.i(f"s_add_u32 {sT0}, {sT0}, {WS_FOL-WS_FO}")
        a.i(f"v_mov_b32 v15, {sLFH}")
        a.i("s_mov_b64 exec, 1")
        a.i(f"buffer_store_dwordx2 v[14:15], v13, {sWS}, {sT0} offen", tag='oflag')
        a.label("L_ofe")
        a.i("s_mov_b64 exec, -1")
    LF_AT=opts.get('lf_at',1)
    for kap in range(NA):
        if kap==LF_AT:
            a.wait(vm='ost'); oflag(); a.stamp('o_lflag')
        for grp in frag_reads(kap,dst): a.emit(grp)
        if kap%2==1: a.wait(lg=8)
    a.emit(bump())
    for kap in range(NA,NA+3):
        for grp in frag_reads(kap,dst): a.emit(grp)
    a.wait(lg=0)
    a.i("s_barrier")
    for g in wo_left_groups(1,0,('v88','v89','v90')): a.emit(g)
    a.stamp('frags_pre')
    a.i(f"v_and_b32 v13, 31, {L}"); a.i(f"v_lshlrev_b32 v13, 7, v13")
    a.i(f"v_mov_b32 v91, {sNONh}")
    if opts.get('olocal'):
        a.i(f"v_add_u32 v14, {WS_FOL-WS_FO}, v13"); a.i(f"v_cmp_le_u32 vcc, 32, {L}")
        a.i(f"v_mov_b32 v92, {sLFH}"); a.i("s_nop 0")
        a.i(f"v_cndmask_b32 v13, v13, v14, vcc"); a.i(f"v_cndmask_b32 v91, v91, v92, vcc")
    a.i(f"s_mov_b32 {sCNT}, 200000")
    a.label("L_opoll")
    if not opts.get('olocal'): a.i(f"s_mov_b64 exec, {sLO}")
    a.i(f"buffer_load_dwordx2 v[14:15], v13, {sWS}, {sFO} offen sc1", cond=True)
    a.i("s_waitcnt vmcnt(0)")
    a.i(f"v_cmp_eq_u32 vcc, {sNONl}, v14"); a.i(f"v_cmp_eq_u32 s[4:5], v91, v15")
    a.i("s_mov_b64 exec, -1")
    a.i("s_and_b64 s[4:5], s[4:5], vcc"); a.i("s_or_b32 s4, s4, s5"); a.i("s_cmp_eq_u32 s4, -1"); a.i("s_cbranch_scc1 L_opoll_done")
    a.i(f"s_sub_u32 {sCNT}, {sCNT}, 1"); a.i(f"s_cmp_lg_u32 {sCNT}, 0"); a.i("s_cbranch_scc1 L_opoll")
    a.label("L_opoll_done")
    a.stamp('opoll_done')
    KORD=[7,8,9]+list(range(7))+list(range(10,18))
    for kap in KORD:
        if kap<16:
            a.i(f"s_add_u32 {sT0}, {sPOM}, {2*OUTROW*kap}")
            a.i(f"buffer_load_dwordx4 v[{OF+4*kap}:{OF+4*kap+3}], {vOf}, {sOUT}, {sT0} offen sc1", tag=f'of{kap}')
        else:
            a.i(f"s_add_u32 {sT0}, {sPOL}, {16*OUTROW*(kap-16)}")
            a.i(f"buffer_load_dwordx4 v[{OF+4*kap}:{OF+4*kap+3}], {vOf2}, {sOUT}, {sT0} offen sc1", tag=f'of{kap}')
    rq=[]
    for kap in range(NA+3,18):
        R=frag_reads(kap,dst)
        for t in range(9): rq.append((kap,t,R[t]))
    issued=(NA+3-NA)*9
    consumed=0; mcount=0
    def war_store():
        a.wait(vm=f'of{KORD[-1]}')
        a.i(f"s_lshl_b32 {sT0}, {sG}, 2"); a.i(f"s_add_u32 {sT0}, {sT0}, {sWV}"); a.i(f"s_lshl_b32 {sT0}, {sT0}, 7"); a.i(f"s_add_u32 {sT0}, {sT0}, {sFO}")
        a.i(f"v_mov_b32 v252, {sNONl}"); a.i(f"v_mov_b32 v254, 0")
        a.i(f"s_add_u32 {sT0}, {sT0}, {WS_FW-WS_FO}")
        if opts.get('olocal'):
            a.i(f"s_cmp_eq_u32 {sLOC}, 1"); a.i("s_cbranch_scc1 L_wl")
        a.i(f"v_mov_b32 v253, {sNONh}"); a.i("s_mov_b64 exec, 1")
        a.i(f"buffer_store_dwordx2 v[252:253], v254, {sWS}, {sT0} offen sc1", 'war' if not opts.get('olocal') else 'x', bool(opts.get('olocal')))
        if opts.get('olocal'):
            a.i("s_branch L_we"); a.label("L_wl")
            a.i(f"s_add_u32 {sT0}, {sT0}, {WS_FWL-WS_FW}"); a.i(f"v_mov_b32 v253, {sLFH}"); a.i("s_mov_b64 exec, 1")
            a.i(f"buffer_store_dwordx2 v[252:253], v254, {sWS}, {sT0} offen", 'war')
            a.label("L_we")
        a.i("s_mov_b64 exec, -1")
    def war_addr():
        a.i(f"v_and_b32 v13, 15, {L}"); a.i(f"s_lshl_b32 {sT0}, {sRH}, 4"); a.i(f"v_add_u32 v13, {sT0}, v13"); a.i(f"v_lshlrev_b32 v13, 7, v13")
        a.i(f"v_add_u32 v13, {WS_FW-WS_FO}, v13"); a.i(f"v_add_u32 v14, {WS_FWL-WS_FW}, v13"); a.i(f"v_cmp_le_u32 vcc, 16, {L}")
        a.i(f"v_mov_b32 v15, {sNONh}"); a.i(f"v_mov_b32 v1, {sLFH if opts.get('olocal') else sNONh}")
        a.i(f"v_cndmask_b32 v13, v13, v14, vcc"); a.i(f"v_cndmask_b32 v15, v15, v1, vcc")
    def war_load(cond=False):
        a.i(f"s_mov_b64 exec, {sLO}"); a.i(f"buffer_load_dwordx2 v[0:1], v13, {sWS}, {sFO} offen sc1", 'warl', cond); a.i("s_mov_b64 exec, -1")
    base_slot=7
    for kap in KORD:
        a.wait(vm=f'of{kap}')
        for t in range(9):
            p,r=dst(kap,t)
            if kap>=NA:
                n_=a.lg_n(f'a{kap}_{t}')
                if n_ is not None: a.wait(lg=f'a{kap}_{t}')
            acc=rng('v',DACC+4*t,4); c='0' if kap==KORD[0] else acc
            a.i(f"v_mfma_f32_16x16x32_bf16 {acc}, {p}[{r}:{r+3}], v[{OF+4*kap}:{OF+4*kap+3}], {c}")
            if kap>=NA: consumed+=1
            mcount+=1
            if mcount==opts.get('war_st',70): war_store()
            if mcount==opts.get('war_ld',125): war_addr(); war_load()
            if rq and issued-consumed<31:
                k2,t2,ins=rq[0]
                if k2==14 and t2==0 and base_slot==7:
                    a.emit(bump()); base_slot=14
                if k2==17 and t2==0:
                    a.i("s_waitcnt vmcnt(0)"); a.i("s_barrier")
                    a.emit([f"v_subrev_u32 {vAr[tt]}, {14*9216}, {vAr[tt]}" for tt in range(9)])
                rq.pop(0); a.emit(ins); issued+=1
    assert not rq
    a.stamp('p3_mfma_end')
    a.wait(vm='warl')
    a.i(f"s_mov_b32 {sCNT}, 200000")
    a.label("L_wchk")
    a.i(f"s_mov_b64 exec, {sLO}")
    a.i(f"v_cmp_eq_u32 vcc, {sNONl}, v0"); a.i(f"v_cmp_eq_u32 s[4:5], v15, v1")
    a.i("s_mov_b64 exec, -1")
    a.i("s_and_b64 s[4:5], s[4:5], vcc"); a.i("s_lshr_b32 s5, s4, 16"); a.i("s_or_b32 s4, s4, s5"); a.i("s_and_b32 s4, s4, 0xffff")
    a.i("s_cmp_eq_u32 s4, 0xffff"); a.i("s_cbranch_scc1 L_wok")
    war_load(True); a.i("s_waitcnt vmcnt(0)")
    a.i(f"s_sub_u32 {sCNT}, {sCNT}, 1"); a.i(f"s_cmp_lg_u32 {sCNT}, 0"); a.i("s_cbranch_scc1 L_wchk")
    a.label("L_wok")
    a.nop(10)
    for t in range(9):
        d=DACC+4*t
        a.i(f"v_cvt_pk_bf16_f32 v{d}, v{d}, v{d+1}"); a.i(f"v_cvt_pk_bf16_f32 v{d+1}, v{d+2}, v{d+3}")
        a.i(f"buffer_store_dwordx2 v[{d}:{d+1}], {vOut}, {sOUT}, {sOUTB} offen offset:{32*t} {opts.get('outmod','')}")
    a.i("s_waitcnt vmcnt(0)")

def kd(name, vgpr, accum, sgpr=102):
    return f""".section .rodata,"a"
.p2align 6
.amdhsa_kernel {name}
  .amdhsa_next_free_vgpr {vgpr}
  .amdhsa_next_free_sgpr {sgpr}
  .amdhsa_accum_offset {accum}
  .amdhsa_group_segment_fixed_size 0
  .amdhsa_kernarg_size 72
  .amdhsa_user_sgpr_count 2
  .amdhsa_user_sgpr_kernarg_segment_ptr 1
  .amdhsa_system_sgpr_workgroup_id_x 1
.end_amdhsa_kernel
"""
HEADER = """; Kernarg layout (72 bytes, ptrs only, base s[0:1]):
"""
def build(opts):
    ORDER_MODE[0]=opts.get('order','own'); GOPT.update(opts)
    a=G()
    if opts.get('stamps'):
        a.stamps=[]
        a.sel = opts['sel'].split(',') if 'sel' in opts else ['ch0_landed','1a_end','1b_end','q_ready','poll_done','own_done','att_end','wo_ready','frags_pre','opoll_done','p3_mfma_end','drained']
    prologue(a,opts)
    g0=dma_chunk_groups(0,0)
    for g in g0[:4]: a.emit(g)
    setupA(a,opts)
    setupB0(a,opts)
    for g in g0[4:]: a.emit(g)
    if opts.get('xtouch',1):
        L=vLane
        a.i(f"v_mul_u32_u24 v2, 7282, {L}"); a.i("v_lshrrev_b32 v2, 16, v2")
        a.i(f"v_mul_u32_u24 v3, 9, v2"); a.i(f"v_sub_u32 v3, {L}, v3"); a.i("v_min_u32 v2, 3, v2")
        a.i(f"s_lshl_b32 s5, {sC}, 7"); a.i(f"s_lshl_b32 s6, {sG}, 4"); a.i("s_add_u32 s5, s5, s6"); a.i(f"s_lshl_b32 s6, {sWV}, 2"); a.i("s_add_u32 s5, s5, s6")
        a.i(f"v_add_u32 v2, s5, v2"); a.i(f"v_mul_u32_u24 v2, {XROW}, v2"); a.i(f"v_lshl_add_u32 v2, v3, 7, v2")
        a.i("s_mov_b32 s6, -1"); a.i("s_mov_b32 s7, 15")
        a.emit(["s_mov_b64 exec, s[6:7]", (f"buffer_load_dword v255, v2, {sX}, 0 offen",'touch'), "s_mov_b64 exec, -1"])
    if opts.get('wotouch',2)==2: touch_wo(a)
    a.stamp('p_ch0')
    for g in dma_chunk_groups(1,1): a.emit(g)
    a.stamp('p_ch1')
    rec=Rec(); setupB(rec,opts)
    rec2=Rec(); wo_addr(rec2)
    ren=dict(zip(vWOm+vWOl+vWOt,vWOtmp))
    def rn(x):
        for k_,v_ in ren.items(): x=x.replace(f" {k_},",f" {v_},")
        return x
    opts['_side']=rec.l+[rn(x) for x in rec2.l]
    pend=dma_chunk_groups(2,2)
    pend=phase1a(a,opts,pend)
    phase1b(a,pend,opts)
    attention(a,opts)
    phase3(a,opts)
    a.stamp('drained'); a.stamp('rt_exit',real=True)
    if opts.get('dbgtime'):
        a.i("s_waitcnt lgkmcnt(0)")
        n=len(a.stamps)
        r0=a.stamps[0][1]; r1=a.stamps[-1][1]
        a.i(f"s_not_b32 s3, s{r0}")
        a.i("v_mov_b32 v2, s3"); a.i("v_mov_b32 v3, 8"); a.i(f"v_mov_b32 v4, s{r1}"); a.i("v_mov_b32 v5, 12")
        a.i("s_mov_b64 exec, 1")
        a.i(f"buffer_atomic_umax v2, v3, {sDBG}, 0 offen sc1"); a.i(f"buffer_atomic_umax v4, v5, {sDBG}, 0 offen sc1")
        a.i(f"s_cmp_lg_u32 s2, 77"); a.i("s_cbranch_scc1 L_nodbg"); a.i(f"s_cmp_lg_u32 {sWV}, 0"); a.i("s_cbranch_scc1 L_nodbg")
        e=a.stamps[1][1]
        for k,(nm,r) in enumerate(a.stamps[2:-1][:12]):
            a.i(f"s_sub_u32 s3, s{r}, s{e}"); a.i("v_mov_b32 v2, s3"); a.i(f"v_mov_b32 v3, {16+4*k}")
            a.i(f"buffer_store_dword v2, v3, {sDBG}, 0 offen")
        a.label("L_nodbg")
        a.i("s_mov_b64 exec, -1"); a.i("s_waitcnt vmcnt(0)")
    else: a.dump_stamps(0)
    a.label("L_end"); a.i("s_endpgm")
    errs=a.check()
    if opts.get('stamps'): print("stamps:",len(a.stamps),[x[0] for x in a.stamps])
    k1=f"{NAME}_kernel"
    txt=HEADER+f"; @launch grid=(256,1,1) block=(256,1,1) lds={LDS_BYTES}\n"
    txt+='.amdgcn_target "amdgcn-amd-amdhsa--gfx950"\n.text\n'
    txt+=f".globl {k1}\n.p2align 8\n.type {k1},@function\n{k1}:\n"+a.text()+kd(k1,512,256)
    return txt
if __name__=="__main__":
    out=sys.argv[1]
    opts={}
    for x in sys.argv[2:]:
        k,_,v=x.partition('='); opts[k]=int(v) if v.lstrip('-').isdigit() else (v or True)
    open(out,'w').write(build(opts)); print("written",out)
```

```python
import sys, os, struct
sys.path.insert(0, os.path.dirname(os.path.abspath(__file__)))
from asm import *
NAME = "concat_heads__sliding_block__sliding_block__prompt"
XROW=1152; WROW=3456; OUTROW=2304
X_BYTES=2048*1152; W_BYTES=576*3456; WO_BYTES=576*1152; OUT_BYTES=2048*2304
SLOT=36864; WPITCH=320; XOFF=20480; QPITCH=192; QCH=12288
VBASE=0; VR=1184; VJ=2368; VB=4736; KB3=18944; KB0=147456; KP=148; KBLK=32*148; QBASE=110592
LDS_BYTES=163840
WS_KV=0; WS_OM=0x1000000; WS_OL=0x1400000; WS_FKV=0x1800000; WS_FO=0x1840000; WS_FOL=0x1880000; WS_FW=0x1900000; WS_FWL=0x1940000
WS_XT=0x18C0000
WS_DBG=0x2000000; WS_BYTES=0x4000000
CSCALE = 1.4426950408889634/(18**0.5)
def f2u(x): return struct.unpack('<I',struct.pack('<f',x))[0]
def rng(p,a,n): return f'{p}[{a}:{a+n-1}]'

sX='s[8:11]'; sW='s[12:15]'; sWO='s[16:19]'; sOUT='s[20:23]'; sWS='s[24:27]'; sDBG='s[28:31]'
sB='s32'; sC='s33'; sG='s34'; sWV='s35'
sVM='s[54:55]'; sLO='s[56:57]'
sCI='s58'; sWoff='s59'; sXoff='s60'; sM0='s61'; sKVme='s62'
sT0='s63'; sT1='s64'; sT2='s65'; sFKV='s66'; sT3='s67'
sNONl='s68'; sNONh='s69'; sROT='s70'; sKV1='s71'; sKV2='s72'; sXCC='s73'
sBAD='s[74:75]'; sNVM='s[52:53]'; sCNT='s76'; sOM='s77'; sOL='s78'; sFO='s79'; sSC='s80'; sATT='s81'
sLFH='s70'; sLOC='s81'
sRH='s82'; sNQ='s83'; sPOM='s84'; sPOL='s85'; sOUTB='s86'; sWOs='s87'
sIDX='s76'; sOFF='s81'

vLane='v1'
vWoff=[f'v{10+j}' for j in range(5)]
vXoff=[f'v{15+j}' for j in range(4)]
vQoff=['v19','v20','v21']
vWr=['v22','v23']; vMx=['v24','v25']
vXr=[[f'v{26+t}' for t in range(4)],[f'v{30+t}' for t in range(4)]]
vQr='v34'
vKw='v35'; vQw='v36'; vVw='v37'; vVt='v38'
vKr='v39'; vKl='v40'; vVr='v41'; vCw='v42'; vQl='v43'
vPk='v44'; vPl='v45'; vPv='v46'; vOl='v47'
vNON='v[48:49]'; vVC='v50'; vT='v51'
def WF(b,f): r=52+(b*5+f)*4; return f'v[{r}:{r+3}]'
def WFh(b,f,h): r=52+(b*5+f)*4+2*h; return f'v[{r}:{r+1}]'
def QF(b,f): r=52+(b*3+f)*4; return f'v[{r}:{r+3}]'
def QFh(b,f,h): r=52+(b*3+f)*4+2*h; return f'v[{r}:{r+1}]'
ACC={'K0':92,'K1':108,'V0':124,'V1':140,'MX':156,'Q0':172,'Q1':188,'Q2':204}
def XF(t): return rng('a',4*t,4)
OWN=92; HALO=144
S0=52; S1=68; P0=150; P1=158; OACC=172; MASKD=236; MASKF=244
vWOm=['v10','v11']; vWOl=['v12','v13']; vWOt=['v14','v15']
vWOtmp=['v220','v221','v222','v223','v224','v225']

class G(Asm):
    stamps=None; sel=None; nowait=True
    def stamp(self, name, real=False):
        if self.stamps is None: return
        if self.sel is not None and not (name.startswith('rt_') or name=='entry' or any(name.startswith(x) for x in self.sel)): return
        k=len(self.stamps)
        regs=[88,90,92,94,96,98,100,36,38,40,42,44,46,48,50][k]
        self.stamps.append((name,regs))
        if GOPT.get('allreal'): real_=True
        else: real_=real
        self.i(f"{'s_memrealtime' if real_ else 's_memtime'} s[{regs}:{regs+1}]")
        if self.nowait and not real and name!='entry':
            self.lg.pop()
        else:
            self.i("s_waitcnt lgkmcnt(0)")
            self.lg_clear()
    def dump_stamps(self, base):
        if self.stamps is None: return
        self.i("s_waitcnt lgkmcnt(0)")
        self.i(f"s_lshl_b32 s3, s2, 2"); self.i(f"s_add_u32 s3, s3, {sWV}")
        self.i(f"s_lshl_b32 s3, s3, 6"); self.i(f"s_add_u32 s3, s3, {WS_DBG+base}")
        self.i("s_mov_b64 exec, 1")
        for k,(nm,r) in enumerate(self.stamps):
            self.i(f"v_mov_b32 v2, s{r}"); self.i(f"v_mov_b32 v3, {4*k}")
            self.i(f"buffer_store_dword v2, v3, {sWS}, s3 offen")
        self.i("s_mov_b64 exec, -1"); self.i("s_waitcnt vmcnt(0)")
    def emit(self, lst):
        for x in lst:
            if isinstance(x,tuple) and x[0]=='OSTORE': emit_ostore(self,x[1])
            elif isinstance(x,tuple): self.i(*x)
            else: self.i(x)
    def drain(self, q, budget):
        k=0; inexec=False
        while q and (k<budget or inexec):
            x=q.pop(0)
            txt=x[0] if isinstance(x,tuple) else x
            if txt.startswith('s_mov_b64 exec'): inexec = not txt.endswith('-1')
            if txt=='OSTORE': emit_ostore(self,x[1])
            elif isinstance(x,tuple): self.i(*x)
            else: self.i(x)
            k+=1

def prologue(a, opts):
    L=vLane
    a.c("---- prologue")
    a.stamp('rt_entry',real=True); a.stamp('entry')
    a.i("s_load_dwordx8 s[36:43], s[0:1], 0")
    a.i("s_load_dwordx8 s[44:51], s[0:1], 32")
    a.i("s_load_dwordx2 s[52:53], s[0:1], 64")
    a.i("s_cmp_ge_u32 s2, 256")
    a.i("s_cbranch_scc1 L_end")
    a.i("s_getpc_b64 s[4:5]")
    a.label("L_pc")
    a.i("v_lshlrev_b32 v2, 7, v0")
    a.raw("    v_min_u32 v2, (L_end-L_pc), v2")
    if not opts.get('nopf'): a.i("global_load_dword v255, v2, s[4:5]", tag='pf')
    a.i(f"v_and_b32 {L}, 63, v0")
    a.i("v_lshrrev_b32 v2, 6, v0")
    a.i("s_and_b32 s3, s2, 7")
    a.i(f"v_readfirstlane_b32 {sWV}, v2")
    a.i(f"s_lshr_b32 {sB}, s3, 2")
    a.i("s_lshr_b32 s4, s2, 3")
    a.i("s_and_b32 s5, s3, 3")
    a.i(f"s_lshl_b32 {sC}, s5, 2")
    a.i("s_lshr_b32 s5, s4, 3")
    a.i(f"s_add_u32 {sC}, {sC}, s5")
    a.i(f"s_and_b32 {sG}, s4, 7")
    a.i("s_lshl_b32 s5, s5, 1")
    a.i(f"s_add_u32 s6, s5, {sG}")
    a.i("s_sub_u32 s7, s6, 9")
    a.i("s_cmp_ge_u32 s6, 9")
    a.i(f"s_cselect_b32 {sROT}, s7, s6")
    if opts.get('order','own')=='own':
        a.i(f"s_add_u32 {sOFF}, s5, {sG}"); a.i(f"s_and_b32 {sOFF}, {sOFF}, 7")
        a.i("s_and_b32 s6, s3, 3"); a.i("s_lshl_b32 s6, s6, 1"); a.i(f"s_and_b32 s7, {sC}, 1"); a.i(f"s_add_u32 {sROT}, s6, s7")
        a.i(f"s_mov_b32 {sIDX}, {sOFF}")
    elif opts.get('order')=='norot': a.i(f"s_mov_b32 {sROT}, 0")
    a.i(f"s_lshl_b32 s6, {sC}, 7"); a.i(f"s_lshl_b32 s7, {sWV}, 5"); a.i("s_add_u32 s6, s6, s7")
    a.i(f"s_mul_i32 s6, s6, {XROW}")
    a.i(f"v_lshrrev_b32 v4, 3, {L}"); a.i(f"v_lshrrev_b32 v5, 4, {L}"); a.i(f"v_and_b32 v6, 7, {L}")
    a.i(f"v_mul_u32_u24 v4, {XROW}, v4")
    a.i(f"v_add_u32 v4, s6, v4")
    for i in range(4):
        a.i(f"v_add_u32 v7, {4*i}, v5"); a.i(f"v_and_b32 v7, 7, v7"); a.i(f"v_xor_b32 v7, v6, v7")
        a.i(f"v_lshl_add_u32 v7, v7, 4, v4")
        a.i(f"v_add_u32 {vXoff[i]}, {8*i*XROW-1024*i}, v7")
    a.i(f"s_mul_i32 s6, {sWV}, {16*WROW}"); a.i(f"s_mul_i32 s7, {sG}, 144"); a.i("s_add_u32 s6, s6, s7")
    a.i(f"s_add_u32 s6, s6, 1152")
    a.i(f"s_movk_i32 s7, {WROW}")
    a.i("v_mov_b32 v9, 0x40000000"); a.i("v_mov_b32 v8, 1008")
    for j in range(5):
        a.i(f"v_add_u32 v4, {64*j}, {L}")
        a.i(f"v_mul_u32_u24 v5, 52429, v4"); a.i(f"v_lshrrev_b32 v5, 20, v5")
        a.i(f"v_mul_u32_u24 v6, 20, v5"); a.i(f"v_sub_u32 v6, v4, v6")
        a.i(f"v_cmp_lt_u32 vcc, 8, v6")
        a.i(f"v_mul_lo_u32 v5, v5, s7")
        a.i(f"v_lshl_add_u32 v5, v6, 4, v5")
        a.i(f"v_cndmask_b32 v7, 0, v8, vcc")
        a.i(f"v_cmp_lt_u32 vcc, 17, v6")
        a.i(f"v_add3_u32 v5, v5, v7, s6")
        comp=1024*j if j<4 else 0
        if comp: a.i(f"v_subrev_u32 v5, {comp}, v5")
        else: a.i("s_nop 0")
        a.i(f"v_cndmask_b32 {vWoff[j]}, v5, v9, vcc")
    a.stamp('p_pre')
    a.wait(lg=0)
    a.stamp('p_karg')
    a.i(f"s_cmp_eq_u32 {sB}, 0")
    a.i("s_cselect_b32 s8, s36, s42");  a.i("s_cselect_b32 s9, s37, s43")
    a.i("s_cselect_b32 s12, s38, s44"); a.i("s_cselect_b32 s13, s39, s45")
    a.i(f"s_mov_b32 s10, {X_BYTES}"); a.i("s_mov_b32 s11, 0x00020000")
    a.i(f"s_mov_b32 s14, {W_BYTES}"); a.i("s_mov_b32 s15, 0x00020000")
    a.i("s_cselect_b32 s16, s40, s46"); a.i("s_cselect_b32 s17, s41, s47")
    a.i(f"s_mov_b32 {sCI}, {sROT}")
    a.i(f"s_mul_i32 {sWoff}, {sCI}, {64*WROW}")
    a.i(f"s_lshl_b32 {sXoff}, {sCI}, 7")

vTA='v[240:241]'
def touch_setup(a, opts):
    L=vLane
    a.i("s_lshr_b32 s4, s2, 3")
    a.i(f"v_cmp_le_u32 vcc, 18, {L}")
    a.i(f"v_mov_b32 v2, {XROW+18*128}")
    a.i(f"v_lshlrev_b32 v3, 7, {L}")
    a.i(f"v_mov_b32 v2, {WROW-18*128}")
    a.i(f"v_cndmask_b32 v2, 0, v2, vcc")
    a.i(f"v_add_u32 v3, v3, v2")
    a.i(f"s_mul_i32 s5, s4, {2*WROW}"); a.i(f"s_add_u32 s5, s5, {9*128}")
    a.i(f"v_add_u32 v3, s5, v3")
    a.i("s_and_b32 s5, s2, 3"); a.i("s_lshl_b32 s5, s5, 9"); a.i("s_lshl_b32 s6, s4, 4"); a.i("s_add_u32 s5, s5, s6")
    a.i(f"v_subrev_u32 v4, 36, {L}"); a.i(f"v_and_b32 v4, 15, v4"); a.i(f"v_add_u32 v4, s5, v4"); a.i(f"v_mul_u32_u24 v4, {XROW}, v4")
    a.i(f"v_cmp_le_u32 vcc, 36, {L}")
    a.i(f"v_mov_b32 v5, s12"); a.i("v_mov_b32 v6, s8"); a.i("v_mov_b32 v7, s13"); a.i("v_mov_b32 v8, s9")
    a.i(f"v_cndmask_b32 v3, v3, v4, vcc")
    a.i(f"v_cndmask_b32 v5, v5, v6, vcc")
    a.i(f"v_cndmask_b32 v7, v7, v8, vcc")
    a.i(f"v_mov_b32 v9, {64*WROW}"); a.i("v_mov_b32 v6, 128")
    a.i(f"v_cndmask_b32 v242, v9, v6, vcc")
    a.i(f"s_add_u32 s5, {sWV}, 1")
    a.i(f"v_mul_lo_u32 v9, v242, s5")
    a.i(f"v_add_u32 v3, v3, v9")
    a.i(f"v_add_co_u32 v240, vcc, v5, v3"); a.i("s_nop 1"); a.i(f"v_addc_co_u32 v241, vcc, 0, v7, vcc")
    a.i(f"v_lshlrev_b32 v242, 2, v242")
def touch_ins(second):
    L=[]
    if second:
        L+= ["v_add_co_u32 v240, vcc, v240, v242", "s_nop 1", "v_addc_co_u32 v241, vcc, 0, v241, vcc"]
    L+= ["s_mov_b64 exec, 0x000fffffffffffff" if False else "s_mov_b64 exec, s[6:7]", (f"global_load_dword v255, {vTA}, off",'touch'), "s_mov_b64 exec, -1"]
    return L
def touch_q(a):
    L=vLane
    a.i("s_lshr_b32 s4, s2, 3")
    a.i(f"v_mul_u32_u24 v2, 7282, {L}"); a.i("v_lshrrev_b32 v2, 16, v2")
    a.i(f"v_mul_u32_u24 v3, 9, v2"); a.i(f"v_sub_u32 v3, {L}, v3")
    a.i(f"v_min_u32 v2, 5, v2")
    a.i(f"s_min_u32 s5, {sWV}, 2"); a.i("s_mul_i32 s5, s5, 6"); a.i("s_mul_i32 s6, s4, 18"); a.i("s_add_u32 s5, s5, s6")
    a.i(f"v_add_u32 v2, s5, v2"); a.i(f"v_mul_u32_u24 v2, {WROW}, v2"); a.i(f"v_lshl_add_u32 v2, v3, 7, v2")
    a.i(f"buffer_load_dword v255, v2, {sW}, 0 offen", 'touch')
def touch_wo(a):
    L=vLane
    a.i(f"s_lshr_b32 {sT0}, s2, 3")
    a.i(f"s_min_u32 {sT1}, {sWV}, 2"); a.i(f"s_mul_i32 {sT1}, {sT1}, 54"); a.i(f"s_mul_i32 {sT0}, {sT0}, 162"); a.i(f"s_add_u32 {sT1}, {sT1}, {sT0}")
    a.i(f"v_min_u32 {vT}, 53, {L}"); a.i(f"v_add_u32 {vT}, {sT1}, {vT}"); a.i(f"v_lshlrev_b32 {vT}, 7, {vT}")
    a.i(f"buffer_load_dword v255, {vT}, {sWO}, 0 offen", 'touch')

ORDER_MODE=['own']
GOPT={}
def next_chunk_ins():
    if ORDER_MODE[0]=='own':
        return [f"s_add_u32 {sCI}, {sROT}, {sIDX}", f"s_add_u32 {sCI}, {sCI}, 1", f"s_sub_u32 {sT3}, {sCI}, 9", f"s_cmp_ge_u32 {sCI}, 9",
                f"s_cselect_b32 {sCI}, {sT3}, {sCI}", f"s_add_u32 {sIDX}, {sIDX}, 1", f"s_and_b32 {sIDX}, {sIDX}, 7",
                f"s_mul_i32 {sWoff}, {sCI}, {64*WROW}", f"s_lshl_b32 {sXoff}, {sCI}, 7"]
    return [f"s_add_u32 {sCI}, {sCI}, 1", f"s_cmp_eq_u32 {sCI}, 9", f"s_cselect_b32 {sCI}, 0, {sCI}",
            f"s_mul_i32 {sWoff}, {sCI}, {64*WROW}", f"s_lshl_b32 {sXoff}, {sCI}, 7"]

def dma_chunk_groups(slot, n):
    base=slot*SLOT; tag=f'ch{n}'; Gs=[]
    for i in range(4):
        pre=[f"s_lshl_b32 {sM0}, {sWV}, 12", f"s_add_u32 m0, {sM0}, {base+XOFF}", "s_nop 0"] if i==0 else []
        Gs.append(pre+[(f"buffer_load_dwordx4 {vXoff[i]}, {sX}, {sXoff} offen offset:{1024*i} lds", tag)])
    for j in range(4):
        pre=[f"s_mul_i32 {sM0}, {sWV}, 5120", f"s_add_u32 m0, {sM0}, {base}", "s_nop 0"] if j==0 else []
        Gs.append(pre+[(f"buffer_load_dwordx4 {vWoff[j]}, {sW}, {sWoff} offen offset:{1024*j} lds", tag)])
    Gs.append([f"s_add_u32 m0, {sM0}, {base+4096}", "s_nop 0", (f"buffer_load_dwordx4 {vWoff[4]}, {sW}, {sWoff} offen lds", tag)]+next_chunk_ins())
    return Gs

def dma_wq_groups(n):
    reg = SLOT*(1+n//3) + (n%3)*QCH
    Gs=[]
    for e in range(3):
        pre=[f"s_mul_i32 {sM0}, {sWV}, 3072", f"s_add_u32 m0, {sM0}, {reg}", "s_nop 0"] if e==0 else []
        post=next_chunk_ins() if e==2 else []
        Gs.append(pre+[(f"buffer_load_dwordx4 {vQoff[e]}, {sW}, {sWoff} offen offset:{1024*e} lds", f'wq{n}')]+post)
    return Gs

def setupA(a, opts):
    L=vLane
    a.c("---- setup A")
    a.i(f"v_bfe_u32 v4, {L}, 2, 2"); a.i(f"v_lshrrev_b32 v5, 5, {L}")
    a.i(f"v_lshl_add_u32 v4, v5, 3, v4")
    a.i(f"v_bfe_u32 v6, {L}, 4, 1"); a.i(f"v_and_b32 v7, 3, {L}")
    a.i(f"v_mul_u32_u24 v8, {WPITCH}, v4")
    a.i(f"v_lshlrev_b32 v9, 5, v6"); a.i(f"v_lshl_add_u32 v9, v7, 3, v9")
    a.i(f"v_add_u32 {vWr[0]}, v8, v9"); a.i(f"v_add_u32 {vWr[1]}, {2*SLOT}, {vWr[0]}")
    a.i(f"v_mul_u32_u24 v2, {QPITCH}, v4")
    a.i(f"v_add3_u32 {vQr}, v2, v9, 0"); a.i(f"v_add_u32 {vQr}, {SLOT}, {vQr}")
    a.i(f"v_lshl_add_u32 v9, v6, 2, v7")
    a.i(f"v_lshlrev_b32 v2, 3, v9"); a.i(f"v_add_u32 v2, 128, v2"); a.i(f"v_add_u32 v3, 128, v2")
    a.i(f"v_cmp_lt_u32 vcc, 1, v9"); a.i("s_nop 1")
    a.i(f"v_cndmask_b32 v2, v2, v3, vcc")
    a.i(f"v_add_u32 {vMx[0]}, v8, v2"); a.i(f"v_add_u32 {vMx[1]}, {2*SLOT}, {vMx[0]}")
    a.i(f"v_and_b32 v2, 31, {L}"); a.i(f"v_bfe_u32 v3, {L}, 1, 3"); a.i(f"v_xor_b32 v3, v3, v5")
    a.i(f"v_lshlrev_b32 v3, 4, v3"); a.i(f"v_lshl_add_u32 v3, v2, 7, v3")
    a.i(f"s_lshl_b32 s6, {sWV}, 12"); a.i(f"s_add_u32 s6, s6, {XOFF}")
    a.i(f"v_add_u32 v3, s6, v3")
    for t in range(4):
        a.i(f"v_xor_b32 {vXr[0][t]}, {32*t}, v3"); a.i(f"v_add_u32 {vXr[1][t]}, {2*SLOT}, {vXr[0][t]}")

class Rec:
    def __init__(self): self.l=[]
    def i(self, t, tag=None, cond=False): self.l.append((t,tag,cond) if tag or cond else t)
    def c(self, s): pass

def setupB0(a, opts):
    a.i("s_mov_b32 s20, s48"); a.i("s_mov_b32 s21, s49"); a.i(f"s_mov_b32 s22, {OUT_BYTES}"); a.i("s_mov_b32 s23, 0x00020000")
    a.i("s_mov_b32 s24, s52"); a.i("s_mov_b32 s25, s53"); a.i(f"s_mov_b32 s26, {WS_BYTES}"); a.i("s_mov_b32 s27, 0x00020000")
    a.i("s_mov_b32 s28, s50"); a.i("s_mov_b32 s29, s51"); a.i("s_mov_b32 s30, 256"); a.i("s_mov_b32 s31, 0x00020000")
    a.i(f"s_mov_b32 s18, {WO_BYTES}"); a.i("s_mov_b32 s19, 0x00020000")
    a.i(f"s_or_b32 s3, s2, {sWV}"); a.i("s_cmp_lg_u32 s3, 0"); a.i("s_cbranch_scc1 L_nononce")
    a.i("s_memrealtime s[4:5]"); a.i("s_waitcnt lgkmcnt(0)"); a.i("s_or_b32 s4, s4, 1")
    a.i("v_mov_b32 v2, s4"); a.i("v_mov_b32 v3, s5"); a.i("v_mov_b32 v4, 0")
    a.i("s_mov_b64 exec, 1")
    a.i(f"buffer_store_dwordx2 v[2:3], v4, {sDBG}, 0 offen sc1", cond=True)
    a.i("s_mov_b64 exec, -1")
    a.label("L_nononce"); a.lg_clear()

def setupB(a, opts):
    L=vLane
    a.c("---- setup B")
    a.i("s_mov_b32 s54, 0x3ffff"); a.i("s_mov_b32 s55, 0x3ffff"); a.i("s_not_b64 s[52:53], s[54:55]"); a.i("s_mov_b32 s56, -1"); a.i("s_mov_b32 s57, 0")
    a.i(f"s_mov_b32 {sSC}, {f2u(CSCALE):#x}")
    a.i(f"s_getreg_b32 {sXCC}, hwreg(HW_REG_XCC_ID, 0, 4)")
    a.i(f"s_mul_i32 s6, {sWV}, {16*WROW}"); a.i(f"s_mul_i32 s7, {sG}, 144"); a.i("s_add_u32 s6, s6, s7")
    a.i(f"s_movk_i32 s7, {WROW}"); a.i("v_mov_b32 v9, 0x40000000")
    for e in range(3):
        a.i(f"v_add_u32 v4, {64*e}, {L}")
        a.i(f"v_mul_u32_u24 v5, 21846, v4"); a.i(f"v_lshrrev_b32 v5, 18, v5")
        a.i(f"v_mul_u32_u24 v6, 12, v5"); a.i(f"v_sub_u32 v6, v4, v6")
        a.i(f"v_cmp_lt_u32 vcc, 8, v6")
        a.i(f"v_mul_lo_u32 v5, v5, s7"); a.i(f"v_lshl_add_u32 v5, v6, 4, v5")
        a.i(f"v_add_u32 v5, s6, v5"); a.i(f"v_subrev_u32 v5, {1024*e}, v5")
        a.i(f"v_cndmask_b32 {vQoff[e]}, v5, v9, vcc")
    a.i(f"v_and_b32 v2, 31, {L}"); a.i(f"v_lshrrev_b32 v5, 5, {L}")
    a.i(f"s_mul_i32 s6, {sWV}, {KBLK}"); a.i(f"s_add_u32 s7, s6, {KB0}"); a.i(f"s_cmp_eq_u32 {sWV}, 3"); a.i(f"s_cselect_b32 s7, {KB3}, s7")
    a.i(f"v_mul_u32_u24 v3, {KP}, v2"); a.i(f"v_lshl_add_u32 v3, v5, 3, v3")
    a.i(f"v_add_u32 {vKw}, s7, v3"); a.i(f"s_add_u32 s6, s6, {QBASE}"); a.i(f"v_add_u32 {vQw}, s6, v3")
    a.i(f"s_mul_i32 s6, {sWV}, {VB}"); a.i(f"s_add_u32 s6, s6, {VBASE}")
    a.i(f"v_mul_u32_u24 v3, {VR}, v5"); a.i(f"v_lshl_add_u32 v3, v2, 4, v3"); a.i(f"v_add_u32 {vVw}, s6, v3")
    a.i(f"v_bfe_u32 v3, {L}, 2, 1"); a.i(f"v_mul_u32_u24 v3, {VJ}, v3"); a.i(f"v_bfe_u32 v4, {L}, 1, 1"); a.i(f"v_mul_u32_u24 v4, {VR}, v4")
    a.i(f"v_add_u32 v3, v3, v4"); a.i(f"v_and_b32 v4, 1, {L}"); a.i(f"v_lshl_add_u32 v3, v4, 4, v3"); a.i(f"v_add_u32 v3, {72*16}, v3")
    a.i(f"v_add_u32 {vCw}, s6, v3")
    a.i(f"v_lshrrev_b32 v3, 4, v2"); a.i(f"v_mul_u32_u24 v3, {VJ}, v3"); a.i(f"v_bfe_u32 v4, v2, 2, 1")
    a.i(f"v_mul_u32_u24 v4, {VR}, v4"); a.i(f"v_add_u32 v3, v3, v4"); a.i(f"v_and_b32 v4, 3, v2")
    a.i(f"v_bfe_u32 v6, v2, 3, 1"); a.i(f"v_lshl_add_u32 v4, v6, 2, v4"); a.i(f"v_lshl_add_u32 v3, v4, 1, v3")
    a.i(f"v_lshl_add_u32 v3, v5, 6, v3"); a.i(f"v_add_u32 v3, {64*16}, v3"); a.i(f"v_add_u32 {vVt}, s6, v3")
    a.i(f"s_mul_i32 s6, {sWV}, 36"); a.i(f"v_mul_u32_u24 v3, {KP}, v2"); a.i(f"v_add_u32 v3, s6, v3")
    a.i(f"v_lshl_add_u32 {vKr}, v5, 4, v3")
    a.i(f"v_add_u32 {vKl}, 32, v3")
    a.i(f"s_mul_i32 s6, {sWV}, 18"); a.i(f"v_add_u32 v3, s6, v2"); a.i(f"v_and_b32 v4, 27, v2")
    a.i(f"v_cmp_eq_u32 vcc, 18, v4"); a.i(f"v_mov_b32 v4, 73"); a.i(f"v_mov_b32 v6, 72"); a.i(f"v_cndmask_b32 v4, v4, v6, vcc")
    a.i(f"v_cmp_gt_u32 vcc, 18, v2"); a.i("s_nop 1"); a.i(f"v_cndmask_b32 v3, v4, v3, vcc")
    a.i(f"v_lshlrev_b32 v3, 4, v3"); a.i(f"v_mul_u32_u24 v4, {VR}, v5"); a.i(f"v_add_u32 {vVr}, v3, v4")
    a.i(f"v_lshlrev_b32 {vPk}, 4, {L}"); a.i(f"v_lshlrev_b32 {vPl}, 2, v2"); a.i(f"v_add_u32 {vPl}, 1024, {vPl}")
    a.i(f"v_mul_u32_u24 v3, 288, v5"); a.i(f"v_lshl_add_u32 v3, v2, 4, v3"); a.i(f"v_add_u32 {vPv}, 1152, v3")
    a.i(f"s_lshl_b32 s6, {sWV}, 2"); a.i(f"v_lshrrev_b32 v3, 3, v2"); a.i(f"v_mul_u32_u24 v3, {OUTROW}, v3")
    a.i(f"v_and_b32 v4, 7, v2"); a.i(f"v_lshl_add_u32 v3, v4, 4, v3"); a.i(f"v_add_u32 {vOl}, s6, v3")
    a.i(f"v_and_b32 v3, 27, v2"); a.i(f"v_cmp_eq_u32 vcc, 18, v3"); a.i(f"v_mov_b32 v4, 0x3f803f80"); a.i("s_nop 0")
    a.i(f"v_cndmask_b32 {vVC}, 0, v4, vcc")
    a.i(f"s_lshl_b32 s6, {sB}, 3"); a.i(f"s_add_u32 s6, s6, {sG}"); a.i(f"s_lshl_b32 s6, s6, 4"); a.i(f"s_add_u32 s6, s6, {sC}")
    a.i(f"s_mul_i32 {sKVme}, s6, {SLOT}"); a.i(f"s_mul_i32 s7, {sWV}, 2304"); a.i(f"s_add_u32 {sKVme}, {sKVme}, s7")
    a.i(f"s_sub_u32 {sKV1}, {sKVme}, {SLOT}"); a.i(f"s_sub_u32 {sKV2}, {sKVme}, {2*SLOT}")
    a.i(f"s_cmp_ge_u32 {sC}, 1"); a.i(f"s_cselect_b32 {sKV1}, {sKV1}, 0x70000000")
    a.i(f"s_cmp_ge_u32 {sC}, 2"); a.i(f"s_cselect_b32 {sKV2}, {sKV2}, 0x70000000")
    a.i(f"s_lshl_b32 s6, s6, 2"); a.i(f"s_add_u32 s6, s6, {sWV}"); a.i(f"s_lshl_b32 s6, s6, 7")
    a.i(f"s_add_u32 {sFKV}, s6, {WS_FKV}")
    a.i(f"s_cmp_ge_u32 {sC}, 1"); a.i(f"s_cselect_b32 s6, -1, 0"); a.i(f"s_cmp_ge_u32 {sC}, 2"); a.i(f"s_cselect_b32 s7, -1, 0")
    a.i(f"v_and_b32 v2, s6, {vVC}"); a.i(f"v_and_b32 v3, s7, {vVC}"); a.i(f"v_mov_b32 v4, 0x3f803f80")
    for hb in range(8):
        base=HALO+14*hb
        a.i(f"v_accvgpr_write_b32 a{base+5}, v4")
        for r in range(8): a.i(f"v_accvgpr_write_b32 a{base+6+r}, {'v3' if hb<4 else 'v2'}")
    a.i(f"v_and_b32 v2, 31, {L}"); a.i(f"v_lshlrev_b32 v3, 2, v5"); a.i(f"v_sub_u32 v2, v2, v3")
    a.i(f"v_mov_b32 v6, 0xffff"); a.i(f"v_mov_b32 v7, 0xffff0000")
    for u in range(8):
        r0=2*u; k0=(r0&3)+8*(r0>>2)
        a.i(f"v_cmp_le_i32 vcc, {k0}, v2"); a.i(f"v_cmp_le_i32 s[4:5], {k0+1}, v2"); a.i("s_nop 0")
        a.i(f"v_cndmask_b32 v3, 0, v6, vcc"); a.i(f"v_cndmask_b32 v4, 0, v7, s[4:5]")
        a.i(f"v_or_b32 v{MASKD+u}, v3, v4"); a.i(f"v_not_b32 v{MASKF+u}, v{MASKD+u}")
    a.i(f"s_lshl_b32 s6, {sC}, 7"); a.i(f"s_lshl_b32 s7, {sG}, 2"); a.i("s_add_u32 s6, s6, s7")
    a.i(f"s_mul_i32 s6, s6, {OUTROW}"); a.i(f"s_mul_i32 s7, {sB}, 1152"); a.i("s_add_u32 s6, s6, s7")
    a.i(f"s_add_u32 {sOL}, s6, 1024"); a.i(f"s_mul_i32 s7, {sWV}, {OUTROW}"); a.i(f"s_add_u32 {sOM}, s6, s7")
    a.i(f"s_lshr_b32 {sRH}, {sG}, 2"); a.i(f"s_and_b32 {sNQ}, {sG}, 3")
    a.i(f"s_lshl_b32 s7, {sRH}, 1"); a.i(f"s_lshr_b32 s3, {sWV}, 1"); a.i("s_add_u32 s3, s3, s7"); a.i("s_lshl_b32 s3, s3, 5")
    a.i(f"s_lshl_b32 s7, {sC}, 7"); a.i("s_add_u32 s3, s3, s7"); a.i(f"s_mul_i32 {sPOM}, s3, {OUTROW}")
    a.i(f"s_mul_i32 s7, {sB}, 1152"); a.i(f"s_add_u32 {sPOM}, {sPOM}, s7"); a.i(f"s_add_u32 {sPOL}, {sPOM}, 1024")
    a.i(f"s_lshl_b32 s6, {sC}, 7"); a.i(f"s_lshl_b32 s7, {sRH}, 6"); a.i("s_add_u32 s6, s6, s7")
    a.i(f"s_lshl_b32 s7, {sWV}, 4"); a.i("s_add_u32 s6, s6, s7"); a.i(f"s_mul_i32 {sOUTB}, s6, {OUTROW}")
    a.i(f"s_mul_i32 s7, {sB}, 1152"); a.i(f"s_add_u32 {sOUTB}, {sOUTB}, s7")
    a.i(f"s_mul_i32 s7, {sNQ}, 288"); a.i(f"s_add_u32 {sOUTB}, {sOUTB}, s7")
    a.i(f"s_lshl_b32 s6, {sB}, 4"); a.i(f"s_add_u32 s6, s6, {sC}"); a.i(f"s_lshl_b32 {sFO}, s6, 12")
    a.i(f"s_add_u32 {sFO}, {sFO}, {WS_FO}")
    a.i(f"v_mov_b32 v252, {f2u(2.0**-40):#x}"); a.i(f"v_mov_b32 v253, {f2u(2.0**40):#x}")
    a.i(f"s_mov_b64 {sBAD}, 0")

def wq_reads(tau):
    n,t=divmod(tau,4); b=tau%2
    off=(n%3)*QCH+16*QPITCH*t
    return [[(f"ds_read_b64_tr_b16 {QFh(b,f,h)}, {vQr} offset:{off+4*QPITCH*h+64*f}", f'q{tau}_{f}') for h in range(2)] for f in range(3)]

def drain_side(a, side, n):
    k=0; last=''
    while side and (k<n or last.startswith('s_cmp') or (side[0] if isinstance(side[0],str) else side[0][0]).startswith('s_cselect')):
        x=side.pop(0)
        if isinstance(x,tuple): a.i(*x); last=x[0]
        else: a.i(x); last=x
        k+=1

def phase1a(a, opts, pend):
    a.c("---- phase 1a")
    def reads(tau):
        n,t=divmod(tau,4); slot=n%4; hi=slot>=2; base=(slot%2)*SLOT; b=tau%2
        R=[[(f"ds_read_b128 {XF(tau)}, {vXr[hi][t]} offset:{base}", f'x{tau}')] +
           [(f"ds_read_b64_tr_b16 {WFh(b,0,h)}, {vWr[hi]} offset:{base+5120*t+1280*h}", f'w{tau}_0') for h in range(2)]]
        for f,co in ((1,64),(2,144),(3,208)):
            R.append([(f"ds_read_b64_tr_b16 {WFh(b,f,h)}, {vWr[hi]} offset:{base+5120*t+1280*h+co}", f'w{tau}_{f}') for h in range(2)])
        R.append([(f"ds_read_b64_tr_b16 {WFh(b,4,h)}, {vMx[hi]} offset:{base+5120*t+1280*h}", f'w{tau}_4') for h in range(2)])
        return R
    a.stamp('setup_done')
    a.wait(vm='ch0'); a.i("s_barrier")
    a.stamp('ch0_landed')
    for grp in reads(0): a.emit(grp)
    names=['K0','K1','V0','V1','MX']
    side=opts.get('_side',[])
    every=opts.get('dma_every',2)
    slotcnt=0
    for tau in range(36):
        n,t=divmod(tau,4); b=tau%2
        if t==0: a.stamp(f'c{n}')
        if t==3:
            a.wait(vm=f'ch{n+1}' if n<8 else 'wq0')
            a.i("s_barrier")
            if n<=5:
                pend += dma_chunk_groups((n+3)%4, n+3)
                if n==5 and opts.get('wotouch',2)==1:
                    rec=Rec(); touch_wo(rec); pend.append(rec.l)
            elif n==6:
                pend.append([f"s_mov_b32 {sCI}, {sROT}", f"s_mul_i32 {sWoff}, {sCI}, {64*WROW}", f"s_mov_b32 {sIDX}, {sOFF}"])
                for q in range(3): pend += dma_wq_groups(q)
            elif n==7:
                for q in range(3,6): pend += dma_wq_groups(q)
            elif n==8:
                for q in range(6,9): pend += dma_wq_groups(q)
        R = reads(tau+1) if tau<35 else wq_reads(0)
        for m,nm in enumerate(names):
            a.wait(lg=[f'w{tau}_{m}']+([f'x{tau}'] if m==0 else []))
            acc=rng('v',ACC[nm],16); c='0' if tau==0 else acc
            if nm in ('V0','V1'): a.i(f"v_mfma_f32_32x32x16_bf16 {acc}, {XF(tau)}, {WF(b,m)}, {c}")
            else: a.i(f"v_mfma_f32_32x32x16_bf16 {acc}, {WF(b,m)}, {XF(tau)}, {c}")
            if m<len(R): a.emit(R[m])
            slotcnt+=1
            if pend and slotcnt%every==0: a.emit(pend.pop(0))
            elif side: drain_side(a, side, opts.get('side_n',4))
        if tau==30:
            a.i(f"v_mov_b32 {vT}, 0")
            a.i(f"buffer_load_dwordx2 {vNON}, {vT}, {sDBG}, 0 offen sc1", tag='nonce')
    assert not side, len(side)
    return pend

def epi1a_list():
    A=[]; T=76
    for ti,nm in enumerate(('K0','K1')):
        base=ACC[nm]
        for i in range(4):
            t0=T+2*(i%2)
            A+= [f"v_cvt_pk_bf16_f32 v{t0}, v{base+4*i}, v{base+4*i+1}", f"v_cvt_pk_bf16_f32 v{t0+1}, v{base+4*i+2}, v{base+4*i+3}",
                 (f"ds_write2_b32 {vKw}, v{t0}, v{t0+1} offset0:{16*ti+4*i} offset1:{16*ti+4*i+1}",'e1w')]
    for ti,nm in enumerate(('V0','V1')):
        base=ACC[nm]
        for j in range(2):
            t0=T+4+4*j
            for u in range(4): A.append(f"v_cvt_pk_bf16_f32 v{t0+u}, v{base+8*j+2*u}, v{base+8*j+2*u+1}")
            A.append((f"ds_write_b128 {vVw}, v[{t0}:{t0+3}] offset:{VJ*j+512*ti}",'e1w'))
    base=ACC['MX']; t0=T+12
    A+= [f"v_cvt_pk_bf16_f32 v{t0}, v{base}, v{base+1}", f"v_cvt_pk_bf16_f32 v{t0+1}, v{base+2}, v{base+3}",
         (f"ds_write2_b32 {vKw}, v{t0}, v{t0+1} offset0:32 offset1:33",'e1w'),
         f"v_cvt_pk_bf16_f32 v{t0+2}, v{base+4}, v{base+5}", f"v_cvt_pk_bf16_f32 v{t0+3}, v{base+6}, v{base+7}",
         (f"ds_write_b16 {vVt}, v{t0+2}",'e1w'), (f"ds_write_b16_d16_hi {vVt}, v{t0+2} offset:16",'e1w'),
         (f"ds_write_b16 {vVt}, v{t0+3} offset:32",'e1w'), (f"ds_write_b16_d16_hi {vVt}, v{t0+3} offset:48",'e1w')]
    A+= [f"v_and_b32 v{t0}, 1, {vLane}", f"v_cmp_eq_u32 vcc, 0, v{t0}", f"v_mov_b32 v{t0+1}, 0x3f803f80", "s_nop 0",
         f"v_cndmask_b32 v{t0}, 0, v{t0+1}, vcc", f"v_mov_b32 v{t0+1}, v{t0}", f"v_mov_b32 v{t0+2}, v{t0}", f"v_mov_b32 v{t0+3}, v{t0}",
         "s_mov_b64 exec, 0xff", (f"ds_write_b128 {vCw}, v[{t0}:{t0+3}]",'e1w'), "s_mov_b64 exec, -1"]
    return A

def own_presets():
    L=[f"v_mov_b32 v91, 0x3f803f80"]
    for bt in range(4): L.append(f"v_mov_b32 v{OWN+14*bt+5}, v91")
    return L
def own_reads():
    L=[]
    for bt in range(4):
        base=OWN+14*bt
        kb = KB0+KBLK*bt if bt<3 else KB3
        L.append(f"v_add_u32 v88, {kb}, {vKr}"); L.append(f"v_add_u32 v89, {kb}, {vKl}")
        L.append((f"ds_read2_b32 v[{base}:{base+1}], v88 offset0:0 offset1:1",'own'))
        L.append((f"ds_read2_b32 v[{base+2}:{base+3}], v88 offset0:2 offset1:3",'own'))
        L.append((f"ds_read_b32 v{base+4}, v89",'own'))
    for bt in range(4):
        base=OWN+14*bt
        for j in range(2): L.append((f"ds_read_b128 v[{base+6+4*j}:{base+9+4*j}], {vVr} offset:{VB*bt+VJ*j}",'own'))
    return L
def own_store_groups(mod='sc1'):
    Gs=[]
    for bt in range(4):
        base=OWN+14*bt; tag='pubA' if bt<2 else 'pubB'
        Gs.append([f"s_add_u32 {sT0}, {sKVme}, {9216*bt}", (f"buffer_store_dwordx4 v[{base}:{base+3}], {vPk}, {sWS}, {sT0} offen {mod}",tag)])
        Gs.append([f"s_add_u32 {sT0}, {sKVme}, {9216*bt}", f"s_mov_b64 exec, {sLO}", (f"buffer_store_dword v{base+4}, {vPl}, {sWS}, {sT0} offen {mod}",tag), "s_mov_b64 exec, -1"])
        for j in range(2):
            Gs.append([f"s_add_u32 {sT0}, {sKVme}, {9216*bt}", f"s_mov_b64 exec, {sVM}", (f"buffer_store_dwordx4 v[{base+6+4*j}:{base+9+4*j}], {vPv}, {sWS}, {sT0} offen offset:{576*j} {mod}",tag), "s_mov_b64 exec, -1"])
    return Gs

def flag_store_ins(cnt):
    return [f"s_add_u32 {sT1}, {sNONh}, {cnt}", f"v_mov_b32 v2, {sNONl}", f"v_mov_b32 v3, {sT1}", f"v_mov_b32 v4, 0",
            "s_mov_b64 exec, 1", (f"buffer_store_dwordx2 v[2:3], v4, {sWS}, {sFKV} offen sc1", f'kvflag{cnt}'), "s_mov_b64 exec, -1"]

def xt_base():
    return [f"s_lshl_b32 {sT0}, {sB}, 4", f"s_add_u32 {sT0}, {sT0}, {sC}", f"s_lshl_b32 {sT0}, {sT0}, 10", f"s_add_u32 {sT0}, {sT0}, {WS_XT}"]
def xt_store():
    return xt_base()+[f"s_add_u32 {sLFH}, {sXCC}, 1", f"s_lshl_b32 {sLFH}, {sLFH}, 8", f"s_add_u32 {sLFH}, {sLFH}, {sNONh}",
            f"s_lshl_b32 {sT1}, {sG}, 7", f"s_add_u32 {sT0}, {sT0}, {sT1}",
            f"v_mov_b32 v2, {sNONl}", f"v_mov_b32 v3, {sLFH}", f"v_mov_b32 v4, 0",
            "s_mov_b64 exec, 1", (f"buffer_store_dwordx2 v[2:3], v4, {sWS}, {sT0} offen sc1",'xt'), "s_mov_b64 exec, -1"]
def xt_load():
    return xt_base()+[f"v_lshlrev_b32 v2, 7, {vLane}", "s_mov_b64 exec, 0xff",
            (f"buffer_load_dwordx2 v[8:9], v2, {sWS}, {sT0} offen sc1",'xtl'), "s_mov_b64 exec, -1"]
def xt_check(a):
    a.wait(vm='xtl')
    a.i("s_mov_b64 exec, 0xff")
    a.i(f"v_cmp_eq_u32 vcc, {sNONl}, v8"); a.i(f"v_cmp_eq_u32 s[4:5], {sLFH}, v9")
    a.i("s_mov_b64 exec, -1")
    a.i("s_and_b64 s[4:5], s[4:5], vcc"); a.i("s_and_b32 s4, s4, 0xff"); a.i("s_cmp_eq_u32 s4, 0xff")
    a.i(f"s_cselect_b32 {sLOC}, 1, 0")
    if GOPT.get('force_remote'): a.i(f"s_mov_b32 {sLOC}, 0")

def wo_group_for(kbase):
    setup=[f"s_add_u32 {sT1}, {sWV}, {kbase}", f"s_mul_i32 {sT2}, {sT1}, 41472", f"s_mul_i32 {sT3}, {sT1}, 9216"]
    return wo_dma_groups(0,None,setup)

def phase1b(a, pend, opts):
    a.c("---- phase 1b")
    a.stamp('1a_end')
    q=[]; stores=[]; wo=[]
    E2=opts.get('e2',4)
    FAST=opts.get('fastA',1)
    sched={}
    tt=E2+1
    for g in range(16):
        sched.setdefault(tt,[]).append(g)
        tt += 1 if (g<7 and FAST) else 2
    FLAGA=opts.get('flagA',24)
    woaddr=[f"v_mov_b32 {d_}, {s_}" for d_,s_ in zip(vWOm+vWOl+vWOt,vWOtmp)]
    for tau in range(36):
        n,t=divmod(tau,4); b=tau%2
        a.stamp(f'b{tau}_')
        if tau==1:
            a.i("s_barrier"); q+=epi1a_list()
        if tau==E2:
            a.drain(q,1000); a.wait(lg=0); a.i("s_barrier")
            a.emit(own_reads())
        if tau==E2+1:
            a.wait(lg='own')
            a.stamp('pub_start')
            stores=own_store_groups()
            q+=woaddr
        if tau==E2+3:
            a.i("s_barrier")
        if tau==E2+6: wo+=wo_group_for(0); q+=own_presets()
        if tau==15: wo+=wo_group_for(4)
        if tau==27: wo+=wo_group_for(8)
        if tau==FLAGA:
            a.wait(vm='pubA'); get_nonce(a); a.emit(flag_store_ins(2)); a.stamp('flagA')
            if opts.get('olocal'): a.emit(xt_store())
        if t==3 and tau<35:
            a.wait(vm=f'wq{n+1}')
            a.i("s_barrier")
            if (n+1)%3==0: a.i(f"v_add_u32 {vQr}, {SLOT}, {vQr}")
        R = wq_reads(tau+1) if tau<35 else []
        for m,nm in enumerate(('Q0','Q1','Q2')):
            a.wait(lg=[f'q{tau}_{m}'])
            acc=rng('v',ACC[nm],16); c='0' if tau==0 else acc
            a.i(f"v_mfma_f32_32x32x16_bf16 {acc}, {QF(b,m)}, {XF(tau)}, {c}")
            if m<len(R): a.emit(R[m])
            if m==0 and tau in sched:
                for g in sched[tau]:
                    if opts.get('nopub'):
                        for x in stores[g]:
                            if isinstance(x,tuple): a.vm.append(x[1])
                    else: a.emit(stores[g])
            elif q and tau<E2: a.drain(q,opts.get('epi_rate',7))
            elif pend: a.emit(pend.pop(0))
            elif q: drain_side2(a,q,4)
            elif opts.get('nowo1b'): pass
            elif wo and m==2: a.emit(wo.pop(0))
            elif wo and m==1 and opts.get('wo2',1): a.emit(wo.pop(0))
    assert not pend and not q, (len(pend),len(q))
    for tt_ in sorted(sched):
        if tt_>35:
            for g in sched[tt_]: a.emit(stores[g])
    opts['_wo_left']=wo
    a.stamp('1b_end')
    a.emit(kv_flag_load(0))
    a.nop(14)
    T=76
    for ti,nm in enumerate(('Q0','Q1','Q2')):
        base=ACC[nm]; ni=4 if ti<2 else 1
        for r in range(4*ni): a.i(f"v_mul_f32 v{base+r}, {sSC}, v{base+r}")
    for ti,nm in enumerate(('Q0','Q1','Q2')):
        base=ACC[nm]; ni=4 if ti<2 else 1
        for i in range(ni):
            t0=T+2*((ti*4+i)%8)
            a.i(f"v_cvt_pk_bf16_f32 v{t0}, v{base+4*i}, v{base+4*i+1}"); a.i(f"v_cvt_pk_bf16_f32 v{t0+1}, v{base+4*i+2}, v{base+4*i+3}")
            if ti==0 and i==0: a.i("s_barrier")
            a.i(f"ds_write2_b32 {vQw}, v{t0}, v{t0+1} offset0:{16*ti+4*i} offset1:{16*ti+4*i+1}",'e2w')
    a.i(f"v_mov_b32 {vT}, 0")
    for i in range(4):
        for r in range(4,8): a.i(f"v_accvgpr_write_b32 a{8*i+r}, {vT}")
    a.wait(lg=0); a.i("s_barrier")
    for i in range(4):
        a.i(f"v_add_u32 v88, {QBASE+KBLK*i}, {vKr}")
        a.i(f"ds_read2_b32 a[{8*i}:{8*i+1}], v88 offset0:0 offset1:1",'qf')
        a.i(f"ds_read2_b32 a[{8*i+2}:{8*i+3}], v88 offset0:2 offset1:3",'qf')
    a.i(f"s_mov_b64 exec, {sLO}")
    for i in range(4):
        a.i(f"v_add_u32 v89, {QBASE+KBLK*i}, {vKl}")
        a.i(f"ds_read_b32 a{8*i+4}, v89",'qf')
    a.i("s_mov_b64 exec, -1")
    a.wait(lg='qf')
    a.i("s_barrier")
    a.stamp('q_ready')

def drain_side2(a, q, n):
    k=0; inexec=False; last=''
    while q and (k<n or inexec or last.startswith('s_cmp') or (q[0] if isinstance(q[0],str) else q[0][0]).startswith('s_cselect')):
        x=q.pop(0)
        txt=x[0] if isinstance(x,tuple) else x
        if txt.startswith('s_mov_b64 exec'): inexec = not txt.endswith('-1')
        if isinstance(x,tuple): a.i(*x)
        else: a.i(x)
        last=txt; k+=1

vFL='v[6:7]'; vFA='v5'
def kv_flag_load(rnd):
    L=[]
    if rnd==0:
        L+= [f"s_cmp_ge_u32 {sC}, 2", f"s_cselect_b32 {sT1}, 2, 1", f"s_lshl_b32 {sT1}, {sT1}, 9",
             f"s_sub_u32 {sT0}, {sFKV}, 512", f"s_sub_u32 {sT1}, {sFKV}, {sT1}",
             f"s_cmp_eq_u32 {sC}, 0", f"s_cselect_b32 {sT0}, {sFKV}, {sT0}", f"s_cselect_b32 {sT1}, {sFKV}, {sT1}",
             f"v_mov_b32 v8, {sT0}", f"v_mov_b32 v9, {sT1}", f"v_cmp_eq_u32 vcc, 0, {vLane}", "s_nop 1",
             f"v_cndmask_b32 {vFA}, v9, v8, vcc"]
    L+= ["s_mov_b64 exec, 3", (f"buffer_load_dwordx2 {vFL}, {vFA}, {sWS}, 0 offen sc1", f'fl{rnd}'), "s_mov_b64 exec, -1"]
    return L

def kv_flag_check(a, rnd, need):
    a.wait(vm=f'fl{rnd}')
    a.i(f"s_mov_b32 {sCNT}, 200000")
    a.label(f"L_chk{rnd}")
    a.i(f"s_cmp_eq_u32 {sC}, 0"); a.i(f"s_cbranch_scc1 L_ok{rnd}")
    a.i("s_mov_b64 exec, 3")
    a.i(f"v_subrev_u32 v8, {sNONh}, v7")
    a.i(f"v_cmp_eq_u32 vcc, {sNONl}, v6")
    a.i(f"v_cmp_le_u32 s[4:5], {need}, v8")
    a.i(f"v_cmp_ge_u32 s[6:7], 4, v8")
    a.i("s_mov_b64 exec, -1")
    a.i("s_and_b64 s[4:5], s[4:5], vcc"); a.i("s_and_b64 s[4:5], s[4:5], s[6:7]"); a.i("s_and_b32 s4, s4, 3")
    a.i("s_cmp_eq_u32 s4, 3"); a.i(f"s_cbranch_scc1 L_ok{rnd}")
    a.i("s_mov_b64 exec, 3")
    a.i(f"buffer_load_dwordx2 {vFL}, {vFA}, {sWS}, 0 offen sc1", cond=True)
    a.i("s_mov_b64 exec, -1")
    a.i("s_waitcnt vmcnt(0)")
    a.i(f"s_sub_u32 {sCNT}, {sCNT}, 1"); a.i(f"s_cmp_lg_u32 {sCNT}, 0"); a.i(f"s_cbranch_scc1 L_chk{rnd}")
    a.label(f"L_ok{rnd}")
    a.stamp(f'chk{rnd}')

def wo_addr(a):
    L=vLane
    a.i(f"s_mul_i32 s6, {sNQ}, 288")
    a.i(f"v_lshrrev_b32 v4, 4, {L}")
    a.i(f"v_and_b32 v5, 15, {L}")
    for par in range(2):
        a.i(f"v_add_u32 v6, {4*par}, v4"); a.i(f"v_lshlrev_b32 v6, 1, v6"); a.i(f"v_xor_b32 v6, v5, v6")
        a.i(f"v_lshlrev_b32 v6, 4, v6"); a.i(f"v_add_u32 v6, s6, v6")
        a.i(f"v_mul_u32_u24 v7, {XROW}, v4"); a.i(f"v_add_u32 {vWOm[par]}, v6, v7")
        a.i(f"v_lshrrev_b32 v7, 1, v4"); a.i(f"v_mul_u32_u24 v7, 18, v7"); a.i(f"v_and_b32 v8, 1, v4"); a.i(f"v_add_u32 v7, v7, v8")
        a.i(f"v_mul_u32_u24 v7, {XROW}, v7"); a.i(f"v_add_u32 {vWOl[par]}, v6, v7")
    a.i(f"v_lshrrev_b32 v4, 1, {L}")
    a.i(f"v_and_b32 v5, 1, {L}"); a.i(f"v_lshlrev_b32 v5, 4, v5"); a.i(f"v_add_u32 v5, 256, v5"); a.i(f"v_add_u32 v5, s6, v5")
    a.i(f"v_bfe_u32 v6, v4, 2, 2")
    a.i(f"v_and_b32 v7, 3, v4"); a.i(f"v_lshrrev_b32 v8, 4, v4")
    a.i(f"v_lshrrev_b32 v2, 1, v6"); a.i(f"v_mul_u32_u24 v2, 18, v2"); a.i(f"v_add_u32 v2, v2, v7"); a.i(f"v_lshl_add_u32 v2, v8, 3, v2")
    a.i(f"v_and_b32 v3, 1, v6"); a.i(f"v_lshl_add_u32 v2, v3, 2, v2"); a.i(f"v_mul_u32_u24 v2, {XROW}, v2"); a.i(f"v_add_u32 {vWOt[0]}, v2, v5")
    a.i(f"v_lshl_add_u32 v7, v8, 2, v7")
    a.i(f"v_lshrrev_b32 v2, 1, v7"); a.i(f"v_lshl_add_u32 v2, v6, 2, v2"); a.i(f"v_mul_u32_u24 v2, 18, v2")
    a.i(f"v_and_b32 v3, 1, v7"); a.i(f"v_add3_u32 v2, v2, v3, 16"); a.i(f"v_mul_u32_u24 v2, {XROW}, v2"); a.i(f"v_add_u32 {vWOt[1]}, v2, v5")

def wo_dma_groups(kap, slot, uniform_setup):
    Gs=[]
    left = kap>=16
    for e in range(8):
        if left: const=((4*(e&3)+2*(e>>2))*18+16)*XROW
        else: const=(((e&3)>>1)*18+8*(e>>2)+4*(e&1))*XROW
        pre = list(uniform_setup) if e==0 else []
        if e%4==0: pre += [f"s_add_u32 m0, {sT3}, {4096*(e//4)}"]
        voff=(vWOl if left else vWOm)[e&1]
        Gs.append(pre+[f"s_add_u32 {sWOs}, {sT2}, {const-1024*(e%4)}" if const-1024*(e%4)>=0 else f"s_sub_u32 {sWOs}, {sT2}, {1024*(e%4)-const}",
                       (f"buffer_load_dwordx4 {voff}, {sWO}, {sWOs} offen offset:{1024*(e%4)} lds",'wo')])
    Gs.append([f"s_add_u32 m0, {sT3}, 8192", "s_nop 0", (f"buffer_load_dwordx4 {vWOt[1 if left else 0]}, {sWO}, {sT2} offen lds",'wo')])
    return Gs

def wo_prefetch_groups():
    Gs=[]
    for it in range(4):
        setup=[f"s_add_u32 {sT1}, {sWV}, {4*it}", f"s_mul_i32 {sT2}, {sT1}, 41472", f"s_mul_i32 {sT3}, {sT1}, 9216"]
        Gs+=wo_dma_groups(0,None,setup)
    return Gs

def wo_left_groups(L_, ldsbase, regs=None):
    vl0,vl1,vt = regs or (vWOl[0],vWOl[1],vWOt[1])
    g0=L_*16*18*XROW
    setup=[f"s_lshl_b32 {sT1}, {sWV}, 1", f"s_and_b32 {sT1}, {sT1}, 3", f"s_lshl_b32 {sT1}, {sT1}, 2",
           f"s_lshr_b32 {sT2}, {sWV}, 1", f"s_lshl_b32 {sT2}, {sT2}, 1", f"s_add_u32 {sT1}, {sT1}, {sT2}",
           f"s_mul_i32 {sT1}, {sT1}, {18*XROW}", f"s_add_u32 {sT2}, {sT1}, {g0+16*XROW}",
           f"s_lshl_b32 {sT1}, {sWV}, 11", f"s_add_u32 m0, {sT1}, {ldsbase}", "s_nop 0"]
    G0=setup+[(f"buffer_load_dwordx4 {vl0}, {sWO}, {sT2} offen lds",'wo')]
    G1=[f"s_add_u32 {sT2}, {sT2}, {4*18*XROW-1024}", (f"buffer_load_dwordx4 {vl1}, {sWO}, {sT2} offen offset:1024 lds",'wo')]
    G2=[f"s_mov_b32 {sT2}, {g0}", f"s_mov_b32 m0, {ldsbase+8192}", "s_nop 0", (f"buffer_load_dwordx4 {vt}, {sWO}, {sT2} offen lds",'wo')]
    return [G0,G1,G2]

def halo_load_groups(hb):
    base=HALO+14*hb; src=sKV2 if hb<4 else sKV1; bt=hb%4; tg=f'h{hb}'
    return [[f"s_add_u32 {sT0}, {src}, {9216*bt}",
             (f"buffer_load_dwordx4 a[{base}:{base+3}], {vPk}, {sWS}, {sT0} offen sc1", tg),
             (f"buffer_load_dword a{base+4}, {vPl}, {sWS}, {sT0} offen sc1", tg),
             f"s_mov_b64 exec, {sVM}",
             (f"buffer_load_dwordx4 a[{base+6}:{base+9}], {vPv}, {sWS}, {sT0} offen sc1", tg),
             (f"buffer_load_dwordx4 a[{base+10}:{base+13}], {vPv}, {sWS}, {sT0} offen offset:576 sc1", tg),
             "s_mov_b64 exec, -1"]]

def get_nonce(a):
    a.i(f"v_readfirstlane_b32 {sNONl}, v48"); a.i(f"v_readfirstlane_b32 {sNONh}, v49"); a.i("s_nop 1")
    a.i(f"s_or_b32 {sT0}, {sNONl}, {sNONh}"); a.i(f"s_cmp_lg_u32 {sT0}, 0"); a.i("s_cbranch_scc1 L_have_nonce")
    a.i(f"s_mov_b32 {sCNT}, 100000")
    a.label("L_nonce_poll")
    a.i(f"v_mov_b32 {vT}, 0")
    a.i(f"buffer_load_dwordx2 {vNON}, {vT}, {sDBG}, 0 offen sc1", cond=True)
    a.i("s_waitcnt vmcnt(0)")
    a.i(f"v_readfirstlane_b32 {sNONl}, v48"); a.i(f"v_readfirstlane_b32 {sNONh}, v49"); a.i("s_nop 1")
    a.i(f"s_or_b32 {sT0}, {sNONl}, {sNONh}"); a.i(f"s_cmp_lg_u32 {sT0}, 0"); a.i("s_cbranch_scc1 L_have_nonce")
    a.i("s_sleep 2"); a.i(f"s_sub_u32 {sCNT}, {sCNT}, 1"); a.i(f"s_cmp_lg_u32 {sCNT}, 0"); a.i("s_cbranch_scc1 L_nonce_poll")
    a.label("L_have_nonce")

def kv_regs(jb): return ('v', OWN+14*jb) if jb>=0 else ('a', HALO+14*(jb+8))
HORDER=[-4,-3,-8,-7,-2,-1,-6,-5]
def tile_list():
    T=[(i,bt) for i in range(4) for bt in range(i+1)]
    for jb in HORDER[:4]:
        for i in range(4):
            if i-jb<=8: T.append((i,jb))
    if GOPT.get('r2_by_q',1):
        for i in (3,2,1,0):
            for jb in HORDER[4:]:
                if i-jb<=8: T.append((i,jb))
    else:
        for jb in HORDER[4:]:
            for i in range(4):
                if i-jb<=8: T.append((i,jb))
    return T

def norm_block(i):
    O=OACC+16*i; t=84; L=[]
    L.append(f"v_rcp_f32 v{t}, v{O+10}")
    L.append(f"v_cmp_nle_f32 vcc, v252, v{O+10}")
    L.append(f"v_cmp_nge_f32 s[4:5], v253, v{O+10}")
    for r in range(10): L.append(f"v_mul_f32 v{O+r}, v{t}, v{O+r}")
    L.append(f"s_or_b64 {sBAD}, {sBAD}, vcc"); L.append(f"s_or_b64 {sBAD}, {sBAD}, s[4:5]")
    L.append(f"v_pk_add_f32 v[{t+2}:{t+3}], v[{O}:{O+1}], v[{O+2}:{O+3}]")
    L.append(f"v_pk_add_f32 v[{t+4}:{t+5}], v[{O+4}:{O+5}], v[{O+6}:{O+7}]")
    L.append(f"v_pk_add_f32 v[{t+2}:{t+3}], v[{t+2}:{t+3}], v[{O+8}:{O+9}]")
    L.append(f"v_pk_add_f32 v[{t+2}:{t+3}], v[{t+2}:{t+3}], v[{t+4}:{t+5}]")
    L.append(f"v_add_f32 v{t+2}, v{t+2}, v{t+3}")
    for u in range(5): L.append(f"v_cvt_pk_bf16_f32 v{O+u}, v{O+2*u}, v{O+2*u+1}")
    L.append(f"v_cmp_class_f32 vcc, v{t+2}, v254")
    L.append(f"s_add_u32 {sT0}, {sOM}, {i*32*OUTROW}"); L.append(f"s_add_u32 {sT1}, {sOL}, {i*32*OUTROW}")
    L.append(f"s_or_b64 {sBAD}, {sBAD}, vcc")
    L.append(('OSTORE',i))
    return L

def emit_ostore(a, i):
    O=OACC+16*i
    if not GOPT.get('olocal'):
        a.i(f"buffer_store_dwordx4 v[{O}:{O+3}], {vPk}, {sOUT}, {sT0} offen sc1", 'ost')
        a.i(f"s_mov_b64 exec, {sLO}")
        a.i(f"buffer_store_dword v{O+4}, {vOl}, {sOUT}, {sT1} offen sc1", 'ost')
        a.i(f"s_mov_b64 exec, -1")
        return
    a.i(f"s_cmp_eq_u32 {sLOC}, 1"); a.i(f"s_cbranch_scc1 L_osl{i}")
    a.i(f"buffer_store_dwordx4 v[{O}:{O+3}], {vPk}, {sOUT}, {sT0} offen sc1", 'x', True)
    a.i(f"s_mov_b64 exec, {sLO}")
    a.i(f"buffer_store_dword v{O+4}, {vOl}, {sOUT}, {sT1} offen sc1", 'x', True)
    a.i(f"s_mov_b64 exec, -1")
    a.i(f"s_branch L_ose{i}")
    a.label(f"L_osl{i}")
    a.i(f"buffer_store_dwordx4 v[{O}:{O+3}], {vPk}, {sOUT}, {sT0} offen", 'ost')
    a.i(f"s_mov_b64 exec, {sLO}")
    a.i(f"buffer_store_dword v{O+4}, {vOl}, {sOUT}, {sT1} offen", 'ost')
    a.i(f"s_mov_b64 exec, -1")
    a.label(f"L_ose{i}")

def o_pretouch():
    L=vLane
    return [f"v_lshrrev_b32 v2, 3, {L}", f"v_mul_u32_u24 v2, {32*OUTROW}, v2", f"v_and_b32 v3, 7, {L}", f"v_lshl_add_u32 v2, v3, 7, v2",
            f"v_add_u32 v2, {sOM}, v2",
            f"v_bfe_u32 v3, {L}, 2, 2", f"v_mul_u32_u24 v3, {32*OUTROW}, v3", f"v_and_b32 v4, 3, {L}", f"v_mul_u32_u24 v4, {OUTROW}, v4",
            f"v_add3_u32 v3, v3, v4, {sOL}",
            f"v_cmp_le_u32 vcc, 32, {L}", f"s_lshl_b32 {sT0}, {sG}, 2", f"s_add_u32 {sT0}, {sT0}, {sWV}", f"v_cndmask_b32 v2, v2, v3, vcc",
            "s_mov_b32 s4, -1", "s_mov_b32 s5, 0xffff", "s_mov_b64 exec, s[4:5]",
            (f"buffer_load_dword v255, v2, {sOUT}, 0 offen",'touch'), "s_mov_b64 exec, -1",
            f"s_lshl_b32 {sT0}, {sT0}, 7", f"s_add_u32 {sT0}, {sT0}, {sFO}",
            f"v_mul_u32_u24 v2, {WS_FWL-WS_FOL}, {L}", f"v_add_u32 v2, {WS_FOL-WS_FO}, v2",
            "s_mov_b64 exec, 3", (f"buffer_load_dword v255, v2, {sWS}, {sT0} offen",'touch'), "s_mov_b64 exec, -1"]

def attention(a, opts):
    a.c("---- attention")
    T=tile_list(); n=len(T)
    first={}; last={}; firstuse={}
    for k,(i,jb) in enumerate(T):
        first.setdefault(i,k); last[i]=k; firstuse.setdefault(jb,k)
    Sreg=lambda k: (S0 if k%2==0 else S1)
    Preg=lambda k: (P0 if k%2==0 else P1)
    def qk(k):
        i,jb=T[k]; p,base=kv_regs(jb); S=rng('v',Sreg(k),16)
        return [f"v_mfma_f32_32x32x16_bf16 {S}, {rng(p,base,4)}, a[{8*i}:{8*i+3}], 0",
                f"v_mfma_f32_32x32x16_bf16 {S}, {rng(p,base+4,4)}, a[{8*i+4}:{8*i+7}], {S}"]
    def pv(k):
        i,jb=T[k]; p,base=kv_regs(jb); O=rng('v',OACC+16*i,16); P=Preg(k)
        c0='0' if k==first[i] else O
        return [f"v_mfma_f32_32x32x16_bf16 {O}, {rng(p,base+6,4)}, v[{P}:{P+3}], {c0}",
                f"v_mfma_f32_32x32x16_bf16 {O}, {rng(p,base+10,4)}, v[{P+4}:{P+7}], {O}"]
    waited=set()
    wo=list(opts.get('_wo_left',[]))+wo_group_for(12)+wo_left_groups(0,16*9216)
    WO_START=opts.get('wo_start',0)
    CHK0=opts.get('chk0',0); FLAGB=opts.get('flagB',3); FL1=opts.get('fl1',9); CHK1=opts.get('chk1',14)
    WO_PAUSE=opts.get('wo_pause',1)
    a.i(f"v_mov_b32 v254, 0x207")
    q0=qk(0); a.i(q0[0]); a.i(q0[1])
    extra=[]; hq=[]
    for k in range(n+1):
        a.stamp(f't{k}_')
        if k==CHK0:
            kv_flag_check(a,0,2)
            for jb in HORDER[:4]:
                hq += halo_load_groups(jb+8)
        if k==FLAGB:
            a.wait(vm='pubB'); a.emit(flag_store_ins(4))
        if k==FL1: a.emit(kv_flag_load(1))
        if opts.get('olocal') and k==opts.get('pre_at',19): a.emit(o_pretouch())
        if opts.get('olocal') and k==opts.get('xtl',24): a.emit(xt_load())
        if opts.get('olocal') and k==opts.get('xtc',30): xt_check(a)
        if k==CHK1:
            kv_flag_check(a,1,4)
            for jb in HORDER[4:]:
                hq += halo_load_groups(jb+8)
        mf=[]
        if k+1<n:
            i,jb=T[k+1]
            if jb<0 and jb not in waited:
                if not waited: a.stamp('own_done')
                assert any(t==f'h{jb+8}' for t in a.vm), jb
                waited.add(jb); a.wait(vm=f'h{jb+8}')
                if len(waited)==1: a.stamp('h0_landed')
            mf+=qk(k+1)
        else: mf+=[None,None]
        mf += pv(k-1) if k>=1 else [None,None]
        if k==0: a.nop(12)
        S=Sreg(k); P=Preg(k)
        i,jb=T[k] if k<n else (None,None)
        for seg in range(4):
            pk,ps = (k,seg-1) if seg>0 else (k-1,3)
            if pk>=0 and pk<n:
                Sp=Sreg(pk); Pp=Preg(pk); ip,jp=T[pk]
                for u in (2*ps,2*ps+1): a.i(f"v_cvt_pk_bf16_f32 v{Pp+u}, v{Sp+2*u}, v{Sp+2*u+1}")
                if jp==ip or jp==ip-8:
                    M=MASKD if jp==ip else MASKF
                    for u in (2*ps,2*ps+1): a.i(f"v_and_b32 v{Pp+u}, v{M+u}, v{Pp+u}")
            if k==n and seg==2: a.nop(2)
            if mf[seg]: a.i(mf[seg])
            if k<n:
                for e in range(4): a.i(f"v_exp_f32 v{S+4*seg+e}, v{S+4*seg+e}")
            a.drain(extra, 6 if k<n else 1000)
            if hq and seg in (0,2): a.emit(hq.pop(0))
            paused = WO_PAUSE and ((CHK0<=k<10) or (CHK1<=k<CHK1+9))
            if k>=WO_START and wo and not paused and seg in (0,1,3): a.emit(wo.pop(0))
        if k>=1:
            ib=T[k-1][0]
            if last[ib]==k-1:
                if k==n:
                    a.nop(14); a.emit(norm_block(ib))
                else: extra+=["s_nop 1"]+norm_block(ib)
    assert not extra
    for g in wo: a.emit(g)
    a.stamp('att_end')

OF=16
DACC=88
AFV=124
vAr=[f'v{2+t}' for t in range(9)]
vOf='v11'; vOut='v12'; vOf2='v95'

def phase3(a, opts):
    a.c("---- phase 3")
    L=vLane
    a.i(f"v_mov_b32 v88, {vWOl[0]}"); a.i(f"v_mov_b32 v89, {vWOl[1]}"); a.i(f"v_mov_b32 v90, {vWOt[1]}")
    a.i(f"v_lshrrev_b32 v13, 2, {L}")
    a.i(f"v_and_b32 v14, 7, v13"); a.i(f"v_lshlrev_b32 v14, 5, v14")
    a.i(f"v_lshl_add_u32 v14, v13, 8, v14")
    a.i(f"v_and_b32 v15, 3, {L}"); a.i(f"v_lshl_add_u32 v14, v15, 3, v14")
    for t in range(8): a.i(f"v_xor_b32 {vAr[t]}, {32*t}, v14")
    a.i(f"v_lshlrev_b32 v13, 5, v13"); a.i(f"v_lshl_add_u32 v13, v15, 3, v13"); a.i(f"v_add_u32 {vAr[8]}, 8192, v13")
    a.i(f"v_and_b32 v13, 15, {L}"); a.i(f"v_lshrrev_b32 v14, 4, {L}")
    a.i(f"s_and_b32 s6, {sWV}, 1"); a.i(f"s_lshl_b32 s6, s6, 8")
    a.i(f"v_lshl_add_u32 v15, v13, 4, s6")
    a.i(f"v_and_b32 v93, 1, v14"); a.i(f"v_lshl_add_u32 {vOf}, v93, 9, v15"); a.i(f"v_lshrrev_b32 v93, 1, v14")
    a.i(f"v_mul_u32_u24 v93, {OUTROW}, v93"); a.i(f"v_add_u32 {vOf}, {vOf}, v93")
    a.i(f"v_lshrrev_b32 v93, 7, v15"); a.i(f"v_lshl_add_u32 v93, v14, 2, v93"); a.i(f"v_mul_u32_u24 v93, {OUTROW}, v93")
    a.i(f"v_and_b32 v94, 0x70, v15"); a.i(f"v_add_u32 {vOf2}, v93, v94")
    a.i(f"v_mul_u32_u24 v15, {OUTROW}, v13"); a.i(f"v_lshl_add_u32 {vOut}, v14, 3, v15")
    a.wait(vm='wo')
    a.i("s_barrier")
    a.stamp('wo_ready')
    if opts.get('dumpwo'):
        a.i("s_cmp_lg_u32 s2, 0"); a.i("s_cbranch_scc1 L_nodump")
        a.i("v_lshlrev_b32 v13, 4, v0")
        for it in range(39):
            a.i(f"ds_read_b128 v[124:127], v13 offset:0")
            a.i("s_waitcnt lgkmcnt(0)")
            a.i(f"v_add_u32 v14, {WS_DBG+0x100000}, v13")
            a.i(f"buffer_store_dwordx4 v[124:127], v14, {sWS}, 0 offen", cond=True)
            a.i("s_waitcnt vmcnt(0)")
            a.i("v_add_u32 v13, 4096, v13")
        a.label("L_nodump"); a.lg_clear()
    def frag_reads(kap, dst):
        slot=kap if kap<17 else 0
        R=[]
        for t in range(9):
            p,r=dst(kap,t)
            off=(slot%7)*9216
            hoff=4096 if t<8 else 512
            R.append([(f"ds_read_b64_tr_b16 {p}[{r+2*h}:{r+2*h+1}], {vAr[t]} offset:{off+hoff*h}", f'a{kap}_{t}') for h in range(2)])
        return R
    NA=7
    def dst(kap,t):
        if kap<NA: return 'a', (kap*9+t)*4
        idx=((kap-NA)*9+t)%32
        return 'v', AFV+idx*4
    bump=lambda: [f"v_add_u32 {vAr[t]}, {7*9216}, {vAr[t]}" for t in range(9)]
    def oflag():
        a.i(f"s_lshl_b32 {sT0}, {sG}, 2"); a.i(f"s_add_u32 {sT0}, {sT0}, {sWV}"); a.i(f"s_lshl_b32 {sT0}, {sT0}, 7"); a.i(f"s_add_u32 {sT0}, {sT0}, {sFO}")
        a.i(f"v_mov_b32 v14, {sNONl}"); a.i(f"v_mov_b32 v13, 0")
        if not opts.get('olocal'):
            a.i(f"v_mov_b32 v15, {sNONh}"); a.i("s_mov_b64 exec, 1")
            a.i(f"buffer_store_dwordx2 v[14:15], v13, {sWS}, {sT0} offen sc1", 'oflag'); a.i("s_mov_b64 exec, -1")
            return
        a.i(f"s_cmp_eq_u32 {sLOC}, 1"); a.i("s_cbranch_scc1 L_ofl")
        a.i(f"v_mov_b32 v15, {sNONh}")
        a.i("s_mov_b64 exec, 1")
        a.i(f"buffer_store_dwordx2 v[14:15], v13, {sWS}, {sT0} offen sc1", 'x', True)
        a.i("s_branch L_ofe")
        a.label("L_ofl")
        a.i(f"s_add_u32 {sT0}, {sT0}, {WS_FOL-WS_FO}")
        a.i(f"v_mov_b32 v15, {sLFH}")
        a.i("s_mov_b64 exec, 1")
        a.i(f"buffer_store_dwordx2 v[14:15], v13, {sWS}, {sT0} offen", tag='oflag')
        a.label("L_ofe")
        a.i("s_mov_b64 exec, -1")
    LF_AT=opts.get('lf_at',1)
    for kap in range(NA):
        if kap==LF_AT:
            a.wait(vm='ost'); oflag(); a.stamp('o_lflag')
        for grp in frag_reads(kap,dst): a.emit(grp)
        if kap%2==1: a.wait(lg=8)
    a.emit(bump())
    for kap in range(NA,NA+3):
        for grp in frag_reads(kap,dst): a.emit(grp)
    a.wait(lg=0)
    a.i("s_barrier")
    for g in wo_left_groups(1,0,('v88','v89','v90')): a.emit(g)
    a.stamp('frags_pre')
    a.i(f"v_and_b32 v13, 31, {L}"); a.i(f"v_lshlrev_b32 v13, 7, v13")
    a.i(f"v_mov_b32 v91, {sNONh}")
    if opts.get('olocal'):
        a.i(f"v_add_u32 v14, {WS_FOL-WS_FO}, v13"); a.i(f"v_cmp_le_u32 vcc, 32, {L}")
        a.i(f"v_mov_b32 v92, {sLFH}"); a.i("s_nop 0")
        a.i(f"v_cndmask_b32 v13, v13, v14, vcc"); a.i(f"v_cndmask_b32 v91, v91, v92, vcc")
    a.i(f"s_mov_b32 {sCNT}, 200000")
    a.label("L_opoll")
    if not opts.get('olocal'): a.i(f"s_mov_b64 exec, {sLO}")
    a.i(f"buffer_load_dwordx2 v[14:15], v13, {sWS}, {sFO} offen sc1", cond=True)
    a.i("s_waitcnt vmcnt(0)")
    a.i(f"v_cmp_eq_u32 vcc, {sNONl}, v14"); a.i(f"v_cmp_eq_u32 s[4:5], v91, v15")
    a.i("s_mov_b64 exec, -1")
    a.i("s_and_b64 s[4:5], s[4:5], vcc"); a.i("s_or_b32 s4, s4, s5"); a.i("s_cmp_eq_u32 s4, -1"); a.i("s_cbranch_scc1 L_opoll_done")
    a.i(f"s_sub_u32 {sCNT}, {sCNT}, 1"); a.i(f"s_cmp_lg_u32 {sCNT}, 0"); a.i("s_cbranch_scc1 L_opoll")
    a.label("L_opoll_done")
    a.stamp('opoll_done')
    KORD=[7,8,9]+list(range(7))+list(range(10,18))
    for kap in KORD:
        if kap<16:
            a.i(f"s_add_u32 {sT0}, {sPOM}, {2*OUTROW*kap}")
            a.i(f"buffer_load_dwordx4 v[{OF+4*kap}:{OF+4*kap+3}], {vOf}, {sOUT}, {sT0} offen sc1", tag=f'of{kap}')
        else:
            a.i(f"s_add_u32 {sT0}, {sPOL}, {16*OUTROW*(kap-16)}")
            a.i(f"buffer_load_dwordx4 v[{OF+4*kap}:{OF+4*kap+3}], {vOf2}, {sOUT}, {sT0} offen sc1", tag=f'of{kap}')
    a.stamp('p3_oissued')
    a.wait(vm='wo'); a.i("s_barrier")
    rq=[]
    for kap in range(NA+3,18):
        R=frag_reads(kap,dst)
        for t in range(9): rq.append((kap,t,R[t]))
    issued=(NA+3-NA)*9
    consumed=0; mcount=0
    def war_store():
        a.wait(vm=f'of{KORD[-1]}')
        a.i(f"s_lshl_b32 {sT0}, {sG}, 2"); a.i(f"s_add_u32 {sT0}, {sT0}, {sWV}"); a.i(f"s_lshl_b32 {sT0}, {sT0}, 7"); a.i(f"s_add_u32 {sT0}, {sT0}, {sFO}")
        a.i(f"v_mov_b32 v252, {sNONl}"); a.i(f"v_mov_b32 v254, 0")
        a.i(f"s_add_u32 {sT0}, {sT0}, {WS_FW-WS_FO}")
        if opts.get('olocal'):
            a.i(f"s_cmp_eq_u32 {sLOC}, 1"); a.i("s_cbranch_scc1 L_wl")
        a.i(f"v_mov_b32 v253, {sNONh}"); a.i("s_mov_b64 exec, 1")
        a.i(f"buffer_store_dwordx2 v[252:253], v254, {sWS}, {sT0} offen sc1", 'war' if not opts.get('olocal') else 'x', bool(opts.get('olocal')))
        if opts.get('olocal'):
            a.i("s_branch L_we"); a.label("L_wl")
            a.i(f"s_add_u32 {sT0}, {sT0}, {WS_FWL-WS_FW}"); a.i(f"v_mov_b32 v253, {sLFH}"); a.i("s_mov_b64 exec, 1")
            a.i(f"buffer_store_dwordx2 v[252:253], v254, {sWS}, {sT0} offen", 'war')
            a.label("L_we")
        a.i("s_mov_b64 exec, -1")
    def war_addr():
        a.i(f"v_and_b32 v13, 15, {L}"); a.i(f"s_lshl_b32 {sT0}, {sRH}, 4"); a.i(f"v_add_u32 v13, {sT0}, v13"); a.i(f"v_lshlrev_b32 v13, 7, v13")
        a.i(f"v_add_u32 v13, {WS_FW-WS_FO}, v13"); a.i(f"v_add_u32 v14, {WS_FWL-WS_FW}, v13"); a.i(f"v_cmp_le_u32 vcc, 16, {L}")
        a.i(f"v_mov_b32 v15, {sNONh}"); a.i(f"v_mov_b32 v1, {sLFH if opts.get('olocal') else sNONh}")
        a.i(f"v_cndmask_b32 v13, v13, v14, vcc"); a.i(f"v_cndmask_b32 v15, v15, v1, vcc")
    def war_load(cond=False):
        a.i(f"s_mov_b64 exec, {sLO}"); a.i(f"buffer_load_dwordx2 v[0:1], v13, {sWS}, {sFO} offen sc1", 'warl', cond); a.i("s_mov_b64 exec, -1")
    base_slot=7
    for kap in KORD:
        a.wait(vm=f'of{kap}')
        for t in range(9):
            p,r=dst(kap,t)
            if kap>=NA:
                n_=a.lg_n(f'a{kap}_{t}')
                if n_ is not None: a.wait(lg=f'a{kap}_{t}')
            acc=rng('v',DACC+4*t,4); c='0' if kap==KORD[0] else acc
            a.i(f"v_mfma_f32_16x16x32_bf16 {acc}, {p}[{r}:{r+3}], v[{OF+4*kap}:{OF+4*kap+3}], {c}")
            if kap>=NA: consumed+=1
            mcount+=1
            if mcount in (1,27,90,126): a.stamp(f'p3_m{mcount}_')
            if mcount==opts.get('war_st',70): war_store()
            if mcount==opts.get('war_ld',125): war_addr(); war_load()
            if rq and issued-consumed<31:
                k2,t2,ins=rq[0]
                if k2==14 and t2==0 and base_slot==7:
                    a.emit(bump()); base_slot=14
                if k2==17 and t2==0:
                    a.emit([f"v_subrev_u32 {vAr[tt]}, {14*9216}, {vAr[tt]}" for tt in range(9)])
                rq.pop(0); a.emit(ins); issued+=1
    assert not rq
    a.stamp('p3_mfma_end')
    a.wait(vm='warl')
    a.i(f"s_mov_b32 {sCNT}, 200000")
    a.label("L_wchk")
    a.i(f"s_mov_b64 exec, {sLO}")
    a.i(f"v_cmp_eq_u32 vcc, {sNONl}, v0"); a.i(f"v_cmp_eq_u32 s[4:5], v15, v1")
    a.i("s_mov_b64 exec, -1")
    a.i("s_and_b64 s[4:5], s[4:5], vcc"); a.i("s_lshr_b32 s5, s4, 16"); a.i("s_or_b32 s4, s4, s5"); a.i("s_and_b32 s4, s4, 0xffff")
    a.i("s_cmp_eq_u32 s4, 0xffff"); a.i("s_cbranch_scc1 L_wok")
    war_load(True); a.i("s_waitcnt vmcnt(0)")
    a.i(f"s_sub_u32 {sCNT}, {sCNT}, 1"); a.i(f"s_cmp_lg_u32 {sCNT}, 0"); a.i("s_cbranch_scc1 L_wchk")
    a.label("L_wok")
    a.stamp('p3_war')
    a.nop(10)
    OT=9216; OP=304
    a.i(f"v_mbcnt_lo_u32_b32 v1, -1, 0"); a.i(f"v_mbcnt_hi_u32_b32 v1, -1, v1")
    a.i(f"v_and_b32 v13, 15, v1"); a.i(f"v_mul_u32_u24 v13, {OP}, v13"); a.i(f"v_lshrrev_b32 v14, 4, v1"); a.i(f"v_lshl_add_u32 v13, v14, 3, v13")
    a.i(f"s_mul_i32 {sT0}, {sWV}, {16*OP}"); a.i(f"s_add_u32 {sT0}, {sT0}, {OT}"); a.i(f"v_add_u32 v13, {sT0}, v13")
    for t in range(9):
        d=DACC+4*t
        a.i(f"v_cvt_pk_bf16_f32 v{d}, v{d}, v{d+1}"); a.i(f"v_cvt_pk_bf16_f32 v{d+1}, v{d+2}, v{d+3}")
        a.i(f"ds_write_b64 v13, v[{d}:{d+1}] offset:{32*t}", 'ow')
    for e in range(5):
        a.i(f"v_add_u32 v2, {64*e}, v1"); a.i(f"v_mul_u32_u24 v3, 58255, v2"); a.i(f"v_lshrrev_b32 v3, 20, v3")
        a.i(f"v_mul_u32_u24 v4, 18, v3"); a.i(f"v_sub_u32 v4, v2, v4"); a.i(f"v_lshlrev_b32 v4, 4, v4")
        a.i(f"v_mul_u32_u24 v5, {OP}, v3"); a.i(f"v_add3_u32 v{16+e}, v5, v4, {sT0}")
        a.i(f"v_mul_u32_u24 v5, {OUTROW}, v3"); a.i(f"v_add_u32 v{24+e}, v5, v4")
    a.wait(lg=0)
    for e in range(5):
        if e==4: a.i(f"s_mov_b64 exec, {sLO}")
        a.i(f"ds_read_b128 v[{32+4*e}:{35+4*e}], v{16+e}", f'or{e}')
    a.i("s_mov_b64 exec, -1")
    for e in range(5):
        a.wait(lg=f'or{e}')
        if e==4: a.i(f"s_mov_b64 exec, {sLO}")
        a.i(f"buffer_store_dwordx4 v[{32+4*e}:{35+4*e}], v{24+e}, {sOUT}, {sOUTB} offen {opts.get('outmod','')}")
    a.i("s_mov_b64 exec, -1")
    a.stamp('p3_stissued')
    a.i("s_waitcnt vmcnt(0)")

def kd(name, vgpr, accum, sgpr=102):
    return f""".section .rodata,"a"
.p2align 6
.amdhsa_kernel {name}
  .amdhsa_next_free_vgpr {vgpr}
  .amdhsa_next_free_sgpr {sgpr}
  .amdhsa_accum_offset {accum}
  .amdhsa_group_segment_fixed_size 0
  .amdhsa_kernarg_size 72
  .amdhsa_user_sgpr_count 2
  .amdhsa_user_sgpr_kernarg_segment_ptr 1
  .amdhsa_system_sgpr_workgroup_id_x 1
.end_amdhsa_kernel
"""
HEADER = """; Kernarg layout (72 bytes, ptrs only, base s[0:1]):
"""
def build(opts):
    ORDER_MODE[0]=opts.get('order','own'); GOPT.update(opts)
    a=G()
    if opts.get('stamps'):
        a.stamps=[]
        a.sel = opts['sel'].split(',') if 'sel' in opts else ['ch0_landed','1a_end','1b_end','q_ready','poll_done','own_done','att_end','wo_ready','frags_pre','opoll_done','p3_mfma_end','drained']
    prologue(a,opts)
    g0=dma_chunk_groups(0,0)
    for g in g0[:4]: a.emit(g)
    setupA(a,opts)
    setupB0(a,opts)
    for g in g0[4:]: a.emit(g)
    if opts.get('xtouch',1):
        L=vLane
        a.i(f"v_mul_u32_u24 v2, 7282, {L}"); a.i("v_lshrrev_b32 v2, 16, v2")
        a.i(f"v_mul_u32_u24 v3, 9, v2"); a.i(f"v_sub_u32 v3, {L}, v3"); a.i("v_min_u32 v2, 3, v2")
        a.i(f"s_lshl_b32 s5, {sC}, 7"); a.i(f"s_lshl_b32 s6, {sG}, 4"); a.i("s_add_u32 s5, s5, s6"); a.i(f"s_lshl_b32 s6, {sWV}, 2"); a.i("s_add_u32 s5, s5, s6")
        a.i(f"v_add_u32 v2, s5, v2"); a.i(f"v_mul_u32_u24 v2, {XROW}, v2"); a.i(f"v_lshl_add_u32 v2, v3, 7, v2")
        a.i("s_mov_b32 s6, -1"); a.i("s_mov_b32 s7, 15")
        a.emit(["s_mov_b64 exec, s[6:7]", (f"buffer_load_dword v255, v2, {sX}, 0 offen",'touch'), "s_mov_b64 exec, -1"])
    if opts.get('wotouch',2)==2: touch_wo(a)
    a.stamp('p_ch0')
    for g in dma_chunk_groups(1,1): a.emit(g)
    a.stamp('p_ch1')
    rec=Rec(); setupB(rec,opts)
    rec2=Rec(); wo_addr(rec2)
    ren=dict(zip(vWOm+vWOl+vWOt,vWOtmp))
    def rn(x):
        for k_,v_ in ren.items(): x=x.replace(f" {k_},",f" {v_},")
        return x
    opts['_side']=rec.l+[rn(x) for x in rec2.l]
    pend=dma_chunk_groups(2,2)
    pend=phase1a(a,opts,pend)
    phase1b(a,pend,opts)
    attention(a,opts)
    phase3(a,opts)
    a.stamp('drained'); a.stamp('rt_exit',real=True)
    if opts.get('dbgtime'):
        a.i("s_waitcnt lgkmcnt(0)")
        n=len(a.stamps)
        r0=a.stamps[0][1]; r1=a.stamps[-1][1]
        a.i(f"s_not_b32 s3, s{r0}")
        a.i("v_mov_b32 v2, s3"); a.i("v_mov_b32 v3, 8"); a.i(f"v_mov_b32 v4, s{r1}"); a.i("v_mov_b32 v5, 12")
        a.i("s_mov_b64 exec, 1")
        a.i(f"buffer_atomic_umax v2, v3, {sDBG}, 0 offen sc1"); a.i(f"buffer_atomic_umax v4, v5, {sDBG}, 0 offen sc1")
        a.i(f"s_cmp_lg_u32 s2, 77"); a.i("s_cbranch_scc1 L_nodbg"); a.i(f"s_cmp_lg_u32 {sWV}, 0"); a.i("s_cbranch_scc1 L_nodbg")
        e=a.stamps[1][1]
        for k,(nm,r) in enumerate(a.stamps[2:-1][:12]):
            a.i(f"s_sub_u32 s3, s{r}, s{e}"); a.i("v_mov_b32 v2, s3"); a.i(f"v_mov_b32 v3, {16+4*k}")
            a.i(f"buffer_store_dword v2, v3, {sDBG}, 0 offen")
        a.label("L_nodbg")
        a.i("s_mov_b64 exec, -1"); a.i("s_waitcnt vmcnt(0)")
    else: a.dump_stamps(0)
    a.label("L_end"); a.i("s_endpgm")
    errs=a.check()
    if opts.get('stamps'): print("stamps:",len(a.stamps),[x[0] for x in a.stamps])
    k1=f"{NAME}_kernel"
    txt=HEADER+f"; @launch grid=(256,1,1) block=(256,1,1) lds={LDS_BYTES}\n"
    txt+='.amdgcn_target "amdgcn-amd-amdhsa--gfx950"\n.text\n'
    txt+=f".globl {k1}\n.p2align 8\n.type {k1},@function\n{k1}:\n"+a.text()+kd(k1,512,256)
    return txt
if __name__=="__main__":
    out=sys.argv[1]
    opts={}
    for x in sys.argv[2:]:
        k,_,v=x.partition('='); opts[k]=int(v) if v.lstrip('-').isdigit() else (v or True)
    open(out,'w').write(build(opts)); print("written",out)
```

```python
import sys, os, struct
sys.path.insert(0, os.path.dirname(os.path.abspath(__file__)))
from asm import *
NAME = "concat_heads__sliding_block__sliding_block__prompt"
XROW=1152; WROW=3456; OUTROW=2304
X_BYTES=2048*1152; W_BYTES=576*3456; WO_BYTES=576*1152; OUT_BYTES=2048*2304
SLOT=36864; WPITCH=320; XOFF=20480; QPITCH=192; QCH=12288
VBASE=0; VR=1184; VJ=2368; VB=4736; KB3=18944; KB0=147456; KP=148; KBLK=32*148; QBASE=110592
LDS_BYTES=163840
WS_KV=0; WS_OM=0x1000000; WS_OL=0x1400000; WS_FKV=0x1800000; WS_FO=0x1840000; WS_FOL=0x1880000; WS_FW=0x1900000; WS_FWL=0x1940000
WS_XT=0x18C0000
WS_DBG=0x2000000; WS_BYTES=0x4000000
CSCALE = 1.4426950408889634/(18**0.5)
def f2u(x): return struct.unpack('<I',struct.pack('<f',x))[0]
def rng(p,a,n): return f'{p}[{a}:{a+n-1}]'

sX='s[8:11]'; sW='s[12:15]'; sWO='s[16:19]'; sOUT='s[20:23]'; sWS='s[24:27]'; sDBG='s[28:31]'
sB='s32'; sC='s33'; sG='s34'; sWV='s35'
sVM='s[54:55]'; sLO='s[56:57]'
sCI='s58'; sWoff='s59'; sXoff='s60'; sM0='s61'; sKVme='s62'
sT0='s63'; sT1='s64'; sT2='s65'; sFKV='s66'; sT3='s67'
sNONl='s68'; sNONh='s69'; sROT='s70'; sKV1='s71'; sKV2='s72'; sXCC='s73'
sBAD='s[74:75]'; sNVM='s[52:53]'; sCNT='s76'; sOM='s77'; sOL='s78'; sFO='s79'; sSC='s80'; sATT='s81'
sLFH='s70'; sLOC='s81'
sTRY='s52'
sRH='s82'; sNQ='s83'; sPOM='s84'; sPOL='s85'; sOUTB='s86'; sWOs='s87'
sIDX='s76'; sOFF='s81'

vLane='v1'
vWoff=[f'v{10+j}' for j in range(5)]
vXoff=[f'v{15+j}' for j in range(4)]
vQoff=['v19','v20','v21']
vWr=['v22','v23']; vMx=['v24','v25']
vXr=[[f'v{26+t}' for t in range(4)],[f'v{30+t}' for t in range(4)]]
vQr='v34'
vKw='v35'; vQw='v36'; vVw='v37'; vVt='v38'
vKr='v39'; vKl='v40'; vVr='v41'; vCw='v42'; vQl='v43'
vPk='v44'; vPl='v45'; vPv='v46'; vOl='v47'
vNON='v[48:49]'; vVC='v50'; vT='v51'
def WF(b,f): r=52+(b*5+f)*4; return f'v[{r}:{r+3}]'
def WFh(b,f,h): r=52+(b*5+f)*4+2*h; return f'v[{r}:{r+1}]'
def QF(b,f): r=52+(b*3+f)*4; return f'v[{r}:{r+3}]'
def QFh(b,f,h): r=52+(b*3+f)*4+2*h; return f'v[{r}:{r+1}]'
ACC={'K0':92,'K1':108,'V0':124,'V1':140,'MX':156,'Q0':172,'Q1':188,'Q2':204}
def XF(t): return rng('a',4*t,4)
OWN=92; HALO=144
S0=52; S1=68; P0=150; P1=158; OACC=172; MASKD=236; MASKF=244
vWOm=['v10','v11']; vWOl=['v12','v13']; vWOt=['v14','v15']
vWOtmp=['v220','v221','v222','v223','v224','v225']

class G(Asm):
    stamps=None; sel=None; nowait=True
    def stamp(self, name, real=False):
        if self.stamps is None: return
        if self.sel is not None and not (name.startswith('rt_') or name=='entry' or any(name.startswith(x) for x in self.sel)): return
        k=len(self.stamps)
        regs=[88,90,92,94,96,98,100,36,38,40,42,44,46,48,50][k]
        self.stamps.append((name,regs))
        if GOPT.get('allreal'): real_=True
        else: real_=real
        self.i(f"{'s_memrealtime' if real_ else 's_memtime'} s[{regs}:{regs+1}]")
        if self.nowait and not real and name!='entry':
            self.lg.pop()
        else:
            self.i("s_waitcnt lgkmcnt(0)")
            self.lg_clear()
    def dump_stamps(self, base):
        if self.stamps is None: return
        self.i("s_waitcnt lgkmcnt(0)")
        self.i(f"s_lshl_b32 s3, s2, 2"); self.i(f"s_add_u32 s3, s3, {sWV}")
        self.i(f"s_lshl_b32 s3, s3, 6"); self.i(f"s_add_u32 s3, s3, {WS_DBG+base}")
        self.i("s_mov_b64 exec, 1")
        for k,(nm,r) in enumerate(self.stamps):
            self.i(f"v_mov_b32 v2, s{r}"); self.i(f"v_mov_b32 v3, {4*k}")
            self.i(f"buffer_store_dword v2, v3, {sWS}, s3 offen")
        self.i("s_mov_b64 exec, -1"); self.i("s_waitcnt vmcnt(0)")
    def emit(self, lst):
        for x in lst:
            if isinstance(x,tuple) and x[0]=='OSTORE': emit_ostore(self,x[1])
            elif isinstance(x,tuple): self.i(*x)
            else: self.i(x)
    def drain(self, q, budget):
        k=0; inexec=False
        while q and (k<budget or inexec):
            x=q.pop(0)
            txt=x[0] if isinstance(x,tuple) else x
            if txt.startswith('s_mov_b64 exec'): inexec = not txt.endswith('-1')
            if txt=='OSTORE': emit_ostore(self,x[1])
            elif isinstance(x,tuple): self.i(*x)
            else: self.i(x)
            k+=1

def prologue(a, opts):
    L=vLane
    a.c("---- prologue")
    a.stamp('rt_entry',real=True); a.stamp('entry')
    a.i("s_load_dwordx8 s[36:43], s[0:1], 0")
    a.i("s_load_dwordx8 s[44:51], s[0:1], 32")
    a.i("s_load_dwordx2 s[52:53], s[0:1], 64")
    a.i("s_cmp_ge_u32 s2, 256")
    a.i("s_cbranch_scc1 L_end")
    a.i("s_getpc_b64 s[4:5]")
    a.label("L_pc")
    a.i("v_lshlrev_b32 v2, 7, v0")
    a.raw("    v_min_u32 v2, (L_end-L_pc), v2")
    if not opts.get('nopf'): a.i("global_load_dword v255, v2, s[4:5]", tag='pf')
    a.i(f"v_and_b32 {L}, 63, v0")
    a.i("v_lshrrev_b32 v2, 6, v0")
    a.i("s_and_b32 s3, s2, 7")
    a.i(f"v_readfirstlane_b32 {sWV}, v2")
    a.i(f"s_lshr_b32 {sB}, s3, 2")
    a.i("s_lshr_b32 s4, s2, 3")
    a.i("s_and_b32 s5, s3, 3")
    a.i(f"s_lshl_b32 {sC}, s5, 2")
    a.i("s_lshr_b32 s5, s4, 3")
    a.i(f"s_add_u32 {sC}, {sC}, s5")
    a.i(f"s_and_b32 {sG}, s4, 7")
    a.i("s_lshl_b32 s5, s5, 1")
    a.i(f"s_add_u32 s6, s5, {sG}")
    a.i("s_sub_u32 s7, s6, 9")
    a.i("s_cmp_ge_u32 s6, 9")
    a.i(f"s_cselect_b32 {sROT}, s7, s6")
    if opts.get('order','own')=='own':
        a.i(f"s_add_u32 {sOFF}, s5, {sG}"); a.i(f"s_and_b32 {sOFF}, {sOFF}, 7")
        a.i("s_and_b32 s6, s3, 3"); a.i("s_lshl_b32 s6, s6, 1"); a.i(f"s_and_b32 s7, {sC}, 1"); a.i(f"s_add_u32 {sROT}, s6, s7")
        a.i(f"s_mov_b32 {sIDX}, {sOFF}")
    elif opts.get('order')=='norot': a.i(f"s_mov_b32 {sROT}, 0")
    a.i(f"s_lshl_b32 s6, {sC}, 7"); a.i(f"s_lshl_b32 s7, {sWV}, 5"); a.i("s_add_u32 s6, s6, s7")
    a.i(f"s_mul_i32 s6, s6, {XROW}")
    a.i(f"v_lshrrev_b32 v4, 3, {L}"); a.i(f"v_lshrrev_b32 v5, 4, {L}"); a.i(f"v_and_b32 v6, 7, {L}")
    a.i(f"v_mul_u32_u24 v4, {XROW}, v4")
    a.i(f"v_add_u32 v4, s6, v4")
    for i in range(4):
        a.i(f"v_add_u32 v7, {4*i}, v5"); a.i(f"v_and_b32 v7, 7, v7"); a.i(f"v_xor_b32 v7, v6, v7")
        a.i(f"v_lshl_add_u32 v7, v7, 4, v4")
        a.i(f"v_add_u32 {vXoff[i]}, {8*i*XROW-1024*i}, v7")
    a.i(f"s_mul_i32 s6, {sWV}, {16*WROW}"); a.i(f"s_mul_i32 s7, {sG}, 144"); a.i("s_add_u32 s6, s6, s7")
    a.i(f"s_add_u32 s6, s6, 1152")
    a.i(f"s_movk_i32 s7, {WROW}")
    a.i("v_mov_b32 v9, 0x40000000"); a.i("v_mov_b32 v8, 1008")
    for j in range(5):
        a.i(f"v_add_u32 v4, {64*j}, {L}")
        a.i(f"v_mul_u32_u24 v5, 52429, v4"); a.i(f"v_lshrrev_b32 v5, 20, v5")
        a.i(f"v_mul_u32_u24 v6, 20, v5"); a.i(f"v_sub_u32 v6, v4, v6")
        a.i(f"v_cmp_lt_u32 vcc, 8, v6")
        a.i(f"v_mul_lo_u32 v5, v5, s7")
        a.i(f"v_lshl_add_u32 v5, v6, 4, v5")
        a.i(f"v_cndmask_b32 v7, 0, v8, vcc")
        a.i(f"v_cmp_lt_u32 vcc, 17, v6")
        a.i(f"v_add3_u32 v5, v5, v7, s6")
        comp=1024*j if j<4 else 0
        if comp: a.i(f"v_subrev_u32 v5, {comp}, v5")
        else: a.i("s_nop 0")
        a.i(f"v_cndmask_b32 {vWoff[j]}, v5, v9, vcc")
    a.stamp('p_pre')
    a.wait(lg=0)
    a.stamp('p_karg')
    a.i(f"s_cmp_eq_u32 {sB}, 0")
    a.i("s_cselect_b32 s8, s36, s42");  a.i("s_cselect_b32 s9, s37, s43")
    a.i("s_cselect_b32 s12, s38, s44"); a.i("s_cselect_b32 s13, s39, s45")
    a.i(f"s_mov_b32 s10, {X_BYTES}"); a.i("s_mov_b32 s11, 0x00020000")
    a.i(f"s_mov_b32 s14, {W_BYTES}"); a.i("s_mov_b32 s15, 0x00020000")
    a.i("s_cselect_b32 s16, s40, s46"); a.i("s_cselect_b32 s17, s41, s47")
    a.i(f"s_mov_b32 {sCI}, {sROT}")
    a.i(f"s_mul_i32 {sWoff}, {sCI}, {64*WROW}")
    a.i(f"s_lshl_b32 {sXoff}, {sCI}, 7")

vTA='v[240:241]'
def touch_setup(a, opts):
    L=vLane
    a.i("s_lshr_b32 s4, s2, 3")
    a.i(f"v_cmp_le_u32 vcc, 18, {L}")
    a.i(f"v_mov_b32 v2, {XROW+18*128}")
    a.i(f"v_lshlrev_b32 v3, 7, {L}")
    a.i(f"v_mov_b32 v2, {WROW-18*128}")
    a.i(f"v_cndmask_b32 v2, 0, v2, vcc")
    a.i(f"v_add_u32 v3, v3, v2")
    a.i(f"s_mul_i32 s5, s4, {2*WROW}"); a.i(f"s_add_u32 s5, s5, {9*128}")
    a.i(f"v_add_u32 v3, s5, v3")
    a.i("s_and_b32 s5, s2, 3"); a.i("s_lshl_b32 s5, s5, 9"); a.i("s_lshl_b32 s6, s4, 4"); a.i("s_add_u32 s5, s5, s6")
    a.i(f"v_subrev_u32 v4, 36, {L}"); a.i(f"v_and_b32 v4, 15, v4"); a.i(f"v_add_u32 v4, s5, v4"); a.i(f"v_mul_u32_u24 v4, {XROW}, v4")
    a.i(f"v_cmp_le_u32 vcc, 36, {L}")
    a.i(f"v_mov_b32 v5, s12"); a.i("v_mov_b32 v6, s8"); a.i("v_mov_b32 v7, s13"); a.i("v_mov_b32 v8, s9")
    a.i(f"v_cndmask_b32 v3, v3, v4, vcc")
    a.i(f"v_cndmask_b32 v5, v5, v6, vcc")
    a.i(f"v_cndmask_b32 v7, v7, v8, vcc")
    a.i(f"v_mov_b32 v9, {64*WROW}"); a.i("v_mov_b32 v6, 128")
    a.i(f"v_cndmask_b32 v242, v9, v6, vcc")
    a.i(f"s_add_u32 s5, {sWV}, 1")
    a.i(f"v_mul_lo_u32 v9, v242, s5")
    a.i(f"v_add_u32 v3, v3, v9")
    a.i(f"v_add_co_u32 v240, vcc, v5, v3"); a.i("s_nop 1"); a.i(f"v_addc_co_u32 v241, vcc, 0, v7, vcc")
    a.i(f"v_lshlrev_b32 v242, 2, v242")
def touch_ins(second):
    L=[]
    if second:
        L+= ["v_add_co_u32 v240, vcc, v240, v242", "s_nop 1", "v_addc_co_u32 v241, vcc, 0, v241, vcc"]
    L+= ["s_mov_b64 exec, 0x000fffffffffffff" if False else "s_mov_b64 exec, s[6:7]", (f"global_load_dword v255, {vTA}, off",'touch'), "s_mov_b64 exec, -1"]
    return L
def touch_q(a):
    L=vLane
    a.i("s_lshr_b32 s4, s2, 3")
    a.i(f"v_mul_u32_u24 v2, 7282, {L}"); a.i("v_lshrrev_b32 v2, 16, v2")
    a.i(f"v_mul_u32_u24 v3, 9, v2"); a.i(f"v_sub_u32 v3, {L}, v3")
    a.i(f"v_min_u32 v2, 5, v2")
    a.i(f"s_min_u32 s5, {sWV}, 2"); a.i("s_mul_i32 s5, s5, 6"); a.i("s_mul_i32 s6, s4, 18"); a.i("s_add_u32 s5, s5, s6")
    a.i(f"v_add_u32 v2, s5, v2"); a.i(f"v_mul_u32_u24 v2, {WROW}, v2"); a.i(f"v_lshl_add_u32 v2, v3, 7, v2")
    a.i(f"buffer_load_dword v255, v2, {sW}, 0 offen", 'touch')
def touch_wo(a):
    L=vLane
    a.i(f"s_lshr_b32 {sT0}, s2, 3")
    a.i(f"s_min_u32 {sT1}, {sWV}, 2"); a.i(f"s_mul_i32 {sT1}, {sT1}, 54"); a.i(f"s_mul_i32 {sT0}, {sT0}, 162"); a.i(f"s_add_u32 {sT1}, {sT1}, {sT0}")
    a.i(f"v_min_u32 {vT}, 53, {L}"); a.i(f"v_add_u32 {vT}, {sT1}, {vT}"); a.i(f"v_lshlrev_b32 {vT}, 7, {vT}")
    a.i(f"buffer_load_dword v255, {vT}, {sWO}, 0 offen", 'touch')

ORDER_MODE=['own']
GOPT={}
def next_chunk_ins():
    if ORDER_MODE[0]=='own':
        return [f"s_add_u32 {sCI}, {sROT}, {sIDX}", f"s_add_u32 {sCI}, {sCI}, 1", f"s_sub_u32 {sT3}, {sCI}, 9", f"s_cmp_ge_u32 {sCI}, 9",
                f"s_cselect_b32 {sCI}, {sT3}, {sCI}", f"s_add_u32 {sIDX}, {sIDX}, 1", f"s_and_b32 {sIDX}, {sIDX}, 7",
                f"s_mul_i32 {sWoff}, {sCI}, {64*WROW}", f"s_lshl_b32 {sXoff}, {sCI}, 7"]
    return [f"s_add_u32 {sCI}, {sCI}, 1", f"s_cmp_eq_u32 {sCI}, 9", f"s_cselect_b32 {sCI}, 0, {sCI}",
            f"s_mul_i32 {sWoff}, {sCI}, {64*WROW}", f"s_lshl_b32 {sXoff}, {sCI}, 7"]

def dma_chunk_groups(slot, n):
    base=slot*SLOT; tag=f'ch{n}'; Gs=[]
    for i in range(4):
        pre=[f"s_lshl_b32 {sM0}, {sWV}, 12", f"s_add_u32 m0, {sM0}, {base+XOFF}", "s_nop 0"] if i==0 else []
        Gs.append(pre+[(f"buffer_load_dwordx4 {vXoff[i]}, {sX}, {sXoff} offen offset:{1024*i} lds", tag)])
    for j in range(4):
        pre=[f"s_mul_i32 {sM0}, {sWV}, 5120", f"s_add_u32 m0, {sM0}, {base}", "s_nop 0"] if j==0 else []
        Gs.append(pre+[(f"buffer_load_dwordx4 {vWoff[j]}, {sW}, {sWoff} offen offset:{1024*j} lds", tag)])
    Gs.append([f"s_add_u32 m0, {sM0}, {base+4096}", "s_nop 0", (f"buffer_load_dwordx4 {vWoff[4]}, {sW}, {sWoff} offen lds", tag)]+next_chunk_ins())
    return Gs

def dma_wq_groups(n):
    reg = SLOT*(1+n//3) + (n%3)*QCH
    Gs=[]
    for e in range(3):
        pre=[f"s_mul_i32 {sM0}, {sWV}, 3072", f"s_add_u32 m0, {sM0}, {reg}", "s_nop 0"] if e==0 else []
        post=next_chunk_ins() if e==2 else []
        Gs.append(pre+[(f"buffer_load_dwordx4 {vQoff[e]}, {sW}, {sWoff} offen offset:{1024*e} lds", f'wq{n}')]+post)
    return Gs

def setupA(a, opts):
    L=vLane
    a.c("---- setup A")
    a.i(f"v_bfe_u32 v4, {L}, 2, 2"); a.i(f"v_lshrrev_b32 v5, 5, {L}")
    a.i(f"v_lshl_add_u32 v4, v5, 3, v4")
    a.i(f"v_bfe_u32 v6, {L}, 4, 1"); a.i(f"v_and_b32 v7, 3, {L}")
    a.i(f"v_mul_u32_u24 v8, {WPITCH}, v4")
    a.i(f"v_lshlrev_b32 v9, 5, v6"); a.i(f"v_lshl_add_u32 v9, v7, 3, v9")
    a.i(f"v_add_u32 {vWr[0]}, v8, v9"); a.i(f"v_add_u32 {vWr[1]}, {2*SLOT}, {vWr[0]}")
    a.i(f"v_mul_u32_u24 v2, {QPITCH}, v4")
    a.i(f"v_add3_u32 {vQr}, v2, v9, 0"); a.i(f"v_add_u32 {vQr}, {SLOT}, {vQr}")
    a.i(f"v_lshl_add_u32 v9, v6, 2, v7")
    a.i(f"v_lshlrev_b32 v2, 3, v9"); a.i(f"v_add_u32 v2, 128, v2"); a.i(f"v_add_u32 v3, 128, v2")
    a.i(f"v_cmp_lt_u32 vcc, 1, v9"); a.i("s_nop 1")
    a.i(f"v_cndmask_b32 v2, v2, v3, vcc")
    a.i(f"v_add_u32 {vMx[0]}, v8, v2"); a.i(f"v_add_u32 {vMx[1]}, {2*SLOT}, {vMx[0]}")
    a.i(f"v_and_b32 v2, 31, {L}"); a.i(f"v_bfe_u32 v3, {L}, 1, 3"); a.i(f"v_xor_b32 v3, v3, v5")
    a.i(f"v_lshlrev_b32 v3, 4, v3"); a.i(f"v_lshl_add_u32 v3, v2, 7, v3")
    a.i(f"s_lshl_b32 s6, {sWV}, 12"); a.i(f"s_add_u32 s6, s6, {XOFF}")
    a.i(f"v_add_u32 v3, s6, v3")
    for t in range(4):
        a.i(f"v_xor_b32 {vXr[0][t]}, {32*t}, v3"); a.i(f"v_add_u32 {vXr[1][t]}, {2*SLOT}, {vXr[0][t]}")

class Rec:
    def __init__(self): self.l=[]
    def i(self, t, tag=None, cond=False): self.l.append((t,tag,cond) if tag or cond else t)
    def c(self, s): pass

def setupB0(a, opts):
    a.i("s_mov_b32 s20, s48"); a.i("s_mov_b32 s21, s49"); a.i(f"s_mov_b32 s22, {OUT_BYTES}"); a.i("s_mov_b32 s23, 0x00020000")
    a.i("s_mov_b32 s24, s52"); a.i("s_mov_b32 s25, s53"); a.i(f"s_mov_b32 s26, {WS_BYTES}"); a.i("s_mov_b32 s27, 0x00020000")
    a.i("s_mov_b32 s28, s50"); a.i("s_mov_b32 s29, s51"); a.i("s_mov_b32 s30, 256"); a.i("s_mov_b32 s31, 0x00020000")
    a.i(f"s_mov_b32 s18, {WO_BYTES}"); a.i("s_mov_b32 s19, 0x00020000")
    a.i(f"s_or_b32 s3, s2, {sWV}"); a.i("s_cmp_lg_u32 s3, 0"); a.i("s_cbranch_scc1 L_nononce")
    a.i("s_memrealtime s[4:5]"); a.i("s_waitcnt lgkmcnt(0)"); a.i("s_or_b32 s4, s4, 1")
    a.i("v_mov_b32 v2, s4"); a.i("v_mov_b32 v3, s5"); a.i("v_mov_b32 v4, 0")
    a.i("s_mov_b64 exec, 1")
    a.i(f"buffer_store_dwordx2 v[2:3], v4, {sDBG}, 0 offen sc1", cond=True)
    a.i("s_mov_b64 exec, -1")
    a.label("L_nononce"); a.lg_clear()

def setupB(a, opts):
    L=vLane
    a.c("---- setup B")
    a.i("s_mov_b32 s54, 0x3ffff"); a.i("s_mov_b32 s55, 0x3ffff"); a.i("s_not_b64 s[52:53], s[54:55]"); a.i("s_mov_b32 s56, -1"); a.i("s_mov_b32 s57, 0")
    a.i(f"s_mov_b32 {sSC}, {f2u(CSCALE):#x}")
    a.i(f"s_getreg_b32 {sXCC}, hwreg(HW_REG_XCC_ID, 0, 4)")
    a.i(f"s_mul_i32 s6, {sWV}, {16*WROW}"); a.i(f"s_mul_i32 s7, {sG}, 144"); a.i("s_add_u32 s6, s6, s7")
    a.i(f"s_movk_i32 s7, {WROW}"); a.i("v_mov_b32 v9, 0x40000000")
    for e in range(3):
        a.i(f"v_add_u32 v4, {64*e}, {L}")
        a.i(f"v_mul_u32_u24 v5, 21846, v4"); a.i(f"v_lshrrev_b32 v5, 18, v5")
        a.i(f"v_mul_u32_u24 v6, 12, v5"); a.i(f"v_sub_u32 v6, v4, v6")
        a.i(f"v_cmp_lt_u32 vcc, 8, v6")
        a.i(f"v_mul_lo_u32 v5, v5, s7"); a.i(f"v_lshl_add_u32 v5, v6, 4, v5")
        a.i(f"v_add_u32 v5, s6, v5"); a.i(f"v_subrev_u32 v5, {1024*e}, v5")
        a.i(f"v_cndmask_b32 {vQoff[e]}, v5, v9, vcc")
    a.i(f"v_and_b32 v2, 31, {L}"); a.i(f"v_lshrrev_b32 v5, 5, {L}")
    a.i(f"s_mul_i32 s6, {sWV}, {KBLK}"); a.i(f"s_add_u32 s7, s6, {KB0}"); a.i(f"s_cmp_eq_u32 {sWV}, 3"); a.i(f"s_cselect_b32 s7, {KB3}, s7")
    a.i(f"v_mul_u32_u24 v3, {KP}, v2"); a.i(f"v_lshl_add_u32 v3, v5, 3, v3")
    a.i(f"v_add_u32 {vKw}, s7, v3"); a.i(f"s_add_u32 s6, s6, {QBASE}"); a.i(f"v_add_u32 {vQw}, s6, v3")
    a.i(f"s_mul_i32 s6, {sWV}, {VB}"); a.i(f"s_add_u32 s6, s6, {VBASE}")
    a.i(f"v_mul_u32_u24 v3, {VR}, v5"); a.i(f"v_lshl_add_u32 v3, v2, 4, v3"); a.i(f"v_add_u32 {vVw}, s6, v3")
    a.i(f"v_bfe_u32 v3, {L}, 2, 1"); a.i(f"v_mul_u32_u24 v3, {VJ}, v3"); a.i(f"v_bfe_u32 v4, {L}, 1, 1"); a.i(f"v_mul_u32_u24 v4, {VR}, v4")
    a.i(f"v_add_u32 v3, v3, v4"); a.i(f"v_and_b32 v4, 1, {L}"); a.i(f"v_lshl_add_u32 v3, v4, 4, v3"); a.i(f"v_add_u32 v3, {72*16}, v3")
    a.i(f"v_add_u32 {vCw}, s6, v3")
    a.i(f"v_lshrrev_b32 v3, 4, v2"); a.i(f"v_mul_u32_u24 v3, {VJ}, v3"); a.i(f"v_bfe_u32 v4, v2, 2, 1")
    a.i(f"v_mul_u32_u24 v4, {VR}, v4"); a.i(f"v_add_u32 v3, v3, v4"); a.i(f"v_and_b32 v4, 3, v2")
    a.i(f"v_bfe_u32 v6, v2, 3, 1"); a.i(f"v_lshl_add_u32 v4, v6, 2, v4"); a.i(f"v_lshl_add_u32 v3, v4, 1, v3")
    a.i(f"v_lshl_add_u32 v3, v5, 6, v3"); a.i(f"v_add_u32 v3, {64*16}, v3"); a.i(f"v_add_u32 {vVt}, s6, v3")
    a.i(f"s_mul_i32 s6, {sWV}, 36"); a.i(f"v_mul_u32_u24 v3, {KP}, v2"); a.i(f"v_add_u32 v3, s6, v3")
    a.i(f"v_lshl_add_u32 {vKr}, v5, 4, v3")
    a.i(f"v_add_u32 {vKl}, 32, v3")
    a.i(f"s_mul_i32 s6, {sWV}, 18"); a.i(f"v_add_u32 v3, s6, v2"); a.i(f"v_and_b32 v4, 27, v2")
    a.i(f"v_cmp_eq_u32 vcc, 18, v4"); a.i(f"v_mov_b32 v4, 73"); a.i(f"v_mov_b32 v6, 72"); a.i(f"v_cndmask_b32 v4, v4, v6, vcc")
    a.i(f"v_cmp_gt_u32 vcc, 18, v2"); a.i("s_nop 1"); a.i(f"v_cndmask_b32 v3, v4, v3, vcc")
    a.i(f"v_lshlrev_b32 v3, 4, v3"); a.i(f"v_mul_u32_u24 v4, {VR}, v5"); a.i(f"v_add_u32 {vVr}, v3, v4")
    a.i(f"v_lshlrev_b32 {vPk}, 4, {L}"); a.i(f"v_lshlrev_b32 {vPl}, 2, v2"); a.i(f"v_add_u32 {vPl}, 1024, {vPl}")
    a.i(f"v_mul_u32_u24 v3, 288, v5"); a.i(f"v_lshl_add_u32 v3, v2, 4, v3"); a.i(f"v_add_u32 {vPv}, 1152, v3")
    a.i(f"s_lshl_b32 s6, {sWV}, 2"); a.i(f"v_lshrrev_b32 v3, 3, v2"); a.i(f"v_mul_u32_u24 v3, {OUTROW}, v3")
    a.i(f"v_and_b32 v4, 7, v2"); a.i(f"v_lshl_add_u32 v3, v4, 4, v3"); a.i(f"v_add_u32 {vOl}, s6, v3")
    a.i(f"v_and_b32 v3, 27, v2"); a.i(f"v_cmp_eq_u32 vcc, 18, v3"); a.i(f"v_mov_b32 v4, 0x3f803f80"); a.i("s_nop 0")
    a.i(f"v_cndmask_b32 {vVC}, 0, v4, vcc")
    a.i(f"s_lshl_b32 s6, {sB}, 3"); a.i(f"s_add_u32 s6, s6, {sG}"); a.i(f"s_lshl_b32 s6, s6, 4"); a.i(f"s_add_u32 s6, s6, {sC}")
    a.i(f"s_mul_i32 {sKVme}, s6, {SLOT}"); a.i(f"s_mul_i32 s7, {sWV}, 2304"); a.i(f"s_add_u32 {sKVme}, {sKVme}, s7")
    a.i(f"s_sub_u32 {sKV1}, {sKVme}, {SLOT}"); a.i(f"s_sub_u32 {sKV2}, {sKVme}, {2*SLOT}")
    a.i(f"s_cmp_ge_u32 {sC}, 1"); a.i(f"s_cselect_b32 {sKV1}, {sKV1}, 0x70000000")
    a.i(f"s_cmp_ge_u32 {sC}, 2"); a.i(f"s_cselect_b32 {sKV2}, {sKV2}, 0x70000000")
    a.i(f"s_lshl_b32 s6, s6, 2"); a.i(f"s_add_u32 s6, s6, {sWV}"); a.i(f"s_lshl_b32 s6, s6, 7")
    a.i(f"s_add_u32 {sFKV}, s6, {WS_FKV}")
    a.i(f"s_cmp_ge_u32 {sC}, 1"); a.i(f"s_cselect_b32 s6, -1, 0"); a.i(f"s_cmp_ge_u32 {sC}, 2"); a.i(f"s_cselect_b32 s7, -1, 0")
    a.i(f"v_and_b32 v2, s6, {vVC}"); a.i(f"v_and_b32 v3, s7, {vVC}"); a.i(f"v_mov_b32 v4, 0x3f803f80")
    a.i(f"v_and_b32 v6, s7, v4"); a.i(f"v_and_b32 v4, s6, v4")
    for hb in range(8):
        base=HALO+14*hb
        a.i(f"v_accvgpr_write_b32 a{base+5}, {'v6' if hb<4 else 'v4'}")
        for r in range(8): a.i(f"v_accvgpr_write_b32 a{base+6+r}, {'v3' if hb<4 else 'v2'}")
    a.i(f"v_and_b32 v2, 31, {L}"); a.i(f"v_lshlrev_b32 v3, 2, v5"); a.i(f"v_sub_u32 v2, v2, v3")
    a.i(f"v_mov_b32 v6, 0xffff"); a.i(f"v_mov_b32 v7, 0xffff0000")
    for u in range(8):
        r0=2*u; k0=(r0&3)+8*(r0>>2)
        a.i(f"v_cmp_le_i32 vcc, {k0}, v2"); a.i(f"v_cmp_le_i32 s[4:5], {k0+1}, v2"); a.i("s_nop 0")
        a.i(f"v_cndmask_b32 v3, 0, v6, vcc"); a.i(f"v_cndmask_b32 v4, 0, v7, s[4:5]")
        a.i(f"v_or_b32 v{MASKD+u}, v3, v4"); a.i(f"v_not_b32 v{MASKF+u}, v{MASKD+u}")
    a.i(f"s_lshl_b32 s6, {sC}, 7"); a.i(f"s_lshl_b32 s7, {sG}, 2"); a.i("s_add_u32 s6, s6, s7")
    a.i(f"s_mul_i32 s6, s6, {OUTROW}"); a.i(f"s_mul_i32 s7, {sB}, 1152"); a.i("s_add_u32 s6, s6, s7")
    a.i(f"s_add_u32 {sOL}, s6, 1024"); a.i(f"s_mul_i32 s7, {sWV}, {OUTROW}"); a.i(f"s_add_u32 {sOM}, s6, s7")
    a.i(f"s_lshr_b32 {sRH}, {sG}, 2"); a.i(f"s_and_b32 {sNQ}, {sG}, 3")
    a.i(f"s_lshl_b32 s7, {sRH}, 1"); a.i(f"s_lshr_b32 s3, {sWV}, 1"); a.i("s_add_u32 s3, s3, s7"); a.i("s_lshl_b32 s3, s3, 5")
    a.i(f"s_lshl_b32 s7, {sC}, 7"); a.i("s_add_u32 s3, s3, s7"); a.i(f"s_mul_i32 {sPOM}, s3, {OUTROW}")
    a.i(f"s_mul_i32 s7, {sB}, 1152"); a.i(f"s_add_u32 {sPOM}, {sPOM}, s7"); a.i(f"s_add_u32 {sPOL}, {sPOM}, 1024")
    a.i(f"s_lshl_b32 s6, {sC}, 7"); a.i(f"s_lshl_b32 s7, {sRH}, 6"); a.i("s_add_u32 s6, s6, s7")
    a.i(f"s_lshl_b32 s7, {sWV}, 4"); a.i("s_add_u32 s6, s6, s7"); a.i(f"s_mul_i32 {sOUTB}, s6, {OUTROW}")
    a.i(f"s_mul_i32 s7, {sB}, 1152"); a.i(f"s_add_u32 {sOUTB}, {sOUTB}, s7")
    a.i(f"s_mul_i32 s7, {sNQ}, 288"); a.i(f"s_add_u32 {sOUTB}, {sOUTB}, s7")
    a.i(f"s_lshl_b32 s6, {sB}, 4"); a.i(f"s_add_u32 s6, s6, {sC}"); a.i(f"s_lshl_b32 {sFO}, s6, 12")
    a.i(f"s_add_u32 {sFO}, {sFO}, {WS_FO}")
    a.i(f"v_mov_b32 v252, {f2u(2.0**-40):#x}"); a.i(f"v_mov_b32 v253, {f2u(2.0**40):#x}")
    a.i(f"s_mov_b64 {sBAD}, 0")

def wq_reads(tau):
    n,t=divmod(tau,4); b=tau%2
    off=(n%3)*QCH+16*QPITCH*t
    return [[(f"ds_read_b64_tr_b16 {QFh(b,f,h)}, {vQr} offset:{off+4*QPITCH*h+64*f}", f'q{tau}_{f}') for h in range(2)] for f in range(3)]

def drain_side(a, side, n):
    k=0; last=''
    while side and (k<n or last.startswith('s_cmp') or (side[0] if isinstance(side[0],str) else side[0][0]).startswith('s_cselect')):
        x=side.pop(0)
        if isinstance(x,tuple): a.i(*x); last=x[0]
        else: a.i(x); last=x
        k+=1

def phase1a(a, opts, pend):
    a.c("---- phase 1a")
    def reads(tau):
        n,t=divmod(tau,4); slot=n%4; hi=slot>=2; base=(slot%2)*SLOT; b=tau%2
        R=[[(f"ds_read_b128 {XF(tau)}, {vXr[hi][t]} offset:{base}", f'x{tau}')] +
           [(f"ds_read_b64_tr_b16 {WFh(b,0,h)}, {vWr[hi]} offset:{base+5120*t+1280*h}", f'w{tau}_0') for h in range(2)]]
        for f,co in ((1,64),(2,144),(3,208)):
            R.append([(f"ds_read_b64_tr_b16 {WFh(b,f,h)}, {vWr[hi]} offset:{base+5120*t+1280*h+co}", f'w{tau}_{f}') for h in range(2)])
        R.append([(f"ds_read_b64_tr_b16 {WFh(b,4,h)}, {vMx[hi]} offset:{base+5120*t+1280*h}", f'w{tau}_4') for h in range(2)])
        return R
    a.stamp('setup_done')
    a.wait(vm='ch0'); a.i("s_barrier")
    a.stamp('ch0_landed')
    for grp in reads(0): a.emit(grp)
    names=['K0','K1','V0','V1','MX']
    side=opts.get('_side',[])
    every=opts.get('dma_every',2)
    slotcnt=0
    for tau in range(36):
        n,t=divmod(tau,4); b=tau%2
        if t==0: a.stamp(f'c{n}')
        if t==3:
            a.wait(vm=f'ch{n+1}' if n<8 else 'wq0')
            a.i("s_barrier")
            if n<=5:
                pend += dma_chunk_groups((n+3)%4, n+3)
                if n==5 and opts.get('wotouch',2)==1:
                    rec=Rec(); touch_wo(rec); pend.append(rec.l)
            elif n==6:
                pend.append([f"s_mov_b32 {sCI}, {sROT}", f"s_mul_i32 {sWoff}, {sCI}, {64*WROW}", f"s_mov_b32 {sIDX}, {sOFF}"])
                for q in range(3): pend += dma_wq_groups(q)
            elif n==7:
                for q in range(3,6): pend += dma_wq_groups(q)
            elif n==8:
                for q in range(6,9): pend += dma_wq_groups(q)
        R = reads(tau+1) if tau<35 else wq_reads(0)
        for m,nm in enumerate(names):
            a.wait(lg=[f'w{tau}_{m}']+([f'x{tau}'] if m==0 else []))
            acc=rng('v',ACC[nm],16); c='0' if tau==0 else acc
            if nm in ('V0','V1'): a.i(f"v_mfma_f32_32x32x16_bf16 {acc}, {XF(tau)}, {WF(b,m)}, {c}")
            else: a.i(f"v_mfma_f32_32x32x16_bf16 {acc}, {WF(b,m)}, {XF(tau)}, {c}")
            if m<len(R): a.emit(R[m])
            slotcnt+=1
            if pend and slotcnt%every==0: a.emit(pend.pop(0))
            elif side: drain_side(a, side, opts.get('side_n',4))
        if tau==30:
            a.i(f"v_mov_b32 {vT}, 0")
            a.i(f"buffer_load_dwordx2 {vNON}, {vT}, {sDBG}, 0 offen sc1", tag='nonce')
    assert not side, len(side)
    return pend

def epi1a_list():
    A=[]; T=76
    for ti,nm in enumerate(('K0','K1')):
        base=ACC[nm]
        for i in range(4):
            t0=T+2*(i%2)
            A+= [f"v_cvt_pk_bf16_f32 v{t0}, v{base+4*i}, v{base+4*i+1}", f"v_cvt_pk_bf16_f32 v{t0+1}, v{base+4*i+2}, v{base+4*i+3}",
                 (f"ds_write2_b32 {vKw}, v{t0}, v{t0+1} offset0:{16*ti+4*i} offset1:{16*ti+4*i+1}",'e1w')]
    for ti,nm in enumerate(('V0','V1')):
        base=ACC[nm]
        for j in range(2):
            t0=T+4+4*j
            for u in range(4): A.append(f"v_cvt_pk_bf16_f32 v{t0+u}, v{base+8*j+2*u}, v{base+8*j+2*u+1}")
            A.append((f"ds_write_b128 {vVw}, v[{t0}:{t0+3}] offset:{VJ*j+512*ti}",'e1w'))
    base=ACC['MX']; t0=T+12
    A+= [f"v_cvt_pk_bf16_f32 v{t0}, v{base}, v{base+1}", f"v_cvt_pk_bf16_f32 v{t0+1}, v{base+2}, v{base+3}",
         (f"ds_write2_b32 {vKw}, v{t0}, v{t0+1} offset0:32 offset1:33",'e1w'),
         f"v_cvt_pk_bf16_f32 v{t0+2}, v{base+4}, v{base+5}", f"v_cvt_pk_bf16_f32 v{t0+3}, v{base+6}, v{base+7}",
         (f"ds_write_b16 {vVt}, v{t0+2}",'e1w'), (f"ds_write_b16_d16_hi {vVt}, v{t0+2} offset:16",'e1w'),
         (f"ds_write_b16 {vVt}, v{t0+3} offset:32",'e1w'), (f"ds_write_b16_d16_hi {vVt}, v{t0+3} offset:48",'e1w')]
    A+= [f"v_and_b32 v{t0}, 1, {vLane}", f"v_cmp_eq_u32 vcc, 0, v{t0}", f"v_mov_b32 v{t0+1}, 0x3f803f80", "s_nop 0",
         f"v_cndmask_b32 v{t0}, 0, v{t0+1}, vcc", f"v_mov_b32 v{t0+1}, v{t0}", f"v_mov_b32 v{t0+2}, v{t0}", f"v_mov_b32 v{t0+3}, v{t0}",
         "s_mov_b64 exec, 0xff", (f"ds_write_b128 {vCw}, v[{t0}:{t0+3}]",'e1w'), "s_mov_b64 exec, -1"]
    return A

def own_presets():
    L=[f"v_mov_b32 v91, 0x3f803f80"]
    for bt in range(4): L.append(f"v_mov_b32 v{OWN+14*bt+5}, v91")
    return L
def own_reads():
    L=[]
    for bt in range(4):
        base=OWN+14*bt
        kb = KB0+KBLK*bt if bt<3 else KB3
        L.append(f"v_add_u32 v88, {kb}, {vKr}"); L.append(f"v_add_u32 v89, {kb}, {vKl}")
        L.append((f"ds_read2_b32 v[{base}:{base+1}], v88 offset0:0 offset1:1",'own'))
        L.append((f"ds_read2_b32 v[{base+2}:{base+3}], v88 offset0:2 offset1:3",'own'))
        L.append((f"ds_read_b32 v{base+4}, v89",'own'))
    for bt in range(4):
        base=OWN+14*bt
        for j in range(2): L.append((f"ds_read_b128 v[{base+6+4*j}:{base+9+4*j}], {vVr} offset:{VB*bt+VJ*j}",'own'))
    return L
def own_store_groups(mod='sc1'):
    Gs=[]
    for bt in range(4):
        base=OWN+14*bt; tag='pubA' if bt<2 else 'pubB'
        Gs.append([f"s_add_u32 {sT0}, {sKVme}, {9216*bt}", (f"buffer_store_dwordx4 v[{base}:{base+3}], {vPk}, {sWS}, {sT0} offen {mod}",tag)])
        Gs.append([f"s_add_u32 {sT0}, {sKVme}, {9216*bt}", f"s_mov_b64 exec, {sLO}", (f"buffer_store_dword v{base+4}, {vPl}, {sWS}, {sT0} offen {mod}",tag), "s_mov_b64 exec, -1"])
        for j in range(2):
            Gs.append([f"s_add_u32 {sT0}, {sKVme}, {9216*bt}", f"s_mov_b64 exec, {sVM}", (f"buffer_store_dwordx4 v[{base+6+4*j}:{base+9+4*j}], {vPv}, {sWS}, {sT0} offen offset:{576*j} {mod}",tag), "s_mov_b64 exec, -1"])
    return Gs

def flag_store_ins(cnt):
    return [f"s_add_u32 {sT1}, {sNONh}, {cnt}", f"v_mov_b32 v2, {sNONl}", f"v_mov_b32 v3, {sT1}", f"v_mov_b32 v4, 0",
            "s_mov_b64 exec, 1", (f"buffer_store_dwordx2 v[2:3], v4, {sWS}, {sFKV} offen sc1", f'kvflag{cnt}'), "s_mov_b64 exec, -1"]

def xt_base():
    return [f"s_lshl_b32 {sT0}, {sB}, 4", f"s_add_u32 {sT0}, {sT0}, {sC}", f"s_lshl_b32 {sT0}, {sT0}, 10", f"s_add_u32 {sT0}, {sT0}, {WS_XT}"]
def xt_store():
    return xt_base()+[f"s_add_u32 {sLFH}, {sXCC}, 1", f"s_lshl_b32 {sLFH}, {sLFH}, 8", f"s_add_u32 {sLFH}, {sLFH}, {sNONh}",
            f"s_lshl_b32 {sT1}, {sG}, 7", f"s_add_u32 {sT0}, {sT0}, {sT1}",
            f"v_mov_b32 v2, {sNONl}", f"v_mov_b32 v3, {sLFH}", f"v_mov_b32 v4, 0",
            "s_mov_b64 exec, 1", (f"buffer_store_dwordx2 v[2:3], v4, {sWS}, {sT0} offen sc1",'xt'), "s_mov_b64 exec, -1"]
def xt_load():
    return xt_base()+[f"v_lshlrev_b32 v2, 7, {vLane}", "s_mov_b64 exec, 0xff",
            (f"buffer_load_dwordx2 v[8:9], v2, {sWS}, {sT0} offen sc1",'xtl'), "s_mov_b64 exec, -1"]
def xt_check(a):
    a.wait(vm='xtl')
    a.i("s_mov_b64 exec, 0xff")
    a.i(f"v_cmp_eq_u32 vcc, {sNONl}, v8"); a.i(f"v_cmp_eq_u32 s[4:5], {sLFH}, v9")
    a.i("s_mov_b64 exec, -1")
    a.i("s_and_b64 s[4:5], s[4:5], vcc"); a.i("s_and_b32 s4, s4, 0xff"); a.i("s_cmp_eq_u32 s4, 0xff")
    a.i(f"s_cselect_b32 {sLOC}, 1, 0")
    if GOPT.get('force_remote'): a.i(f"s_mov_b32 {sLOC}, 0")

def wo_group_for(kbase):
    setup=[f"s_add_u32 {sT1}, {sWV}, {kbase}", f"s_mul_i32 {sT2}, {sT1}, 41472", f"s_mul_i32 {sT3}, {sT1}, 9216"]
    return wo_dma_groups(0,None,setup)

def phase1b(a, pend, opts):
    a.c("---- phase 1b")
    a.stamp('1a_end')
    q=[]; stores=[]; wo=[]
    E2=opts.get('e2',4)
    FAST=opts.get('fastA',1)
    sched={}
    tt=E2+1
    for g in range(16):
        sched.setdefault(tt,[]).append(g)
        tt += 1 if (g<7 and FAST) else 2
    FLAGA=opts.get('flagA',24)
    woaddr=[f"v_mov_b32 {d_}, {s_}" for d_,s_ in zip(vWOm+vWOl+vWOt,vWOtmp)]
    for tau in range(36):
        n,t=divmod(tau,4); b=tau%2
        a.stamp(f'b{tau}_')
        if tau==1:
            a.i("s_barrier"); q+=epi1a_list()
        if tau==E2:
            a.drain(q,1000); a.wait(lg=0); a.i("s_barrier")
            a.emit(own_reads())
        if tau==E2+1:
            a.wait(lg='own')
            a.stamp('pub_start')
            stores=own_store_groups()
            q+=woaddr
        if tau==E2+3:
            a.i("s_barrier")
        if tau==E2+6: wo+=wo_group_for(0); q+=own_presets()
        if tau==15: wo+=wo_group_for(4)
        if tau==27: wo+=wo_group_for(8)
        if tau==FLAGA:
            a.wait(vm='pubA'); get_nonce(a); a.emit(flag_store_ins(2)); a.stamp('flagA')
            if opts.get('olocal'): a.emit(xt_store())
        if t==3 and tau<35:
            a.wait(vm=f'wq{n+1}')
            a.i("s_barrier")
            if (n+1)%3==0: a.i(f"v_add_u32 {vQr}, {SLOT}, {vQr}")
        R = wq_reads(tau+1) if tau<35 else []
        for m,nm in enumerate(('Q0','Q1','Q2')):
            a.wait(lg=[f'q{tau}_{m}'])
            acc=rng('v',ACC[nm],16); c='0' if tau==0 else acc
            a.i(f"v_mfma_f32_32x32x16_bf16 {acc}, {QF(b,m)}, {XF(tau)}, {c}")
            if m<len(R): a.emit(R[m])
            if m==0 and tau in sched:
                for g in sched[tau]:
                    if opts.get('nopub'):
                        for x in stores[g]:
                            if isinstance(x,tuple): a.vm.append(x[1])
                    else: a.emit(stores[g])
            elif q and tau<E2: a.drain(q,opts.get('epi_rate',7))
            elif pend: a.emit(pend.pop(0))
            elif q: drain_side2(a,q,4)
            elif opts.get('nowo1b',1): pass
            elif wo and m==2: a.emit(wo.pop(0))
            elif wo and m==1 and opts.get('wo2',1): a.emit(wo.pop(0))
    assert not pend and not q, (len(pend),len(q))
    for tt_ in sorted(sched):
        if tt_>35:
            for g in sched[tt_]: a.emit(stores[g])
    opts['_wo_left']=wo
    a.stamp('1b_end')
    a.emit(kv_flag_load(0))
    a.nop(14)
    T=76
    for ti,nm in enumerate(('Q0','Q1','Q2')):
        base=ACC[nm]; ni=4 if ti<2 else 1
        for r in range(4*ni): a.i(f"v_mul_f32 v{base+r}, {sSC}, v{base+r}")
    for ti,nm in enumerate(('Q0','Q1','Q2')):
        base=ACC[nm]; ni=4 if ti<2 else 1
        for i in range(ni):
            t0=T+2*((ti*4+i)%8)
            a.i(f"v_cvt_pk_bf16_f32 v{t0}, v{base+4*i}, v{base+4*i+1}"); a.i(f"v_cvt_pk_bf16_f32 v{t0+1}, v{base+4*i+2}, v{base+4*i+3}")
            if ti==0 and i==0: a.i("s_barrier")
            a.i(f"ds_write2_b32 {vQw}, v{t0}, v{t0+1} offset0:{16*ti+4*i} offset1:{16*ti+4*i+1}",'e2w')
    a.i(f"v_mov_b32 {vT}, 0")
    for i in range(4):
        for r in range(4,8): a.i(f"v_accvgpr_write_b32 a{8*i+r}, {vT}")
    a.wait(lg=0); a.i("s_barrier")
    for i in range(4):
        a.i(f"v_add_u32 v88, {QBASE+KBLK*i}, {vKr}")
        a.i(f"ds_read2_b32 a[{8*i}:{8*i+1}], v88 offset0:0 offset1:1",'qf')
        a.i(f"ds_read2_b32 a[{8*i+2}:{8*i+3}], v88 offset0:2 offset1:3",'qf')
    a.i(f"s_mov_b64 exec, {sLO}")
    for i in range(4):
        a.i(f"v_add_u32 v89, {QBASE+KBLK*i}, {vKl}")
        a.i(f"ds_read_b32 a{8*i+4}, v89",'qf')
    a.i("s_mov_b64 exec, -1")
    a.wait(lg='qf')
    a.i("s_barrier")
    a.stamp('q_ready')

def drain_side2(a, q, n):
    k=0; inexec=False; last=''
    while q and (k<n or inexec or last.startswith('s_cmp') or (q[0] if isinstance(q[0],str) else q[0][0]).startswith('s_cselect')):
        x=q.pop(0)
        txt=x[0] if isinstance(x,tuple) else x
        if txt.startswith('s_mov_b64 exec'): inexec = not txt.endswith('-1')
        if isinstance(x,tuple): a.i(*x)
        else: a.i(x)
        last=txt; k+=1

vFL='v[6:7]'; vFA='v5'
def kv_flag_load(rnd):
    L=[]
    if rnd==0:
        L+= [f"s_cmp_ge_u32 {sC}, 2", f"s_cselect_b32 {sT1}, 2, 1", f"s_lshl_b32 {sT1}, {sT1}, 9",
             f"s_sub_u32 {sT0}, {sFKV}, 512", f"s_sub_u32 {sT1}, {sFKV}, {sT1}",
             f"s_cmp_eq_u32 {sC}, 0", f"s_cselect_b32 {sT0}, {sFKV}, {sT0}", f"s_cselect_b32 {sT1}, {sFKV}, {sT1}",
             f"v_mov_b32 v8, {sT0}", f"v_mov_b32 v9, {sT1}", f"v_cmp_eq_u32 vcc, 0, {vLane}", "s_nop 1",
             f"v_cndmask_b32 {vFA}, v9, v8, vcc"]
    L+= ["s_mov_b64 exec, 3", (f"buffer_load_dwordx2 {vFL}, {vFA}, {sWS}, 0 offen sc1", f'fl{rnd}'), "s_mov_b64 exec, -1"]
    return L

def kv_flag_check(a, rnd, need):
    a.wait(vm=f'fl{rnd}')
    a.i(f"s_mov_b32 {sCNT}, 200000")
    a.label(f"L_chk{rnd}")
    a.i(f"s_cmp_eq_u32 {sC}, 0"); a.i(f"s_cbranch_scc1 L_ok{rnd}")
    a.i("s_mov_b64 exec, 3")
    a.i(f"v_subrev_u32 v8, {sNONh}, v7")
    a.i(f"v_cmp_eq_u32 vcc, {sNONl}, v6")
    a.i(f"v_cmp_le_u32 s[4:5], {need}, v8")
    a.i(f"v_cmp_ge_u32 s[6:7], 4, v8")
    a.i("s_mov_b64 exec, -1")
    a.i("s_and_b64 s[4:5], s[4:5], vcc"); a.i("s_and_b64 s[4:5], s[4:5], s[6:7]"); a.i("s_and_b32 s4, s4, 3")
    a.i("s_cmp_eq_u32 s4, 3"); a.i(f"s_cbranch_scc1 L_ok{rnd}")
    a.i("s_mov_b64 exec, 3")
    a.i(f"buffer_load_dwordx2 {vFL}, {vFA}, {sWS}, 0 offen sc1", cond=True)
    a.i("s_mov_b64 exec, -1")
    a.i("s_waitcnt vmcnt(0)")
    a.i(f"s_sub_u32 {sCNT}, {sCNT}, 1"); a.i(f"s_cmp_lg_u32 {sCNT}, 0"); a.i(f"s_cbranch_scc1 L_chk{rnd}")
    a.label(f"L_ok{rnd}")
    a.stamp(f'chk{rnd}')

def wo_addr(a):
    L=vLane
    a.i(f"s_mul_i32 s6, {sNQ}, 288")
    a.i(f"v_lshrrev_b32 v4, 4, {L}")
    a.i(f"v_and_b32 v5, 15, {L}")
    for par in range(2):
        a.i(f"v_add_u32 v6, {4*par}, v4"); a.i(f"v_lshlrev_b32 v6, 1, v6"); a.i(f"v_xor_b32 v6, v5, v6")
        a.i(f"v_lshlrev_b32 v6, 4, v6"); a.i(f"v_add_u32 v6, s6, v6")
        a.i(f"v_mul_u32_u24 v7, {XROW}, v4"); a.i(f"v_add_u32 {vWOm[par]}, v6, v7")
        a.i(f"v_lshrrev_b32 v7, 1, v4"); a.i(f"v_mul_u32_u24 v7, 18, v7"); a.i(f"v_and_b32 v8, 1, v4"); a.i(f"v_add_u32 v7, v7, v8")
        a.i(f"v_mul_u32_u24 v7, {XROW}, v7"); a.i(f"v_add_u32 {vWOl[par]}, v6, v7")
    a.i(f"v_lshrrev_b32 v4, 1, {L}")
    a.i(f"v_and_b32 v5, 1, {L}"); a.i(f"v_lshlrev_b32 v5, 4, v5"); a.i(f"v_add_u32 v5, 256, v5"); a.i(f"v_add_u32 v5, s6, v5")
    a.i(f"v_bfe_u32 v6, v4, 2, 2")
    a.i(f"v_and_b32 v7, 3, v4"); a.i(f"v_lshrrev_b32 v8, 4, v4")
    a.i(f"v_lshrrev_b32 v2, 1, v6"); a.i(f"v_mul_u32_u24 v2, 18, v2"); a.i(f"v_add_u32 v2, v2, v7"); a.i(f"v_lshl_add_u32 v2, v8, 3, v2")
    a.i(f"v_and_b32 v3, 1, v6"); a.i(f"v_lshl_add_u32 v2, v3, 2, v2"); a.i(f"v_mul_u32_u24 v2, {XROW}, v2"); a.i(f"v_add_u32 {vWOt[0]}, v2, v5")
    a.i(f"v_lshl_add_u32 v7, v8, 2, v7")
    a.i(f"v_lshrrev_b32 v2, 1, v7"); a.i(f"v_lshl_add_u32 v2, v6, 2, v2"); a.i(f"v_mul_u32_u24 v2, 18, v2")
    a.i(f"v_and_b32 v3, 1, v7"); a.i(f"v_add3_u32 v2, v2, v3, 16"); a.i(f"v_mul_u32_u24 v2, {XROW}, v2"); a.i(f"v_add_u32 {vWOt[1]}, v2, v5")

def wo_dma_groups(kap, slot, uniform_setup):
    Gs=[]
    left = kap>=16
    for e in range(8):
        if left: const=((4*(e&3)+2*(e>>2))*18+16)*XROW
        else: const=(((e&3)>>1)*18+8*(e>>2)+4*(e&1))*XROW
        pre = list(uniform_setup) if e==0 else []
        if e%4==0: pre += [f"s_add_u32 m0, {sT3}, {4096*(e//4)}"]
        voff=(vWOl if left else vWOm)[e&1]
        Gs.append(pre+[f"s_add_u32 {sWOs}, {sT2}, {const-1024*(e%4)}" if const-1024*(e%4)>=0 else f"s_sub_u32 {sWOs}, {sT2}, {1024*(e%4)-const}",
                       (f"buffer_load_dwordx4 {voff}, {sWO}, {sWOs} offen offset:{1024*(e%4)} lds",'wo')])
    Gs.append([f"s_add_u32 m0, {sT3}, 8192", "s_nop 0", (f"buffer_load_dwordx4 {vWOt[1 if left else 0]}, {sWO}, {sT2} offen lds",'wo')])
    return Gs

def wo_prefetch_groups():
    Gs=[]
    for it in range(4):
        setup=[f"s_add_u32 {sT1}, {sWV}, {4*it}", f"s_mul_i32 {sT2}, {sT1}, 41472", f"s_mul_i32 {sT3}, {sT1}, 9216"]
        Gs+=wo_dma_groups(0,None,setup)
    return Gs

def wo_left_groups(L_, ldsbase, regs=None):
    vl0,vl1,vt = regs or (vWOl[0],vWOl[1],vWOt[1])
    g0=L_*16*18*XROW
    setup=[f"s_lshl_b32 {sT1}, {sWV}, 1", f"s_and_b32 {sT1}, {sT1}, 3", f"s_lshl_b32 {sT1}, {sT1}, 2",
           f"s_lshr_b32 {sT2}, {sWV}, 1", f"s_lshl_b32 {sT2}, {sT2}, 1", f"s_add_u32 {sT1}, {sT1}, {sT2}",
           f"s_mul_i32 {sT1}, {sT1}, {18*XROW}", f"s_add_u32 {sT2}, {sT1}, {g0+16*XROW}",
           f"s_lshl_b32 {sT1}, {sWV}, 11", f"s_add_u32 m0, {sT1}, {ldsbase}", "s_nop 0"]
    G0=setup+[(f"buffer_load_dwordx4 {vl0}, {sWO}, {sT2} offen lds",'wo')]
    G1=[f"s_add_u32 {sT2}, {sT2}, {4*18*XROW-1024}", (f"buffer_load_dwordx4 {vl1}, {sWO}, {sT2} offen offset:1024 lds",'wo')]
    G2=[f"s_mov_b32 {sT2}, {g0}", f"s_mov_b32 m0, {ldsbase+8192}", "s_nop 0", (f"buffer_load_dwordx4 {vt}, {sWO}, {sT2} offen lds",'wo')]
    return [G0,G1,G2]

def halo_load_groups(hb):
    base=HALO+14*hb; src=sKV2 if hb<4 else sKV1; bt=hb%4; tg=f'h{hb}'
    return [[f"s_add_u32 {sT0}, {src}, {9216*bt}",
             (f"buffer_load_dwordx4 a[{base}:{base+3}], {vPk}, {sWS}, {sT0} offen sc1", tg),
             (f"buffer_load_dword a{base+4}, {vPl}, {sWS}, {sT0} offen sc1", tg),
             f"s_mov_b64 exec, {sVM}",
             (f"buffer_load_dwordx4 a[{base+6}:{base+9}], {vPv}, {sWS}, {sT0} offen sc1", tg),
             (f"buffer_load_dwordx4 a[{base+10}:{base+13}], {vPv}, {sWS}, {sT0} offen offset:576 sc1", tg),
             "s_mov_b64 exec, -1"]]

def get_nonce(a):
    a.i(f"v_readfirstlane_b32 {sNONl}, v48"); a.i(f"v_readfirstlane_b32 {sNONh}, v49"); a.i("s_nop 1")
    a.i(f"s_or_b32 {sT0}, {sNONl}, {sNONh}"); a.i(f"s_cmp_lg_u32 {sT0}, 0"); a.i("s_cbranch_scc1 L_have_nonce")
    a.i(f"s_mov_b32 {sCNT}, 100000")
    a.label("L_nonce_poll")
    a.i(f"v_mov_b32 {vT}, 0")
    a.i(f"buffer_load_dwordx2 {vNON}, {vT}, {sDBG}, 0 offen sc1", cond=True)
    a.i("s_waitcnt vmcnt(0)")
    a.i(f"v_readfirstlane_b32 {sNONl}, v48"); a.i(f"v_readfirstlane_b32 {sNONh}, v49"); a.i("s_nop 1")
    a.i(f"s_or_b32 {sT0}, {sNONl}, {sNONh}"); a.i(f"s_cmp_lg_u32 {sT0}, 0"); a.i("s_cbranch_scc1 L_have_nonce")
    a.i("s_sleep 2"); a.i(f"s_sub_u32 {sCNT}, {sCNT}, 1"); a.i(f"s_cmp_lg_u32 {sCNT}, 0"); a.i("s_cbranch_scc1 L_nonce_poll")
    a.label("L_have_nonce")

def kv_regs(jb): return ('v', OWN+14*jb) if jb>=0 else ('a', HALO+14*(jb+8))
HORDER=[-4,-3,-8,-7,-2,-1,-6,-5]
def tile_list():
    T=[(i,bt) for i in range(4) for bt in range(i+1)]
    for jb in HORDER[:4]:
        for i in range(4):
            if i-jb<=8: T.append((i,jb))
    if GOPT.get('r2_by_q',0):
        for i in (3,2,1,0):
            for jb in HORDER[4:]:
                if i-jb<=8: T.append((i,jb))
    else:
        for jb in HORDER[4:]:
            for i in range(4):
                if i-jb<=8: T.append((i,jb))
    return T

def norm_block(i):
    O=OACC+16*i; t=84; L=[]
    L.append(f"v_rcp_f32 v{t}, v{O+10}")
    L.append(f"v_cmp_nle_f32 vcc, v252, v{O+10}")
    L.append(f"v_cmp_nge_f32 s[4:5], v253, v{O+10}")
    for r in range(10): L.append(f"v_mul_f32 v{O+r}, v{t}, v{O+r}")
    L.append(f"s_or_b64 {sBAD}, {sBAD}, vcc"); L.append(f"s_or_b64 {sBAD}, {sBAD}, s[4:5]")
    L.append(f"v_pk_add_f32 v[{t+2}:{t+3}], v[{O}:{O+1}], v[{O+2}:{O+3}]")
    L.append(f"v_pk_add_f32 v[{t+4}:{t+5}], v[{O+4}:{O+5}], v[{O+6}:{O+7}]")
    L.append(f"v_pk_add_f32 v[{t+2}:{t+3}], v[{t+2}:{t+3}], v[{O+8}:{O+9}]")
    L.append(f"v_pk_add_f32 v[{t+2}:{t+3}], v[{t+2}:{t+3}], v[{t+4}:{t+5}]")
    L.append(f"v_add_f32 v{t+2}, v{t+2}, v{t+3}")
    for u in range(5): L.append(f"v_cvt_pk_bf16_f32 v{O+u}, v{O+2*u}, v{O+2*u+1}")
    L.append(f"v_cmp_class_f32 vcc, v{t+2}, v254")
    L.append(f"s_add_u32 {sT0}, {sOM}, {i*32*OUTROW}"); L.append(f"s_add_u32 {sT1}, {sOL}, {i*32*OUTROW}")
    L.append(f"s_or_b64 {sBAD}, {sBAD}, vcc")
    L.append(('OSTORE',i))
    return L

def emit_ostore(a, i):
    O=OACC+16*i
    if not GOPT.get('olocal'):
        a.i(f"buffer_store_dwordx4 v[{O}:{O+3}], {vPk}, {sOUT}, {sT0} offen sc1", 'ost')
        a.i(f"s_mov_b64 exec, {sLO}")
        a.i(f"buffer_store_dword v{O+4}, {vOl}, {sOUT}, {sT1} offen sc1", 'ost')
        a.i(f"s_mov_b64 exec, -1")
        return
    a.i(f"s_cmp_eq_u32 {sLOC}, 1"); a.i(f"s_cbranch_scc1 L_osl{i}")
    a.i(f"buffer_store_dwordx4 v[{O}:{O+3}], {vPk}, {sOUT}, {sT0} offen sc1", 'x', True)
    a.i(f"s_mov_b64 exec, {sLO}")
    a.i(f"buffer_store_dword v{O+4}, {vOl}, {sOUT}, {sT1} offen sc1", 'x', True)
    a.i(f"s_mov_b64 exec, -1")
    a.i(f"s_branch L_ose{i}")
    a.label(f"L_osl{i}")
    a.i(f"buffer_store_dwordx4 v[{O}:{O+3}], {vPk}, {sOUT}, {sT0} offen", 'ost')
    a.i(f"s_mov_b64 exec, {sLO}")
    a.i(f"buffer_store_dword v{O+4}, {vOl}, {sOUT}, {sT1} offen", 'ost')
    a.i(f"s_mov_b64 exec, -1")
    a.label(f"L_ose{i}")

def o_pretouch():
    L=vLane
    return [f"v_lshrrev_b32 v2, 3, {L}", f"v_mul_u32_u24 v2, {32*OUTROW}, v2", f"v_and_b32 v3, 7, {L}", f"v_lshl_add_u32 v2, v3, 7, v2",
            f"v_add_u32 v2, {sOM}, v2",
            f"v_bfe_u32 v3, {L}, 2, 2", f"v_mul_u32_u24 v3, {32*OUTROW}, v3", f"v_and_b32 v4, 3, {L}", f"v_mul_u32_u24 v4, {OUTROW}, v4",
            f"v_add3_u32 v3, v3, v4, {sOL}",
            f"v_cmp_le_u32 vcc, 32, {L}", f"s_lshl_b32 {sT0}, {sG}, 2", f"s_add_u32 {sT0}, {sT0}, {sWV}", f"v_cndmask_b32 v2, v2, v3, vcc",
            "s_mov_b32 s4, -1", "s_mov_b32 s5, 0xffff", "s_mov_b64 exec, s[4:5]",
            (f"buffer_load_dword v255, v2, {sOUT}, 0 offen",'touch'), "s_mov_b64 exec, -1",
            f"s_lshl_b32 {sT0}, {sT0}, 7", f"s_add_u32 {sT0}, {sT0}, {sFO}",
            f"v_mul_u32_u24 v2, {WS_FWL-WS_FOL}, {L}", f"v_add_u32 v2, {WS_FOL-WS_FO}, v2",
            "s_mov_b64 exec, 3", (f"buffer_load_dword v255, v2, {sWS}, {sT0} offen",'touch'), "s_mov_b64 exec, -1"]

def attention(a, opts):
    a.c("---- attention")
    T=tile_list(); n=len(T)
    first={}; last={}; firstuse={}
    for k,(i,jb) in enumerate(T):
        first.setdefault(i,k); last[i]=k; firstuse.setdefault(jb,k)
    Sreg=lambda k: (S0 if k%2==0 else S1)
    Preg=lambda k: (P0 if k%2==0 else P1)
    def qk(k):
        i,jb=T[k]; p,base=kv_regs(jb); S=rng('v',Sreg(k),16)
        return [f"v_mfma_f32_32x32x16_bf16 {S}, {rng(p,base,4)}, a[{8*i}:{8*i+3}], 0",
                f"v_mfma_f32_32x32x16_bf16 {S}, {rng(p,base+4,4)}, a[{8*i+4}:{8*i+7}], {S}"]
    def pv(k):
        i,jb=T[k]; p,base=kv_regs(jb); O=rng('v',OACC+16*i,16); P=Preg(k)
        c0='0' if k==first[i] else O
        return [f"v_mfma_f32_32x32x16_bf16 {O}, {rng(p,base+6,4)}, v[{P}:{P+3}], {c0}",
                f"v_mfma_f32_32x32x16_bf16 {O}, {rng(p,base+10,4)}, v[{P+4}:{P+7}], {O}"]
    waited=set()
    wo=list(opts.get('_wo_left',[]))+wo_group_for(12)+wo_left_groups(0,16*9216)
    WO_START=opts.get('wo_start',0)
    CHK0=opts.get('chk0',0); FLAGB=opts.get('flagB',3); FL1=opts.get('fl1',9); CHK1=opts.get('chk1',14)
    WO_PAUSE=opts.get('wo_pause',1)
    a.i(f"s_mov_b32 {sTRY}, 0")
    a.label("L_att")
    a.i(f"v_mov_b32 v254, 0x207")
    q0=qk(0); a.i(q0[0]); a.i(q0[1])
    extra=[]; hq=[]
    for k in range(n+1):
        a.stamp(f't{k}_')
        if k==CHK0:
            kv_flag_check(a,0,2)
            for jb in HORDER[:4]:
                hq += halo_load_groups(jb+8)
        if k==FLAGB:
            a.wait(vm='pubB'); a.emit(flag_store_ins(4))
        if k==FL1: a.emit(kv_flag_load(1))
        if opts.get('olocal') and k==opts.get('pre_at',19): a.emit(o_pretouch())
        if opts.get('olocal') and k==opts.get('xtl',24): a.emit(xt_load())
        if opts.get('olocal') and k==opts.get('xtc',30): xt_check(a)
        if k==CHK1:
            kv_flag_check(a,1,4)
            for jb in HORDER[4:]:
                hq += halo_load_groups(jb+8)
        mf=[]
        if k+1<n:
            i,jb=T[k+1]
            if jb<0 and jb not in waited:
                if not waited: a.stamp('own_done')
                assert any(t==f'h{jb+8}' for t in a.vm), jb
                waited.add(jb); a.wait(vm=f'h{jb+8}')
                if len(waited)==1: a.stamp('h0_landed')
            mf+=qk(k+1)
        else: mf+=[None,None]
        mf += pv(k-1) if k>=1 else [None,None]
        if k==0: a.nop(12)
        S=Sreg(k); P=Preg(k)
        i,jb=T[k] if k<n else (None,None)
        for seg in range(4):
            pk,ps = (k,seg-1) if seg>0 else (k-1,3)
            if pk>=0 and pk<n:
                Sp=Sreg(pk); Pp=Preg(pk); ip,jp=T[pk]
                for u in (2*ps,2*ps+1): a.i(f"v_cvt_pk_bf16_f32 v{Pp+u}, v{Sp+2*u}, v{Sp+2*u+1}")
                if jp==ip or jp==ip-8:
                    M=MASKD if jp==ip else MASKF
                    for u in (2*ps,2*ps+1): a.i(f"v_and_b32 v{Pp+u}, v{M+u}, v{Pp+u}")
            if k==n and seg==2: a.nop(2)
            if mf[seg]: a.i(mf[seg])
            if k<n:
                for e in range(4): a.i(f"v_exp_f32 v{S+4*seg+e}, v{S+4*seg+e}")
            a.drain(extra, 6 if k<n else 1000)
            if hq and seg in (0,2): a.emit(hq.pop(0))
            paused = WO_PAUSE and ((CHK0<=k<10) or (CHK1<=k<CHK1+9))
            if k>=WO_START and wo and not paused and seg in (0,1,3): a.emit(wo.pop(0))
        if k>=1:
            ib=T[k-1][0]
            if last[ib]==k-1:
                if k==n:
                    a.nop(14); a.emit(norm_block(ib))
                else: extra+=["s_nop 1"]+norm_block(ib)
    assert not extra
    for g in wo: a.emit(g)
    a.i(f"s_or_b32 s4, s74, s75"); a.i(f"s_cmp_eq_u32 s4, 0"); a.i("s_cbranch_scc1 L_att_done")
    a.i(f"s_cmp_eq_u32 {sTRY}, 0"); a.i("s_cbranch_scc1 L_slow")
    a.label("L_att_done")
    a.stamp('att_end')

def slow_path(a):
    a.label("L_slow")
    a.i("s_waitcnt vmcnt(0) lgkmcnt(0)")
    T=tile_list(); L=vLane
    a.i(f"v_and_b32 v84, 31, {L}"); a.i(f"v_lshrrev_b32 v85, 5, {L}"); a.i("v_lshlrev_b32 v85, 2, v85"); a.i("v_sub_u32 v84, v84, v85")
    a.i("v_mov_b32 v86, 0xff800000")
    for i in range(4):
        m=f"v{P0+i}"
        a.i(f"v_mov_b32 {m}, v86")
        for n_,(ii,jb) in enumerate([t for t in T if t[0]==i]):
            lab=f"L_sk{i}_{n_}"
            if jb<0:
                a.i(f"s_cmp_lt_u32 {sC}, {2 if jb<-4 else 1}"); a.i(f"s_cbranch_scc1 {lab}")
            p_,base=kv_regs(jb); S=rng('v',S0,16)
            a.i(f"v_mfma_f32_32x32x16_bf16 {S}, {rng(p_,base,4)}, a[{8*i}:{8*i+3}], 0")
            a.i(f"v_mfma_f32_32x32x16_bf16 {S}, {rng(p_,base+4,4)}, a[{8*i+4}:{8*i+7}], {S}")
            a.nop(16)
            if jb==i or jb==i-8:
                for r in range(16):
                    k0=(r&3)+8*(r>>2)
                    a.i(f"v_cmp_{'le' if jb==i else 'gt'}_i32 vcc, {k0}, v84"); a.i("s_nop 1")
                    a.i(f"v_cndmask_b32 v{S0+r}, v86, v{S0+r}, vcc")
            for r in range(0,16,2): a.i(f"v_max3_f32 {m}, v{S0+r}, v{S0+r+1}, {m}")
            if jb<0: a.label(lab)
        a.i(f"v_mov_b32 v87, {m}"); a.nop(2)
        a.i(f"v_permlane32_swap_b32 {m}, v87"); a.nop(2)
        a.i(f"v_max_f32 {m}, {m}, v87")
        a.i(f"v_sub_f32 v87, 0, {m}")
        a.i(f"v_cvt_pk_bf16_f32 v88, v87, v87"); a.i("v_lshlrev_b32 v89, 16, v88")
        a.i("v_sub_f32 v89, v87, v89")
        a.i("v_cvt_pk_bf16_f32 v88, v87, v89")
        a.i(f"s_mov_b64 exec, {sLO}"); a.i(f"v_accvgpr_write_b32 a{8*i+5}, v88"); a.i("s_mov_b64 exec, -1")
    a.i(f"s_mov_b32 {sTRY}, 1"); a.i(f"s_mov_b64 {sBAD}, 0"); a.nop(4)
    a.i("s_branch L_att")

OF=16
DACC=88
AFV=124
vAr=[f'v{2+t}' for t in range(9)]
vOf='v11'; vOut='v12'; vOf2='v95'

def phase3(a, opts):
    a.c("---- phase 3")
    L=vLane
    a.i(f"v_mov_b32 v88, {vWOl[0]}"); a.i(f"v_mov_b32 v89, {vWOl[1]}"); a.i(f"v_mov_b32 v90, {vWOt[1]}")
    a.i(f"v_lshrrev_b32 v13, 2, {L}")
    a.i(f"v_and_b32 v14, 7, v13"); a.i(f"v_lshlrev_b32 v14, 5, v14")
    a.i(f"v_lshl_add_u32 v14, v13, 8, v14")
    a.i(f"v_and_b32 v15, 3, {L}"); a.i(f"v_lshl_add_u32 v14, v15, 3, v14")
    for t in range(8): a.i(f"v_xor_b32 {vAr[t]}, {32*t}, v14")
    a.i(f"v_lshlrev_b32 v13, 5, v13"); a.i(f"v_lshl_add_u32 v13, v15, 3, v13"); a.i(f"v_add_u32 {vAr[8]}, 8192, v13")
    a.i(f"v_and_b32 v13, 15, {L}"); a.i(f"v_lshrrev_b32 v14, 4, {L}")
    a.i(f"s_and_b32 s6, {sWV}, 1"); a.i(f"s_lshl_b32 s6, s6, 8")
    a.i(f"v_lshl_add_u32 v15, v13, 4, s6")
    a.i(f"v_and_b32 v93, 1, v14"); a.i(f"v_lshl_add_u32 {vOf}, v93, 9, v15"); a.i(f"v_lshrrev_b32 v93, 1, v14")
    a.i(f"v_mul_u32_u24 v93, {OUTROW}, v93"); a.i(f"v_add_u32 {vOf}, {vOf}, v93")
    a.i(f"v_lshrrev_b32 v93, 7, v15"); a.i(f"v_lshl_add_u32 v93, v14, 2, v93"); a.i(f"v_mul_u32_u24 v93, {OUTROW}, v93")
    a.i(f"v_and_b32 v94, 0x70, v15"); a.i(f"v_add_u32 {vOf2}, v93, v94")
    a.i(f"v_mul_u32_u24 v15, {OUTROW}, v13"); a.i(f"v_lshl_add_u32 {vOut}, v14, 3, v15")
    a.wait(vm='wo')
    a.i("s_barrier")
    a.stamp('wo_ready')
    if opts.get('dumpwo'):
        a.i("s_cmp_lg_u32 s2, 0"); a.i("s_cbranch_scc1 L_nodump")
        a.i("v_lshlrev_b32 v13, 4, v0")
        for it in range(39):
            a.i(f"ds_read_b128 v[124:127], v13 offset:0")
            a.i("s_waitcnt lgkmcnt(0)")
            a.i(f"v_add_u32 v14, {WS_DBG+0x100000}, v13")
            a.i(f"buffer_store_dwordx4 v[124:127], v14, {sWS}, 0 offen", cond=True)
            a.i("s_waitcnt vmcnt(0)")
            a.i("v_add_u32 v13, 4096, v13")
        a.label("L_nodump"); a.lg_clear()
    def frag_reads(kap, dst):
        slot=kap if kap<17 else 0
        R=[]
        for t in range(9):
            p,r=dst(kap,t)
            off=(slot%7)*9216
            hoff=4096 if t<8 else 512
            R.append([(f"ds_read_b64_tr_b16 {p}[{r+2*h}:{r+2*h+1}], {vAr[t]} offset:{off+hoff*h}", f'a{kap}_{t}') for h in range(2)])
        return R
    NA=7
    def dst(kap,t):
        if kap<NA: return 'a', (kap*9+t)*4
        idx=((kap-NA)*9+t)%32
        return 'v', AFV+idx*4
    bump=lambda: [f"v_add_u32 {vAr[t]}, {7*9216}, {vAr[t]}" for t in range(9)]
    def oflag():
        a.i(f"s_lshl_b32 {sT0}, {sG}, 2"); a.i(f"s_add_u32 {sT0}, {sT0}, {sWV}"); a.i(f"s_lshl_b32 {sT0}, {sT0}, 7"); a.i(f"s_add_u32 {sT0}, {sT0}, {sFO}")
        a.i(f"v_mov_b32 v14, {sNONl}"); a.i(f"v_mov_b32 v13, 0")
        if not opts.get('olocal'):
            a.i(f"v_mov_b32 v15, {sNONh}"); a.i("s_mov_b64 exec, 1")
            a.i(f"buffer_store_dwordx2 v[14:15], v13, {sWS}, {sT0} offen sc1", 'oflag'); a.i("s_mov_b64 exec, -1")
            return
        a.i(f"s_cmp_eq_u32 {sLOC}, 1"); a.i("s_cbranch_scc1 L_ofl")
        a.i(f"v_mov_b32 v15, {sNONh}")
        a.i("s_mov_b64 exec, 1")
        a.i(f"buffer_store_dwordx2 v[14:15], v13, {sWS}, {sT0} offen sc1", 'x', True)
        a.i("s_branch L_ofe")
        a.label("L_ofl")
        a.i(f"s_add_u32 {sT0}, {sT0}, {WS_FOL-WS_FO}")
        a.i(f"v_mov_b32 v15, {sLFH}")
        a.i("s_mov_b64 exec, 1")
        a.i(f"buffer_store_dwordx2 v[14:15], v13, {sWS}, {sT0} offen", tag='oflag')
        a.label("L_ofe")
        a.i("s_mov_b64 exec, -1")
    LF_AT=opts.get('lf_at',1)
    for kap in range(NA):
        if kap==LF_AT:
            a.wait(vm='ost'); oflag(); a.stamp('o_lflag')
        for grp in frag_reads(kap,dst): a.emit(grp)
        if kap%2==1: a.wait(lg=8)
    a.emit(bump())
    for kap in range(NA,NA+3):
        for grp in frag_reads(kap,dst): a.emit(grp)
    a.wait(lg=0)
    a.i("s_barrier")
    for g in wo_left_groups(1,0,('v88','v89','v90')): a.emit(g)
    a.stamp('frags_pre')
    a.i(f"v_and_b32 v13, 31, {L}"); a.i(f"v_lshlrev_b32 v13, 7, v13")
    a.i(f"v_mov_b32 v91, {sNONh}")
    if opts.get('olocal'):
        a.i(f"v_add_u32 v14, {WS_FOL-WS_FO}, v13"); a.i(f"v_cmp_le_u32 vcc, 32, {L}")
        a.i(f"v_mov_b32 v92, {sLFH}"); a.i("s_nop 0")
        a.i(f"v_cndmask_b32 v13, v13, v14, vcc"); a.i(f"v_cndmask_b32 v91, v91, v92, vcc")
    a.i(f"s_mov_b32 {sCNT}, 200000")
    a.label("L_opoll")
    if not opts.get('olocal'): a.i(f"s_mov_b64 exec, {sLO}")
    a.i(f"buffer_load_dwordx2 v[14:15], v13, {sWS}, {sFO} offen sc1", cond=True)
    a.i("s_waitcnt vmcnt(0)")
    a.i(f"v_cmp_eq_u32 vcc, {sNONl}, v14"); a.i(f"v_cmp_eq_u32 s[4:5], v91, v15")
    a.i("s_mov_b64 exec, -1")
    a.i("s_and_b64 s[4:5], s[4:5], vcc"); a.i("s_or_b32 s4, s4, s5"); a.i("s_cmp_eq_u32 s4, -1"); a.i("s_cbranch_scc1 L_opoll_done")
    a.i(f"s_sub_u32 {sCNT}, {sCNT}, 1"); a.i(f"s_cmp_lg_u32 {sCNT}, 0"); a.i("s_cbranch_scc1 L_opoll")
    a.label("L_opoll_done")
    a.stamp('opoll_done')
    KORD=[7,8,9]+list(range(7))+list(range(10,18))
    for kap in KORD:
        if kap<16:
            a.i(f"s_add_u32 {sT0}, {sPOM}, {2*OUTROW*kap}")
            a.i(f"buffer_load_dwordx4 v[{OF+4*kap}:{OF+4*kap+3}], {vOf}, {sOUT}, {sT0} offen sc1", tag=f'of{kap}')
        else:
            a.i(f"s_add_u32 {sT0}, {sPOL}, {16*OUTROW*(kap-16)}")
            a.i(f"buffer_load_dwordx4 v[{OF+4*kap}:{OF+4*kap+3}], {vOf2}, {sOUT}, {sT0} offen sc1", tag=f'of{kap}')
    a.stamp('p3_oissued')
    a.wait(vm='wo'); a.i("s_barrier")
    rq=[]
    for kap in range(NA+3,18):
        R=frag_reads(kap,dst)
        for t in range(9): rq.append((kap,t,R[t]))
    issued=(NA+3-NA)*9
    consumed=0; mcount=0
    def war_store():
        a.wait(vm=f'of{KORD[-1]}')
        a.i(f"s_lshl_b32 {sT0}, {sG}, 2"); a.i(f"s_add_u32 {sT0}, {sT0}, {sWV}"); a.i(f"s_lshl_b32 {sT0}, {sT0}, 7"); a.i(f"s_add_u32 {sT0}, {sT0}, {sFO}")
        a.i(f"v_mov_b32 v252, {sNONl}"); a.i(f"v_mov_b32 v254, 0")
        a.i(f"s_add_u32 {sT0}, {sT0}, {WS_FW-WS_FO}")
        if opts.get('olocal'):
            a.i(f"s_cmp_eq_u32 {sLOC}, 1"); a.i("s_cbranch_scc1 L_wl")
        a.i(f"v_mov_b32 v253, {sNONh}"); a.i("s_mov_b64 exec, 1")
        a.i(f"buffer_store_dwordx2 v[252:253], v254, {sWS}, {sT0} offen sc1", 'war' if not opts.get('olocal') else 'x', bool(opts.get('olocal')))
        if opts.get('olocal'):
            a.i("s_branch L_we"); a.label("L_wl")
            a.i(f"s_add_u32 {sT0}, {sT0}, {WS_FWL-WS_FW}"); a.i(f"v_mov_b32 v253, {sLFH}"); a.i("s_mov_b64 exec, 1")
            a.i(f"buffer_store_dwordx2 v[252:253], v254, {sWS}, {sT0} offen", 'war')
            a.label("L_we")
        a.i("s_mov_b64 exec, -1")
    def war_addr():
        a.i(f"v_and_b32 v13, 15, {L}"); a.i(f"s_lshl_b32 {sT0}, {sRH}, 4"); a.i(f"v_add_u32 v13, {sT0}, v13"); a.i(f"v_lshlrev_b32 v13, 7, v13")
        a.i(f"v_add_u32 v13, {WS_FW-WS_FO}, v13"); a.i(f"v_add_u32 v14, {WS_FWL-WS_FW}, v13"); a.i(f"v_cmp_le_u32 vcc, 16, {L}")
        a.i(f"v_mov_b32 v15, {sNONh}"); a.i(f"v_mov_b32 v1, {sLFH if opts.get('olocal') else sNONh}")
        a.i(f"v_cndmask_b32 v13, v13, v14, vcc"); a.i(f"v_cndmask_b32 v15, v15, v1, vcc")
    def war_load(cond=False):
        a.i(f"s_mov_b64 exec, {sLO}"); a.i(f"buffer_load_dwordx2 v[0:1], v13, {sWS}, {sFO} offen sc1", 'warl', cond); a.i("s_mov_b64 exec, -1")
    base_slot=7
    for kap in KORD:
        a.wait(vm=f'of{kap}')
        for t in range(9):
            p,r=dst(kap,t)
            if kap>=NA:
                n_=a.lg_n(f'a{kap}_{t}')
                if n_ is not None: a.wait(lg=f'a{kap}_{t}')
            acc=rng('v',DACC+4*t,4); c='0' if kap==KORD[0] else acc
            a.i(f"v_mfma_f32_16x16x32_bf16 {acc}, {p}[{r}:{r+3}], v[{OF+4*kap}:{OF+4*kap+3}], {c}")
            if kap>=NA: consumed+=1
            mcount+=1
            if mcount in (1,27,90,126): a.stamp(f'p3_m{mcount}_')
            if mcount==opts.get('war_st',70): war_store()
            if mcount==opts.get('war_ld',125): war_addr(); war_load()
            if rq and issued-consumed<31:
                k2,t2,ins=rq[0]
                if k2==14 and t2==0 and base_slot==7:
                    a.emit(bump()); base_slot=14
                if k2==17 and t2==0:
                    a.emit([f"v_subrev_u32 {vAr[tt]}, {14*9216}, {vAr[tt]}" for tt in range(9)])
                rq.pop(0); a.emit(ins); issued+=1
    assert not rq
    a.stamp('p3_mfma_end')
    a.wait(vm='warl')
    a.i(f"s_mov_b32 {sCNT}, 200000")
    a.label("L_wchk")
    a.i(f"s_mov_b64 exec, {sLO}")
    a.i(f"v_cmp_eq_u32 vcc, {sNONl}, v0"); a.i(f"v_cmp_eq_u32 s[4:5], v15, v1")
    a.i("s_mov_b64 exec, -1")
    a.i("s_and_b64 s[4:5], s[4:5], vcc"); a.i("s_lshr_b32 s5, s4, 16"); a.i("s_or_b32 s4, s4, s5"); a.i("s_and_b32 s4, s4, 0xffff")
    a.i("s_cmp_eq_u32 s4, 0xffff"); a.i("s_cbranch_scc1 L_wok")
    war_load(True); a.i("s_waitcnt vmcnt(0)")
    a.i(f"s_sub_u32 {sCNT}, {sCNT}, 1"); a.i(f"s_cmp_lg_u32 {sCNT}, 0"); a.i("s_cbranch_scc1 L_wchk")
    a.label("L_wok")
    a.stamp('p3_war')
    a.nop(10)
    OT=9216; OP=304
    a.i(f"v_mbcnt_lo_u32_b32 v1, -1, 0"); a.i(f"v_mbcnt_hi_u32_b32 v1, -1, v1")
    a.i(f"v_and_b32 v13, 15, v1"); a.i(f"v_mul_u32_u24 v13, {OP}, v13"); a.i(f"v_lshrrev_b32 v14, 4, v1"); a.i(f"v_lshl_add_u32 v13, v14, 3, v13")
    a.i(f"s_mul_i32 {sT0}, {sWV}, {16*OP}"); a.i(f"s_add_u32 {sT0}, {sT0}, {OT}"); a.i(f"v_add_u32 v13, {sT0}, v13")
    for t in range(9):
        d=DACC+4*t
        a.i(f"v_cvt_pk_bf16_f32 v{d}, v{d}, v{d+1}"); a.i(f"v_cvt_pk_bf16_f32 v{d+1}, v{d+2}, v{d+3}")
        a.i(f"ds_write_b64 v13, v[{d}:{d+1}] offset:{32*t}", 'ow')
    for e in range(5):
        a.i(f"v_add_u32 v2, {64*e}, v1"); a.i(f"v_mul_u32_u24 v3, 58255, v2"); a.i(f"v_lshrrev_b32 v3, 20, v3")
        a.i(f"v_mul_u32_u24 v4, 18, v3"); a.i(f"v_sub_u32 v4, v2, v4"); a.i(f"v_lshlrev_b32 v4, 4, v4")
        a.i(f"v_mul_u32_u24 v5, {OP}, v3"); a.i(f"v_add3_u32 v{16+e}, v5, v4, {sT0}")
        a.i(f"v_mul_u32_u24 v5, {OUTROW}, v3"); a.i(f"v_add_u32 v{24+e}, v5, v4")
    a.wait(lg=0)
    for e in range(5):
        if e==4: a.i(f"s_mov_b64 exec, {sLO}")
        a.i(f"ds_read_b128 v[{32+4*e}:{35+4*e}], v{16+e}", f'or{e}')
    a.i("s_mov_b64 exec, -1")
    for e in range(5):
        a.wait(lg=f'or{e}')
        if e==4: a.i(f"s_mov_b64 exec, {sLO}")
        a.i(f"buffer_store_dwordx4 v[{32+4*e}:{35+4*e}], v{24+e}, {sOUT}, {sOUTB} offen {opts.get('outmod','')}")
    a.i("s_mov_b64 exec, -1")
    a.stamp('p3_stissued')
    a.i("s_waitcnt vmcnt(0)")

def kd(name, vgpr, accum, sgpr=102):
    return f""".section .rodata,"a"
.p2align 6
.amdhsa_kernel {name}
  .amdhsa_next_free_vgpr {vgpr}
  .amdhsa_next_free_sgpr {sgpr}
  .amdhsa_accum_offset {accum}
  .amdhsa_group_segment_fixed_size 0
  .amdhsa_kernarg_size 72
  .amdhsa_user_sgpr_count 2
  .amdhsa_user_sgpr_kernarg_segment_ptr 1
  .amdhsa_system_sgpr_workgroup_id_x 1
.end_amdhsa_kernel
"""
HEADER = """; Kernarg layout (72 bytes, ptrs only, base s[0:1]):
"""
def build(opts):
    ORDER_MODE[0]=opts.get('order','own'); GOPT.update(opts)
    a=G()
    if opts.get('stamps'):
        a.stamps=[]
        a.sel = opts['sel'].split(',') if 'sel' in opts else ['ch0_landed','1a_end','1b_end','q_ready','poll_done','own_done','att_end','wo_ready','frags_pre','opoll_done','p3_mfma_end','drained']
    prologue(a,opts)
    g0=dma_chunk_groups(0,0)
    for g in g0[:4]: a.emit(g)
    setupA(a,opts)
    setupB0(a,opts)
    for g in g0[4:]: a.emit(g)
    if opts.get('xtouch',1):
        L=vLane
        a.i(f"v_mul_u32_u24 v2, 7282, {L}"); a.i("v_lshrrev_b32 v2, 16, v2")
        a.i(f"v_mul_u32_u24 v3, 9, v2"); a.i(f"v_sub_u32 v3, {L}, v3"); a.i("v_min_u32 v2, 3, v2")
        a.i(f"s_lshl_b32 s5, {sC}, 7"); a.i(f"s_lshl_b32 s6, {sG}, 4"); a.i("s_add_u32 s5, s5, s6"); a.i(f"s_lshl_b32 s6, {sWV}, 2"); a.i("s_add_u32 s5, s5, s6")
        a.i(f"v_add_u32 v2, s5, v2"); a.i(f"v_mul_u32_u24 v2, {XROW}, v2"); a.i(f"v_lshl_add_u32 v2, v3, 7, v2")
        a.i("s_mov_b32 s6, -1"); a.i("s_mov_b32 s7, 15")
        a.emit(["s_mov_b64 exec, s[6:7]", (f"buffer_load_dword v255, v2, {sX}, 0 offen",'touch'), "s_mov_b64 exec, -1"])
    if opts.get('wotouch',2)==2: touch_wo(a)
    a.stamp('p_ch0')
    for g in dma_chunk_groups(1,1): a.emit(g)
    a.stamp('p_ch1')
    rec=Rec(); setupB(rec,opts)
    rec2=Rec(); wo_addr(rec2)
    ren=dict(zip(vWOm+vWOl+vWOt,vWOtmp))
    def rn(x):
        for k_,v_ in ren.items(): x=x.replace(f" {k_},",f" {v_},")
        return x
    opts['_side']=rec.l+[rn(x) for x in rec2.l]
    pend=dma_chunk_groups(2,2)
    pend=phase1a(a,opts,pend)
    phase1b(a,pend,opts)
    attention(a,opts)
    phase3(a,opts)
    a.stamp('drained'); a.stamp('rt_exit',real=True)
    if opts.get('dbgtime'):
        a.i("s_waitcnt lgkmcnt(0)")
        n=len(a.stamps)
        r0=a.stamps[0][1]; r1=a.stamps[-1][1]
        a.i(f"s_not_b32 s3, s{r0}")
        a.i("v_mov_b32 v2, s3"); a.i("v_mov_b32 v3, 8"); a.i(f"v_mov_b32 v4, s{r1}"); a.i("v_mov_b32 v5, 12")
        a.i("s_mov_b64 exec, 1")
        a.i(f"buffer_atomic_umax v2, v3, {sDBG}, 0 offen sc1"); a.i(f"buffer_atomic_umax v4, v5, {sDBG}, 0 offen sc1")
        a.i(f"s_cmp_lg_u32 s2, 77"); a.i("s_cbranch_scc1 L_nodbg"); a.i(f"s_cmp_lg_u32 {sWV}, 0"); a.i("s_cbranch_scc1 L_nodbg")
        e=a.stamps[1][1]
        for k,(nm,r) in enumerate(a.stamps[2:-1][:12]):
            a.i(f"s_sub_u32 s3, s{r}, s{e}"); a.i("v_mov_b32 v2, s3"); a.i(f"v_mov_b32 v3, {16+4*k}")
            a.i(f"buffer_store_dword v2, v3, {sDBG}, 0 offen")
        a.label("L_nodbg")
        a.i("s_mov_b64 exec, -1"); a.i("s_waitcnt vmcnt(0)")
    else: a.dump_stamps(0)
    a.label("L_end"); a.i("s_endpgm")
    slow_path(a)
    errs=a.check()
    if opts.get('stamps'): print("stamps:",len(a.stamps),[x[0] for x in a.stamps])
    k1=f"{NAME}_kernel"
    txt=HEADER+f"; @launch grid=(256,1,1) block=(256,1,1) lds={LDS_BYTES}\n"
    txt+='.amdgcn_target "amdgcn-amd-amdhsa--gfx950"\n.text\n'
    txt+=f".globl {k1}\n.p2align 8\n.type {k1},@function\n{k1}:\n"+a.text()+kd(k1,512,256)
    return txt
if __name__=="__main__":
    out=sys.argv[1]
    opts={}
    for x in sys.argv[2:]:
        k,_,v=x.partition('='); opts[k]=int(v) if v.lstrip('-').isdigit() else (v or True)
    open(out,'w').write(build(opts)); print("written",out)
```

```python
import sys, os, struct
sys.path.insert(0, os.path.dirname(os.path.abspath(__file__)))
from asm import *
NAME = "concat_heads__sliding_block__sliding_block__prompt"
XROW=1152; WROW=3456; OUTROW=2304
X_BYTES=2048*1152; W_BYTES=576*3456; WO_BYTES=576*1152; OUT_BYTES=2048*2304
SLOT=36864; WPITCH=320; XOFF=20480; QPITCH=192; QCH=12288
VBASE=0; VR=1184; VJ=2368; VB=4736; KB3=18944; KB0=147456; KP=148; KBLK=32*148; QBASE=110592
LDS_BYTES=163840
WS_KV=0; WS_OM=0x1000000; WS_OL=0x1400000; WS_FKV=0x1800000; WS_FO=0x1840000; WS_FOL=0x1880000; WS_FW=0x1900000; WS_FWL=0x1940000
WS_XT=0x18C0000
WS_DBG=0x2000000; WS_BYTES=0x4000000
CSCALE = 1.4426950408889634/(18**0.5)
def f2u(x): return struct.unpack('<I',struct.pack('<f',x))[0]
def rng(p,a,n): return f'{p}[{a}:{a+n-1}]'

sX='s[8:11]'; sW='s[12:15]'; sWO='s[16:19]'; sOUT='s[20:23]'; sWS='s[24:27]'; sDBG='s[28:31]'
sB='s32'; sC='s33'; sG='s34'; sWV='s35'
sVM='s[54:55]'; sLO='s[56:57]'
sCI='s58'; sWoff='s59'; sXoff='s60'; sM0='s61'; sKVme='s62'
sT0='s63'; sT1='s64'; sT2='s65'; sFKV='s66'; sT3='s67'
sNONl='s68'; sNONh='s69'; sROT='s70'; sKV1='s71'; sKV2='s72'; sXCC='s73'
sBAD='s[74:75]'; sNVM='s[52:53]'; sCNT='s76'; sOM='s77'; sOL='s78'; sFO='s79'; sSC='s80'; sATT='s81'
sLFH='s70'; sLOC='s81'
sTRY='s52'
sRH='s82'; sNQ='s83'; sPOM='s84'; sPOL='s85'; sOUTB='s86'; sWOs='s87'
sIDX='s76'; sOFF='s81'

vLane='v1'
vWoff=[f'v{10+j}' for j in range(5)]
vXoff=[f'v{15+j}' for j in range(4)]
vQoff=['v19','v20','v21']
vWr=['v22','v23']; vMx=['v24','v25']
vXr=[[f'v{26+t}' for t in range(4)],[f'v{30+t}' for t in range(4)]]
vQr='v34'
vKw='v35'; vQw='v36'; vVw='v37'; vVt='v38'
vKr='v39'; vKl='v40'; vVr='v41'; vCw='v42'; vQl='v43'
vPk='v44'; vPl='v45'; vPv='v46'; vOl='v47'
vNON='v[48:49]'; vVC='v50'; vT='v51'
def WF(b,f): r=52+(b*5+f)*4; return f'v[{r}:{r+3}]'
def WFh(b,f,h): r=52+(b*5+f)*4+2*h; return f'v[{r}:{r+1}]'
def QF(b,f): r=52+(b*3+f)*4; return f'v[{r}:{r+3}]'
def QFh(b,f,h): r=52+(b*3+f)*4+2*h; return f'v[{r}:{r+1}]'
ACC={'K0':92,'K1':108,'V0':124,'V1':140,'MX':156,'Q0':172,'Q1':188,'Q2':204}
def XF(t): return rng('a',4*t,4)
OWN=92; HALO=144
S0=52; S1=68; P0=150; P1=158; OACC=172; MASKD=236; MASKF=244
vWOm=['v10','v11']; vWOl=['v12','v13']; vWOt=['v14','v15']
vWOtmp=['v220','v221','v222','v223','v224','v225']

class G(Asm):
    stamps=None; sel=None; nowait=True
    def stamp(self, name, real=False):
        if self.stamps is None: return
        if self.sel is not None and not (name.startswith('rt_') or name=='entry' or any(name.startswith(x) for x in self.sel)): return
        k=len(self.stamps)
        regs=[88,90,92,94,96,98,100,36,38,40,42,44,46,48,50][k]
        self.stamps.append((name,regs))
        if GOPT.get('allreal'): real_=True
        else: real_=real
        self.i(f"{'s_memrealtime' if real_ else 's_memtime'} s[{regs}:{regs+1}]")
        if self.nowait and not real and name!='entry':
            self.lg.pop()
        else:
            self.i("s_waitcnt lgkmcnt(0)")
            self.lg_clear()
    def dump_stamps(self, base):
        if self.stamps is None: return
        self.i("s_waitcnt lgkmcnt(0)")
        self.i(f"s_lshl_b32 s3, s2, 2"); self.i(f"s_add_u32 s3, s3, {sWV}")
        self.i(f"s_lshl_b32 s3, s3, 6"); self.i(f"s_add_u32 s3, s3, {WS_DBG+base}")
        self.i("s_mov_b64 exec, 1")
        for k,(nm,r) in enumerate(self.stamps):
            self.i(f"v_mov_b32 v2, s{r}"); self.i(f"v_mov_b32 v3, {4*k}")
            self.i(f"buffer_store_dword v2, v3, {sWS}, s3 offen")
        self.i("s_mov_b64 exec, -1"); self.i("s_waitcnt vmcnt(0)")
    def emit(self, lst):
        for x in lst:
            if isinstance(x,tuple) and x[0]=='OSTORE': emit_ostore(self,x[1])
            elif isinstance(x,tuple): self.i(*x)
            else: self.i(x)
    def drain(self, q, budget):
        k=0; inexec=False
        while q and (k<budget or inexec):
            x=q.pop(0)
            txt=x[0] if isinstance(x,tuple) else x
            if txt.startswith('s_mov_b64 exec'): inexec = not txt.endswith('-1')
            if txt=='OSTORE': emit_ostore(self,x[1])
            elif isinstance(x,tuple): self.i(*x)
            else: self.i(x)
            k+=1

def prologue(a, opts):
    L=vLane
    a.c("---- prologue")
    a.stamp('rt_entry',real=True); a.stamp('entry')
    a.i("s_load_dwordx8 s[36:43], s[0:1], 0")
    a.i("s_load_dwordx8 s[44:51], s[0:1], 32")
    a.i("s_load_dwordx2 s[52:53], s[0:1], 64")
    a.i("s_cmp_ge_u32 s2, 256")
    a.i("s_cbranch_scc1 L_end")
    a.i("s_getpc_b64 s[4:5]")
    a.label("L_pc")
    a.i("v_lshlrev_b32 v2, 7, v0")
    a.raw("    v_min_u32 v2, (L_end-L_pc), v2")
    if not opts.get('nopf'): a.i("global_load_dword v255, v2, s[4:5]", tag='pf')
    a.i(f"v_and_b32 {L}, 63, v0")
    a.i("v_lshrrev_b32 v2, 6, v0")
    a.i("s_and_b32 s3, s2, 7")
    a.i(f"v_readfirstlane_b32 {sWV}, v2")
    a.i(f"s_lshr_b32 {sB}, s3, 2")
    a.i("s_lshr_b32 s4, s2, 3")
    a.i("s_and_b32 s5, s3, 3")
    a.i(f"s_lshl_b32 {sC}, s5, 2")
    a.i("s_lshr_b32 s5, s4, 3")
    a.i(f"s_add_u32 {sC}, {sC}, s5")
    a.i(f"s_and_b32 {sG}, s4, 7")
    a.i("s_lshl_b32 s5, s5, 1")
    a.i(f"s_add_u32 s6, s5, {sG}")
    a.i("s_sub_u32 s7, s6, 9")
    a.i("s_cmp_ge_u32 s6, 9")
    a.i(f"s_cselect_b32 {sROT}, s7, s6")
    if opts.get('order','own')=='own':
        a.i(f"s_add_u32 {sOFF}, s5, {sG}"); a.i(f"s_and_b32 {sOFF}, {sOFF}, 7")
        a.i("s_and_b32 s6, s3, 3"); a.i("s_lshl_b32 s6, s6, 1"); a.i(f"s_and_b32 s7, {sC}, 1"); a.i(f"s_add_u32 {sROT}, s6, s7")
        a.i(f"s_mov_b32 {sIDX}, {sOFF}")
    elif opts.get('order')=='norot': a.i(f"s_mov_b32 {sROT}, 0")
    a.i(f"s_lshl_b32 s6, {sC}, 7"); a.i(f"s_lshl_b32 s7, {sWV}, 5"); a.i("s_add_u32 s6, s6, s7")
    a.i(f"s_mul_i32 s6, s6, {XROW}")
    a.i(f"v_lshrrev_b32 v4, 3, {L}"); a.i(f"v_lshrrev_b32 v5, 4, {L}"); a.i(f"v_and_b32 v6, 7, {L}")
    a.i(f"v_mul_u32_u24 v4, {XROW}, v4")
    a.i(f"v_add_u32 v4, s6, v4")
    for i in range(4):
        a.i(f"v_add_u32 v7, {4*i}, v5"); a.i(f"v_and_b32 v7, 7, v7"); a.i(f"v_xor_b32 v7, v6, v7")
        a.i(f"v_lshl_add_u32 v7, v7, 4, v4")
        a.i(f"v_add_u32 {vXoff[i]}, {8*i*XROW-1024*i}, v7")
    a.i(f"s_mul_i32 s6, {sWV}, {16*WROW}"); a.i(f"s_mul_i32 s7, {sG}, 144"); a.i("s_add_u32 s6, s6, s7")
    a.i(f"s_add_u32 s6, s6, 1152")
    a.i(f"s_movk_i32 s7, {WROW}")
    a.i("v_mov_b32 v9, 0x40000000"); a.i("v_mov_b32 v8, 1008")
    for j in range(5):
        a.i(f"v_add_u32 v4, {64*j}, {L}")
        a.i(f"v_mul_u32_u24 v5, 52429, v4"); a.i(f"v_lshrrev_b32 v5, 20, v5")
        a.i(f"v_mul_u32_u24 v6, 20, v5"); a.i(f"v_sub_u32 v6, v4, v6")
        a.i(f"v_cmp_lt_u32 vcc, 8, v6")
        a.i(f"v_mul_lo_u32 v5, v5, s7")
        a.i(f"v_lshl_add_u32 v5, v6, 4, v5")
        a.i(f"v_cndmask_b32 v7, 0, v8, vcc")
        a.i(f"v_cmp_lt_u32 vcc, 17, v6")
        a.i(f"v_add3_u32 v5, v5, v7, s6")
        comp=1024*j if j<4 else 0
        if comp: a.i(f"v_subrev_u32 v5, {comp}, v5")
        else: a.i("s_nop 0")
        a.i(f"v_cndmask_b32 {vWoff[j]}, v5, v9, vcc")
    a.stamp('p_pre')
    a.wait(lg=0)
    a.stamp('p_karg')
    a.i(f"s_cmp_eq_u32 {sB}, 0")
    a.i("s_cselect_b32 s8, s36, s42");  a.i("s_cselect_b32 s9, s37, s43")
    a.i("s_cselect_b32 s12, s38, s44"); a.i("s_cselect_b32 s13, s39, s45")
    a.i(f"s_mov_b32 s10, {X_BYTES}"); a.i("s_mov_b32 s11, 0x00020000")
    a.i(f"s_mov_b32 s14, {W_BYTES}"); a.i("s_mov_b32 s15, 0x00020000")
    a.i("s_cselect_b32 s16, s40, s46"); a.i("s_cselect_b32 s17, s41, s47")
    a.i(f"s_mov_b32 {sCI}, {sROT}")
    a.i(f"s_mul_i32 {sWoff}, {sCI}, {64*WROW}")
    a.i(f"s_lshl_b32 {sXoff}, {sCI}, 7")

vTA='v[240:241]'
def touch_setup(a, opts):
    L=vLane
    a.i("s_lshr_b32 s4, s2, 3")
    a.i(f"v_cmp_le_u32 vcc, 18, {L}")
    a.i(f"v_mov_b32 v2, {XROW+18*128}")
    a.i(f"v_lshlrev_b32 v3, 7, {L}")
    a.i(f"v_mov_b32 v2, {WROW-18*128}")
    a.i(f"v_cndmask_b32 v2, 0, v2, vcc")
    a.i(f"v_add_u32 v3, v3, v2")
    a.i(f"s_mul_i32 s5, s4, {2*WROW}"); a.i(f"s_add_u32 s5, s5, {9*128}")
    a.i(f"v_add_u32 v3, s5, v3")
    a.i("s_and_b32 s5, s2, 3"); a.i("s_lshl_b32 s5, s5, 9"); a.i("s_lshl_b32 s6, s4, 4"); a.i("s_add_u32 s5, s5, s6")
    a.i(f"v_subrev_u32 v4, 36, {L}"); a.i(f"v_and_b32 v4, 15, v4"); a.i(f"v_add_u32 v4, s5, v4"); a.i(f"v_mul_u32_u24 v4, {XROW}, v4")
    a.i(f"v_cmp_le_u32 vcc, 36, {L}")
    a.i(f"v_mov_b32 v5, s12"); a.i("v_mov_b32 v6, s8"); a.i("v_mov_b32 v7, s13"); a.i("v_mov_b32 v8, s9")
    a.i(f"v_cndmask_b32 v3, v3, v4, vcc")
    a.i(f"v_cndmask_b32 v5, v5, v6, vcc")
    a.i(f"v_cndmask_b32 v7, v7, v8, vcc")
    a.i(f"v_mov_b32 v9, {64*WROW}"); a.i("v_mov_b32 v6, 128")
    a.i(f"v_cndmask_b32 v242, v9, v6, vcc")
    a.i(f"s_add_u32 s5, {sWV}, 1")
    a.i(f"v_mul_lo_u32 v9, v242, s5")
    a.i(f"v_add_u32 v3, v3, v9")
    a.i(f"v_add_co_u32 v240, vcc, v5, v3"); a.i("s_nop 1"); a.i(f"v_addc_co_u32 v241, vcc, 0, v7, vcc")
    a.i(f"v_lshlrev_b32 v242, 2, v242")
def touch_ins(second):
    L=[]
    if second:
        L+= ["v_add_co_u32 v240, vcc, v240, v242", "s_nop 1", "v_addc_co_u32 v241, vcc, 0, v241, vcc"]
    L+= ["s_mov_b64 exec, 0x000fffffffffffff" if False else "s_mov_b64 exec, s[6:7]", (f"global_load_dword v255, {vTA}, off",'touch'), "s_mov_b64 exec, -1"]
    return L
def touch_q(a):
    L=vLane
    a.i("s_lshr_b32 s4, s2, 3")
    a.i(f"v_mul_u32_u24 v2, 7282, {L}"); a.i("v_lshrrev_b32 v2, 16, v2")
    a.i(f"v_mul_u32_u24 v3, 9, v2"); a.i(f"v_sub_u32 v3, {L}, v3")
    a.i(f"v_min_u32 v2, 5, v2")
    a.i(f"s_min_u32 s5, {sWV}, 2"); a.i("s_mul_i32 s5, s5, 6"); a.i("s_mul_i32 s6, s4, 18"); a.i("s_add_u32 s5, s5, s6")
    a.i(f"v_add_u32 v2, s5, v2"); a.i(f"v_mul_u32_u24 v2, {WROW}, v2"); a.i(f"v_lshl_add_u32 v2, v3, 7, v2")
    a.i(f"buffer_load_dword v255, v2, {sW}, 0 offen", 'touch')
def touch_wo(a):
    L=vLane
    a.i(f"s_lshr_b32 {sT0}, s2, 3")
    a.i(f"s_min_u32 {sT1}, {sWV}, 2"); a.i(f"s_mul_i32 {sT1}, {sT1}, 54"); a.i(f"s_mul_i32 {sT0}, {sT0}, 162"); a.i(f"s_add_u32 {sT1}, {sT1}, {sT0}")
    a.i(f"v_min_u32 {vT}, 53, {L}"); a.i(f"v_add_u32 {vT}, {sT1}, {vT}"); a.i(f"v_lshlrev_b32 {vT}, 7, {vT}")
    a.i(f"buffer_load_dword v255, {vT}, {sWO}, 0 offen", 'touch')

ORDER_MODE=['own']
GOPT={}
def next_chunk_ins():
    if ORDER_MODE[0]=='own':
        return [f"s_add_u32 {sCI}, {sROT}, {sIDX}", f"s_add_u32 {sCI}, {sCI}, 1", f"s_sub_u32 {sT3}, {sCI}, 9", f"s_cmp_ge_u32 {sCI}, 9",
                f"s_cselect_b32 {sCI}, {sT3}, {sCI}", f"s_add_u32 {sIDX}, {sIDX}, 1", f"s_and_b32 {sIDX}, {sIDX}, 7",
                f"s_mul_i32 {sWoff}, {sCI}, {64*WROW}", f"s_lshl_b32 {sXoff}, {sCI}, 7"]
    return [f"s_add_u32 {sCI}, {sCI}, 1", f"s_cmp_eq_u32 {sCI}, 9", f"s_cselect_b32 {sCI}, 0, {sCI}",
            f"s_mul_i32 {sWoff}, {sCI}, {64*WROW}", f"s_lshl_b32 {sXoff}, {sCI}, 7"]

def dma_chunk_groups(slot, n):
    base=slot*SLOT; tag=f'ch{n}'; Gs=[]
    for i in range(4):
        pre=[f"s_lshl_b32 {sM0}, {sWV}, 12", f"s_add_u32 m0, {sM0}, {base+XOFF}", "s_nop 0"] if i==0 else []
        Gs.append(pre+[(f"buffer_load_dwordx4 {vXoff[i]}, {sX}, {sXoff} offen offset:{1024*i} lds", tag)])
    for j in range(4):
        pre=[f"s_mul_i32 {sM0}, {sWV}, 5120", f"s_add_u32 m0, {sM0}, {base}", "s_nop 0"] if j==0 else []
        Gs.append(pre+[(f"buffer_load_dwordx4 {vWoff[j]}, {sW}, {sWoff} offen offset:{1024*j} lds", tag)])
    Gs.append([f"s_add_u32 m0, {sM0}, {base+4096}", "s_nop 0", (f"buffer_load_dwordx4 {vWoff[4]}, {sW}, {sWoff} offen lds", tag)]+next_chunk_ins())
    return Gs

def dma_wq_groups(n):
    reg = SLOT*(1+n//3) + (n%3)*QCH
    Gs=[]
    for e in range(3):
        pre=[f"s_mul_i32 {sM0}, {sWV}, 3072", f"s_add_u32 m0, {sM0}, {reg}", "s_nop 0"] if e==0 else []
        post=next_chunk_ins() if e==2 else []
        Gs.append(pre+[(f"buffer_load_dwordx4 {vQoff[e]}, {sW}, {sWoff} offen offset:{1024*e} lds", f'wq{n}')]+post)
    return Gs

def setupA(a, opts):
    L=vLane
    a.c("---- setup A")
    a.i(f"v_bfe_u32 v4, {L}, 2, 2"); a.i(f"v_lshrrev_b32 v5, 5, {L}")
    a.i(f"v_lshl_add_u32 v4, v5, 3, v4")
    a.i(f"v_bfe_u32 v6, {L}, 4, 1"); a.i(f"v_and_b32 v7, 3, {L}")
    a.i(f"v_mul_u32_u24 v8, {WPITCH}, v4")
    a.i(f"v_lshlrev_b32 v9, 5, v6"); a.i(f"v_lshl_add_u32 v9, v7, 3, v9")
    a.i(f"v_add_u32 {vWr[0]}, v8, v9"); a.i(f"v_add_u32 {vWr[1]}, {2*SLOT}, {vWr[0]}")
    a.i(f"v_mul_u32_u24 v2, {QPITCH}, v4")
    a.i(f"v_add3_u32 {vQr}, v2, v9, 0"); a.i(f"v_add_u32 {vQr}, {SLOT}, {vQr}")
    a.i(f"v_lshl_add_u32 v9, v6, 2, v7")
    a.i(f"v_lshlrev_b32 v2, 3, v9"); a.i(f"v_add_u32 v2, 128, v2"); a.i(f"v_add_u32 v3, 128, v2")
    a.i(f"v_cmp_lt_u32 vcc, 1, v9"); a.i("s_nop 1")
    a.i(f"v_cndmask_b32 v2, v2, v3, vcc")
    a.i(f"v_add_u32 {vMx[0]}, v8, v2"); a.i(f"v_add_u32 {vMx[1]}, {2*SLOT}, {vMx[0]}")
    a.i(f"v_and_b32 v2, 31, {L}"); a.i(f"v_bfe_u32 v3, {L}, 1, 3"); a.i(f"v_xor_b32 v3, v3, v5")
    a.i(f"v_lshlrev_b32 v3, 4, v3"); a.i(f"v_lshl_add_u32 v3, v2, 7, v3")
    a.i(f"s_lshl_b32 s6, {sWV}, 12"); a.i(f"s_add_u32 s6, s6, {XOFF}")
    a.i(f"v_add_u32 v3, s6, v3")
    for t in range(4):
        a.i(f"v_xor_b32 {vXr[0][t]}, {32*t}, v3"); a.i(f"v_add_u32 {vXr[1][t]}, {2*SLOT}, {vXr[0][t]}")

class Rec:
    def __init__(self): self.l=[]
    def i(self, t, tag=None, cond=False): self.l.append((t,tag,cond) if tag or cond else t)
    def c(self, s): pass

def setupB0(a, opts):
    a.i("s_mov_b32 s20, s48"); a.i("s_mov_b32 s21, s49"); a.i(f"s_mov_b32 s22, {OUT_BYTES}"); a.i("s_mov_b32 s23, 0x00020000")
    a.i("s_mov_b32 s24, s52"); a.i("s_mov_b32 s25, s53"); a.i(f"s_mov_b32 s26, {WS_BYTES}"); a.i("s_mov_b32 s27, 0x00020000")
    a.i("s_mov_b32 s28, s50"); a.i("s_mov_b32 s29, s51"); a.i("s_mov_b32 s30, 256"); a.i("s_mov_b32 s31, 0x00020000")
    a.i(f"s_mov_b32 s18, {WO_BYTES}"); a.i("s_mov_b32 s19, 0x00020000")
    a.i(f"s_or_b32 s3, s2, {sWV}"); a.i("s_cmp_lg_u32 s3, 0"); a.i("s_cbranch_scc1 L_nononce")
    a.i("s_memrealtime s[4:5]"); a.i("s_waitcnt lgkmcnt(0)"); a.i("s_or_b32 s4, s4, 1")
    a.i("v_mov_b32 v2, s4"); a.i("v_mov_b32 v3, s5"); a.i("v_mov_b32 v4, 0")
    a.i("s_mov_b64 exec, 1")
    a.i(f"buffer_store_dwordx2 v[2:3], v4, {sDBG}, 0 offen sc1", cond=True)
    a.i("s_mov_b64 exec, -1")
    a.label("L_nononce"); a.lg_clear()

def setupB(a, opts):
    L=vLane
    a.c("---- setup B")
    a.i("s_mov_b32 s54, 0x3ffff"); a.i("s_mov_b32 s55, 0x3ffff"); a.i("s_not_b64 s[52:53], s[54:55]"); a.i("s_mov_b32 s56, -1"); a.i("s_mov_b32 s57, 0")
    a.i(f"s_mov_b32 {sSC}, {f2u(CSCALE):#x}")
    a.i(f"s_getreg_b32 {sXCC}, hwreg(HW_REG_XCC_ID, 0, 4)")
    a.i(f"s_mul_i32 s6, {sWV}, {16*WROW}"); a.i(f"s_mul_i32 s7, {sG}, 144"); a.i("s_add_u32 s6, s6, s7")
    a.i(f"s_movk_i32 s7, {WROW}"); a.i("v_mov_b32 v9, 0x40000000")
    for e in range(3):
        a.i(f"v_add_u32 v4, {64*e}, {L}")
        a.i(f"v_mul_u32_u24 v5, 21846, v4"); a.i(f"v_lshrrev_b32 v5, 18, v5")
        a.i(f"v_mul_u32_u24 v6, 12, v5"); a.i(f"v_sub_u32 v6, v4, v6")
        a.i(f"v_cmp_lt_u32 vcc, 8, v6")
        a.i(f"v_mul_lo_u32 v5, v5, s7"); a.i(f"v_lshl_add_u32 v5, v6, 4, v5")
        a.i(f"v_add_u32 v5, s6, v5"); a.i(f"v_subrev_u32 v5, {1024*e}, v5")
        a.i(f"v_cndmask_b32 {vQoff[e]}, v5, v9, vcc")
    a.i(f"v_and_b32 v2, 31, {L}"); a.i(f"v_lshrrev_b32 v5, 5, {L}")
    a.i(f"s_mul_i32 s6, {sWV}, {KBLK}"); a.i(f"s_add_u32 s7, s6, {KB0}"); a.i(f"s_cmp_eq_u32 {sWV}, 3"); a.i(f"s_cselect_b32 s7, {KB3}, s7")
    a.i(f"v_mul_u32_u24 v3, {KP}, v2"); a.i(f"v_lshl_add_u32 v3, v5, 3, v3")
    a.i(f"v_add_u32 {vKw}, s7, v3"); a.i(f"s_add_u32 s6, s6, {QBASE}"); a.i(f"v_add_u32 {vQw}, s6, v3")
    a.i(f"s_mul_i32 s6, {sWV}, {VB}"); a.i(f"s_add_u32 s6, s6, {VBASE}")
    a.i(f"v_mul_u32_u24 v3, {VR}, v5"); a.i(f"v_lshl_add_u32 v3, v2, 4, v3"); a.i(f"v_add_u32 {vVw}, s6, v3")
    a.i(f"v_bfe_u32 v3, {L}, 2, 1"); a.i(f"v_mul_u32_u24 v3, {VJ}, v3"); a.i(f"v_bfe_u32 v4, {L}, 1, 1"); a.i(f"v_mul_u32_u24 v4, {VR}, v4")
    a.i(f"v_add_u32 v3, v3, v4"); a.i(f"v_and_b32 v4, 1, {L}"); a.i(f"v_lshl_add_u32 v3, v4, 4, v3"); a.i(f"v_add_u32 v3, {72*16}, v3")
    a.i(f"v_add_u32 {vCw}, s6, v3")
    a.i(f"v_lshrrev_b32 v3, 4, v2"); a.i(f"v_mul_u32_u24 v3, {VJ}, v3"); a.i(f"v_bfe_u32 v4, v2, 2, 1")
    a.i(f"v_mul_u32_u24 v4, {VR}, v4"); a.i(f"v_add_u32 v3, v3, v4"); a.i(f"v_and_b32 v4, 3, v2")
    a.i(f"v_bfe_u32 v6, v2, 3, 1"); a.i(f"v_lshl_add_u32 v4, v6, 2, v4"); a.i(f"v_lshl_add_u32 v3, v4, 1, v3")
    a.i(f"v_lshl_add_u32 v3, v5, 6, v3"); a.i(f"v_add_u32 v3, {64*16}, v3"); a.i(f"v_add_u32 {vVt}, s6, v3")
    a.i(f"s_mul_i32 s6, {sWV}, 36"); a.i(f"v_mul_u32_u24 v3, {KP}, v2"); a.i(f"v_add_u32 v3, s6, v3")
    a.i(f"v_lshl_add_u32 {vKr}, v5, 4, v3")
    a.i(f"v_add_u32 {vKl}, 32, v3")
    a.i(f"s_mul_i32 s6, {sWV}, 18"); a.i(f"v_add_u32 v3, s6, v2"); a.i(f"v_and_b32 v4, 27, v2")
    a.i(f"v_cmp_eq_u32 vcc, 18, v4"); a.i(f"v_mov_b32 v4, 73"); a.i(f"v_mov_b32 v6, 72"); a.i(f"v_cndmask_b32 v4, v4, v6, vcc")
    a.i(f"v_cmp_gt_u32 vcc, 18, v2"); a.i("s_nop 1"); a.i(f"v_cndmask_b32 v3, v4, v3, vcc")
    a.i(f"v_lshlrev_b32 v3, 4, v3"); a.i(f"v_mul_u32_u24 v4, {VR}, v5"); a.i(f"v_add_u32 {vVr}, v3, v4")
    a.i(f"v_lshlrev_b32 {vPk}, 4, {L}"); a.i(f"v_lshlrev_b32 {vPl}, 2, v2"); a.i(f"v_add_u32 {vPl}, 1024, {vPl}")
    a.i(f"v_mul_u32_u24 v3, 288, v5"); a.i(f"v_lshl_add_u32 v3, v2, 4, v3"); a.i(f"v_add_u32 {vPv}, 1152, v3")
    a.i(f"s_lshl_b32 s6, {sWV}, 2"); a.i(f"v_lshrrev_b32 v3, 3, v2"); a.i(f"v_mul_u32_u24 v3, {OUTROW}, v3")
    a.i(f"v_and_b32 v4, 7, v2"); a.i(f"v_lshl_add_u32 v3, v4, 4, v3"); a.i(f"v_add_u32 {vOl}, s6, v3")
    a.i(f"v_and_b32 v3, 27, v2"); a.i(f"v_cmp_eq_u32 vcc, 18, v3"); a.i(f"v_mov_b32 v4, 0x3f803f80"); a.i("s_nop 0")
    a.i(f"v_cndmask_b32 {vVC}, 0, v4, vcc")
    a.i(f"s_lshl_b32 s6, {sB}, 3"); a.i(f"s_add_u32 s6, s6, {sG}"); a.i(f"s_lshl_b32 s6, s6, 4"); a.i(f"s_add_u32 s6, s6, {sC}")
    a.i(f"s_mul_i32 {sKVme}, s6, {SLOT}"); a.i(f"s_mul_i32 s7, {sWV}, 2304"); a.i(f"s_add_u32 {sKVme}, {sKVme}, s7")
    a.i(f"s_sub_u32 {sKV1}, {sKVme}, {SLOT}"); a.i(f"s_sub_u32 {sKV2}, {sKVme}, {2*SLOT}")
    a.i(f"s_cmp_ge_u32 {sC}, 1"); a.i(f"s_cselect_b32 {sKV1}, {sKV1}, 0x70000000")
    a.i(f"s_cmp_ge_u32 {sC}, 2"); a.i(f"s_cselect_b32 {sKV2}, {sKV2}, 0x70000000")
    a.i(f"s_lshl_b32 s6, s6, 2"); a.i(f"s_add_u32 s6, s6, {sWV}"); a.i(f"s_lshl_b32 s6, s6, 7")
    a.i(f"s_add_u32 {sFKV}, s6, {WS_FKV}")
    a.i(f"s_cmp_ge_u32 {sC}, 1"); a.i(f"s_cselect_b32 s6, -1, 0"); a.i(f"s_cmp_ge_u32 {sC}, 2"); a.i(f"s_cselect_b32 s7, -1, 0")
    a.i(f"v_and_b32 v2, s6, {vVC}"); a.i(f"v_and_b32 v3, s7, {vVC}"); a.i(f"v_mov_b32 v4, 0x3f803f80")
    a.i(f"v_and_b32 v6, s7, v4"); a.i(f"v_and_b32 v4, s6, v4")
    for hb in range(8):
        base=HALO+14*hb
        a.i(f"v_accvgpr_write_b32 a{base+5}, {'v6' if hb<4 else 'v4'}")
        for r in range(8): a.i(f"v_accvgpr_write_b32 a{base+6+r}, {'v3' if hb<4 else 'v2'}")
    a.i(f"v_and_b32 v2, 31, {L}"); a.i(f"v_lshlrev_b32 v3, 2, v5"); a.i(f"v_sub_u32 v2, v2, v3")
    a.i(f"v_mov_b32 v6, 0xffff"); a.i(f"v_mov_b32 v7, 0xffff0000")
    for u in range(8):
        r0=2*u; k0=(r0&3)+8*(r0>>2)
        a.i(f"v_cmp_le_i32 vcc, {k0}, v2"); a.i(f"v_cmp_le_i32 s[4:5], {k0+1}, v2"); a.i("s_nop 0")
        a.i(f"v_cndmask_b32 v3, 0, v6, vcc"); a.i(f"v_cndmask_b32 v4, 0, v7, s[4:5]")
        a.i(f"v_or_b32 v{MASKD+u}, v3, v4"); a.i(f"v_not_b32 v{MASKF+u}, v{MASKD+u}")
    a.i(f"s_lshl_b32 s6, {sC}, 7"); a.i(f"s_lshl_b32 s7, {sG}, 2"); a.i("s_add_u32 s6, s6, s7")
    a.i(f"s_mul_i32 s6, s6, {OUTROW}"); a.i(f"s_mul_i32 s7, {sB}, 1152"); a.i("s_add_u32 s6, s6, s7")
    a.i(f"s_add_u32 {sOL}, s6, 1024"); a.i(f"s_mul_i32 s7, {sWV}, {OUTROW}"); a.i(f"s_add_u32 {sOM}, s6, s7")
    a.i(f"s_lshr_b32 {sRH}, {sG}, 2"); a.i(f"s_and_b32 {sNQ}, {sG}, 3")
    a.i(f"s_lshl_b32 s7, {sRH}, 1"); a.i(f"s_lshr_b32 s3, {sWV}, 1"); a.i("s_add_u32 s3, s3, s7"); a.i("s_lshl_b32 s3, s3, 5")
    a.i(f"s_lshl_b32 s7, {sC}, 7"); a.i("s_add_u32 s3, s3, s7"); a.i(f"s_mul_i32 {sPOM}, s3, {OUTROW}")
    a.i(f"s_mul_i32 s7, {sB}, 1152"); a.i(f"s_add_u32 {sPOM}, {sPOM}, s7"); a.i(f"s_add_u32 {sPOL}, {sPOM}, 1024")
    a.i(f"s_lshl_b32 s6, {sC}, 7"); a.i(f"s_lshl_b32 s7, {sRH}, 6"); a.i("s_add_u32 s6, s6, s7")
    a.i(f"s_lshl_b32 s7, {sWV}, 4"); a.i("s_add_u32 s6, s6, s7"); a.i(f"s_mul_i32 {sOUTB}, s6, {OUTROW}")
    a.i(f"s_mul_i32 s7, {sB}, 1152"); a.i(f"s_add_u32 {sOUTB}, {sOUTB}, s7")
    a.i(f"s_mul_i32 s7, {sNQ}, 288"); a.i(f"s_add_u32 {sOUTB}, {sOUTB}, s7")
    a.i(f"s_lshl_b32 s6, {sB}, 4"); a.i(f"s_add_u32 s6, s6, {sC}"); a.i(f"s_lshl_b32 {sFO}, s6, 12")
    a.i(f"s_add_u32 {sFO}, {sFO}, {WS_FO}")
    a.i(f"v_mov_b32 v252, {f2u(2.0**-40):#x}"); a.i(f"v_mov_b32 v253, {f2u(2.0**40):#x}")
    a.i(f"s_mov_b64 {sBAD}, 0")

def wq_reads(tau):
    n,t=divmod(tau,4); b=tau%2
    off=(n%3)*QCH+16*QPITCH*t
    return [[(f"ds_read_b64_tr_b16 {QFh(b,f,h)}, {vQr} offset:{off+4*QPITCH*h+64*f}", f'q{tau}_{f}') for h in range(2)] for f in range(3)]

def drain_side(a, side, n):
    k=0; last=''
    while side and (k<n or last.startswith('s_cmp') or (side[0] if isinstance(side[0],str) else side[0][0]).startswith('s_cselect')):
        x=side.pop(0)
        if isinstance(x,tuple): a.i(*x); last=x[0]
        else: a.i(x); last=x
        k+=1

def phase1a(a, opts, pend):
    a.c("---- phase 1a")
    def reads(tau):
        n,t=divmod(tau,4); slot=n%4; hi=slot>=2; base=(slot%2)*SLOT; b=tau%2
        R=[[(f"ds_read_b128 {XF(tau)}, {vXr[hi][t]} offset:{base}", f'x{tau}')] +
           [(f"ds_read_b64_tr_b16 {WFh(b,0,h)}, {vWr[hi]} offset:{base+5120*t+1280*h}", f'w{tau}_0') for h in range(2)]]
        for f,co in ((1,64),(2,144),(3,208)):
            R.append([(f"ds_read_b64_tr_b16 {WFh(b,f,h)}, {vWr[hi]} offset:{base+5120*t+1280*h+co}", f'w{tau}_{f}') for h in range(2)])
        R.append([(f"ds_read_b64_tr_b16 {WFh(b,4,h)}, {vMx[hi]} offset:{base+5120*t+1280*h}", f'w{tau}_4') for h in range(2)])
        return R
    a.stamp('setup_done')
    a.wait(vm='ch0'); a.i("s_barrier")
    a.stamp('ch0_landed')
    for grp in reads(0): a.emit(grp)
    names=['K0','K1','V0','V1','MX']
    side=opts.get('_side',[])
    every=opts.get('dma_every',2)
    slotcnt=0
    for tau in range(36):
        n,t=divmod(tau,4); b=tau%2
        if t==0: a.stamp(f'c{n}')
        if t==3:
            a.wait(vm=f'ch{n+1}' if n<8 else 'wq0')
            a.i("s_barrier")
            if n<=5:
                pend += dma_chunk_groups((n+3)%4, n+3)
                if (n==5 and opts.get('wotouch',2)==1) or (n==0 and opts.get('wotouch',2)==3) or (n==2 and opts.get('wotouch',2)==4):
                    rec=Rec(); touch_wo(rec); pend.append(rec.l)
            elif n==6:
                pend.append([f"s_mov_b32 {sCI}, {sROT}", f"s_mul_i32 {sWoff}, {sCI}, {64*WROW}", f"s_mov_b32 {sIDX}, {sOFF}"])
                for q in range(3): pend += dma_wq_groups(q)
            elif n==7:
                for q in range(3,6): pend += dma_wq_groups(q)
            elif n==8:
                for q in range(6,9): pend += dma_wq_groups(q)
        R = reads(tau+1) if tau<35 else wq_reads(0)
        for m,nm in enumerate(names):
            a.wait(lg=[f'w{tau}_{m}']+([f'x{tau}'] if m==0 else []))
            acc=rng('v',ACC[nm],16); c='0' if tau==0 else acc
            if nm in ('V0','V1'): a.i(f"v_mfma_f32_32x32x16_bf16 {acc}, {XF(tau)}, {WF(b,m)}, {c}")
            else: a.i(f"v_mfma_f32_32x32x16_bf16 {acc}, {WF(b,m)}, {XF(tau)}, {c}")
            if m<len(R): a.emit(R[m])
            slotcnt+=1
            if pend and slotcnt%every==0: a.emit(pend.pop(0))
            elif side: drain_side(a, side, opts.get('side_n',4))
        if tau==30:
            a.i(f"v_mov_b32 {vT}, 0")
            a.i(f"buffer_load_dwordx2 {vNON}, {vT}, {sDBG}, 0 offen sc1", tag='nonce')
    assert not side, len(side)
    return pend

def epi1a_list():
    A=[]; T=76
    for ti,nm in enumerate(('K0','K1')):
        base=ACC[nm]
        for i in range(4):
            t0=T+2*(i%2)
            A+= [f"v_cvt_pk_bf16_f32 v{t0}, v{base+4*i}, v{base+4*i+1}", f"v_cvt_pk_bf16_f32 v{t0+1}, v{base+4*i+2}, v{base+4*i+3}",
                 (f"ds_write2_b32 {vKw}, v{t0}, v{t0+1} offset0:{16*ti+4*i} offset1:{16*ti+4*i+1}",'e1w')]
    for ti,nm in enumerate(('V0','V1')):
        base=ACC[nm]
        for j in range(2):
            t0=T+4+4*j
            for u in range(4): A.append(f"v_cvt_pk_bf16_f32 v{t0+u}, v{base+8*j+2*u}, v{base+8*j+2*u+1}")
            A.append((f"ds_write_b128 {vVw}, v[{t0}:{t0+3}] offset:{VJ*j+512*ti}",'e1w'))
    base=ACC['MX']; t0=T+12
    A+= [f"v_cvt_pk_bf16_f32 v{t0}, v{base}, v{base+1}", f"v_cvt_pk_bf16_f32 v{t0+1}, v{base+2}, v{base+3}",
         (f"ds_write2_b32 {vKw}, v{t0}, v{t0+1} offset0:32 offset1:33",'e1w'),
         f"v_cvt_pk_bf16_f32 v{t0+2}, v{base+4}, v{base+5}", f"v_cvt_pk_bf16_f32 v{t0+3}, v{base+6}, v{base+7}",
         (f"ds_write_b16 {vVt}, v{t0+2}",'e1w'), (f"ds_write_b16_d16_hi {vVt}, v{t0+2} offset:16",'e1w'),
         (f"ds_write_b16 {vVt}, v{t0+3} offset:32",'e1w'), (f"ds_write_b16_d16_hi {vVt}, v{t0+3} offset:48",'e1w')]
    A+= [f"v_and_b32 v{t0}, 1, {vLane}", f"v_cmp_eq_u32 vcc, 0, v{t0}", f"v_mov_b32 v{t0+1}, 0x3f803f80", "s_nop 0",
         f"v_cndmask_b32 v{t0}, 0, v{t0+1}, vcc", f"v_mov_b32 v{t0+1}, v{t0}", f"v_mov_b32 v{t0+2}, v{t0}", f"v_mov_b32 v{t0+3}, v{t0}",
         "s_mov_b64 exec, 0xff", (f"ds_write_b128 {vCw}, v[{t0}:{t0+3}]",'e1w'), "s_mov_b64 exec, -1"]
    return A

def own_presets():
    L=[f"v_mov_b32 v91, 0x3f803f80"]
    for bt in range(4): L.append(f"v_mov_b32 v{OWN+14*bt+5}, v91")
    return L
def own_reads():
    L=[]
    for bt in range(4):
        base=OWN+14*bt
        kb = KB0+KBLK*bt if bt<3 else KB3
        L.append(f"v_add_u32 v88, {kb}, {vKr}"); L.append(f"v_add_u32 v89, {kb}, {vKl}")
        L.append((f"ds_read2_b32 v[{base}:{base+1}], v88 offset0:0 offset1:1",'own'))
        L.append((f"ds_read2_b32 v[{base+2}:{base+3}], v88 offset0:2 offset1:3",'own'))
        L.append((f"ds_read_b32 v{base+4}, v89",'own'))
    for bt in range(4):
        base=OWN+14*bt
        for j in range(2): L.append((f"ds_read_b128 v[{base+6+4*j}:{base+9+4*j}], {vVr} offset:{VB*bt+VJ*j}",'own'))
    return L
def own_store_groups(mod='sc1'):
    Gs=[]
    for bt in range(4):
        base=OWN+14*bt; tag='pubA' if bt<2 else 'pubB'
        Gs.append([f"s_add_u32 {sT0}, {sKVme}, {9216*bt}", (f"buffer_store_dwordx4 v[{base}:{base+3}], {vPk}, {sWS}, {sT0} offen {mod}",tag)])
        Gs.append([f"s_add_u32 {sT0}, {sKVme}, {9216*bt}", f"s_mov_b64 exec, {sLO}", (f"buffer_store_dword v{base+4}, {vPl}, {sWS}, {sT0} offen {mod}",tag), "s_mov_b64 exec, -1"])
        for j in range(2):
            Gs.append([f"s_add_u32 {sT0}, {sKVme}, {9216*bt}", f"s_mov_b64 exec, {sVM}", (f"buffer_store_dwordx4 v[{base+6+4*j}:{base+9+4*j}], {vPv}, {sWS}, {sT0} offen offset:{576*j} {mod}",tag), "s_mov_b64 exec, -1"])
    return Gs

def flag_store_ins(cnt):
    return [f"s_add_u32 {sT1}, {sNONh}, {cnt}", f"v_mov_b32 v2, {sNONl}", f"v_mov_b32 v3, {sT1}", f"v_mov_b32 v4, 0",
            "s_mov_b64 exec, 1", (f"buffer_store_dwordx2 v[2:3], v4, {sWS}, {sFKV} offen sc1", f'kvflag{cnt}'), "s_mov_b64 exec, -1"]

def xt_base():
    return [f"s_lshl_b32 {sT0}, {sB}, 4", f"s_add_u32 {sT0}, {sT0}, {sC}", f"s_lshl_b32 {sT0}, {sT0}, 10", f"s_add_u32 {sT0}, {sT0}, {WS_XT}"]
def xt_store():
    return xt_base()+[f"s_add_u32 {sLFH}, {sXCC}, 1", f"s_lshl_b32 {sLFH}, {sLFH}, 8", f"s_add_u32 {sLFH}, {sLFH}, {sNONh}",
            f"s_lshl_b32 {sT1}, {sG}, 7", f"s_add_u32 {sT0}, {sT0}, {sT1}",
            f"v_mov_b32 v2, {sNONl}", f"v_mov_b32 v3, {sLFH}", f"v_mov_b32 v4, 0",
            "s_mov_b64 exec, 1", (f"buffer_store_dwordx2 v[2:3], v4, {sWS}, {sT0} offen sc1",'xt'), "s_mov_b64 exec, -1"]
def xt_load():
    return xt_base()+[f"v_lshlrev_b32 v2, 7, {vLane}", "s_mov_b64 exec, 0xff",
            (f"buffer_load_dwordx2 v[8:9], v2, {sWS}, {sT0} offen sc1",'xtl'), "s_mov_b64 exec, -1"]
def xt_check(a):
    a.wait(vm='xtl')
    a.i("s_mov_b64 exec, 0xff")
    a.i(f"v_cmp_eq_u32 vcc, {sNONl}, v8"); a.i(f"v_cmp_eq_u32 s[4:5], {sLFH}, v9")
    a.i("s_mov_b64 exec, -1")
    a.i("s_and_b64 s[4:5], s[4:5], vcc"); a.i("s_and_b32 s4, s4, 0xff"); a.i("s_cmp_eq_u32 s4, 0xff")
    a.i(f"s_cselect_b32 {sLOC}, 1, 0")
    if GOPT.get('force_remote'): a.i(f"s_mov_b32 {sLOC}, 0")

def wo_group_for(kbase):
    setup=[f"s_add_u32 {sT1}, {sWV}, {kbase}", f"s_mul_i32 {sT2}, {sT1}, 41472", f"s_mul_i32 {sT3}, {sT1}, 9216"]
    return wo8_groups(setup)

def phase1b(a, pend, opts):
    a.c("---- phase 1b")
    a.stamp('1a_end')
    q=[]; stores=[]; wo=[]
    E2=opts.get('e2',4)
    FAST=opts.get('fastA',1)
    sched={}
    tt=E2+1
    for g in range(16):
        sched.setdefault(tt,[]).append(g)
        tt += 1 if (g<7 and FAST) else 2
    FLAGA=opts.get('flagA',24)
    woaddr=[f"v_mov_b32 {d_}, {s_}" for d_,s_ in zip(vWOm+vWOl+vWOt,vWOtmp)]+wo8_setup()
    for tau in range(36):
        n,t=divmod(tau,4); b=tau%2
        a.stamp(f'b{tau}_')
        if tau==1:
            a.i("s_barrier"); q+=epi1a_list()
        if tau==E2:
            a.drain(q,1000); a.wait(lg=0); a.i("s_barrier")
            a.emit(own_reads())
        if tau==E2+1:
            a.wait(lg='own')
            a.stamp('pub_start')
            stores=own_store_groups()
            q+=woaddr
        if tau==E2+3:
            a.i("s_barrier")
        if tau==E2+6: wo+=wo_group_for(0); q+=own_presets()
        if tau==15: wo+=wo_group_for(4)
        if tau==27: wo+=wo_group_for(8)
        if tau==FLAGA:
            a.wait(vm='pubA'); get_nonce(a); a.emit(flag_store_ins(2)); a.stamp('flagA')
            if opts.get('olocal'): a.emit(xt_store())
        if t==3 and tau<35:
            a.wait(vm=f'wq{n+1}')
            a.i("s_barrier")
            if (n+1)%3==0: a.i(f"v_add_u32 {vQr}, {SLOT}, {vQr}")
        R = wq_reads(tau+1) if tau<35 else []
        for m,nm in enumerate(('Q0','Q1','Q2')):
            a.wait(lg=[f'q{tau}_{m}'])
            acc=rng('v',ACC[nm],16); c='0' if tau==0 else acc
            a.i(f"v_mfma_f32_32x32x16_bf16 {acc}, {QF(b,m)}, {XF(tau)}, {c}")
            if m<len(R): a.emit(R[m])
            if m==0 and tau in sched:
                for g in sched[tau]:
                    if opts.get('nopub'):
                        for x in stores[g]:
                            if isinstance(x,tuple): a.vm.append(x[1])
                    else: a.emit(stores[g])
            elif q and tau<E2: a.drain(q,opts.get('epi_rate',7))
            elif pend: a.emit(pend.pop(0))
            elif q: drain_side2(a,q,4)
            elif opts.get('nowo1b',1): pass
            elif wo and m==2: a.emit(wo.pop(0))
            elif wo and m==1 and opts.get('wo2',1): a.emit(wo.pop(0))
    assert not pend and not q, (len(pend),len(q))
    for tt_ in sorted(sched):
        if tt_>35:
            for g in sched[tt_]: a.emit(stores[g])
    opts['_wo_left']=wo
    a.stamp('1b_end')
    a.emit(kv_flag_load(0))
    a.nop(14)
    T=76
    for ti,nm in enumerate(('Q0','Q1','Q2')):
        base=ACC[nm]; ni=4 if ti<2 else 1
        for r in range(4*ni): a.i(f"v_mul_f32 v{base+r}, {sSC}, v{base+r}")
    for ti,nm in enumerate(('Q0','Q1','Q2')):
        base=ACC[nm]; ni=4 if ti<2 else 1
        for i in range(ni):
            t0=T+2*((ti*4+i)%8)
            a.i(f"v_cvt_pk_bf16_f32 v{t0}, v{base+4*i}, v{base+4*i+1}"); a.i(f"v_cvt_pk_bf16_f32 v{t0+1}, v{base+4*i+2}, v{base+4*i+3}")
            if ti==0 and i==0: a.i("s_barrier")
            a.i(f"ds_write2_b32 {vQw}, v{t0}, v{t0+1} offset0:{16*ti+4*i} offset1:{16*ti+4*i+1}",'e2w')
    a.i(f"v_mov_b32 {vT}, 0")
    for i in range(4):
        for r in range(4,8): a.i(f"v_accvgpr_write_b32 a{8*i+r}, {vT}")
    a.wait(lg=0); a.i("s_barrier")
    for i in range(4):
        a.i(f"v_add_u32 v88, {QBASE+KBLK*i}, {vKr}")
        a.i(f"ds_read2_b32 a[{8*i}:{8*i+1}], v88 offset0:0 offset1:1",'qf')
        a.i(f"ds_read2_b32 a[{8*i+2}:{8*i+3}], v88 offset0:2 offset1:3",'qf')
    a.i(f"s_mov_b64 exec, {sLO}")
    for i in range(4):
        a.i(f"v_add_u32 v89, {QBASE+KBLK*i}, {vKl}")
        a.i(f"ds_read_b32 a{8*i+4}, v89",'qf')
    a.i("s_mov_b64 exec, -1")
    a.wait(lg='qf')
    a.i("s_barrier")
    a.stamp('q_ready')

def drain_side2(a, q, n):
    k=0; inexec=False; last=''
    while q and (k<n or inexec or last.startswith('s_cmp') or (q[0] if isinstance(q[0],str) else q[0][0]).startswith('s_cselect')):
        x=q.pop(0)
        txt=x[0] if isinstance(x,tuple) else x
        if txt.startswith('s_mov_b64 exec'): inexec = not txt.endswith('-1')
        if isinstance(x,tuple): a.i(*x)
        else: a.i(x)
        last=txt; k+=1

vFL='v[6:7]'; vFA='v5'
def kv_flag_load(rnd):
    L=[]
    if rnd==0:
        L+= [f"s_cmp_ge_u32 {sC}, 2", f"s_cselect_b32 {sT1}, 2, 1", f"s_lshl_b32 {sT1}, {sT1}, 9",
             f"s_sub_u32 {sT0}, {sFKV}, 512", f"s_sub_u32 {sT1}, {sFKV}, {sT1}",
             f"s_cmp_eq_u32 {sC}, 0", f"s_cselect_b32 {sT0}, {sFKV}, {sT0}", f"s_cselect_b32 {sT1}, {sFKV}, {sT1}",
             f"v_mov_b32 v8, {sT0}", f"v_mov_b32 v9, {sT1}", f"v_cmp_eq_u32 vcc, 0, {vLane}", "s_nop 1",
             f"v_cndmask_b32 {vFA}, v9, v8, vcc"]
    L+= ["s_mov_b64 exec, 3", (f"buffer_load_dwordx2 {vFL}, {vFA}, {sWS}, 0 offen sc1", f'fl{rnd}'), "s_mov_b64 exec, -1"]
    return L

def kv_flag_check(a, rnd, need):
    a.wait(vm=f'fl{rnd}')
    a.i(f"s_mov_b32 {sCNT}, 200000")
    a.label(f"L_chk{rnd}")
    a.i(f"s_cmp_eq_u32 {sC}, 0"); a.i(f"s_cbranch_scc1 L_ok{rnd}")
    a.i("s_mov_b64 exec, 3")
    a.i(f"v_subrev_u32 v8, {sNONh}, v7")
    a.i(f"v_cmp_eq_u32 vcc, {sNONl}, v6")
    a.i(f"v_cmp_le_u32 s[4:5], {need}, v8")
    a.i(f"v_cmp_ge_u32 s[6:7], 4, v8")
    a.i("s_mov_b64 exec, -1")
    a.i("s_and_b64 s[4:5], s[4:5], vcc"); a.i("s_and_b64 s[4:5], s[4:5], s[6:7]"); a.i("s_and_b32 s4, s4, 3")
    a.i("s_cmp_eq_u32 s4, 3"); a.i(f"s_cbranch_scc1 L_ok{rnd}")
    a.i("s_mov_b64 exec, 3")
    a.i(f"buffer_load_dwordx2 {vFL}, {vFA}, {sWS}, 0 offen sc1", cond=True)
    a.i("s_mov_b64 exec, -1")
    a.i("s_waitcnt vmcnt(0)")
    a.i(f"s_sub_u32 {sCNT}, {sCNT}, 1"); a.i(f"s_cmp_lg_u32 {sCNT}, 0"); a.i(f"s_cbranch_scc1 L_chk{rnd}")
    a.label(f"L_ok{rnd}")
    a.stamp(f'chk{rnd}')

def wo_addr(a):
    L=vLane
    a.i(f"s_mul_i32 s6, {sNQ}, 288")
    a.i(f"v_lshrrev_b32 v4, 4, {L}")
    a.i(f"v_and_b32 v5, 15, {L}")
    for par in range(2):
        a.i(f"v_add_u32 v6, {4*par}, v4"); a.i(f"v_lshlrev_b32 v6, 1, v6"); a.i(f"v_xor_b32 v6, v5, v6")
        a.i(f"v_lshlrev_b32 v6, 4, v6"); a.i(f"v_add_u32 v6, s6, v6")
        a.i(f"v_mul_u32_u24 v7, {XROW}, v4"); a.i(f"v_add_u32 {vWOm[par]}, v6, v7")
        a.i(f"v_lshrrev_b32 v7, 1, v4"); a.i(f"v_mul_u32_u24 v7, 18, v7"); a.i(f"v_and_b32 v8, 1, v4"); a.i(f"v_add_u32 v7, v7, v8")
        a.i(f"v_mul_u32_u24 v7, {XROW}, v7"); a.i(f"v_add_u32 {vWOl[par]}, v6, v7")
    a.i(f"v_lshrrev_b32 v4, 1, {L}")
    a.i(f"v_and_b32 v5, 1, {L}"); a.i(f"v_lshlrev_b32 v5, 4, v5"); a.i(f"v_add_u32 v5, 256, v5"); a.i(f"v_add_u32 v5, s6, v5")
    a.i(f"v_bfe_u32 v6, v4, 2, 2")
    a.i(f"v_and_b32 v7, 3, v4"); a.i(f"v_lshrrev_b32 v8, 4, v4")
    a.i(f"v_lshrrev_b32 v2, 1, v6"); a.i(f"v_mul_u32_u24 v2, 18, v2"); a.i(f"v_add_u32 v2, v2, v7"); a.i(f"v_lshl_add_u32 v2, v8, 3, v2")
    a.i(f"v_and_b32 v3, 1, v6"); a.i(f"v_lshl_add_u32 v2, v3, 2, v2"); a.i(f"v_mul_u32_u24 v2, {XROW}, v2"); a.i(f"v_add_u32 {vWOt[0]}, v2, v5")
    a.i(f"v_lshl_add_u32 v7, v8, 2, v7")
    a.i(f"v_lshrrev_b32 v2, 1, v7"); a.i(f"v_lshl_add_u32 v2, v6, 2, v2"); a.i(f"v_mul_u32_u24 v2, 18, v2")
    a.i(f"v_and_b32 v3, 1, v7"); a.i(f"v_add3_u32 v2, v2, v3, 16"); a.i(f"v_mul_u32_u24 v2, {XROW}, v2"); a.i(f"v_add_u32 {vWOt[1]}, v2, v5")

vWO8=[f'v{22+e}' for e in range(8)]
def wo8_setup():
    L=[]
    for e in range(8):
        const=(((e&3)>>1)*18+8*(e>>2)+4*(e&1))*XROW-1024*(e%4)
        if const>=0: L.append(f"v_add_u32 {vWO8[e]}, {const}, {vWOm[e&1]}")
        else: L.append(f"v_subrev_u32 {vWO8[e]}, {-const}, {vWOm[e&1]}")
    return L
def wo8_groups(uniform_setup):
    Gs=[]
    for e in range(8):
        pre = list(uniform_setup) if e==0 else []
        if e%4==0: pre += [f"s_add_u32 m0, {sT3}, {4096*(e//4)}", "s_nop 0"]
        Gs.append(pre+[(f"buffer_load_dwordx4 {vWO8[e]}, {sWO}, {sT2} offen offset:{1024*(e%4)} lds",'wo')])
    Gs.append([f"s_add_u32 m0, {sT3}, 8192", "s_nop 0", (f"buffer_load_dwordx4 {vWOt[0]}, {sWO}, {sT2} offen lds",'wo')])
    return Gs

def wo_dma_groups(kap, slot, uniform_setup):
    Gs=[]
    left = kap>=16
    for e in range(8):
        if left: const=((4*(e&3)+2*(e>>2))*18+16)*XROW
        else: const=(((e&3)>>1)*18+8*(e>>2)+4*(e&1))*XROW
        pre = list(uniform_setup) if e==0 else []
        if e%4==0: pre += [f"s_add_u32 m0, {sT3}, {4096*(e//4)}"]
        voff=(vWOl if left else vWOm)[e&1]
        Gs.append(pre+[f"s_add_u32 {sWOs}, {sT2}, {const-1024*(e%4)}" if const-1024*(e%4)>=0 else f"s_sub_u32 {sWOs}, {sT2}, {1024*(e%4)-const}",
                       (f"buffer_load_dwordx4 {voff}, {sWO}, {sWOs} offen offset:{1024*(e%4)} lds",'wo')])
    Gs.append([f"s_add_u32 m0, {sT3}, 8192", "s_nop 0", (f"buffer_load_dwordx4 {vWOt[1 if left else 0]}, {sWO}, {sT2} offen lds",'wo')])
    return Gs

def wo_prefetch_groups():
    Gs=[]
    for it in range(4):
        setup=[f"s_add_u32 {sT1}, {sWV}, {4*it}", f"s_mul_i32 {sT2}, {sT1}, 41472", f"s_mul_i32 {sT3}, {sT1}, 9216"]
        Gs+=wo_dma_groups(0,None,setup)
    return Gs

def wo_left_groups(L_, ldsbase, regs=None):
    vl0,vl1,vt = regs or (vWOl[0],vWOl[1],vWOt[1])
    g0=L_*16*18*XROW
    setup=[f"s_lshl_b32 {sT1}, {sWV}, 1", f"s_and_b32 {sT1}, {sT1}, 3", f"s_lshl_b32 {sT1}, {sT1}, 2",
           f"s_lshr_b32 {sT2}, {sWV}, 1", f"s_lshl_b32 {sT2}, {sT2}, 1", f"s_add_u32 {sT1}, {sT1}, {sT2}",
           f"s_mul_i32 {sT1}, {sT1}, {18*XROW}", f"s_add_u32 {sT2}, {sT1}, {g0+16*XROW}",
           f"s_lshl_b32 {sT1}, {sWV}, 11", f"s_add_u32 m0, {sT1}, {ldsbase}", "s_nop 0"]
    G0=setup+[(f"buffer_load_dwordx4 {vl0}, {sWO}, {sT2} offen lds",'wo')]
    G1=[f"s_add_u32 {sT2}, {sT2}, {4*18*XROW-1024}", (f"buffer_load_dwordx4 {vl1}, {sWO}, {sT2} offen offset:1024 lds",'wo')]
    G2=[f"s_mov_b32 {sT2}, {g0}", f"s_mov_b32 m0, {ldsbase+8192}", "s_nop 0", (f"buffer_load_dwordx4 {vt}, {sWO}, {sT2} offen lds",'wo')]
    return [G0,G1,G2]

def halo_load_groups(hb):
    base=HALO+14*hb; src=sKV2 if hb<4 else sKV1; bt=hb%4; tg=f'h{hb}'
    return [[f"s_add_u32 {sT0}, {src}, {9216*bt}",
             (f"buffer_load_dwordx4 a[{base}:{base+3}], {vPk}, {sWS}, {sT0} offen sc1", tg),
             (f"buffer_load_dword a{base+4}, {vPl}, {sWS}, {sT0} offen sc1", tg),
             f"s_mov_b64 exec, {sVM}",
             (f"buffer_load_dwordx4 a[{base+6}:{base+9}], {vPv}, {sWS}, {sT0} offen sc1", tg),
             (f"buffer_load_dwordx4 a[{base+10}:{base+13}], {vPv}, {sWS}, {sT0} offen offset:576 sc1", tg),
             "s_mov_b64 exec, -1"]]

def get_nonce(a):
    a.i(f"v_readfirstlane_b32 {sNONl}, v48"); a.i(f"v_readfirstlane_b32 {sNONh}, v49"); a.i("s_nop 1")
    a.i(f"s_or_b32 {sT0}, {sNONl}, {sNONh}"); a.i(f"s_cmp_lg_u32 {sT0}, 0"); a.i("s_cbranch_scc1 L_have_nonce")
    a.i(f"s_mov_b32 {sCNT}, 100000")
    a.label("L_nonce_poll")
    a.i(f"v_mov_b32 {vT}, 0")
    a.i(f"buffer_load_dwordx2 {vNON}, {vT}, {sDBG}, 0 offen sc1", cond=True)
    a.i("s_waitcnt vmcnt(0)")
    a.i(f"v_readfirstlane_b32 {sNONl}, v48"); a.i(f"v_readfirstlane_b32 {sNONh}, v49"); a.i("s_nop 1")
    a.i(f"s_or_b32 {sT0}, {sNONl}, {sNONh}"); a.i(f"s_cmp_lg_u32 {sT0}, 0"); a.i("s_cbranch_scc1 L_have_nonce")
    a.i("s_sleep 2"); a.i(f"s_sub_u32 {sCNT}, {sCNT}, 1"); a.i(f"s_cmp_lg_u32 {sCNT}, 0"); a.i("s_cbranch_scc1 L_nonce_poll")
    a.label("L_have_nonce")

def kv_regs(jb): return ('v', OWN+14*jb) if jb>=0 else ('a', HALO+14*(jb+8))
HORDER=[-4,-3,-8,-7,-2,-1,-6,-5]
def tile_list():
    T=[(i,bt) for i in range(4) for bt in range(i+1)]
    for jb in HORDER[:4]:
        for i in range(4):
            if i-jb<=8: T.append((i,jb))
    if GOPT.get('r2_by_q',0):
        for i in (3,2,1,0):
            for jb in HORDER[4:]:
                if i-jb<=8: T.append((i,jb))
    else:
        for jb in HORDER[4:]:
            for i in range(4):
                if i-jb<=8: T.append((i,jb))
    return T

def norm_block(i):
    O=OACC+16*i; t=84; L=[]
    L.append(f"v_rcp_f32 v{t}, v{O+10}")
    L.append(f"v_cmp_nle_f32 vcc, v252, v{O+10}")
    L.append(f"v_cmp_nge_f32 s[4:5], v253, v{O+10}")
    for r in range(10): L.append(f"v_mul_f32 v{O+r}, v{t}, v{O+r}")
    L.append(f"s_or_b64 {sBAD}, {sBAD}, vcc"); L.append(f"s_or_b64 {sBAD}, {sBAD}, s[4:5]")
    L.append(f"v_pk_add_f32 v[{t+2}:{t+3}], v[{O}:{O+1}], v[{O+2}:{O+3}]")
    L.append(f"v_pk_add_f32 v[{t+4}:{t+5}], v[{O+4}:{O+5}], v[{O+6}:{O+7}]")
    L.append(f"v_pk_add_f32 v[{t+2}:{t+3}], v[{t+2}:{t+3}], v[{O+8}:{O+9}]")
    L.append(f"v_pk_add_f32 v[{t+2}:{t+3}], v[{t+2}:{t+3}], v[{t+4}:{t+5}]")
    L.append(f"v_add_f32 v{t+2}, v{t+2}, v{t+3}")
    for u in range(5): L.append(f"v_cvt_pk_bf16_f32 v{O+u}, v{O+2*u}, v{O+2*u+1}")
    L.append(f"v_cmp_class_f32 vcc, v{t+2}, v254")
    L.append(f"s_add_u32 {sT0}, {sOM}, {i*32*OUTROW}"); L.append(f"s_add_u32 {sT1}, {sOL}, {i*32*OUTROW}")
    L.append(f"s_or_b64 {sBAD}, {sBAD}, vcc")
    L.append(('OSTORE',i))
    return L

def emit_ostore(a, i):
    O=OACC+16*i
    if not GOPT.get('olocal'):
        a.i(f"buffer_store_dwordx4 v[{O}:{O+3}], {vPk}, {sOUT}, {sT0} offen sc1", 'ost')
        a.i(f"s_mov_b64 exec, {sLO}")
        a.i(f"buffer_store_dword v{O+4}, {vOl}, {sOUT}, {sT1} offen sc1", 'ost')
        a.i(f"s_mov_b64 exec, -1")
        return
    a.i(f"s_cmp_eq_u32 {sLOC}, 1"); a.i(f"s_cbranch_scc1 L_osl{i}")
    a.i(f"buffer_store_dwordx4 v[{O}:{O+3}], {vPk}, {sOUT}, {sT0} offen sc1", 'x', True)
    a.i(f"s_mov_b64 exec, {sLO}")
    a.i(f"buffer_store_dword v{O+4}, {vOl}, {sOUT}, {sT1} offen sc1", 'x', True)
    a.i(f"s_mov_b64 exec, -1")
    a.i(f"s_branch L_ose{i}")
    a.label(f"L_osl{i}")
    a.i(f"buffer_store_dwordx4 v[{O}:{O+3}], {vPk}, {sOUT}, {sT0} offen", 'ost')
    a.i(f"s_mov_b64 exec, {sLO}")
    a.i(f"buffer_store_dword v{O+4}, {vOl}, {sOUT}, {sT1} offen", 'ost')
    a.i(f"s_mov_b64 exec, -1")
    a.label(f"L_ose{i}")

def o_pretouch():
    L=vLane
    return [f"v_lshrrev_b32 v2, 3, {L}", f"v_mul_u32_u24 v2, {32*OUTROW}, v2", f"v_and_b32 v3, 7, {L}", f"v_lshl_add_u32 v2, v3, 7, v2",
            f"v_add_u32 v2, {sOM}, v2",
            f"v_bfe_u32 v3, {L}, 2, 2", f"v_mul_u32_u24 v3, {32*OUTROW}, v3", f"v_and_b32 v4, 3, {L}", f"v_mul_u32_u24 v4, {OUTROW}, v4",
            f"v_add3_u32 v3, v3, v4, {sOL}",
            f"v_cmp_le_u32 vcc, 32, {L}", f"s_lshl_b32 {sT0}, {sG}, 2", f"s_add_u32 {sT0}, {sT0}, {sWV}", f"v_cndmask_b32 v2, v2, v3, vcc",
            "s_mov_b32 s4, -1", "s_mov_b32 s5, 0xffff", "s_mov_b64 exec, s[4:5]",
            (f"buffer_load_dword v255, v2, {sOUT}, 0 offen",'touch'), "s_mov_b64 exec, -1",
            f"s_lshl_b32 {sT0}, {sT0}, 7", f"s_add_u32 {sT0}, {sT0}, {sFO}",
            f"v_mul_u32_u24 v2, {WS_FWL-WS_FOL}, {L}", f"v_add_u32 v2, {WS_FOL-WS_FO}, v2",
            "s_mov_b64 exec, 3", (f"buffer_load_dword v255, v2, {sWS}, {sT0} offen",'touch'), "s_mov_b64 exec, -1"]

def attention(a, opts):
    a.c("---- attention")
    T=tile_list(); n=len(T)
    first={}; last={}; firstuse={}
    for k,(i,jb) in enumerate(T):
        first.setdefault(i,k); last[i]=k; firstuse.setdefault(jb,k)
    Sreg=lambda k: (S0 if k%2==0 else S1)
    Preg=lambda k: (P0 if k%2==0 else P1)
    def qk(k):
        i,jb=T[k]; p,base=kv_regs(jb); S=rng('v',Sreg(k),16)
        return [f"v_mfma_f32_32x32x16_bf16 {S}, {rng(p,base,4)}, a[{8*i}:{8*i+3}], 0",
                f"v_mfma_f32_32x32x16_bf16 {S}, {rng(p,base+4,4)}, a[{8*i+4}:{8*i+7}], {S}"]
    def pv(k):
        i,jb=T[k]; p,base=kv_regs(jb); O=rng('v',OACC+16*i,16); P=Preg(k)
        c0='0' if k==first[i] else O
        return [f"v_mfma_f32_32x32x16_bf16 {O}, {rng(p,base+6,4)}, v[{P}:{P+3}], {c0}",
                f"v_mfma_f32_32x32x16_bf16 {O}, {rng(p,base+10,4)}, v[{P+4}:{P+7}], {O}"]
    waited=set()
    wo=list(opts.get('_wo_left',[]))+wo_group_for(12)+wo_left_groups(0,16*9216)
    WO_START=opts.get('wo_start',0)
    CHK0=opts.get('chk0',0); FLAGB=opts.get('flagB',3); FL1=opts.get('fl1',9); CHK1=opts.get('chk1',14)
    WO_PAUSE=opts.get('wo_pause',1)
    a.i(f"s_mov_b32 {sTRY}, 0")
    a.label("L_att")
    a.i(f"v_mov_b32 v254, 0x207")
    q0=qk(0); a.i(q0[0]); a.i(q0[1])
    extra=[]; hq=[]
    for k in range(n+1):
        a.stamp(f't{k}_')
        if k==CHK0:
            kv_flag_check(a,0,2)
            for jb in HORDER[:4]:
                hq += halo_load_groups(jb+8)
        if k==FLAGB:
            a.wait(vm='pubB'); a.emit(flag_store_ins(4))
        if k==FL1: a.emit(kv_flag_load(1))
        if opts.get('olocal') and k==opts.get('pre_at',19): a.emit(o_pretouch())
        if opts.get('olocal') and k==opts.get('xtl',24): a.emit(xt_load())
        if opts.get('olocal') and k==opts.get('xtc',30): xt_check(a)
        if k==CHK1:
            kv_flag_check(a,1,4)
            for jb in HORDER[4:]:
                hq += halo_load_groups(jb+8)
        mf=[]
        if k+1<n:
            i,jb=T[k+1]
            if jb<0 and jb not in waited:
                if not waited: a.stamp('own_done')
                assert any(t==f'h{jb+8}' for t in a.vm), jb
                waited.add(jb); a.wait(vm=f'h{jb+8}')
                if len(waited)==1: a.stamp('h0_landed')
            mf+=qk(k+1)
        else: mf+=[None,None]
        mf += pv(k-1) if k>=1 else [None,None]
        if k==0: a.nop(12)
        S=Sreg(k); P=Preg(k)
        i,jb=T[k] if k<n else (None,None)
        for seg in range(4):
            pk,ps = (k,seg-1) if seg>0 else (k-1,3)
            if pk>=0 and pk<n:
                Sp=Sreg(pk); Pp=Preg(pk); ip,jp=T[pk]
                for u in (2*ps,2*ps+1): a.i(f"v_cvt_pk_bf16_f32 v{Pp+u}, v{Sp+2*u}, v{Sp+2*u+1}")
                if jp==ip or jp==ip-8:
                    M=MASKD if jp==ip else MASKF
                    for u in (2*ps,2*ps+1): a.i(f"v_and_b32 v{Pp+u}, v{M+u}, v{Pp+u}")
            if k==n and seg==2: a.nop(2)
            if mf[seg]: a.i(mf[seg])
            if k<n:
                for e in range(4): a.i(f"v_exp_f32 v{S+4*seg+e}, v{S+4*seg+e}")
            a.drain(extra, 6 if k<n else 1000)
            if hq and seg in (0,2): a.emit(hq.pop(0))
            paused = WO_PAUSE and ((CHK0<=k<10) or (CHK1<=k<CHK1+9))
            if k>=WO_START and wo and not paused and seg in (0,1,3): a.emit(wo.pop(0))
        if k>=1:
            ib=T[k-1][0]
            if last[ib]==k-1:
                if k==n:
                    a.nop(14); a.emit(norm_block(ib))
                else: extra+=["s_nop 1"]+norm_block(ib)
    assert not extra
    for g in wo: a.emit(g)
    a.i(f"s_or_b32 s4, s74, s75"); a.i(f"s_cmp_eq_u32 s4, 0"); a.i("s_cbranch_scc1 L_att_done")
    a.i(f"s_cmp_eq_u32 {sTRY}, 0"); a.i("s_cbranch_scc1 L_slow")
    a.label("L_att_done")
    a.stamp('att_end')

def slow_path(a):
    a.label("L_slow")
    a.i("s_waitcnt vmcnt(0) lgkmcnt(0)")
    T=tile_list(); L=vLane
    a.i(f"v_and_b32 v84, 31, {L}"); a.i(f"v_lshrrev_b32 v85, 5, {L}"); a.i("v_lshlrev_b32 v85, 2, v85"); a.i("v_sub_u32 v84, v84, v85")
    a.i("v_mov_b32 v86, 0xff800000")
    for i in range(4):
        m=f"v{P0+i}"
        a.i(f"v_mov_b32 {m}, v86")
        for n_,(ii,jb) in enumerate([t for t in T if t[0]==i]):
            lab=f"L_sk{i}_{n_}"
            if jb<0:
                a.i(f"s_cmp_lt_u32 {sC}, {2 if jb<-4 else 1}"); a.i(f"s_cbranch_scc1 {lab}")
            p_,base=kv_regs(jb); S=rng('v',S0,16)
            a.i(f"v_mfma_f32_32x32x16_bf16 {S}, {rng(p_,base,4)}, a[{8*i}:{8*i+3}], 0")
            a.i(f"v_mfma_f32_32x32x16_bf16 {S}, {rng(p_,base+4,4)}, a[{8*i+4}:{8*i+7}], {S}")
            a.nop(16)
            if jb==i or jb==i-8:
                for r in range(16):
                    k0=(r&3)+8*(r>>2)
                    a.i(f"v_cmp_{'le' if jb==i else 'gt'}_i32 vcc, {k0}, v84"); a.i("s_nop 1")
                    a.i(f"v_cndmask_b32 v{S0+r}, v86, v{S0+r}, vcc")
            for r in range(0,16,2): a.i(f"v_max3_f32 {m}, v{S0+r}, v{S0+r+1}, {m}")
            if jb<0: a.label(lab)
        a.i(f"v_mov_b32 v87, {m}"); a.nop(2)
        a.i(f"v_permlane32_swap_b32 {m}, v87"); a.nop(2)
        a.i(f"v_max_f32 {m}, {m}, v87")
        a.i(f"v_sub_f32 v87, 0, {m}")
        a.i(f"v_cvt_pk_bf16_f32 v88, v87, v87"); a.i("v_lshlrev_b32 v89, 16, v88")
        a.i("v_sub_f32 v89, v87, v89")
        a.i("v_cvt_pk_bf16_f32 v88, v87, v89")
        a.i(f"s_mov_b64 exec, {sLO}"); a.i(f"v_accvgpr_write_b32 a{8*i+5}, v88"); a.i("s_mov_b64 exec, -1")
    a.i(f"s_mov_b32 {sTRY}, 1"); a.i(f"s_mov_b64 {sBAD}, 0"); a.nop(4)
    a.i("s_branch L_att")

OF=16
DACC=88
AFV=124
vAr=[f'v{2+t}' for t in range(9)]
vOf='v11'; vOut='v12'; vOf2='v251'

def phase3(a, opts):
    a.c("---- phase 3")
    L=vLane
    a.i(f"v_mov_b32 v88, {vWOl[0]}"); a.i(f"v_mov_b32 v89, {vWOl[1]}"); a.i(f"v_mov_b32 v90, {vWOt[1]}")
    a.i(f"v_lshrrev_b32 v13, 2, {L}")
    a.i(f"v_and_b32 v14, 7, v13"); a.i(f"v_lshlrev_b32 v14, 5, v14")
    a.i(f"v_lshl_add_u32 v14, v13, 8, v14")
    a.i(f"v_and_b32 v15, 3, {L}"); a.i(f"v_lshl_add_u32 v14, v15, 3, v14")
    for t in range(8): a.i(f"v_xor_b32 {vAr[t]}, {32*t}, v14")
    a.i(f"v_lshlrev_b32 v13, 5, v13"); a.i(f"v_lshl_add_u32 v13, v15, 3, v13"); a.i(f"v_add_u32 {vAr[8]}, 8192, v13")
    a.i(f"v_and_b32 v13, 15, {L}"); a.i(f"v_lshrrev_b32 v14, 4, {L}")
    a.i(f"s_and_b32 s6, {sWV}, 1"); a.i(f"s_lshl_b32 s6, s6, 8")
    a.i(f"v_lshl_add_u32 v15, v13, 4, s6")
    a.i(f"v_and_b32 v93, 1, v14"); a.i(f"v_lshl_add_u32 {vOf}, v93, 9, v15"); a.i(f"v_lshrrev_b32 v93, 1, v14")
    a.i(f"v_mul_u32_u24 v93, {OUTROW}, v93"); a.i(f"v_add_u32 {vOf}, {vOf}, v93")
    a.i(f"v_lshrrev_b32 v93, 7, v15"); a.i(f"v_lshl_add_u32 v93, v14, 2, v93"); a.i(f"v_mul_u32_u24 v93, {OUTROW}, v93")
    a.i(f"v_and_b32 v94, 0x70, v15"); a.i(f"v_add_u32 {vOf2}, v93, v94")
    a.i(f"v_mul_u32_u24 v15, {OUTROW}, v13"); a.i(f"v_lshl_add_u32 {vOut}, v14, 3, v15")
    a.wait(vm='wo')
    a.i("s_barrier")
    a.stamp('wo_ready')
    if opts.get('dumpwo'):
        a.i("s_cmp_lg_u32 s2, 0"); a.i("s_cbranch_scc1 L_nodump")
        a.i("v_lshlrev_b32 v13, 4, v0")
        for it in range(39):
            a.i(f"ds_read_b128 v[124:127], v13 offset:0")
            a.i("s_waitcnt lgkmcnt(0)")
            a.i(f"v_add_u32 v14, {WS_DBG+0x100000}, v13")
            a.i(f"buffer_store_dwordx4 v[124:127], v14, {sWS}, 0 offen", cond=True)
            a.i("s_waitcnt vmcnt(0)")
            a.i("v_add_u32 v13, 4096, v13")
        a.label("L_nodump"); a.lg_clear()
    def frag_reads(kap, dst):
        slot=kap if kap<17 else 0
        R=[]
        for t in range(9):
            p,r=dst(kap,t)
            off=(slot%7)*9216
            hoff=4096 if t<8 else 512
            R.append([(f"ds_read_b64_tr_b16 {p}[{r+2*h}:{r+2*h+1}], {vAr[t]} offset:{off+hoff*h}", f'a{kap}_{t}') for h in range(2)])
        return R
    NA=7; RING=29
    def dst(kap,t):
        if kap<NA: return 'a', (kap*9+t)*4
        idx=((kap-NA)*9+t)%RING
        return 'v', AFV+idx*4
    bump=lambda: [f"v_add_u32 {vAr[t]}, {7*9216}, {vAr[t]}" for t in range(9)]
    def oflag():
        a.i(f"s_lshl_b32 {sT0}, {sG}, 2"); a.i(f"s_add_u32 {sT0}, {sT0}, {sWV}"); a.i(f"s_lshl_b32 {sT0}, {sT0}, 7"); a.i(f"s_add_u32 {sT0}, {sT0}, {sFO}")
        a.i(f"v_mov_b32 v14, {sNONl}"); a.i(f"v_mov_b32 v13, 0")
        if not opts.get('olocal'):
            a.i(f"v_mov_b32 v15, {sNONh}"); a.i("s_mov_b64 exec, 1")
            a.i(f"buffer_store_dwordx2 v[14:15], v13, {sWS}, {sT0} offen sc1", 'oflag'); a.i("s_mov_b64 exec, -1")
            return
        a.i(f"s_cmp_eq_u32 {sLOC}, 1"); a.i("s_cbranch_scc1 L_ofl")
        a.i(f"v_mov_b32 v15, {sNONh}")
        a.i("s_mov_b64 exec, 1")
        a.i(f"buffer_store_dwordx2 v[14:15], v13, {sWS}, {sT0} offen sc1", 'x', True)
        a.i("s_branch L_ofe")
        a.label("L_ofl")
        a.i(f"s_add_u32 {sT0}, {sT0}, {WS_FOL-WS_FO}")
        a.i(f"v_mov_b32 v15, {sLFH}")
        a.i("s_mov_b64 exec, 1")
        a.i(f"buffer_store_dwordx2 v[14:15], v13, {sWS}, {sT0} offen", tag='oflag')
        a.label("L_ofe")
        a.i("s_mov_b64 exec, -1")
    LF_AT=opts.get('lf_at',1)
    for kap in range(NA):
        if kap==LF_AT:
            a.wait(vm='ost'); oflag(); a.stamp('o_lflag')
        for grp in frag_reads(kap,dst): a.emit(grp)
        if kap%2==1: a.wait(lg=8)
    a.emit(bump())
    a.i(f"v_and_b32 v13, 31, {L}"); a.i(f"v_lshlrev_b32 v13, 7, v13")
    a.i(f"v_mov_b32 v91, {sNONh}")
    if opts.get('olocal'):
        a.i(f"v_add_u32 v14, {WS_FOL-WS_FO}, v13"); a.i(f"v_cmp_le_u32 vcc, 32, {L}")
        a.i(f"v_mov_b32 v92, {sLFH}"); a.i("s_nop 0")
        a.i(f"v_cndmask_b32 v13, v13, v14, vcc"); a.i(f"v_cndmask_b32 v91, v91, v92, vcc")
    def opoll_load(cond):
        if not opts.get('olocal'): a.i(f"s_mov_b64 exec, {sLO}")
        a.i(f"buffer_load_dwordx2 v[14:15], v13, {sWS}, {sFO} offen sc1", 'opl', cond)
        a.i("s_mov_b64 exec, -1")
    AP=opts.get('apoll',0); W0=opts.get('w0poll',1)
    if AP==1: opoll_load(False)
    for kap in range(NA,NA+3):
        for grp in frag_reads(kap,dst): a.emit(grp)
    OT=9216; OP=304
    a.i(f"v_and_b32 v252, 15, {L}"); a.i(f"v_mul_u32_u24 v252, {OP}, v252"); a.i(f"v_lshrrev_b32 v253, 4, {L}"); a.i(f"v_lshl_add_u32 v252, v253, 3, v252")
    a.i(f"s_mul_i32 {sT2}, {sWV}, {16*OP}"); a.i(f"s_add_u32 {sT2}, {sT2}, {OT}"); a.i(f"v_add_u32 v250, {sT2}, v252")
    for e in range(5):
        a.i(f"v_add_u32 v252, {64*e}, {L}"); a.i(f"v_mul_u32_u24 v253, 58255, v252"); a.i(f"v_lshrrev_b32 v253, 20, v253")
        a.i(f"v_mul_u32_u24 v254, 18, v253"); a.i(f"v_sub_u32 v254, v252, v254"); a.i(f"v_lshlrev_b32 v254, 4, v254")
        a.i(f"v_mul_u32_u24 v252, {OP}, v253"); a.i(f"v_add3_u32 v{240+e}, v252, v254, {sT2}")
        a.i(f"v_mul_u32_u24 v252, {OUTROW}, v253"); a.i(f"v_add_u32 v{245+e}, v252, v254")
    a.wait(lg=0)
    a.i("s_barrier")
    for g in wo_left_groups(1,0,('v88','v89','v90')): a.emit(g)
    a.stamp('frags_pre')
    if W0:
        a.i(f"s_cmp_lg_u32 {sWV}, 0"); a.i("s_cbranch_scc1 L_opoll_done")
    if AP==1: a.wait(vm='opl')
    else:
        opoll_load(True); a.i("s_waitcnt vmcnt(0)")
    a.i(f"s_mov_b32 {sCNT}, 200000")
    a.label("L_opoll")
    if not opts.get('olocal'): a.i(f"s_mov_b64 exec, {sLO}")
    a.i(f"v_cmp_eq_u32 vcc, {sNONl}, v14"); a.i(f"v_cmp_eq_u32 s[4:5], v91, v15")
    a.i("s_mov_b64 exec, -1")
    a.i("s_and_b64 s[4:5], s[4:5], vcc"); a.i("s_or_b32 s4, s4, s5"); a.i("s_cmp_eq_u32 s4, -1"); a.i("s_cbranch_scc1 L_opoll_done")
    if opts.get('psleep',2): a.i(f"s_sleep {opts.get('psleep',2)}")
    opoll_load(True); a.i("s_waitcnt vmcnt(0)")
    a.i(f"s_sub_u32 {sCNT}, {sCNT}, 1"); a.i(f"s_cmp_lg_u32 {sCNT}, 0"); a.i("s_cbranch_scc1 L_opoll")
    a.label("L_opoll_done")
    if W0:
        a.wait(vm='wo'); a.i("s_barrier")
    a.stamp('opoll_done')
    KORD=[7,8,9]+list(range(7))+list(range(10,18))
    def oload(kap):
        if kap<16:
            a.i(f"s_add_u32 {sT0}, {sPOM}, {2*OUTROW*kap}")
            a.i(f"buffer_load_dwordx4 v[{OF+4*kap}:{OF+4*kap+3}], {vOf}, {sOUT}, {sT0} offen sc1", tag=f'of{kap}')
        else:
            a.i(f"s_add_u32 {sT0}, {sPOL}, {16*OUTROW*(kap-16)}")
            a.i(f"buffer_load_dwordx4 v[{OF+4*kap}:{OF+4*kap+3}], {vOf2}, {sOUT}, {sT0} offen sc1", tag=f'of{kap}')
    NFIRST=opts.get('ofirst',7)
    oq=list(KORD)
    for _ in range(NFIRST): oload(oq.pop(0))
    a.stamp('p3_oissued')
    if not W0:
        a.wait(vm='wo'); a.i("s_barrier")
    rq=[]
    for kap in range(NA+3,18):
        R=frag_reads(kap,dst)
        for t in range(9): rq.append((kap,t,R[t]))
    issued=(NA+3-NA)*9
    consumed=0; mcount=0
    def war_store():
        a.wait(vm=f'of{KORD[-1]}')
        a.i(f"s_lshl_b32 {sT0}, {sG}, 2"); a.i(f"s_add_u32 {sT0}, {sT0}, {sWV}"); a.i(f"s_lshl_b32 {sT0}, {sT0}, 7"); a.i(f"s_add_u32 {sT0}, {sT0}, {sFO}")
        a.i(f"v_mov_b32 v252, {sNONl}"); a.i(f"v_mov_b32 v254, 0")
        a.i(f"s_add_u32 {sT0}, {sT0}, {WS_FW-WS_FO}")
        if opts.get('olocal'):
            a.i(f"s_cmp_eq_u32 {sLOC}, 1"); a.i("s_cbranch_scc1 L_wl")
        a.i(f"v_mov_b32 v253, {sNONh}"); a.i("s_mov_b64 exec, 1")
        a.i(f"buffer_store_dwordx2 v[252:253], v254, {sWS}, {sT0} offen sc1", 'war' if not opts.get('olocal') else 'x', bool(opts.get('olocal')))
        if opts.get('olocal'):
            a.i("s_branch L_we"); a.label("L_wl")
            a.i(f"s_add_u32 {sT0}, {sT0}, {WS_FWL-WS_FW}"); a.i(f"v_mov_b32 v253, {sLFH}"); a.i("s_mov_b64 exec, 1")
            a.i(f"buffer_store_dwordx2 v[252:253], v254, {sWS}, {sT0} offen", 'war')
            a.label("L_we")
        a.i("s_mov_b64 exec, -1")
    def war_addr():
        a.i(f"v_and_b32 v13, 15, {L}"); a.i(f"s_lshl_b32 {sT0}, {sRH}, 4"); a.i(f"v_add_u32 v13, {sT0}, v13"); a.i(f"v_lshlrev_b32 v13, 7, v13")
        a.i(f"v_add_u32 v13, {WS_FW-WS_FO}, v13"); a.i(f"v_add_u32 v14, {WS_FWL-WS_FW}, v13"); a.i(f"v_cmp_le_u32 vcc, 16, {L}")
        a.i(f"v_mov_b32 v15, {sNONh}"); a.i(f"v_mov_b32 v1, {sLFH if opts.get('olocal') else sNONh}")
        a.i(f"v_cndmask_b32 v13, v13, v14, vcc"); a.i(f"v_cndmask_b32 v15, v15, v1, vcc")
    def war_load(cond=False):
        a.i(f"s_mov_b64 exec, {sLO}"); a.i(f"buffer_load_dwordx2 v[0:1], v13, {sWS}, {sFO} offen sc1", 'warl', cond); a.i("s_mov_b64 exec, -1")
    base_slot=7
    for kap in KORD:
        a.wait(vm=f'of{kap}')
        for t in range(9):
            p,r=dst(kap,t)
            if kap>=NA:
                n_=a.lg_n(f'a{kap}_{t}')
                if n_ is not None: a.wait(lg=f'a{kap}_{t}')
            acc=rng('v',DACC+4*t,4); c='0' if kap==KORD[0] else acc
            a.i(f"v_mfma_f32_16x16x32_bf16 {acc}, {p}[{r}:{r+3}], v[{OF+4*kap}:{OF+4*kap+3}], {c}")
            if kap>=NA: consumed+=1
            mcount+=1
            if mcount in (1,27,90,126): a.stamp(f'p3_m{mcount}_')
            if oq and mcount%opts.get('oevery',4)==0: oload(oq.pop(0))
            if mcount==opts.get('war_st',100): war_store()
            if mcount==opts.get('war_ld',140): war_addr(); war_load()
            if rq and issued-consumed<RING-1:
                k2,t2,ins=rq[0]
                if k2==14 and t2==0 and base_slot==7:
                    a.emit(bump()); base_slot=14
                if k2==17 and t2==0:
                    a.emit([f"v_subrev_u32 {vAr[tt]}, {14*9216}, {vAr[tt]}" for tt in range(9)])
                rq.pop(0); a.emit(ins); issued+=1
    assert not rq
    a.stamp('p3_mfma_end')
    a.wait(vm='warl')
    a.i(f"s_mov_b32 {sCNT}, 200000")
    a.label("L_wchk")
    a.i(f"s_mov_b64 exec, {sLO}")
    a.i(f"v_cmp_eq_u32 vcc, {sNONl}, v0"); a.i(f"v_cmp_eq_u32 s[4:5], v15, v1")
    a.i("s_mov_b64 exec, -1")
    a.i("s_and_b64 s[4:5], s[4:5], vcc"); a.i("s_lshr_b32 s5, s4, 16"); a.i("s_or_b32 s4, s4, s5"); a.i("s_and_b32 s4, s4, 0xffff")
    a.i("s_cmp_eq_u32 s4, 0xffff"); a.i("s_cbranch_scc1 L_wok")
    war_load(True); a.i("s_waitcnt vmcnt(0)")
    a.i(f"s_sub_u32 {sCNT}, {sCNT}, 1"); a.i(f"s_cmp_lg_u32 {sCNT}, 0"); a.i("s_cbranch_scc1 L_wchk")
    a.label("L_wok")
    a.stamp('p3_war')
    a.nop(10)
    for t in range(9):
        d=DACC+4*t
        a.i(f"v_cvt_pk_bf16_f32 v{d}, v{d}, v{d+1}"); a.i(f"v_cvt_pk_bf16_f32 v{d+1}, v{d+2}, v{d+3}")
        a.i(f"ds_write_b64 v250, v[{d}:{d+1}] offset:{32*t}", 'ow')
    a.wait(lg=0)
    for e in range(5):
        if e==4: a.i(f"s_mov_b64 exec, {sLO}")
        a.i(f"ds_read_b128 v[{32+4*e}:{35+4*e}], v{240+e}", f'or{e}')
    a.i("s_mov_b64 exec, -1")
    for e in range(5):
        a.wait(lg=f'or{e}')
        if e==4: a.i(f"s_mov_b64 exec, {sLO}")
        a.i(f"buffer_store_dwordx4 v[{32+4*e}:{35+4*e}], v{245+e}, {sOUT}, {sOUTB} offen {opts.get('outmod','')}")
    a.i("s_mov_b64 exec, -1")
    a.stamp('p3_stissued')
    a.i("s_waitcnt vmcnt(0)")

def kd(name, vgpr, accum, sgpr=102):
    return f""".section .rodata,"a"
.p2align 6
.amdhsa_kernel {name}
  .amdhsa_next_free_vgpr {vgpr}
  .amdhsa_next_free_sgpr {sgpr}
  .amdhsa_accum_offset {accum}
  .amdhsa_group_segment_fixed_size 0
  .amdhsa_kernarg_size 72
  .amdhsa_user_sgpr_count 2
  .amdhsa_user_sgpr_kernarg_segment_ptr 1
  .amdhsa_system_sgpr_workgroup_id_x 1
.end_amdhsa_kernel
"""
HEADER = """; Kernarg layout (72 bytes, ptrs only, base s[0:1]):
"""
def build(opts):
    ORDER_MODE[0]=opts.get('order','own'); GOPT.update(opts)
    a=G()
    if opts.get('stamps'):
        a.stamps=[]
        a.sel = opts['sel'].split(',') if 'sel' in opts else ['ch0_landed','1a_end','1b_end','q_ready','poll_done','own_done','att_end','wo_ready','frags_pre','opoll_done','p3_mfma_end','drained']
    prologue(a,opts)
    g0=dma_chunk_groups(0,0)
    if opts.get('tlbw',1):
        a.i(f"buffer_load_dword v255, {vWoff[0]}, {sW}, {sWoff} offen", 'touch')
    for g in g0[:4]: a.emit(g)
    setupA(a,opts)
    setupB0(a,opts)
    for g in g0[4:]: a.emit(g)
    if opts.get('xtouch',1):
        L=vLane
        a.i(f"v_mul_u32_u24 v2, 7282, {L}"); a.i("v_lshrrev_b32 v2, 16, v2")
        a.i(f"v_mul_u32_u24 v3, 9, v2"); a.i(f"v_sub_u32 v3, {L}, v3"); a.i("v_min_u32 v2, 3, v2")
        a.i(f"s_lshl_b32 s5, {sC}, 7"); a.i(f"s_lshl_b32 s6, {sG}, 4"); a.i("s_add_u32 s5, s5, s6"); a.i(f"s_lshl_b32 s6, {sWV}, 2"); a.i("s_add_u32 s5, s5, s6")
        a.i(f"v_add_u32 v2, s5, v2"); a.i(f"v_mul_u32_u24 v2, {XROW}, v2"); a.i(f"v_lshl_add_u32 v2, v3, 7, v2")
        a.i("s_mov_b32 s6, -1"); a.i("s_mov_b32 s7, 15")
        a.emit(["s_mov_b64 exec, s[6:7]", (f"buffer_load_dword v255, v2, {sX}, 0 offen",'touch'), "s_mov_b64 exec, -1"])
    if opts.get('wotouch',2)==2: touch_wo(a)
    a.stamp('p_ch0')
    for g in dma_chunk_groups(1,1): a.emit(g)
    a.stamp('p_ch1')
    rec=Rec(); setupB(rec,opts)
    rec2=Rec(); wo_addr(rec2)
    ren=dict(zip(vWOm+vWOl+vWOt,vWOtmp))
    def rn(x):
        for k_,v_ in ren.items(): x=x.replace(f" {k_},",f" {v_},")
        return x
    opts['_side']=rec.l+[rn(x) for x in rec2.l]
    pend=dma_chunk_groups(2,2)
    pend=phase1a(a,opts,pend)
    phase1b(a,pend,opts)
    attention(a,opts)
    phase3(a,opts)
    a.stamp('drained'); a.stamp('rt_exit',real=True)
    if opts.get('dbgtime'):
        a.i("s_waitcnt lgkmcnt(0)")
        n=len(a.stamps)
        r0=a.stamps[0][1]; r1=a.stamps[-1][1]
        a.i(f"s_not_b32 s3, s{r0}")
        a.i("v_mov_b32 v2, s3"); a.i("v_mov_b32 v3, 8"); a.i(f"v_mov_b32 v4, s{r1}"); a.i("v_mov_b32 v5, 12")
        a.i("s_mov_b64 exec, 1")
        a.i(f"buffer_atomic_umax v2, v3, {sDBG}, 0 offen sc1"); a.i(f"buffer_atomic_umax v4, v5, {sDBG}, 0 offen sc1")
        a.i(f"s_cmp_lg_u32 s2, 77"); a.i("s_cbranch_scc1 L_nodbg"); a.i(f"s_cmp_lg_u32 {sWV}, 0"); a.i("s_cbranch_scc1 L_nodbg")
        e=a.stamps[1][1]
        for k,(nm,r) in enumerate(a.stamps[2:-1][:12]):
            a.i(f"s_sub_u32 s3, s{r}, s{e}"); a.i("v_mov_b32 v2, s3"); a.i(f"v_mov_b32 v3, {16+4*k}")
            a.i(f"buffer_store_dword v2, v3, {sDBG}, 0 offen")
        a.label("L_nodbg")
        a.i("s_mov_b64 exec, -1"); a.i("s_waitcnt vmcnt(0)")
    else: a.dump_stamps(0)
    a.label("L_end"); a.i("s_endpgm")
    slow_path(a)
    errs=a.check()
    if opts.get('stamps'): print("stamps:",len(a.stamps),[x[0] for x in a.stamps])
    k1=f"{NAME}_kernel"
    txt=HEADER+f"; @launch grid=(256,1,1) block=(256,1,1) lds={LDS_BYTES}\n"
    txt+='.amdgcn_target "amdgcn-amd-amdhsa--gfx950"\n.text\n'
    txt+=f".globl {k1}\n.p2align 8\n.type {k1},@function\n{k1}:\n"+a.text()+kd(k1,512,256)
    return txt
if __name__=="__main__":
    out=sys.argv[1]
    opts={}
    for x in sys.argv[2:]:
        k,_,v=x.partition('='); opts[k]=int(v) if v.lstrip('-').isdigit() else (v or True)
    open(out,'w').write(build(opts)); print("written",out)
```

```python
import sys, os, struct
sys.path.insert(0, os.path.dirname(os.path.abspath(__file__)))
from asm import *
NAME = "concat_heads__sliding_block__sliding_block__prompt"
XROW=1152; WROW=3456; OUTROW=2304
X_BYTES=2048*1152; W_BYTES=576*3456; WO_BYTES=576*1152; OUT_BYTES=2048*2304
SLOT=36864; WPITCH=320; XOFF=20480; QPITCH=192; QCH=12288
VBASE=0; VR=1184; VJ=2368; VB=4736; KB3=18944; KB0=147456; KP=148; KBLK=32*148; QBASE=110592
LDS_BYTES=163840
WS_KV=0; WS_OM=0x1000000; WS_OL=0x1400000; WS_FKV=0x1800000; WS_FO=0x1840000; WS_FOL=0x1880000; WS_FW=0x1900000; WS_FWL=0x1940000
WS_XT=0x18C0000
WS_DBG=0x2000000; WS_BYTES=0x4000000
CSCALE = 1.4426950408889634/(18**0.5)
def f2u(x): return struct.unpack('<I',struct.pack('<f',x))[0]
def rng(p,a,n): return f'{p}[{a}:{a+n-1}]'

sX='s[8:11]'; sW='s[12:15]'; sWO='s[16:19]'; sOUT='s[20:23]'; sWS='s[24:27]'; sDBG='s[28:31]'
sB='s32'; sC='s33'; sG='s34'; sWV='s35'
sVM='s[54:55]'; sLO='s[56:57]'
sCI='s58'; sWoff='s59'; sXoff='s60'; sM0='s61'; sKVme='s62'
sT0='s63'; sT1='s64'; sT2='s65'; sFKV='s66'; sT3='s67'
sNONl='s68'; sNONh='s69'; sROT='s70'; sKV1='s71'; sKV2='s72'; sXCC='s73'
sBAD='s[74:75]'; sNVM='s[52:53]'; sCNT='s76'; sOM='s77'; sOL='s78'; sFO='s79'; sSC='s80'; sATT='s81'
sLFH='s70'; sLOC='s81'
sTRY='s52'
sRH='s82'; sNQ='s83'; sPOM='s84'; sPOL='s85'; sOUTB='s86'; sWOs='s87'
sIDX='s76'; sOFF='s81'

vLane='v1'
vWoff=[f'v{10+j}' for j in range(5)]
vXoff=[f'v{15+j}' for j in range(4)]
vQoff=['v19','v20','v21']
vWr=['v22','v23']; vMx=['v24','v25']
vXr=[[f'v{26+t}' for t in range(4)],[f'v{30+t}' for t in range(4)]]
vQr='v34'
vKw='v35'; vQw='v36'; vVw='v37'; vVt='v38'
vKr='v39'; vKl='v40'; vVr='v41'; vCw='v42'; vQl='v43'
vPk='v44'; vPl='v45'; vPv='v46'; vOl='v47'
vNON='v[48:49]'; vVC='v50'; vT='v51'
def WF(b,f): r=52+(b*5+f)*4; return f'v[{r}:{r+3}]'
def WFh(b,f,h): r=52+(b*5+f)*4+2*h; return f'v[{r}:{r+1}]'
def QF(b,f): r=52+(b*3+f)*4; return f'v[{r}:{r+3}]'
def QFh(b,f,h): r=52+(b*3+f)*4+2*h; return f'v[{r}:{r+1}]'
ACC={'K0':92,'K1':108,'V0':124,'V1':140,'MX':156,'Q0':172,'Q1':188,'Q2':204}
def XF(t): return rng('a',4*t,4)
OWN=92; HALO=144
S0=52; S1=68; P0=150; P1=158; OACC=172; MASKD=236; MASKF=244
vWOm=['v10','v11']; vWOl=['v12','v13']; vWOt=['v14','v15']
vWOtmp=['v220','v221','v222','v223','v224','v225']

class G(Asm):
    stamps=None; sel=None; nowait=True
    def stamp(self, name, real=False):
        if self.stamps is None: return
        if self.sel is not None and not (name.startswith('rt_') or name=='entry' or any(name.startswith(x) for x in self.sel)): return
        k=len(self.stamps)
        regs=[88,90,92,94,96,98,100,36,38,40,42,44,46,48,50][k]
        self.stamps.append((name,regs))
        if GOPT.get('allreal'): real_=True
        else: real_=real
        self.i(f"{'s_memrealtime' if real_ else 's_memtime'} s[{regs}:{regs+1}]")
        if self.nowait and not real and name!='entry':
            self.lg.pop()
        else:
            self.i("s_waitcnt lgkmcnt(0)")
            self.lg_clear()
    def dump_stamps(self, base):
        if self.stamps is None: return
        self.i("s_waitcnt lgkmcnt(0)")
        self.i(f"s_lshl_b32 s3, s2, 2"); self.i(f"s_add_u32 s3, s3, {sWV}")
        self.i(f"s_lshl_b32 s3, s3, 6"); self.i(f"s_add_u32 s3, s3, {WS_DBG+base}")
        self.i("s_mov_b64 exec, 1")
        for k,(nm,r) in enumerate(self.stamps):
            self.i(f"v_mov_b32 v2, s{r}"); self.i(f"v_mov_b32 v3, {4*k}")
            self.i(f"buffer_store_dword v2, v3, {sWS}, s3 offen")
        self.i("s_mov_b64 exec, -1"); self.i("s_waitcnt vmcnt(0)")
    def emit(self, lst):
        for x in lst:
            if isinstance(x,tuple) and x[0]=='OSTORE': emit_ostore(self,x[1])
            elif isinstance(x,tuple): self.i(*x)
            else: self.i(x)
    def drain(self, q, budget):
        k=0; inexec=False
        while q and (k<budget or inexec):
            x=q.pop(0)
            txt=x[0] if isinstance(x,tuple) else x
            if txt.startswith('s_mov_b64 exec'): inexec = not txt.endswith('-1')
            if txt=='OSTORE': emit_ostore(self,x[1])
            elif isinstance(x,tuple): self.i(*x)
            else: self.i(x)
            k+=1

def prologue(a, opts):
    L=vLane
    a.c("---- prologue")
    a.stamp('rt_entry',real=True); a.stamp('entry')
    a.i("s_load_dwordx8 s[36:43], s[0:1], 0")
    a.i("s_load_dwordx8 s[44:51], s[0:1], 32")
    a.i("s_load_dwordx2 s[52:53], s[0:1], 64")
    a.i("s_cmp_ge_u32 s2, 256")
    a.i("s_cbranch_scc1 L_end")
    a.i("s_getpc_b64 s[4:5]")
    a.label("L_pc")
    a.i("v_lshlrev_b32 v2, 7, v0")
    a.raw("    v_min_u32 v2, (L_end-L_pc), v2")
    if not opts.get('nopf'): a.i("global_load_dword v255, v2, s[4:5]", tag='pf')
    a.i(f"v_and_b32 {L}, 63, v0")
    a.i("v_lshrrev_b32 v2, 6, v0")
    a.i("s_and_b32 s3, s2, 7")
    a.i(f"v_readfirstlane_b32 {sWV}, v2")
    a.i(f"s_lshr_b32 {sB}, s3, 2")
    a.i("s_lshr_b32 s4, s2, 3")
    a.i("s_and_b32 s5, s3, 3")
    a.i(f"s_lshl_b32 {sC}, s5, 2")
    a.i("s_lshr_b32 s5, s4, 3")
    a.i(f"s_add_u32 {sC}, {sC}, s5")
    a.i(f"s_and_b32 {sG}, s4, 7")
    a.i("s_lshl_b32 s5, s5, 1")
    a.i(f"s_add_u32 s6, s5, {sG}")
    a.i("s_sub_u32 s7, s6, 9")
    a.i("s_cmp_ge_u32 s6, 9")
    a.i(f"s_cselect_b32 {sROT}, s7, s6")
    if opts.get('order','own')=='own':
        a.i(f"s_add_u32 {sOFF}, s5, {sG}"); a.i(f"s_and_b32 {sOFF}, {sOFF}, 7")
        a.i("s_and_b32 s6, s3, 3"); a.i("s_lshl_b32 s6, s6, 1"); a.i(f"s_and_b32 s7, {sC}, 1"); a.i(f"s_add_u32 {sROT}, s6, s7")
        a.i(f"s_mov_b32 {sIDX}, {sOFF}")
    elif opts.get('order')=='norot': a.i(f"s_mov_b32 {sROT}, 0")
    a.i(f"s_lshl_b32 s6, {sC}, 7"); a.i(f"s_lshl_b32 s7, {sWV}, 5"); a.i("s_add_u32 s6, s6, s7")
    a.i(f"s_mul_i32 s6, s6, {XROW}")
    a.i(f"v_lshrrev_b32 v4, 3, {L}"); a.i(f"v_lshrrev_b32 v5, 4, {L}"); a.i(f"v_and_b32 v6, 7, {L}")
    a.i(f"v_mul_u32_u24 v4, {XROW}, v4")
    a.i(f"v_add_u32 v4, s6, v4")
    for i in range(4):
        a.i(f"v_add_u32 v7, {4*i}, v5"); a.i(f"v_and_b32 v7, 7, v7"); a.i(f"v_xor_b32 v7, v6, v7")
        a.i(f"v_lshl_add_u32 v7, v7, 4, v4")
        a.i(f"v_add_u32 {vXoff[i]}, {8*i*XROW-1024*i}, v7")
    a.i(f"s_mul_i32 s6, {sWV}, {16*WROW}"); a.i(f"s_mul_i32 s7, {sG}, 144"); a.i("s_add_u32 s6, s6, s7")
    a.i(f"s_add_u32 s6, s6, 1152")
    a.i(f"s_movk_i32 s7, {WROW}")
    a.i("v_mov_b32 v9, 0x40000000"); a.i("v_mov_b32 v8, 1008")
    for j in range(5):
        a.i(f"v_add_u32 v4, {64*j}, {L}")
        a.i(f"v_mul_u32_u24 v5, 52429, v4"); a.i(f"v_lshrrev_b32 v5, 20, v5")
        a.i(f"v_mul_u32_u24 v6, 20, v5"); a.i(f"v_sub_u32 v6, v4, v6")
        a.i(f"v_cmp_lt_u32 vcc, 8, v6")
        a.i(f"v_mul_lo_u32 v5, v5, s7")
        a.i(f"v_lshl_add_u32 v5, v6, 4, v5")
        a.i(f"v_cndmask_b32 v7, 0, v8, vcc")
        a.i(f"v_cmp_lt_u32 vcc, 17, v6")
        a.i(f"v_add3_u32 v5, v5, v7, s6")
        comp=1024*j if j<4 else 0
        if comp: a.i(f"v_subrev_u32 v5, {comp}, v5")
        else: a.i("s_nop 0")
        a.i(f"v_cndmask_b32 {vWoff[j]}, v5, v9, vcc")
    a.stamp('p_pre')
    a.wait(lg=0)
    a.stamp('p_karg')
    a.i(f"s_cmp_eq_u32 {sB}, 0")
    a.i("s_cselect_b32 s8, s36, s42");  a.i("s_cselect_b32 s9, s37, s43")
    a.i("s_cselect_b32 s12, s38, s44"); a.i("s_cselect_b32 s13, s39, s45")
    a.i(f"s_mov_b32 s10, {X_BYTES}"); a.i("s_mov_b32 s11, 0x00020000")
    a.i(f"s_mov_b32 s14, {W_BYTES}"); a.i("s_mov_b32 s15, 0x00020000")
    a.i("s_cselect_b32 s16, s40, s46"); a.i("s_cselect_b32 s17, s41, s47")
    a.i(f"s_mov_b32 {sCI}, {sROT}")
    a.i(f"s_mul_i32 {sWoff}, {sCI}, {64*WROW}")
    a.i(f"s_lshl_b32 {sXoff}, {sCI}, 7")

vTA='v[240:241]'
def touch_setup(a, opts):
    L=vLane
    a.i("s_lshr_b32 s4, s2, 3")
    a.i(f"v_cmp_le_u32 vcc, 18, {L}")
    a.i(f"v_mov_b32 v2, {XROW+18*128}")
    a.i(f"v_lshlrev_b32 v3, 7, {L}")
    a.i(f"v_mov_b32 v2, {WROW-18*128}")
    a.i(f"v_cndmask_b32 v2, 0, v2, vcc")
    a.i(f"v_add_u32 v3, v3, v2")
    a.i(f"s_mul_i32 s5, s4, {2*WROW}"); a.i(f"s_add_u32 s5, s5, {9*128}")
    a.i(f"v_add_u32 v3, s5, v3")
    a.i("s_and_b32 s5, s2, 3"); a.i("s_lshl_b32 s5, s5, 9"); a.i("s_lshl_b32 s6, s4, 4"); a.i("s_add_u32 s5, s5, s6")
    a.i(f"v_subrev_u32 v4, 36, {L}"); a.i(f"v_and_b32 v4, 15, v4"); a.i(f"v_add_u32 v4, s5, v4"); a.i(f"v_mul_u32_u24 v4, {XROW}, v4")
    a.i(f"v_cmp_le_u32 vcc, 36, {L}")
    a.i(f"v_mov_b32 v5, s12"); a.i("v_mov_b32 v6, s8"); a.i("v_mov_b32 v7, s13"); a.i("v_mov_b32 v8, s9")
    a.i(f"v_cndmask_b32 v3, v3, v4, vcc")
    a.i(f"v_cndmask_b32 v5, v5, v6, vcc")
    a.i(f"v_cndmask_b32 v7, v7, v8, vcc")
    a.i(f"v_mov_b32 v9, {64*WROW}"); a.i("v_mov_b32 v6, 128")
    a.i(f"v_cndmask_b32 v242, v9, v6, vcc")
    a.i(f"s_add_u32 s5, {sWV}, 1")
    a.i(f"v_mul_lo_u32 v9, v242, s5")
    a.i(f"v_add_u32 v3, v3, v9")
    a.i(f"v_add_co_u32 v240, vcc, v5, v3"); a.i("s_nop 1"); a.i(f"v_addc_co_u32 v241, vcc, 0, v7, vcc")
    a.i(f"v_lshlrev_b32 v242, 2, v242")
def touch_ins(second):
    L=[]
    if second:
        L+= ["v_add_co_u32 v240, vcc, v240, v242", "s_nop 1", "v_addc_co_u32 v241, vcc, 0, v241, vcc"]
    L+= ["s_mov_b64 exec, 0x000fffffffffffff" if False else "s_mov_b64 exec, s[6:7]", (f"global_load_dword v255, {vTA}, off",'touch'), "s_mov_b64 exec, -1"]
    return L
def touch_q(a):
    L=vLane
    a.i("s_lshr_b32 s4, s2, 3")
    a.i(f"v_mul_u32_u24 v2, 7282, {L}"); a.i("v_lshrrev_b32 v2, 16, v2")
    a.i(f"v_mul_u32_u24 v3, 9, v2"); a.i(f"v_sub_u32 v3, {L}, v3")
    a.i(f"v_min_u32 v2, 5, v2")
    a.i(f"s_min_u32 s5, {sWV}, 2"); a.i("s_mul_i32 s5, s5, 6"); a.i("s_mul_i32 s6, s4, 18"); a.i("s_add_u32 s5, s5, s6")
    a.i(f"v_add_u32 v2, s5, v2"); a.i(f"v_mul_u32_u24 v2, {WROW}, v2"); a.i(f"v_lshl_add_u32 v2, v3, 7, v2")
    a.i(f"buffer_load_dword v255, v2, {sW}, 0 offen", 'touch')
def touch_wo(a):
    L=vLane
    a.i(f"s_lshr_b32 {sT0}, s2, 3")
    a.i(f"s_min_u32 {sT1}, {sWV}, 2"); a.i(f"s_mul_i32 {sT1}, {sT1}, 54"); a.i(f"s_mul_i32 {sT0}, {sT0}, 162"); a.i(f"s_add_u32 {sT1}, {sT1}, {sT0}")
    a.i(f"v_min_u32 {vT}, 53, {L}"); a.i(f"v_add_u32 {vT}, {sT1}, {vT}"); a.i(f"v_lshlrev_b32 {vT}, 7, {vT}")
    a.i(f"buffer_load_dword v255, {vT}, {sWO}, 0 offen", 'touch')

ORDER_MODE=['own']
GOPT={}
def next_chunk_ins():
    if ORDER_MODE[0]=='own':
        return [f"s_add_u32 {sCI}, {sROT}, {sIDX}", f"s_add_u32 {sCI}, {sCI}, 1", f"s_sub_u32 {sT3}, {sCI}, 9", f"s_cmp_ge_u32 {sCI}, 9",
                f"s_cselect_b32 {sCI}, {sT3}, {sCI}", f"s_add_u32 {sIDX}, {sIDX}, 1", f"s_and_b32 {sIDX}, {sIDX}, 7",
                f"s_mul_i32 {sWoff}, {sCI}, {64*WROW}", f"s_lshl_b32 {sXoff}, {sCI}, 7"]
    return [f"s_add_u32 {sCI}, {sCI}, 1", f"s_cmp_eq_u32 {sCI}, 9", f"s_cselect_b32 {sCI}, 0, {sCI}",
            f"s_mul_i32 {sWoff}, {sCI}, {64*WROW}", f"s_lshl_b32 {sXoff}, {sCI}, 7"]

def dma_chunk_groups(slot, n):
    base=slot*SLOT; tag=f'ch{n}'; Gs=[]
    for i in range(4):
        pre=[f"s_lshl_b32 {sM0}, {sWV}, 12", f"s_add_u32 m0, {sM0}, {base+XOFF}", "s_nop 0"] if i==0 else []
        Gs.append(pre+[(f"buffer_load_dwordx4 {vXoff[i]}, {sX}, {sXoff} offen offset:{1024*i} lds", tag)])
    for j in range(4):
        pre=[f"s_mul_i32 {sM0}, {sWV}, 5120", f"s_add_u32 m0, {sM0}, {base}", "s_nop 0"] if j==0 else []
        Gs.append(pre+[(f"buffer_load_dwordx4 {vWoff[j]}, {sW}, {sWoff} offen offset:{1024*j} lds", tag)])
    Gs.append([f"s_add_u32 m0, {sM0}, {base+4096}", "s_nop 0", (f"buffer_load_dwordx4 {vWoff[4]}, {sW}, {sWoff} offen lds", tag)]+next_chunk_ins())
    return Gs

def dma_wq_groups(n):
    reg = SLOT*(1+n//3) + (n%3)*QCH
    Gs=[]
    for e in range(3):
        pre=[f"s_mul_i32 {sM0}, {sWV}, 3072", f"s_add_u32 m0, {sM0}, {reg}", "s_nop 0"] if e==0 else []
        post=next_chunk_ins() if e==2 else []
        Gs.append(pre+[(f"buffer_load_dwordx4 {vQoff[e]}, {sW}, {sWoff} offen offset:{1024*e} lds", f'wq{n}')]+post)
    return Gs

def setupA(a, opts):
    L=vLane
    a.c("---- setup A")
    a.i(f"v_bfe_u32 v4, {L}, 2, 2"); a.i(f"v_lshrrev_b32 v5, 5, {L}")
    a.i(f"v_lshl_add_u32 v4, v5, 3, v4")
    a.i(f"v_bfe_u32 v6, {L}, 4, 1"); a.i(f"v_and_b32 v7, 3, {L}")
    a.i(f"v_mul_u32_u24 v8, {WPITCH}, v4")
    a.i(f"v_lshlrev_b32 v9, 5, v6"); a.i(f"v_lshl_add_u32 v9, v7, 3, v9")
    a.i(f"v_add_u32 {vWr[0]}, v8, v9"); a.i(f"v_add_u32 {vWr[1]}, {2*SLOT}, {vWr[0]}")
    a.i(f"v_mul_u32_u24 v2, {QPITCH}, v4")
    a.i(f"v_add3_u32 {vQr}, v2, v9, 0"); a.i(f"v_add_u32 {vQr}, {SLOT}, {vQr}")
    a.i(f"v_lshl_add_u32 v9, v6, 2, v7")
    a.i(f"v_lshlrev_b32 v2, 3, v9"); a.i(f"v_add_u32 v2, 128, v2"); a.i(f"v_add_u32 v3, 128, v2")
    a.i(f"v_cmp_lt_u32 vcc, 1, v9"); a.i("s_nop 1")
    a.i(f"v_cndmask_b32 v2, v2, v3, vcc")
    a.i(f"v_add_u32 {vMx[0]}, v8, v2"); a.i(f"v_add_u32 {vMx[1]}, {2*SLOT}, {vMx[0]}")
    a.i(f"v_and_b32 v2, 31, {L}"); a.i(f"v_bfe_u32 v3, {L}, 1, 3"); a.i(f"v_xor_b32 v3, v3, v5")
    a.i(f"v_lshlrev_b32 v3, 4, v3"); a.i(f"v_lshl_add_u32 v3, v2, 7, v3")
    a.i(f"s_lshl_b32 s6, {sWV}, 12"); a.i(f"s_add_u32 s6, s6, {XOFF}")
    a.i(f"v_add_u32 v3, s6, v3")
    for t in range(4):
        a.i(f"v_xor_b32 {vXr[0][t]}, {32*t}, v3"); a.i(f"v_add_u32 {vXr[1][t]}, {2*SLOT}, {vXr[0][t]}")

class Rec:
    def __init__(self): self.l=[]
    def i(self, t, tag=None, cond=False): self.l.append((t,tag,cond) if tag or cond else t)
    def c(self, s): pass

def setupB0(a, opts):
    a.i("s_mov_b32 s20, s48"); a.i("s_mov_b32 s21, s49"); a.i(f"s_mov_b32 s22, {OUT_BYTES}"); a.i("s_mov_b32 s23, 0x00020000")
    a.i("s_mov_b32 s24, s52"); a.i("s_mov_b32 s25, s53"); a.i(f"s_mov_b32 s26, {WS_BYTES}"); a.i("s_mov_b32 s27, 0x00020000")
    a.i("s_mov_b32 s28, s50"); a.i("s_mov_b32 s29, s51"); a.i("s_mov_b32 s30, 256"); a.i("s_mov_b32 s31, 0x00020000")
    a.i(f"s_mov_b32 s18, {WO_BYTES}"); a.i("s_mov_b32 s19, 0x00020000")
    a.i(f"s_or_b32 s3, s2, {sWV}"); a.i("s_cmp_lg_u32 s3, 0"); a.i("s_cbranch_scc1 L_nononce")
    a.i("s_memrealtime s[4:5]"); a.i("s_waitcnt lgkmcnt(0)"); a.i("s_or_b32 s4, s4, 1")
    a.i("v_mov_b32 v2, s4"); a.i("v_mov_b32 v3, s5"); a.i("v_mov_b32 v4, 0")
    a.i("s_mov_b64 exec, 1")
    a.i(f"buffer_store_dwordx2 v[2:3], v4, {sDBG}, 0 offen sc1", cond=True)
    a.i("s_mov_b64 exec, -1")
    a.label("L_nononce"); a.lg_clear()

def setupB(a, opts):
    L=vLane
    a.c("---- setup B")
    a.i("s_mov_b32 s54, 0x3ffff"); a.i("s_mov_b32 s55, 0x3ffff"); a.i("s_not_b64 s[52:53], s[54:55]"); a.i("s_mov_b32 s56, -1"); a.i("s_mov_b32 s57, 0")
    a.i(f"s_mov_b32 {sSC}, {f2u(CSCALE):#x}")
    a.i(f"s_getreg_b32 {sXCC}, hwreg(HW_REG_XCC_ID, 0, 4)")
    a.i(f"s_mul_i32 s6, {sWV}, {16*WROW}"); a.i(f"s_mul_i32 s7, {sG}, 144"); a.i("s_add_u32 s6, s6, s7")
    a.i(f"s_movk_i32 s7, {WROW}"); a.i("v_mov_b32 v9, 0x40000000")
    for e in range(3):
        a.i(f"v_add_u32 v4, {64*e}, {L}")
        a.i(f"v_mul_u32_u24 v5, 21846, v4"); a.i(f"v_lshrrev_b32 v5, 18, v5")
        a.i(f"v_mul_u32_u24 v6, 12, v5"); a.i(f"v_sub_u32 v6, v4, v6")
        a.i(f"v_cmp_lt_u32 vcc, 8, v6")
        a.i(f"v_mul_lo_u32 v5, v5, s7"); a.i(f"v_lshl_add_u32 v5, v6, 4, v5")
        a.i(f"v_add_u32 v5, s6, v5"); a.i(f"v_subrev_u32 v5, {1024*e}, v5")
        a.i(f"v_cndmask_b32 {vQoff[e]}, v5, v9, vcc")
    a.i(f"v_and_b32 v2, 31, {L}"); a.i(f"v_lshrrev_b32 v5, 5, {L}")
    a.i(f"s_mul_i32 s6, {sWV}, {KBLK}"); a.i(f"s_add_u32 s7, s6, {KB0}"); a.i(f"s_cmp_eq_u32 {sWV}, 3"); a.i(f"s_cselect_b32 s7, {KB3}, s7")
    a.i(f"v_mul_u32_u24 v3, {KP}, v2"); a.i(f"v_lshl_add_u32 v3, v5, 3, v3")
    a.i(f"v_add_u32 {vKw}, s7, v3"); a.i(f"s_add_u32 s6, s6, {QBASE}"); a.i(f"v_add_u32 {vQw}, s6, v3")
    a.i(f"s_mul_i32 s6, {sWV}, {VB}"); a.i(f"s_add_u32 s6, s6, {VBASE}")
    a.i(f"v_mul_u32_u24 v3, {VR}, v5"); a.i(f"v_lshl_add_u32 v3, v2, 4, v3"); a.i(f"v_add_u32 {vVw}, s6, v3")
    a.i(f"v_bfe_u32 v3, {L}, 2, 1"); a.i(f"v_mul_u32_u24 v3, {VJ}, v3"); a.i(f"v_bfe_u32 v4, {L}, 1, 1"); a.i(f"v_mul_u32_u24 v4, {VR}, v4")
    a.i(f"v_add_u32 v3, v3, v4"); a.i(f"v_and_b32 v4, 1, {L}"); a.i(f"v_lshl_add_u32 v3, v4, 4, v3"); a.i(f"v_add_u32 v3, {72*16}, v3")
    a.i(f"v_add_u32 {vCw}, s6, v3")
    a.i(f"v_lshrrev_b32 v3, 4, v2"); a.i(f"v_mul_u32_u24 v3, {VJ}, v3"); a.i(f"v_bfe_u32 v4, v2, 2, 1")
    a.i(f"v_mul_u32_u24 v4, {VR}, v4"); a.i(f"v_add_u32 v3, v3, v4"); a.i(f"v_and_b32 v4, 3, v2")
    a.i(f"v_bfe_u32 v6, v2, 3, 1"); a.i(f"v_lshl_add_u32 v4, v6, 2, v4"); a.i(f"v_lshl_add_u32 v3, v4, 1, v3")
    a.i(f"v_lshl_add_u32 v3, v5, 6, v3"); a.i(f"v_add_u32 v3, {64*16}, v3"); a.i(f"v_add_u32 {vVt}, s6, v3")
    a.i(f"s_mul_i32 s6, {sWV}, 36"); a.i(f"v_mul_u32_u24 v3, {KP}, v2"); a.i(f"v_add_u32 v3, s6, v3")
    a.i(f"v_lshl_add_u32 {vKr}, v5, 4, v3")
    a.i(f"v_add_u32 {vKl}, 32, v3")
    a.i(f"s_mul_i32 s6, {sWV}, 18"); a.i(f"v_add_u32 v3, s6, v2"); a.i(f"v_and_b32 v4, 27, v2")
    a.i(f"v_cmp_eq_u32 vcc, 18, v4"); a.i(f"v_mov_b32 v4, 73"); a.i(f"v_mov_b32 v6, 72"); a.i(f"v_cndmask_b32 v4, v4, v6, vcc")
    a.i(f"v_cmp_gt_u32 vcc, 18, v2"); a.i("s_nop 1"); a.i(f"v_cndmask_b32 v3, v4, v3, vcc")
    a.i(f"v_lshlrev_b32 v3, 4, v3"); a.i(f"v_mul_u32_u24 v4, {VR}, v5"); a.i(f"v_add_u32 {vVr}, v3, v4")
    a.i(f"v_lshlrev_b32 {vPk}, 4, {L}"); a.i(f"v_lshlrev_b32 {vPl}, 2, v2"); a.i(f"v_add_u32 {vPl}, 1024, {vPl}")
    a.i(f"v_mul_u32_u24 v3, 288, v5"); a.i(f"v_lshl_add_u32 v3, v2, 4, v3"); a.i(f"v_add_u32 {vPv}, 1152, v3")
    a.i(f"s_lshl_b32 s6, {sWV}, 2"); a.i(f"v_lshrrev_b32 v3, 3, v2"); a.i(f"v_mul_u32_u24 v3, {OUTROW}, v3")
    a.i(f"v_and_b32 v4, 7, v2"); a.i(f"v_lshl_add_u32 v3, v4, 4, v3"); a.i(f"v_add_u32 {vOl}, s6, v3")
    a.i(f"v_and_b32 v3, 27, v2"); a.i(f"v_cmp_eq_u32 vcc, 18, v3"); a.i(f"v_mov_b32 v4, 0x3f803f80"); a.i("s_nop 0")
    a.i(f"v_cndmask_b32 {vVC}, 0, v4, vcc")
    a.i(f"s_lshl_b32 s6, {sB}, 3"); a.i(f"s_add_u32 s6, s6, {sG}"); a.i(f"s_lshl_b32 s6, s6, 4"); a.i(f"s_add_u32 s6, s6, {sC}")
    a.i(f"s_mul_i32 {sKVme}, s6, {SLOT}"); a.i(f"s_mul_i32 s7, {sWV}, 2304"); a.i(f"s_add_u32 {sKVme}, {sKVme}, s7")
    a.i(f"s_sub_u32 {sKV1}, {sKVme}, {SLOT}"); a.i(f"s_sub_u32 {sKV2}, {sKVme}, {2*SLOT}")
    a.i(f"s_cmp_ge_u32 {sC}, 1"); a.i(f"s_cselect_b32 {sKV1}, {sKV1}, 0x70000000")
    a.i(f"s_cmp_ge_u32 {sC}, 2"); a.i(f"s_cselect_b32 {sKV2}, {sKV2}, 0x70000000")
    a.i(f"s_lshl_b32 s6, s6, 2"); a.i(f"s_add_u32 s6, s6, {sWV}"); a.i(f"s_lshl_b32 s6, s6, 7")
    a.i(f"s_add_u32 {sFKV}, s6, {WS_FKV}")
    a.i(f"s_cmp_ge_u32 {sC}, 1"); a.i(f"s_cselect_b32 s6, -1, 0"); a.i(f"s_cmp_ge_u32 {sC}, 2"); a.i(f"s_cselect_b32 s7, -1, 0")
    a.i(f"v_and_b32 v2, s6, {vVC}"); a.i(f"v_and_b32 v3, s7, {vVC}"); a.i(f"v_mov_b32 v4, 0x3f803f80")
    a.i(f"v_and_b32 v6, s7, v4"); a.i(f"v_and_b32 v4, s6, v4")
    for hb in range(8):
        base=HALO+14*hb
        a.i(f"v_accvgpr_write_b32 a{base+5}, {'v6' if hb<4 else 'v4'}")
        for r in range(8): a.i(f"v_accvgpr_write_b32 a{base+6+r}, {'v3' if hb<4 else 'v2'}")
    a.i(f"v_and_b32 v2, 31, {L}"); a.i(f"v_lshlrev_b32 v3, 2, v5"); a.i(f"v_sub_u32 v2, v2, v3")
    a.i(f"v_mov_b32 v6, 0xffff"); a.i(f"v_mov_b32 v7, 0xffff0000")
    for u in range(8):
        r0=2*u; k0=(r0&3)+8*(r0>>2)
        a.i(f"v_cmp_le_i32 vcc, {k0}, v2"); a.i(f"v_cmp_le_i32 s[4:5], {k0+1}, v2"); a.i("s_nop 0")
        a.i(f"v_cndmask_b32 v3, 0, v6, vcc"); a.i(f"v_cndmask_b32 v4, 0, v7, s[4:5]")
        a.i(f"v_or_b32 v{MASKD+u}, v3, v4"); a.i(f"v_not_b32 v{MASKF+u}, v{MASKD+u}")
    a.i(f"s_lshl_b32 s6, {sC}, 7"); a.i(f"s_lshl_b32 s7, {sG}, 2"); a.i("s_add_u32 s6, s6, s7")
    a.i(f"s_mul_i32 s6, s6, {OUTROW}"); a.i(f"s_mul_i32 s7, {sB}, 1152"); a.i("s_add_u32 s6, s6, s7")
    a.i(f"s_add_u32 {sOL}, s6, 1024"); a.i(f"s_mul_i32 s7, {sWV}, {OUTROW}"); a.i(f"s_add_u32 {sOM}, s6, s7")
    a.i(f"s_lshr_b32 {sRH}, {sG}, 2"); a.i(f"s_and_b32 {sNQ}, {sG}, 3")
    a.i(f"s_lshl_b32 s7, {sRH}, 1"); a.i(f"s_lshr_b32 s3, {sWV}, 1"); a.i("s_add_u32 s3, s3, s7"); a.i("s_lshl_b32 s3, s3, 5")
    a.i(f"s_lshl_b32 s7, {sC}, 7"); a.i("s_add_u32 s3, s3, s7"); a.i(f"s_mul_i32 {sPOM}, s3, {OUTROW}")
    a.i(f"s_mul_i32 s7, {sB}, 1152"); a.i(f"s_add_u32 {sPOM}, {sPOM}, s7"); a.i(f"s_add_u32 {sPOL}, {sPOM}, 1024")
    a.i(f"s_lshl_b32 s6, {sC}, 7"); a.i(f"s_lshl_b32 s7, {sRH}, 6"); a.i("s_add_u32 s6, s6, s7")
    a.i(f"s_lshl_b32 s7, {sWV}, 4"); a.i("s_add_u32 s6, s6, s7"); a.i(f"s_mul_i32 {sOUTB}, s6, {OUTROW}")
    a.i(f"s_mul_i32 s7, {sB}, 1152"); a.i(f"s_add_u32 {sOUTB}, {sOUTB}, s7")
    a.i(f"s_mul_i32 s7, {sNQ}, 288"); a.i(f"s_add_u32 {sOUTB}, {sOUTB}, s7")
    a.i(f"s_lshl_b32 s6, {sB}, 4"); a.i(f"s_add_u32 s6, s6, {sC}"); a.i(f"s_lshl_b32 {sFO}, s6, 12")
    a.i(f"s_add_u32 {sFO}, {sFO}, {WS_FO}")
    a.i(f"v_mov_b32 v252, {f2u(2.0**-40):#x}"); a.i(f"v_mov_b32 v253, {f2u(2.0**40):#x}")
    a.i(f"s_mov_b64 {sBAD}, 0")

def wq_reads(tau):
    n,t=divmod(tau,4); b=tau%2
    off=(n%3)*QCH+16*QPITCH*t
    return [[(f"ds_read_b64_tr_b16 {QFh(b,f,h)}, {vQr} offset:{off+4*QPITCH*h+64*f}", f'q{tau}_{f}') for h in range(2)] for f in range(3)]

def drain_side(a, side, n):
    k=0; last=''
    while side and (k<n or last.startswith('s_cmp') or (side[0] if isinstance(side[0],str) else side[0][0]).startswith('s_cselect')):
        x=side.pop(0)
        if isinstance(x,tuple): a.i(*x); last=x[0]
        else: a.i(x); last=x
        k+=1

def phase1a(a, opts, pend):
    a.c("---- phase 1a")
    def reads(tau):
        n,t=divmod(tau,4); slot=n%4; hi=slot>=2; base=(slot%2)*SLOT; b=tau%2
        R=[[(f"ds_read_b128 {XF(tau)}, {vXr[hi][t]} offset:{base}", f'x{tau}')] +
           [(f"ds_read_b64_tr_b16 {WFh(b,0,h)}, {vWr[hi]} offset:{base+5120*t+1280*h}", f'w{tau}_0') for h in range(2)]]
        for f,co in ((1,64),(2,144),(3,208)):
            R.append([(f"ds_read_b64_tr_b16 {WFh(b,f,h)}, {vWr[hi]} offset:{base+5120*t+1280*h+co}", f'w{tau}_{f}') for h in range(2)])
        R.append([(f"ds_read_b64_tr_b16 {WFh(b,4,h)}, {vMx[hi]} offset:{base+5120*t+1280*h}", f'w{tau}_4') for h in range(2)])
        return R
    a.stamp('setup_done')
    a.wait(vm='ch0'); a.i("s_barrier")
    a.stamp('ch0_landed')
    for grp in reads(0): a.emit(grp)
    names=['K0','K1','V0','V1','MX']
    side=opts.get('_side',[])
    every=opts.get('dma_every',2)
    slotcnt=0
    for tau in range(36):
        n,t=divmod(tau,4); b=tau%2
        if t==0: a.stamp(f'c{n}')
        if t==3:
            a.wait(vm=f'ch{n+1}' if n<8 else 'wq0')
            a.i("s_barrier")
            if n<=5:
                pend += dma_chunk_groups((n+3)%4, n+3)
                if (n==5 and opts.get('wotouch',2)==1) or (n==0 and opts.get('wotouch',2)==3) or (n==2 and opts.get('wotouch',2)==4):
                    rec=Rec(); touch_wo(rec); pend.append(rec.l)
            elif n==6:
                pend.append([f"s_mov_b32 {sCI}, {sROT}", f"s_mul_i32 {sWoff}, {sCI}, {64*WROW}", f"s_mov_b32 {sIDX}, {sOFF}"])
                for q in range(3): pend += dma_wq_groups(q)
            elif n==7:
                for q in range(3,6): pend += dma_wq_groups(q)
            elif n==8:
                for q in range(6,9): pend += dma_wq_groups(q)
        R = reads(tau+1) if tau<35 else wq_reads(0)
        for m,nm in enumerate(names):
            a.wait(lg=[f'w{tau}_{m}']+([f'x{tau}'] if m==0 else []))
            acc=rng('v',ACC[nm],16); c='0' if tau==0 else acc
            if nm in ('V0','V1'): a.i(f"v_mfma_f32_32x32x16_bf16 {acc}, {XF(tau)}, {WF(b,m)}, {c}")
            else: a.i(f"v_mfma_f32_32x32x16_bf16 {acc}, {WF(b,m)}, {XF(tau)}, {c}")
            if m<len(R): a.emit(R[m])
            slotcnt+=1
            if pend and slotcnt%every==0: a.emit(pend.pop(0))
            elif side: drain_side(a, side, opts.get('side_n',4))
        if tau==30:
            a.i(f"v_mov_b32 {vT}, 0")
            a.i(f"buffer_load_dwordx2 {vNON}, {vT}, {sDBG}, 0 offen sc1", tag='nonce')
    assert not side, len(side)
    return pend

def epi1a_list():
    A=[]; T=76
    for ti,nm in enumerate(('K0','K1')):
        base=ACC[nm]
        for i in range(4):
            t0=T+2*(i%2)
            A+= [f"v_cvt_pk_bf16_f32 v{t0}, v{base+4*i}, v{base+4*i+1}", f"v_cvt_pk_bf16_f32 v{t0+1}, v{base+4*i+2}, v{base+4*i+3}",
                 (f"ds_write2_b32 {vKw}, v{t0}, v{t0+1} offset0:{16*ti+4*i} offset1:{16*ti+4*i+1}",'e1w')]
    for ti,nm in enumerate(('V0','V1')):
        base=ACC[nm]
        for j in range(2):
            t0=T+4+4*j
            for u in range(4): A.append(f"v_cvt_pk_bf16_f32 v{t0+u}, v{base+8*j+2*u}, v{base+8*j+2*u+1}")
            A.append((f"ds_write_b128 {vVw}, v[{t0}:{t0+3}] offset:{VJ*j+512*ti}",'e1w'))
    base=ACC['MX']; t0=T+12
    A+= [f"v_cvt_pk_bf16_f32 v{t0}, v{base}, v{base+1}", f"v_cvt_pk_bf16_f32 v{t0+1}, v{base+2}, v{base+3}",
         (f"ds_write2_b32 {vKw}, v{t0}, v{t0+1} offset0:32 offset1:33",'e1w'),
         f"v_cvt_pk_bf16_f32 v{t0+2}, v{base+4}, v{base+5}", f"v_cvt_pk_bf16_f32 v{t0+3}, v{base+6}, v{base+7}",
         (f"ds_write_b16 {vVt}, v{t0+2}",'e1w'), (f"ds_write_b16_d16_hi {vVt}, v{t0+2} offset:16",'e1w'),
         (f"ds_write_b16 {vVt}, v{t0+3} offset:32",'e1w'), (f"ds_write_b16_d16_hi {vVt}, v{t0+3} offset:48",'e1w')]
    A+= [f"v_and_b32 v{t0}, 1, {vLane}", f"v_cmp_eq_u32 vcc, 0, v{t0}", f"v_mov_b32 v{t0+1}, 0x3f803f80", "s_nop 0",
         f"v_cndmask_b32 v{t0}, 0, v{t0+1}, vcc", f"v_mov_b32 v{t0+1}, v{t0}", f"v_mov_b32 v{t0+2}, v{t0}", f"v_mov_b32 v{t0+3}, v{t0}",
         "s_mov_b64 exec, 0xff", (f"ds_write_b128 {vCw}, v[{t0}:{t0+3}]",'e1w'), "s_mov_b64 exec, -1"]
    return A

def own_presets():
    L=[f"v_mov_b32 v91, 0x3f803f80"]
    for bt in range(4): L.append(f"v_mov_b32 v{OWN+14*bt+5}, v91")
    return L
def own_reads():
    L=[]
    for bt in range(4):
        base=OWN+14*bt
        kb = KB0+KBLK*bt if bt<3 else KB3
        L.append(f"v_add_u32 v88, {kb}, {vKr}"); L.append(f"v_add_u32 v89, {kb}, {vKl}")
        L.append((f"ds_read2_b32 v[{base}:{base+1}], v88 offset0:0 offset1:1",'own'))
        L.append((f"ds_read2_b32 v[{base+2}:{base+3}], v88 offset0:2 offset1:3",'own'))
        L.append((f"ds_read_b32 v{base+4}, v89",'own'))
    for bt in range(4):
        base=OWN+14*bt
        for j in range(2): L.append((f"ds_read_b128 v[{base+6+4*j}:{base+9+4*j}], {vVr} offset:{VB*bt+VJ*j}",'own'))
    return L
def own_store_groups(mod='sc1'):
    Gs=[]
    for bt in range(4):
        base=OWN+14*bt; tag='pubA' if bt<2 else 'pubB'
        Gs.append([f"s_add_u32 {sT0}, {sKVme}, {9216*bt}", (f"buffer_store_dwordx4 v[{base}:{base+3}], {vPk}, {sWS}, {sT0} offen {mod}",tag)])
        Gs.append([f"s_add_u32 {sT0}, {sKVme}, {9216*bt}", f"s_mov_b64 exec, {sLO}", (f"buffer_store_dword v{base+4}, {vPl}, {sWS}, {sT0} offen {mod}",tag), "s_mov_b64 exec, -1"])
        for j in range(2):
            Gs.append([f"s_add_u32 {sT0}, {sKVme}, {9216*bt}", f"s_mov_b64 exec, {sVM}", (f"buffer_store_dwordx4 v[{base+6+4*j}:{base+9+4*j}], {vPv}, {sWS}, {sT0} offen offset:{576*j} {mod}",tag), "s_mov_b64 exec, -1"])
    return Gs

def flag_store_ins(cnt):
    return [f"s_add_u32 {sT1}, {sNONh}, {cnt}", f"v_mov_b32 v2, {sNONl}", f"v_mov_b32 v3, {sT1}", f"v_mov_b32 v4, 0",
            "s_mov_b64 exec, 1", (f"buffer_store_dwordx2 v[2:3], v4, {sWS}, {sFKV} offen sc1", f'kvflag{cnt}'), "s_mov_b64 exec, -1"]

def xt_base():
    return [f"s_lshl_b32 {sT0}, {sB}, 4", f"s_add_u32 {sT0}, {sT0}, {sC}", f"s_lshl_b32 {sT0}, {sT0}, 10", f"s_add_u32 {sT0}, {sT0}, {WS_XT}"]
def xt_store():
    return xt_base()+[f"s_add_u32 {sLFH}, {sXCC}, 1", f"s_lshl_b32 {sLFH}, {sLFH}, 8", f"s_add_u32 {sLFH}, {sLFH}, {sNONh}",
            f"s_lshl_b32 {sT1}, {sG}, 7", f"s_add_u32 {sT0}, {sT0}, {sT1}",
            f"v_mov_b32 v2, {sNONl}", f"v_mov_b32 v3, {sLFH}", f"v_mov_b32 v4, 0",
            "s_mov_b64 exec, 1", (f"buffer_store_dwordx2 v[2:3], v4, {sWS}, {sT0} offen sc1",'xt'), "s_mov_b64 exec, -1"]
def xt_load():
    return xt_base()+[f"v_lshlrev_b32 v2, 7, {vLane}", "s_mov_b64 exec, 0xff",
            (f"buffer_load_dwordx2 v[8:9], v2, {sWS}, {sT0} offen sc1",'xtl'), "s_mov_b64 exec, -1"]
def xt_check(a):
    a.wait(vm='xtl')
    a.i("s_mov_b64 exec, 0xff")
    a.i(f"v_cmp_eq_u32 vcc, {sNONl}, v8"); a.i(f"v_cmp_eq_u32 s[4:5], {sLFH}, v9")
    a.i("s_mov_b64 exec, -1")
    a.i("s_and_b64 s[4:5], s[4:5], vcc"); a.i("s_and_b32 s4, s4, 0xff"); a.i("s_cmp_eq_u32 s4, 0xff")
    a.i(f"s_cselect_b32 {sLOC}, 1, 0")
    if GOPT.get('force_remote'): a.i(f"s_mov_b32 {sLOC}, 0")

def wo_group_for(kbase):
    setup=[f"s_add_u32 {sT1}, {sWV}, {kbase}", f"s_mul_i32 {sT2}, {sT1}, 41472", f"s_mul_i32 {sT3}, {sT1}, 9216"]
    return wo8_groups(setup)

def phase1b(a, pend, opts):
    a.c("---- phase 1b")
    a.stamp('1a_end')
    q=[]; stores=[]; wo=[]
    E2=opts.get('e2',4)
    FAST=opts.get('fastA',1)
    sched={}
    tt=E2+1
    for g in range(16):
        sched.setdefault(tt,[]).append(g)
        tt += 1 if (g<7 and FAST) else 2
    FLAGA=opts.get('flagA',24)
    woaddr=[f"v_mov_b32 {d_}, {s_}" for d_,s_ in zip(vWOm+vWOl+vWOt,vWOtmp)]+wo8_setup()
    for tau in range(36):
        n,t=divmod(tau,4); b=tau%2
        a.stamp(f'b{tau}_')
        if tau==1:
            a.i("s_barrier"); q+=epi1a_list()
        if tau==E2:
            a.drain(q,1000); a.wait(lg=0); a.i("s_barrier")
            a.emit(own_reads())
        if tau==E2+1:
            a.wait(lg='own')
            a.stamp('pub_start')
            stores=own_store_groups()
            q+=woaddr
        if tau==E2+3:
            a.i("s_barrier")
        if tau==E2+6: wo+=wo_group_for(0); q+=own_presets()
        if tau==15: wo+=wo_group_for(4)
        if tau==27: wo+=wo_group_for(8)
        if tau==FLAGA:
            a.wait(vm='pubA'); get_nonce(a); a.emit(flag_store_ins(2)); a.stamp('flagA')
            if opts.get('olocal'): a.emit(xt_store())
        if t==3 and tau<35:
            a.wait(vm=f'wq{n+1}')
            a.i("s_barrier")
            if (n+1)%3==0: a.i(f"v_add_u32 {vQr}, {SLOT}, {vQr}")
        R = wq_reads(tau+1) if tau<35 else []
        for m,nm in enumerate(('Q0','Q1','Q2')):
            a.wait(lg=[f'q{tau}_{m}'])
            acc=rng('v',ACC[nm],16); c='0' if tau==0 else acc
            a.i(f"v_mfma_f32_32x32x16_bf16 {acc}, {QF(b,m)}, {XF(tau)}, {c}")
            if m<len(R): a.emit(R[m])
            if m==0 and tau in sched:
                for g in sched[tau]:
                    if opts.get('nopub'):
                        for x in stores[g]:
                            if isinstance(x,tuple): a.vm.append(x[1])
                    else: a.emit(stores[g])
            elif q and tau<E2: a.drain(q,opts.get('epi_rate',7))
            elif pend: a.emit(pend.pop(0))
            elif q: drain_side2(a,q,4)
            elif opts.get('nowo1b',1): pass
            elif wo and m==2: a.emit(wo.pop(0))
            elif wo and m==1 and opts.get('wo2',1): a.emit(wo.pop(0))
    assert not pend and not q, (len(pend),len(q))
    for tt_ in sorted(sched):
        if tt_>35:
            for g in sched[tt_]: a.emit(stores[g])
    opts['_wo_left']=wo
    a.stamp('1b_end')
    a.emit(kv_flag_load(0))
    a.nop(14)
    T=76
    for ti,nm in enumerate(('Q0','Q1','Q2')):
        base=ACC[nm]; ni=4 if ti<2 else 1
        for r in range(4*ni): a.i(f"v_mul_f32 v{base+r}, {sSC}, v{base+r}")
    for ti,nm in enumerate(('Q0','Q1','Q2')):
        base=ACC[nm]; ni=4 if ti<2 else 1
        for i in range(ni):
            t0=T+2*((ti*4+i)%8)
            a.i(f"v_cvt_pk_bf16_f32 v{t0}, v{base+4*i}, v{base+4*i+1}"); a.i(f"v_cvt_pk_bf16_f32 v{t0+1}, v{base+4*i+2}, v{base+4*i+3}")
            if ti==0 and i==0: a.i("s_barrier")
            a.i(f"ds_write2_b32 {vQw}, v{t0}, v{t0+1} offset0:{16*ti+4*i} offset1:{16*ti+4*i+1}",'e2w')
    a.i(f"v_mov_b32 {vT}, 0")
    for i in range(4):
        for r in range(4,8): a.i(f"v_accvgpr_write_b32 a{8*i+r}, {vT}")
    a.wait(lg=0); a.i("s_barrier")
    for i in range(4):
        a.i(f"v_add_u32 v88, {QBASE+KBLK*i}, {vKr}")
        a.i(f"ds_read2_b32 a[{8*i}:{8*i+1}], v88 offset0:0 offset1:1",'qf')
        a.i(f"ds_read2_b32 a[{8*i+2}:{8*i+3}], v88 offset0:2 offset1:3",'qf')
    a.i(f"s_mov_b64 exec, {sLO}")
    for i in range(4):
        a.i(f"v_add_u32 v89, {QBASE+KBLK*i}, {vKl}")
        a.i(f"ds_read_b32 a{8*i+4}, v89",'qf')
    a.i("s_mov_b64 exec, -1")
    a.wait(lg='qf')
    a.i("s_barrier")
    a.stamp('q_ready')

def drain_side2(a, q, n):
    k=0; inexec=False; last=''
    while q and (k<n or inexec or last.startswith('s_cmp') or (q[0] if isinstance(q[0],str) else q[0][0]).startswith('s_cselect')):
        x=q.pop(0)
        txt=x[0] if isinstance(x,tuple) else x
        if txt.startswith('s_mov_b64 exec'): inexec = not txt.endswith('-1')
        if isinstance(x,tuple): a.i(*x)
        else: a.i(x)
        last=txt; k+=1

vFL='v[6:7]'; vFA='v5'
def kv_flag_load(rnd):
    L=[]
    if rnd==0:
        L+= [f"s_cmp_ge_u32 {sC}, 2", f"s_cselect_b32 {sT1}, 2, 1", f"s_lshl_b32 {sT1}, {sT1}, 9",
             f"s_sub_u32 {sT0}, {sFKV}, 512", f"s_sub_u32 {sT1}, {sFKV}, {sT1}",
             f"s_cmp_eq_u32 {sC}, 0", f"s_cselect_b32 {sT0}, {sFKV}, {sT0}", f"s_cselect_b32 {sT1}, {sFKV}, {sT1}",
             f"v_mov_b32 v8, {sT0}", f"v_mov_b32 v9, {sT1}", f"v_cmp_eq_u32 vcc, 0, {vLane}", "s_nop 1",
             f"v_cndmask_b32 {vFA}, v9, v8, vcc"]
    L+= ["s_mov_b64 exec, 3", (f"buffer_load_dwordx2 {vFL}, {vFA}, {sWS}, 0 offen sc1", f'fl{rnd}'), "s_mov_b64 exec, -1"]
    return L

def kv_flag_check(a, rnd, need):
    a.wait(vm=f'fl{rnd}')
    a.i(f"s_mov_b32 {sCNT}, 200000")
    a.label(f"L_chk{rnd}")
    a.i(f"s_cmp_eq_u32 {sC}, 0"); a.i(f"s_cbranch_scc1 L_ok{rnd}")
    a.i("s_mov_b64 exec, 3")
    a.i(f"v_subrev_u32 v8, {sNONh}, v7")
    a.i(f"v_cmp_eq_u32 vcc, {sNONl}, v6")
    a.i(f"v_cmp_le_u32 s[4:5], {need}, v8")
    a.i(f"v_cmp_ge_u32 s[6:7], 4, v8")
    a.i("s_mov_b64 exec, -1")
    a.i("s_and_b64 s[4:5], s[4:5], vcc"); a.i("s_and_b64 s[4:5], s[4:5], s[6:7]"); a.i("s_and_b32 s4, s4, 3")
    a.i("s_cmp_eq_u32 s4, 3"); a.i(f"s_cbranch_scc1 L_ok{rnd}")
    a.i("s_mov_b64 exec, 3")
    a.i(f"buffer_load_dwordx2 {vFL}, {vFA}, {sWS}, 0 offen sc1", cond=True)
    a.i("s_mov_b64 exec, -1")
    a.i("s_waitcnt vmcnt(0)")
    a.i(f"s_sub_u32 {sCNT}, {sCNT}, 1"); a.i(f"s_cmp_lg_u32 {sCNT}, 0"); a.i(f"s_cbranch_scc1 L_chk{rnd}")
    a.label(f"L_ok{rnd}")
    a.stamp(f'chk{rnd}')

def wo_addr(a):
    L=vLane
    a.i(f"s_mul_i32 s6, {sNQ}, 288")
    a.i(f"v_lshrrev_b32 v4, 4, {L}")
    a.i(f"v_and_b32 v5, 15, {L}")
    for par in range(2):
        a.i(f"v_add_u32 v6, {4*par}, v4"); a.i(f"v_lshlrev_b32 v6, 1, v6"); a.i(f"v_xor_b32 v6, v5, v6")
        a.i(f"v_lshlrev_b32 v6, 4, v6"); a.i(f"v_add_u32 v6, s6, v6")
        a.i(f"v_mul_u32_u24 v7, {XROW}, v4"); a.i(f"v_add_u32 {vWOm[par]}, v6, v7")
        a.i(f"v_lshrrev_b32 v7, 1, v4"); a.i(f"v_mul_u32_u24 v7, 18, v7"); a.i(f"v_and_b32 v8, 1, v4"); a.i(f"v_add_u32 v7, v7, v8")
        a.i(f"v_mul_u32_u24 v7, {XROW}, v7"); a.i(f"v_add_u32 {vWOl[par]}, v6, v7")
    a.i(f"v_lshrrev_b32 v4, 1, {L}")
    a.i(f"v_and_b32 v5, 1, {L}"); a.i(f"v_lshlrev_b32 v5, 4, v5"); a.i(f"v_add_u32 v5, 256, v5"); a.i(f"v_add_u32 v5, s6, v5")
    a.i(f"v_bfe_u32 v6, v4, 2, 2")
    a.i(f"v_and_b32 v7, 3, v4"); a.i(f"v_lshrrev_b32 v8, 4, v4")
    a.i(f"v_lshrrev_b32 v2, 1, v6"); a.i(f"v_mul_u32_u24 v2, 18, v2"); a.i(f"v_add_u32 v2, v2, v7"); a.i(f"v_lshl_add_u32 v2, v8, 3, v2")
    a.i(f"v_and_b32 v3, 1, v6"); a.i(f"v_lshl_add_u32 v2, v3, 2, v2"); a.i(f"v_mul_u32_u24 v2, {XROW}, v2"); a.i(f"v_add_u32 {vWOt[0]}, v2, v5")
    a.i(f"v_lshl_add_u32 v7, v8, 2, v7")
    a.i(f"v_lshrrev_b32 v2, 1, v7"); a.i(f"v_lshl_add_u32 v2, v6, 2, v2"); a.i(f"v_mul_u32_u24 v2, 18, v2")
    a.i(f"v_and_b32 v3, 1, v7"); a.i(f"v_add3_u32 v2, v2, v3, 16"); a.i(f"v_mul_u32_u24 v2, {XROW}, v2"); a.i(f"v_add_u32 {vWOt[1]}, v2, v5")

vWO8=[f'v{22+e}' for e in range(8)]
def wo8_setup():
    L=[]
    for e in range(8):
        const=(((e&3)>>1)*18+8*(e>>2)+4*(e&1))*XROW-1024*(e%4)
        if const>=0: L.append(f"v_add_u32 {vWO8[e]}, {const}, {vWOm[e&1]}")
        else: L.append(f"v_subrev_u32 {vWO8[e]}, {-const}, {vWOm[e&1]}")
    return L
def wo8_groups(uniform_setup):
    Gs=[]
    for e in range(8):
        pre = list(uniform_setup) if e==0 else []
        if e%4==0: pre += [f"s_add_u32 m0, {sT3}, {4096*(e//4)}", "s_nop 0"]
        Gs.append(pre+[(f"buffer_load_dwordx4 {vWO8[e]}, {sWO}, {sT2} offen offset:{1024*(e%4)} lds",'wo')])
    Gs.append([f"s_add_u32 m0, {sT3}, 8192", "s_nop 0", (f"buffer_load_dwordx4 {vWOt[0]}, {sWO}, {sT2} offen lds",'wo')])
    return Gs

def wo_dma_groups(kap, slot, uniform_setup):
    Gs=[]
    left = kap>=16
    for e in range(8):
        if left: const=((4*(e&3)+2*(e>>2))*18+16)*XROW
        else: const=(((e&3)>>1)*18+8*(e>>2)+4*(e&1))*XROW
        pre = list(uniform_setup) if e==0 else []
        if e%4==0: pre += [f"s_add_u32 m0, {sT3}, {4096*(e//4)}"]
        voff=(vWOl if left else vWOm)[e&1]
        Gs.append(pre+[f"s_add_u32 {sWOs}, {sT2}, {const-1024*(e%4)}" if const-1024*(e%4)>=0 else f"s_sub_u32 {sWOs}, {sT2}, {1024*(e%4)-const}",
                       (f"buffer_load_dwordx4 {voff}, {sWO}, {sWOs} offen offset:{1024*(e%4)} lds",'wo')])
    Gs.append([f"s_add_u32 m0, {sT3}, 8192", "s_nop 0", (f"buffer_load_dwordx4 {vWOt[1 if left else 0]}, {sWO}, {sT2} offen lds",'wo')])
    return Gs

def wo_prefetch_groups():
    Gs=[]
    for it in range(4):
        setup=[f"s_add_u32 {sT1}, {sWV}, {4*it}", f"s_mul_i32 {sT2}, {sT1}, 41472", f"s_mul_i32 {sT3}, {sT1}, 9216"]
        Gs+=wo_dma_groups(0,None,setup)
    return Gs

def wo_left_groups(L_, ldsbase, regs=None):
    vl0,vl1,vt = regs or (vWOl[0],vWOl[1],vWOt[1])
    g0=L_*16*18*XROW
    setup=[f"s_lshl_b32 {sT1}, {sWV}, 1", f"s_and_b32 {sT1}, {sT1}, 3", f"s_lshl_b32 {sT1}, {sT1}, 2",
           f"s_lshr_b32 {sT2}, {sWV}, 1", f"s_lshl_b32 {sT2}, {sT2}, 1", f"s_add_u32 {sT1}, {sT1}, {sT2}",
           f"s_mul_i32 {sT1}, {sT1}, {18*XROW}", f"s_add_u32 {sT2}, {sT1}, {g0+16*XROW}",
           f"s_lshl_b32 {sT1}, {sWV}, 11", f"s_add_u32 m0, {sT1}, {ldsbase}", "s_nop 0"]
    G0=setup+[(f"buffer_load_dwordx4 {vl0}, {sWO}, {sT2} offen lds",'wo')]
    G1=[f"s_add_u32 {sT2}, {sT2}, {4*18*XROW-1024}", (f"buffer_load_dwordx4 {vl1}, {sWO}, {sT2} offen offset:1024 lds",'wo')]
    G2=[f"s_mov_b32 {sT2}, {g0}", f"s_mov_b32 m0, {ldsbase+8192}", "s_nop 0", (f"buffer_load_dwordx4 {vt}, {sWO}, {sT2} offen lds",'wo')]
    return [G0,G1,G2]

def halo_load_groups(hb):
    base=HALO+14*hb; src=sKV2 if hb<4 else sKV1; bt=hb%4; tg=f'h{hb}'
    return [[f"s_add_u32 {sT0}, {src}, {9216*bt}",
             (f"buffer_load_dwordx4 a[{base}:{base+3}], {vPk}, {sWS}, {sT0} offen sc1", tg),
             (f"buffer_load_dword a{base+4}, {vPl}, {sWS}, {sT0} offen sc1", tg),
             f"s_mov_b64 exec, {sVM}",
             (f"buffer_load_dwordx4 a[{base+6}:{base+9}], {vPv}, {sWS}, {sT0} offen sc1", tg),
             (f"buffer_load_dwordx4 a[{base+10}:{base+13}], {vPv}, {sWS}, {sT0} offen offset:576 sc1", tg),
             "s_mov_b64 exec, -1"]]

def get_nonce(a):
    a.i(f"v_readfirstlane_b32 {sNONl}, v48"); a.i(f"v_readfirstlane_b32 {sNONh}, v49"); a.i("s_nop 1")
    a.i(f"s_or_b32 {sT0}, {sNONl}, {sNONh}"); a.i(f"s_cmp_lg_u32 {sT0}, 0"); a.i("s_cbranch_scc1 L_have_nonce")
    a.i(f"s_mov_b32 {sCNT}, 100000")
    a.label("L_nonce_poll")
    a.i(f"v_mov_b32 {vT}, 0")
    a.i(f"buffer_load_dwordx2 {vNON}, {vT}, {sDBG}, 0 offen sc1", cond=True)
    a.i("s_waitcnt vmcnt(0)")
    a.i(f"v_readfirstlane_b32 {sNONl}, v48"); a.i(f"v_readfirstlane_b32 {sNONh}, v49"); a.i("s_nop 1")
    a.i(f"s_or_b32 {sT0}, {sNONl}, {sNONh}"); a.i(f"s_cmp_lg_u32 {sT0}, 0"); a.i("s_cbranch_scc1 L_have_nonce")
    a.i("s_sleep 2"); a.i(f"s_sub_u32 {sCNT}, {sCNT}, 1"); a.i(f"s_cmp_lg_u32 {sCNT}, 0"); a.i("s_cbranch_scc1 L_nonce_poll")
    a.label("L_have_nonce")

def kv_regs(jb): return ('v', OWN+14*jb) if jb>=0 else ('a', HALO+14*(jb+8))
HORDER=[-4,-3,-8,-7,-2,-1,-6,-5]
def tile_list():
    T=[(i,bt) for i in range(4) for bt in range(i+1)]
    for jb in HORDER[:4]:
        for i in range(4):
            if i-jb<=8: T.append((i,jb))
    if GOPT.get('r2_by_q',0):
        for i in (3,2,1,0):
            for jb in HORDER[4:]:
                if i-jb<=8: T.append((i,jb))
    else:
        for jb in HORDER[4:]:
            for i in range(4):
                if i-jb<=8: T.append((i,jb))
    return T

def norm_block(i):
    O=OACC+16*i; t=84; L=[]
    L.append(f"v_rcp_f32 v{t}, v{O+10}")
    L.append(f"v_cmp_nle_f32 vcc, v252, v{O+10}")
    L.append(f"v_cmp_nge_f32 s[4:5], v253, v{O+10}")
    for r in range(10): L.append(f"v_mul_f32 v{O+r}, v{t}, v{O+r}")
    L.append(f"s_or_b64 {sBAD}, {sBAD}, vcc"); L.append(f"s_or_b64 {sBAD}, {sBAD}, s[4:5]")
    L.append(f"v_pk_add_f32 v[{t+2}:{t+3}], v[{O}:{O+1}], v[{O+2}:{O+3}]")
    L.append(f"v_pk_add_f32 v[{t+4}:{t+5}], v[{O+4}:{O+5}], v[{O+6}:{O+7}]")
    L.append(f"v_pk_add_f32 v[{t+2}:{t+3}], v[{t+2}:{t+3}], v[{O+8}:{O+9}]")
    L.append(f"v_pk_add_f32 v[{t+2}:{t+3}], v[{t+2}:{t+3}], v[{t+4}:{t+5}]")
    L.append(f"v_add_f32 v{t+2}, v{t+2}, v{t+3}")
    for u in range(5): L.append(f"v_cvt_pk_bf16_f32 v{O+u}, v{O+2*u}, v{O+2*u+1}")
    L.append(f"v_cmp_class_f32 vcc, v{t+2}, v254")
    L.append(f"s_add_u32 {sT0}, {sOM}, {i*32*OUTROW}"); L.append(f"s_add_u32 {sT1}, {sOL}, {i*32*OUTROW}")
    L.append(f"s_or_b64 {sBAD}, {sBAD}, vcc")
    L.append(('OSTORE',i))
    return L

def emit_ostore(a, i):
    O=OACC+16*i
    if not GOPT.get('olocal'):
        a.i(f"buffer_store_dwordx4 v[{O}:{O+3}], {vPk}, {sOUT}, {sT0} offen sc1", 'ost')
        a.i(f"s_mov_b64 exec, {sLO}")
        a.i(f"buffer_store_dword v{O+4}, {vOl}, {sOUT}, {sT1} offen sc1", 'ost')
        a.i(f"s_mov_b64 exec, -1")
        return
    a.i(f"s_cmp_eq_u32 {sLOC}, 1"); a.i(f"s_cbranch_scc1 L_osl{i}")
    a.i(f"buffer_store_dwordx4 v[{O}:{O+3}], {vPk}, {sOUT}, {sT0} offen sc1", 'x', True)
    a.i(f"s_mov_b64 exec, {sLO}")
    a.i(f"buffer_store_dword v{O+4}, {vOl}, {sOUT}, {sT1} offen sc1", 'x', True)
    a.i(f"s_mov_b64 exec, -1")
    a.i(f"s_branch L_ose{i}")
    a.label(f"L_osl{i}")
    a.i(f"buffer_store_dwordx4 v[{O}:{O+3}], {vPk}, {sOUT}, {sT0} offen", 'ost')
    a.i(f"s_mov_b64 exec, {sLO}")
    a.i(f"buffer_store_dword v{O+4}, {vOl}, {sOUT}, {sT1} offen", 'ost')
    a.i(f"s_mov_b64 exec, -1")
    a.label(f"L_ose{i}")

def o_pretouch():
    L=vLane
    return [f"v_lshrrev_b32 v2, 3, {L}", f"v_mul_u32_u24 v2, {32*OUTROW}, v2", f"v_and_b32 v3, 7, {L}", f"v_lshl_add_u32 v2, v3, 7, v2",
            f"v_add_u32 v2, {sOM}, v2",
            f"v_bfe_u32 v3, {L}, 2, 2", f"v_mul_u32_u24 v3, {32*OUTROW}, v3", f"v_and_b32 v4, 3, {L}", f"v_mul_u32_u24 v4, {OUTROW}, v4",
            f"v_add3_u32 v3, v3, v4, {sOL}",
            f"v_cmp_le_u32 vcc, 32, {L}", f"s_lshl_b32 {sT0}, {sG}, 2", f"s_add_u32 {sT0}, {sT0}, {sWV}", f"v_cndmask_b32 v2, v2, v3, vcc",
            "s_mov_b32 s4, -1", "s_mov_b32 s5, 0xffff", "s_mov_b64 exec, s[4:5]",
            (f"buffer_load_dword v255, v2, {sOUT}, 0 offen",'touch'), "s_mov_b64 exec, -1",
            f"s_lshl_b32 {sT0}, {sT0}, 7", f"s_add_u32 {sT0}, {sT0}, {sFO}",
            f"v_mul_u32_u24 v2, {WS_FWL-WS_FOL}, {L}", f"v_add_u32 v2, {WS_FOL-WS_FO}, v2",
            "s_mov_b64 exec, 3", (f"buffer_load_dword v255, v2, {sWS}, {sT0} offen",'touch'), "s_mov_b64 exec, -1"]

def attention(a, opts):
    a.c("---- attention")
    T=tile_list(); n=len(T)
    first={}; last={}; firstuse={}
    for k,(i,jb) in enumerate(T):
        first.setdefault(i,k); last[i]=k; firstuse.setdefault(jb,k)
    Sreg=lambda k: (S0 if k%2==0 else S1)
    Preg=lambda k: (P0 if k%2==0 else P1)
    def qk(k):
        i,jb=T[k]; p,base=kv_regs(jb); S=rng('v',Sreg(k),16)
        return [f"v_mfma_f32_32x32x16_bf16 {S}, {rng(p,base,4)}, a[{8*i}:{8*i+3}], 0",
                f"v_mfma_f32_32x32x16_bf16 {S}, {rng(p,base+4,4)}, a[{8*i+4}:{8*i+7}], {S}"]
    def pv(k):
        i,jb=T[k]; p,base=kv_regs(jb); O=rng('v',OACC+16*i,16); P=Preg(k)
        c0='0' if k==first[i] else O
        return [f"v_mfma_f32_32x32x16_bf16 {O}, {rng(p,base+6,4)}, v[{P}:{P+3}], {c0}",
                f"v_mfma_f32_32x32x16_bf16 {O}, {rng(p,base+10,4)}, v[{P+4}:{P+7}], {O}"]
    waited=set()
    wo=list(opts.get('_wo_left',[]))+wo_group_for(12)+wo_left_groups(0,16*9216)
    WO_START=opts.get('wo_start',0)
    CHK0=opts.get('chk0',0); FLAGB=opts.get('flagB',3); FL1=opts.get('fl1',9); CHK1=opts.get('chk1',14)
    WO_PAUSE=opts.get('wo_pause',1)
    a.i(f"s_mov_b32 {sTRY}, 0")
    a.label("L_att")
    a.i(f"v_mov_b32 v254, 0x207")
    q0=qk(0); a.i(q0[0]); a.i(q0[1])
    extra=[]; hq=[]
    for k in range(n+1):
        a.stamp(f't{k}_')
        if k==CHK0:
            kv_flag_check(a,0,2)
            for jb in HORDER[:4]:
                hq += halo_load_groups(jb+8)
        if k==FLAGB:
            a.wait(vm='pubB'); a.emit(flag_store_ins(4))
        if k==FL1: a.emit(kv_flag_load(1))
        if opts.get('olocal') and k==opts.get('pre_at',19): a.emit(o_pretouch())
        if opts.get('olocal') and k==opts.get('xtl',24): a.emit(xt_load())
        if opts.get('olocal') and k==opts.get('xtc',30): xt_check(a)
        if k==CHK1:
            kv_flag_check(a,1,4)
            for jb in HORDER[4:]:
                hq += halo_load_groups(jb+8)
        mf=[]
        if k+1<n:
            i,jb=T[k+1]
            if jb<0 and jb not in waited:
                if not waited: a.stamp('own_done')
                assert any(t==f'h{jb+8}' for t in a.vm), jb
                waited.add(jb); a.wait(vm=f'h{jb+8}')
                if len(waited)==1: a.stamp('h0_landed')
            mf+=qk(k+1)
        else: mf+=[None,None]
        mf += pv(k-1) if k>=1 else [None,None]
        if k==0: a.nop(12)
        S=Sreg(k); P=Preg(k)
        i,jb=T[k] if k<n else (None,None)
        for seg in range(4):
            pk,ps = (k,seg-1) if seg>0 else (k-1,3)
            if pk>=0 and pk<n:
                Sp=Sreg(pk); Pp=Preg(pk); ip,jp=T[pk]
                for u in (2*ps,2*ps+1): a.i(f"v_cvt_pk_bf16_f32 v{Pp+u}, v{Sp+2*u}, v{Sp+2*u+1}")
                if jp==ip or jp==ip-8:
                    M=MASKD if jp==ip else MASKF
                    for u in (2*ps,2*ps+1): a.i(f"v_and_b32 v{Pp+u}, v{M+u}, v{Pp+u}")
            if k==n and seg==2: a.nop(2)
            if mf[seg]: a.i(mf[seg])
            if k<n:
                for e in range(4): a.i(f"v_exp_f32 v{S+4*seg+e}, v{S+4*seg+e}")
            a.drain(extra, 6 if k<n else 1000)
            if hq and seg in (0,2): a.emit(hq.pop(0))
            paused = WO_PAUSE and ((CHK0<=k<10) or (CHK1<=k<CHK1+9))
            if k>=WO_START and wo and not paused and seg in (0,1,3): a.emit(wo.pop(0))
        if k>=1:
            ib=T[k-1][0]
            if last[ib]==k-1:
                if k==n:
                    a.nop(14); a.emit(norm_block(ib))
                else: extra+=["s_nop 1"]+norm_block(ib)
    assert not extra
    for g in wo: a.emit(g)
    a.i(f"s_or_b32 s4, s74, s75"); a.i(f"s_cmp_eq_u32 s4, 0"); a.i("s_cbranch_scc1 L_att_done")
    a.i(f"s_cmp_eq_u32 {sTRY}, 0"); a.i("s_cbranch_scc1 L_slow")
    a.label("L_att_done")
    a.stamp('att_end')

def slow_path(a):
    a.label("L_slow")
    a.i("s_waitcnt vmcnt(0) lgkmcnt(0)")
    T=tile_list(); L=vLane
    a.i(f"v_and_b32 v84, 31, {L}"); a.i(f"v_lshrrev_b32 v85, 5, {L}"); a.i("v_lshlrev_b32 v85, 2, v85"); a.i("v_sub_u32 v84, v84, v85")
    a.i("v_mov_b32 v86, 0xff800000")
    for i in range(4):
        m=f"v{P0+i}"
        a.i(f"v_mov_b32 {m}, v86")
        for n_,(ii,jb) in enumerate([t for t in T if t[0]==i]):
            lab=f"L_sk{i}_{n_}"
            if jb<0:
                a.i(f"s_cmp_lt_u32 {sC}, {2 if jb<-4 else 1}"); a.i(f"s_cbranch_scc1 {lab}")
            p_,base=kv_regs(jb); S=rng('v',S0,16)
            a.i(f"v_mfma_f32_32x32x16_bf16 {S}, {rng(p_,base,4)}, a[{8*i}:{8*i+3}], 0")
            a.i(f"v_mfma_f32_32x32x16_bf16 {S}, {rng(p_,base+4,4)}, a[{8*i+4}:{8*i+7}], {S}")
            a.nop(16)
            if jb==i or jb==i-8:
                for r in range(16):
                    k0=(r&3)+8*(r>>2)
                    a.i(f"v_cmp_{'le' if jb==i else 'gt'}_i32 vcc, {k0}, v84"); a.i("s_nop 1")
                    a.i(f"v_cndmask_b32 v{S0+r}, v86, v{S0+r}, vcc")
            for r in range(0,16,2): a.i(f"v_max3_f32 {m}, v{S0+r}, v{S0+r+1}, {m}")
            if jb<0: a.label(lab)
        a.i(f"v_mov_b32 v87, {m}"); a.nop(2)
        a.i(f"v_permlane32_swap_b32 {m}, v87"); a.nop(2)
        a.i(f"v_max_f32 {m}, {m}, v87")
        a.i(f"v_sub_f32 v87, 0, {m}")
        a.i(f"v_cvt_pk_bf16_f32 v88, v87, v87"); a.i("v_lshlrev_b32 v89, 16, v88")
        a.i("v_sub_f32 v89, v87, v89")
        a.i("v_cvt_pk_bf16_f32 v88, v87, v89")
        a.i(f"s_mov_b64 exec, {sLO}"); a.i(f"v_accvgpr_write_b32 a{8*i+5}, v88"); a.i("s_mov_b64 exec, -1")
    a.i(f"s_mov_b32 {sTRY}, 1"); a.i(f"s_mov_b64 {sBAD}, 0"); a.nop(4)
    a.i("s_branch L_att")

OF=16
DACC=88
AFV=124
vAr=[f'v{2+t}' for t in range(9)]
vOf='v11'; vOut='v12'; vOf2='v251'

def phase3(a, opts):
    a.c("---- phase 3")
    L=vLane
    a.i(f"v_mov_b32 v88, {vWOl[0]}"); a.i(f"v_mov_b32 v89, {vWOl[1]}"); a.i(f"v_mov_b32 v90, {vWOt[1]}")
    a.i(f"v_lshrrev_b32 v13, 2, {L}")
    a.i(f"v_and_b32 v14, 7, v13"); a.i(f"v_lshlrev_b32 v14, 5, v14")
    a.i(f"v_lshl_add_u32 v14, v13, 8, v14")
    a.i(f"v_and_b32 v15, 3, {L}"); a.i(f"v_lshl_add_u32 v14, v15, 3, v14")
    for t in range(8): a.i(f"v_xor_b32 {vAr[t]}, {32*t}, v14")
    a.i(f"v_lshlrev_b32 v13, 5, v13"); a.i(f"v_lshl_add_u32 v13, v15, 3, v13"); a.i(f"v_add_u32 {vAr[8]}, 8192, v13")
    a.i(f"v_and_b32 v13, 15, {L}"); a.i(f"v_lshrrev_b32 v14, 4, {L}")
    a.i(f"s_and_b32 s6, {sWV}, 1"); a.i(f"s_lshl_b32 s6, s6, 8")
    a.i(f"v_lshl_add_u32 v15, v13, 4, s6")
    a.i(f"v_and_b32 v93, 1, v14"); a.i(f"v_lshl_add_u32 {vOf}, v93, 9, v15"); a.i(f"v_lshrrev_b32 v93, 1, v14")
    a.i(f"v_mul_u32_u24 v93, {OUTROW}, v93"); a.i(f"v_add_u32 {vOf}, {vOf}, v93")
    a.i(f"v_lshrrev_b32 v93, 7, v15"); a.i(f"v_lshl_add_u32 v93, v14, 2, v93"); a.i(f"v_mul_u32_u24 v93, {OUTROW}, v93")
    a.i(f"v_and_b32 v94, 0x70, v15"); a.i(f"v_add_u32 {vOf2}, v93, v94")
    a.i(f"v_mul_u32_u24 v15, {OUTROW}, v13"); a.i(f"v_lshl_add_u32 {vOut}, v14, 3, v15")
    a.wait(vm='wo')
    a.i("s_barrier")
    a.stamp('wo_ready')
    if opts.get('dumpwo'):
        a.i("s_cmp_lg_u32 s2, 0"); a.i("s_cbranch_scc1 L_nodump")
        a.i("v_lshlrev_b32 v13, 4, v0")
        for it in range(39):
            a.i(f"ds_read_b128 v[124:127], v13 offset:0")
            a.i("s_waitcnt lgkmcnt(0)")
            a.i(f"v_add_u32 v14, {WS_DBG+0x100000}, v13")
            a.i(f"buffer_store_dwordx4 v[124:127], v14, {sWS}, 0 offen", cond=True)
            a.i("s_waitcnt vmcnt(0)")
            a.i("v_add_u32 v13, 4096, v13")
        a.label("L_nodump"); a.lg_clear()
    def frag_reads(kap, dst):
        slot=kap if kap<17 else 0
        R=[]
        for t in range(9):
            p,r=dst(kap,t)
            off=(slot%7)*9216
            hoff=4096 if t<8 else 512
            R.append([(f"ds_read_b64_tr_b16 {p}[{r+2*h}:{r+2*h+1}], {vAr[t]} offset:{off+hoff*h}", f'a{kap}_{t}') for h in range(2)])
        return R
    NA=7; RING=29
    def dst(kap,t):
        if kap<NA: return 'a', (kap*9+t)*4
        idx=((kap-NA)*9+t)%RING
        return 'v', AFV+idx*4
    bump=lambda: [f"v_add_u32 {vAr[t]}, {7*9216}, {vAr[t]}" for t in range(9)]
    def oflag():
        a.i(f"s_lshl_b32 {sT0}, {sG}, 2"); a.i(f"s_add_u32 {sT0}, {sT0}, {sWV}"); a.i(f"s_lshl_b32 {sT0}, {sT0}, 7"); a.i(f"s_add_u32 {sT0}, {sT0}, {sFO}")
        a.i(f"v_mov_b32 v14, {sNONl}"); a.i(f"v_mov_b32 v13, 0")
        if not opts.get('olocal'):
            a.i(f"v_mov_b32 v15, {sNONh}"); a.i("s_mov_b64 exec, 1")
            a.i(f"buffer_store_dwordx2 v[14:15], v13, {sWS}, {sT0} offen sc1", 'oflag'); a.i("s_mov_b64 exec, -1")
            return
        a.i(f"s_cmp_eq_u32 {sLOC}, 1"); a.i("s_cbranch_scc1 L_ofl")
        a.i(f"v_mov_b32 v15, {sNONh}")
        a.i("s_mov_b64 exec, 1")
        a.i(f"buffer_store_dwordx2 v[14:15], v13, {sWS}, {sT0} offen sc1", 'x', True)
        a.i("s_branch L_ofe")
        a.label("L_ofl")
        a.i(f"s_add_u32 {sT0}, {sT0}, {WS_FOL-WS_FO}")
        a.i(f"v_mov_b32 v15, {sLFH}")
        a.i("s_mov_b64 exec, 1")
        a.i(f"buffer_store_dwordx2 v[14:15], v13, {sWS}, {sT0} offen", tag='oflag')
        a.label("L_ofe")
        a.i("s_mov_b64 exec, -1")
    LF_AT=opts.get('lf_at',1)
    for kap in range(NA):
        if kap==LF_AT:
            a.wait(vm='ost'); oflag(); a.stamp('o_lflag')
        for grp in frag_reads(kap,dst): a.emit(grp)
        if kap%2==1: a.wait(lg=8)
    a.emit(bump())
    a.i(f"v_and_b32 v13, 31, {L}"); a.i(f"v_lshlrev_b32 v13, 7, v13")
    a.i(f"v_mov_b32 v91, {sNONh}")
    if opts.get('olocal'):
        a.i(f"v_add_u32 v14, {WS_FOL-WS_FO}, v13"); a.i(f"v_cmp_le_u32 vcc, 32, {L}")
        a.i(f"v_mov_b32 v92, {sLFH}"); a.i("s_nop 0")
        a.i(f"v_cndmask_b32 v13, v13, v14, vcc"); a.i(f"v_cndmask_b32 v91, v91, v92, vcc")
    def opoll_load(cond):
        if not opts.get('olocal'): a.i(f"s_mov_b64 exec, {sLO}")
        a.i(f"buffer_load_dwordx2 v[14:15], v13, {sWS}, {sFO} offen sc1", 'opl', cond)
        a.i("s_mov_b64 exec, -1")
    AP=opts.get('apoll',0); W0=opts.get('w0poll',1)
    if AP==1: opoll_load(False)
    for kap in range(NA,NA+3):
        for grp in frag_reads(kap,dst): a.emit(grp)
    OT=9216; OP=304
    a.i(f"v_and_b32 v252, 15, {L}"); a.i(f"v_mul_u32_u24 v252, {OP}, v252"); a.i(f"v_lshrrev_b32 v253, 4, {L}"); a.i(f"v_lshl_add_u32 v252, v253, 3, v252")
    a.i(f"s_mul_i32 {sT2}, {sWV}, {16*OP}"); a.i(f"s_add_u32 {sT2}, {sT2}, {OT}"); a.i(f"v_add_u32 v250, {sT2}, v252")
    for e in range(5):
        a.i(f"v_add_u32 v252, {64*e}, {L}"); a.i(f"v_mul_u32_u24 v253, 58255, v252"); a.i(f"v_lshrrev_b32 v253, 20, v253")
        a.i(f"v_mul_u32_u24 v254, 18, v253"); a.i(f"v_sub_u32 v254, v252, v254"); a.i(f"v_lshlrev_b32 v254, 4, v254")
        a.i(f"v_mul_u32_u24 v252, {OP}, v253"); a.i(f"v_add3_u32 v{240+e}, v252, v254, {sT2}")
        a.i(f"v_mul_u32_u24 v252, {OUTROW}, v253"); a.i(f"v_add_u32 v{245+e}, v252, v254")
    a.wait(lg=0)
    a.i("s_barrier")
    for g in wo_left_groups(1,0,('v88','v89','v90')): a.emit(g)
    a.stamp('frags_pre')
    if W0:
        a.i(f"s_cmp_lg_u32 {sWV}, 0"); a.i("s_cbranch_scc1 L_opoll_done")
    if AP==1: a.wait(vm='opl')
    else:
        opoll_load(True); a.i("s_waitcnt vmcnt(0)")
    a.i(f"s_mov_b32 {sCNT}, 200000")
    a.label("L_opoll")
    if not opts.get('olocal'): a.i(f"s_mov_b64 exec, {sLO}")
    a.i(f"v_cmp_eq_u32 vcc, {sNONl}, v14"); a.i(f"v_cmp_eq_u32 s[4:5], v91, v15")
    a.i("s_mov_b64 exec, -1")
    a.i("s_and_b64 s[4:5], s[4:5], vcc"); a.i("s_or_b32 s4, s4, s5"); a.i("s_cmp_eq_u32 s4, -1"); a.i("s_cbranch_scc1 L_opoll_done")
    if opts.get('psleep',2): a.i(f"s_sleep {opts.get('psleep',2)}")
    opoll_load(True); a.i("s_waitcnt vmcnt(0)")
    a.i(f"s_sub_u32 {sCNT}, {sCNT}, 1"); a.i(f"s_cmp_lg_u32 {sCNT}, 0"); a.i("s_cbranch_scc1 L_opoll")
    a.label("L_opoll_done")
    if W0:
        a.wait(vm='wo'); a.i("s_barrier")
    a.stamp('opoll_done')
    KORD=[7,8,9]+list(range(7))+list(range(10,18))
    def oload(kap):
        if kap<16:
            a.i(f"s_add_u32 {sT0}, {sPOM}, {2*OUTROW*kap}")
            a.i(f"buffer_load_dwordx4 v[{OF+4*kap}:{OF+4*kap+3}], {vOf}, {sOUT}, {sT0} offen sc1", tag=f'of{kap}')
        else:
            a.i(f"s_add_u32 {sT0}, {sPOL}, {16*OUTROW*(kap-16)}")
            a.i(f"buffer_load_dwordx4 v[{OF+4*kap}:{OF+4*kap+3}], {vOf2}, {sOUT}, {sT0} offen sc1", tag=f'of{kap}')
    NFIRST=opts.get('ofirst',7)
    oq=list(KORD)
    for _ in range(NFIRST): oload(oq.pop(0))
    a.stamp('p3_oissued')
    if not W0:
        a.wait(vm='wo'); a.i("s_barrier")
    rq=[]
    for kap in range(NA+3,18):
        R=frag_reads(kap,dst)
        for t in range(9): rq.append((kap,t,R[t]))
    issued=(NA+3-NA)*9
    consumed=0; mcount=0
    def war_store():
        a.wait(vm=f'of{KORD[-1]}')
        a.i(f"s_lshl_b32 {sT0}, {sG}, 2"); a.i(f"s_add_u32 {sT0}, {sT0}, {sWV}"); a.i(f"s_lshl_b32 {sT0}, {sT0}, 7"); a.i(f"s_add_u32 {sT0}, {sT0}, {sFO}")
        a.i(f"v_mov_b32 v252, {sNONl}"); a.i(f"v_mov_b32 v254, 0")
        a.i(f"s_add_u32 {sT0}, {sT0}, {WS_FW-WS_FO}")
        if opts.get('olocal'):
            a.i(f"s_cmp_eq_u32 {sLOC}, 1"); a.i("s_cbranch_scc1 L_wl")
        a.i(f"v_mov_b32 v253, {sNONh}"); a.i("s_mov_b64 exec, 1")
        a.i(f"buffer_store_dwordx2 v[252:253], v254, {sWS}, {sT0} offen sc1", 'war' if not opts.get('olocal') else 'x', bool(opts.get('olocal')))
        if opts.get('olocal'):
            a.i("s_branch L_we"); a.label("L_wl")
            a.i(f"s_add_u32 {sT0}, {sT0}, {WS_FWL-WS_FW}"); a.i(f"v_mov_b32 v253, {sLFH}"); a.i("s_mov_b64 exec, 1")
            a.i(f"buffer_store_dwordx2 v[252:253], v254, {sWS}, {sT0} offen", 'war')
            a.label("L_we")
        a.i("s_mov_b64 exec, -1")
    def war_addr():
        a.i(f"v_and_b32 v13, 15, {L}"); a.i(f"s_lshl_b32 {sT0}, {sRH}, 4"); a.i(f"v_add_u32 v13, {sT0}, v13"); a.i(f"v_lshlrev_b32 v13, 7, v13")
        a.i(f"v_add_u32 v13, {WS_FW-WS_FO}, v13"); a.i(f"v_add_u32 v14, {WS_FWL-WS_FW}, v13"); a.i(f"v_cmp_le_u32 vcc, 16, {L}")
        a.i(f"v_mov_b32 v15, {sNONh}"); a.i(f"v_mov_b32 v1, {sLFH if opts.get('olocal') else sNONh}")
        a.i(f"v_cndmask_b32 v13, v13, v14, vcc"); a.i(f"v_cndmask_b32 v15, v15, v1, vcc")
    def war_load(cond=False):
        a.i(f"s_mov_b64 exec, {sLO}"); a.i(f"buffer_load_dwordx2 v[0:1], v13, {sWS}, {sFO} offen sc1", 'warl', cond); a.i("s_mov_b64 exec, -1")
    base_slot=7
    for kap in KORD:
        a.wait(vm=f'of{kap}')
        for t in range(9):
            p,r=dst(kap,t)
            if kap>=NA:
                n_=a.lg_n(f'a{kap}_{t}')
                if n_ is not None: a.wait(lg=f'a{kap}_{t}')
            acc=rng('v',DACC+4*t,4); c='0' if kap==KORD[0] else acc
            a.i(f"v_mfma_f32_16x16x32_bf16 {acc}, {p}[{r}:{r+3}], v[{OF+4*kap}:{OF+4*kap+3}], {c}")
            if kap>=NA: consumed+=1
            mcount+=1
            if mcount in (1,27,90,126): a.stamp(f'p3_m{mcount}_')
            if oq and mcount%opts.get('oevery',4)==0: oload(oq.pop(0))
            if mcount==opts.get('war_st',100): war_store()
            if mcount==opts.get('war_ld',140): war_addr(); war_load()
            if rq and issued-consumed<RING-1:
                k2,t2,ins=rq[0]
                if k2==14 and t2==0 and base_slot==7:
                    a.emit(bump()); base_slot=14
                if k2==17 and t2==0:
                    a.emit([f"v_subrev_u32 {vAr[tt]}, {14*9216}, {vAr[tt]}" for tt in range(9)])
                rq.pop(0); a.emit(ins); issued+=1
    assert not rq
    a.stamp('p3_mfma_end')
    a.wait(vm='warl')
    a.i(f"s_mov_b32 {sCNT}, 200000")
    a.label("L_wchk")
    a.i(f"s_mov_b64 exec, {sLO}")
    a.i(f"v_cmp_eq_u32 vcc, {sNONl}, v0"); a.i(f"v_cmp_eq_u32 s[4:5], v15, v1")
    a.i("s_mov_b64 exec, -1")
    a.i("s_and_b64 s[4:5], s[4:5], vcc"); a.i("s_lshr_b32 s5, s4, 16"); a.i("s_or_b32 s4, s4, s5"); a.i("s_and_b32 s4, s4, 0xffff")
    a.i("s_cmp_eq_u32 s4, 0xffff"); a.i("s_cbranch_scc1 L_wok")
    war_load(True); a.i("s_waitcnt vmcnt(0)")
    a.i(f"s_sub_u32 {sCNT}, {sCNT}, 1"); a.i(f"s_cmp_lg_u32 {sCNT}, 0"); a.i("s_cbranch_scc1 L_wchk")
    a.label("L_wok")
    a.stamp('p3_war')
    a.nop(10)
    for t in range(9):
        d=DACC+4*t
        a.i(f"v_cvt_pk_bf16_f32 v{d}, v{d}, v{d+1}"); a.i(f"v_cvt_pk_bf16_f32 v{d+1}, v{d+2}, v{d+3}")
        a.i(f"ds_write_b64 v250, v[{d}:{d+1}] offset:{32*t}", 'ow')
    a.wait(lg=0)
    for e in range(5):
        if e==4: a.i(f"s_mov_b64 exec, {sLO}")
        a.i(f"ds_read_b128 v[{32+4*e}:{35+4*e}], v{240+e}", f'or{e}')
    a.i("s_mov_b64 exec, -1")
    for e in range(5):
        a.wait(lg=f'or{e}')
        if e==4: a.i(f"s_mov_b64 exec, {sLO}")
        a.i(f"buffer_store_dwordx4 v[{32+4*e}:{35+4*e}], v{245+e}, {sOUT}, {sOUTB} offen {opts.get('outmod','')}")
    a.i("s_mov_b64 exec, -1")
    a.stamp('p3_stissued')
    a.i("s_waitcnt vmcnt(0)")

def kd(name, vgpr, accum, sgpr=102):
    return f""".section .rodata,"a"
.p2align 6
.amdhsa_kernel {name}
  .amdhsa_next_free_vgpr {vgpr}
  .amdhsa_next_free_sgpr {sgpr}
  .amdhsa_accum_offset {accum}
  .amdhsa_group_segment_fixed_size 0
  .amdhsa_kernarg_size 72
  .amdhsa_user_sgpr_count 2
  .amdhsa_user_sgpr_kernarg_segment_ptr 1
  .amdhsa_system_sgpr_workgroup_id_x 1
.end_amdhsa_kernel
"""
HEADER = """; Kernarg layout (72 bytes, ptrs only, base s[0:1]):
"""
def build(opts):
    ORDER_MODE[0]=opts.get('order','own'); GOPT.update(opts)
    a=G()
    if opts.get('stamps'):
        a.stamps=[]
        a.sel = opts['sel'].split(',') if 'sel' in opts else ['ch0_landed','1a_end','1b_end','q_ready','poll_done','own_done','att_end','wo_ready','frags_pre','opoll_done','p3_mfma_end','drained']
    prologue(a,opts)
    g0=dma_chunk_groups(0,0)
    if opts.get('tlbw',1):
        a.i(f"buffer_load_dword v255, {vWoff[0]}, {sW}, {sWoff} offen", 'touch')
    for g in g0[:4]: a.emit(g)
    setupA(a,opts)
    setupB0(a,opts)
    for g in g0[4:]: a.emit(g)
    if opts.get('xtouch',1):
        L=vLane
        a.i(f"v_mul_u32_u24 v2, 7282, {L}"); a.i("v_lshrrev_b32 v2, 16, v2")
        a.i(f"v_mul_u32_u24 v3, 9, v2"); a.i(f"v_sub_u32 v3, {L}, v3"); a.i("v_min_u32 v2, 3, v2")
        a.i(f"s_lshl_b32 s5, {sC}, 7"); a.i(f"s_lshl_b32 s6, {sG}, 4"); a.i("s_add_u32 s5, s5, s6"); a.i(f"s_lshl_b32 s6, {sWV}, 2"); a.i("s_add_u32 s5, s5, s6")
        a.i(f"v_add_u32 v2, s5, v2"); a.i(f"v_mul_u32_u24 v2, {XROW}, v2"); a.i(f"v_lshl_add_u32 v2, v3, 7, v2")
        a.i("s_mov_b32 s6, -1"); a.i("s_mov_b32 s7, 15")
        a.emit(["s_mov_b64 exec, s[6:7]", (f"buffer_load_dword v255, v2, {sX}, 0 offen",'touch'), "s_mov_b64 exec, -1"])
    if opts.get('wotouch',2)==2: touch_wo(a)
    if opts.get('qtouch',0): touch_q(a)
    if opts.get('pgw',0):
        L=vLane
        a.i(f"s_lshl_b32 s4, {sB}, 3"); a.i(f"s_add_u32 s4, s4, {sG}"); a.i("s_lshl_b32 s4, s4, 4"); a.i(f"s_add_u32 s4, s4, {sC}")
        a.i(f"s_mul_i32 s4, s4, {SLOT}")
        a.i(f"v_mov_b32 v2, s4"); a.i(f"v_mov_b32 v3, {WS_FKV}"); a.i(f"v_cmp_eq_u32 vcc, 1, {L}"); a.i("s_nop 1"); a.i("v_cndmask_b32 v2, v2, v3, vcc")
        a.i(f"s_sub_u32 s5, s4, {2*SLOT}"); a.i(f"s_max_i32 s5, s5, 0"); a.i("v_mov_b32 v3, s5"); a.i(f"v_cmp_eq_u32 vcc, 2, {L}"); a.i("s_nop 1"); a.i("v_cndmask_b32 v2, v2, v3, vcc")
        a.i("s_mov_b64 exec, 7"); a.i(f"buffer_load_dword v255, v2, {sWS}, 0 offen", 'touch')
        a.i(f"s_lshl_b32 s4, {sC}, 7"); a.i(f"s_mul_i32 s4, s4, {OUTROW}"); a.i("v_mov_b32 v2, 0")
        a.i("s_mov_b64 exec, 1"); a.i(f"buffer_load_dword v255, v2, {sOUT}, s4 offen", 'touch'); a.i("s_mov_b64 exec, -1")
    a.stamp('p_ch0')
    for g in dma_chunk_groups(1,1): a.emit(g)
    a.stamp('p_ch1')
    rec=Rec(); setupB(rec,opts)
    rec2=Rec(); wo_addr(rec2)
    ren=dict(zip(vWOm+vWOl+vWOt,vWOtmp))
    def rn(x):
        for k_,v_ in ren.items(): x=x.replace(f" {k_},",f" {v_},")
        return x
    opts['_side']=rec.l+[rn(x) for x in rec2.l]
    pend=dma_chunk_groups(2,2)
    pend=phase1a(a,opts,pend)
    phase1b(a,pend,opts)
    attention(a,opts)
    phase3(a,opts)
    a.stamp('drained'); a.stamp('rt_exit',real=True)
    if opts.get('dbgtime'):
        a.i("s_waitcnt lgkmcnt(0)")
        n=len(a.stamps)
        r0=a.stamps[0][1]; r1=a.stamps[-1][1]
        a.i(f"s_not_b32 s3, s{r0}")
        a.i("v_mov_b32 v2, s3"); a.i("v_mov_b32 v3, 8"); a.i(f"v_mov_b32 v4, s{r1}"); a.i("v_mov_b32 v5, 12")
        a.i("s_mov_b64 exec, 1")
        a.i(f"buffer_atomic_umax v2, v3, {sDBG}, 0 offen sc1"); a.i(f"buffer_atomic_umax v4, v5, {sDBG}, 0 offen sc1")
        a.i(f"s_cmp_lg_u32 s2, 77"); a.i("s_cbranch_scc1 L_nodbg"); a.i(f"s_cmp_lg_u32 {sWV}, 0"); a.i("s_cbranch_scc1 L_nodbg")
        e=a.stamps[1][1]
        for k,(nm,r) in enumerate(a.stamps[2:-1][:12]):
            a.i(f"s_sub_u32 s3, s{r}, s{e}"); a.i("v_mov_b32 v2, s3"); a.i(f"v_mov_b32 v3, {16+4*k}")
            a.i(f"buffer_store_dword v2, v3, {sDBG}, 0 offen")
        a.label("L_nodbg")
        a.i("s_mov_b64 exec, -1"); a.i("s_waitcnt vmcnt(0)")
    else: a.dump_stamps(0)
    a.label("L_end"); a.i("s_endpgm")
    slow_path(a)
    errs=a.check()
    if opts.get('stamps'): print("stamps:",len(a.stamps),[x[0] for x in a.stamps])
    k1=f"{NAME}_kernel"
    txt=HEADER+f"; @launch grid=(256,1,1) block=(256,1,1) lds={LDS_BYTES}\n"
    txt+='.amdgcn_target "amdgcn-amd-amdhsa--gfx950"\n.text\n'
    txt+=f".globl {k1}\n.p2align 8\n.type {k1},@function\n{k1}:\n"+a.text()+kd(k1,512,256)
    return txt
if __name__=="__main__":
    out=sys.argv[1]
    opts={}
    for x in sys.argv[2:]:
        k,_,v=x.partition('='); opts[k]=int(v) if v.lstrip('-').isdigit() else (v or True)
    open(out,'w').write(build(opts)); print("written",out)
```

```python
import sys, os, struct
sys.path.insert(0, os.path.dirname(os.path.abspath(__file__)))
from asm import *
NAME = "concat_heads__sliding_block__sliding_block__prompt"
XROW=1152; WROW=3456; OUTROW=2304
X_BYTES=2048*1152; W_BYTES=576*3456; WO_BYTES=576*1152; OUT_BYTES=2048*2304
SLOT=36864; WPITCH=320; XOFF=20480; QPITCH=192; QCH=12288
VBASE=0; VR=1184; VJ=2368; VB=4736; KB3=18944; KB0=147456; KP=148; KBLK=32*148; QBASE=0
LDS_BYTES=163840
WS_KV=0; WS_OM=0x1000000; WS_OL=0x1400000; WS_FKV=0x1800000; WS_FO=0x1840000; WS_FOL=0x1880000; WS_FW=0x1900000; WS_FWL=0x1940000
WS_XT=0x18C0000
WS_DBG=0x2000000; WS_BYTES=0x4000000
CSCALE = 1.4426950408889634/(18**0.5)
def f2u(x): return struct.unpack('<I',struct.pack('<f',x))[0]
def rng(p,a,n): return f'{p}[{a}:{a+n-1}]'

sX='s[8:11]'; sW='s[12:15]'; sWO='s[16:19]'; sOUT='s[20:23]'; sWS='s[24:27]'; sDBG='s[28:31]'
sB='s32'; sC='s33'; sG='s34'; sWV='s35'
sVM='s[54:55]'; sLO='s[56:57]'
sCI='s58'; sWoff='s59'; sXoff='s60'; sM0='s61'; sKVme='s62'
sT0='s63'; sT1='s64'; sT2='s65'; sFKV='s66'; sT3='s67'
sNONl='s68'; sNONh='s69'; sROT='s70'; sKV1='s71'; sKV2='s72'; sXCC='s73'
sBAD='s[74:75]'; sNVM='s[52:53]'; sCNT='s76'; sOM='s77'; sOL='s78'; sFO='s79'; sSC='s80'; sATT='s81'
sLFH='s70'; sLOC='s81'
sTRY='s52'
sRH='s82'; sNQ='s83'; sPOM='s84'; sPOL='s85'; sOUTB='s86'; sWOs='s87'
sIDX='s76'; sOFF='s81'

vLane='v1'
vWoff=[f'v{10+j}' for j in range(5)]
vXoff=[f'v{15+j}' for j in range(4)]
vQoff=['v19','v20','v21']
vWr=['v22','v23']; vMx=['v24','v25']
vXr=[[f'v{26+t}' for t in range(4)],[f'v{30+t}' for t in range(4)]]
vQr='v34'
vKw='v35'; vQw='v36'; vVw='v37'; vVt='v38'
vKr='v39'; vKl='v40'; vVr='v41'; vCw='v42'; vQl='v43'
vPk='v44'; vPl='v45'; vPv='v46'; vOl='v47'
vNON='v[48:49]'; vVC='v50'; vT='v51'
def WF(b,f): r=52+(b*5+f)*4; return f'v[{r}:{r+3}]'
def WFh(b,f,h): r=52+(b*5+f)*4+2*h; return f'v[{r}:{r+1}]'
def QF(b,f): r=52+(b*3+f)*4; return f'v[{r}:{r+3}]'
def QFh(b,f,h): r=52+(b*3+f)*4+2*h; return f'v[{r}:{r+1}]'
ACC={'K0':92,'K1':108,'V0':124,'V1':140,'MX':156,'Q0':172,'Q1':188,'Q2':204}
def XF(t): return rng('a',4*t,4)
OWN=92; HALO=144
S0=52; S1=68; P0=150; P1=158; OACC=172; MASKD=236; MASKF=244
vWOm=['v10','v11']; vWOl=['v12','v13']; vWOt=['v14','v15']
vWOtmp=['v220','v221','v222','v223','v224','v225']

class G(Asm):
    stamps=None; sel=None; nowait=True
    def stamp(self, name, real=False):
        if self.stamps is None: return
        if self.sel is not None and not (name.startswith('rt_') or name=='entry' or any(name.startswith(x) for x in self.sel)): return
        k=len(self.stamps)
        regs=[88,90,92,94,96,98,100,36,38,40,42,44,46,48,50][k]
        self.stamps.append((name,regs))
        if GOPT.get('allreal'): real_=True
        else: real_=real
        self.i(f"{'s_memrealtime' if real_ else 's_memtime'} s[{regs}:{regs+1}]")
        if self.nowait and not real and name!='entry':
            self.lg.pop()
        else:
            self.i("s_waitcnt lgkmcnt(0)")
            self.lg_clear()
    def dump_stamps(self, base):
        if self.stamps is None: return
        self.i("s_waitcnt lgkmcnt(0)")
        self.i(f"s_lshl_b32 s3, s2, 2"); self.i(f"s_add_u32 s3, s3, {sWV}")
        self.i(f"s_lshl_b32 s3, s3, 6"); self.i(f"s_add_u32 s3, s3, {WS_DBG+base}")
        self.i("s_mov_b64 exec, 1")
        for k,(nm,r) in enumerate(self.stamps):
            self.i(f"v_mov_b32 v2, s{r}"); self.i(f"v_mov_b32 v3, {4*k}")
            self.i(f"buffer_store_dword v2, v3, {sWS}, s3 offen")
        self.i("s_mov_b64 exec, -1"); self.i("s_waitcnt vmcnt(0)")
    def emit(self, lst):
        for x in lst:
            if isinstance(x,tuple) and x[0]=='OSTORE': emit_ostore(self,x[1])
            elif isinstance(x,tuple): self.i(*x)
            else: self.i(x)
    def drain(self, q, budget):
        k=0; inexec=False
        while q and (k<budget or inexec):
            x=q.pop(0)
            txt=x[0] if isinstance(x,tuple) else x
            if txt.startswith('s_mov_b64 exec'): inexec = not txt.endswith('-1')
            if txt=='OSTORE': emit_ostore(self,x[1])
            elif isinstance(x,tuple): self.i(*x)
            else: self.i(x)
            k+=1

def prologue(a, opts):
    L=vLane
    a.c("---- prologue")
    a.stamp('rt_entry',real=True); a.stamp('entry')
    a.i("s_load_dwordx8 s[36:43], s[0:1], 0")
    a.i("s_load_dwordx8 s[44:51], s[0:1], 32")
    a.i("s_load_dwordx2 s[52:53], s[0:1], 64")
    a.i("s_cmp_ge_u32 s2, 256")
    a.i("s_cbranch_scc1 L_end")
    a.i("s_getpc_b64 s[4:5]")
    a.label("L_pc")
    a.i("v_lshlrev_b32 v2, 7, v0")
    a.raw("    v_min_u32 v2, (L_end-L_pc), v2")
    if not opts.get('nopf'): a.i("global_load_dword v255, v2, s[4:5]", tag='pf')
    a.i(f"v_and_b32 {L}, 63, v0")
    a.i("v_lshrrev_b32 v2, 6, v0")
    a.i("s_and_b32 s3, s2, 7")
    a.i(f"v_readfirstlane_b32 {sWV}, v2")
    a.i(f"s_lshr_b32 {sB}, s3, 2")
    a.i("s_lshr_b32 s4, s2, 3")
    a.i("s_and_b32 s5, s3, 3")
    a.i(f"s_lshl_b32 {sC}, s5, 2")
    a.i("s_lshr_b32 s5, s4, 3")
    a.i(f"s_add_u32 {sC}, {sC}, s5")
    a.i(f"s_and_b32 {sG}, s4, 7")
    a.i("s_lshl_b32 s5, s5, 1")
    a.i(f"s_add_u32 s6, s5, {sG}")
    a.i("s_sub_u32 s7, s6, 9")
    a.i("s_cmp_ge_u32 s6, 9")
    a.i(f"s_cselect_b32 {sROT}, s7, s6")
    if opts.get('order','own')=='own':
        a.i(f"s_add_u32 {sOFF}, s5, {sG}"); a.i(f"s_and_b32 {sOFF}, {sOFF}, 7")
        a.i("s_and_b32 s6, s3, 3"); a.i("s_lshl_b32 s6, s6, 1"); a.i(f"s_and_b32 s7, {sC}, 1"); a.i(f"s_add_u32 {sROT}, s6, s7")
        a.i(f"s_mov_b32 {sIDX}, {sOFF}")
    elif opts.get('order')=='norot': a.i(f"s_mov_b32 {sROT}, 0")
    a.i(f"s_lshl_b32 s6, {sC}, 7"); a.i(f"s_lshl_b32 s7, {sWV}, 5"); a.i("s_add_u32 s6, s6, s7")
    a.i(f"s_mul_i32 s6, s6, {XROW}")
    a.i(f"v_lshrrev_b32 v4, 3, {L}"); a.i(f"v_lshrrev_b32 v5, 4, {L}"); a.i(f"v_and_b32 v6, 7, {L}")
    a.i(f"v_mul_u32_u24 v4, {XROW}, v4")
    a.i(f"v_add_u32 v4, s6, v4")
    for i in range(4):
        a.i(f"v_add_u32 v7, {4*i}, v5"); a.i(f"v_and_b32 v7, 7, v7"); a.i(f"v_xor_b32 v7, v6, v7")
        a.i(f"v_lshl_add_u32 v7, v7, 4, v4")
        a.i(f"v_add_u32 {vXoff[i]}, {8*i*XROW-1024*i}, v7")
    a.i(f"s_mul_i32 s6, {sWV}, {16*WROW}"); a.i(f"s_mul_i32 s7, {sG}, 144"); a.i("s_add_u32 s6, s6, s7")
    a.i(f"s_add_u32 s6, s6, 1152")
    a.i(f"s_movk_i32 s7, {WROW}")
    a.i("v_mov_b32 v9, 0x40000000"); a.i("v_mov_b32 v8, 1008")
    for j in range(5):
        a.i(f"v_add_u32 v4, {64*j}, {L}")
        a.i(f"v_mul_u32_u24 v5, 52429, v4"); a.i(f"v_lshrrev_b32 v5, 20, v5")
        a.i(f"v_mul_u32_u24 v6, 20, v5"); a.i(f"v_sub_u32 v6, v4, v6")
        a.i(f"v_cmp_lt_u32 vcc, 8, v6")
        a.i(f"v_mul_lo_u32 v5, v5, s7")
        a.i(f"v_lshl_add_u32 v5, v6, 4, v5")
        a.i(f"v_cndmask_b32 v7, 0, v8, vcc")
        a.i(f"v_cmp_lt_u32 vcc, 17, v6")
        a.i(f"v_add3_u32 v5, v5, v7, s6")
        comp=1024*j if j<4 else 0
        if comp: a.i(f"v_subrev_u32 v5, {comp}, v5")
        else: a.i("s_nop 0")
        a.i(f"v_cndmask_b32 {vWoff[j]}, v5, v9, vcc")
    a.stamp('p_pre')
    a.wait(lg=0)
    a.stamp('p_karg')
    a.i(f"s_cmp_eq_u32 {sB}, 0")
    a.i("s_cselect_b32 s8, s36, s42");  a.i("s_cselect_b32 s9, s37, s43")
    a.i("s_cselect_b32 s12, s38, s44"); a.i("s_cselect_b32 s13, s39, s45")
    a.i(f"s_mov_b32 s10, {X_BYTES}"); a.i("s_mov_b32 s11, 0x00020000")
    a.i(f"s_mov_b32 s14, {W_BYTES}"); a.i("s_mov_b32 s15, 0x00020000")
    a.i("s_cselect_b32 s16, s40, s46"); a.i("s_cselect_b32 s17, s41, s47")
    a.i(f"s_mov_b32 {sCI}, {sROT}")
    a.i(f"s_mul_i32 {sWoff}, {sCI}, {64*WROW}")
    a.i(f"s_lshl_b32 {sXoff}, {sCI}, 7")

vTA='v[240:241]'
def touch_setup(a, opts):
    L=vLane
    a.i("s_lshr_b32 s4, s2, 3")
    a.i(f"v_cmp_le_u32 vcc, 18, {L}")
    a.i(f"v_mov_b32 v2, {XROW+18*128}")
    a.i(f"v_lshlrev_b32 v3, 7, {L}")
    a.i(f"v_mov_b32 v2, {WROW-18*128}")
    a.i(f"v_cndmask_b32 v2, 0, v2, vcc")
    a.i(f"v_add_u32 v3, v3, v2")
    a.i(f"s_mul_i32 s5, s4, {2*WROW}"); a.i(f"s_add_u32 s5, s5, {9*128}")
    a.i(f"v_add_u32 v3, s5, v3")
    a.i("s_and_b32 s5, s2, 3"); a.i("s_lshl_b32 s5, s5, 9"); a.i("s_lshl_b32 s6, s4, 4"); a.i("s_add_u32 s5, s5, s6")
    a.i(f"v_subrev_u32 v4, 36, {L}"); a.i(f"v_and_b32 v4, 15, v4"); a.i(f"v_add_u32 v4, s5, v4"); a.i(f"v_mul_u32_u24 v4, {XROW}, v4")
    a.i(f"v_cmp_le_u32 vcc, 36, {L}")
    a.i(f"v_mov_b32 v5, s12"); a.i("v_mov_b32 v6, s8"); a.i("v_mov_b32 v7, s13"); a.i("v_mov_b32 v8, s9")
    a.i(f"v_cndmask_b32 v3, v3, v4, vcc")
    a.i(f"v_cndmask_b32 v5, v5, v6, vcc")
    a.i(f"v_cndmask_b32 v7, v7, v8, vcc")
    a.i(f"v_mov_b32 v9, {64*WROW}"); a.i("v_mov_b32 v6, 128")
    a.i(f"v_cndmask_b32 v242, v9, v6, vcc")
    a.i(f"s_add_u32 s5, {sWV}, 1")
    a.i(f"v_mul_lo_u32 v9, v242, s5")
    a.i(f"v_add_u32 v3, v3, v9")
    a.i(f"v_add_co_u32 v240, vcc, v5, v3"); a.i("s_nop 1"); a.i(f"v_addc_co_u32 v241, vcc, 0, v7, vcc")
    a.i(f"v_lshlrev_b32 v242, 2, v242")
def touch_ins(second):
    L=[]
    if second:
        L+= ["v_add_co_u32 v240, vcc, v240, v242", "s_nop 1", "v_addc_co_u32 v241, vcc, 0, v241, vcc"]
    L+= ["s_mov_b64 exec, 0x000fffffffffffff" if False else "s_mov_b64 exec, s[6:7]", (f"global_load_dword v255, {vTA}, off",'touch'), "s_mov_b64 exec, -1"]
    return L
def touch_q(a):
    L=vLane
    a.i("s_lshr_b32 s4, s2, 3")
    a.i(f"v_mul_u32_u24 v2, 7282, {L}"); a.i("v_lshrrev_b32 v2, 16, v2")
    a.i(f"v_mul_u32_u24 v3, 9, v2"); a.i(f"v_sub_u32 v3, {L}, v3")
    a.i(f"v_min_u32 v2, 5, v2")
    a.i(f"s_min_u32 s5, {sWV}, 2"); a.i("s_mul_i32 s5, s5, 6"); a.i("s_mul_i32 s6, s4, 18"); a.i("s_add_u32 s5, s5, s6")
    a.i(f"v_add_u32 v2, s5, v2"); a.i(f"v_mul_u32_u24 v2, {WROW}, v2"); a.i(f"v_lshl_add_u32 v2, v3, 7, v2")
    a.i(f"buffer_load_dword v255, v2, {sW}, 0 offen", 'touch')
def touch_wo(a):
    L=vLane
    a.i(f"s_lshr_b32 {sT0}, s2, 3")
    a.i(f"s_min_u32 {sT1}, {sWV}, 2"); a.i(f"s_mul_i32 {sT1}, {sT1}, 54"); a.i(f"s_mul_i32 {sT0}, {sT0}, 162"); a.i(f"s_add_u32 {sT1}, {sT1}, {sT0}")
    a.i(f"v_min_u32 {vT}, 53, {L}"); a.i(f"v_add_u32 {vT}, {sT1}, {vT}"); a.i(f"v_lshlrev_b32 {vT}, 7, {vT}")
    a.i(f"buffer_load_dword v255, {vT}, {sWO}, 0 offen", 'touch')

ORDER_MODE=['own']
GOPT={}
def next_chunk_ins():
    if ORDER_MODE[0]=='own':
        return [f"s_add_u32 {sCI}, {sROT}, {sIDX}", f"s_add_u32 {sCI}, {sCI}, 1", f"s_sub_u32 {sT3}, {sCI}, 9", f"s_cmp_ge_u32 {sCI}, 9",
                f"s_cselect_b32 {sCI}, {sT3}, {sCI}", f"s_add_u32 {sIDX}, {sIDX}, 1", f"s_and_b32 {sIDX}, {sIDX}, 7",
                f"s_mul_i32 {sWoff}, {sCI}, {64*WROW}", f"s_lshl_b32 {sXoff}, {sCI}, 7"]
    return [f"s_add_u32 {sCI}, {sCI}, 1", f"s_cmp_eq_u32 {sCI}, 9", f"s_cselect_b32 {sCI}, 0, {sCI}",
            f"s_mul_i32 {sWoff}, {sCI}, {64*WROW}", f"s_lshl_b32 {sXoff}, {sCI}, 7"]

def dma_chunk_groups(slot, n):
    base=slot*SLOT; tag=f'ch{n}'; Gs=[]
    for i in range(4):
        pre=[f"s_lshl_b32 {sM0}, {sWV}, 12", f"s_add_u32 m0, {sM0}, {base+XOFF}", "s_nop 0"] if i==0 else []
        Gs.append(pre+[(f"buffer_load_dwordx4 {vXoff[i]}, {sX}, {sXoff} offen offset:{1024*i} lds", tag)])
    for j in range(4):
        pre=[f"s_mul_i32 {sM0}, {sWV}, 5120", f"s_add_u32 m0, {sM0}, {base}", "s_nop 0"] if j==0 else []
        Gs.append(pre+[(f"buffer_load_dwordx4 {vWoff[j]}, {sW}, {sWoff} offen offset:{1024*j} lds", tag)])
    Gs.append([f"s_add_u32 m0, {sM0}, {base+4096}", "s_nop 0", (f"buffer_load_dwordx4 {vWoff[4]}, {sW}, {sWoff} offen lds", tag)]+next_chunk_ins())
    return Gs

def dma_wq_groups(n):
    reg = SLOT*(1+n//3) + (n%3)*QCH
    Gs=[]
    for e in range(3):
        pre=[f"s_mul_i32 {sM0}, {sWV}, 3072", f"s_add_u32 m0, {sM0}, {reg}", "s_nop 0"] if e==0 else []
        post=next_chunk_ins() if e==2 else []
        Gs.append(pre+[(f"buffer_load_dwordx4 {vQoff[e]}, {sW}, {sWoff} offen offset:{1024*e} lds", f'wq{n}')]+post)
    return Gs

def setupA(a, opts):
    L=vLane
    a.c("---- setup A")
    a.i(f"v_bfe_u32 v4, {L}, 2, 2"); a.i(f"v_lshrrev_b32 v5, 5, {L}")
    a.i(f"v_lshl_add_u32 v4, v5, 3, v4")
    a.i(f"v_bfe_u32 v6, {L}, 4, 1"); a.i(f"v_and_b32 v7, 3, {L}")
    a.i(f"v_mul_u32_u24 v8, {WPITCH}, v4")
    a.i(f"v_lshlrev_b32 v9, 5, v6"); a.i(f"v_lshl_add_u32 v9, v7, 3, v9")
    a.i(f"v_add_u32 {vWr[0]}, v8, v9"); a.i(f"v_add_u32 {vWr[1]}, {2*SLOT}, {vWr[0]}")
    a.i(f"v_mul_u32_u24 v2, {QPITCH}, v4")
    a.i(f"v_add3_u32 {vQr}, v2, v9, 0"); a.i(f"v_add_u32 {vQr}, {SLOT}, {vQr}")
    a.i(f"v_lshl_add_u32 v9, v6, 2, v7")
    a.i(f"v_lshlrev_b32 v2, 3, v9"); a.i(f"v_add_u32 v2, 128, v2"); a.i(f"v_add_u32 v3, 128, v2")
    a.i(f"v_cmp_lt_u32 vcc, 1, v9"); a.i("s_nop 1")
    a.i(f"v_cndmask_b32 v2, v2, v3, vcc")
    a.i(f"v_add_u32 {vMx[0]}, v8, v2"); a.i(f"v_add_u32 {vMx[1]}, {2*SLOT}, {vMx[0]}")
    a.i(f"v_and_b32 v2, 31, {L}"); a.i(f"v_bfe_u32 v3, {L}, 1, 3"); a.i(f"v_xor_b32 v3, v3, v5")
    a.i(f"v_lshlrev_b32 v3, 4, v3"); a.i(f"v_lshl_add_u32 v3, v2, 7, v3")
    a.i(f"s_lshl_b32 s6, {sWV}, 12"); a.i(f"s_add_u32 s6, s6, {XOFF}")
    a.i(f"v_add_u32 v3, s6, v3")
    for t in range(4):
        a.i(f"v_xor_b32 {vXr[0][t]}, {32*t}, v3"); a.i(f"v_add_u32 {vXr[1][t]}, {2*SLOT}, {vXr[0][t]}")

class Rec:
    def __init__(self): self.l=[]
    def i(self, t, tag=None, cond=False): self.l.append((t,tag,cond) if tag or cond else t)
    def c(self, s): pass

def setupB0(a, opts):
    a.i("s_mov_b32 s20, s48"); a.i("s_mov_b32 s21, s49"); a.i(f"s_mov_b32 s22, {OUT_BYTES}"); a.i("s_mov_b32 s23, 0x00020000")
    a.i("s_mov_b32 s24, s52"); a.i("s_mov_b32 s25, s53"); a.i(f"s_mov_b32 s26, {WS_BYTES}"); a.i("s_mov_b32 s27, 0x00020000")
    a.i("s_mov_b32 s28, s50"); a.i("s_mov_b32 s29, s51"); a.i("s_mov_b32 s30, 256"); a.i("s_mov_b32 s31, 0x00020000")
    a.i(f"s_mov_b32 s18, {WO_BYTES}"); a.i("s_mov_b32 s19, 0x00020000")
    a.i(f"s_or_b32 s3, s2, {sWV}"); a.i("s_cmp_lg_u32 s3, 0"); a.i("s_cbranch_scc1 L_nononce")
    a.i("s_memrealtime s[4:5]"); a.i("s_waitcnt lgkmcnt(0)"); a.i("s_or_b32 s4, s4, 1")
    a.i("v_mov_b32 v2, s4"); a.i("v_mov_b32 v3, s5"); a.i("v_mov_b32 v4, 0")
    a.i("s_mov_b64 exec, 1")
    a.i(f"buffer_store_dwordx2 v[2:3], v4, {sDBG}, 0 offen sc1", cond=True)
    a.i("s_mov_b64 exec, -1")
    a.label("L_nononce"); a.lg_clear()

def setupB(a, opts):
    L=vLane
    a.c("---- setup B")
    a.i("s_mov_b32 s54, 0x3ffff"); a.i("s_mov_b32 s55, 0x3ffff"); a.i("s_not_b64 s[52:53], s[54:55]"); a.i("s_mov_b32 s56, -1"); a.i("s_mov_b32 s57, 0")
    a.i(f"s_mov_b32 {sSC}, {f2u(CSCALE):#x}")
    a.i(f"s_getreg_b32 {sXCC}, hwreg(HW_REG_XCC_ID, 0, 4)")
    a.i(f"s_mul_i32 s6, {sWV}, {16*WROW}"); a.i(f"s_mul_i32 s7, {sG}, 144"); a.i("s_add_u32 s6, s6, s7")
    a.i(f"s_movk_i32 s7, {WROW}"); a.i("v_mov_b32 v9, 0x40000000")
    for e in range(3):
        a.i(f"v_add_u32 v4, {64*e}, {L}")
        a.i(f"v_mul_u32_u24 v5, 21846, v4"); a.i(f"v_lshrrev_b32 v5, 18, v5")
        a.i(f"v_mul_u32_u24 v6, 12, v5"); a.i(f"v_sub_u32 v6, v4, v6")
        a.i(f"v_cmp_lt_u32 vcc, 8, v6")
        a.i(f"v_mul_lo_u32 v5, v5, s7"); a.i(f"v_lshl_add_u32 v5, v6, 4, v5")
        a.i(f"v_add_u32 v5, s6, v5"); a.i(f"v_subrev_u32 v5, {1024*e}, v5")
        a.i(f"v_cndmask_b32 {vQoff[e]}, v5, v9, vcc")
    a.i(f"v_and_b32 v2, 31, {L}"); a.i(f"v_lshrrev_b32 v5, 5, {L}")
    a.i(f"s_mul_i32 s6, {sWV}, {KBLK}"); a.i(f"s_add_u32 s7, s6, {KB0}"); a.i(f"s_cmp_eq_u32 {sWV}, 3"); a.i(f"s_cselect_b32 s7, {KB3}, s7")
    a.i(f"v_mul_u32_u24 v3, {KP}, v2"); a.i(f"v_lshl_add_u32 v3, v5, 3, v3")
    a.i(f"v_add_u32 {vKw}, s7, v3"); a.i(f"s_add_u32 s6, s6, {QBASE}"); a.i(f"v_add_u32 {vQw}, s6, v3")
    a.i(f"s_mul_i32 s6, {sWV}, {VB}"); a.i(f"s_add_u32 s6, s6, {VBASE}")
    a.i(f"v_mul_u32_u24 v3, {VR}, v5"); a.i(f"v_lshl_add_u32 v3, v2, 4, v3"); a.i(f"v_add_u32 {vVw}, s6, v3")
    a.i(f"v_bfe_u32 v3, {L}, 2, 1"); a.i(f"v_mul_u32_u24 v3, {VJ}, v3"); a.i(f"v_bfe_u32 v4, {L}, 1, 1"); a.i(f"v_mul_u32_u24 v4, {VR}, v4")
    a.i(f"v_add_u32 v3, v3, v4"); a.i(f"v_and_b32 v4, 1, {L}"); a.i(f"v_lshl_add_u32 v3, v4, 4, v3"); a.i(f"v_add_u32 v3, {72*16}, v3")
    a.i(f"v_add_u32 {vCw}, s6, v3")
    a.i(f"v_lshrrev_b32 v3, 4, v2"); a.i(f"v_mul_u32_u24 v3, {VJ}, v3"); a.i(f"v_bfe_u32 v4, v2, 2, 1")
    a.i(f"v_mul_u32_u24 v4, {VR}, v4"); a.i(f"v_add_u32 v3, v3, v4"); a.i(f"v_and_b32 v4, 3, v2")
    a.i(f"v_bfe_u32 v6, v2, 3, 1"); a.i(f"v_lshl_add_u32 v4, v6, 2, v4"); a.i(f"v_lshl_add_u32 v3, v4, 1, v3")
    a.i(f"v_lshl_add_u32 v3, v5, 6, v3"); a.i(f"v_add_u32 v3, {64*16}, v3"); a.i(f"v_add_u32 {vVt}, s6, v3")
    a.i(f"s_mul_i32 s6, {sWV}, 36"); a.i(f"v_mul_u32_u24 v3, {KP}, v2"); a.i(f"v_add_u32 v3, s6, v3")
    a.i(f"v_lshl_add_u32 {vKr}, v5, 4, v3")
    a.i(f"v_add_u32 {vKl}, 32, v3")
    a.i(f"s_mul_i32 s6, {sWV}, 18"); a.i(f"v_add_u32 v3, s6, v2"); a.i(f"v_and_b32 v4, 27, v2")
    a.i(f"v_cmp_eq_u32 vcc, 18, v4"); a.i(f"v_mov_b32 v4, 73"); a.i(f"v_mov_b32 v6, 72"); a.i(f"v_cndmask_b32 v4, v4, v6, vcc")
    a.i(f"v_cmp_gt_u32 vcc, 18, v2"); a.i("s_nop 1"); a.i(f"v_cndmask_b32 v3, v4, v3, vcc")
    a.i(f"v_lshlrev_b32 v3, 4, v3"); a.i(f"v_mul_u32_u24 v4, {VR}, v5"); a.i(f"v_add_u32 {vVr}, v3, v4")
    a.i(f"v_lshlrev_b32 {vPk}, 4, {L}"); a.i(f"v_lshlrev_b32 {vPl}, 2, v2"); a.i(f"v_add_u32 {vPl}, 1024, {vPl}")
    a.i(f"v_mul_u32_u24 v3, 288, v5"); a.i(f"v_lshl_add_u32 v3, v2, 4, v3"); a.i(f"v_add_u32 {vPv}, 1152, v3")
    a.i(f"s_lshl_b32 s6, {sWV}, 2"); a.i(f"v_lshrrev_b32 v3, 3, v2"); a.i(f"v_mul_u32_u24 v3, {OUTROW}, v3")
    a.i(f"v_and_b32 v4, 7, v2"); a.i(f"v_lshl_add_u32 v3, v4, 4, v3"); a.i(f"v_add_u32 {vOl}, s6, v3")
    a.i(f"v_and_b32 v3, 27, v2"); a.i(f"v_cmp_eq_u32 vcc, 18, v3"); a.i(f"v_mov_b32 v4, 0x3f803f80"); a.i("s_nop 0")
    a.i(f"v_cndmask_b32 {vVC}, 0, v4, vcc")
    a.i(f"s_lshl_b32 s6, {sB}, 3"); a.i(f"s_add_u32 s6, s6, {sG}"); a.i(f"s_lshl_b32 s6, s6, 4"); a.i(f"s_add_u32 s6, s6, {sC}")
    a.i(f"s_mul_i32 {sKVme}, s6, {SLOT}"); a.i(f"s_mul_i32 s7, {sWV}, 2304"); a.i(f"s_add_u32 {sKVme}, {sKVme}, s7")
    a.i(f"s_sub_u32 {sKV1}, {sKVme}, {SLOT}"); a.i(f"s_sub_u32 {sKV2}, {sKVme}, {2*SLOT}")
    a.i(f"s_cmp_ge_u32 {sC}, 1"); a.i(f"s_cselect_b32 {sKV1}, {sKV1}, 0x70000000")
    a.i(f"s_cmp_ge_u32 {sC}, 2"); a.i(f"s_cselect_b32 {sKV2}, {sKV2}, 0x70000000")
    a.i(f"s_lshl_b32 s6, s6, 2"); a.i(f"s_add_u32 s6, s6, {sWV}"); a.i(f"s_lshl_b32 s6, s6, 7")
    a.i(f"s_add_u32 {sFKV}, s6, {WS_FKV}")
    a.i(f"s_cmp_ge_u32 {sC}, 1"); a.i(f"s_cselect_b32 s6, -1, 0"); a.i(f"s_cmp_ge_u32 {sC}, 2"); a.i(f"s_cselect_b32 s7, -1, 0")
    a.i(f"v_and_b32 v2, s6, {vVC}"); a.i(f"v_and_b32 v3, s7, {vVC}"); a.i(f"v_mov_b32 v4, 0x3f803f80")
    a.i(f"v_and_b32 v6, s7, v4"); a.i(f"v_and_b32 v4, s6, v4")
    for hb in range(8):
        base=HALO+14*hb
        a.i(f"v_accvgpr_write_b32 a{base+5}, {'v6' if hb<4 else 'v4'}")
        for r in range(8): a.i(f"v_accvgpr_write_b32 a{base+6+r}, {'v3' if hb<4 else 'v2'}")
    a.i(f"v_and_b32 v2, 31, {L}"); a.i(f"v_lshlrev_b32 v3, 2, v5"); a.i(f"v_sub_u32 v2, v2, v3")
    a.i(f"v_mov_b32 v6, 0xffff"); a.i(f"v_mov_b32 v7, 0xffff0000")
    for u in range(8):
        r0=2*u; k0=(r0&3)+8*(r0>>2)
        a.i(f"v_cmp_le_i32 vcc, {k0}, v2"); a.i(f"v_cmp_le_i32 s[4:5], {k0+1}, v2"); a.i("s_nop 0")
        a.i(f"v_cndmask_b32 v3, 0, v6, vcc"); a.i(f"v_cndmask_b32 v4, 0, v7, s[4:5]")
        a.i(f"v_or_b32 v{MASKD+u}, v3, v4"); a.i(f"v_not_b32 v{MASKF+u}, v{MASKD+u}")
    a.i(f"s_lshl_b32 s6, {sC}, 7"); a.i(f"s_lshl_b32 s7, {sG}, 2"); a.i("s_add_u32 s6, s6, s7")
    a.i(f"s_mul_i32 s6, s6, {OUTROW}"); a.i(f"s_mul_i32 s7, {sB}, 1152"); a.i("s_add_u32 s6, s6, s7")
    a.i(f"s_add_u32 {sOL}, s6, 1024"); a.i(f"s_mul_i32 s7, {sWV}, {OUTROW}"); a.i(f"s_add_u32 {sOM}, s6, s7")
    a.i(f"s_lshr_b32 {sRH}, {sG}, 2"); a.i(f"s_and_b32 {sNQ}, {sG}, 3")
    a.i(f"s_lshl_b32 s7, {sRH}, 1"); a.i(f"s_lshr_b32 s3, {sWV}, 1"); a.i("s_add_u32 s3, s3, s7"); a.i("s_lshl_b32 s3, s3, 5")
    a.i(f"s_lshl_b32 s7, {sC}, 7"); a.i("s_add_u32 s3, s3, s7"); a.i(f"s_mul_i32 {sPOM}, s3, {OUTROW}")
    a.i(f"s_mul_i32 s7, {sB}, 1152"); a.i(f"s_add_u32 {sPOM}, {sPOM}, s7"); a.i(f"s_add_u32 {sPOL}, {sPOM}, 1024")
    a.i(f"s_lshl_b32 s6, {sC}, 7"); a.i(f"s_lshl_b32 s7, {sRH}, 6"); a.i("s_add_u32 s6, s6, s7")
    a.i(f"s_lshl_b32 s7, {sWV}, 4"); a.i("s_add_u32 s6, s6, s7"); a.i(f"s_mul_i32 {sOUTB}, s6, {OUTROW}")
    a.i(f"s_mul_i32 s7, {sB}, 1152"); a.i(f"s_add_u32 {sOUTB}, {sOUTB}, s7")
    a.i(f"s_mul_i32 s7, {sNQ}, 288"); a.i(f"s_add_u32 {sOUTB}, {sOUTB}, s7")
    a.i(f"s_lshl_b32 s6, {sB}, 4"); a.i(f"s_add_u32 s6, s6, {sC}"); a.i(f"s_lshl_b32 {sFO}, s6, 12")
    a.i(f"s_add_u32 {sFO}, {sFO}, {WS_FO}")
    a.i(f"v_mov_b32 v252, {f2u(2.0**-40):#x}"); a.i(f"v_mov_b32 v253, {f2u(2.0**40):#x}")
    a.i(f"s_mov_b64 {sBAD}, 0")

def wq_reads(tau):
    n,t=divmod(tau,4); b=tau%2
    off=(n%3)*QCH+16*QPITCH*t
    return [[(f"ds_read_b64_tr_b16 {QFh(b,f,h)}, {vQr} offset:{off+4*QPITCH*h+64*f}", f'q{tau}_{f}') for h in range(2)] for f in range(3)]

def drain_side(a, side, n):
    k=0; last=''
    while side and (k<n or last.startswith('s_cmp') or (side[0] if isinstance(side[0],str) else side[0][0]).startswith('s_cselect')):
        x=side.pop(0)
        if isinstance(x,tuple): a.i(*x); last=x[0]
        else: a.i(x); last=x
        k+=1

def phase1a(a, opts, pend):
    a.c("---- phase 1a")
    def reads(tau):
        n,t=divmod(tau,4); slot=n%4; hi=slot>=2; base=(slot%2)*SLOT; b=tau%2
        R=[[(f"ds_read_b128 {XF(tau)}, {vXr[hi][t]} offset:{base}", f'x{tau}')] +
           [(f"ds_read_b64_tr_b16 {WFh(b,0,h)}, {vWr[hi]} offset:{base+5120*t+1280*h}", f'w{tau}_0') for h in range(2)]]
        for f,co in ((1,64),(2,144),(3,208)):
            R.append([(f"ds_read_b64_tr_b16 {WFh(b,f,h)}, {vWr[hi]} offset:{base+5120*t+1280*h+co}", f'w{tau}_{f}') for h in range(2)])
        R.append([(f"ds_read_b64_tr_b16 {WFh(b,4,h)}, {vMx[hi]} offset:{base+5120*t+1280*h}", f'w{tau}_4') for h in range(2)])
        return R
    a.stamp('setup_done')
    a.wait(vm='ch0'); a.i("s_barrier")
    a.stamp('ch0_landed')
    for grp in reads(0): a.emit(grp)
    names=['K0','K1','V0','V1','MX']
    side=opts.get('_side',[])
    every=opts.get('dma_every',2)
    slotcnt=0
    for tau in range(36):
        n,t=divmod(tau,4); b=tau%2
        if t==0: a.stamp(f'c{n}')
        if t==3:
            a.wait(vm=f'ch{n+1}' if n<8 else 'wq0')
            a.i("s_barrier")
            if n<=5:
                pend += dma_chunk_groups((n+3)%4, n+3)
                if (n==5 and opts.get('wotouch',2)==1) or (n==0 and opts.get('wotouch',2)==3) or (n==2 and opts.get('wotouch',2)==4):
                    rec=Rec(); touch_wo(rec); pend.append(rec.l)
            elif n==6:
                pend.append([f"s_mov_b32 {sCI}, {sROT}", f"s_mul_i32 {sWoff}, {sCI}, {64*WROW}", f"s_mov_b32 {sIDX}, {sOFF}"])
                for q in range(3): pend += dma_wq_groups(q)
            elif n==7:
                for q in range(3,6): pend += dma_wq_groups(q)
            elif n==8:
                for q in range(6,9): pend += dma_wq_groups(q)
        R = reads(tau+1) if tau<35 else wq_reads(0)
        for m,nm in enumerate(names):
            a.wait(lg=[f'w{tau}_{m}']+([f'x{tau}'] if m==0 else []))
            acc=rng('v',ACC[nm],16); c='0' if tau==0 else acc
            if nm in ('V0','V1'): a.i(f"v_mfma_f32_32x32x16_bf16 {acc}, {XF(tau)}, {WF(b,m)}, {c}")
            else: a.i(f"v_mfma_f32_32x32x16_bf16 {acc}, {WF(b,m)}, {XF(tau)}, {c}")
            if m<len(R): a.emit(R[m])
            slotcnt+=1
            if pend and slotcnt%every==0: a.emit(pend.pop(0))
            elif side: drain_side(a, side, opts.get('side_n',4))
        if tau==30:
            a.i(f"v_mov_b32 {vT}, 0")
            a.i(f"buffer_load_dwordx2 {vNON}, {vT}, {sDBG}, 0 offen sc1", tag='nonce')
    assert not side, len(side)
    return pend

def epi1a_list():
    A=[]; T=76
    for ti,nm in enumerate(('K0','K1')):
        base=ACC[nm]
        for i in range(4):
            t0=T+2*(i%2)
            A+= [f"v_cvt_pk_bf16_f32 v{t0}, v{base+4*i}, v{base+4*i+1}", f"v_cvt_pk_bf16_f32 v{t0+1}, v{base+4*i+2}, v{base+4*i+3}",
                 (f"ds_write2_b32 {vKw}, v{t0}, v{t0+1} offset0:{16*ti+4*i} offset1:{16*ti+4*i+1}",'e1w')]
    for ti,nm in enumerate(('V0','V1')):
        base=ACC[nm]
        for j in range(2):
            t0=T+4+4*j
            for u in range(4): A.append(f"v_cvt_pk_bf16_f32 v{t0+u}, v{base+8*j+2*u}, v{base+8*j+2*u+1}")
            A.append((f"ds_write_b128 {vVw}, v[{t0}:{t0+3}] offset:{VJ*j+512*ti}",'e1w'))
    base=ACC['MX']; t0=T+12
    A+= [f"v_cvt_pk_bf16_f32 v{t0}, v{base}, v{base+1}", f"v_cvt_pk_bf16_f32 v{t0+1}, v{base+2}, v{base+3}",
         (f"ds_write2_b32 {vKw}, v{t0}, v{t0+1} offset0:32 offset1:33",'e1w'),
         f"v_cvt_pk_bf16_f32 v{t0+2}, v{base+4}, v{base+5}", f"v_cvt_pk_bf16_f32 v{t0+3}, v{base+6}, v{base+7}",
         (f"ds_write_b16 {vVt}, v{t0+2}",'e1w'), (f"ds_write_b16_d16_hi {vVt}, v{t0+2} offset:16",'e1w'),
         (f"ds_write_b16 {vVt}, v{t0+3} offset:32",'e1w'), (f"ds_write_b16_d16_hi {vVt}, v{t0+3} offset:48",'e1w')]
    A+= [f"v_and_b32 v{t0}, 1, {vLane}", f"v_cmp_eq_u32 vcc, 0, v{t0}", f"v_mov_b32 v{t0+1}, 0x3f803f80", "s_nop 0",
         f"v_cndmask_b32 v{t0}, 0, v{t0+1}, vcc", f"v_mov_b32 v{t0+1}, v{t0}", f"v_mov_b32 v{t0+2}, v{t0}", f"v_mov_b32 v{t0+3}, v{t0}",
         "s_mov_b64 exec, 0xff", (f"ds_write_b128 {vCw}, v[{t0}:{t0+3}]",'e1w'), "s_mov_b64 exec, -1"]
    return A

def own_presets():
    L=[f"v_mov_b32 v91, 0x3f803f80"]
    for bt in range(4): L.append(f"v_mov_b32 v{OWN+14*bt+5}, v91")
    return L
def own_reads():
    L=[]
    for bt in range(4):
        base=OWN+14*bt
        kb = KB0+KBLK*bt if bt<3 else KB3
        L.append(f"v_add_u32 v88, {kb}, {vKr}"); L.append(f"v_add_u32 v89, {kb}, {vKl}")
        L.append((f"ds_read2_b32 v[{base}:{base+1}], v88 offset0:0 offset1:1",'own'))
        L.append((f"ds_read2_b32 v[{base+2}:{base+3}], v88 offset0:2 offset1:3",'own'))
        L.append((f"ds_read_b32 v{base+4}, v89",'own'))
    for bt in range(4):
        base=OWN+14*bt
        for j in range(2): L.append((f"ds_read_b128 v[{base+6+4*j}:{base+9+4*j}], {vVr} offset:{VB*bt+VJ*j}",'own'))
    return L
def own_store_groups(mod='sc1'):
    Gs=[]
    for bt in range(4):
        base=OWN+14*bt; tag='pubA' if bt<2 else 'pubB'
        Gs.append([f"s_add_u32 {sT0}, {sKVme}, {9216*bt}", (f"buffer_store_dwordx4 v[{base}:{base+3}], {vPk}, {sWS}, {sT0} offen {mod}",tag)])
        Gs.append([f"s_add_u32 {sT0}, {sKVme}, {9216*bt}", f"s_mov_b64 exec, {sLO}", (f"buffer_store_dword v{base+4}, {vPl}, {sWS}, {sT0} offen {mod}",tag), "s_mov_b64 exec, -1"])
        for j in range(2):
            Gs.append([f"s_add_u32 {sT0}, {sKVme}, {9216*bt}", f"s_mov_b64 exec, {sVM}", (f"buffer_store_dwordx4 v[{base+6+4*j}:{base+9+4*j}], {vPv}, {sWS}, {sT0} offen offset:{576*j} {mod}",tag), "s_mov_b64 exec, -1"])
    return Gs

def flag_store_ins(cnt):
    return [f"s_add_u32 {sT1}, {sNONh}, {cnt}", f"v_mov_b32 v2, {sNONl}", f"v_mov_b32 v3, {sT1}", f"v_mov_b32 v4, 0",
            "s_mov_b64 exec, 1", (f"buffer_store_dwordx2 v[2:3], v4, {sWS}, {sFKV} offen sc1", f'kvflag{cnt}'), "s_mov_b64 exec, -1"]

def xt_base():
    return [f"s_lshl_b32 {sT0}, {sB}, 4", f"s_add_u32 {sT0}, {sT0}, {sC}", f"s_lshl_b32 {sT0}, {sT0}, 10", f"s_add_u32 {sT0}, {sT0}, {WS_XT}"]
def xt_store():
    return xt_base()+[f"s_add_u32 {sLFH}, {sXCC}, 1", f"s_lshl_b32 {sLFH}, {sLFH}, 8", f"s_add_u32 {sLFH}, {sLFH}, {sNONh}",
            f"s_lshl_b32 {sT1}, {sG}, 7", f"s_add_u32 {sT0}, {sT0}, {sT1}",
            f"v_mov_b32 v2, {sNONl}", f"v_mov_b32 v3, {sLFH}", f"v_mov_b32 v4, 0",
            "s_mov_b64 exec, 1", (f"buffer_store_dwordx2 v[2:3], v4, {sWS}, {sT0} offen sc1",'xt'), "s_mov_b64 exec, -1"]
def xt_load():
    return xt_base()+[f"v_lshlrev_b32 v2, 7, {vLane}", "s_mov_b64 exec, 0xff",
            (f"buffer_load_dwordx2 v[8:9], v2, {sWS}, {sT0} offen sc1",'xtl'), "s_mov_b64 exec, -1"]
def xt_check(a):
    a.wait(vm='xtl')
    a.i("s_mov_b64 exec, 0xff")
    a.i(f"v_cmp_eq_u32 vcc, {sNONl}, v8"); a.i(f"v_cmp_eq_u32 s[4:5], {sLFH}, v9")
    a.i("s_mov_b64 exec, -1")
    a.i("s_and_b64 s[4:5], s[4:5], vcc"); a.i("s_and_b32 s4, s4, 0xff"); a.i("s_cmp_eq_u32 s4, 0xff")
    a.i(f"s_cselect_b32 {sLOC}, 1, 0")
    if GOPT.get('force_remote'): a.i(f"s_mov_b32 {sLOC}, 0")

def wo_group_for(kbase):
    setup=[f"s_add_u32 {sT1}, {sWV}, {kbase}", f"s_mul_i32 {sT2}, {sT1}, 41472", f"s_mul_i32 {sT3}, {sT1}, 9216"]
    return wo8_groups(setup)

def phase1b(a, pend, opts):
    a.c("---- phase 1b")
    a.stamp('1a_end')
    q=[]; stores=[]; wo=[]
    E2=opts.get('e2',4)
    FAST=opts.get('fastA',1)
    sched={}
    tt=E2+1
    for g in range(16):
        sched.setdefault(tt,[]).append(g)
        tt += 1 if (g<7 and FAST) else 2
    FLAGA=opts.get('flagA',24)
    woaddr=[f"v_mov_b32 {d_}, {s_}" for d_,s_ in zip(vWOm+vWOl+vWOt,vWOtmp)]+wo8_setup()
    for tau in range(36):
        n,t=divmod(tau,4); b=tau%2
        a.stamp(f'b{tau}_')
        if tau==1:
            a.i("s_barrier"); q+=epi1a_list()
        if tau==E2:
            a.drain(q,1000); a.wait(lg=0); a.i("s_barrier")
            a.emit(own_reads())
        if tau==E2+1:
            a.wait(lg='own')
            a.stamp('pub_start')
            stores=own_store_groups()
            q+=woaddr
        if tau==E2+3:
            a.i("s_barrier")
        if tau==E2+6: wo+=wo_group_for(0); q+=own_presets()
        if tau==15: wo+=wo_group_for(4)
        if tau==27: wo+=wo_group_for(8)
        if tau==FLAGA:
            a.wait(vm='pubA'); get_nonce(a); a.emit(flag_store_ins(2)); a.stamp('flagA')
            if opts.get('olocal'): a.emit(xt_store())
        if t==3 and tau<35:
            a.wait(vm=f'wq{n+1}')
            a.i("s_barrier")
            if (n+1)%3==0: a.i(f"v_add_u32 {vQr}, {SLOT}, {vQr}")
        R = wq_reads(tau+1) if tau<35 else []
        for m,nm in enumerate(('Q0','Q1','Q2')):
            a.wait(lg=[f'q{tau}_{m}'])
            acc=rng('v',ACC[nm],16); c='0' if tau==0 else acc
            a.i(f"v_mfma_f32_32x32x16_bf16 {acc}, {QF(b,m)}, {XF(tau)}, {c}")
            if m<len(R): a.emit(R[m])
            if m==0 and tau in sched:
                for g in sched[tau]:
                    if opts.get('nopub'):
                        for x in stores[g]:
                            if isinstance(x,tuple): a.vm.append(x[1])
                    else: a.emit(stores[g])
            elif q and tau<E2: a.drain(q,opts.get('epi_rate',7))
            elif pend: a.emit(pend.pop(0))
            elif q: drain_side2(a,q,4)
            elif opts.get('nowo1b',1): pass
            elif wo and m==2: a.emit(wo.pop(0))
            elif wo and m==1 and opts.get('wo2',1): a.emit(wo.pop(0))
    assert not pend and not q, (len(pend),len(q))
    for tt_ in sorted(sched):
        if tt_>35:
            for g in sched[tt_]: a.emit(stores[g])
    opts['_wo_left']=wo
    a.stamp('1b_end')
    a.emit(kv_flag_load(0))
    a.nop(14)
    T=76
    a.i(f"v_mov_b32 v90, {sSC}"); a.i(f"v_mov_b32 v91, {sSC}")
    for ti,nm in enumerate(('Q0','Q1','Q2')):
        base=ACC[nm]; ni=4 if ti<2 else 1
        for r in range(0,4*ni,2): a.i(f"v_pk_mul_f32 v[{base+r}:{base+r+1}], v[90:91], v[{base+r}:{base+r+1}]")
    for ti,nm in enumerate(('Q0','Q1','Q2')):
        base=ACC[nm]; ni=4 if ti<2 else 1
        for i in range(ni):
            t0=T+2*((ti*4+i)%8)
            a.i(f"v_cvt_pk_bf16_f32 v{t0}, v{base+4*i}, v{base+4*i+1}"); a.i(f"v_cvt_pk_bf16_f32 v{t0+1}, v{base+4*i+2}, v{base+4*i+3}")
            a.i(f"ds_write2_b32 {vQw}, v{t0}, v{t0+1} offset0:{16*ti+4*i} offset1:{16*ti+4*i+1}",'e2w')
    a.i(f"v_mov_b32 {vT}, 0")
    for i in range(4):
        for r in range(4,8): a.i(f"v_accvgpr_write_b32 a{8*i+r}, {vT}")
    a.wait(lg=0); a.i("s_barrier")
    for i in range(4):
        a.i(f"v_add_u32 v88, {QBASE+KBLK*i}, {vKr}")
        a.i(f"ds_read2_b32 a[{8*i}:{8*i+1}], v88 offset0:0 offset1:1",'qf')
        a.i(f"ds_read2_b32 a[{8*i+2}:{8*i+3}], v88 offset0:2 offset1:3",'qf')
    a.i(f"s_mov_b64 exec, {sLO}")
    for i in range(4):
        a.i(f"v_add_u32 v89, {QBASE+KBLK*i}, {vKl}")
        a.i(f"ds_read_b32 a{8*i+4}, v89",'qf')
    a.i("s_mov_b64 exec, -1")
    a.wait(lg='qf')
    a.i("s_barrier")
    a.stamp('q_ready')

def drain_side2(a, q, n):
    k=0; inexec=False; last=''
    while q and (k<n or inexec or last.startswith('s_cmp') or (q[0] if isinstance(q[0],str) else q[0][0]).startswith('s_cselect')):
        x=q.pop(0)
        txt=x[0] if isinstance(x,tuple) else x
        if txt.startswith('s_mov_b64 exec'): inexec = not txt.endswith('-1')
        if isinstance(x,tuple): a.i(*x)
        else: a.i(x)
        last=txt; k+=1

vFL='v[6:7]'; vFA='v5'
def kv_flag_load(rnd):
    L=[]
    if rnd==0:
        L+= [f"s_cmp_ge_u32 {sC}, 2", f"s_cselect_b32 {sT1}, 2, 1", f"s_lshl_b32 {sT1}, {sT1}, 9",
             f"s_sub_u32 {sT0}, {sFKV}, 512", f"s_sub_u32 {sT1}, {sFKV}, {sT1}",
             f"s_cmp_eq_u32 {sC}, 0", f"s_cselect_b32 {sT0}, {sFKV}, {sT0}", f"s_cselect_b32 {sT1}, {sFKV}, {sT1}",
             f"v_mov_b32 v8, {sT0}", f"v_mov_b32 v9, {sT1}", f"v_cmp_eq_u32 vcc, 0, {vLane}", "s_nop 1",
             f"v_cndmask_b32 {vFA}, v9, v8, vcc"]
    L+= ["s_mov_b64 exec, 3", (f"buffer_load_dwordx2 {vFL}, {vFA}, {sWS}, 0 offen sc1", f'fl{rnd}'), "s_mov_b64 exec, -1"]
    return L

def kv_flag_check(a, rnd, need):
    a.wait(vm=f'fl{rnd}')
    a.i(f"s_mov_b32 {sCNT}, 200000")
    a.label(f"L_chk{rnd}")
    a.i(f"s_cmp_eq_u32 {sC}, 0"); a.i(f"s_cbranch_scc1 L_ok{rnd}")
    a.i("s_mov_b64 exec, 3")
    a.i(f"v_subrev_u32 v8, {sNONh}, v7")
    a.i(f"v_cmp_eq_u32 vcc, {sNONl}, v6")
    a.i(f"v_cmp_le_u32 s[4:5], {need}, v8")
    a.i(f"v_cmp_ge_u32 s[6:7], 4, v8")
    a.i("s_mov_b64 exec, -1")
    a.i("s_and_b64 s[4:5], s[4:5], vcc"); a.i("s_and_b64 s[4:5], s[4:5], s[6:7]"); a.i("s_and_b32 s4, s4, 3")
    a.i("s_cmp_eq_u32 s4, 3"); a.i(f"s_cbranch_scc1 L_ok{rnd}")
    a.i("s_mov_b64 exec, 3")
    a.i(f"buffer_load_dwordx2 {vFL}, {vFA}, {sWS}, 0 offen sc1", cond=True)
    a.i("s_mov_b64 exec, -1")
    a.i("s_waitcnt vmcnt(0)")
    a.i(f"s_sub_u32 {sCNT}, {sCNT}, 1"); a.i(f"s_cmp_lg_u32 {sCNT}, 0"); a.i(f"s_cbranch_scc1 L_chk{rnd}")
    a.label(f"L_ok{rnd}")
    a.stamp(f'chk{rnd}')

def wo_addr(a):
    L=vLane
    a.i(f"s_mul_i32 s6, {sNQ}, 288")
    a.i(f"v_lshrrev_b32 v4, 4, {L}")
    a.i(f"v_and_b32 v5, 15, {L}")
    for par in range(2):
        a.i(f"v_add_u32 v6, {4*par}, v4"); a.i(f"v_lshlrev_b32 v6, 1, v6"); a.i(f"v_xor_b32 v6, v5, v6")
        a.i(f"v_lshlrev_b32 v6, 4, v6"); a.i(f"v_add_u32 v6, s6, v6")
        a.i(f"v_mul_u32_u24 v7, {XROW}, v4"); a.i(f"v_add_u32 {vWOm[par]}, v6, v7")
        a.i(f"v_lshrrev_b32 v7, 1, v4"); a.i(f"v_mul_u32_u24 v7, 18, v7"); a.i(f"v_and_b32 v8, 1, v4"); a.i(f"v_add_u32 v7, v7, v8")
        a.i(f"v_mul_u32_u24 v7, {XROW}, v7"); a.i(f"v_add_u32 {vWOl[par]}, v6, v7")
    a.i(f"v_lshrrev_b32 v4, 1, {L}")
    a.i(f"v_and_b32 v5, 1, {L}"); a.i(f"v_lshlrev_b32 v5, 4, v5"); a.i(f"v_add_u32 v5, 256, v5"); a.i(f"v_add_u32 v5, s6, v5")
    a.i(f"v_bfe_u32 v6, v4, 2, 2")
    a.i(f"v_and_b32 v7, 3, v4"); a.i(f"v_lshrrev_b32 v8, 4, v4")
    a.i(f"v_lshrrev_b32 v2, 1, v6"); a.i(f"v_mul_u32_u24 v2, 18, v2"); a.i(f"v_add_u32 v2, v2, v7"); a.i(f"v_lshl_add_u32 v2, v8, 3, v2")
    a.i(f"v_and_b32 v3, 1, v6"); a.i(f"v_lshl_add_u32 v2, v3, 2, v2"); a.i(f"v_mul_u32_u24 v2, {XROW}, v2"); a.i(f"v_add_u32 {vWOt[0]}, v2, v5")
    a.i(f"v_lshl_add_u32 v7, v8, 2, v7")
    a.i(f"v_lshrrev_b32 v2, 1, v7"); a.i(f"v_lshl_add_u32 v2, v6, 2, v2"); a.i(f"v_mul_u32_u24 v2, 18, v2")
    a.i(f"v_and_b32 v3, 1, v7"); a.i(f"v_add3_u32 v2, v2, v3, 16"); a.i(f"v_mul_u32_u24 v2, {XROW}, v2"); a.i(f"v_add_u32 {vWOt[1]}, v2, v5")

vWO8=[f'v{22+e}' for e in range(8)]
def wo8_setup():
    L=[]
    for e in range(8):
        const=(((e&3)>>1)*18+8*(e>>2)+4*(e&1))*XROW-1024*(e%4)
        if const>=0: L.append(f"v_add_u32 {vWO8[e]}, {const}, {vWOm[e&1]}")
        else: L.append(f"v_subrev_u32 {vWO8[e]}, {-const}, {vWOm[e&1]}")
    return L
def wo8_groups(uniform_setup):
    Gs=[]
    for e in range(8):
        pre = list(uniform_setup) if e==0 else []
        if e%4==0: pre += [f"s_add_u32 m0, {sT3}, {4096*(e//4)}", "s_nop 0"]
        Gs.append(pre+[(f"buffer_load_dwordx4 {vWO8[e]}, {sWO}, {sT2} offen offset:{1024*(e%4)} lds",'wo')])
    Gs.append([f"s_add_u32 m0, {sT3}, 8192", "s_nop 0", (f"buffer_load_dwordx4 {vWOt[0]}, {sWO}, {sT2} offen lds",'wo')])
    return Gs

def wo_dma_groups(kap, slot, uniform_setup):
    Gs=[]
    left = kap>=16
    for e in range(8):
        if left: const=((4*(e&3)+2*(e>>2))*18+16)*XROW
        else: const=(((e&3)>>1)*18+8*(e>>2)+4*(e&1))*XROW
        pre = list(uniform_setup) if e==0 else []
        if e%4==0: pre += [f"s_add_u32 m0, {sT3}, {4096*(e//4)}"]
        voff=(vWOl if left else vWOm)[e&1]
        Gs.append(pre+[f"s_add_u32 {sWOs}, {sT2}, {const-1024*(e%4)}" if const-1024*(e%4)>=0 else f"s_sub_u32 {sWOs}, {sT2}, {1024*(e%4)-const}",
                       (f"buffer_load_dwordx4 {voff}, {sWO}, {sWOs} offen offset:{1024*(e%4)} lds",'wo')])
    Gs.append([f"s_add_u32 m0, {sT3}, 8192", "s_nop 0", (f"buffer_load_dwordx4 {vWOt[1 if left else 0]}, {sWO}, {sT2} offen lds",'wo')])
    return Gs

def wo_prefetch_groups():
    Gs=[]
    for it in range(4):
        setup=[f"s_add_u32 {sT1}, {sWV}, {4*it}", f"s_mul_i32 {sT2}, {sT1}, 41472", f"s_mul_i32 {sT3}, {sT1}, 9216"]
        Gs+=wo_dma_groups(0,None,setup)
    return Gs

def wo_left_groups(L_, ldsbase, regs=None):
    vl0,vl1,vt = regs or (vWOl[0],vWOl[1],vWOt[1])
    g0=L_*16*18*XROW
    setup=[f"s_lshl_b32 {sT1}, {sWV}, 1", f"s_and_b32 {sT1}, {sT1}, 3", f"s_lshl_b32 {sT1}, {sT1}, 2",
           f"s_lshr_b32 {sT2}, {sWV}, 1", f"s_lshl_b32 {sT2}, {sT2}, 1", f"s_add_u32 {sT1}, {sT1}, {sT2}",
           f"s_mul_i32 {sT1}, {sT1}, {18*XROW}", f"s_add_u32 {sT2}, {sT1}, {g0+16*XROW}",
           f"s_lshl_b32 {sT1}, {sWV}, 11", f"s_add_u32 m0, {sT1}, {ldsbase}", "s_nop 0"]
    G0=setup+[(f"buffer_load_dwordx4 {vl0}, {sWO}, {sT2} offen lds",'wo')]
    G1=[f"s_add_u32 {sT2}, {sT2}, {4*18*XROW-1024}", (f"buffer_load_dwordx4 {vl1}, {sWO}, {sT2} offen offset:1024 lds",'wo')]
    G2=[f"s_mov_b32 {sT2}, {g0}", f"s_mov_b32 m0, {ldsbase+8192}", "s_nop 0", (f"buffer_load_dwordx4 {vt}, {sWO}, {sT2} offen lds",'wo')]
    return [G0,G1,G2]

def halo_load_groups(hb):
    base=HALO+14*hb; src=sKV2 if hb<4 else sKV1; bt=hb%4; tg=f'h{hb}'
    return [[f"s_add_u32 {sT0}, {src}, {9216*bt}",
             (f"buffer_load_dwordx4 a[{base}:{base+3}], {vPk}, {sWS}, {sT0} offen sc1", tg),
             (f"buffer_load_dword a{base+4}, {vPl}, {sWS}, {sT0} offen sc1", tg),
             f"s_mov_b64 exec, {sVM}",
             (f"buffer_load_dwordx4 a[{base+6}:{base+9}], {vPv}, {sWS}, {sT0} offen sc1", tg),
             (f"buffer_load_dwordx4 a[{base+10}:{base+13}], {vPv}, {sWS}, {sT0} offen offset:576 sc1", tg),
             "s_mov_b64 exec, -1"]]

def get_nonce(a):
    a.i(f"v_readfirstlane_b32 {sNONl}, v48"); a.i(f"v_readfirstlane_b32 {sNONh}, v49"); a.i("s_nop 1")
    a.i(f"s_or_b32 {sT0}, {sNONl}, {sNONh}"); a.i(f"s_cmp_lg_u32 {sT0}, 0"); a.i("s_cbranch_scc1 L_have_nonce")
    a.i(f"s_mov_b32 {sCNT}, 100000")
    a.label("L_nonce_poll")
    a.i(f"v_mov_b32 {vT}, 0")
    a.i(f"buffer_load_dwordx2 {vNON}, {vT}, {sDBG}, 0 offen sc1", cond=True)
    a.i("s_waitcnt vmcnt(0)")
    a.i(f"v_readfirstlane_b32 {sNONl}, v48"); a.i(f"v_readfirstlane_b32 {sNONh}, v49"); a.i("s_nop 1")
    a.i(f"s_or_b32 {sT0}, {sNONl}, {sNONh}"); a.i(f"s_cmp_lg_u32 {sT0}, 0"); a.i("s_cbranch_scc1 L_have_nonce")
    a.i("s_sleep 2"); a.i(f"s_sub_u32 {sCNT}, {sCNT}, 1"); a.i(f"s_cmp_lg_u32 {sCNT}, 0"); a.i("s_cbranch_scc1 L_nonce_poll")
    a.label("L_have_nonce")

def kv_regs(jb): return ('v', OWN+14*jb) if jb>=0 else ('a', HALO+14*(jb+8))
HORDER=[-4,-3,-8,-7,-2,-1,-6,-5]
def tile_list():
    T=[(i,bt) for i in range(4) for bt in range(i+1)]
    for jb in HORDER[:4]:
        for i in range(4):
            if i-jb<=8: T.append((i,jb))
    if GOPT.get('r2_by_q',0):
        for i in (3,2,1,0):
            for jb in HORDER[4:]:
                if i-jb<=8: T.append((i,jb))
    else:
        for jb in HORDER[4:]:
            for i in range(4):
                if i-jb<=8: T.append((i,jb))
    return T

def norm_block(i):
    O=OACC+16*i; t=84; L=[]
    L.append(f"v_rcp_f32 v{t}, v{O+10}")
    L.append(f"v_pk_add_f32 v[{t+2}:{t+3}], v[{O}:{O+1}], v[{O+2}:{O+3}]")
    L.append(f"v_pk_add_f32 v[{t+4}:{t+5}], v[{O+4}:{O+5}], v[{O+6}:{O+7}]")
    L.append(f"v_mov_b32 v{t+1}, v{t}")
    L.append(f"v_pk_add_f32 v[{t+2}:{t+3}], v[{t+2}:{t+3}], v[{O+8}:{O+9}]")
    L.append(f"v_pk_add_f32 v[{t+2}:{t+3}], v[{t+2}:{t+3}], v[{t+4}:{t+5}]")
    for r in range(0,10,2): L.append(f"v_pk_mul_f32 v[{O+r}:{O+r+1}], v[{t}:{t+1}], v[{O+r}:{O+r+1}]")
    L.append(f"v_add_f32 v{t+2}, v{t+2}, v{t+3}")
    L.append(f"v_fma_f32 v{t+2}, v{t+2}, 0, v{O+10}")
    for u in range(5): L.append(f"v_cvt_pk_bf16_f32 v{O+u}, v{O+2*u}, v{O+2*u+1}")
    L.append(f"v_cmp_nle_f32 vcc, v252, v{t+2}")
    L.append(f"v_cmp_nge_f32 s[4:5], v253, v{t+2}")
    L.append(f"s_add_u32 {sT0}, {sOM}, {i*32*OUTROW}"); L.append(f"s_add_u32 {sT1}, {sOL}, {i*32*OUTROW}")
    L.append(f"s_or_b64 {sBAD}, {sBAD}, vcc"); L.append(f"s_or_b64 {sBAD}, {sBAD}, s[4:5]")
    L.append(('OSTORE',i))
    return L

def emit_ostore(a, i):
    O=OACC+16*i
    if not GOPT.get('olocal'):
        a.i(f"buffer_store_dwordx4 v[{O}:{O+3}], {vPk}, {sOUT}, {sT0} offen sc1", 'ost')
        a.i(f"s_mov_b64 exec, {sLO}")
        a.i(f"buffer_store_dword v{O+4}, {vOl}, {sOUT}, {sT1} offen sc1", 'ost')
        a.i(f"s_mov_b64 exec, -1")
        return
    a.i(f"s_cmp_eq_u32 {sLOC}, 1"); a.i(f"s_cbranch_scc1 L_osl{i}")
    a.i(f"buffer_store_dwordx4 v[{O}:{O+3}], {vPk}, {sOUT}, {sT0} offen sc1", 'x', True)
    a.i(f"s_mov_b64 exec, {sLO}")
    a.i(f"buffer_store_dword v{O+4}, {vOl}, {sOUT}, {sT1} offen sc1", 'x', True)
    a.i(f"s_mov_b64 exec, -1")
    a.i(f"s_branch L_ose{i}")
    a.label(f"L_osl{i}")
    a.i(f"buffer_store_dwordx4 v[{O}:{O+3}], {vPk}, {sOUT}, {sT0} offen", 'ost')
    a.i(f"s_mov_b64 exec, {sLO}")
    a.i(f"buffer_store_dword v{O+4}, {vOl}, {sOUT}, {sT1} offen", 'ost')
    a.i(f"s_mov_b64 exec, -1")
    a.label(f"L_ose{i}")

def o_pretouch():
    L=vLane
    return [f"v_lshrrev_b32 v2, 3, {L}", f"v_mul_u32_u24 v2, {32*OUTROW}, v2", f"v_and_b32 v3, 7, {L}", f"v_lshl_add_u32 v2, v3, 7, v2",
            f"v_add_u32 v2, {sOM}, v2",
            f"v_bfe_u32 v3, {L}, 2, 2", f"v_mul_u32_u24 v3, {32*OUTROW}, v3", f"v_and_b32 v4, 3, {L}", f"v_mul_u32_u24 v4, {OUTROW}, v4",
            f"v_add3_u32 v3, v3, v4, {sOL}",
            f"v_cmp_le_u32 vcc, 32, {L}", f"s_lshl_b32 {sT0}, {sG}, 2", f"s_add_u32 {sT0}, {sT0}, {sWV}", f"v_cndmask_b32 v2, v2, v3, vcc",
            "s_mov_b32 s4, -1", "s_mov_b32 s5, 0xffff", "s_mov_b64 exec, s[4:5]",
            (f"buffer_load_dword v255, v2, {sOUT}, 0 offen",'touch'), "s_mov_b64 exec, -1",
            f"s_lshl_b32 {sT0}, {sT0}, 7", f"s_add_u32 {sT0}, {sT0}, {sFO}",
            f"v_mul_u32_u24 v2, {WS_FWL-WS_FOL}, {L}", f"v_add_u32 v2, {WS_FOL-WS_FO}, v2",
            "s_mov_b64 exec, 3", (f"buffer_load_dword v255, v2, {sWS}, {sT0} offen",'touch'), "s_mov_b64 exec, -1"]

def attention(a, opts):
    a.c("---- attention")
    T=tile_list(); n=len(T)
    first={}; last={}; firstuse={}
    for k,(i,jb) in enumerate(T):
        first.setdefault(i,k); last[i]=k; firstuse.setdefault(jb,k)
    Sreg=lambda k: (S0 if k%2==0 else S1)
    Preg=lambda k: (P0 if k%2==0 else P1)
    def qk(k):
        i,jb=T[k]; p,base=kv_regs(jb); S=rng('v',Sreg(k),16)
        return [f"v_mfma_f32_32x32x16_bf16 {S}, {rng(p,base,4)}, a[{8*i}:{8*i+3}], 0",
                f"v_mfma_f32_32x32x16_bf16 {S}, {rng(p,base+4,4)}, a[{8*i+4}:{8*i+7}], {S}"]
    def pv(k):
        i,jb=T[k]; p,base=kv_regs(jb); O=rng('v',OACC+16*i,16); P=Preg(k)
        c0='0' if k==first[i] else O
        return [f"v_mfma_f32_32x32x16_bf16 {O}, {rng(p,base+6,4)}, v[{P}:{P+3}], {c0}",
                f"v_mfma_f32_32x32x16_bf16 {O}, {rng(p,base+10,4)}, v[{P+4}:{P+7}], {O}"]
    waited=set()
    wo=list(opts.get('_wo_left',[]))+wo_group_for(12)+wo_left_groups(0,16*9216)
    NW=opts.get('wo_att',39)
    def rn_(t): return t.replace(vWOl[0]+',','v88,').replace(vWOl[1]+',','v89,').replace(vWOt[1]+',','v90,').replace(vWOt[0]+',','v96,')
    def rt(g): return [((rn_(x[0]),'wo2') if isinstance(x,tuple) else x) for x in g]
    opts['_wo_p3']=[rt(g) for g in wo[NW:]]
    wo=wo[:NW]
    WO_START=opts.get('wo_start',0)
    CHK0=opts.get('chk0',0); FLAGB=opts.get('flagB',3); FL1=opts.get('fl1',9); CHK1=opts.get('chk1',14)
    WO_PAUSE=opts.get('wo_pause',1)
    a.i(f"s_mov_b32 {sTRY}, 0")
    a.label("L_att")
    a.i(f"v_mov_b32 v254, 0x207")
    q0=qk(0); a.i(q0[0]); a.i(q0[1])
    extra=[]; hq=[]
    for k in range(n+1):
        a.stamp(f't{k}_')
        if k==CHK0:
            kv_flag_check(a,0,2)
            for jb in HORDER[:4]:
                hq += halo_load_groups(jb+8)
        if k==FLAGB:
            a.wait(vm='pubB'); a.emit(flag_store_ins(4))
        if k==FL1: a.emit(kv_flag_load(1))
        if opts.get('olocal') and k==opts.get('pre_at',19): a.emit(o_pretouch())
        if opts.get('olocal') and k==opts.get('xtl',24): a.emit(xt_load())
        if opts.get('olocal') and k==opts.get('xtc',30): xt_check(a)
        if k==CHK1:
            kv_flag_check(a,1,4)
            for jb in HORDER[4:]:
                hq += halo_load_groups(jb+8)
        mf=[]
        if k+1<n:
            i,jb=T[k+1]
            if jb<0 and jb not in waited:
                if not waited: a.stamp('own_done')
                assert any(t==f'h{jb+8}' for t in a.vm), jb
                waited.add(jb); a.wait(vm=f'h{jb+8}')
                if len(waited)==1: a.stamp('h0_landed')
            mf+=qk(k+1)
        else: mf+=[None,None]
        mf += pv(k-1) if k>=1 else [None,None]
        if k==0: a.nop(12)
        S=Sreg(k); P=Preg(k)
        i,jb=T[k] if k<n else (None,None)
        for seg in range(4):
            pk,ps = (k,seg-1) if seg>0 else (k-1,3)
            if pk>=0 and pk<n:
                Sp=Sreg(pk); Pp=Preg(pk); ip,jp=T[pk]
                for u in (2*ps,2*ps+1): a.i(f"v_cvt_pk_bf16_f32 v{Pp+u}, v{Sp+2*u}, v{Sp+2*u+1}")
                if jp==ip or jp==ip-8:
                    M=MASKD if jp==ip else MASKF
                    for u in (2*ps,2*ps+1): a.i(f"v_and_b32 v{Pp+u}, v{M+u}, v{Pp+u}")
            if k==n and seg==2: a.nop(2)
            if mf[seg]: a.i(mf[seg])
            if k<n:
                for e in range(4): a.i(f"v_exp_f32 v{S+4*seg+e}, v{S+4*seg+e}")
            a.drain(extra, 6 if k<n else 1000)
            if hq and seg in (0,2): a.emit(hq.pop(0))
            paused = WO_PAUSE and ((CHK0<=k<10) or (CHK1<=k<CHK1+9))
            if k>=WO_START and wo and not paused and seg in (0,1,3): a.emit(wo.pop(0))
        if k>=1:
            ib=T[k-1][0]
            if last[ib]==k-1:
                if k==n:
                    a.nop(14); a.emit(norm_block(ib))
                else: extra+=["s_nop 1"]+norm_block(ib)
    assert not extra
    for g in wo: a.emit(g)
    a.i(f"s_or_b32 s4, s74, s75"); a.i(f"s_cmp_eq_u32 s4, 0"); a.i("s_cbranch_scc1 L_att_done")
    a.i(f"s_cmp_eq_u32 {sTRY}, 0"); a.i("s_cbranch_scc1 L_slow")
    a.label("L_att_done")
    a.stamp('att_end')

def slow_path(a):
    a.label("L_slow")
    a.i("s_waitcnt vmcnt(0) lgkmcnt(0)")
    T=tile_list(); L=vLane
    a.i(f"v_and_b32 v84, 31, {L}"); a.i(f"v_lshrrev_b32 v85, 5, {L}"); a.i("v_lshlrev_b32 v85, 2, v85"); a.i("v_sub_u32 v84, v84, v85")
    a.i("v_mov_b32 v86, 0xff800000")
    for i in range(4):
        m=f"v{P0+i}"
        a.i(f"v_mov_b32 {m}, v86")
        for n_,(ii,jb) in enumerate([t for t in T if t[0]==i]):
            lab=f"L_sk{i}_{n_}"
            if jb<0:
                a.i(f"s_cmp_lt_u32 {sC}, {2 if jb<-4 else 1}"); a.i(f"s_cbranch_scc1 {lab}")
            p_,base=kv_regs(jb); S=rng('v',S0,16)
            a.i(f"v_mfma_f32_32x32x16_bf16 {S}, {rng(p_,base,4)}, a[{8*i}:{8*i+3}], 0")
            a.i(f"v_mfma_f32_32x32x16_bf16 {S}, {rng(p_,base+4,4)}, a[{8*i+4}:{8*i+7}], {S}")
            a.nop(16)
            if jb==i or jb==i-8:
                for r in range(16):
                    k0=(r&3)+8*(r>>2)
                    a.i(f"v_cmp_{'le' if jb==i else 'gt'}_i32 vcc, {k0}, v84"); a.i("s_nop 1")
                    a.i(f"v_cndmask_b32 v{S0+r}, v86, v{S0+r}, vcc")
            for r in range(0,16,2): a.i(f"v_max3_f32 {m}, v{S0+r}, v{S0+r+1}, {m}")
            if jb<0: a.label(lab)
        a.i(f"v_mov_b32 v87, {m}"); a.nop(2)
        a.i(f"v_permlane32_swap_b32 {m}, v87"); a.nop(2)
        a.i(f"v_max_f32 {m}, {m}, v87")
        a.i(f"v_sub_f32 v87, 0, {m}")
        a.i(f"v_cvt_pk_bf16_f32 v88, v87, v87"); a.i("v_lshlrev_b32 v89, 16, v88")
        a.i("v_sub_f32 v89, v87, v89")
        a.i("v_cvt_pk_bf16_f32 v88, v87, v89")
        a.i(f"s_mov_b64 exec, {sLO}"); a.i(f"v_accvgpr_write_b32 a{8*i+5}, v88"); a.i("s_mov_b64 exec, -1")
    a.i(f"s_mov_b32 {sTRY}, 1"); a.i(f"s_mov_b64 {sBAD}, 0"); a.nop(4)
    a.i("s_branch L_att")

OF=16
DACC=88
AFV=124
vAr=[f'v{2+t}' for t in range(9)]
vOf='v11'; vOut='v12'; vOf2='v251'

def phase3(a, opts):
    a.c("---- phase 3")
    L=vLane
    a.i(f"v_mov_b32 v88, {vWOl[0]}"); a.i(f"v_mov_b32 v89, {vWOl[1]}"); a.i(f"v_mov_b32 v90, {vWOt[1]}"); a.i(f"v_mov_b32 v96, {vWOt[0]}")
    a.i(f"v_lshrrev_b32 v13, 2, {L}")
    a.i(f"v_and_b32 v14, 7, v13"); a.i(f"v_lshlrev_b32 v14, 5, v14")
    a.i(f"v_lshl_add_u32 v14, v13, 8, v14")
    a.i(f"v_and_b32 v15, 3, {L}"); a.i(f"v_lshl_add_u32 v14, v15, 3, v14")
    for t in range(8): a.i(f"v_xor_b32 {vAr[t]}, {32*t}, v14")
    a.i(f"v_lshlrev_b32 v13, 5, v13"); a.i(f"v_lshl_add_u32 v13, v15, 3, v13"); a.i(f"v_add_u32 {vAr[8]}, 8192, v13")
    a.i(f"v_and_b32 v13, 15, {L}"); a.i(f"v_lshrrev_b32 v14, 4, {L}")
    a.i(f"s_and_b32 s6, {sWV}, 1"); a.i(f"s_lshl_b32 s6, s6, 8")
    a.i(f"v_lshl_add_u32 v15, v13, 4, s6")
    a.i(f"v_and_b32 v93, 1, v14"); a.i(f"v_lshl_add_u32 {vOf}, v93, 9, v15"); a.i(f"v_lshrrev_b32 v93, 1, v14")
    a.i(f"v_mul_u32_u24 v93, {OUTROW}, v93"); a.i(f"v_add_u32 {vOf}, {vOf}, v93")
    a.i(f"v_lshrrev_b32 v93, 7, v15"); a.i(f"v_lshl_add_u32 v93, v14, 2, v93"); a.i(f"v_mul_u32_u24 v93, {OUTROW}, v93")
    a.i(f"v_and_b32 v94, 0x70, v15"); a.i(f"v_add_u32 {vOf2}, v93, v94")
    a.i(f"v_mul_u32_u24 v15, {OUTROW}, v13"); a.i(f"v_lshl_add_u32 {vOut}, v14, 3, v15")
    a.wait(vm='wo')
    a.i("s_barrier")
    a.stamp('wo_ready')
    if opts.get('dumpwo'):
        a.i("s_cmp_lg_u32 s2, 0"); a.i("s_cbranch_scc1 L_nodump")
        a.i("v_lshlrev_b32 v13, 4, v0")
        for it in range(39):
            a.i(f"ds_read_b128 v[124:127], v13 offset:0")
            a.i("s_waitcnt lgkmcnt(0)")
            a.i(f"v_add_u32 v14, {WS_DBG+0x100000}, v13")
            a.i(f"buffer_store_dwordx4 v[124:127], v14, {sWS}, 0 offen", cond=True)
            a.i("s_waitcnt vmcnt(0)")
            a.i("v_add_u32 v13, 4096, v13")
        a.label("L_nodump"); a.lg_clear()
    def frag_reads(kap, dst):
        slot=kap if kap<17 else 0
        R=[]
        for t in range(9):
            p,r=dst(kap,t)
            off=(slot%7)*9216
            hoff=4096 if t<8 else 512
            R.append([(f"ds_read_b64_tr_b16 {p}[{r+2*h}:{r+2*h+1}], {vAr[t]} offset:{off+hoff*h}", f'a{kap}_{t}') for h in range(2)])
        return R
    NA=7; RING=29
    def dst(kap,t):
        if kap<NA: return 'a', (kap*9+t)*4
        idx=((kap-NA)*9+t)%RING
        return 'v', AFV+idx*4
    bump=lambda: [f"v_add_u32 {vAr[t]}, {7*9216}, {vAr[t]}" for t in range(9)]
    def oflag():
        a.i(f"s_lshl_b32 {sT0}, {sG}, 2"); a.i(f"s_add_u32 {sT0}, {sT0}, {sWV}"); a.i(f"s_lshl_b32 {sT0}, {sT0}, 7"); a.i(f"s_add_u32 {sT0}, {sT0}, {sFO}")
        a.i(f"v_mov_b32 v14, {sNONl}"); a.i(f"v_mov_b32 v13, 0")
        if not opts.get('olocal'):
            a.i(f"v_mov_b32 v15, {sNONh}"); a.i("s_mov_b64 exec, 1")
            a.i(f"buffer_store_dwordx2 v[14:15], v13, {sWS}, {sT0} offen sc1", 'oflag'); a.i("s_mov_b64 exec, -1")
            return
        a.i(f"s_cmp_eq_u32 {sLOC}, 1"); a.i("s_cbranch_scc1 L_ofl")
        a.i(f"v_mov_b32 v15, {sNONh}")
        a.i("s_mov_b64 exec, 1")
        a.i(f"buffer_store_dwordx2 v[14:15], v13, {sWS}, {sT0} offen sc1", 'x', True)
        a.i("s_branch L_ofe")
        a.label("L_ofl")
        a.i(f"s_add_u32 {sT0}, {sT0}, {WS_FOL-WS_FO}")
        a.i(f"v_mov_b32 v15, {sLFH}")
        a.i("s_mov_b64 exec, 1")
        a.i(f"buffer_store_dwordx2 v[14:15], v13, {sWS}, {sT0} offen", tag='oflag')
        a.label("L_ofe")
        a.i("s_mov_b64 exec, -1")
    LF_AT=opts.get('lf_at',1)
    w2=list(opts.get('_wo_p3',[]))
    for kap in range(NA):
        if kap==LF_AT:
            a.wait(vm='ost'); oflag(); a.stamp('o_lflag')
        for gi,grp in enumerate(frag_reads(kap,dst)):
            a.emit(grp)
            if w2 and gi%3==0: a.emit(w2.pop(0))
        if kap%2==1: a.wait(lg=8)
    for g in w2: a.emit(g)
    if opts.get('_wo_p3'):
        a.wait(vm='wo2'); a.i("s_barrier")
    a.emit(bump())
    a.i(f"v_and_b32 v13, 31, {L}"); a.i(f"v_lshlrev_b32 v13, 7, v13")
    a.i(f"v_mov_b32 v91, {sNONh}")
    if opts.get('olocal'):
        a.i(f"v_add_u32 v14, {WS_FOL-WS_FO}, v13"); a.i(f"v_cmp_le_u32 vcc, 32, {L}")
        a.i(f"v_mov_b32 v92, {sLFH}"); a.i("s_nop 0")
        a.i(f"v_cndmask_b32 v13, v13, v14, vcc"); a.i(f"v_cndmask_b32 v91, v91, v92, vcc")
    def opoll_load(cond):
        if not opts.get('olocal'): a.i(f"s_mov_b64 exec, {sLO}")
        a.i(f"buffer_load_dwordx2 v[14:15], v13, {sWS}, {sFO} offen sc1", 'opl', cond)
        a.i("s_mov_b64 exec, -1")
    AP=opts.get('apoll',0); W0=opts.get('w0poll',1)
    if AP==1: opoll_load(False)
    for kap in range(NA,NA+3):
        for grp in frag_reads(kap,dst): a.emit(grp)
    OT=9216; OP=304
    a.i(f"v_and_b32 v252, 15, {L}"); a.i(f"v_mul_u32_u24 v252, {OP}, v252"); a.i(f"v_lshrrev_b32 v253, 4, {L}"); a.i(f"v_lshl_add_u32 v252, v253, 3, v252")
    a.i(f"s_mul_i32 {sT2}, {sWV}, {16*OP}"); a.i(f"s_add_u32 {sT2}, {sT2}, {OT}"); a.i(f"v_add_u32 v250, {sT2}, v252")
    for e in range(5):
        a.i(f"v_add_u32 v252, {64*e}, {L}"); a.i(f"v_mul_u32_u24 v253, 58255, v252"); a.i(f"v_lshrrev_b32 v253, 20, v253")
        a.i(f"v_mul_u32_u24 v254, 18, v253"); a.i(f"v_sub_u32 v254, v252, v254"); a.i(f"v_lshlrev_b32 v254, 4, v254")
        a.i(f"v_mul_u32_u24 v252, {OP}, v253"); a.i(f"v_add3_u32 v{240+e}, v252, v254, {sT2}")
        a.i(f"v_mul_u32_u24 v252, {OUTROW}, v253"); a.i(f"v_add_u32 v{245+e}, v252, v254")
    a.wait(lg=0)
    a.i("s_barrier")
    for g in wo_left_groups(1,0,('v88','v89','v90')): a.emit(g)
    a.stamp('frags_pre')
    if W0:
        a.i(f"s_cmp_lg_u32 {sWV}, 0"); a.i("s_cbranch_scc1 L_opoll_done")
    if AP==1: a.wait(vm='opl')
    else:
        opoll_load(True); a.i("s_waitcnt vmcnt(0)")
    a.i(f"s_mov_b32 {sCNT}, 200000")
    a.label("L_opoll")
    if not opts.get('olocal'): a.i(f"s_mov_b64 exec, {sLO}")
    a.i(f"v_cmp_eq_u32 vcc, {sNONl}, v14"); a.i(f"v_cmp_eq_u32 s[4:5], v91, v15")
    a.i("s_mov_b64 exec, -1")
    a.i("s_and_b64 s[4:5], s[4:5], vcc"); a.i("s_or_b32 s4, s4, s5"); a.i("s_cmp_eq_u32 s4, -1"); a.i("s_cbranch_scc1 L_opoll_done")
    if opts.get('psleep',2): a.i(f"s_sleep {opts.get('psleep',2)}")
    opoll_load(True); a.i("s_waitcnt vmcnt(0)")
    a.i(f"s_sub_u32 {sCNT}, {sCNT}, 1"); a.i(f"s_cmp_lg_u32 {sCNT}, 0"); a.i("s_cbranch_scc1 L_opoll")
    a.label("L_opoll_done")
    if W0:
        a.wait(vm='wo'); a.i("s_barrier")
    a.stamp('opoll_done')
    KORD=[7,8,9]+list(range(7))+list(range(10,18))
    def oload(kap):
        if kap<16:
            a.i(f"s_add_u32 {sT0}, {sPOM}, {2*OUTROW*kap}")
            a.i(f"buffer_load_dwordx4 v[{OF+4*kap}:{OF+4*kap+3}], {vOf}, {sOUT}, {sT0} offen sc1", tag=f'of{kap}')
        else:
            a.i(f"s_add_u32 {sT0}, {sPOL}, {16*OUTROW*(kap-16)}")
            a.i(f"buffer_load_dwordx4 v[{OF+4*kap}:{OF+4*kap+3}], {vOf2}, {sOUT}, {sT0} offen sc1", tag=f'of{kap}')
    NFIRST=opts.get('ofirst',7)
    oq=list(KORD)
    for _ in range(NFIRST): oload(oq.pop(0))
    a.stamp('p3_oissued')
    if not W0:
        a.wait(vm='wo'); a.i("s_barrier")
    rq=[]
    for kap in range(NA+3,18):
        R=frag_reads(kap,dst)
        for t in range(9): rq.append((kap,t,R[t]))
    issued=(NA+3-NA)*9
    consumed=0; mcount=0
    def war_store():
        a.wait(vm=f'of{KORD[-1]}')
        a.i(f"s_lshl_b32 {sT0}, {sG}, 2"); a.i(f"s_add_u32 {sT0}, {sT0}, {sWV}"); a.i(f"s_lshl_b32 {sT0}, {sT0}, 7"); a.i(f"s_add_u32 {sT0}, {sT0}, {sFO}")
        a.i(f"v_mov_b32 v252, {sNONl}"); a.i(f"v_mov_b32 v254, 0")
        a.i(f"s_add_u32 {sT0}, {sT0}, {WS_FW-WS_FO}")
        if opts.get('olocal'):
            a.i(f"s_cmp_eq_u32 {sLOC}, 1"); a.i("s_cbranch_scc1 L_wl")
        a.i(f"v_mov_b32 v253, {sNONh}"); a.i("s_mov_b64 exec, 1")
        a.i(f"buffer_store_dwordx2 v[252:253], v254, {sWS}, {sT0} offen sc1", 'war' if not opts.get('olocal') else 'x', bool(opts.get('olocal')))
        if opts.get('olocal'):
            a.i("s_branch L_we"); a.label("L_wl")
            a.i(f"s_add_u32 {sT0}, {sT0}, {WS_FWL-WS_FW}"); a.i(f"v_mov_b32 v253, {sLFH}"); a.i("s_mov_b64 exec, 1")
            a.i(f"buffer_store_dwordx2 v[252:253], v254, {sWS}, {sT0} offen", 'war')
            a.label("L_we")
        a.i("s_mov_b64 exec, -1")
    def war_addr():
        a.i(f"v_and_b32 v13, 15, {L}"); a.i(f"s_lshl_b32 {sT0}, {sRH}, 4"); a.i(f"v_add_u32 v13, {sT0}, v13"); a.i(f"v_lshlrev_b32 v13, 7, v13")
        a.i(f"v_add_u32 v13, {WS_FW-WS_FO}, v13"); a.i(f"v_add_u32 v14, {WS_FWL-WS_FW}, v13"); a.i(f"v_cmp_le_u32 vcc, 16, {L}")
        a.i(f"v_mov_b32 v15, {sNONh}"); a.i(f"v_mov_b32 v1, {sLFH if opts.get('olocal') else sNONh}")
        a.i(f"v_cndmask_b32 v13, v13, v14, vcc"); a.i(f"v_cndmask_b32 v15, v15, v1, vcc")
    def war_load(cond=False):
        a.i(f"s_mov_b64 exec, {sLO}"); a.i(f"buffer_load_dwordx2 v[0:1], v13, {sWS}, {sFO} offen sc1", 'warl', cond); a.i("s_mov_b64 exec, -1")
    base_slot=7
    for kap in KORD:
        a.wait(vm=f'of{kap}')
        for t in range(9):
            p,r=dst(kap,t)
            if kap>=NA:
                n_=a.lg_n(f'a{kap}_{t}')
                if n_ is not None: a.wait(lg=f'a{kap}_{t}')
            acc=rng('v',DACC+4*t,4); c='0' if kap==KORD[0] else acc
            a.i(f"v_mfma_f32_16x16x32_bf16 {acc}, {p}[{r}:{r+3}], v[{OF+4*kap}:{OF+4*kap+3}], {c}")
            if kap>=NA: consumed+=1
            mcount+=1
            if mcount in (1,27,90,126): a.stamp(f'p3_m{mcount}_')
            if oq and mcount%opts.get('oevery',4)==0: oload(oq.pop(0))
            if mcount==opts.get('war_st',100): war_store()
            if mcount==opts.get('war_ld',140): war_addr(); war_load()
            if rq and issued-consumed<RING-1:
                k2,t2,ins=rq[0]
                if k2==14 and t2==0 and base_slot==7:
                    a.emit(bump()); base_slot=14
                if k2==17 and t2==0:
                    a.emit([f"v_subrev_u32 {vAr[tt]}, {14*9216}, {vAr[tt]}" for tt in range(9)])
                rq.pop(0); a.emit(ins); issued+=1
    assert not rq
    a.stamp('p3_mfma_end')
    a.wait(vm='warl')
    a.i(f"s_mov_b32 {sCNT}, 200000")
    a.label("L_wchk")
    a.i(f"s_mov_b64 exec, {sLO}")
    a.i(f"v_cmp_eq_u32 vcc, {sNONl}, v0"); a.i(f"v_cmp_eq_u32 s[4:5], v15, v1")
    a.i("s_mov_b64 exec, -1")
    a.i("s_and_b64 s[4:5], s[4:5], vcc"); a.i("s_lshr_b32 s5, s4, 16"); a.i("s_or_b32 s4, s4, s5"); a.i("s_and_b32 s4, s4, 0xffff")
    a.i("s_cmp_eq_u32 s4, 0xffff"); a.i("s_cbranch_scc1 L_wok")
    war_load(True); a.i("s_waitcnt vmcnt(0)")
    a.i(f"s_sub_u32 {sCNT}, {sCNT}, 1"); a.i(f"s_cmp_lg_u32 {sCNT}, 0"); a.i("s_cbranch_scc1 L_wchk")
    a.label("L_wok")
    a.stamp('p3_war')
    a.nop(10)
    for t in range(9):
        d=DACC+4*t
        a.i(f"v_cvt_pk_bf16_f32 v{d}, v{d}, v{d+1}"); a.i(f"v_cvt_pk_bf16_f32 v{d+1}, v{d+2}, v{d+3}")
        a.i(f"ds_write_b64 v250, v[{d}:{d+1}] offset:{32*t}", 'ow')
    a.wait(lg=0)
    for e in range(5):
        if e==4: a.i(f"s_mov_b64 exec, {sLO}")
        a.i(f"ds_read_b128 v[{32+4*e}:{35+4*e}], v{240+e}", f'or{e}')
    a.i("s_mov_b64 exec, -1")
    for e in range(5):
        a.wait(lg=f'or{e}')
        if e==4: a.i(f"s_mov_b64 exec, {sLO}")
        a.i(f"buffer_store_dwordx4 v[{32+4*e}:{35+4*e}], v{245+e}, {sOUT}, {sOUTB} offen {opts.get('outmod','')}")
    a.i("s_mov_b64 exec, -1")
    a.stamp('p3_stissued')
    a.i("s_waitcnt vmcnt(0)")

def kd(name, vgpr, accum, sgpr=102):
    return f""".section .rodata,"a"
.p2align 6
.amdhsa_kernel {name}
  .amdhsa_next_free_vgpr {vgpr}
  .amdhsa_next_free_sgpr {sgpr}
  .amdhsa_accum_offset {accum}
  .amdhsa_group_segment_fixed_size 0
  .amdhsa_kernarg_size 72
  .amdhsa_user_sgpr_count 2
  .amdhsa_user_sgpr_kernarg_segment_ptr 1
  .amdhsa_system_sgpr_workgroup_id_x 1
.end_amdhsa_kernel
"""
HEADER = """; Kernarg layout (72 bytes, ptrs only, base s[0:1]):
"""
def build(opts):
    ORDER_MODE[0]=opts.get('order','own'); GOPT.update(opts)
    a=G()
    if opts.get('stamps'):
        a.stamps=[]
        a.sel = opts['sel'].split(',') if 'sel' in opts else ['ch0_landed','1a_end','1b_end','q_ready','poll_done','own_done','att_end','wo_ready','frags_pre','opoll_done','p3_mfma_end','drained']
    prologue(a,opts)
    g0=dma_chunk_groups(0,0)
    if opts.get('tlbw',1):
        a.i(f"buffer_load_dword v255, {vWoff[0]}, {sW}, {sWoff} offen", 'touch')
    for g in g0[:4]: a.emit(g)
    setupA(a,opts)
    setupB0(a,opts)
    for g in g0[4:]: a.emit(g)
    if opts.get('xtouch',1):
        L=vLane
        a.i(f"v_mul_u32_u24 v2, 7282, {L}"); a.i("v_lshrrev_b32 v2, 16, v2")
        a.i(f"v_mul_u32_u24 v3, 9, v2"); a.i(f"v_sub_u32 v3, {L}, v3"); a.i("v_min_u32 v2, 3, v2")
        a.i(f"s_lshl_b32 s5, {sC}, 7"); a.i(f"s_lshl_b32 s6, {sG}, 4"); a.i("s_add_u32 s5, s5, s6"); a.i(f"s_lshl_b32 s6, {sWV}, 2"); a.i("s_add_u32 s5, s5, s6")
        a.i(f"v_add_u32 v2, s5, v2"); a.i(f"v_mul_u32_u24 v2, {XROW}, v2"); a.i(f"v_lshl_add_u32 v2, v3, 7, v2")
        a.i("s_mov_b32 s6, -1"); a.i("s_mov_b32 s7, 15")
        a.emit(["s_mov_b64 exec, s[6:7]", (f"buffer_load_dword v255, v2, {sX}, 0 offen",'touch'), "s_mov_b64 exec, -1"])
    if opts.get('wotouch',2)==2: touch_wo(a)
    if opts.get('qtouch',0): touch_q(a)
    if opts.get('pgw',0):
        L=vLane
        a.i(f"s_lshl_b32 s4, {sB}, 3"); a.i(f"s_add_u32 s4, s4, {sG}"); a.i("s_lshl_b32 s4, s4, 4"); a.i(f"s_add_u32 s4, s4, {sC}")
        a.i(f"s_mul_i32 s4, s4, {SLOT}")
        a.i(f"v_mov_b32 v2, s4"); a.i(f"v_mov_b32 v3, {WS_FKV}"); a.i(f"v_cmp_eq_u32 vcc, 1, {L}"); a.i("s_nop 1"); a.i("v_cndmask_b32 v2, v2, v3, vcc")
        a.i(f"s_sub_u32 s5, s4, {2*SLOT}"); a.i(f"s_max_i32 s5, s5, 0"); a.i("v_mov_b32 v3, s5"); a.i(f"v_cmp_eq_u32 vcc, 2, {L}"); a.i("s_nop 1"); a.i("v_cndmask_b32 v2, v2, v3, vcc")
        a.i("s_mov_b64 exec, 7"); a.i(f"buffer_load_dword v255, v2, {sWS}, 0 offen", 'touch')
        a.i(f"s_lshl_b32 s4, {sC}, 7"); a.i(f"s_mul_i32 s4, s4, {OUTROW}"); a.i("v_mov_b32 v2, 0")
        a.i("s_mov_b64 exec, 1"); a.i(f"buffer_load_dword v255, v2, {sOUT}, s4 offen", 'touch'); a.i("s_mov_b64 exec, -1")
    a.stamp('p_ch0')
    for g in dma_chunk_groups(1,1): a.emit(g)
    a.stamp('p_ch1')
    rec=Rec(); setupB(rec,opts)
    rec2=Rec(); wo_addr(rec2)
    ren=dict(zip(vWOm+vWOl+vWOt,vWOtmp))
    def rn(x):
        for k_,v_ in ren.items(): x=x.replace(f" {k_},",f" {v_},")
        return x
    opts['_side']=rec.l+[rn(x) for x in rec2.l]
    pend=dma_chunk_groups(2,2)
    pend=phase1a(a,opts,pend)
    phase1b(a,pend,opts)
    attention(a,opts)
    phase3(a,opts)
    a.stamp('drained'); a.stamp('rt_exit',real=True)
    if opts.get('dbgtime'):
        a.i("s_waitcnt lgkmcnt(0)")
        n=len(a.stamps)
        r0=a.stamps[0][1]; r1=a.stamps[-1][1]
        a.i(f"s_not_b32 s3, s{r0}")
        a.i("v_mov_b32 v2, s3"); a.i("v_mov_b32 v3, 8"); a.i(f"v_mov_b32 v4, s{r1}"); a.i("v_mov_b32 v5, 12")
        a.i("s_mov_b64 exec, 1")
        a.i(f"buffer_atomic_umax v2, v3, {sDBG}, 0 offen sc1"); a.i(f"buffer_atomic_umax v4, v5, {sDBG}, 0 offen sc1")
        a.i(f"s_cmp_lg_u32 s2, 77"); a.i("s_cbranch_scc1 L_nodbg"); a.i(f"s_cmp_lg_u32 {sWV}, 0"); a.i("s_cbranch_scc1 L_nodbg")
        e=a.stamps[1][1]
        for k,(nm,r) in enumerate(a.stamps[2:-1][:12]):
            a.i(f"s_sub_u32 s3, s{r}, s{e}"); a.i("v_mov_b32 v2, s3"); a.i(f"v_mov_b32 v3, {16+4*k}")
            a.i(f"buffer_store_dword v2, v3, {sDBG}, 0 offen")
        a.label("L_nodbg")
        a.i("s_mov_b64 exec, -1"); a.i("s_waitcnt vmcnt(0)")
    else: a.dump_stamps(0)
    a.label("L_end"); a.i("s_endpgm")
    slow_path(a)
    errs=a.check()
    if opts.get('stamps'): print("stamps:",len(a.stamps),[x[0] for x in a.stamps])
    k1=f"{NAME}_kernel"
    txt=HEADER+f"; @launch grid=(256,1,1) block=(256,1,1) lds={LDS_BYTES}\n"
    txt+='.amdgcn_target "amdgcn-amd-amdhsa--gfx950"\n.text\n'
    txt+=f".globl {k1}\n.p2align 8\n.type {k1},@function\n{k1}:\n"+a.text()+kd(k1,512,256)
    return txt
if __name__=="__main__":
    out=sys.argv[1]
    opts={}
    for x in sys.argv[2:]:
        k,_,v=x.partition('='); opts[k]=int(v) if v.lstrip('-').isdigit() else (v or True)
    open(out,'w').write(build(opts)); print("written",out)
```

```python
import sys, os, struct
sys.path.insert(0, os.path.dirname(os.path.abspath(__file__)))
from asm import *
NAME = "concat_heads__sliding_block__sliding_block__prompt"
XROW=1152; WROW=3456; OUTROW=2304
X_BYTES=2048*1152; W_BYTES=576*3456; WO_BYTES=576*1152; OUT_BYTES=2048*2304
SLOT=36864; WPITCH=320; XOFF=20480; QPITCH=192; QCH=12288
VBASE=0; VR=1184; VJ=2368; VB=4736; KB3=18944; KB0=147456; KP=148; KBLK=32*148; QBASE=0
LDS_BYTES=163840
WS_KV=0; WS_OM=0x1000000; WS_OL=0x1400000; WS_FKV=0x1800000; WS_FO=0x1840000; WS_FOL=0x1880000; WS_FW=0x1900000; WS_FWL=0x1940000
WS_XT=0x18C0000
WS_DBG=0x2000000; WS_BYTES=0x4000000
CSCALE = 1.4426950408889634/(18**0.5)
def f2u(x): return struct.unpack('<I',struct.pack('<f',x))[0]
def rng(p,a,n): return f'{p}[{a}:{a+n-1}]'

sX='s[8:11]'; sW='s[12:15]'; sWO='s[16:19]'; sOUT='s[20:23]'; sWS='s[24:27]'; sDBG='s[28:31]'
sB='s32'; sC='s33'; sG='s34'; sWV='s35'
sVM='s[54:55]'; sLO='s[56:57]'
sCI='s58'; sWoff='s59'; sXoff='s60'; sM0='s61'; sKVme='s62'
sT0='s63'; sT1='s64'; sT2='s65'; sFKV='s66'; sT3='s67'
sNONl='s68'; sNONh='s69'; sROT='s70'; sKV1='s71'; sKV2='s72'; sXCC='s73'
sBAD='s[74:75]'; sNVM='s[52:53]'; sCNT='s76'; sOM='s77'; sOL='s78'; sFO='s79'; sSC='s80'; sATT='s81'
sLFH='s70'; sLOC='s81'
sTRY='s52'
sRH='s82'; sNQ='s83'; sPOM='s84'; sPOL='s85'; sOUTB='s86'; sWOs='s87'
sIDX='s76'; sOFF='s81'

vLane='v1'
vWoff=[f'v{10+j}' for j in range(5)]
vXoff=[f'v{15+j}' for j in range(4)]
vQoff=['v19','v20','v21']
vWr=['v22','v23']; vMx=['v24','v25']
vXr=[[f'v{26+t}' for t in range(4)],[f'v{30+t}' for t in range(4)]]
vQr='v34'
vKw='v35'; vQw='v36'; vVw='v37'; vVt='v38'
vKr='v39'; vKl='v40'; vVr='v41'; vCw='v42'; vQl='v43'
vPk='v44'; vPl='v45'; vPv='v46'; vOl='v47'
vNON='v[48:49]'; vVC='v50'; vT='v51'
def WF(b,f): r=52+(b*5+f)*4; return f'v[{r}:{r+3}]'
def WFh(b,f,h): r=52+(b*5+f)*4+2*h; return f'v[{r}:{r+1}]'
def QF(b,f): r=52+(b*3+f)*4; return f'v[{r}:{r+3}]'
def QFh(b,f,h): r=52+(b*3+f)*4+2*h; return f'v[{r}:{r+1}]'
ACC={'K0':92,'K1':108,'V0':124,'V1':140,'MX':156,'Q0':172,'Q1':188,'Q2':204}
def XF(t): return rng('a',4*t,4)
OWN=92; HALO=144
S0=52; S1=68; P0=150; P1=158; OACC=172; MASKD=236; MASKF=244
vWOm=['v10','v11']; vWOl=['v12','v13']; vWOt=['v14','v15']
vWOtmp=['v220','v221','v222','v223','v224','v225']

class G(Asm):
    stamps=None; sel=None; nowait=True
    def stamp(self, name, real=False):
        if self.stamps is None: return
        if self.sel is not None and not (name.startswith('rt_') or name=='entry' or any(name.startswith(x) for x in self.sel)): return
        k=len(self.stamps)
        regs=[88,90,92,94,96,98,100,36,38,40,42,44,46,48,50][k]
        self.stamps.append((name,regs))
        if GOPT.get('allreal'): real_=True
        else: real_=real
        self.i(f"{'s_memrealtime' if real_ else 's_memtime'} s[{regs}:{regs+1}]")
        if self.nowait and not real and name!='entry':
            self.lg.pop()
        else:
            self.i("s_waitcnt lgkmcnt(0)")
            self.lg_clear()
    def dump_stamps(self, base):
        if self.stamps is None: return
        self.i("s_waitcnt lgkmcnt(0)")
        self.i(f"s_lshl_b32 s3, s2, 2"); self.i(f"s_add_u32 s3, s3, {sWV}")
        self.i(f"s_lshl_b32 s3, s3, 6"); self.i(f"s_add_u32 s3, s3, {WS_DBG+base}")
        self.i("s_mov_b64 exec, 1")
        for k,(nm,r) in enumerate(self.stamps):
            self.i(f"v_mov_b32 v2, s{r}"); self.i(f"v_mov_b32 v3, {4*k}")
            self.i(f"buffer_store_dword v2, v3, {sWS}, s3 offen")
        self.i("s_mov_b64 exec, -1"); self.i("s_waitcnt vmcnt(0)")
    def emit(self, lst):
        for x in lst:
            if isinstance(x,tuple) and x[0]=='OSTORE': emit_ostore(self,x[1])
            elif isinstance(x,tuple): self.i(*x)
            else: self.i(x)
    def drain(self, q, budget):
        k=0; inexec=False
        while q and (k<budget or inexec):
            x=q.pop(0)
            txt=x[0] if isinstance(x,tuple) else x
            if txt.startswith('s_mov_b64 exec'): inexec = not txt.endswith('-1')
            if txt=='OSTORE': emit_ostore(self,x[1])
            elif isinstance(x,tuple): self.i(*x)
            else: self.i(x)
            k+=1

def prologue(a, opts):
    L=vLane
    a.c("---- prologue")
    a.stamp('rt_entry',real=True); a.stamp('entry')
    a.i("s_load_dwordx8 s[36:43], s[0:1], 0")
    a.i("s_load_dwordx8 s[44:51], s[0:1], 32")
    a.i("s_load_dwordx2 s[52:53], s[0:1], 64")
    a.i("s_cmp_ge_u32 s2, 256")
    a.i("s_cbranch_scc1 L_end")
    a.i("s_getpc_b64 s[4:5]")
    a.label("L_pc")
    a.i("v_lshlrev_b32 v2, 7, v0")
    a.raw("    v_min_u32 v2, (L_end-L_pc), v2")
    if not opts.get('nopf'): a.i("global_load_dword v255, v2, s[4:5]", tag='pf')
    if opts.get('pf2'):
        a.i("v_lshlrev_b32 v2, 7, v0"); a.i("v_add_u32 v2, 32768, v2")
        a.raw("    v_min_u32 v2, (L_end-L_pc), v2")
        a.i("global_load_dword v255, v2, s[4:5]", tag='pf')
    a.i(f"v_and_b32 {L}, 63, v0")
    a.i("v_lshrrev_b32 v2, 6, v0")
    a.i("s_and_b32 s3, s2, 7")
    a.i(f"v_readfirstlane_b32 {sWV}, v2")
    a.i(f"s_lshr_b32 {sB}, s3, 2")
    a.i("s_lshr_b32 s4, s2, 3")
    a.i("s_and_b32 s5, s3, 3")
    a.i(f"s_lshl_b32 {sC}, s5, 2")
    a.i("s_lshr_b32 s5, s4, 3")
    a.i(f"s_add_u32 {sC}, {sC}, s5")
    a.i(f"s_and_b32 {sG}, s4, 7")
    a.i("s_lshl_b32 s5, s5, 1")
    a.i(f"s_add_u32 s6, s5, {sG}")
    a.i("s_sub_u32 s7, s6, 9")
    a.i("s_cmp_ge_u32 s6, 9")
    a.i(f"s_cselect_b32 {sROT}, s7, s6")
    if opts.get('order','own')=='own':
        a.i(f"s_add_u32 {sOFF}, s5, {sG}"); a.i(f"s_and_b32 {sOFF}, {sOFF}, 7")
        a.i("s_and_b32 s6, s3, 3"); a.i("s_lshl_b32 s6, s6, 1"); a.i(f"s_and_b32 s7, {sC}, 1"); a.i(f"s_add_u32 {sROT}, s6, s7")
        a.i(f"s_mov_b32 {sIDX}, {sOFF}")
    elif opts.get('order')=='norot': a.i(f"s_mov_b32 {sROT}, 0")
    a.i(f"s_lshl_b32 s6, {sC}, 7"); a.i(f"s_lshl_b32 s7, {sWV}, 5"); a.i("s_add_u32 s6, s6, s7")
    a.i(f"s_mul_i32 s6, s6, {XROW}")
    a.i(f"v_lshrrev_b32 v4, 3, {L}"); a.i(f"v_lshrrev_b32 v5, 4, {L}"); a.i(f"v_and_b32 v6, 7, {L}")
    a.i(f"v_mul_u32_u24 v4, {XROW}, v4")
    a.i(f"v_add_u32 v4, s6, v4")
    for i in range(4):
        a.i(f"v_add_u32 v7, {4*i}, v5"); a.i(f"v_and_b32 v7, 7, v7"); a.i(f"v_xor_b32 v7, v6, v7")
        a.i(f"v_lshl_add_u32 v7, v7, 4, v4")
        a.i(f"v_add_u32 {vXoff[i]}, {8*i*XROW-1024*i}, v7")
    a.i(f"s_mul_i32 s6, {sWV}, {16*WROW}"); a.i(f"s_mul_i32 s7, {sG}, 144"); a.i("s_add_u32 s6, s6, s7")
    a.i(f"s_add_u32 s6, s6, 1152")
    a.i(f"s_movk_i32 s7, {WROW}")
    a.i("v_mov_b32 v9, 0x40000000"); a.i("v_mov_b32 v8, 1008")
    for j in range(5):
        a.i(f"v_add_u32 v4, {64*j}, {L}")
        a.i(f"v_mul_u32_u24 v5, 52429, v4"); a.i(f"v_lshrrev_b32 v5, 20, v5")
        a.i(f"v_mul_u32_u24 v6, 20, v5"); a.i(f"v_sub_u32 v6, v4, v6")
        a.i(f"v_cmp_lt_u32 vcc, 8, v6")
        a.i(f"v_mul_lo_u32 v5, v5, s7")
        a.i(f"v_lshl_add_u32 v5, v6, 4, v5")
        a.i(f"v_cndmask_b32 v7, 0, v8, vcc")
        a.i(f"v_cmp_lt_u32 vcc, 17, v6")
        a.i(f"v_add3_u32 v5, v5, v7, s6")
        comp=1024*j if j<4 else 0
        if comp: a.i(f"v_subrev_u32 v5, {comp}, v5")
        else: a.i("s_nop 0")
        a.i(f"v_cndmask_b32 {vWoff[j]}, v5, v9, vcc")
    a.stamp('p_pre')
    a.wait(lg=0)
    a.stamp('p_karg')
    a.i(f"s_cmp_eq_u32 {sB}, 0")
    a.i("s_cselect_b32 s8, s36, s42");  a.i("s_cselect_b32 s9, s37, s43")
    a.i("s_cselect_b32 s12, s38, s44"); a.i("s_cselect_b32 s13, s39, s45")
    a.i(f"s_mov_b32 s10, {X_BYTES}"); a.i("s_mov_b32 s11, 0x00020000")
    a.i(f"s_mov_b32 s14, {W_BYTES}"); a.i("s_mov_b32 s15, 0x00020000")
    a.i("s_cselect_b32 s16, s40, s46"); a.i("s_cselect_b32 s17, s41, s47")
    a.i(f"s_mov_b32 {sCI}, {sROT}")
    a.i(f"s_mul_i32 {sWoff}, {sCI}, {64*WROW}")
    a.i(f"s_lshl_b32 {sXoff}, {sCI}, 7")

vTA='v[240:241]'
def touch_setup(a, opts):
    L=vLane
    a.i("s_lshr_b32 s4, s2, 3")
    a.i(f"v_cmp_le_u32 vcc, 18, {L}")
    a.i(f"v_mov_b32 v2, {XROW+18*128}")
    a.i(f"v_lshlrev_b32 v3, 7, {L}")
    a.i(f"v_mov_b32 v2, {WROW-18*128}")
    a.i(f"v_cndmask_b32 v2, 0, v2, vcc")
    a.i(f"v_add_u32 v3, v3, v2")
    a.i(f"s_mul_i32 s5, s4, {2*WROW}"); a.i(f"s_add_u32 s5, s5, {9*128}")
    a.i(f"v_add_u32 v3, s5, v3")
    a.i("s_and_b32 s5, s2, 3"); a.i("s_lshl_b32 s5, s5, 9"); a.i("s_lshl_b32 s6, s4, 4"); a.i("s_add_u32 s5, s5, s6")
    a.i(f"v_subrev_u32 v4, 36, {L}"); a.i(f"v_and_b32 v4, 15, v4"); a.i(f"v_add_u32 v4, s5, v4"); a.i(f"v_mul_u32_u24 v4, {XROW}, v4")
    a.i(f"v_cmp_le_u32 vcc, 36, {L}")
    a.i(f"v_mov_b32 v5, s12"); a.i("v_mov_b32 v6, s8"); a.i("v_mov_b32 v7, s13"); a.i("v_mov_b32 v8, s9")
    a.i(f"v_cndmask_b32 v3, v3, v4, vcc")
    a.i(f"v_cndmask_b32 v5, v5, v6, vcc")
    a.i(f"v_cndmask_b32 v7, v7, v8, vcc")
    a.i(f"v_mov_b32 v9, {64*WROW}"); a.i("v_mov_b32 v6, 128")
    a.i(f"v_cndmask_b32 v242, v9, v6, vcc")
    a.i(f"s_add_u32 s5, {sWV}, 1")
    a.i(f"v_mul_lo_u32 v9, v242, s5")
    a.i(f"v_add_u32 v3, v3, v9")
    a.i(f"v_add_co_u32 v240, vcc, v5, v3"); a.i("s_nop 1"); a.i(f"v_addc_co_u32 v241, vcc, 0, v7, vcc")
    a.i(f"v_lshlrev_b32 v242, 2, v242")
def touch_ins(second):
    L=[]
    if second:
        L+= ["v_add_co_u32 v240, vcc, v240, v242", "s_nop 1", "v_addc_co_u32 v241, vcc, 0, v241, vcc"]
    L+= ["s_mov_b64 exec, 0x000fffffffffffff" if False else "s_mov_b64 exec, s[6:7]", (f"global_load_dword v255, {vTA}, off",'touch'), "s_mov_b64 exec, -1"]
    return L
def touch_q(a):
    L=vLane
    a.i("s_lshr_b32 s4, s2, 3")
    a.i(f"v_mul_u32_u24 v2, 7282, {L}"); a.i("v_lshrrev_b32 v2, 16, v2")
    a.i(f"v_mul_u32_u24 v3, 9, v2"); a.i(f"v_sub_u32 v3, {L}, v3")
    a.i(f"v_min_u32 v2, 5, v2")
    a.i(f"s_min_u32 s5, {sWV}, 2"); a.i("s_mul_i32 s5, s5, 6"); a.i("s_mul_i32 s6, s4, 18"); a.i("s_add_u32 s5, s5, s6")
    a.i(f"v_add_u32 v2, s5, v2"); a.i(f"v_mul_u32_u24 v2, {WROW}, v2"); a.i(f"v_lshl_add_u32 v2, v3, 7, v2")
    a.i(f"buffer_load_dword v255, v2, {sW}, 0 offen", 'touch')
def touch_wo(a):
    L=vLane
    a.i(f"s_lshr_b32 {sT0}, s2, 3")
    a.i(f"s_min_u32 {sT1}, {sWV}, 2"); a.i(f"s_mul_i32 {sT1}, {sT1}, 54"); a.i(f"s_mul_i32 {sT0}, {sT0}, 162"); a.i(f"s_add_u32 {sT1}, {sT1}, {sT0}")
    a.i(f"v_min_u32 {vT}, 53, {L}"); a.i(f"v_add_u32 {vT}, {sT1}, {vT}"); a.i(f"v_lshlrev_b32 {vT}, 7, {vT}")
    a.i(f"buffer_load_dword v255, {vT}, {sWO}, 0 offen", 'touch')

ORDER_MODE=['own']
GOPT={}
def next_chunk_ins():
    if ORDER_MODE[0]=='own':
        return [f"s_add_u32 {sCI}, {sROT}, {sIDX}", f"s_add_u32 {sCI}, {sCI}, 1", f"s_sub_u32 {sT3}, {sCI}, 9", f"s_cmp_ge_u32 {sCI}, 9",
                f"s_cselect_b32 {sCI}, {sT3}, {sCI}", f"s_add_u32 {sIDX}, {sIDX}, 1", f"s_and_b32 {sIDX}, {sIDX}, 7",
                f"s_mul_i32 {sWoff}, {sCI}, {64*WROW}", f"s_lshl_b32 {sXoff}, {sCI}, 7"]
    return [f"s_add_u32 {sCI}, {sCI}, 1", f"s_cmp_eq_u32 {sCI}, 9", f"s_cselect_b32 {sCI}, 0, {sCI}",
            f"s_mul_i32 {sWoff}, {sCI}, {64*WROW}", f"s_lshl_b32 {sXoff}, {sCI}, 7"]

def dma_chunk_groups(slot, n):
    base=slot*SLOT; tag=f'ch{n}'; Gs=[]
    for i in range(4):
        pre=[f"s_lshl_b32 {sM0}, {sWV}, 12", f"s_add_u32 m0, {sM0}, {base+XOFF}", "s_nop 0"] if i==0 else []
        Gs.append(pre+[(f"buffer_load_dwordx4 {vXoff[i]}, {sX}, {sXoff} offen offset:{1024*i} lds", tag)])
    for j in range(4):
        pre=[f"s_mul_i32 {sM0}, {sWV}, 5120", f"s_add_u32 m0, {sM0}, {base}", "s_nop 0"] if j==0 else []
        Gs.append(pre+[(f"buffer_load_dwordx4 {vWoff[j]}, {sW}, {sWoff} offen offset:{1024*j} lds", tag)])
    Gs.append([f"s_add_u32 m0, {sM0}, {base+4096}", "s_nop 0", (f"buffer_load_dwordx4 {vWoff[4]}, {sW}, {sWoff} offen lds", tag)]+next_chunk_ins())
    return Gs

def dma_wq_groups(n):
    reg = SLOT*(1+n//3) + (n%3)*QCH
    Gs=[]
    for e in range(3):
        pre=[f"s_mul_i32 {sM0}, {sWV}, 3072", f"s_add_u32 m0, {sM0}, {reg}", "s_nop 0"] if e==0 else []
        post=next_chunk_ins() if e==2 else []
        Gs.append(pre+[(f"buffer_load_dwordx4 {vQoff[e]}, {sW}, {sWoff} offen offset:{1024*e} lds", f'wq{n}')]+post)
    return Gs

def setupA(a, opts):
    L=vLane
    a.c("---- setup A")
    a.i(f"v_bfe_u32 v4, {L}, 2, 2"); a.i(f"v_lshrrev_b32 v5, 5, {L}")
    a.i(f"v_lshl_add_u32 v4, v5, 3, v4")
    a.i(f"v_bfe_u32 v6, {L}, 4, 1"); a.i(f"v_and_b32 v7, 3, {L}")
    a.i(f"v_mul_u32_u24 v8, {WPITCH}, v4")
    a.i(f"v_lshlrev_b32 v9, 5, v6"); a.i(f"v_lshl_add_u32 v9, v7, 3, v9")
    a.i(f"v_add_u32 {vWr[0]}, v8, v9"); a.i(f"v_add_u32 {vWr[1]}, {2*SLOT}, {vWr[0]}")
    a.i(f"v_mul_u32_u24 v2, {QPITCH}, v4")
    a.i(f"v_add3_u32 {vQr}, v2, v9, 0"); a.i(f"v_add_u32 {vQr}, {SLOT}, {vQr}")
    a.i(f"v_lshl_add_u32 v9, v6, 2, v7")
    a.i(f"v_lshlrev_b32 v2, 3, v9"); a.i(f"v_add_u32 v2, 128, v2"); a.i(f"v_add_u32 v3, 128, v2")
    a.i(f"v_cmp_lt_u32 vcc, 1, v9"); a.i("s_nop 1")
    a.i(f"v_cndmask_b32 v2, v2, v3, vcc")
    a.i(f"v_add_u32 {vMx[0]}, v8, v2"); a.i(f"v_add_u32 {vMx[1]}, {2*SLOT}, {vMx[0]}")
    a.i(f"v_and_b32 v2, 31, {L}"); a.i(f"v_bfe_u32 v3, {L}, 1, 3"); a.i(f"v_xor_b32 v3, v3, v5")
    a.i(f"v_lshlrev_b32 v3, 4, v3"); a.i(f"v_lshl_add_u32 v3, v2, 7, v3")
    a.i(f"s_lshl_b32 s6, {sWV}, 12"); a.i(f"s_add_u32 s6, s6, {XOFF}")
    a.i(f"v_add_u32 v3, s6, v3")
    for t in range(4):
        a.i(f"v_xor_b32 {vXr[0][t]}, {32*t}, v3"); a.i(f"v_add_u32 {vXr[1][t]}, {2*SLOT}, {vXr[0][t]}")

PADN=[0]
def pagepad(a, opts, where):
    if where in str(opts.get('pads','')).split('+'):
        PADN[0]+=1
        a.i(f"s_branch L_pad{PADN[0]}")
        a.raw(".fill 1024, 4, 0xbf800000")
        a.label(f"L_pad{PADN[0]}")

class Rec:
    def __init__(self): self.l=[]
    def i(self, t, tag=None, cond=False): self.l.append((t,tag,cond) if tag or cond else t)
    def c(self, s): pass

def setupB0(a, opts):
    a.i("s_mov_b32 s20, s48"); a.i("s_mov_b32 s21, s49"); a.i(f"s_mov_b32 s22, {OUT_BYTES}"); a.i("s_mov_b32 s23, 0x00020000")
    a.i("s_mov_b32 s24, s52"); a.i("s_mov_b32 s25, s53"); a.i(f"s_mov_b32 s26, {WS_BYTES}"); a.i("s_mov_b32 s27, 0x00020000")
    a.i("s_mov_b32 s28, s50"); a.i("s_mov_b32 s29, s51"); a.i("s_mov_b32 s30, 256"); a.i("s_mov_b32 s31, 0x00020000")
    a.i(f"s_mov_b32 s18, {WO_BYTES}"); a.i("s_mov_b32 s19, 0x00020000")
    a.i(f"s_or_b32 s3, s2, {sWV}"); a.i("s_cmp_lg_u32 s3, 0"); a.i("s_cbranch_scc1 L_nononce")
    a.i("s_memrealtime s[4:5]"); a.i("s_waitcnt lgkmcnt(0)"); a.i("s_or_b32 s4, s4, 1")
    a.i("v_mov_b32 v2, s4"); a.i("v_mov_b32 v3, s5"); a.i("v_mov_b32 v4, 0")
    a.i("s_mov_b64 exec, 1")
    a.i(f"buffer_store_dwordx2 v[2:3], v4, {sDBG}, 0 offen sc1", cond=True)
    a.i("s_mov_b64 exec, -1")
    a.label("L_nononce"); a.lg_clear()

def setupB(a, opts):
    L=vLane
    a.c("---- setup B")
    a.i("s_mov_b32 s54, 0x3ffff"); a.i("s_mov_b32 s55, 0x3ffff"); a.i("s_not_b64 s[52:53], s[54:55]"); a.i("s_mov_b32 s56, -1"); a.i("s_mov_b32 s57, 0")
    a.i(f"s_mov_b32 {sSC}, {f2u(CSCALE):#x}")
    a.i(f"s_getreg_b32 {sXCC}, hwreg(HW_REG_XCC_ID, 0, 4)")
    a.i(f"s_mul_i32 s6, {sWV}, {16*WROW}"); a.i(f"s_mul_i32 s7, {sG}, 144"); a.i("s_add_u32 s6, s6, s7")
    a.i(f"s_movk_i32 s7, {WROW}"); a.i("v_mov_b32 v9, 0x40000000")
    for e in range(3):
        a.i(f"v_add_u32 v4, {64*e}, {L}")
        a.i(f"v_mul_u32_u24 v5, 21846, v4"); a.i(f"v_lshrrev_b32 v5, 18, v5")
        a.i(f"v_mul_u32_u24 v6, 12, v5"); a.i(f"v_sub_u32 v6, v4, v6")
        a.i(f"v_cmp_lt_u32 vcc, 8, v6")
        a.i(f"v_mul_lo_u32 v5, v5, s7"); a.i(f"v_lshl_add_u32 v5, v6, 4, v5")
        a.i(f"v_add_u32 v5, s6, v5"); a.i(f"v_subrev_u32 v5, {1024*e}, v5")
        a.i(f"v_cndmask_b32 {vQoff[e]}, v5, v9, vcc")
    a.i(f"v_and_b32 v2, 31, {L}"); a.i(f"v_lshrrev_b32 v5, 5, {L}")
    a.i(f"s_mul_i32 s6, {sWV}, {KBLK}"); a.i(f"s_add_u32 s7, s6, {KB0}"); a.i(f"s_cmp_eq_u32 {sWV}, 3"); a.i(f"s_cselect_b32 s7, {KB3}, s7")
    a.i(f"v_mul_u32_u24 v3, {KP}, v2"); a.i(f"v_lshl_add_u32 v3, v5, 3, v3")
    a.i(f"v_add_u32 {vKw}, s7, v3"); a.i(f"s_add_u32 s6, s6, {QBASE}"); a.i(f"v_add_u32 {vQw}, s6, v3")
    a.i(f"s_mul_i32 s6, {sWV}, {VB}"); a.i(f"s_add_u32 s6, s6, {VBASE}")
    a.i(f"v_mul_u32_u24 v3, {VR}, v5"); a.i(f"v_lshl_add_u32 v3, v2, 4, v3"); a.i(f"v_add_u32 {vVw}, s6, v3")
    a.i(f"v_bfe_u32 v3, {L}, 2, 1"); a.i(f"v_mul_u32_u24 v3, {VJ}, v3"); a.i(f"v_bfe_u32 v4, {L}, 1, 1"); a.i(f"v_mul_u32_u24 v4, {VR}, v4")
    a.i(f"v_add_u32 v3, v3, v4"); a.i(f"v_and_b32 v4, 1, {L}"); a.i(f"v_lshl_add_u32 v3, v4, 4, v3"); a.i(f"v_add_u32 v3, {72*16}, v3")
    a.i(f"v_add_u32 {vCw}, s6, v3")
    a.i(f"v_lshrrev_b32 v3, 4, v2"); a.i(f"v_mul_u32_u24 v3, {VJ}, v3"); a.i(f"v_bfe_u32 v4, v2, 2, 1")
    a.i(f"v_mul_u32_u24 v4, {VR}, v4"); a.i(f"v_add_u32 v3, v3, v4"); a.i(f"v_and_b32 v4, 3, v2")
    a.i(f"v_bfe_u32 v6, v2, 3, 1"); a.i(f"v_lshl_add_u32 v4, v6, 2, v4"); a.i(f"v_lshl_add_u32 v3, v4, 1, v3")
    a.i(f"v_lshl_add_u32 v3, v5, 6, v3"); a.i(f"v_add_u32 v3, {64*16}, v3"); a.i(f"v_add_u32 {vVt}, s6, v3")
    a.i(f"s_mul_i32 s6, {sWV}, 36"); a.i(f"v_mul_u32_u24 v3, {KP}, v2"); a.i(f"v_add_u32 v3, s6, v3")
    a.i(f"v_lshl_add_u32 {vKr}, v5, 4, v3")
    a.i(f"v_add_u32 {vKl}, 32, v3")
    a.i(f"s_mul_i32 s6, {sWV}, 18"); a.i(f"v_add_u32 v3, s6, v2"); a.i(f"v_and_b32 v4, 27, v2")
    a.i(f"v_cmp_eq_u32 vcc, 18, v4"); a.i(f"v_mov_b32 v4, 73"); a.i(f"v_mov_b32 v6, 72"); a.i(f"v_cndmask_b32 v4, v4, v6, vcc")
    a.i(f"v_cmp_gt_u32 vcc, 18, v2"); a.i("s_nop 1"); a.i(f"v_cndmask_b32 v3, v4, v3, vcc")
    a.i(f"v_lshlrev_b32 v3, 4, v3"); a.i(f"v_mul_u32_u24 v4, {VR}, v5"); a.i(f"v_add_u32 {vVr}, v3, v4")
    a.i(f"v_lshlrev_b32 {vPk}, 4, {L}"); a.i(f"v_lshlrev_b32 {vPl}, 2, v2"); a.i(f"v_add_u32 {vPl}, 1024, {vPl}")
    a.i(f"v_mul_u32_u24 v3, 288, v5"); a.i(f"v_lshl_add_u32 v3, v2, 4, v3"); a.i(f"v_add_u32 {vPv}, 1152, v3")
    a.i(f"s_lshl_b32 s6, {sWV}, 2"); a.i(f"v_lshrrev_b32 v3, 3, v2"); a.i(f"v_mul_u32_u24 v3, {OUTROW}, v3")
    a.i(f"v_and_b32 v4, 7, v2"); a.i(f"v_lshl_add_u32 v3, v4, 4, v3"); a.i(f"v_add_u32 {vOl}, s6, v3")
    a.i(f"v_and_b32 v3, 27, v2"); a.i(f"v_cmp_eq_u32 vcc, 18, v3"); a.i(f"v_mov_b32 v4, 0x3f803f80"); a.i("s_nop 0")
    a.i(f"v_cndmask_b32 {vVC}, 0, v4, vcc")
    a.i(f"s_lshl_b32 s6, {sB}, 3"); a.i(f"s_add_u32 s6, s6, {sG}"); a.i(f"s_lshl_b32 s6, s6, 4"); a.i(f"s_add_u32 s6, s6, {sC}")
    a.i(f"s_mul_i32 {sKVme}, s6, {SLOT}"); a.i(f"s_mul_i32 s7, {sWV}, 2304"); a.i(f"s_add_u32 {sKVme}, {sKVme}, s7")
    a.i(f"s_sub_u32 {sKV1}, {sKVme}, {SLOT}"); a.i(f"s_sub_u32 {sKV2}, {sKVme}, {2*SLOT}")
    a.i(f"s_cmp_ge_u32 {sC}, 1"); a.i(f"s_cselect_b32 {sKV1}, {sKV1}, 0x70000000")
    a.i(f"s_cmp_ge_u32 {sC}, 2"); a.i(f"s_cselect_b32 {sKV2}, {sKV2}, 0x70000000")
    a.i(f"s_lshl_b32 s6, s6, 2"); a.i(f"s_add_u32 s6, s6, {sWV}"); a.i(f"s_lshl_b32 s6, s6, 7")
    a.i(f"s_add_u32 {sFKV}, s6, {WS_FKV}")
    a.i(f"s_cmp_ge_u32 {sC}, 1"); a.i(f"s_cselect_b32 s6, -1, 0"); a.i(f"s_cmp_ge_u32 {sC}, 2"); a.i(f"s_cselect_b32 s7, -1, 0")
    a.i(f"v_and_b32 v2, s6, {vVC}"); a.i(f"v_and_b32 v3, s7, {vVC}"); a.i(f"v_mov_b32 v4, 0x3f803f80")
    a.i(f"v_and_b32 v6, s7, v4"); a.i(f"v_and_b32 v4, s6, v4")
    for hb in range(8):
        base=HALO+14*hb
        a.i(f"v_accvgpr_write_b32 a{base+5}, {'v6' if hb<4 else 'v4'}")
        for r in range(8): a.i(f"v_accvgpr_write_b32 a{base+6+r}, {'v3' if hb<4 else 'v2'}")
    a.i(f"v_and_b32 v2, 31, {L}"); a.i(f"v_lshlrev_b32 v3, 2, v5"); a.i(f"v_sub_u32 v2, v2, v3")
    a.i(f"v_mov_b32 v6, 0xffff"); a.i(f"v_mov_b32 v7, 0xffff0000")
    for u in range(8):
        r0=2*u; k0=(r0&3)+8*(r0>>2)
        a.i(f"v_cmp_le_i32 vcc, {k0}, v2"); a.i(f"v_cmp_le_i32 s[4:5], {k0+1}, v2"); a.i("s_nop 0")
        a.i(f"v_cndmask_b32 v3, 0, v6, vcc"); a.i(f"v_cndmask_b32 v4, 0, v7, s[4:5]")
        a.i(f"v_or_b32 v{MASKD+u}, v3, v4"); a.i(f"v_not_b32 v{MASKF+u}, v{MASKD+u}")
    a.i(f"s_lshl_b32 s6, {sC}, 7"); a.i(f"s_lshl_b32 s7, {sG}, 2"); a.i("s_add_u32 s6, s6, s7")
    a.i(f"s_mul_i32 s6, s6, {OUTROW}"); a.i(f"s_mul_i32 s7, {sB}, 1152"); a.i("s_add_u32 s6, s6, s7")
    a.i(f"s_add_u32 {sOL}, s6, 1024"); a.i(f"s_mul_i32 s7, {sWV}, {OUTROW}"); a.i(f"s_add_u32 {sOM}, s6, s7")
    a.i(f"s_lshr_b32 {sRH}, {sG}, 2"); a.i(f"s_and_b32 {sNQ}, {sG}, 3")
    a.i(f"s_lshl_b32 s7, {sRH}, 1"); a.i(f"s_lshr_b32 s3, {sWV}, 1"); a.i("s_add_u32 s3, s3, s7"); a.i("s_lshl_b32 s3, s3, 5")
    a.i(f"s_lshl_b32 s7, {sC}, 7"); a.i("s_add_u32 s3, s3, s7"); a.i(f"s_mul_i32 {sPOM}, s3, {OUTROW}")
    a.i(f"s_mul_i32 s7, {sB}, 1152"); a.i(f"s_add_u32 {sPOM}, {sPOM}, s7"); a.i(f"s_add_u32 {sPOL}, {sPOM}, 1024")
    a.i(f"s_lshl_b32 s6, {sC}, 7"); a.i(f"s_lshl_b32 s7, {sRH}, 6"); a.i("s_add_u32 s6, s6, s7")
    a.i(f"s_lshl_b32 s7, {sWV}, 4"); a.i("s_add_u32 s6, s6, s7"); a.i(f"s_mul_i32 {sOUTB}, s6, {OUTROW}")
    a.i(f"s_mul_i32 s7, {sB}, 1152"); a.i(f"s_add_u32 {sOUTB}, {sOUTB}, s7")
    a.i(f"s_mul_i32 s7, {sNQ}, 288"); a.i(f"s_add_u32 {sOUTB}, {sOUTB}, s7")
    a.i(f"s_lshl_b32 s6, {sB}, 4"); a.i(f"s_add_u32 s6, s6, {sC}"); a.i(f"s_lshl_b32 {sFO}, s6, 12")
    a.i(f"s_add_u32 {sFO}, {sFO}, {WS_FO}")
    a.i(f"v_mov_b32 v252, {f2u(2.0**-40):#x}"); a.i(f"v_mov_b32 v253, {f2u(2.0**40):#x}")
    a.i(f"s_mov_b64 {sBAD}, 0")

def wq_reads(tau):
    n,t=divmod(tau,4); b=tau%2
    off=(n%3)*QCH+16*QPITCH*t
    return [[(f"ds_read_b64_tr_b16 {QFh(b,f,h)}, {vQr} offset:{off+4*QPITCH*h+64*f}", f'q{tau}_{f}') for h in range(2)] for f in range(3)]

def drain_side(a, side, n):
    k=0; last=''
    while side and (k<n or last.startswith('s_cmp') or (side[0] if isinstance(side[0],str) else side[0][0]).startswith('s_cselect')):
        x=side.pop(0)
        if isinstance(x,tuple): a.i(*x); last=x[0]
        else: a.i(x); last=x
        k+=1

def phase1a(a, opts, pend):
    a.c("---- phase 1a")
    def reads(tau):
        n,t=divmod(tau,4); slot=n%4; hi=slot>=2; base=(slot%2)*SLOT; b=tau%2
        R=[[(f"ds_read_b128 {XF(tau)}, {vXr[hi][t]} offset:{base}", f'x{tau}')] +
           [(f"ds_read_b64_tr_b16 {WFh(b,0,h)}, {vWr[hi]} offset:{base+5120*t+1280*h}", f'w{tau}_0') for h in range(2)]]
        for f,co in ((1,64),(2,144),(3,208)):
            R.append([(f"ds_read_b64_tr_b16 {WFh(b,f,h)}, {vWr[hi]} offset:{base+5120*t+1280*h+co}", f'w{tau}_{f}') for h in range(2)])
        R.append([(f"ds_read_b64_tr_b16 {WFh(b,4,h)}, {vMx[hi]} offset:{base+5120*t+1280*h}", f'w{tau}_4') for h in range(2)])
        return R
    a.stamp('setup_done')
    a.wait(vm='ch0'); a.i("s_barrier")
    a.stamp('ch0_landed')
    for grp in reads(0): a.emit(grp)
    names=['K0','K1','V0','V1','MX']
    side=opts.get('_side',[])
    every=opts.get('dma_every',2)
    slotcnt=0
    for tau in range(36):
        n,t=divmod(tau,4); b=tau%2
        if t==0: a.stamp(f'c{n}')
        if t==0: pagepad(a,opts,f'c{n}')
        if t==3:
            a.wait(vm=f'ch{n+1}' if n<8 else 'wq0')
            a.i("s_barrier")
            if n<=5:
                pend += dma_chunk_groups((n+3)%4, n+3)
                if (n==5 and opts.get('wotouch',2)==1) or (n==0 and opts.get('wotouch',2)==3) or (n==2 and opts.get('wotouch',2)==4):
                    rec=Rec(); touch_wo(rec); pend.append(rec.l)
            elif n==6:
                pend.append([f"s_mov_b32 {sCI}, {sROT}", f"s_mul_i32 {sWoff}, {sCI}, {64*WROW}", f"s_mov_b32 {sIDX}, {sOFF}"])
                for q in range(3): pend += dma_wq_groups(q)
            elif n==7:
                for q in range(3,6): pend += dma_wq_groups(q)
            elif n==8:
                for q in range(6,9): pend += dma_wq_groups(q)
        R = reads(tau+1) if tau<35 else wq_reads(0)
        for m,nm in enumerate(names):
            a.wait(lg=[f'w{tau}_{m}']+([f'x{tau}'] if m==0 else []))
            acc=rng('v',ACC[nm],16); c='0' if tau==0 else acc
            if nm in ('V0','V1'): a.i(f"v_mfma_f32_32x32x16_bf16 {acc}, {XF(tau)}, {WF(b,m)}, {c}")
            else: a.i(f"v_mfma_f32_32x32x16_bf16 {acc}, {WF(b,m)}, {XF(tau)}, {c}")
            if m<len(R): a.emit(R[m])
            slotcnt+=1
            if pend and slotcnt%every==0: a.emit(pend.pop(0))
            elif side: drain_side(a, side, opts.get('side_n',4))
        if tau==30:
            a.i(f"v_mov_b32 {vT}, 0")
            a.i(f"buffer_load_dwordx2 {vNON}, {vT}, {sDBG}, 0 offen sc1", tag='nonce')
    assert not side, len(side)
    return pend

def epi1a_list():
    A=[]; T=76
    for ti,nm in enumerate(('K0','K1')):
        base=ACC[nm]
        for i in range(4):
            t0=T+2*(i%2)
            A+= [f"v_cvt_pk_bf16_f32 v{t0}, v{base+4*i}, v{base+4*i+1}", f"v_cvt_pk_bf16_f32 v{t0+1}, v{base+4*i+2}, v{base+4*i+3}",
                 (f"ds_write2_b32 {vKw}, v{t0}, v{t0+1} offset0:{16*ti+4*i} offset1:{16*ti+4*i+1}",'e1w')]
    for ti,nm in enumerate(('V0','V1')):
        base=ACC[nm]
        for j in range(2):
            t0=T+4+4*j
            for u in range(4): A.append(f"v_cvt_pk_bf16_f32 v{t0+u}, v{base+8*j+2*u}, v{base+8*j+2*u+1}")
            A.append((f"ds_write_b128 {vVw}, v[{t0}:{t0+3}] offset:{VJ*j+512*ti}",'e1w'))
    base=ACC['MX']; t0=T+12
    A+= [f"v_cvt_pk_bf16_f32 v{t0}, v{base}, v{base+1}", f"v_cvt_pk_bf16_f32 v{t0+1}, v{base+2}, v{base+3}",
         (f"ds_write2_b32 {vKw}, v{t0}, v{t0+1} offset0:32 offset1:33",'e1w'),
         f"v_cvt_pk_bf16_f32 v{t0+2}, v{base+4}, v{base+5}", f"v_cvt_pk_bf16_f32 v{t0+3}, v{base+6}, v{base+7}",
         (f"ds_write_b16 {vVt}, v{t0+2}",'e1w'), (f"ds_write_b16_d16_hi {vVt}, v{t0+2} offset:16",'e1w'),
         (f"ds_write_b16 {vVt}, v{t0+3} offset:32",'e1w'), (f"ds_write_b16_d16_hi {vVt}, v{t0+3} offset:48",'e1w')]
    A+= [f"v_and_b32 v{t0}, 1, {vLane}", f"v_cmp_eq_u32 vcc, 0, v{t0}", f"v_mov_b32 v{t0+1}, 0x3f803f80", "s_nop 0",
         f"v_cndmask_b32 v{t0}, 0, v{t0+1}, vcc", f"v_mov_b32 v{t0+1}, v{t0}", f"v_mov_b32 v{t0+2}, v{t0}", f"v_mov_b32 v{t0+3}, v{t0}",
         "s_mov_b64 exec, 0xff", (f"ds_write_b128 {vCw}, v[{t0}:{t0+3}]",'e1w'), "s_mov_b64 exec, -1"]
    return A

def own_presets():
    L=[f"v_mov_b32 v91, 0x3f803f80"]
    for bt in range(4): L.append(f"v_mov_b32 v{OWN+14*bt+5}, v91")
    return L
def own_reads():
    L=[]
    for bt in range(4):
        base=OWN+14*bt
        kb = KB0+KBLK*bt if bt<3 else KB3
        L.append(f"v_add_u32 v88, {kb}, {vKr}"); L.append(f"v_add_u32 v89, {kb}, {vKl}")
        L.append((f"ds_read2_b32 v[{base}:{base+1}], v88 offset0:0 offset1:1",'own'))
        L.append((f"ds_read2_b32 v[{base+2}:{base+3}], v88 offset0:2 offset1:3",'own'))
        L.append((f"ds_read_b32 v{base+4}, v89",'own'))
    for bt in range(4):
        base=OWN+14*bt
        for j in range(2): L.append((f"ds_read_b128 v[{base+6+4*j}:{base+9+4*j}], {vVr} offset:{VB*bt+VJ*j}",'own'))
    return L
def own_store_groups(mod='sc1'):
    Gs=[]
    for bt in range(4):
        base=OWN+14*bt; tag='pubA' if bt<2 else 'pubB'
        Gs.append([f"s_add_u32 {sT0}, {sKVme}, {9216*bt}", (f"buffer_store_dwordx4 v[{base}:{base+3}], {vPk}, {sWS}, {sT0} offen {mod}",tag)])
        Gs.append([f"s_add_u32 {sT0}, {sKVme}, {9216*bt}", f"s_mov_b64 exec, {sLO}", (f"buffer_store_dword v{base+4}, {vPl}, {sWS}, {sT0} offen {mod}",tag), "s_mov_b64 exec, -1"])
        for j in range(2):
            Gs.append([f"s_add_u32 {sT0}, {sKVme}, {9216*bt}", f"s_mov_b64 exec, {sVM}", (f"buffer_store_dwordx4 v[{base+6+4*j}:{base+9+4*j}], {vPv}, {sWS}, {sT0} offen offset:{576*j} {mod}",tag), "s_mov_b64 exec, -1"])
    return Gs

def flag_store_ins(cnt):
    return [f"s_add_u32 {sT1}, {sNONh}, {cnt}", f"v_mov_b32 v2, {sNONl}", f"v_mov_b32 v3, {sT1}", f"v_mov_b32 v4, 0",
            "s_mov_b64 exec, 1", (f"buffer_store_dwordx2 v[2:3], v4, {sWS}, {sFKV} offen sc1", f'kvflag{cnt}'), "s_mov_b64 exec, -1"]

def xt_base():
    return [f"s_lshl_b32 {sT0}, {sB}, 4", f"s_add_u32 {sT0}, {sT0}, {sC}", f"s_lshl_b32 {sT0}, {sT0}, 10", f"s_add_u32 {sT0}, {sT0}, {WS_XT}"]
def xt_store():
    return xt_base()+[f"s_add_u32 {sLFH}, {sXCC}, 1", f"s_lshl_b32 {sLFH}, {sLFH}, 8", f"s_add_u32 {sLFH}, {sLFH}, {sNONh}",
            f"s_lshl_b32 {sT1}, {sG}, 7", f"s_add_u32 {sT0}, {sT0}, {sT1}",
            f"v_mov_b32 v2, {sNONl}", f"v_mov_b32 v3, {sLFH}", f"v_mov_b32 v4, 0",
            "s_mov_b64 exec, 1", (f"buffer_store_dwordx2 v[2:3], v4, {sWS}, {sT0} offen sc1",'xt'), "s_mov_b64 exec, -1"]
def xt_load():
    return xt_base()+[f"v_lshlrev_b32 v2, 7, {vLane}", "s_mov_b64 exec, 0xff",
            (f"buffer_load_dwordx2 v[8:9], v2, {sWS}, {sT0} offen sc1",'xtl'), "s_mov_b64 exec, -1"]
def xt_check(a):
    a.wait(vm='xtl')
    a.i("s_mov_b64 exec, 0xff")
    a.i(f"v_cmp_eq_u32 vcc, {sNONl}, v8"); a.i(f"v_cmp_eq_u32 s[4:5], {sLFH}, v9")
    a.i("s_mov_b64 exec, -1")
    a.i("s_and_b64 s[4:5], s[4:5], vcc"); a.i("s_and_b32 s4, s4, 0xff"); a.i("s_cmp_eq_u32 s4, 0xff")
    a.i(f"s_cselect_b32 {sLOC}, 1, 0")
    if GOPT.get('force_remote'): a.i(f"s_mov_b32 {sLOC}, 0")

def wo_group_for(kbase):
    setup=[f"s_add_u32 {sT1}, {sWV}, {kbase}", f"s_mul_i32 {sT2}, {sT1}, 41472", f"s_mul_i32 {sT3}, {sT1}, 9216"]
    return wo8_groups(setup)

def phase1b(a, pend, opts):
    a.c("---- phase 1b")
    a.stamp('1a_end')
    q=[]; stores=[]; wo=[]
    E2=opts.get('e2',4)
    FAST=opts.get('fastA',1)
    sched={}
    tt=E2+1
    for g in range(16):
        sched.setdefault(tt,[]).append(g)
        tt += 1 if (g<7 and FAST) else 2
    FLAGA=opts.get('flagA',24)
    woaddr=[f"v_mov_b32 {d_}, {s_}" for d_,s_ in zip(vWOm+vWOl+vWOt,vWOtmp)]+wo8_setup()
    for tau in range(36):
        n,t=divmod(tau,4); b=tau%2
        a.stamp(f'b{tau}_')
        if tau==1:
            a.i("s_barrier"); q+=epi1a_list()
        if tau==E2:
            a.drain(q,1000); a.wait(lg=0); a.i("s_barrier")
            a.emit(own_reads())
        if tau==E2+1:
            a.wait(lg='own')
            a.stamp('pub_start')
            stores=own_store_groups()
            q+=woaddr
        if tau==E2+3:
            a.i("s_barrier")
        if tau==E2+6: wo+=wo_group_for(0); q+=own_presets()
        if tau==15: wo+=wo_group_for(4)
        if tau==27: wo+=wo_group_for(8)
        if tau==FLAGA:
            a.wait(vm='pubA'); get_nonce(a); a.emit(flag_store_ins(2)); a.stamp('flagA')
            if opts.get('olocal'): a.emit(xt_store())
        if t==3 and tau<35:
            a.wait(vm=f'wq{n+1}')
            a.i("s_barrier")
            if (n+1)%3==0: a.i(f"v_add_u32 {vQr}, {SLOT}, {vQr}")
        R = wq_reads(tau+1) if tau<35 else []
        for m,nm in enumerate(('Q0','Q1','Q2')):
            a.wait(lg=[f'q{tau}_{m}'])
            acc=rng('v',ACC[nm],16); c='0' if tau==0 else acc
            a.i(f"v_mfma_f32_32x32x16_bf16 {acc}, {QF(b,m)}, {XF(tau)}, {c}")
            if m<len(R): a.emit(R[m])
            if m==0 and tau in sched:
                for g in sched[tau]:
                    if opts.get('nopub'):
                        for x in stores[g]:
                            if isinstance(x,tuple): a.vm.append(x[1])
                    else: a.emit(stores[g])
            elif q and tau<E2: a.drain(q,opts.get('epi_rate',7))
            elif pend: a.emit(pend.pop(0))
            elif q: drain_side2(a,q,4)
            elif opts.get('nowo1b',1): pass
            elif wo and m==2: a.emit(wo.pop(0))
            elif wo and m==1 and opts.get('wo2',1): a.emit(wo.pop(0))
    assert not pend and not q, (len(pend),len(q))
    for tt_ in sorted(sched):
        if tt_>35:
            for g in sched[tt_]: a.emit(stores[g])
    opts['_wo_left']=wo
    a.stamp('1b_end')
    a.emit(kv_flag_load(0))
    a.nop(14)
    T=76
    a.i(f"v_mov_b32 v90, {sSC}"); a.i(f"v_mov_b32 v91, {sSC}")
    for ti,nm in enumerate(('Q0','Q1','Q2')):
        base=ACC[nm]; ni=4 if ti<2 else 1
        for r in range(0,4*ni,2): a.i(f"v_pk_mul_f32 v[{base+r}:{base+r+1}], v[90:91], v[{base+r}:{base+r+1}]")
    for ti,nm in enumerate(('Q0','Q1','Q2')):
        base=ACC[nm]; ni=4 if ti<2 else 1
        for i in range(ni):
            t0=T+2*((ti*4+i)%8)
            a.i(f"v_cvt_pk_bf16_f32 v{t0}, v{base+4*i}, v{base+4*i+1}"); a.i(f"v_cvt_pk_bf16_f32 v{t0+1}, v{base+4*i+2}, v{base+4*i+3}")
            a.i(f"ds_write2_b32 {vQw}, v{t0}, v{t0+1} offset0:{16*ti+4*i} offset1:{16*ti+4*i+1}",'e2w')
    a.i(f"v_mov_b32 {vT}, 0")
    for i in range(4):
        for r in range(4,8): a.i(f"v_accvgpr_write_b32 a{8*i+r}, {vT}")
    a.wait(lg=0); a.i("s_barrier")
    for i in range(4):
        a.i(f"v_add_u32 v88, {QBASE+KBLK*i}, {vKr}")
        a.i(f"ds_read2_b32 a[{8*i}:{8*i+1}], v88 offset0:0 offset1:1",'qf')
        a.i(f"ds_read2_b32 a[{8*i+2}:{8*i+3}], v88 offset0:2 offset1:3",'qf')
    a.i(f"s_mov_b64 exec, {sLO}")
    for i in range(4):
        a.i(f"v_add_u32 v89, {QBASE+KBLK*i}, {vKl}")
        a.i(f"ds_read_b32 a{8*i+4}, v89",'qf')
    a.i("s_mov_b64 exec, -1")
    a.wait(lg='qf')
    a.i("s_barrier")
    a.stamp('q_ready')

def drain_side2(a, q, n):
    k=0; inexec=False; last=''
    while q and (k<n or inexec or last.startswith('s_cmp') or (q[0] if isinstance(q[0],str) else q[0][0]).startswith('s_cselect')):
        x=q.pop(0)
        txt=x[0] if isinstance(x,tuple) else x
        if txt.startswith('s_mov_b64 exec'): inexec = not txt.endswith('-1')
        if isinstance(x,tuple): a.i(*x)
        else: a.i(x)
        last=txt; k+=1

vFL='v[6:7]'; vFA='v5'
def kv_flag_load(rnd):
    L=[]
    if rnd==0:
        L+= [f"s_cmp_ge_u32 {sC}, 2", f"s_cselect_b32 {sT1}, 2, 1", f"s_lshl_b32 {sT1}, {sT1}, 9",
             f"s_sub_u32 {sT0}, {sFKV}, 512", f"s_sub_u32 {sT1}, {sFKV}, {sT1}",
             f"s_cmp_eq_u32 {sC}, 0", f"s_cselect_b32 {sT0}, {sFKV}, {sT0}", f"s_cselect_b32 {sT1}, {sFKV}, {sT1}",
             f"v_mov_b32 v8, {sT0}", f"v_mov_b32 v9, {sT1}", f"v_cmp_eq_u32 vcc, 0, {vLane}", "s_nop 1",
             f"v_cndmask_b32 {vFA}, v9, v8, vcc"]
    L+= ["s_mov_b64 exec, 3", (f"buffer_load_dwordx2 {vFL}, {vFA}, {sWS}, 0 offen sc1", f'fl{rnd}'), "s_mov_b64 exec, -1"]
    return L

def kv_flag_check(a, rnd, need):
    a.wait(vm=f'fl{rnd}')
    a.i(f"s_mov_b32 {sCNT}, 200000")
    a.label(f"L_chk{rnd}")
    a.i(f"s_cmp_eq_u32 {sC}, 0"); a.i(f"s_cbranch_scc1 L_ok{rnd}")
    a.i("s_mov_b64 exec, 3")
    a.i(f"v_subrev_u32 v8, {sNONh}, v7")
    a.i(f"v_cmp_eq_u32 vcc, {sNONl}, v6")
    a.i(f"v_cmp_le_u32 s[4:5], {need}, v8")
    a.i(f"v_cmp_ge_u32 s[6:7], 4, v8")
    a.i("s_mov_b64 exec, -1")
    a.i("s_and_b64 s[4:5], s[4:5], vcc"); a.i("s_and_b64 s[4:5], s[4:5], s[6:7]"); a.i("s_and_b32 s4, s4, 3")
    a.i("s_cmp_eq_u32 s4, 3"); a.i(f"s_cbranch_scc1 L_ok{rnd}")
    a.i("s_mov_b64 exec, 3")
    a.i(f"buffer_load_dwordx2 {vFL}, {vFA}, {sWS}, 0 offen sc1", cond=True)
    a.i("s_mov_b64 exec, -1")
    a.i("s_waitcnt vmcnt(0)")
    a.i(f"s_sub_u32 {sCNT}, {sCNT}, 1"); a.i(f"s_cmp_lg_u32 {sCNT}, 0"); a.i(f"s_cbranch_scc1 L_chk{rnd}")
    a.label(f"L_ok{rnd}")
    a.stamp(f'chk{rnd}')

def wo_addr(a):
    L=vLane
    a.i(f"s_mul_i32 s6, {sNQ}, 288")
    a.i(f"v_lshrrev_b32 v4, 4, {L}")
    a.i(f"v_and_b32 v5, 15, {L}")
    for par in range(2):
        a.i(f"v_add_u32 v6, {4*par}, v4"); a.i(f"v_lshlrev_b32 v6, 1, v6"); a.i(f"v_xor_b32 v6, v5, v6")
        a.i(f"v_lshlrev_b32 v6, 4, v6"); a.i(f"v_add_u32 v6, s6, v6")
        a.i(f"v_mul_u32_u24 v7, {XROW}, v4"); a.i(f"v_add_u32 {vWOm[par]}, v6, v7")
        a.i(f"v_lshrrev_b32 v7, 1, v4"); a.i(f"v_mul_u32_u24 v7, 18, v7"); a.i(f"v_and_b32 v8, 1, v4"); a.i(f"v_add_u32 v7, v7, v8")
        a.i(f"v_mul_u32_u24 v7, {XROW}, v7"); a.i(f"v_add_u32 {vWOl[par]}, v6, v7")
    a.i(f"v_lshrrev_b32 v4, 1, {L}")
    a.i(f"v_and_b32 v5, 1, {L}"); a.i(f"v_lshlrev_b32 v5, 4, v5"); a.i(f"v_add_u32 v5, 256, v5"); a.i(f"v_add_u32 v5, s6, v5")
    a.i(f"v_bfe_u32 v6, v4, 2, 2")
    a.i(f"v_and_b32 v7, 3, v4"); a.i(f"v_lshrrev_b32 v8, 4, v4")
    a.i(f"v_lshrrev_b32 v2, 1, v6"); a.i(f"v_mul_u32_u24 v2, 18, v2"); a.i(f"v_add_u32 v2, v2, v7"); a.i(f"v_lshl_add_u32 v2, v8, 3, v2")
    a.i(f"v_and_b32 v3, 1, v6"); a.i(f"v_lshl_add_u32 v2, v3, 2, v2"); a.i(f"v_mul_u32_u24 v2, {XROW}, v2"); a.i(f"v_add_u32 {vWOt[0]}, v2, v5")
    a.i(f"v_lshl_add_u32 v7, v8, 2, v7")
    a.i(f"v_lshrrev_b32 v2, 1, v7"); a.i(f"v_lshl_add_u32 v2, v6, 2, v2"); a.i(f"v_mul_u32_u24 v2, 18, v2")
    a.i(f"v_and_b32 v3, 1, v7"); a.i(f"v_add3_u32 v2, v2, v3, 16"); a.i(f"v_mul_u32_u24 v2, {XROW}, v2"); a.i(f"v_add_u32 {vWOt[1]}, v2, v5")

vWO8=[f'v{22+e}' for e in range(8)]
def wo8_setup():
    L=[]
    for e in range(8):
        const=(((e&3)>>1)*18+8*(e>>2)+4*(e&1))*XROW-1024*(e%4)
        if const>=0: L.append(f"v_add_u32 {vWO8[e]}, {const}, {vWOm[e&1]}")
        else: L.append(f"v_subrev_u32 {vWO8[e]}, {-const}, {vWOm[e&1]}")
    return L
def wo8_groups(uniform_setup):
    Gs=[]
    for e in range(8):
        pre = list(uniform_setup) if e==0 else []
        if e%4==0: pre += [f"s_add_u32 m0, {sT3}, {4096*(e//4)}", "s_nop 0"]
        Gs.append(pre+[(f"buffer_load_dwordx4 {vWO8[e]}, {sWO}, {sT2} offen offset:{1024*(e%4)} lds",'wo')])
    Gs.append([f"s_add_u32 m0, {sT3}, 8192", "s_nop 0", (f"buffer_load_dwordx4 {vWOt[0]}, {sWO}, {sT2} offen lds",'wo')])
    return Gs

def wo_dma_groups(kap, slot, uniform_setup):
    Gs=[]
    left = kap>=16
    for e in range(8):
        if left: const=((4*(e&3)+2*(e>>2))*18+16)*XROW
        else: const=(((e&3)>>1)*18+8*(e>>2)+4*(e&1))*XROW
        pre = list(uniform_setup) if e==0 else []
        if e%4==0: pre += [f"s_add_u32 m0, {sT3}, {4096*(e//4)}"]
        voff=(vWOl if left else vWOm)[e&1]
        Gs.append(pre+[f"s_add_u32 {sWOs}, {sT2}, {const-1024*(e%4)}" if const-1024*(e%4)>=0 else f"s_sub_u32 {sWOs}, {sT2}, {1024*(e%4)-const}",
                       (f"buffer_load_dwordx4 {voff}, {sWO}, {sWOs} offen offset:{1024*(e%4)} lds",'wo')])
    Gs.append([f"s_add_u32 m0, {sT3}, 8192", "s_nop 0", (f"buffer_load_dwordx4 {vWOt[1 if left else 0]}, {sWO}, {sT2} offen lds",'wo')])
    return Gs

def wo_prefetch_groups():
    Gs=[]
    for it in range(4):
        setup=[f"s_add_u32 {sT1}, {sWV}, {4*it}", f"s_mul_i32 {sT2}, {sT1}, 41472", f"s_mul_i32 {sT3}, {sT1}, 9216"]
        Gs+=wo_dma_groups(0,None,setup)
    return Gs

def wo_left_groups(L_, ldsbase, regs=None):
    vl0,vl1,vt = regs or (vWOl[0],vWOl[1],vWOt[1])
    g0=L_*16*18*XROW
    setup=[f"s_lshl_b32 {sT1}, {sWV}, 1", f"s_and_b32 {sT1}, {sT1}, 3", f"s_lshl_b32 {sT1}, {sT1}, 2",
           f"s_lshr_b32 {sT2}, {sWV}, 1", f"s_lshl_b32 {sT2}, {sT2}, 1", f"s_add_u32 {sT1}, {sT1}, {sT2}",
           f"s_mul_i32 {sT1}, {sT1}, {18*XROW}", f"s_add_u32 {sT2}, {sT1}, {g0+16*XROW}",
           f"s_lshl_b32 {sT1}, {sWV}, 11", f"s_add_u32 m0, {sT1}, {ldsbase}", "s_nop 0"]
    G0=setup+[(f"buffer_load_dwordx4 {vl0}, {sWO}, {sT2} offen lds",'wo')]
    G1=[f"s_add_u32 {sT2}, {sT2}, {4*18*XROW-1024}", (f"buffer_load_dwordx4 {vl1}, {sWO}, {sT2} offen offset:1024 lds",'wo')]
    G2=[f"s_mov_b32 {sT2}, {g0}", f"s_mov_b32 m0, {ldsbase+8192}", "s_nop 0", (f"buffer_load_dwordx4 {vt}, {sWO}, {sT2} offen lds",'wo')]
    return [G0,G1,G2]

def halo_load_groups(hb):
    base=HALO+14*hb; src=sKV2 if hb<4 else sKV1; bt=hb%4; tg=f'h{hb}'
    return [[f"s_add_u32 {sT0}, {src}, {9216*bt}",
             (f"buffer_load_dwordx4 a[{base}:{base+3}], {vPk}, {sWS}, {sT0} offen sc1", tg),
             (f"buffer_load_dword a{base+4}, {vPl}, {sWS}, {sT0} offen sc1", tg),
             f"s_mov_b64 exec, {sVM}",
             (f"buffer_load_dwordx4 a[{base+6}:{base+9}], {vPv}, {sWS}, {sT0} offen sc1", tg),
             (f"buffer_load_dwordx4 a[{base+10}:{base+13}], {vPv}, {sWS}, {sT0} offen offset:576 sc1", tg),
             "s_mov_b64 exec, -1"]]

def get_nonce(a):
    a.i(f"v_readfirstlane_b32 {sNONl}, v48"); a.i(f"v_readfirstlane_b32 {sNONh}, v49"); a.i("s_nop 1")
    a.i(f"s_or_b32 {sT0}, {sNONl}, {sNONh}"); a.i(f"s_cmp_lg_u32 {sT0}, 0"); a.i("s_cbranch_scc1 L_have_nonce")
    a.i(f"s_mov_b32 {sCNT}, 100000")
    a.label("L_nonce_poll")
    a.i(f"v_mov_b32 {vT}, 0")
    a.i(f"buffer_load_dwordx2 {vNON}, {vT}, {sDBG}, 0 offen sc1", cond=True)
    a.i("s_waitcnt vmcnt(0)")
    a.i(f"v_readfirstlane_b32 {sNONl}, v48"); a.i(f"v_readfirstlane_b32 {sNONh}, v49"); a.i("s_nop 1")
    a.i(f"s_or_b32 {sT0}, {sNONl}, {sNONh}"); a.i(f"s_cmp_lg_u32 {sT0}, 0"); a.i("s_cbranch_scc1 L_have_nonce")
    a.i("s_sleep 2"); a.i(f"s_sub_u32 {sCNT}, {sCNT}, 1"); a.i(f"s_cmp_lg_u32 {sCNT}, 0"); a.i("s_cbranch_scc1 L_nonce_poll")
    a.label("L_have_nonce")

def kv_regs(jb): return ('v', OWN+14*jb) if jb>=0 else ('a', HALO+14*(jb+8))
HORDER=[-4,-3,-8,-7,-2,-1,-6,-5]
def tile_list():
    T=[(i,bt) for i in range(4) for bt in range(i+1)]
    for jb in HORDER[:4]:
        for i in range(4):
            if i-jb<=8: T.append((i,jb))
    if GOPT.get('r2_by_q',0):
        for i in (3,2,1,0):
            for jb in HORDER[4:]:
                if i-jb<=8: T.append((i,jb))
    else:
        for jb in HORDER[4:]:
            for i in range(4):
                if i-jb<=8: T.append((i,jb))
    return T

def norm_block(i):
    O=OACC+16*i; t=84; L=[]
    L.append(f"v_rcp_f32 v{t}, v{O+10}")
    L.append(f"v_pk_add_f32 v[{t+2}:{t+3}], v[{O}:{O+1}], v[{O+2}:{O+3}]")
    L.append(f"v_pk_add_f32 v[{t+4}:{t+5}], v[{O+4}:{O+5}], v[{O+6}:{O+7}]")
    L.append(f"v_mov_b32 v{t+1}, v{t}")
    L.append(f"v_pk_add_f32 v[{t+2}:{t+3}], v[{t+2}:{t+3}], v[{O+8}:{O+9}]")
    L.append(f"v_pk_add_f32 v[{t+2}:{t+3}], v[{t+2}:{t+3}], v[{t+4}:{t+5}]")
    for r in range(0,10,2): L.append(f"v_pk_mul_f32 v[{O+r}:{O+r+1}], v[{t}:{t+1}], v[{O+r}:{O+r+1}]")
    L.append(f"v_add_f32 v{t+2}, v{t+2}, v{t+3}")
    L.append(f"v_fma_f32 v{t+2}, v{t+2}, 0, v{O+10}")
    for u in range(5): L.append(f"v_cvt_pk_bf16_f32 v{O+u}, v{O+2*u}, v{O+2*u+1}")
    L.append(f"v_cmp_nle_f32 vcc, v252, v{t+2}")
    L.append(f"v_cmp_nge_f32 s[4:5], v253, v{t+2}")
    L.append(f"s_add_u32 {sT0}, {sOM}, {i*32*OUTROW}"); L.append(f"s_add_u32 {sT1}, {sOL}, {i*32*OUTROW}")
    L.append(f"s_or_b64 {sBAD}, {sBAD}, vcc"); L.append(f"s_or_b64 {sBAD}, {sBAD}, s[4:5]")
    L.append(('OSTORE',i))
    return L

def emit_ostore(a, i):
    O=OACC+16*i
    if not GOPT.get('olocal'):
        a.i(f"buffer_store_dwordx4 v[{O}:{O+3}], {vPk}, {sOUT}, {sT0} offen sc1", 'ost')
        a.i(f"s_mov_b64 exec, {sLO}")
        a.i(f"buffer_store_dword v{O+4}, {vOl}, {sOUT}, {sT1} offen sc1", 'ost')
        a.i(f"s_mov_b64 exec, -1")
        return
    a.i(f"s_cmp_eq_u32 {sLOC}, 1"); a.i(f"s_cbranch_scc1 L_osl{i}")
    a.i(f"buffer_store_dwordx4 v[{O}:{O+3}], {vPk}, {sOUT}, {sT0} offen sc1", 'x', True)
    a.i(f"s_mov_b64 exec, {sLO}")
    a.i(f"buffer_store_dword v{O+4}, {vOl}, {sOUT}, {sT1} offen sc1", 'x', True)
    a.i(f"s_mov_b64 exec, -1")
    a.i(f"s_branch L_ose{i}")
    a.label(f"L_osl{i}")
    a.i(f"buffer_store_dwordx4 v[{O}:{O+3}], {vPk}, {sOUT}, {sT0} offen", 'ost')
    a.i(f"s_mov_b64 exec, {sLO}")
    a.i(f"buffer_store_dword v{O+4}, {vOl}, {sOUT}, {sT1} offen", 'ost')
    a.i(f"s_mov_b64 exec, -1")
    a.label(f"L_ose{i}")

def o_pretouch():
    L=vLane
    return [f"v_lshrrev_b32 v2, 3, {L}", f"v_mul_u32_u24 v2, {32*OUTROW}, v2", f"v_and_b32 v3, 7, {L}", f"v_lshl_add_u32 v2, v3, 7, v2",
            f"v_add_u32 v2, {sOM}, v2",
            f"v_bfe_u32 v3, {L}, 2, 2", f"v_mul_u32_u24 v3, {32*OUTROW}, v3", f"v_and_b32 v4, 3, {L}", f"v_mul_u32_u24 v4, {OUTROW}, v4",
            f"v_add3_u32 v3, v3, v4, {sOL}",
            f"v_cmp_le_u32 vcc, 32, {L}", f"s_lshl_b32 {sT0}, {sG}, 2", f"s_add_u32 {sT0}, {sT0}, {sWV}", f"v_cndmask_b32 v2, v2, v3, vcc",
            "s_mov_b32 s4, -1", "s_mov_b32 s5, 0xffff", "s_mov_b64 exec, s[4:5]",
            (f"buffer_load_dword v255, v2, {sOUT}, 0 offen",'touch'), "s_mov_b64 exec, -1",
            f"s_lshl_b32 {sT0}, {sT0}, 7", f"s_add_u32 {sT0}, {sT0}, {sFO}",
            f"v_mul_u32_u24 v2, {WS_FWL-WS_FOL}, {L}", f"v_add_u32 v2, {WS_FOL-WS_FO}, v2",
            "s_mov_b64 exec, 3", (f"buffer_load_dword v255, v2, {sWS}, {sT0} offen",'touch'), "s_mov_b64 exec, -1"]

def attention(a, opts):
    a.c("---- attention")
    T=tile_list(); n=len(T)
    first={}; last={}; firstuse={}
    for k,(i,jb) in enumerate(T):
        first.setdefault(i,k); last[i]=k; firstuse.setdefault(jb,k)
    Sreg=lambda k: (S0 if k%2==0 else S1)
    Preg=lambda k: (P0 if k%2==0 else P1)
    def qk(k):
        i,jb=T[k]; p,base=kv_regs(jb); S=rng('v',Sreg(k),16)
        return [f"v_mfma_f32_32x32x16_bf16 {S}, {rng(p,base,4)}, a[{8*i}:{8*i+3}], 0",
                f"v_mfma_f32_32x32x16_bf16 {S}, {rng(p,base+4,4)}, a[{8*i+4}:{8*i+7}], {S}"]
    def pv(k):
        i,jb=T[k]; p,base=kv_regs(jb); O=rng('v',OACC+16*i,16); P=Preg(k)
        c0='0' if k==first[i] else O
        return [f"v_mfma_f32_32x32x16_bf16 {O}, {rng(p,base+6,4)}, v[{P}:{P+3}], {c0}",
                f"v_mfma_f32_32x32x16_bf16 {O}, {rng(p,base+10,4)}, v[{P+4}:{P+7}], {O}"]
    waited=set()
    wo=list(opts.get('_wo_left',[]))+wo_group_for(12)+wo_left_groups(0,16*9216)
    NW=opts.get('wo_att',39)
    def rn_(t): return t.replace(vWOl[0]+',','v88,').replace(vWOl[1]+',','v89,').replace(vWOt[1]+',','v90,').replace(vWOt[0]+',','v96,')
    def rt(g): return [((rn_(x[0]),'wo2') if isinstance(x,tuple) else x) for x in g]
    opts['_wo_p3']=[rt(g) for g in wo[NW:]]
    wo=wo[:NW]
    WO_START=opts.get('wo_start',0)
    CHK0=opts.get('chk0',0); FLAGB=opts.get('flagB',3); FL1=opts.get('fl1',9); CHK1=opts.get('chk1',14)
    WO_PAUSE=opts.get('wo_pause',1)
    a.i(f"s_mov_b32 {sTRY}, 0")
    a.label("L_att")
    a.i(f"v_mov_b32 v254, 0x207")
    q0=qk(0); a.i(q0[0]); a.i(q0[1])
    extra=[]; hq=[]
    for k in range(n+1):
        a.stamp(f't{k}_')
        pagepad(a,opts,f't{k}')
        if k==CHK0:
            kv_flag_check(a,0,2)
            for jb in HORDER[:4]:
                hq += halo_load_groups(jb+8)
        if k==FLAGB:
            a.wait(vm='pubB'); a.emit(flag_store_ins(4))
        if k==FL1: a.emit(kv_flag_load(1))
        if opts.get('olocal') and k==opts.get('pre_at',19): a.emit(o_pretouch())
        if opts.get('olocal') and k==opts.get('xtl',24): a.emit(xt_load())
        if opts.get('olocal') and k==opts.get('xtc',30): xt_check(a)
        if k==CHK1:
            kv_flag_check(a,1,4)
            for jb in HORDER[4:]:
                hq += halo_load_groups(jb+8)
        mf=[]
        if k+1<n:
            i,jb=T[k+1]
            if jb<0 and jb not in waited:
                if not waited: a.stamp('own_done')
                assert any(t==f'h{jb+8}' for t in a.vm), jb
                waited.add(jb); a.wait(vm=f'h{jb+8}')
                if len(waited)==1: a.stamp('h0_landed')
            mf+=qk(k+1)
        else: mf+=[None,None]
        mf += pv(k-1) if k>=1 else [None,None]
        if k==0: a.nop(12)
        S=Sreg(k); P=Preg(k)
        i,jb=T[k] if k<n else (None,None)
        for seg in range(4):
            pk,ps = (k,seg-1) if seg>0 else (k-1,3)
            if pk>=0 and pk<n:
                Sp=Sreg(pk); Pp=Preg(pk); ip,jp=T[pk]
                for u in (2*ps,2*ps+1): a.i(f"v_cvt_pk_bf16_f32 v{Pp+u}, v{Sp+2*u}, v{Sp+2*u+1}")
                if jp==ip or jp==ip-8:
                    M=MASKD if jp==ip else MASKF
                    for u in (2*ps,2*ps+1): a.i(f"v_and_b32 v{Pp+u}, v{M+u}, v{Pp+u}")
            if k==n and seg==2: a.nop(2)
            if mf[seg]: a.i(mf[seg])
            if k<n:
                for e in range(4): a.i(f"v_exp_f32 v{S+4*seg+e}, v{S+4*seg+e}")
            a.drain(extra, 6 if k<n else 1000)
            if hq and seg in (0,2): a.emit(hq.pop(0))
            paused = WO_PAUSE and ((CHK0<=k<10) or (CHK1<=k<CHK1+9))
            if k>=WO_START and wo and not paused and seg in (0,1,3): a.emit(wo.pop(0))
        if k>=1:
            ib=T[k-1][0]
            if last[ib]==k-1:
                if k==n:
                    a.nop(14); a.emit(norm_block(ib))
                else: extra+=["s_nop 1"]+norm_block(ib)
    assert not extra
    for g in wo: a.emit(g)
    a.i(f"s_or_b32 s4, s74, s75"); a.i(f"s_cmp_eq_u32 s4, 0"); a.i("s_cbranch_scc1 L_att_done")
    a.i(f"s_cmp_eq_u32 {sTRY}, 0"); a.i("s_cbranch_scc1 L_slow")
    a.label("L_att_done")
    a.stamp('att_end')

def slow_path(a):
    a.label("L_slow")
    a.i("s_waitcnt vmcnt(0) lgkmcnt(0)")
    T=tile_list(); L=vLane
    a.i(f"v_and_b32 v84, 31, {L}"); a.i(f"v_lshrrev_b32 v85, 5, {L}"); a.i("v_lshlrev_b32 v85, 2, v85"); a.i("v_sub_u32 v84, v84, v85")
    a.i("v_mov_b32 v86, 0xff800000")
    for i in range(4):
        m=f"v{P0+i}"
        a.i(f"v_mov_b32 {m}, v86")
        for n_,(ii,jb) in enumerate([t for t in T if t[0]==i]):
            lab=f"L_sk{i}_{n_}"
            if jb<0:
                a.i(f"s_cmp_lt_u32 {sC}, {2 if jb<-4 else 1}"); a.i(f"s_cbranch_scc1 {lab}")
            p_,base=kv_regs(jb); S=rng('v',S0,16)
            a.i(f"v_mfma_f32_32x32x16_bf16 {S}, {rng(p_,base,4)}, a[{8*i}:{8*i+3}], 0")
            a.i(f"v_mfma_f32_32x32x16_bf16 {S}, {rng(p_,base+4,4)}, a[{8*i+4}:{8*i+7}], {S}")
            a.nop(16)
            if jb==i or jb==i-8:
                for r in range(16):
                    k0=(r&3)+8*(r>>2)
                    a.i(f"v_cmp_{'le' if jb==i else 'gt'}_i32 vcc, {k0}, v84"); a.i("s_nop 1")
                    a.i(f"v_cndmask_b32 v{S0+r}, v86, v{S0+r}, vcc")
            for r in range(0,16,2): a.i(f"v_max3_f32 {m}, v{S0+r}, v{S0+r+1}, {m}")
            if jb<0: a.label(lab)
        a.i(f"v_mov_b32 v87, {m}"); a.nop(2)
        a.i(f"v_permlane32_swap_b32 {m}, v87"); a.nop(2)
        a.i(f"v_max_f32 {m}, {m}, v87")
        a.i(f"v_sub_f32 v87, 0, {m}")
        a.i(f"v_cvt_pk_bf16_f32 v88, v87, v87"); a.i("v_lshlrev_b32 v89, 16, v88")
        a.i("v_sub_f32 v89, v87, v89")
        a.i("v_cvt_pk_bf16_f32 v88, v87, v89")
        a.i(f"s_mov_b64 exec, {sLO}"); a.i(f"v_accvgpr_write_b32 a{8*i+5}, v88"); a.i("s_mov_b64 exec, -1")
    a.i(f"s_mov_b32 {sTRY}, 1"); a.i(f"s_mov_b64 {sBAD}, 0"); a.nop(4)
    a.i("s_branch L_att")

OF=16
DACC=88
AFV=124
vAr=[f'v{2+t}' for t in range(9)]
vOf='v11'; vOut='v12'; vOf2='v251'

def phase3(a, opts):
    a.c("---- phase 3")
    L=vLane
    a.i(f"v_mov_b32 v88, {vWOl[0]}"); a.i(f"v_mov_b32 v89, {vWOl[1]}"); a.i(f"v_mov_b32 v90, {vWOt[1]}"); a.i(f"v_mov_b32 v96, {vWOt[0]}")
    a.i(f"v_lshrrev_b32 v13, 2, {L}")
    a.i(f"v_and_b32 v14, 7, v13"); a.i(f"v_lshlrev_b32 v14, 5, v14")
    a.i(f"v_lshl_add_u32 v14, v13, 8, v14")
    a.i(f"v_and_b32 v15, 3, {L}"); a.i(f"v_lshl_add_u32 v14, v15, 3, v14")
    for t in range(8): a.i(f"v_xor_b32 {vAr[t]}, {32*t}, v14")
    a.i(f"v_lshlrev_b32 v13, 5, v13"); a.i(f"v_lshl_add_u32 v13, v15, 3, v13"); a.i(f"v_add_u32 {vAr[8]}, 8192, v13")
    a.i(f"v_and_b32 v13, 15, {L}"); a.i(f"v_lshrrev_b32 v14, 4, {L}")
    a.i(f"s_and_b32 s6, {sWV}, 1"); a.i(f"s_lshl_b32 s6, s6, 8")
    a.i(f"v_lshl_add_u32 v15, v13, 4, s6")
    a.i(f"v_and_b32 v93, 1, v14"); a.i(f"v_lshl_add_u32 {vOf}, v93, 9, v15"); a.i(f"v_lshrrev_b32 v93, 1, v14")
    a.i(f"v_mul_u32_u24 v93, {OUTROW}, v93"); a.i(f"v_add_u32 {vOf}, {vOf}, v93")
    a.i(f"v_lshrrev_b32 v93, 7, v15"); a.i(f"v_lshl_add_u32 v93, v14, 2, v93"); a.i(f"v_mul_u32_u24 v93, {OUTROW}, v93")
    a.i(f"v_and_b32 v94, 0x70, v15"); a.i(f"v_add_u32 {vOf2}, v93, v94")
    a.i(f"v_mul_u32_u24 v15, {OUTROW}, v13"); a.i(f"v_lshl_add_u32 {vOut}, v14, 3, v15")
    a.wait(vm='wo')
    a.i("s_barrier")
    a.stamp('wo_ready')
    if opts.get('dumpwo'):
        a.i("s_cmp_lg_u32 s2, 0"); a.i("s_cbranch_scc1 L_nodump")
        a.i("v_lshlrev_b32 v13, 4, v0")
        for it in range(39):
            a.i(f"ds_read_b128 v[124:127], v13 offset:0")
            a.i("s_waitcnt lgkmcnt(0)")
            a.i(f"v_add_u32 v14, {WS_DBG+0x100000}, v13")
            a.i(f"buffer_store_dwordx4 v[124:127], v14, {sWS}, 0 offen", cond=True)
            a.i("s_waitcnt vmcnt(0)")
            a.i("v_add_u32 v13, 4096, v13")
        a.label("L_nodump"); a.lg_clear()
    def frag_reads(kap, dst):
        slot=kap if kap<17 else 0
        R=[]
        for t in range(9):
            p,r=dst(kap,t)
            off=(slot%7)*9216
            hoff=4096 if t<8 else 512
            R.append([(f"ds_read_b64_tr_b16 {p}[{r+2*h}:{r+2*h+1}], {vAr[t]} offset:{off+hoff*h}", f'a{kap}_{t}') for h in range(2)])
        return R
    NA=7; RING=29
    def dst(kap,t):
        if kap<NA: return 'a', (kap*9+t)*4
        idx=((kap-NA)*9+t)%RING
        return 'v', AFV+idx*4
    bump=lambda: [f"v_add_u32 {vAr[t]}, {7*9216}, {vAr[t]}" for t in range(9)]
    def oflag():
        a.i(f"s_lshl_b32 {sT0}, {sG}, 2"); a.i(f"s_add_u32 {sT0}, {sT0}, {sWV}"); a.i(f"s_lshl_b32 {sT0}, {sT0}, 7"); a.i(f"s_add_u32 {sT0}, {sT0}, {sFO}")
        a.i(f"v_mov_b32 v14, {sNONl}"); a.i(f"v_mov_b32 v13, 0")
        if not opts.get('olocal'):
            a.i(f"v_mov_b32 v15, {sNONh}"); a.i("s_mov_b64 exec, 1")
            a.i(f"buffer_store_dwordx2 v[14:15], v13, {sWS}, {sT0} offen sc1", 'oflag'); a.i("s_mov_b64 exec, -1")
            return
        a.i(f"s_cmp_eq_u32 {sLOC}, 1"); a.i("s_cbranch_scc1 L_ofl")
        a.i(f"v_mov_b32 v15, {sNONh}")
        a.i("s_mov_b64 exec, 1")
        a.i(f"buffer_store_dwordx2 v[14:15], v13, {sWS}, {sT0} offen sc1", 'x', True)
        a.i("s_branch L_ofe")
        a.label("L_ofl")
        a.i(f"s_add_u32 {sT0}, {sT0}, {WS_FOL-WS_FO}")
        a.i(f"v_mov_b32 v15, {sLFH}")
        a.i("s_mov_b64 exec, 1")
        a.i(f"buffer_store_dwordx2 v[14:15], v13, {sWS}, {sT0} offen", tag='oflag')
        a.label("L_ofe")
        a.i("s_mov_b64 exec, -1")
    LF_AT=opts.get('lf_at',1)
    w2=list(opts.get('_wo_p3',[]))
    for kap in range(NA):
        if kap==LF_AT:
            a.wait(vm='ost'); oflag(); a.stamp('o_lflag')
        for gi,grp in enumerate(frag_reads(kap,dst)):
            a.emit(grp)
            if w2 and gi%3==0: a.emit(w2.pop(0))
        if kap%2==1: a.wait(lg=8)
    for g in w2: a.emit(g)
    if opts.get('_wo_p3'):
        a.wait(vm='wo2'); a.i("s_barrier")
    a.emit(bump())
    a.i(f"v_and_b32 v13, 31, {L}"); a.i(f"v_lshlrev_b32 v13, 7, v13")
    a.i(f"v_mov_b32 v91, {sNONh}")
    if opts.get('olocal'):
        a.i(f"v_add_u32 v14, {WS_FOL-WS_FO}, v13"); a.i(f"v_cmp_le_u32 vcc, 32, {L}")
        a.i(f"v_mov_b32 v92, {sLFH}"); a.i("s_nop 0")
        a.i(f"v_cndmask_b32 v13, v13, v14, vcc"); a.i(f"v_cndmask_b32 v91, v91, v92, vcc")
    def opoll_load(cond):
        if not opts.get('olocal'): a.i(f"s_mov_b64 exec, {sLO}")
        a.i(f"buffer_load_dwordx2 v[14:15], v13, {sWS}, {sFO} offen sc1", 'opl', cond)
        a.i("s_mov_b64 exec, -1")
    AP=opts.get('apoll',0); W0=opts.get('w0poll',1)
    if AP==1: opoll_load(False)
    for kap in range(NA,NA+3):
        for grp in frag_reads(kap,dst): a.emit(grp)
    OT=9216; OP=304
    a.i(f"v_and_b32 v252, 15, {L}"); a.i(f"v_mul_u32_u24 v252, {OP}, v252"); a.i(f"v_lshrrev_b32 v253, 4, {L}"); a.i(f"v_lshl_add_u32 v252, v253, 3, v252")
    a.i(f"s_mul_i32 {sT2}, {sWV}, {16*OP}"); a.i(f"s_add_u32 {sT2}, {sT2}, {OT}"); a.i(f"v_add_u32 v250, {sT2}, v252")
    for e in range(5):
        a.i(f"v_add_u32 v252, {64*e}, {L}"); a.i(f"v_mul_u32_u24 v253, 58255, v252"); a.i(f"v_lshrrev_b32 v253, 20, v253")
        a.i(f"v_mul_u32_u24 v254, 18, v253"); a.i(f"v_sub_u32 v254, v252, v254"); a.i(f"v_lshlrev_b32 v254, 4, v254")
        a.i(f"v_mul_u32_u24 v252, {OP}, v253"); a.i(f"v_add3_u32 v{240+e}, v252, v254, {sT2}")
        a.i(f"v_mul_u32_u24 v252, {OUTROW}, v253"); a.i(f"v_add_u32 v{245+e}, v252, v254")
    a.wait(lg=0)
    a.i("s_barrier")
    for g in wo_left_groups(1,0,('v88','v89','v90')): a.emit(g)
    a.stamp('frags_pre')
    if W0:
        a.i(f"s_cmp_lg_u32 {sWV}, 0"); a.i("s_cbranch_scc1 L_opoll_done")
    if AP==1: a.wait(vm='opl')
    else:
        opoll_load(True); a.i("s_waitcnt vmcnt(0)")
    a.i(f"s_mov_b32 {sCNT}, 200000")
    a.label("L_opoll")
    if not opts.get('olocal'): a.i(f"s_mov_b64 exec, {sLO}")
    a.i(f"v_cmp_eq_u32 vcc, {sNONl}, v14"); a.i(f"v_cmp_eq_u32 s[4:5], v91, v15")
    a.i("s_mov_b64 exec, -1")
    a.i("s_and_b64 s[4:5], s[4:5], vcc"); a.i("s_or_b32 s4, s4, s5"); a.i("s_cmp_eq_u32 s4, -1"); a.i("s_cbranch_scc1 L_opoll_done")
    if opts.get('psleep',2): a.i(f"s_sleep {opts.get('psleep',2)}")
    opoll_load(True); a.i("s_waitcnt vmcnt(0)")
    a.i(f"s_sub_u32 {sCNT}, {sCNT}, 1"); a.i(f"s_cmp_lg_u32 {sCNT}, 0"); a.i("s_cbranch_scc1 L_opoll")
    a.label("L_opoll_done")
    if W0:
        a.wait(vm='wo'); a.i("s_barrier")
    a.stamp('opoll_done')
    KORD=[7,8,9]+list(range(7))+list(range(10,18))
    def oload(kap):
        if kap<16:
            a.i(f"s_add_u32 {sT0}, {sPOM}, {2*OUTROW*kap}")
            a.i(f"buffer_load_dwordx4 v[{OF+4*kap}:{OF+4*kap+3}], {vOf}, {sOUT}, {sT0} offen sc1", tag=f'of{kap}')
        else:
            a.i(f"s_add_u32 {sT0}, {sPOL}, {16*OUTROW*(kap-16)}")
            a.i(f"buffer_load_dwordx4 v[{OF+4*kap}:{OF+4*kap+3}], {vOf2}, {sOUT}, {sT0} offen sc1", tag=f'of{kap}')
    NFIRST=opts.get('ofirst',7)
    oq=list(KORD)
    for _ in range(NFIRST): oload(oq.pop(0))
    a.stamp('p3_oissued')
    if not W0:
        a.wait(vm='wo'); a.i("s_barrier")
    rq=[]
    for kap in range(NA+3,18):
        R=frag_reads(kap,dst)
        for t in range(9): rq.append((kap,t,R[t]))
    issued=(NA+3-NA)*9
    consumed=0; mcount=0
    def war_store():
        a.wait(vm=f'of{KORD[-1]}')
        a.i(f"s_lshl_b32 {sT0}, {sG}, 2"); a.i(f"s_add_u32 {sT0}, {sT0}, {sWV}"); a.i(f"s_lshl_b32 {sT0}, {sT0}, 7"); a.i(f"s_add_u32 {sT0}, {sT0}, {sFO}")
        a.i(f"v_mov_b32 v252, {sNONl}"); a.i(f"v_mov_b32 v254, 0")
        a.i(f"s_add_u32 {sT0}, {sT0}, {WS_FW-WS_FO}")
        if opts.get('olocal'):
            a.i(f"s_cmp_eq_u32 {sLOC}, 1"); a.i("s_cbranch_scc1 L_wl")
        a.i(f"v_mov_b32 v253, {sNONh}"); a.i("s_mov_b64 exec, 1")
        a.i(f"buffer_store_dwordx2 v[252:253], v254, {sWS}, {sT0} offen sc1", 'war' if not opts.get('olocal') else 'x', bool(opts.get('olocal')))
        if opts.get('olocal'):
            a.i("s_branch L_we"); a.label("L_wl")
            a.i(f"s_add_u32 {sT0}, {sT0}, {WS_FWL-WS_FW}"); a.i(f"v_mov_b32 v253, {sLFH}"); a.i("s_mov_b64 exec, 1")
            a.i(f"buffer_store_dwordx2 v[252:253], v254, {sWS}, {sT0} offen", 'war')
            a.label("L_we")
        a.i("s_mov_b64 exec, -1")
    def war_addr():
        a.i(f"v_and_b32 v13, 15, {L}"); a.i(f"s_lshl_b32 {sT0}, {sRH}, 4"); a.i(f"v_add_u32 v13, {sT0}, v13"); a.i(f"v_lshlrev_b32 v13, 7, v13")
        a.i(f"v_add_u32 v13, {WS_FW-WS_FO}, v13"); a.i(f"v_add_u32 v14, {WS_FWL-WS_FW}, v13"); a.i(f"v_cmp_le_u32 vcc, 16, {L}")
        a.i(f"v_mov_b32 v15, {sNONh}"); a.i(f"v_mov_b32 v1, {sLFH if opts.get('olocal') else sNONh}")
        a.i(f"v_cndmask_b32 v13, v13, v14, vcc"); a.i(f"v_cndmask_b32 v15, v15, v1, vcc")
    def war_load(cond=False):
        a.i(f"s_mov_b64 exec, {sLO}"); a.i(f"buffer_load_dwordx2 v[0:1], v13, {sWS}, {sFO} offen sc1", 'warl', cond); a.i("s_mov_b64 exec, -1")
    base_slot=7
    for kap in KORD:
        a.wait(vm=f'of{kap}')
        for t in range(9):
            p,r=dst(kap,t)
            if kap>=NA:
                n_=a.lg_n(f'a{kap}_{t}')
                if n_ is not None: a.wait(lg=f'a{kap}_{t}')
            acc=rng('v',DACC+4*t,4); c='0' if kap==KORD[0] else acc
            a.i(f"v_mfma_f32_16x16x32_bf16 {acc}, {p}[{r}:{r+3}], v[{OF+4*kap}:{OF+4*kap+3}], {c}")
            if kap>=NA: consumed+=1
            mcount+=1
            if mcount in (1,27,90,126): a.stamp(f'p3_m{mcount}_')
            if oq and mcount%opts.get('oevery',4)==0: oload(oq.pop(0))
            if mcount==opts.get('war_st',100): war_store()
            if mcount==opts.get('war_ld',140): war_addr(); war_load()
            if rq and issued-consumed<RING-1:
                k2,t2,ins=rq[0]
                if k2==14 and t2==0 and base_slot==7:
                    a.emit(bump()); base_slot=14
                if k2==17 and t2==0:
                    a.emit([f"v_subrev_u32 {vAr[tt]}, {14*9216}, {vAr[tt]}" for tt in range(9)])
                rq.pop(0); a.emit(ins); issued+=1
    assert not rq
    a.stamp('p3_mfma_end')
    a.wait(vm='warl')
    a.i(f"s_mov_b32 {sCNT}, 200000")
    a.label("L_wchk")
    a.i(f"s_mov_b64 exec, {sLO}")
    a.i(f"v_cmp_eq_u32 vcc, {sNONl}, v0"); a.i(f"v_cmp_eq_u32 s[4:5], v15, v1")
    a.i("s_mov_b64 exec, -1")
    a.i("s_and_b64 s[4:5], s[4:5], vcc"); a.i("s_lshr_b32 s5, s4, 16"); a.i("s_or_b32 s4, s4, s5"); a.i("s_and_b32 s4, s4, 0xffff")
    a.i("s_cmp_eq_u32 s4, 0xffff"); a.i("s_cbranch_scc1 L_wok")
    war_load(True); a.i("s_waitcnt vmcnt(0)")
    a.i(f"s_sub_u32 {sCNT}, {sCNT}, 1"); a.i(f"s_cmp_lg_u32 {sCNT}, 0"); a.i("s_cbranch_scc1 L_wchk")
    a.label("L_wok")
    a.stamp('p3_war')
    a.nop(10)
    for t in range(9):
        d=DACC+4*t
        a.i(f"v_cvt_pk_bf16_f32 v{d}, v{d}, v{d+1}"); a.i(f"v_cvt_pk_bf16_f32 v{d+1}, v{d+2}, v{d+3}")
        a.i(f"ds_write_b64 v250, v[{d}:{d+1}] offset:{32*t}", 'ow')
    a.wait(lg=0)
    for e in range(5):
        if e==4: a.i(f"s_mov_b64 exec, {sLO}")
        a.i(f"ds_read_b128 v[{32+4*e}:{35+4*e}], v{240+e}", f'or{e}')
    a.i("s_mov_b64 exec, -1")
    for e in range(5):
        a.wait(lg=f'or{e}')
        if e==4: a.i(f"s_mov_b64 exec, {sLO}")
        a.i(f"buffer_store_dwordx4 v[{32+4*e}:{35+4*e}], v{245+e}, {sOUT}, {sOUTB} offen {opts.get('outmod','')}")
    a.i("s_mov_b64 exec, -1")
    a.stamp('p3_stissued')
    a.i("s_waitcnt vmcnt(0)")

def kd(name, vgpr, accum, sgpr=102):
    return f""".section .rodata,"a"
.p2align 6
.amdhsa_kernel {name}
  .amdhsa_next_free_vgpr {vgpr}
  .amdhsa_next_free_sgpr {sgpr}
  .amdhsa_accum_offset {accum}
  .amdhsa_group_segment_fixed_size 0
  .amdhsa_kernarg_size 72
  .amdhsa_user_sgpr_count 2
  .amdhsa_user_sgpr_kernarg_segment_ptr 1
  .amdhsa_system_sgpr_workgroup_id_x 1
.end_amdhsa_kernel
"""
HEADER = """; Kernarg layout (72 bytes, ptrs only, base s[0:1]):
"""
def build(opts):
    ORDER_MODE[0]=opts.get('order','own'); GOPT.update(opts)
    a=G()
    if opts.get('stamps'):
        a.stamps=[]
        a.sel = opts['sel'].split(',') if 'sel' in opts else ['ch0_landed','1a_end','1b_end','q_ready','poll_done','own_done','att_end','wo_ready','frags_pre','opoll_done','p3_mfma_end','drained']
    prologue(a,opts)
    g0=dma_chunk_groups(0,0)
    if opts.get('tlbw',1):
        a.i(f"buffer_load_dword v255, {vWoff[0]}, {sW}, {sWoff} offen", 'touch')
    for g in g0[:4]: a.emit(g)
    setupA(a,opts)
    setupB0(a,opts)
    for g in g0[4:]: a.emit(g)
    if opts.get('xtouch',1):
        L=vLane
        a.i(f"v_mul_u32_u24 v2, 7282, {L}"); a.i("v_lshrrev_b32 v2, 16, v2")
        a.i(f"v_mul_u32_u24 v3, 9, v2"); a.i(f"v_sub_u32 v3, {L}, v3"); a.i("v_min_u32 v2, 3, v2")
        a.i(f"s_lshl_b32 s5, {sC}, 7"); a.i(f"s_lshl_b32 s6, {sG}, 4"); a.i("s_add_u32 s5, s5, s6"); a.i(f"s_lshl_b32 s6, {sWV}, 2"); a.i("s_add_u32 s5, s5, s6")
        a.i(f"v_add_u32 v2, s5, v2"); a.i(f"v_mul_u32_u24 v2, {XROW}, v2"); a.i(f"v_lshl_add_u32 v2, v3, 7, v2")
        a.i("s_mov_b32 s6, -1"); a.i("s_mov_b32 s7, 15")
        a.emit(["s_mov_b64 exec, s[6:7]", (f"buffer_load_dword v255, v2, {sX}, 0 offen",'touch'), "s_mov_b64 exec, -1"])
    if opts.get('wotouch',2)==2: touch_wo(a)
    if opts.get('qtouch',0): touch_q(a)
    if opts.get('pgw',0):
        L=vLane
        a.i(f"s_lshl_b32 s4, {sB}, 3"); a.i(f"s_add_u32 s4, s4, {sG}"); a.i("s_lshl_b32 s4, s4, 4"); a.i(f"s_add_u32 s4, s4, {sC}")
        a.i(f"s_mul_i32 s4, s4, {SLOT}")
        a.i(f"v_mov_b32 v2, s4"); a.i(f"v_mov_b32 v3, {WS_FKV}"); a.i(f"v_cmp_eq_u32 vcc, 1, {L}"); a.i("s_nop 1"); a.i("v_cndmask_b32 v2, v2, v3, vcc")
        a.i(f"s_sub_u32 s5, s4, {2*SLOT}"); a.i(f"s_max_i32 s5, s5, 0"); a.i("v_mov_b32 v3, s5"); a.i(f"v_cmp_eq_u32 vcc, 2, {L}"); a.i("s_nop 1"); a.i("v_cndmask_b32 v2, v2, v3, vcc")
        a.i("s_mov_b64 exec, 7"); a.i(f"buffer_load_dword v255, v2, {sWS}, 0 offen", 'touch')
        a.i(f"s_lshl_b32 s4, {sC}, 7"); a.i(f"s_mul_i32 s4, s4, {OUTROW}"); a.i("v_mov_b32 v2, 0")
        a.i("s_mov_b64 exec, 1"); a.i(f"buffer_load_dword v255, v2, {sOUT}, s4 offen", 'touch'); a.i("s_mov_b64 exec, -1")
    a.stamp('p_ch0')
    for g in dma_chunk_groups(1,1): a.emit(g)
    a.stamp('p_ch1')
    rec=Rec(); setupB(rec,opts)
    rec2=Rec(); wo_addr(rec2)
    ren=dict(zip(vWOm+vWOl+vWOt,vWOtmp))
    def rn(x):
        for k_,v_ in ren.items(): x=x.replace(f" {k_},",f" {v_},")
        return x
    opts['_side']=rec.l+[rn(x) for x in rec2.l]
    pend=dma_chunk_groups(2,2)
    pend=phase1a(a,opts,pend)
    phase1b(a,pend,opts)
    attention(a,opts)
    phase3(a,opts)
    a.stamp('drained'); a.stamp('rt_exit',real=True)
    if opts.get('dbgtime'):
        a.i("s_waitcnt lgkmcnt(0)")
        n=len(a.stamps)
        r0=a.stamps[0][1]; r1=a.stamps[-1][1]
        a.i(f"s_not_b32 s3, s{r0}")
        a.i("v_mov_b32 v2, s3"); a.i("v_mov_b32 v3, 8"); a.i(f"v_mov_b32 v4, s{r1}"); a.i("v_mov_b32 v5, 12")
        a.i("s_mov_b64 exec, 1")
        a.i(f"buffer_atomic_umax v2, v3, {sDBG}, 0 offen sc1"); a.i(f"buffer_atomic_umax v4, v5, {sDBG}, 0 offen sc1")
        a.i(f"s_cmp_lg_u32 s2, 77"); a.i("s_cbranch_scc1 L_nodbg"); a.i(f"s_cmp_lg_u32 {sWV}, 0"); a.i("s_cbranch_scc1 L_nodbg")
        e=a.stamps[1][1]
        for k,(nm,r) in enumerate(a.stamps[2:-1][:12]):
            a.i(f"s_sub_u32 s3, s{r}, s{e}"); a.i("v_mov_b32 v2, s3"); a.i(f"v_mov_b32 v3, {16+4*k}")
            a.i(f"buffer_store_dword v2, v3, {sDBG}, 0 offen")
        a.label("L_nodbg")
        a.i("s_mov_b64 exec, -1"); a.i("s_waitcnt vmcnt(0)")
    else: a.dump_stamps(0)
    a.label("L_end"); a.i("s_endpgm")
    slow_path(a)
    errs=a.check()
    if opts.get('stamps'): print("stamps:",len(a.stamps),[x[0] for x in a.stamps])
    k1=f"{NAME}_kernel"
    txt=HEADER+f"; @launch grid=(256,1,1) block=(256,1,1) lds={LDS_BYTES}\n"
    txt+='.amdgcn_target "amdgcn-amd-amdhsa--gfx950"\n.text\n'
    txt+=f".globl {k1}\n.p2align 8\n.type {k1},@function\n{k1}:\n"+a.text()+kd(k1,512,256)
    return txt
if __name__=="__main__":
    out=sys.argv[1]
    opts={}
    for x in sys.argv[2:]:
        k,_,v=x.partition('='); opts[k]=int(v) if v.lstrip('-').isdigit() else (v or True)
    open(out,'w').write(build(opts)); print("written",out)
```

```python
import sys, os, struct
sys.path.insert(0, os.path.dirname(os.path.abspath(__file__)))
from asm import *
NAME = "concat_heads__sliding_block__sliding_block__prompt"
XROW=1152; WROW=3456; OUTROW=2304
X_BYTES=2048*1152; W_BYTES=576*3456; WO_BYTES=576*1152; OUT_BYTES=2048*2304
SLOT=36864; WPITCH=320; XOFF=20480; QPITCH=192; QCH=12288
VBASE=0; VR=1184; VJ=2368; VB=4736; KB3=18944; KB0=147456; KP=148; KBLK=32*148; QBASE=0
LDS_BYTES=163840
WS_KV=0; WS_OM=0x1000000; WS_OL=0x1400000; WS_FKV=0x1800000; WS_FO=0x1840000; WS_FOL=0x1880000; WS_FW=0x1900000; WS_FWL=0x1940000
WS_XT=0x18C0000
WS_DBG=0x2000000; WS_BYTES=0x4000000
CSCALE = 1.4426950408889634/(18**0.5)
def f2u(x): return struct.unpack('<I',struct.pack('<f',x))[0]
def rng(p,a,n): return f'{p}[{a}:{a+n-1}]'

sX='s[8:11]'; sW='s[12:15]'; sWO='s[16:19]'; sOUT='s[20:23]'; sWS='s[24:27]'; sDBG='s[28:31]'
sB='s32'; sC='s33'; sG='s34'; sWV='s35'
sVM='s[54:55]'; sLO='s[56:57]'
sCI='s58'; sWoff='s59'; sXoff='s60'; sM0='s61'; sKVme='s62'
sT0='s63'; sT1='s64'; sT2='s65'; sFKV='s66'; sT3='s67'
sNONl='s68'; sNONh='s69'; sROT='s70'; sKV1='s71'; sKV2='s72'; sXCC='s73'
sBAD='s[74:75]'; sNVM='s[52:53]'; sCNT='s76'; sOM='s77'; sOL='s78'; sFO='s79'; sSC='s80'; sATT='s81'
sLFH='s70'; sLOC='s81'
sTRY='s52'
sRH='s82'; sNQ='s83'; sPOM='s84'; sPOL='s85'; sOUTB='s86'; sWOs='s87'
sIDX='s76'; sOFF='s81'

vLane='v1'
vWoff=[f'v{10+j}' for j in range(5)]
vXoff=[f'v{15+j}' for j in range(4)]
vQoff=['v19','v20','v21']
vWr=['v22','v23']; vMx=['v24','v25']
vXr=[[f'v{26+t}' for t in range(4)],[f'v{30+t}' for t in range(4)]]
vQr='v34'
vKw='v35'; vQw='v36'; vVw='v37'; vVt='v38'
vKr='v39'; vKl='v40'; vVr='v41'; vCw='v42'; vQl='v43'
vPk='v44'; vPl='v45'; vPv='v46'; vOl='v47'
vNON='v[48:49]'; vVC='v50'; vT='v51'
def WF(b,f): r=52+(b*5+f)*4; return f'v[{r}:{r+3}]'
def WFh(b,f,h): r=52+(b*5+f)*4+2*h; return f'v[{r}:{r+1}]'
def QF(b,f): r=52+(b*3+f)*4; return f'v[{r}:{r+3}]'
def QFh(b,f,h): r=52+(b*3+f)*4+2*h; return f'v[{r}:{r+1}]'
ACC={'K0':92,'K1':108,'V0':124,'V1':140,'MX':156,'Q0':172,'Q1':188,'Q2':204}
def XF(t): return rng('a',4*t,4)
OWN=92; HALO=144
S0=52; S1=68; P0=150; P1=158; OACC=172; MASKD=236; MASKF=244
vWOm=['v10','v11']; vWOl=['v12','v13']; vWOt=['v14','v15']
vWOtmp=['v220','v221','v222','v223','v224','v225']

class G(Asm):
    stamps=None; sel=None; nowait=True
    def stamp(self, name, real=False):
        if self.stamps is None: return
        if self.sel is not None and not (name.startswith('rt_') or name=='entry' or any(name.startswith(x) for x in self.sel)): return
        k=len(self.stamps)
        regs=[88,90,92,94,96,98,100,36,38,40,42,44,46,48,50][k]
        self.stamps.append((name,regs))
        if GOPT.get('allreal'): real_=True
        else: real_=real
        self.i(f"{'s_memrealtime' if real_ else 's_memtime'} s[{regs}:{regs+1}]")
        if self.nowait and not real and name!='entry':
            self.lg.pop()
        else:
            self.i("s_waitcnt lgkmcnt(0)")
            self.lg_clear()
    def dump_stamps(self, base):
        if self.stamps is None: return
        self.i("s_waitcnt lgkmcnt(0)")
        self.i(f"s_lshl_b32 s3, s2, 2"); self.i(f"s_add_u32 s3, s3, {sWV}")
        self.i(f"s_lshl_b32 s3, s3, 6"); self.i(f"s_add_u32 s3, s3, {WS_DBG+base}")
        self.i("s_mov_b64 exec, 1")
        for k,(nm,r) in enumerate(self.stamps):
            self.i(f"v_mov_b32 v2, s{r}"); self.i(f"v_mov_b32 v3, {4*k}")
            self.i(f"buffer_store_dword v2, v3, {sWS}, s3 offen")
        self.i("s_mov_b64 exec, -1"); self.i("s_waitcnt vmcnt(0)")
    def emit(self, lst):
        for x in lst:
            if isinstance(x,tuple) and x[0]=='OSTORE': emit_ostore(self,x[1])
            elif isinstance(x,tuple): self.i(*x)
            else: self.i(x)
    def drain(self, q, budget):
        k=0; inexec=False
        while q and (k<budget or inexec):
            x=q.pop(0)
            txt=x[0] if isinstance(x,tuple) else x
            if txt.startswith('s_mov_b64 exec'): inexec = not txt.endswith('-1')
            if txt=='OSTORE': emit_ostore(self,x[1])
            elif isinstance(x,tuple): self.i(*x)
            else: self.i(x)
            k+=1

def prologue(a, opts):
    L=vLane
    a.c("---- prologue")
    a.stamp('rt_entry',real=True); a.stamp('entry')
    a.i("s_load_dwordx8 s[36:43], s[0:1], 0")
    a.i("s_load_dwordx8 s[44:51], s[0:1], 32")
    a.i("s_load_dwordx2 s[52:53], s[0:1], 64")
    a.i("s_cmp_ge_u32 s2, 256")
    a.i("s_cbranch_scc1 L_end")
    a.i("s_getpc_b64 s[90:91]") if False else None
    a.i("s_getpc_b64 s[4:5]")
    a.label("L_pc")
    PFM=opts.get('pfmode',0)
    if PFM in (1,2):
        a.i("s_mov_b32 s96, s4"); a.i("s_mov_b32 s97, s5")
    a.i("v_lshlrev_b32 v2, 7, v0")
    a.raw("    v_min_u32 v2, (L_end-L_pc), v2")
    if PFM==1:
        a.i("v_cmp_gt_u32 vcc, 64, v0"); a.i("s_and_saveexec_b64 s[6:7], vcc"); a.i("s_cbranch_execz L_pf1")
        a.i("global_load_dword v255, v2, s[4:5]", tag='pf', cond=True)
        a.label("L_pf1"); a.i("s_mov_b64 exec, -1")
    elif PFM==0 and not opts.get('nopf'): a.i("global_load_dword v255, v2, s[4:5]", tag='pf')
    if opts.get('pf2'):
        a.i("v_lshlrev_b32 v2, 7, v0"); a.i("v_add_u32 v2, 32768, v2")
        a.raw("    v_min_u32 v2, (L_end-L_pc), v2")
        a.i("global_load_dword v255, v2, s[4:5]", tag='pf')
    a.i(f"v_and_b32 {L}, 63, v0")
    a.i("v_lshrrev_b32 v2, 6, v0")
    a.i("s_and_b32 s3, s2, 7")
    a.i(f"v_readfirstlane_b32 {sWV}, v2")
    a.i(f"s_lshr_b32 {sB}, s3, 2")
    a.i("s_lshr_b32 s4, s2, 3")
    a.i("s_and_b32 s5, s3, 3")
    a.i(f"s_lshl_b32 {sC}, s5, 2")
    a.i("s_lshr_b32 s5, s4, 3")
    a.i(f"s_add_u32 {sC}, {sC}, s5")
    a.i(f"s_and_b32 {sG}, s4, 7")
    a.i("s_lshl_b32 s5, s5, 1")
    a.i(f"s_add_u32 s6, s5, {sG}")
    a.i("s_sub_u32 s7, s6, 9")
    a.i("s_cmp_ge_u32 s6, 9")
    a.i(f"s_cselect_b32 {sROT}, s7, s6")
    if opts.get('order','own')=='own':
        a.i(f"s_add_u32 {sOFF}, s5, {sG}"); a.i(f"s_and_b32 {sOFF}, {sOFF}, 7")
        a.i("s_and_b32 s6, s3, 3"); a.i("s_lshl_b32 s6, s6, 1"); a.i(f"s_and_b32 s7, {sC}, 1"); a.i(f"s_add_u32 {sROT}, s6, s7")
        a.i(f"s_mov_b32 {sIDX}, {sOFF}")
    elif opts.get('order')=='norot': a.i(f"s_mov_b32 {sROT}, 0")
    a.i(f"s_lshl_b32 s6, {sC}, 7"); a.i(f"s_lshl_b32 s7, {sWV}, 5"); a.i("s_add_u32 s6, s6, s7")
    a.i(f"s_mul_i32 s6, s6, {XROW}")
    a.i(f"v_lshrrev_b32 v4, 3, {L}"); a.i(f"v_lshrrev_b32 v5, 4, {L}"); a.i(f"v_and_b32 v6, 7, {L}")
    a.i(f"v_mul_u32_u24 v4, {XROW}, v4")
    a.i(f"v_add_u32 v4, s6, v4")
    for i in range(4):
        a.i(f"v_add_u32 v7, {4*i}, v5"); a.i(f"v_and_b32 v7, 7, v7"); a.i(f"v_xor_b32 v7, v6, v7")
        a.i(f"v_lshl_add_u32 v7, v7, 4, v4")
        a.i(f"v_add_u32 {vXoff[i]}, {8*i*XROW-1024*i}, v7")
    a.i(f"s_mul_i32 s6, {sWV}, {16*WROW}"); a.i(f"s_mul_i32 s7, {sG}, 144"); a.i("s_add_u32 s6, s6, s7")
    a.i(f"s_add_u32 s6, s6, 1152")
    a.i(f"s_movk_i32 s7, {WROW}")
    a.i("v_mov_b32 v9, 0x40000000"); a.i("v_mov_b32 v8, 1008")
    for j in range(5):
        a.i(f"v_add_u32 v4, {64*j}, {L}")
        a.i(f"v_mul_u32_u24 v5, 52429, v4"); a.i(f"v_lshrrev_b32 v5, 20, v5")
        a.i(f"v_mul_u32_u24 v6, 20, v5"); a.i(f"v_sub_u32 v6, v4, v6")
        a.i(f"v_cmp_lt_u32 vcc, 8, v6")
        a.i(f"v_mul_lo_u32 v5, v5, s7")
        a.i(f"v_lshl_add_u32 v5, v6, 4, v5")
        a.i(f"v_cndmask_b32 v7, 0, v8, vcc")
        a.i(f"v_cmp_lt_u32 vcc, 17, v6")
        a.i(f"v_add3_u32 v5, v5, v7, s6")
        comp=1024*j if j<4 else 0
        if comp: a.i(f"v_subrev_u32 v5, {comp}, v5")
        else: a.i("s_nop 0")
        a.i(f"v_cndmask_b32 {vWoff[j]}, v5, v9, vcc")
    a.stamp('p_pre')
    a.wait(lg=0)
    a.stamp('p_karg')
    a.i(f"s_cmp_eq_u32 {sB}, 0")
    a.i("s_cselect_b32 s8, s36, s42");  a.i("s_cselect_b32 s9, s37, s43")
    a.i("s_cselect_b32 s12, s38, s44"); a.i("s_cselect_b32 s13, s39, s45")
    a.i(f"s_mov_b32 s10, {X_BYTES}"); a.i("s_mov_b32 s11, 0x00020000")
    a.i(f"s_mov_b32 s14, {W_BYTES}"); a.i("s_mov_b32 s15, 0x00020000")
    a.i("s_cselect_b32 s16, s40, s46"); a.i("s_cselect_b32 s17, s41, s47")
    a.i(f"s_mov_b32 {sCI}, {sROT}")
    a.i(f"s_mul_i32 {sWoff}, {sCI}, {64*WROW}")
    a.i(f"s_lshl_b32 {sXoff}, {sCI}, 7")

vTA='v[240:241]'
def touch_setup(a, opts):
    L=vLane
    a.i("s_lshr_b32 s4, s2, 3")
    a.i(f"v_cmp_le_u32 vcc, 18, {L}")
    a.i(f"v_mov_b32 v2, {XROW+18*128}")
    a.i(f"v_lshlrev_b32 v3, 7, {L}")
    a.i(f"v_mov_b32 v2, {WROW-18*128}")
    a.i(f"v_cndmask_b32 v2, 0, v2, vcc")
    a.i(f"v_add_u32 v3, v3, v2")
    a.i(f"s_mul_i32 s5, s4, {2*WROW}"); a.i(f"s_add_u32 s5, s5, {9*128}")
    a.i(f"v_add_u32 v3, s5, v3")
    a.i("s_and_b32 s5, s2, 3"); a.i("s_lshl_b32 s5, s5, 9"); a.i("s_lshl_b32 s6, s4, 4"); a.i("s_add_u32 s5, s5, s6")
    a.i(f"v_subrev_u32 v4, 36, {L}"); a.i(f"v_and_b32 v4, 15, v4"); a.i(f"v_add_u32 v4, s5, v4"); a.i(f"v_mul_u32_u24 v4, {XROW}, v4")
    a.i(f"v_cmp_le_u32 vcc, 36, {L}")
    a.i(f"v_mov_b32 v5, s12"); a.i("v_mov_b32 v6, s8"); a.i("v_mov_b32 v7, s13"); a.i("v_mov_b32 v8, s9")
    a.i(f"v_cndmask_b32 v3, v3, v4, vcc")
    a.i(f"v_cndmask_b32 v5, v5, v6, vcc")
    a.i(f"v_cndmask_b32 v7, v7, v8, vcc")
    a.i(f"v_mov_b32 v9, {64*WROW}"); a.i("v_mov_b32 v6, 128")
    a.i(f"v_cndmask_b32 v242, v9, v6, vcc")
    a.i(f"s_add_u32 s5, {sWV}, 1")
    a.i(f"v_mul_lo_u32 v9, v242, s5")
    a.i(f"v_add_u32 v3, v3, v9")
    a.i(f"v_add_co_u32 v240, vcc, v5, v3"); a.i("s_nop 1"); a.i(f"v_addc_co_u32 v241, vcc, 0, v7, vcc")
    a.i(f"v_lshlrev_b32 v242, 2, v242")
def touch_ins(second):
    L=[]
    if second:
        L+= ["v_add_co_u32 v240, vcc, v240, v242", "s_nop 1", "v_addc_co_u32 v241, vcc, 0, v241, vcc"]
    L+= ["s_mov_b64 exec, 0x000fffffffffffff" if False else "s_mov_b64 exec, s[6:7]", (f"global_load_dword v255, {vTA}, off",'touch'), "s_mov_b64 exec, -1"]
    return L
def touch_q(a):
    L=vLane
    a.i("s_lshr_b32 s4, s2, 3")
    a.i(f"v_mul_u32_u24 v2, 7282, {L}"); a.i("v_lshrrev_b32 v2, 16, v2")
    a.i(f"v_mul_u32_u24 v3, 9, v2"); a.i(f"v_sub_u32 v3, {L}, v3")
    a.i(f"v_min_u32 v2, 5, v2")
    a.i(f"s_min_u32 s5, {sWV}, 2"); a.i("s_mul_i32 s5, s5, 6"); a.i("s_mul_i32 s6, s4, 18"); a.i("s_add_u32 s5, s5, s6")
    a.i(f"v_add_u32 v2, s5, v2"); a.i(f"v_mul_u32_u24 v2, {WROW}, v2"); a.i(f"v_lshl_add_u32 v2, v3, 7, v2")
    a.i(f"buffer_load_dword v255, v2, {sW}, 0 offen", 'touch')
def touch_wo(a):
    L=vLane
    a.i(f"s_lshr_b32 {sT0}, s2, 3")
    a.i(f"s_min_u32 {sT1}, {sWV}, 2"); a.i(f"s_mul_i32 {sT1}, {sT1}, 54"); a.i(f"s_mul_i32 {sT0}, {sT0}, 162"); a.i(f"s_add_u32 {sT1}, {sT1}, {sT0}")
    a.i(f"v_min_u32 {vT}, 53, {L}"); a.i(f"v_add_u32 {vT}, {sT1}, {vT}"); a.i(f"v_lshlrev_b32 {vT}, 7, {vT}")
    a.i(f"buffer_load_dword v255, {vT}, {sWO}, 0 offen", 'touch')

ORDER_MODE=['own']
GOPT={}
def next_chunk_ins():
    if ORDER_MODE[0]=='own':
        return [f"s_add_u32 {sCI}, {sROT}, {sIDX}", f"s_add_u32 {sCI}, {sCI}, 1", f"s_sub_u32 {sT3}, {sCI}, 9", f"s_cmp_ge_u32 {sCI}, 9",
                f"s_cselect_b32 {sCI}, {sT3}, {sCI}", f"s_add_u32 {sIDX}, {sIDX}, 1", f"s_and_b32 {sIDX}, {sIDX}, 7",
                f"s_mul_i32 {sWoff}, {sCI}, {64*WROW}", f"s_lshl_b32 {sXoff}, {sCI}, 7"]
    return [f"s_add_u32 {sCI}, {sCI}, 1", f"s_cmp_eq_u32 {sCI}, 9", f"s_cselect_b32 {sCI}, 0, {sCI}",
            f"s_mul_i32 {sWoff}, {sCI}, {64*WROW}", f"s_lshl_b32 {sXoff}, {sCI}, 7"]

def dma_chunk_groups(slot, n):
    base=slot*SLOT; tag=f'ch{n}'; Gs=[]
    for i in range(4):
        pre=[f"s_lshl_b32 {sM0}, {sWV}, 12", f"s_add_u32 m0, {sM0}, {base+XOFF}", "s_nop 0"] if i==0 else []
        Gs.append(pre+[(f"buffer_load_dwordx4 {vXoff[i]}, {sX}, {sXoff} offen offset:{1024*i} lds", tag)])
    for j in range(4):
        pre=[f"s_mul_i32 {sM0}, {sWV}, 5120", f"s_add_u32 m0, {sM0}, {base}", "s_nop 0"] if j==0 else []
        Gs.append(pre+[(f"buffer_load_dwordx4 {vWoff[j]}, {sW}, {sWoff} offen offset:{1024*j} lds", tag)])
    Gs.append([f"s_add_u32 m0, {sM0}, {base+4096}", "s_nop 0", (f"buffer_load_dwordx4 {vWoff[4]}, {sW}, {sWoff} offen lds", tag)]+next_chunk_ins())
    return Gs

def dma_wq_groups(n):
    reg = SLOT*(1+n//3) + (n%3)*QCH
    Gs=[]
    for e in range(3):
        pre=[f"s_mul_i32 {sM0}, {sWV}, 3072", f"s_add_u32 m0, {sM0}, {reg}", "s_nop 0"] if e==0 else []
        post=next_chunk_ins() if e==2 else []
        Gs.append(pre+[(f"buffer_load_dwordx4 {vQoff[e]}, {sW}, {sWoff} offen offset:{1024*e} lds", f'wq{n}')]+post)
    return Gs

def setupA(a, opts):
    L=vLane
    a.c("---- setup A")
    a.i(f"v_bfe_u32 v4, {L}, 2, 2"); a.i(f"v_lshrrev_b32 v5, 5, {L}")
    a.i(f"v_lshl_add_u32 v4, v5, 3, v4")
    a.i(f"v_bfe_u32 v6, {L}, 4, 1"); a.i(f"v_and_b32 v7, 3, {L}")
    a.i(f"v_mul_u32_u24 v8, {WPITCH}, v4")
    a.i(f"v_lshlrev_b32 v9, 5, v6"); a.i(f"v_lshl_add_u32 v9, v7, 3, v9")
    a.i(f"v_add_u32 {vWr[0]}, v8, v9"); a.i(f"v_add_u32 {vWr[1]}, {2*SLOT}, {vWr[0]}")
    a.i(f"v_mul_u32_u24 v2, {QPITCH}, v4")
    a.i(f"v_add3_u32 {vQr}, v2, v9, 0"); a.i(f"v_add_u32 {vQr}, {SLOT}, {vQr}")
    a.i(f"v_lshl_add_u32 v9, v6, 2, v7")
    a.i(f"v_lshlrev_b32 v2, 3, v9"); a.i(f"v_add_u32 v2, 128, v2"); a.i(f"v_add_u32 v3, 128, v2")
    a.i(f"v_cmp_lt_u32 vcc, 1, v9"); a.i("s_nop 1")
    a.i(f"v_cndmask_b32 v2, v2, v3, vcc")
    a.i(f"v_add_u32 {vMx[0]}, v8, v2"); a.i(f"v_add_u32 {vMx[1]}, {2*SLOT}, {vMx[0]}")
    a.i(f"v_and_b32 v2, 31, {L}"); a.i(f"v_bfe_u32 v3, {L}, 1, 3"); a.i(f"v_xor_b32 v3, v3, v5")
    a.i(f"v_lshlrev_b32 v3, 4, v3"); a.i(f"v_lshl_add_u32 v3, v2, 7, v3")
    a.i(f"s_lshl_b32 s6, {sWV}, 12"); a.i(f"s_add_u32 s6, s6, {XOFF}")
    a.i(f"v_add_u32 v3, s6, v3")
    for t in range(4):
        a.i(f"v_xor_b32 {vXr[0][t]}, {32*t}, v3"); a.i(f"v_add_u32 {vXr[1][t]}, {2*SLOT}, {vXr[0][t]}")

PADN=[0]
def pagepad(a, opts, where):
    if where in str(opts.get('pads','')).split('+'):
        PADN[0]+=1
        a.i(f"s_branch L_pad{PADN[0]}")
        a.raw(".fill 1024, 4, 0xbf800000")
        a.label(f"L_pad{PADN[0]}")

class Rec:
    def __init__(self): self.l=[]
    def i(self, t, tag=None, cond=False): self.l.append((t,tag,cond) if tag or cond else t)
    def c(self, s): pass

def setupB0(a, opts):
    a.i("s_mov_b32 s20, s48"); a.i("s_mov_b32 s21, s49"); a.i(f"s_mov_b32 s22, {OUT_BYTES}"); a.i("s_mov_b32 s23, 0x00020000")
    a.i("s_mov_b32 s24, s52"); a.i("s_mov_b32 s25, s53"); a.i(f"s_mov_b32 s26, {WS_BYTES}"); a.i("s_mov_b32 s27, 0x00020000")
    a.i("s_mov_b32 s28, s50"); a.i("s_mov_b32 s29, s51"); a.i("s_mov_b32 s30, 256"); a.i("s_mov_b32 s31, 0x00020000")
    a.i(f"s_mov_b32 s18, {WO_BYTES}"); a.i("s_mov_b32 s19, 0x00020000")
    a.i(f"s_or_b32 s3, s2, {sWV}"); a.i("s_cmp_lg_u32 s3, 0"); a.i("s_cbranch_scc1 L_nononce")
    a.i("s_memrealtime s[4:5]"); a.i("s_waitcnt lgkmcnt(0)"); a.i("s_or_b32 s4, s4, 1")
    a.i("v_mov_b32 v2, s4"); a.i("v_mov_b32 v3, s5"); a.i("v_mov_b32 v4, 0")
    a.i("s_mov_b64 exec, 1")
    a.i(f"buffer_store_dwordx2 v[2:3], v4, {sDBG}, 0 offen sc1", cond=True)
    a.i("s_mov_b64 exec, -1")
    a.label("L_nononce"); a.lg_clear()

def setupB(a, opts):
    L=vLane
    a.c("---- setup B")
    a.i("s_mov_b32 s54, 0x3ffff"); a.i("s_mov_b32 s55, 0x3ffff"); a.i("s_not_b64 s[52:53], s[54:55]"); a.i("s_mov_b32 s56, -1"); a.i("s_mov_b32 s57, 0")
    a.i(f"s_mov_b32 {sSC}, {f2u(CSCALE):#x}")
    a.i(f"s_getreg_b32 {sXCC}, hwreg(HW_REG_XCC_ID, 0, 4)")
    a.i(f"s_mul_i32 s6, {sWV}, {16*WROW}"); a.i(f"s_mul_i32 s7, {sG}, 144"); a.i("s_add_u32 s6, s6, s7")
    a.i(f"s_movk_i32 s7, {WROW}"); a.i("v_mov_b32 v9, 0x40000000")
    for e in range(3):
        a.i(f"v_add_u32 v4, {64*e}, {L}")
        a.i(f"v_mul_u32_u24 v5, 21846, v4"); a.i(f"v_lshrrev_b32 v5, 18, v5")
        a.i(f"v_mul_u32_u24 v6, 12, v5"); a.i(f"v_sub_u32 v6, v4, v6")
        a.i(f"v_cmp_lt_u32 vcc, 8, v6")
        a.i(f"v_mul_lo_u32 v5, v5, s7"); a.i(f"v_lshl_add_u32 v5, v6, 4, v5")
        a.i(f"v_add_u32 v5, s6, v5"); a.i(f"v_subrev_u32 v5, {1024*e}, v5")
        a.i(f"v_cndmask_b32 {vQoff[e]}, v5, v9, vcc")
    a.i(f"v_and_b32 v2, 31, {L}"); a.i(f"v_lshrrev_b32 v5, 5, {L}")
    a.i(f"s_mul_i32 s6, {sWV}, {KBLK}"); a.i(f"s_add_u32 s7, s6, {KB0}"); a.i(f"s_cmp_eq_u32 {sWV}, 3"); a.i(f"s_cselect_b32 s7, {KB3}, s7")
    a.i(f"v_mul_u32_u24 v3, {KP}, v2"); a.i(f"v_lshl_add_u32 v3, v5, 3, v3")
    a.i(f"v_add_u32 {vKw}, s7, v3"); a.i(f"s_add_u32 s6, s6, {QBASE}"); a.i(f"v_add_u32 {vQw}, s6, v3")
    a.i(f"s_mul_i32 s6, {sWV}, {VB}"); a.i(f"s_add_u32 s6, s6, {VBASE}")
    a.i(f"v_mul_u32_u24 v3, {VR}, v5"); a.i(f"v_lshl_add_u32 v3, v2, 4, v3"); a.i(f"v_add_u32 {vVw}, s6, v3")
    a.i(f"v_bfe_u32 v3, {L}, 2, 1"); a.i(f"v_mul_u32_u24 v3, {VJ}, v3"); a.i(f"v_bfe_u32 v4, {L}, 1, 1"); a.i(f"v_mul_u32_u24 v4, {VR}, v4")
    a.i(f"v_add_u32 v3, v3, v4"); a.i(f"v_and_b32 v4, 1, {L}"); a.i(f"v_lshl_add_u32 v3, v4, 4, v3"); a.i(f"v_add_u32 v3, {72*16}, v3")
    a.i(f"v_add_u32 {vCw}, s6, v3")
    a.i(f"v_lshrrev_b32 v3, 4, v2"); a.i(f"v_mul_u32_u24 v3, {VJ}, v3"); a.i(f"v_bfe_u32 v4, v2, 2, 1")
    a.i(f"v_mul_u32_u24 v4, {VR}, v4"); a.i(f"v_add_u32 v3, v3, v4"); a.i(f"v_and_b32 v4, 3, v2")
    a.i(f"v_bfe_u32 v6, v2, 3, 1"); a.i(f"v_lshl_add_u32 v4, v6, 2, v4"); a.i(f"v_lshl_add_u32 v3, v4, 1, v3")
    a.i(f"v_lshl_add_u32 v3, v5, 6, v3"); a.i(f"v_add_u32 v3, {64*16}, v3"); a.i(f"v_add_u32 {vVt}, s6, v3")
    a.i(f"s_mul_i32 s6, {sWV}, 36"); a.i(f"v_mul_u32_u24 v3, {KP}, v2"); a.i(f"v_add_u32 v3, s6, v3")
    a.i(f"v_lshl_add_u32 {vKr}, v5, 4, v3")
    a.i(f"v_add_u32 {vKl}, 32, v3")
    a.i(f"s_mul_i32 s6, {sWV}, 18"); a.i(f"v_add_u32 v3, s6, v2"); a.i(f"v_and_b32 v4, 27, v2")
    a.i(f"v_cmp_eq_u32 vcc, 18, v4"); a.i(f"v_mov_b32 v4, 73"); a.i(f"v_mov_b32 v6, 72"); a.i(f"v_cndmask_b32 v4, v4, v6, vcc")
    a.i(f"v_cmp_gt_u32 vcc, 18, v2"); a.i("s_nop 1"); a.i(f"v_cndmask_b32 v3, v4, v3, vcc")
    a.i(f"v_lshlrev_b32 v3, 4, v3"); a.i(f"v_mul_u32_u24 v4, {VR}, v5"); a.i(f"v_add_u32 {vVr}, v3, v4")
    a.i(f"v_lshlrev_b32 {vPk}, 4, {L}"); a.i(f"v_lshlrev_b32 {vPl}, 2, v2"); a.i(f"v_add_u32 {vPl}, 1024, {vPl}")
    a.i(f"v_mul_u32_u24 v3, 288, v5"); a.i(f"v_lshl_add_u32 v3, v2, 4, v3"); a.i(f"v_add_u32 {vPv}, 1152, v3")
    a.i(f"s_lshl_b32 s6, {sWV}, 2"); a.i(f"v_lshrrev_b32 v3, 3, v2"); a.i(f"v_mul_u32_u24 v3, {OUTROW}, v3")
    a.i(f"v_and_b32 v4, 7, v2"); a.i(f"v_lshl_add_u32 v3, v4, 4, v3"); a.i(f"v_add_u32 {vOl}, s6, v3")
    a.i(f"v_and_b32 v3, 27, v2"); a.i(f"v_cmp_eq_u32 vcc, 18, v3"); a.i(f"v_mov_b32 v4, 0x3f803f80"); a.i("s_nop 0")
    a.i(f"v_cndmask_b32 {vVC}, 0, v4, vcc")
    a.i(f"s_lshl_b32 s6, {sB}, 3"); a.i(f"s_add_u32 s6, s6, {sG}"); a.i(f"s_lshl_b32 s6, s6, 4"); a.i(f"s_add_u32 s6, s6, {sC}")
    a.i(f"s_mul_i32 {sKVme}, s6, {SLOT}"); a.i(f"s_mul_i32 s7, {sWV}, 2304"); a.i(f"s_add_u32 {sKVme}, {sKVme}, s7")
    a.i(f"s_sub_u32 {sKV1}, {sKVme}, {SLOT}"); a.i(f"s_sub_u32 {sKV2}, {sKVme}, {2*SLOT}")
    a.i(f"s_cmp_ge_u32 {sC}, 1"); a.i(f"s_cselect_b32 {sKV1}, {sKV1}, 0x70000000")
    a.i(f"s_cmp_ge_u32 {sC}, 2"); a.i(f"s_cselect_b32 {sKV2}, {sKV2}, 0x70000000")
    a.i(f"s_lshl_b32 s6, s6, 2"); a.i(f"s_add_u32 s6, s6, {sWV}"); a.i(f"s_lshl_b32 s6, s6, 7")
    a.i(f"s_add_u32 {sFKV}, s6, {WS_FKV}")
    a.i(f"s_cmp_ge_u32 {sC}, 1"); a.i(f"s_cselect_b32 s6, -1, 0"); a.i(f"s_cmp_ge_u32 {sC}, 2"); a.i(f"s_cselect_b32 s7, -1, 0")
    a.i(f"v_and_b32 v2, s6, {vVC}"); a.i(f"v_and_b32 v3, s7, {vVC}"); a.i(f"v_mov_b32 v4, 0x3f803f80")
    a.i(f"v_and_b32 v6, s7, v4"); a.i(f"v_and_b32 v4, s6, v4")
    for hb in range(8):
        base=HALO+14*hb
        a.i(f"v_accvgpr_write_b32 a{base+5}, {'v6' if hb<4 else 'v4'}")
        for r in range(8): a.i(f"v_accvgpr_write_b32 a{base+6+r}, {'v3' if hb<4 else 'v2'}")
    a.i(f"v_and_b32 v2, 31, {L}"); a.i(f"v_lshlrev_b32 v3, 2, v5"); a.i(f"v_sub_u32 v2, v2, v3")
    a.i(f"v_mov_b32 v6, 0xffff"); a.i(f"v_mov_b32 v7, 0xffff0000")
    for u in range(8):
        r0=2*u; k0=(r0&3)+8*(r0>>2)
        a.i(f"v_cmp_le_i32 vcc, {k0}, v2"); a.i(f"v_cmp_le_i32 s[4:5], {k0+1}, v2"); a.i("s_nop 0")
        a.i(f"v_cndmask_b32 v3, 0, v6, vcc"); a.i(f"v_cndmask_b32 v4, 0, v7, s[4:5]")
        a.i(f"v_or_b32 v{MASKD+u}, v3, v4"); a.i(f"v_not_b32 v{MASKF+u}, v{MASKD+u}")
    a.i(f"s_lshl_b32 s6, {sC}, 7"); a.i(f"s_lshl_b32 s7, {sG}, 2"); a.i("s_add_u32 s6, s6, s7")
    a.i(f"s_mul_i32 s6, s6, {OUTROW}"); a.i(f"s_mul_i32 s7, {sB}, 1152"); a.i("s_add_u32 s6, s6, s7")
    a.i(f"s_add_u32 {sOL}, s6, 1024"); a.i(f"s_mul_i32 s7, {sWV}, {OUTROW}"); a.i(f"s_add_u32 {sOM}, s6, s7")
    a.i(f"s_lshr_b32 {sRH}, {sG}, 2"); a.i(f"s_and_b32 {sNQ}, {sG}, 3")
    a.i(f"s_lshl_b32 s7, {sRH}, 1"); a.i(f"s_lshr_b32 s3, {sWV}, 1"); a.i("s_add_u32 s3, s3, s7"); a.i("s_lshl_b32 s3, s3, 5")
    a.i(f"s_lshl_b32 s7, {sC}, 7"); a.i("s_add_u32 s3, s3, s7"); a.i(f"s_mul_i32 {sPOM}, s3, {OUTROW}")
    a.i(f"s_mul_i32 s7, {sB}, 1152"); a.i(f"s_add_u32 {sPOM}, {sPOM}, s7"); a.i(f"s_add_u32 {sPOL}, {sPOM}, 1024")
    a.i(f"s_lshl_b32 s6, {sC}, 7"); a.i(f"s_lshl_b32 s7, {sRH}, 6"); a.i("s_add_u32 s6, s6, s7")
    a.i(f"s_lshl_b32 s7, {sWV}, 4"); a.i("s_add_u32 s6, s6, s7"); a.i(f"s_mul_i32 {sOUTB}, s6, {OUTROW}")
    a.i(f"s_mul_i32 s7, {sB}, 1152"); a.i(f"s_add_u32 {sOUTB}, {sOUTB}, s7")
    a.i(f"s_mul_i32 s7, {sNQ}, 288"); a.i(f"s_add_u32 {sOUTB}, {sOUTB}, s7")
    a.i(f"s_lshl_b32 s6, {sB}, 4"); a.i(f"s_add_u32 s6, s6, {sC}"); a.i(f"s_lshl_b32 {sFO}, s6, 12")
    a.i(f"s_add_u32 {sFO}, {sFO}, {WS_FO}")
    a.i(f"v_mov_b32 v252, {f2u(2.0**-40):#x}"); a.i(f"v_mov_b32 v253, {f2u(2.0**40):#x}")
    a.i(f"s_mov_b64 {sBAD}, 0")

def wq_reads(tau):
    n,t=divmod(tau,4); b=tau%2
    off=(n%3)*QCH+16*QPITCH*t
    return [[(f"ds_read_b64_tr_b16 {QFh(b,f,h)}, {vQr} offset:{off+4*QPITCH*h+64*f}", f'q{tau}_{f}') for h in range(2)] for f in range(3)]

def drain_side(a, side, n):
    k=0; last=''
    while side and (k<n or last.startswith('s_cmp') or (side[0] if isinstance(side[0],str) else side[0][0]).startswith('s_cselect')):
        x=side.pop(0)
        if isinstance(x,tuple): a.i(*x); last=x[0]
        else: a.i(x); last=x
        k+=1

def phase1a(a, opts, pend):
    a.c("---- phase 1a")
    def reads(tau):
        n,t=divmod(tau,4); slot=n%4; hi=slot>=2; base=(slot%2)*SLOT; b=tau%2
        R=[[(f"ds_read_b128 {XF(tau)}, {vXr[hi][t]} offset:{base}", f'x{tau}')] +
           [(f"ds_read_b64_tr_b16 {WFh(b,0,h)}, {vWr[hi]} offset:{base+5120*t+1280*h}", f'w{tau}_0') for h in range(2)]]
        for f,co in ((1,64),(2,144),(3,208)):
            R.append([(f"ds_read_b64_tr_b16 {WFh(b,f,h)}, {vWr[hi]} offset:{base+5120*t+1280*h+co}", f'w{tau}_{f}') for h in range(2)])
        R.append([(f"ds_read_b64_tr_b16 {WFh(b,4,h)}, {vMx[hi]} offset:{base+5120*t+1280*h}", f'w{tau}_4') for h in range(2)])
        return R
    a.stamp('setup_done')
    a.wait(vm='ch0'); a.i("s_barrier")
    a.stamp('ch0_landed')
    for grp in reads(0): a.emit(grp)
    names=['K0','K1','V0','V1','MX']
    side=opts.get('_side',[])
    every=opts.get('dma_every',2)
    slotcnt=0
    for tau in range(36):
        n,t=divmod(tau,4); b=tau%2
        if t==0: a.stamp(f'c{n}')
        if t==0: pagepad(a,opts,f'c{n}')
        if t==3:
            a.wait(vm=f'ch{n+1}' if n<8 else 'wq0')
            a.i("s_barrier")
            if n<=5:
                pend += dma_chunk_groups((n+3)%4, n+3)
                if (n==5 and opts.get('wotouch',2)==1) or (n==0 and opts.get('wotouch',2)==3) or (n==2 and opts.get('wotouch',2)==4):
                    rec=Rec(); touch_wo(rec); pend.append(rec.l)
            elif n==6:
                pend.append([f"s_mov_b32 {sCI}, {sROT}", f"s_mul_i32 {sWoff}, {sCI}, {64*WROW}", f"s_mov_b32 {sIDX}, {sOFF}"])
                for q in range(3): pend += dma_wq_groups(q)
            elif n==7:
                for q in range(3,6): pend += dma_wq_groups(q)
            elif n==8:
                for q in range(6,9): pend += dma_wq_groups(q)
        R = reads(tau+1) if tau<35 else wq_reads(0)
        for m,nm in enumerate(names):
            a.wait(lg=[f'w{tau}_{m}']+([f'x{tau}'] if m==0 else []))
            acc=rng('v',ACC[nm],16); c='0' if tau==0 else acc
            if nm in ('V0','V1'): a.i(f"v_mfma_f32_32x32x16_bf16 {acc}, {XF(tau)}, {WF(b,m)}, {c}")
            else: a.i(f"v_mfma_f32_32x32x16_bf16 {acc}, {WF(b,m)}, {XF(tau)}, {c}")
            if m<len(R): a.emit(R[m])
            slotcnt+=1
            if pend and slotcnt%every==0: a.emit(pend.pop(0))
            elif side: drain_side(a, side, opts.get('side_n',4))
        if tau==30:
            a.i(f"v_mov_b32 {vT}, 0")
            a.i(f"buffer_load_dwordx2 {vNON}, {vT}, {sDBG}, 0 offen sc1", tag='nonce')
    assert not side, len(side)
    return pend

def epi1a_list():
    A=[]; T=76
    for ti,nm in enumerate(('K0','K1')):
        base=ACC[nm]
        for i in range(4):
            t0=T+2*(i%2)
            A+= [f"v_cvt_pk_bf16_f32 v{t0}, v{base+4*i}, v{base+4*i+1}", f"v_cvt_pk_bf16_f32 v{t0+1}, v{base+4*i+2}, v{base+4*i+3}",
                 (f"ds_write2_b32 {vKw}, v{t0}, v{t0+1} offset0:{16*ti+4*i} offset1:{16*ti+4*i+1}",'e1w')]
    for ti,nm in enumerate(('V0','V1')):
        base=ACC[nm]
        for j in range(2):
            t0=T+4+4*j
            for u in range(4): A.append(f"v_cvt_pk_bf16_f32 v{t0+u}, v{base+8*j+2*u}, v{base+8*j+2*u+1}")
            A.append((f"ds_write_b128 {vVw}, v[{t0}:{t0+3}] offset:{VJ*j+512*ti}",'e1w'))
    base=ACC['MX']; t0=T+12
    A+= [f"v_cvt_pk_bf16_f32 v{t0}, v{base}, v{base+1}", f"v_cvt_pk_bf16_f32 v{t0+1}, v{base+2}, v{base+3}",
         (f"ds_write2_b32 {vKw}, v{t0}, v{t0+1} offset0:32 offset1:33",'e1w'),
         f"v_cvt_pk_bf16_f32 v{t0+2}, v{base+4}, v{base+5}", f"v_cvt_pk_bf16_f32 v{t0+3}, v{base+6}, v{base+7}",
         (f"ds_write_b16 {vVt}, v{t0+2}",'e1w'), (f"ds_write_b16_d16_hi {vVt}, v{t0+2} offset:16",'e1w'),
         (f"ds_write_b16 {vVt}, v{t0+3} offset:32",'e1w'), (f"ds_write_b16_d16_hi {vVt}, v{t0+3} offset:48",'e1w')]
    A+= [f"v_and_b32 v{t0}, 1, {vLane}", f"v_cmp_eq_u32 vcc, 0, v{t0}", f"v_mov_b32 v{t0+1}, 0x3f803f80", "s_nop 0",
         f"v_cndmask_b32 v{t0}, 0, v{t0+1}, vcc", f"v_mov_b32 v{t0+1}, v{t0}", f"v_mov_b32 v{t0+2}, v{t0}", f"v_mov_b32 v{t0+3}, v{t0}",
         "s_mov_b64 exec, 0xff", (f"ds_write_b128 {vCw}, v[{t0}:{t0+3}]",'e1w'), "s_mov_b64 exec, -1"]
    return A

def own_presets():
    L=[f"v_mov_b32 v91, 0x3f803f80"]
    for bt in range(4): L.append(f"v_mov_b32 v{OWN+14*bt+5}, v91")
    return L
def own_reads():
    L=[]
    for bt in range(4):
        base=OWN+14*bt
        kb = KB0+KBLK*bt if bt<3 else KB3
        L.append(f"v_add_u32 v88, {kb}, {vKr}"); L.append(f"v_add_u32 v89, {kb}, {vKl}")
        L.append((f"ds_read2_b32 v[{base}:{base+1}], v88 offset0:0 offset1:1",'own'))
        L.append((f"ds_read2_b32 v[{base+2}:{base+3}], v88 offset0:2 offset1:3",'own'))
        L.append((f"ds_read_b32 v{base+4}, v89",'own'))
    for bt in range(4):
        base=OWN+14*bt
        for j in range(2): L.append((f"ds_read_b128 v[{base+6+4*j}:{base+9+4*j}], {vVr} offset:{VB*bt+VJ*j}",'own'))
    return L
def own_store_groups(mod='sc1'):
    Gs=[]
    for bt in range(4):
        base=OWN+14*bt; tag='pubA' if bt<2 else 'pubB'
        Gs.append([f"s_add_u32 {sT0}, {sKVme}, {9216*bt}", (f"buffer_store_dwordx4 v[{base}:{base+3}], {vPk}, {sWS}, {sT0} offen {mod}",tag)])
        Gs.append([f"s_add_u32 {sT0}, {sKVme}, {9216*bt}", f"s_mov_b64 exec, {sLO}", (f"buffer_store_dword v{base+4}, {vPl}, {sWS}, {sT0} offen {mod}",tag), "s_mov_b64 exec, -1"])
        for j in range(2):
            Gs.append([f"s_add_u32 {sT0}, {sKVme}, {9216*bt}", f"s_mov_b64 exec, {sVM}", (f"buffer_store_dwordx4 v[{base+6+4*j}:{base+9+4*j}], {vPv}, {sWS}, {sT0} offen offset:{576*j} {mod}",tag), "s_mov_b64 exec, -1"])
    return Gs

def flag_store_ins(cnt):
    return [f"s_add_u32 {sT1}, {sNONh}, {cnt}", f"v_mov_b32 v2, {sNONl}", f"v_mov_b32 v3, {sT1}", f"v_mov_b32 v4, 0",
            "s_mov_b64 exec, 1", (f"buffer_store_dwordx2 v[2:3], v4, {sWS}, {sFKV} offen sc1", f'kvflag{cnt}'), "s_mov_b64 exec, -1"]

def xt_base():
    return [f"s_lshl_b32 {sT0}, {sB}, 4", f"s_add_u32 {sT0}, {sT0}, {sC}", f"s_lshl_b32 {sT0}, {sT0}, 10", f"s_add_u32 {sT0}, {sT0}, {WS_XT}"]
def xt_store():
    return xt_base()+[f"s_add_u32 {sLFH}, {sXCC}, 1", f"s_lshl_b32 {sLFH}, {sLFH}, 8", f"s_add_u32 {sLFH}, {sLFH}, {sNONh}",
            f"s_lshl_b32 {sT1}, {sG}, 7", f"s_add_u32 {sT0}, {sT0}, {sT1}",
            f"v_mov_b32 v2, {sNONl}", f"v_mov_b32 v3, {sLFH}", f"v_mov_b32 v4, 0",
            "s_mov_b64 exec, 1", (f"buffer_store_dwordx2 v[2:3], v4, {sWS}, {sT0} offen sc1",'xt'), "s_mov_b64 exec, -1"]
def xt_load():
    return xt_base()+[f"v_lshlrev_b32 v2, 7, {vLane}", "s_mov_b64 exec, 0xff",
            (f"buffer_load_dwordx2 v[8:9], v2, {sWS}, {sT0} offen sc1",'xtl'), "s_mov_b64 exec, -1"]
def xt_check(a):
    a.wait(vm='xtl')
    a.i("s_mov_b64 exec, 0xff")
    a.i(f"v_cmp_eq_u32 vcc, {sNONl}, v8"); a.i(f"v_cmp_eq_u32 s[4:5], {sLFH}, v9")
    a.i("s_mov_b64 exec, -1")
    a.i("s_and_b64 s[4:5], s[4:5], vcc"); a.i("s_and_b32 s4, s4, 0xff"); a.i("s_cmp_eq_u32 s4, 0xff")
    a.i(f"s_cselect_b32 {sLOC}, 1, 0")
    if GOPT.get('force_remote'): a.i(f"s_mov_b32 {sLOC}, 0")

def wo_group_for(kbase):
    setup=[f"s_add_u32 {sT1}, {sWV}, {kbase}", f"s_mul_i32 {sT2}, {sT1}, 41472", f"s_mul_i32 {sT3}, {sT1}, 9216"]
    return wo8_groups(setup)

def phase1b(a, pend, opts):
    a.c("---- phase 1b")
    a.stamp('1a_end')
    q=[]; stores=[]; wo=[]
    E2=opts.get('e2',4)
    FAST=opts.get('fastA',1)
    sched={}
    tt=E2+1
    for g in range(16):
        sched.setdefault(tt,[]).append(g)
        tt += 1 if (g<7 and FAST) else 2
    FLAGA=opts.get('flagA',24)
    woaddr=[f"v_mov_b32 {d_}, {s_}" for d_,s_ in zip(vWOm+vWOl+vWOt,vWOtmp)]+wo8_setup()
    for tau in range(36):
        n,t=divmod(tau,4); b=tau%2
        a.stamp(f'b{tau}_')
        if tau==1:
            a.i("s_barrier"); q+=epi1a_list()
        if tau==E2:
            a.drain(q,1000); a.wait(lg=0); a.i("s_barrier")
            a.emit(own_reads())
        if tau==E2+1:
            a.wait(lg='own')
            a.stamp('pub_start')
            stores=own_store_groups()
            q+=woaddr
        if tau==E2+3:
            a.i("s_barrier")
        if tau==E2+6: wo+=wo_group_for(0); q+=own_presets()
        if tau==15: wo+=wo_group_for(4)
        if tau==27: wo+=wo_group_for(8)
        if tau==FLAGA:
            a.wait(vm='pubA'); get_nonce(a); a.emit(flag_store_ins(2)); a.stamp('flagA')
            if opts.get('olocal'): a.emit(xt_store())
        if t==3 and tau<35:
            a.wait(vm=f'wq{n+1}')
            a.i("s_barrier")
            if (n+1)%3==0: a.i(f"v_add_u32 {vQr}, {SLOT}, {vQr}")
        R = wq_reads(tau+1) if tau<35 else []
        for m,nm in enumerate(('Q0','Q1','Q2')):
            a.wait(lg=[f'q{tau}_{m}'])
            acc=rng('v',ACC[nm],16); c='0' if tau==0 else acc
            a.i(f"v_mfma_f32_32x32x16_bf16 {acc}, {QF(b,m)}, {XF(tau)}, {c}")
            if m<len(R): a.emit(R[m])
            if m==0 and tau in sched:
                for g in sched[tau]:
                    if opts.get('nopub'):
                        for x in stores[g]:
                            if isinstance(x,tuple): a.vm.append(x[1])
                    else: a.emit(stores[g])
            elif q and tau<E2: a.drain(q,opts.get('epi_rate',7))
            elif pend: a.emit(pend.pop(0))
            elif q: drain_side2(a,q,4)
            elif opts.get('nowo1b',1): pass
            elif wo and m==2: a.emit(wo.pop(0))
            elif wo and m==1 and opts.get('wo2',1): a.emit(wo.pop(0))
    assert not pend and not q, (len(pend),len(q))
    for tt_ in sorted(sched):
        if tt_>35:
            for g in sched[tt_]: a.emit(stores[g])
    opts['_wo_left']=wo
    a.stamp('1b_end')
    a.emit(kv_flag_load(0))
    a.nop(14)
    T=76
    a.i(f"v_mov_b32 v90, {sSC}"); a.i(f"v_mov_b32 v91, {sSC}")
    for ti,nm in enumerate(('Q0','Q1','Q2')):
        base=ACC[nm]; ni=4 if ti<2 else 1
        for r in range(0,4*ni,2): a.i(f"v_pk_mul_f32 v[{base+r}:{base+r+1}], v[90:91], v[{base+r}:{base+r+1}]")
    for ti,nm in enumerate(('Q0','Q1','Q2')):
        base=ACC[nm]; ni=4 if ti<2 else 1
        for i in range(ni):
            t0=T+2*((ti*4+i)%8)
            a.i(f"v_cvt_pk_bf16_f32 v{t0}, v{base+4*i}, v{base+4*i+1}"); a.i(f"v_cvt_pk_bf16_f32 v{t0+1}, v{base+4*i+2}, v{base+4*i+3}")
            a.i(f"ds_write2_b32 {vQw}, v{t0}, v{t0+1} offset0:{16*ti+4*i} offset1:{16*ti+4*i+1}",'e2w')
    a.i(f"v_mov_b32 {vT}, 0")
    for i in range(4):
        for r in range(4,8): a.i(f"v_accvgpr_write_b32 a{8*i+r}, {vT}")
    a.wait(lg=0); a.i("s_barrier")
    for i in range(4):
        a.i(f"v_add_u32 v88, {QBASE+KBLK*i}, {vKr}")
        a.i(f"ds_read2_b32 a[{8*i}:{8*i+1}], v88 offset0:0 offset1:1",'qf')
        a.i(f"ds_read2_b32 a[{8*i+2}:{8*i+3}], v88 offset0:2 offset1:3",'qf')
    a.i(f"s_mov_b64 exec, {sLO}")
    for i in range(4):
        a.i(f"v_add_u32 v89, {QBASE+KBLK*i}, {vKl}")
        a.i(f"ds_read_b32 a{8*i+4}, v89",'qf')
    a.i("s_mov_b64 exec, -1")
    a.wait(lg='qf')
    a.i("s_barrier")
    a.stamp('q_ready')

def drain_side2(a, q, n):
    k=0; inexec=False; last=''
    while q and (k<n or inexec or last.startswith('s_cmp') or (q[0] if isinstance(q[0],str) else q[0][0]).startswith('s_cselect')):
        x=q.pop(0)
        txt=x[0] if isinstance(x,tuple) else x
        if txt.startswith('s_mov_b64 exec'): inexec = not txt.endswith('-1')
        if isinstance(x,tuple): a.i(*x)
        else: a.i(x)
        last=txt; k+=1

vFL='v[6:7]'; vFA='v5'
def kv_flag_load(rnd):
    L=[]
    if rnd==0:
        L+= [f"s_cmp_ge_u32 {sC}, 2", f"s_cselect_b32 {sT1}, 2, 1", f"s_lshl_b32 {sT1}, {sT1}, 9",
             f"s_sub_u32 {sT0}, {sFKV}, 512", f"s_sub_u32 {sT1}, {sFKV}, {sT1}",
             f"s_cmp_eq_u32 {sC}, 0", f"s_cselect_b32 {sT0}, {sFKV}, {sT0}", f"s_cselect_b32 {sT1}, {sFKV}, {sT1}",
             f"v_mov_b32 v8, {sT0}", f"v_mov_b32 v9, {sT1}", f"v_cmp_eq_u32 vcc, 0, {vLane}", "s_nop 1",
             f"v_cndmask_b32 {vFA}, v9, v8, vcc"]
    L+= ["s_mov_b64 exec, 3", (f"buffer_load_dwordx2 {vFL}, {vFA}, {sWS}, 0 offen sc1", f'fl{rnd}'), "s_mov_b64 exec, -1"]
    return L

def kv_flag_check(a, rnd, need):
    a.wait(vm=f'fl{rnd}')
    a.i(f"s_mov_b32 {sCNT}, 200000")
    a.label(f"L_chk{rnd}")
    a.i(f"s_cmp_eq_u32 {sC}, 0"); a.i(f"s_cbranch_scc1 L_ok{rnd}")
    a.i("s_mov_b64 exec, 3")
    a.i(f"v_subrev_u32 v8, {sNONh}, v7")
    a.i(f"v_cmp_eq_u32 vcc, {sNONl}, v6")
    a.i(f"v_cmp_le_u32 s[4:5], {need}, v8")
    a.i(f"v_cmp_ge_u32 s[6:7], 4, v8")
    a.i("s_mov_b64 exec, -1")
    a.i("s_and_b64 s[4:5], s[4:5], vcc"); a.i("s_and_b64 s[4:5], s[4:5], s[6:7]"); a.i("s_and_b32 s4, s4, 3")
    a.i("s_cmp_eq_u32 s4, 3"); a.i(f"s_cbranch_scc1 L_ok{rnd}")
    a.i("s_mov_b64 exec, 3")
    a.i(f"buffer_load_dwordx2 {vFL}, {vFA}, {sWS}, 0 offen sc1", cond=True)
    a.i("s_mov_b64 exec, -1")
    a.i("s_waitcnt vmcnt(0)")
    a.i(f"s_sub_u32 {sCNT}, {sCNT}, 1"); a.i(f"s_cmp_lg_u32 {sCNT}, 0"); a.i(f"s_cbranch_scc1 L_chk{rnd}")
    a.label(f"L_ok{rnd}")
    a.stamp(f'chk{rnd}')

def wo_addr(a):
    L=vLane
    a.i(f"s_mul_i32 s6, {sNQ}, 288")
    a.i(f"v_lshrrev_b32 v4, 4, {L}")
    a.i(f"v_and_b32 v5, 15, {L}")
    for par in range(2):
        a.i(f"v_add_u32 v6, {4*par}, v4"); a.i(f"v_lshlrev_b32 v6, 1, v6"); a.i(f"v_xor_b32 v6, v5, v6")
        a.i(f"v_lshlrev_b32 v6, 4, v6"); a.i(f"v_add_u32 v6, s6, v6")
        a.i(f"v_mul_u32_u24 v7, {XROW}, v4"); a.i(f"v_add_u32 {vWOm[par]}, v6, v7")
        a.i(f"v_lshrrev_b32 v7, 1, v4"); a.i(f"v_mul_u32_u24 v7, 18, v7"); a.i(f"v_and_b32 v8, 1, v4"); a.i(f"v_add_u32 v7, v7, v8")
        a.i(f"v_mul_u32_u24 v7, {XROW}, v7"); a.i(f"v_add_u32 {vWOl[par]}, v6, v7")
    a.i(f"v_lshrrev_b32 v4, 1, {L}")
    a.i(f"v_and_b32 v5, 1, {L}"); a.i(f"v_lshlrev_b32 v5, 4, v5"); a.i(f"v_add_u32 v5, 256, v5"); a.i(f"v_add_u32 v5, s6, v5")
    a.i(f"v_bfe_u32 v6, v4, 2, 2")
    a.i(f"v_and_b32 v7, 3, v4"); a.i(f"v_lshrrev_b32 v8, 4, v4")
    a.i(f"v_lshrrev_b32 v2, 1, v6"); a.i(f"v_mul_u32_u24 v2, 18, v2"); a.i(f"v_add_u32 v2, v2, v7"); a.i(f"v_lshl_add_u32 v2, v8, 3, v2")
    a.i(f"v_and_b32 v3, 1, v6"); a.i(f"v_lshl_add_u32 v2, v3, 2, v2"); a.i(f"v_mul_u32_u24 v2, {XROW}, v2"); a.i(f"v_add_u32 {vWOt[0]}, v2, v5")
    a.i(f"v_lshl_add_u32 v7, v8, 2, v7")
    a.i(f"v_lshrrev_b32 v2, 1, v7"); a.i(f"v_lshl_add_u32 v2, v6, 2, v2"); a.i(f"v_mul_u32_u24 v2, 18, v2")
    a.i(f"v_and_b32 v3, 1, v7"); a.i(f"v_add3_u32 v2, v2, v3, 16"); a.i(f"v_mul_u32_u24 v2, {XROW}, v2"); a.i(f"v_add_u32 {vWOt[1]}, v2, v5")

vWO8=[f'v{22+e}' for e in range(8)]
def wo8_setup():
    L=[]
    for e in range(8):
        const=(((e&3)>>1)*18+8*(e>>2)+4*(e&1))*XROW-1024*(e%4)
        if const>=0: L.append(f"v_add_u32 {vWO8[e]}, {const}, {vWOm[e&1]}")
        else: L.append(f"v_subrev_u32 {vWO8[e]}, {-const}, {vWOm[e&1]}")
    return L
def wo8_groups(uniform_setup):
    Gs=[]
    for e in range(8):
        pre = list(uniform_setup) if e==0 else []
        if e%4==0: pre += [f"s_add_u32 m0, {sT3}, {4096*(e//4)}", "s_nop 0"]
        Gs.append(pre+[(f"buffer_load_dwordx4 {vWO8[e]}, {sWO}, {sT2} offen offset:{1024*(e%4)} lds",'wo')])
    Gs.append([f"s_add_u32 m0, {sT3}, 8192", "s_nop 0", (f"buffer_load_dwordx4 {vWOt[0]}, {sWO}, {sT2} offen lds",'wo')])
    return Gs

def wo_dma_groups(kap, slot, uniform_setup):
    Gs=[]
    left = kap>=16
    for e in range(8):
        if left: const=((4*(e&3)+2*(e>>2))*18+16)*XROW
        else: const=(((e&3)>>1)*18+8*(e>>2)+4*(e&1))*XROW
        pre = list(uniform_setup) if e==0 else []
        if e%4==0: pre += [f"s_add_u32 m0, {sT3}, {4096*(e//4)}"]
        voff=(vWOl if left else vWOm)[e&1]
        Gs.append(pre+[f"s_add_u32 {sWOs}, {sT2}, {const-1024*(e%4)}" if const-1024*(e%4)>=0 else f"s_sub_u32 {sWOs}, {sT2}, {1024*(e%4)-const}",
                       (f"buffer_load_dwordx4 {voff}, {sWO}, {sWOs} offen offset:{1024*(e%4)} lds",'wo')])
    Gs.append([f"s_add_u32 m0, {sT3}, 8192", "s_nop 0", (f"buffer_load_dwordx4 {vWOt[1 if left else 0]}, {sWO}, {sT2} offen lds",'wo')])
    return Gs

def wo_prefetch_groups():
    Gs=[]
    for it in range(4):
        setup=[f"s_add_u32 {sT1}, {sWV}, {4*it}", f"s_mul_i32 {sT2}, {sT1}, 41472", f"s_mul_i32 {sT3}, {sT1}, 9216"]
        Gs+=wo_dma_groups(0,None,setup)
    return Gs

def wo_left_groups(L_, ldsbase, regs=None):
    vl0,vl1,vt = regs or (vWOl[0],vWOl[1],vWOt[1])
    g0=L_*16*18*XROW
    setup=[f"s_lshl_b32 {sT1}, {sWV}, 1", f"s_and_b32 {sT1}, {sT1}, 3", f"s_lshl_b32 {sT1}, {sT1}, 2",
           f"s_lshr_b32 {sT2}, {sWV}, 1", f"s_lshl_b32 {sT2}, {sT2}, 1", f"s_add_u32 {sT1}, {sT1}, {sT2}",
           f"s_mul_i32 {sT1}, {sT1}, {18*XROW}", f"s_add_u32 {sT2}, {sT1}, {g0+16*XROW}",
           f"s_lshl_b32 {sT1}, {sWV}, 11", f"s_add_u32 m0, {sT1}, {ldsbase}", "s_nop 0"]
    G0=setup+[(f"buffer_load_dwordx4 {vl0}, {sWO}, {sT2} offen lds",'wo')]
    G1=[f"s_add_u32 {sT2}, {sT2}, {4*18*XROW-1024}", (f"buffer_load_dwordx4 {vl1}, {sWO}, {sT2} offen offset:1024 lds",'wo')]
    G2=[f"s_mov_b32 {sT2}, {g0}", f"s_mov_b32 m0, {ldsbase+8192}", "s_nop 0", (f"buffer_load_dwordx4 {vt}, {sWO}, {sT2} offen lds",'wo')]
    return [G0,G1,G2]

def halo_load_groups(hb):
    base=HALO+14*hb; src=sKV2 if hb<4 else sKV1; bt=hb%4; tg=f'h{hb}'
    return [[f"s_add_u32 {sT0}, {src}, {9216*bt}",
             (f"buffer_load_dwordx4 a[{base}:{base+3}], {vPk}, {sWS}, {sT0} offen sc1", tg),
             (f"buffer_load_dword a{base+4}, {vPl}, {sWS}, {sT0} offen sc1", tg),
             f"s_mov_b64 exec, {sVM}",
             (f"buffer_load_dwordx4 a[{base+6}:{base+9}], {vPv}, {sWS}, {sT0} offen sc1", tg),
             (f"buffer_load_dwordx4 a[{base+10}:{base+13}], {vPv}, {sWS}, {sT0} offen offset:576 sc1", tg),
             "s_mov_b64 exec, -1"]]

def get_nonce(a):
    a.i(f"v_readfirstlane_b32 {sNONl}, v48"); a.i(f"v_readfirstlane_b32 {sNONh}, v49"); a.i("s_nop 1")
    a.i(f"s_or_b32 {sT0}, {sNONl}, {sNONh}"); a.i(f"s_cmp_lg_u32 {sT0}, 0"); a.i("s_cbranch_scc1 L_have_nonce")
    a.i(f"s_mov_b32 {sCNT}, 100000")
    a.label("L_nonce_poll")
    a.i(f"v_mov_b32 {vT}, 0")
    a.i(f"buffer_load_dwordx2 {vNON}, {vT}, {sDBG}, 0 offen sc1", cond=True)
    a.i("s_waitcnt vmcnt(0)")
    a.i(f"v_readfirstlane_b32 {sNONl}, v48"); a.i(f"v_readfirstlane_b32 {sNONh}, v49"); a.i("s_nop 1")
    a.i(f"s_or_b32 {sT0}, {sNONl}, {sNONh}"); a.i(f"s_cmp_lg_u32 {sT0}, 0"); a.i("s_cbranch_scc1 L_have_nonce")
    a.i("s_sleep 2"); a.i(f"s_sub_u32 {sCNT}, {sCNT}, 1"); a.i(f"s_cmp_lg_u32 {sCNT}, 0"); a.i("s_cbranch_scc1 L_nonce_poll")
    a.label("L_have_nonce")

def kv_regs(jb): return ('v', OWN+14*jb) if jb>=0 else ('a', HALO+14*(jb+8))
HORDER=[-4,-3,-8,-7,-2,-1,-6,-5]
def tile_list():
    T=[(i,bt) for i in range(4) for bt in range(i+1)]
    for jb in HORDER[:4]:
        for i in range(4):
            if i-jb<=8: T.append((i,jb))
    if GOPT.get('r2_by_q',0):
        for i in (3,2,1,0):
            for jb in HORDER[4:]:
                if i-jb<=8: T.append((i,jb))
    else:
        for jb in HORDER[4:]:
            for i in range(4):
                if i-jb<=8: T.append((i,jb))
    return T

def norm_block(i):
    O=OACC+16*i; t=84; L=[]
    L.append(f"v_rcp_f32 v{t}, v{O+10}")
    L.append(f"v_pk_add_f32 v[{t+2}:{t+3}], v[{O}:{O+1}], v[{O+2}:{O+3}]")
    L.append(f"v_pk_add_f32 v[{t+4}:{t+5}], v[{O+4}:{O+5}], v[{O+6}:{O+7}]")
    L.append(f"v_mov_b32 v{t+1}, v{t}")
    L.append(f"v_pk_add_f32 v[{t+2}:{t+3}], v[{t+2}:{t+3}], v[{O+8}:{O+9}]")
    L.append(f"v_pk_add_f32 v[{t+2}:{t+3}], v[{t+2}:{t+3}], v[{t+4}:{t+5}]")
    for r in range(0,10,2): L.append(f"v_pk_mul_f32 v[{O+r}:{O+r+1}], v[{t}:{t+1}], v[{O+r}:{O+r+1}]")
    L.append(f"v_add_f32 v{t+2}, v{t+2}, v{t+3}")
    L.append(f"v_fma_f32 v{t+2}, v{t+2}, 0, v{O+10}")
    for u in range(5): L.append(f"v_cvt_pk_bf16_f32 v{O+u}, v{O+2*u}, v{O+2*u+1}")
    L.append(f"v_cmp_nle_f32 vcc, v252, v{t+2}")
    L.append(f"v_cmp_nge_f32 s[4:5], v253, v{t+2}")
    L.append(f"s_add_u32 {sT0}, {sOM}, {i*32*OUTROW}"); L.append(f"s_add_u32 {sT1}, {sOL}, {i*32*OUTROW}")
    L.append(f"s_or_b64 {sBAD}, {sBAD}, vcc"); L.append(f"s_or_b64 {sBAD}, {sBAD}, s[4:5]")
    L.append(('OSTORE',i))
    return L

def emit_ostore(a, i):
    O=OACC+16*i
    if not GOPT.get('olocal'):
        a.i(f"buffer_store_dwordx4 v[{O}:{O+3}], {vPk}, {sOUT}, {sT0} offen sc1", 'ost')
        a.i(f"s_mov_b64 exec, {sLO}")
        a.i(f"buffer_store_dword v{O+4}, {vOl}, {sOUT}, {sT1} offen sc1", 'ost')
        a.i(f"s_mov_b64 exec, -1")
        return
    a.i(f"s_cmp_eq_u32 {sLOC}, 1"); a.i(f"s_cbranch_scc1 L_osl{i}")
    a.i(f"buffer_store_dwordx4 v[{O}:{O+3}], {vPk}, {sOUT}, {sT0} offen sc1", 'x', True)
    a.i(f"s_mov_b64 exec, {sLO}")
    a.i(f"buffer_store_dword v{O+4}, {vOl}, {sOUT}, {sT1} offen sc1", 'x', True)
    a.i(f"s_mov_b64 exec, -1")
    a.i(f"s_branch L_ose{i}")
    a.label(f"L_osl{i}")
    a.i(f"buffer_store_dwordx4 v[{O}:{O+3}], {vPk}, {sOUT}, {sT0} offen", 'ost')
    a.i(f"s_mov_b64 exec, {sLO}")
    a.i(f"buffer_store_dword v{O+4}, {vOl}, {sOUT}, {sT1} offen", 'ost')
    a.i(f"s_mov_b64 exec, -1")
    a.label(f"L_ose{i}")

def o_pretouch():
    L=vLane
    return [f"v_lshrrev_b32 v2, 3, {L}", f"v_mul_u32_u24 v2, {32*OUTROW}, v2", f"v_and_b32 v3, 7, {L}", f"v_lshl_add_u32 v2, v3, 7, v2",
            f"v_add_u32 v2, {sOM}, v2",
            f"v_bfe_u32 v3, {L}, 2, 2", f"v_mul_u32_u24 v3, {32*OUTROW}, v3", f"v_and_b32 v4, 3, {L}", f"v_mul_u32_u24 v4, {OUTROW}, v4",
            f"v_add3_u32 v3, v3, v4, {sOL}",
            f"v_cmp_le_u32 vcc, 32, {L}", f"s_lshl_b32 {sT0}, {sG}, 2", f"s_add_u32 {sT0}, {sT0}, {sWV}", f"v_cndmask_b32 v2, v2, v3, vcc",
            "s_mov_b32 s4, -1", "s_mov_b32 s5, 0xffff", "s_mov_b64 exec, s[4:5]",
            (f"buffer_load_dword v255, v2, {sOUT}, 0 offen",'touch'), "s_mov_b64 exec, -1",
            f"s_lshl_b32 {sT0}, {sT0}, 7", f"s_add_u32 {sT0}, {sT0}, {sFO}",
            f"v_mul_u32_u24 v2, {WS_FWL-WS_FOL}, {L}", f"v_add_u32 v2, {WS_FOL-WS_FO}, v2",
            "s_mov_b64 exec, 3", (f"buffer_load_dword v255, v2, {sWS}, {sT0} offen",'touch'), "s_mov_b64 exec, -1"]

def attention(a, opts):
    a.c("---- attention")
    T=tile_list(); n=len(T)
    first={}; last={}; firstuse={}
    for k,(i,jb) in enumerate(T):
        first.setdefault(i,k); last[i]=k; firstuse.setdefault(jb,k)
    Sreg=lambda k: (S0 if k%2==0 else S1)
    Preg=lambda k: (P0 if k%2==0 else P1)
    def qk(k):
        i,jb=T[k]; p,base=kv_regs(jb); S=rng('v',Sreg(k),16)
        return [f"v_mfma_f32_32x32x16_bf16 {S}, {rng(p,base,4)}, a[{8*i}:{8*i+3}], 0",
                f"v_mfma_f32_32x32x16_bf16 {S}, {rng(p,base+4,4)}, a[{8*i+4}:{8*i+7}], {S}"]
    def pv(k):
        i,jb=T[k]; p,base=kv_regs(jb); O=rng('v',OACC+16*i,16); P=Preg(k)
        c0='0' if k==first[i] else O
        return [f"v_mfma_f32_32x32x16_bf16 {O}, {rng(p,base+6,4)}, v[{P}:{P+3}], {c0}",
                f"v_mfma_f32_32x32x16_bf16 {O}, {rng(p,base+10,4)}, v[{P+4}:{P+7}], {O}"]
    waited=set()
    wo=list(opts.get('_wo_left',[]))+wo_group_for(12)+wo_left_groups(0,16*9216)
    NW=opts.get('wo_att',39)
    def rn_(t): return t.replace(vWOl[0]+',','v88,').replace(vWOl[1]+',','v89,').replace(vWOt[1]+',','v90,').replace(vWOt[0]+',','v96,')
    def rt(g): return [((rn_(x[0]),'wo2') if isinstance(x,tuple) else x) for x in g]
    opts['_wo_p3']=[rt(g) for g in wo[NW:]]
    wo=wo[:NW]
    WO_START=opts.get('wo_start',0)
    CHK0=opts.get('chk0',0); FLAGB=opts.get('flagB',3); FL1=opts.get('fl1',9); CHK1=opts.get('chk1',14)
    WO_PAUSE=opts.get('wo_pause',1)
    a.i(f"s_mov_b32 {sTRY}, 0")
    a.label("L_att")
    a.i(f"v_mov_b32 v254, 0x207")
    q0=qk(0); a.i(q0[0]); a.i(q0[1])
    extra=[]; hq=[]
    for k in range(n+1):
        a.stamp(f't{k}_')
        pagepad(a,opts,f't{k}')
        if k==CHK0:
            kv_flag_check(a,0,2)
            for jb in HORDER[:4]:
                hq += halo_load_groups(jb+8)
        if k==FLAGB:
            a.wait(vm='pubB'); a.emit(flag_store_ins(4))
        if k==FL1: a.emit(kv_flag_load(1))
        if opts.get('olocal') and k==opts.get('pre_at',19): a.emit(o_pretouch())
        if opts.get('olocal') and k==opts.get('xtl',24): a.emit(xt_load())
        if opts.get('olocal') and k==opts.get('xtc',30): xt_check(a)
        if k==CHK1:
            kv_flag_check(a,1,4)
            for jb in HORDER[4:]:
                hq += halo_load_groups(jb+8)
        mf=[]
        if k+1<n:
            i,jb=T[k+1]
            if jb<0 and jb not in waited:
                if not waited: a.stamp('own_done')
                assert any(t==f'h{jb+8}' for t in a.vm), jb
                waited.add(jb); a.wait(vm=f'h{jb+8}')
                if len(waited)==1: a.stamp('h0_landed')
            mf+=qk(k+1)
        else: mf+=[None,None]
        mf += pv(k-1) if k>=1 else [None,None]
        if k==0: a.nop(12)
        S=Sreg(k); P=Preg(k)
        i,jb=T[k] if k<n else (None,None)
        for seg in range(4):
            pk,ps = (k,seg-1) if seg>0 else (k-1,3)
            if pk>=0 and pk<n:
                Sp=Sreg(pk); Pp=Preg(pk); ip,jp=T[pk]
                for u in (2*ps,2*ps+1): a.i(f"v_cvt_pk_bf16_f32 v{Pp+u}, v{Sp+2*u}, v{Sp+2*u+1}")
                if jp==ip or jp==ip-8:
                    M=MASKD if jp==ip else MASKF
                    for u in (2*ps,2*ps+1): a.i(f"v_and_b32 v{Pp+u}, v{M+u}, v{Pp+u}")
            if k==n and seg==2: a.nop(2)
            if mf[seg]: a.i(mf[seg])
            if k<n:
                for e in range(4): a.i(f"v_exp_f32 v{S+4*seg+e}, v{S+4*seg+e}")
            a.drain(extra, 6 if k<n else 1000)
            if hq and seg in (0,2): a.emit(hq.pop(0))
            paused = WO_PAUSE and ((CHK0<=k<10) or (CHK1<=k<CHK1+9))
            if k>=WO_START and wo and not paused and seg in (0,1,3): a.emit(wo.pop(0))
        if k>=1:
            ib=T[k-1][0]
            if last[ib]==k-1:
                if k==n:
                    a.nop(14); a.emit(norm_block(ib))
                else: extra+=["s_nop 1"]+norm_block(ib)
    assert not extra
    for g in wo: a.emit(g)
    a.i(f"s_or_b32 s4, s74, s75"); a.i(f"s_cmp_eq_u32 s4, 0"); a.i("s_cbranch_scc1 L_att_done")
    a.i(f"s_cmp_eq_u32 {sTRY}, 0"); a.i("s_cbranch_scc1 L_slow")
    a.label("L_att_done")
    a.stamp('att_end')

def slow_path(a):
    a.label("L_slow")
    a.i("s_waitcnt vmcnt(0) lgkmcnt(0)")
    T=tile_list(); L=vLane
    a.i(f"v_and_b32 v84, 31, {L}"); a.i(f"v_lshrrev_b32 v85, 5, {L}"); a.i("v_lshlrev_b32 v85, 2, v85"); a.i("v_sub_u32 v84, v84, v85")
    a.i("v_mov_b32 v86, 0xff800000")
    for i in range(4):
        m=f"v{P0+i}"
        a.i(f"v_mov_b32 {m}, v86")
        for n_,(ii,jb) in enumerate([t for t in T if t[0]==i]):
            lab=f"L_sk{i}_{n_}"
            if jb<0:
                a.i(f"s_cmp_lt_u32 {sC}, {2 if jb<-4 else 1}"); a.i(f"s_cbranch_scc1 {lab}")
            p_,base=kv_regs(jb); S=rng('v',S0,16)
            a.i(f"v_mfma_f32_32x32x16_bf16 {S}, {rng(p_,base,4)}, a[{8*i}:{8*i+3}], 0")
            a.i(f"v_mfma_f32_32x32x16_bf16 {S}, {rng(p_,base+4,4)}, a[{8*i+4}:{8*i+7}], {S}")
            a.nop(16)
            if jb==i or jb==i-8:
                for r in range(16):
                    k0=(r&3)+8*(r>>2)
                    a.i(f"v_cmp_{'le' if jb==i else 'gt'}_i32 vcc, {k0}, v84"); a.i("s_nop 1")
                    a.i(f"v_cndmask_b32 v{S0+r}, v86, v{S0+r}, vcc")
            for r in range(0,16,2): a.i(f"v_max3_f32 {m}, v{S0+r}, v{S0+r+1}, {m}")
            if jb<0: a.label(lab)
        a.i(f"v_mov_b32 v87, {m}"); a.nop(2)
        a.i(f"v_permlane32_swap_b32 {m}, v87"); a.nop(2)
        a.i(f"v_max_f32 {m}, {m}, v87")
        a.i(f"v_sub_f32 v87, 0, {m}")
        a.i(f"v_cvt_pk_bf16_f32 v88, v87, v87"); a.i("v_lshlrev_b32 v89, 16, v88")
        a.i("v_sub_f32 v89, v87, v89")
        a.i("v_cvt_pk_bf16_f32 v88, v87, v89")
        a.i(f"s_mov_b64 exec, {sLO}"); a.i(f"v_accvgpr_write_b32 a{8*i+5}, v88"); a.i("s_mov_b64 exec, -1")
    a.i(f"s_mov_b32 {sTRY}, 1"); a.i(f"s_mov_b64 {sBAD}, 0"); a.nop(4)
    a.i("s_branch L_att")

OF=16
DACC=88
AFV=124
vAr=[f'v{2+t}' for t in range(9)]
vOf='v11'; vOut='v12'; vOf2='v251'

def phase3(a, opts):
    a.c("---- phase 3")
    L=vLane
    a.i(f"v_mov_b32 v88, {vWOl[0]}"); a.i(f"v_mov_b32 v89, {vWOl[1]}"); a.i(f"v_mov_b32 v90, {vWOt[1]}"); a.i(f"v_mov_b32 v96, {vWOt[0]}")
    a.i(f"v_lshrrev_b32 v13, 2, {L}")
    a.i(f"v_and_b32 v14, 7, v13"); a.i(f"v_lshlrev_b32 v14, 5, v14")
    a.i(f"v_lshl_add_u32 v14, v13, 8, v14")
    a.i(f"v_and_b32 v15, 3, {L}"); a.i(f"v_lshl_add_u32 v14, v15, 3, v14")
    for t in range(8): a.i(f"v_xor_b32 {vAr[t]}, {32*t}, v14")
    a.i(f"v_lshlrev_b32 v13, 5, v13"); a.i(f"v_lshl_add_u32 v13, v15, 3, v13"); a.i(f"v_add_u32 {vAr[8]}, 8192, v13")
    a.i(f"v_and_b32 v13, 15, {L}"); a.i(f"v_lshrrev_b32 v14, 4, {L}")
    a.i(f"s_and_b32 s6, {sWV}, 1"); a.i(f"s_lshl_b32 s6, s6, 8")
    a.i(f"v_lshl_add_u32 v15, v13, 4, s6")
    a.i(f"v_and_b32 v93, 1, v14"); a.i(f"v_lshl_add_u32 {vOf}, v93, 9, v15"); a.i(f"v_lshrrev_b32 v93, 1, v14")
    a.i(f"v_mul_u32_u24 v93, {OUTROW}, v93"); a.i(f"v_add_u32 {vOf}, {vOf}, v93")
    a.i(f"v_lshrrev_b32 v93, 7, v15"); a.i(f"v_lshl_add_u32 v93, v14, 2, v93"); a.i(f"v_mul_u32_u24 v93, {OUTROW}, v93")
    a.i(f"v_and_b32 v94, 0x70, v15"); a.i(f"v_add_u32 {vOf2}, v93, v94")
    a.i(f"v_mul_u32_u24 v15, {OUTROW}, v13"); a.i(f"v_lshl_add_u32 {vOut}, v14, 3, v15")
    a.wait(vm='wo')
    a.i("s_barrier")
    a.stamp('wo_ready')
    if opts.get('dumpwo'):
        a.i("s_cmp_lg_u32 s2, 0"); a.i("s_cbranch_scc1 L_nodump")
        a.i("v_lshlrev_b32 v13, 4, v0")
        for it in range(39):
            a.i(f"ds_read_b128 v[124:127], v13 offset:0")
            a.i("s_waitcnt lgkmcnt(0)")
            a.i(f"v_add_u32 v14, {WS_DBG+0x100000}, v13")
            a.i(f"buffer_store_dwordx4 v[124:127], v14, {sWS}, 0 offen", cond=True)
            a.i("s_waitcnt vmcnt(0)")
            a.i("v_add_u32 v13, 4096, v13")
        a.label("L_nodump"); a.lg_clear()
    def frag_reads(kap, dst):
        slot=kap if kap<17 else 0
        R=[]
        for t in range(9):
            p,r=dst(kap,t)
            off=(slot%7)*9216
            hoff=4096 if t<8 else 512
            R.append([(f"ds_read_b64_tr_b16 {p}[{r+2*h}:{r+2*h+1}], {vAr[t]} offset:{off+hoff*h}", f'a{kap}_{t}') for h in range(2)])
        return R
    NA=7; RING=29
    def dst(kap,t):
        if kap<NA: return 'a', (kap*9+t)*4
        idx=((kap-NA)*9+t)%RING
        return 'v', AFV+idx*4
    bump=lambda: [f"v_add_u32 {vAr[t]}, {7*9216}, {vAr[t]}" for t in range(9)]
    def oflag():
        a.i(f"s_lshl_b32 {sT0}, {sG}, 2"); a.i(f"s_add_u32 {sT0}, {sT0}, {sWV}"); a.i(f"s_lshl_b32 {sT0}, {sT0}, 7"); a.i(f"s_add_u32 {sT0}, {sT0}, {sFO}")
        a.i(f"v_mov_b32 v14, {sNONl}"); a.i(f"v_mov_b32 v13, 0")
        if not opts.get('olocal'):
            a.i(f"v_mov_b32 v15, {sNONh}"); a.i("s_mov_b64 exec, 1")
            a.i(f"buffer_store_dwordx2 v[14:15], v13, {sWS}, {sT0} offen sc1", 'oflag'); a.i("s_mov_b64 exec, -1")
            return
        a.i(f"s_cmp_eq_u32 {sLOC}, 1"); a.i("s_cbranch_scc1 L_ofl")
        a.i(f"v_mov_b32 v15, {sNONh}")
        a.i("s_mov_b64 exec, 1")
        a.i(f"buffer_store_dwordx2 v[14:15], v13, {sWS}, {sT0} offen sc1", 'x', True)
        a.i("s_branch L_ofe")
        a.label("L_ofl")
        a.i(f"s_add_u32 {sT0}, {sT0}, {WS_FOL-WS_FO}")
        a.i(f"v_mov_b32 v15, {sLFH}")
        a.i("s_mov_b64 exec, 1")
        a.i(f"buffer_store_dwordx2 v[14:15], v13, {sWS}, {sT0} offen", tag='oflag')
        a.label("L_ofe")
        a.i("s_mov_b64 exec, -1")
    LF_AT=opts.get('lf_at',1)
    w2=list(opts.get('_wo_p3',[]))
    for kap in range(NA):
        if kap==LF_AT:
            a.wait(vm='ost'); oflag(); a.stamp('o_lflag')
        for gi,grp in enumerate(frag_reads(kap,dst)):
            a.emit(grp)
            if w2 and gi%3==0: a.emit(w2.pop(0))
        if kap%2==1: a.wait(lg=8)
    for g in w2: a.emit(g)
    if opts.get('_wo_p3'):
        a.wait(vm='wo2'); a.i("s_barrier")
    a.emit(bump())
    a.i(f"v_and_b32 v13, 31, {L}"); a.i(f"v_lshlrev_b32 v13, 7, v13")
    a.i(f"v_mov_b32 v91, {sNONh}")
    if opts.get('olocal'):
        a.i(f"v_add_u32 v14, {WS_FOL-WS_FO}, v13"); a.i(f"v_cmp_le_u32 vcc, 32, {L}")
        a.i(f"v_mov_b32 v92, {sLFH}"); a.i("s_nop 0")
        a.i(f"v_cndmask_b32 v13, v13, v14, vcc"); a.i(f"v_cndmask_b32 v91, v91, v92, vcc")
    def opoll_load(cond):
        if not opts.get('olocal'): a.i(f"s_mov_b64 exec, {sLO}")
        a.i(f"buffer_load_dwordx2 v[14:15], v13, {sWS}, {sFO} offen sc1", 'opl', cond)
        a.i("s_mov_b64 exec, -1")
    AP=opts.get('apoll',0); W0=opts.get('w0poll',1)
    if AP==1: opoll_load(False)
    for kap in range(NA,NA+3):
        for grp in frag_reads(kap,dst): a.emit(grp)
    OT=9216; OP=304
    a.i(f"v_and_b32 v252, 15, {L}"); a.i(f"v_mul_u32_u24 v252, {OP}, v252"); a.i(f"v_lshrrev_b32 v253, 4, {L}"); a.i(f"v_lshl_add_u32 v252, v253, 3, v252")
    a.i(f"s_mul_i32 {sT2}, {sWV}, {16*OP}"); a.i(f"s_add_u32 {sT2}, {sT2}, {OT}"); a.i(f"v_add_u32 v250, {sT2}, v252")
    for e in range(5):
        a.i(f"v_add_u32 v252, {64*e}, {L}"); a.i(f"v_mul_u32_u24 v253, 58255, v252"); a.i(f"v_lshrrev_b32 v253, 20, v253")
        a.i(f"v_mul_u32_u24 v254, 18, v253"); a.i(f"v_sub_u32 v254, v252, v254"); a.i(f"v_lshlrev_b32 v254, 4, v254")
        a.i(f"v_mul_u32_u24 v252, {OP}, v253"); a.i(f"v_add3_u32 v{240+e}, v252, v254, {sT2}")
        a.i(f"v_mul_u32_u24 v252, {OUTROW}, v253"); a.i(f"v_add_u32 v{245+e}, v252, v254")
    a.wait(lg=0)
    a.i("s_barrier")
    for g in wo_left_groups(1,0,('v88','v89','v90')): a.emit(g)
    a.stamp('frags_pre')
    if W0:
        a.i(f"s_cmp_lg_u32 {sWV}, 0"); a.i("s_cbranch_scc1 L_opoll_done")
    if AP==1: a.wait(vm='opl')
    else:
        opoll_load(True); a.i("s_waitcnt vmcnt(0)")
    a.i(f"s_mov_b32 {sCNT}, 200000")
    a.label("L_opoll")
    if not opts.get('olocal'): a.i(f"s_mov_b64 exec, {sLO}")
    a.i(f"v_cmp_eq_u32 vcc, {sNONl}, v14"); a.i(f"v_cmp_eq_u32 s[4:5], v91, v15")
    a.i("s_mov_b64 exec, -1")
    a.i("s_and_b64 s[4:5], s[4:5], vcc"); a.i("s_or_b32 s4, s4, s5"); a.i("s_cmp_eq_u32 s4, -1"); a.i("s_cbranch_scc1 L_opoll_done")
    if opts.get('psleep',2): a.i(f"s_sleep {opts.get('psleep',2)}")
    opoll_load(True); a.i("s_waitcnt vmcnt(0)")
    a.i(f"s_sub_u32 {sCNT}, {sCNT}, 1"); a.i(f"s_cmp_lg_u32 {sCNT}, 0"); a.i("s_cbranch_scc1 L_opoll")
    a.label("L_opoll_done")
    if W0:
        a.wait(vm='wo'); a.i("s_barrier")
    a.stamp('opoll_done')
    KORD=[7,8,9]+list(range(7))+list(range(10,18))
    def oload(kap):
        if kap<16:
            a.i(f"s_add_u32 {sT0}, {sPOM}, {2*OUTROW*kap}")
            a.i(f"buffer_load_dwordx4 v[{OF+4*kap}:{OF+4*kap+3}], {vOf}, {sOUT}, {sT0} offen sc1", tag=f'of{kap}')
        else:
            a.i(f"s_add_u32 {sT0}, {sPOL}, {16*OUTROW*(kap-16)}")
            a.i(f"buffer_load_dwordx4 v[{OF+4*kap}:{OF+4*kap+3}], {vOf2}, {sOUT}, {sT0} offen sc1", tag=f'of{kap}')
    NFIRST=opts.get('ofirst',7)
    oq=list(KORD)
    for _ in range(NFIRST): oload(oq.pop(0))
    a.stamp('p3_oissued')
    if not W0:
        a.wait(vm='wo'); a.i("s_barrier")
    rq=[]
    for kap in range(NA+3,18):
        R=frag_reads(kap,dst)
        for t in range(9): rq.append((kap,t,R[t]))
    issued=(NA+3-NA)*9
    consumed=0; mcount=0
    def war_store():
        a.wait(vm=f'of{KORD[-1]}')
        a.i(f"s_lshl_b32 {sT0}, {sG}, 2"); a.i(f"s_add_u32 {sT0}, {sT0}, {sWV}"); a.i(f"s_lshl_b32 {sT0}, {sT0}, 7"); a.i(f"s_add_u32 {sT0}, {sT0}, {sFO}")
        a.i(f"v_mov_b32 v252, {sNONl}"); a.i(f"v_mov_b32 v254, 0")
        a.i(f"s_add_u32 {sT0}, {sT0}, {WS_FW-WS_FO}")
        if opts.get('olocal'):
            a.i(f"s_cmp_eq_u32 {sLOC}, 1"); a.i("s_cbranch_scc1 L_wl")
        a.i(f"v_mov_b32 v253, {sNONh}"); a.i("s_mov_b64 exec, 1")
        a.i(f"buffer_store_dwordx2 v[252:253], v254, {sWS}, {sT0} offen sc1", 'war' if not opts.get('olocal') else 'x', bool(opts.get('olocal')))
        if opts.get('olocal'):
            a.i("s_branch L_we"); a.label("L_wl")
            a.i(f"s_add_u32 {sT0}, {sT0}, {WS_FWL-WS_FW}"); a.i(f"v_mov_b32 v253, {sLFH}"); a.i("s_mov_b64 exec, 1")
            a.i(f"buffer_store_dwordx2 v[252:253], v254, {sWS}, {sT0} offen", 'war')
            a.label("L_we")
        a.i("s_mov_b64 exec, -1")
    def war_addr():
        a.i(f"v_and_b32 v13, 15, {L}"); a.i(f"s_lshl_b32 {sT0}, {sRH}, 4"); a.i(f"v_add_u32 v13, {sT0}, v13"); a.i(f"v_lshlrev_b32 v13, 7, v13")
        a.i(f"v_add_u32 v13, {WS_FW-WS_FO}, v13"); a.i(f"v_add_u32 v14, {WS_FWL-WS_FW}, v13"); a.i(f"v_cmp_le_u32 vcc, 16, {L}")
        a.i(f"v_mov_b32 v15, {sNONh}"); a.i(f"v_mov_b32 v1, {sLFH if opts.get('olocal') else sNONh}")
        a.i(f"v_cndmask_b32 v13, v13, v14, vcc"); a.i(f"v_cndmask_b32 v15, v15, v1, vcc")
    def war_load(cond=False):
        a.i(f"s_mov_b64 exec, {sLO}"); a.i(f"buffer_load_dwordx2 v[0:1], v13, {sWS}, {sFO} offen sc1", 'warl', cond); a.i("s_mov_b64 exec, -1")
    base_slot=7
    for kap in KORD:
        a.wait(vm=f'of{kap}')
        for t in range(9):
            p,r=dst(kap,t)
            if kap>=NA:
                n_=a.lg_n(f'a{kap}_{t}')
                if n_ is not None: a.wait(lg=f'a{kap}_{t}')
            acc=rng('v',DACC+4*t,4); c='0' if kap==KORD[0] else acc
            a.i(f"v_mfma_f32_16x16x32_bf16 {acc}, {p}[{r}:{r+3}], v[{OF+4*kap}:{OF+4*kap+3}], {c}")
            if kap>=NA: consumed+=1
            mcount+=1
            if mcount in (1,27,90,126): a.stamp(f'p3_m{mcount}_')
            if oq and mcount%opts.get('oevery',4)==0: oload(oq.pop(0))
            if mcount==opts.get('war_st',100): war_store()
            if mcount==opts.get('war_ld',140): war_addr(); war_load()
            if rq and issued-consumed<RING-1:
                k2,t2,ins=rq[0]
                if k2==14 and t2==0 and base_slot==7:
                    a.emit(bump()); base_slot=14
                if k2==17 and t2==0:
                    a.emit([f"v_subrev_u32 {vAr[tt]}, {14*9216}, {vAr[tt]}" for tt in range(9)])
                rq.pop(0); a.emit(ins); issued+=1
    assert not rq
    a.stamp('p3_mfma_end')
    a.wait(vm='warl')
    a.i(f"s_mov_b32 {sCNT}, 200000")
    a.label("L_wchk")
    a.i(f"s_mov_b64 exec, {sLO}")
    a.i(f"v_cmp_eq_u32 vcc, {sNONl}, v0"); a.i(f"v_cmp_eq_u32 s[4:5], v15, v1")
    a.i("s_mov_b64 exec, -1")
    a.i("s_and_b64 s[4:5], s[4:5], vcc"); a.i("s_lshr_b32 s5, s4, 16"); a.i("s_or_b32 s4, s4, s5"); a.i("s_and_b32 s4, s4, 0xffff")
    a.i("s_cmp_eq_u32 s4, 0xffff"); a.i("s_cbranch_scc1 L_wok")
    war_load(True); a.i("s_waitcnt vmcnt(0)")
    a.i(f"s_sub_u32 {sCNT}, {sCNT}, 1"); a.i(f"s_cmp_lg_u32 {sCNT}, 0"); a.i("s_cbranch_scc1 L_wchk")
    a.label("L_wok")
    a.stamp('p3_war')
    a.nop(10)
    for t in range(9):
        d=DACC+4*t
        a.i(f"v_cvt_pk_bf16_f32 v{d}, v{d}, v{d+1}"); a.i(f"v_cvt_pk_bf16_f32 v{d+1}, v{d+2}, v{d+3}")
        a.i(f"ds_write_b64 v250, v[{d}:{d+1}] offset:{32*t}", 'ow')
    a.wait(lg=0)
    for e in range(5):
        if e==4: a.i(f"s_mov_b64 exec, {sLO}")
        a.i(f"ds_read_b128 v[{32+4*e}:{35+4*e}], v{240+e}", f'or{e}')
    a.i("s_mov_b64 exec, -1")
    for e in range(5):
        a.wait(lg=f'or{e}')
        if e==4: a.i(f"s_mov_b64 exec, {sLO}")
        a.i(f"buffer_store_dwordx4 v[{32+4*e}:{35+4*e}], v{245+e}, {sOUT}, {sOUTB} offen {opts.get('outmod','')}")
    a.i("s_mov_b64 exec, -1")
    a.stamp('p3_stissued')
    a.i("s_waitcnt vmcnt(0)")

def kd(name, vgpr, accum, sgpr=102):
    return f""".section .rodata,"a"
.p2align 6
.amdhsa_kernel {name}
  .amdhsa_next_free_vgpr {vgpr}
  .amdhsa_next_free_sgpr {sgpr}
  .amdhsa_accum_offset {accum}
  .amdhsa_group_segment_fixed_size 0
  .amdhsa_kernarg_size 72
  .amdhsa_user_sgpr_count 2
  .amdhsa_user_sgpr_kernarg_segment_ptr 1
  .amdhsa_system_sgpr_workgroup_id_x 1
.end_amdhsa_kernel
"""
HEADER = """; Kernarg layout (72 bytes, ptrs only, base s[0:1]):
"""
def build(opts):
    ORDER_MODE[0]=opts.get('order','own'); GOPT.update(opts)
    a=G()
    if opts.get('stamps'):
        a.stamps=[]
        a.sel = opts['sel'].split(',') if 'sel' in opts else ['ch0_landed','1a_end','1b_end','q_ready','poll_done','own_done','att_end','wo_ready','frags_pre','opoll_done','p3_mfma_end','drained']
    prologue(a,opts)
    g0=dma_chunk_groups(0,0)
    if opts.get('tlbw',1):
        a.i(f"buffer_load_dword v255, {vWoff[0]}, {sW}, {sWoff} offen", 'touch')
    for g in g0[:4]: a.emit(g)
    setupA(a,opts)
    setupB0(a,opts)
    for g in g0[4:]: a.emit(g)
    if opts.get('xtouch',1):
        L=vLane
        a.i(f"v_mul_u32_u24 v2, 7282, {L}"); a.i("v_lshrrev_b32 v2, 16, v2")
        a.i(f"v_mul_u32_u24 v3, 9, v2"); a.i(f"v_sub_u32 v3, {L}, v3"); a.i("v_min_u32 v2, 3, v2")
        a.i(f"s_lshl_b32 s5, {sC}, 7"); a.i(f"s_lshl_b32 s6, {sG}, 4"); a.i("s_add_u32 s5, s5, s6"); a.i(f"s_lshl_b32 s6, {sWV}, 2"); a.i("s_add_u32 s5, s5, s6")
        a.i(f"v_add_u32 v2, s5, v2"); a.i(f"v_mul_u32_u24 v2, {XROW}, v2"); a.i(f"v_lshl_add_u32 v2, v3, 7, v2")
        a.i("s_mov_b32 s6, -1"); a.i("s_mov_b32 s7, 15")
        a.emit(["s_mov_b64 exec, s[6:7]", (f"buffer_load_dword v255, v2, {sX}, 0 offen",'touch'), "s_mov_b64 exec, -1"])
    if opts.get('wotouch',2)==2: touch_wo(a)
    if opts.get('pfmode',0) in (1,2):
        a.i("v_lshlrev_b32 v2, 7, v0")
        a.raw("    v_min_u32 v2, (L_end-L_pc), v2")
        a.i("global_load_dword v255, v2, s[96:97]", tag='pf')
    if opts.get('qtouch',0): touch_q(a)
    if opts.get('pgw',0):
        L=vLane
        a.i(f"s_lshl_b32 s4, {sB}, 3"); a.i(f"s_add_u32 s4, s4, {sG}"); a.i("s_lshl_b32 s4, s4, 4"); a.i(f"s_add_u32 s4, s4, {sC}")
        a.i(f"s_mul_i32 s4, s4, {SLOT}")
        a.i(f"v_mov_b32 v2, s4"); a.i(f"v_mov_b32 v3, {WS_FKV}"); a.i(f"v_cmp_eq_u32 vcc, 1, {L}"); a.i("s_nop 1"); a.i("v_cndmask_b32 v2, v2, v3, vcc")
        a.i(f"s_sub_u32 s5, s4, {2*SLOT}"); a.i(f"s_max_i32 s5, s5, 0"); a.i("v_mov_b32 v3, s5"); a.i(f"v_cmp_eq_u32 vcc, 2, {L}"); a.i("s_nop 1"); a.i("v_cndmask_b32 v2, v2, v3, vcc")
        a.i("s_mov_b64 exec, 7"); a.i(f"buffer_load_dword v255, v2, {sWS}, 0 offen", 'touch')
        a.i(f"s_lshl_b32 s4, {sC}, 7"); a.i(f"s_mul_i32 s4, s4, {OUTROW}"); a.i("v_mov_b32 v2, 0")
        a.i("s_mov_b64 exec, 1"); a.i(f"buffer_load_dword v255, v2, {sOUT}, s4 offen", 'touch'); a.i("s_mov_b64 exec, -1")
    a.stamp('p_ch0')
    for g in dma_chunk_groups(1,1): a.emit(g)
    a.stamp('p_ch1')
    rec=Rec(); setupB(rec,opts)
    rec2=Rec(); wo_addr(rec2)
    ren=dict(zip(vWOm+vWOl+vWOt,vWOtmp))
    def rn(x):
        for k_,v_ in ren.items(): x=x.replace(f" {k_},",f" {v_},")
        return x
    opts['_side']=rec.l+[rn(x) for x in rec2.l]
    pend=dma_chunk_groups(2,2)
    pend=phase1a(a,opts,pend)
    phase1b(a,pend,opts)
    attention(a,opts)
    phase3(a,opts)
    a.stamp('drained'); a.stamp('rt_exit',real=True)
    if opts.get('dbgtime'):
        a.i("s_waitcnt lgkmcnt(0)")
        n=len(a.stamps)
        r0=a.stamps[0][1]; r1=a.stamps[-1][1]
        a.i(f"s_not_b32 s3, s{r0}")
        a.i("v_mov_b32 v2, s3"); a.i("v_mov_b32 v3, 8"); a.i(f"v_mov_b32 v4, s{r1}"); a.i("v_mov_b32 v5, 12")
        a.i("s_mov_b64 exec, 1")
        a.i(f"buffer_atomic_umax v2, v3, {sDBG}, 0 offen sc1"); a.i(f"buffer_atomic_umax v4, v5, {sDBG}, 0 offen sc1")
        a.i(f"s_cmp_lg_u32 s2, 77"); a.i("s_cbranch_scc1 L_nodbg"); a.i(f"s_cmp_lg_u32 {sWV}, 0"); a.i("s_cbranch_scc1 L_nodbg")
        e=a.stamps[1][1]
        for k,(nm,r) in enumerate(a.stamps[2:-1][:12]):
            a.i(f"s_sub_u32 s3, s{r}, s{e}"); a.i("v_mov_b32 v2, s3"); a.i(f"v_mov_b32 v3, {16+4*k}")
            a.i(f"buffer_store_dword v2, v3, {sDBG}, 0 offen")
        a.label("L_nodbg")
        a.i("s_mov_b64 exec, -1"); a.i("s_waitcnt vmcnt(0)")
    else: a.dump_stamps(0)
    a.label("L_end"); a.i("s_endpgm")
    slow_path(a)
    errs=a.check()
    if opts.get('stamps'): print("stamps:",len(a.stamps),[x[0] for x in a.stamps])
    k1=f"{NAME}_kernel"
    txt=HEADER+f"; @launch grid=(256,1,1) block=(256,1,1) lds={LDS_BYTES}\n"
    txt+='.amdgcn_target "amdgcn-amd-amdhsa--gfx950"\n.text\n'
    txt+=f".globl {k1}\n.p2align 8\n.type {k1},@function\n{k1}:\n"+a.text()+kd(k1,512,256)
    return txt
if __name__=="__main__":
    out=sys.argv[1]
    opts={}
    for x in sys.argv[2:]:
        k,_,v=x.partition('='); opts[k]=int(v) if v.lstrip('-').isdigit() else (v or True)
    open(out,'w').write(build(opts)); print("written",out)
```

```python
import sys, os, struct
sys.path.insert(0, os.path.dirname(os.path.abspath(__file__)))
from asm import *
NAME = "concat_heads__sliding_block__sliding_block__prompt"
XROW=1152; WROW=3456; OUTROW=2304
X_BYTES=2048*1152; W_BYTES=576*3456; WO_BYTES=576*1152; OUT_BYTES=2048*2304
SLOT=36864; WPITCH=320; XOFF=20480; QPITCH=192; QCH=12288
VBASE=0; VR=1184; VJ=2368; VB=4736; KB3=18944; KB0=147456; KP=148; KBLK=32*148; QBASE=0
LDS_BYTES=163840
WS_KV=0; WS_OM=0x1000000; WS_OL=0x1400000; WS_FKV=0x1800000; WS_FO=0x1840000; WS_FOL=0x1880000; WS_FW=0x1900000; WS_FWL=0x1940000
WS_XT=0x18C0000
WS_DBG=0x2000000; WS_BYTES=0x4000000
CSCALE = 1.4426950408889634/(18**0.5)
def f2u(x): return struct.unpack('<I',struct.pack('<f',x))[0]
def rng(p,a,n): return f'{p}[{a}:{a+n-1}]'

sX='s[8:11]'; sW='s[12:15]'; sWO='s[16:19]'; sOUT='s[20:23]'; sWS='s[24:27]'; sDBG='s[28:31]'
sB='s32'; sC='s33'; sG='s34'; sWV='s35'
sVM='s[54:55]'; sLO='s[56:57]'
sCI='s58'; sWoff='s59'; sXoff='s60'; sM0='s61'; sKVme='s62'
sT0='s63'; sT1='s64'; sT2='s65'; sFKV='s66'; sT3='s67'
sNONl='s68'; sNONh='s69'; sROT='s70'; sKV1='s71'; sKV2='s72'; sXCC='s73'
sBAD='s[74:75]'; sNVM='s[52:53]'; sCNT='s76'; sOM='s77'; sOL='s78'; sFO='s79'; sSC='s80'; sATT='s81'
sLFH='s70'; sLOC='s81'
sTRY='s52'
sRH='s82'; sNQ='s83'; sPOM='s84'; sPOL='s85'; sOUTB='s86'; sWOs='s87'
sIDX='s76'; sOFF='s81'

vLane='v1'
vWoff=[f'v{10+j}' for j in range(5)]
vXoff=[f'v{15+j}' for j in range(4)]
vQoff=['v19','v20','v21']
vWr=['v22','v23']; vMx=['v24','v25']
vXr=[[f'v{26+t}' for t in range(4)],[f'v{30+t}' for t in range(4)]]
vQr='v34'
vKw='v35'; vQw='v36'; vVw='v37'; vVt='v38'
vKr='v39'; vKl='v40'; vVr='v41'; vCw='v42'; vQl='v43'
vPk='v44'; vPl='v45'; vPv='v46'; vOl='v47'
vNON='v[48:49]'; vVC='v50'; vT='v51'
def WF(b,f): r=52+(b*5+f)*4; return f'v[{r}:{r+3}]'
def WFh(b,f,h): r=52+(b*5+f)*4+2*h; return f'v[{r}:{r+1}]'
def QF(b,f): r=52+(b*3+f)*4; return f'v[{r}:{r+3}]'
def QFh(b,f,h): r=52+(b*3+f)*4+2*h; return f'v[{r}:{r+1}]'
ACC={'K0':92,'K1':108,'V0':124,'V1':140,'MX':156,'Q0':172,'Q1':188,'Q2':204}
def XF(t): return rng('a',4*t,4)
OWN=92; HALO=144
S0=52; S1=68; P0=150; P1=158; OACC=172; MASKD=236; MASKF=244
vWOm=['v10','v11']; vWOl=['v12','v13']; vWOt=['v14','v15']
vWOtmp=['v220','v221','v222','v223','v224','v225']

class G(Asm):
    stamps=None; sel=None; nowait=True
    def stamp(self, name, real=False):
        if self.stamps is None: return
        if self.sel is not None and not (name.startswith('rt_') or name=='entry' or any(name.startswith(x) for x in self.sel)): return
        k=len(self.stamps)
        regs=[88,90,92,94,96,98,100,36,38,40,42,44,46,48,50][k]
        self.stamps.append((name,regs))
        if GOPT.get('allreal'): real_=True
        else: real_=real
        self.i(f"{'s_memrealtime' if real_ else 's_memtime'} s[{regs}:{regs+1}]")
        if self.nowait and not real and name!='entry':
            self.lg.pop()
        else:
            self.i("s_waitcnt lgkmcnt(0)")
            self.lg_clear()
    def dump_stamps(self, base):
        if self.stamps is None: return
        self.i("s_waitcnt lgkmcnt(0)")
        self.i(f"s_lshl_b32 s3, s2, 2"); self.i(f"s_add_u32 s3, s3, {sWV}")
        self.i(f"s_lshl_b32 s3, s3, 6"); self.i(f"s_add_u32 s3, s3, {WS_DBG+base}")
        self.i("s_mov_b64 exec, 1")
        for k,(nm,r) in enumerate(self.stamps):
            self.i(f"v_mov_b32 v2, s{r}"); self.i(f"v_mov_b32 v3, {4*k}")
            self.i(f"buffer_store_dword v2, v3, {sWS}, s3 offen")
        self.i("s_mov_b64 exec, -1"); self.i("s_waitcnt vmcnt(0)")
    def emit(self, lst):
        for x in lst:
            if isinstance(x,tuple) and x[0]=='OSTORE': emit_ostore(self,x[1])
            elif isinstance(x,tuple): self.i(*x)
            else: self.i(x)
    def drain(self, q, budget):
        k=0; inexec=False
        while q and (k<budget or inexec):
            x=q.pop(0)
            txt=x[0] if isinstance(x,tuple) else x
            if txt.startswith('s_mov_b64 exec'): inexec = not txt.endswith('-1')
            if txt=='OSTORE': emit_ostore(self,x[1])
            elif isinstance(x,tuple): self.i(*x)
            else: self.i(x)
            k+=1

def prologue(a, opts):
    L=vLane
    a.c("---- prologue")
    a.stamp('rt_entry',real=True); a.stamp('entry')
    a.i("s_load_dwordx8 s[36:43], s[0:1], 0")
    a.i("s_load_dwordx8 s[44:51], s[0:1], 32")
    a.i("s_load_dwordx2 s[52:53], s[0:1], 64")
    a.i("s_cmp_ge_u32 s2, 256")
    a.i("s_cbranch_scc1 L_end")
    a.i("s_getpc_b64 s[90:91]") if False else None
    a.i("s_getpc_b64 s[4:5]")
    a.label("L_pc")
    PFM=opts.get('pfmode',0)
    if PFM in (1,2):
        a.i("s_mov_b32 s96, s4"); a.i("s_mov_b32 s97, s5")
    a.i("v_lshlrev_b32 v2, 7, v0")
    a.raw("    v_min_u32 v2, (L_end-L_pc), v2")
    if PFM==1:
        a.i("v_cmp_gt_u32 vcc, 64, v0"); a.i("s_and_saveexec_b64 s[6:7], vcc"); a.i("s_cbranch_execz L_pf1")
        a.i("global_load_dword v255, v2, s[4:5]", tag='pf', cond=True)
        a.label("L_pf1"); a.i("s_mov_b64 exec, -1")
    elif PFM==0 and not opts.get('nopf'): a.i("global_load_dword v255, v2, s[4:5]", tag='pf')
    if opts.get('pf2'):
        a.i("v_lshlrev_b32 v2, 7, v0"); a.i("v_add_u32 v2, 32768, v2")
        a.raw("    v_min_u32 v2, (L_end-L_pc), v2")
        a.i("global_load_dword v255, v2, s[4:5]", tag='pf')
    a.i(f"v_and_b32 {L}, 63, v0")
    a.i("v_lshrrev_b32 v2, 6, v0")
    a.i("s_and_b32 s3, s2, 7")
    a.i(f"v_readfirstlane_b32 {sWV}, v2")
    a.i(f"s_lshr_b32 {sB}, s3, 2")
    a.i("s_lshr_b32 s4, s2, 3")
    a.i("s_and_b32 s5, s3, 3")
    a.i(f"s_lshl_b32 {sC}, s5, 2")
    a.i("s_lshr_b32 s5, s4, 3")
    a.i(f"s_add_u32 {sC}, {sC}, s5")
    a.i(f"s_and_b32 {sG}, s4, 7")
    a.i("s_lshl_b32 s5, s5, 1")
    a.i(f"s_add_u32 s6, s5, {sG}")
    a.i("s_sub_u32 s7, s6, 9")
    a.i("s_cmp_ge_u32 s6, 9")
    a.i(f"s_cselect_b32 {sROT}, s7, s6")
    if opts.get('order','own')=='own':
        a.i(f"s_add_u32 {sOFF}, s5, {sG}"); a.i(f"s_and_b32 {sOFF}, {sOFF}, 7")
        a.i("s_and_b32 s6, s3, 3"); a.i("s_lshl_b32 s6, s6, 1"); a.i(f"s_and_b32 s7, {sC}, 1"); a.i(f"s_add_u32 {sROT}, s6, s7")
        a.i(f"s_mov_b32 {sIDX}, {sOFF}")
    elif opts.get('order')=='norot': a.i(f"s_mov_b32 {sROT}, 0")
    a.i(f"s_lshl_b32 s6, {sC}, 7"); a.i(f"s_lshl_b32 s7, {sWV}, 5"); a.i("s_add_u32 s6, s6, s7")
    a.i(f"s_mul_i32 s6, s6, {XROW}")
    a.i(f"v_lshrrev_b32 v4, 3, {L}"); a.i(f"v_lshrrev_b32 v5, 4, {L}"); a.i(f"v_and_b32 v6, 7, {L}")
    a.i(f"v_mul_u32_u24 v4, {XROW}, v4")
    a.i(f"v_add_u32 v4, s6, v4")
    for i in range(4):
        a.i(f"v_add_u32 v7, {4*i}, v5"); a.i(f"v_and_b32 v7, 7, v7"); a.i(f"v_xor_b32 v7, v6, v7")
        a.i(f"v_lshl_add_u32 v7, v7, 4, v4")
        a.i(f"v_add_u32 {vXoff[i]}, {8*i*XROW-1024*i}, v7")
    a.i(f"s_mul_i32 s6, {sWV}, {16*WROW}"); a.i(f"s_mul_i32 s7, {sG}, 144"); a.i("s_add_u32 s6, s6, s7")
    a.i(f"s_add_u32 s6, s6, 1152")
    a.i(f"s_movk_i32 s7, {WROW}")
    a.i("v_mov_b32 v9, 0x40000000"); a.i("v_mov_b32 v8, 1008")
    for j in range(5):
        a.i(f"v_add_u32 v4, {64*j}, {L}")
        a.i(f"v_mul_u32_u24 v5, 52429, v4"); a.i(f"v_lshrrev_b32 v5, 20, v5")
        a.i(f"v_mul_u32_u24 v6, 20, v5"); a.i(f"v_sub_u32 v6, v4, v6")
        a.i(f"v_cmp_lt_u32 vcc, 8, v6")
        a.i(f"v_mul_lo_u32 v5, v5, s7")
        a.i(f"v_lshl_add_u32 v5, v6, 4, v5")
        a.i(f"v_cndmask_b32 v7, 0, v8, vcc")
        a.i(f"v_cmp_lt_u32 vcc, 17, v6")
        a.i(f"v_add3_u32 v5, v5, v7, s6")
        comp=1024*j if j<4 else 0
        if comp: a.i(f"v_subrev_u32 v5, {comp}, v5")
        else: a.i("s_nop 0")
        a.i(f"v_cndmask_b32 {vWoff[j]}, v5, v9, vcc")
    a.stamp('p_pre')
    a.wait(lg=0)
    a.stamp('p_karg')
    a.i(f"s_cmp_eq_u32 {sB}, 0")
    a.i("s_cselect_b32 s8, s36, s42");  a.i("s_cselect_b32 s9, s37, s43")
    a.i("s_cselect_b32 s12, s38, s44"); a.i("s_cselect_b32 s13, s39, s45")
    a.i(f"s_mov_b32 s10, {X_BYTES}"); a.i("s_mov_b32 s11, 0x00020000")
    a.i(f"s_mov_b32 s14, {W_BYTES}"); a.i("s_mov_b32 s15, 0x00020000")
    a.i("s_cselect_b32 s16, s40, s46"); a.i("s_cselect_b32 s17, s41, s47")
    a.i(f"s_mov_b32 {sCI}, {sROT}")
    a.i(f"s_mul_i32 {sWoff}, {sCI}, {64*WROW}")
    a.i(f"s_lshl_b32 {sXoff}, {sCI}, 7")

vTA='v[240:241]'
def touch_setup(a, opts):
    L=vLane
    a.i("s_lshr_b32 s4, s2, 3")
    a.i(f"v_cmp_le_u32 vcc, 18, {L}")
    a.i(f"v_mov_b32 v2, {XROW+18*128}")
    a.i(f"v_lshlrev_b32 v3, 7, {L}")
    a.i(f"v_mov_b32 v2, {WROW-18*128}")
    a.i(f"v_cndmask_b32 v2, 0, v2, vcc")
    a.i(f"v_add_u32 v3, v3, v2")
    a.i(f"s_mul_i32 s5, s4, {2*WROW}"); a.i(f"s_add_u32 s5, s5, {9*128}")
    a.i(f"v_add_u32 v3, s5, v3")
    a.i("s_and_b32 s5, s2, 3"); a.i("s_lshl_b32 s5, s5, 9"); a.i("s_lshl_b32 s6, s4, 4"); a.i("s_add_u32 s5, s5, s6")
    a.i(f"v_subrev_u32 v4, 36, {L}"); a.i(f"v_and_b32 v4, 15, v4"); a.i(f"v_add_u32 v4, s5, v4"); a.i(f"v_mul_u32_u24 v4, {XROW}, v4")
    a.i(f"v_cmp_le_u32 vcc, 36, {L}")
    a.i(f"v_mov_b32 v5, s12"); a.i("v_mov_b32 v6, s8"); a.i("v_mov_b32 v7, s13"); a.i("v_mov_b32 v8, s9")
    a.i(f"v_cndmask_b32 v3, v3, v4, vcc")
    a.i(f"v_cndmask_b32 v5, v5, v6, vcc")
    a.i(f"v_cndmask_b32 v7, v7, v8, vcc")
    a.i(f"v_mov_b32 v9, {64*WROW}"); a.i("v_mov_b32 v6, 128")
    a.i(f"v_cndmask_b32 v242, v9, v6, vcc")
    a.i(f"s_add_u32 s5, {sWV}, 1")
    a.i(f"v_mul_lo_u32 v9, v242, s5")
    a.i(f"v_add_u32 v3, v3, v9")
    a.i(f"v_add_co_u32 v240, vcc, v5, v3"); a.i("s_nop 1"); a.i(f"v_addc_co_u32 v241, vcc, 0, v7, vcc")
    a.i(f"v_lshlrev_b32 v242, 2, v242")
def touch_ins(second):
    L=[]
    if second:
        L+= ["v_add_co_u32 v240, vcc, v240, v242", "s_nop 1", "v_addc_co_u32 v241, vcc, 0, v241, vcc"]
    L+= ["s_mov_b64 exec, 0x000fffffffffffff" if False else "s_mov_b64 exec, s[6:7]", (f"global_load_dword v255, {vTA}, off",'touch'), "s_mov_b64 exec, -1"]
    return L
def touch_q(a):
    L=vLane
    a.i("s_lshr_b32 s4, s2, 3")
    a.i(f"v_mul_u32_u24 v2, 7282, {L}"); a.i("v_lshrrev_b32 v2, 16, v2")
    a.i(f"v_mul_u32_u24 v3, 9, v2"); a.i(f"v_sub_u32 v3, {L}, v3")
    a.i(f"v_min_u32 v2, 5, v2")
    a.i(f"s_min_u32 s5, {sWV}, 2"); a.i("s_mul_i32 s5, s5, 6"); a.i("s_mul_i32 s6, s4, 18"); a.i("s_add_u32 s5, s5, s6")
    a.i(f"v_add_u32 v2, s5, v2"); a.i(f"v_mul_u32_u24 v2, {WROW}, v2"); a.i(f"v_lshl_add_u32 v2, v3, 7, v2")
    a.i(f"buffer_load_dword v255, v2, {sW}, 0 offen", 'touch')
def touch_wo(a):
    L=vLane
    a.i(f"s_lshr_b32 {sT0}, s2, 3")
    a.i(f"s_min_u32 {sT1}, {sWV}, 2"); a.i(f"s_mul_i32 {sT1}, {sT1}, 54"); a.i(f"s_mul_i32 {sT0}, {sT0}, 162"); a.i(f"s_add_u32 {sT1}, {sT1}, {sT0}")
    a.i(f"v_min_u32 {vT}, 53, {L}"); a.i(f"v_add_u32 {vT}, {sT1}, {vT}"); a.i(f"v_lshlrev_b32 {vT}, 7, {vT}")
    a.i(f"buffer_load_dword v255, {vT}, {sWO}, 0 offen", 'touch')

ORDER_MODE=['own']
GOPT={}
def next_chunk_ins():
    if ORDER_MODE[0]=='own':
        return [f"s_add_u32 {sCI}, {sROT}, {sIDX}", f"s_add_u32 {sCI}, {sCI}, 1", f"s_sub_u32 {sT3}, {sCI}, 9", f"s_cmp_ge_u32 {sCI}, 9",
                f"s_cselect_b32 {sCI}, {sT3}, {sCI}", f"s_add_u32 {sIDX}, {sIDX}, 1", f"s_and_b32 {sIDX}, {sIDX}, 7",
                f"s_mul_i32 {sWoff}, {sCI}, {64*WROW}", f"s_lshl_b32 {sXoff}, {sCI}, 7"]
    return [f"s_add_u32 {sCI}, {sCI}, 1", f"s_cmp_eq_u32 {sCI}, 9", f"s_cselect_b32 {sCI}, 0, {sCI}",
            f"s_mul_i32 {sWoff}, {sCI}, {64*WROW}", f"s_lshl_b32 {sXoff}, {sCI}, 7"]

def dma_chunk_groups(slot, n):
    base=slot*SLOT; tag=f'ch{n}'; Gs=[]
    for i in range(4):
        pre=[f"s_lshl_b32 {sM0}, {sWV}, 12", f"s_add_u32 m0, {sM0}, {base+XOFF}", "s_nop 0"] if i==0 else []
        Gs.append(pre+[(f"buffer_load_dwordx4 {vXoff[i]}, {sX}, {sXoff} offen offset:{1024*i} lds", tag)])
    for j in range(4):
        pre=[f"s_mul_i32 {sM0}, {sWV}, 5120", f"s_add_u32 m0, {sM0}, {base}", "s_nop 0"] if j==0 else []
        Gs.append(pre+[(f"buffer_load_dwordx4 {vWoff[j]}, {sW}, {sWoff} offen offset:{1024*j} lds", tag)])
    Gs.append([f"s_add_u32 m0, {sM0}, {base+4096}", "s_nop 0", (f"buffer_load_dwordx4 {vWoff[4]}, {sW}, {sWoff} offen lds", tag)]+next_chunk_ins())
    return Gs

def dma_wq_groups(n):
    reg = SLOT*(1+n//3) + (n%3)*QCH
    Gs=[]
    for e in range(3):
        pre=[f"s_mul_i32 {sM0}, {sWV}, 3072", f"s_add_u32 m0, {sM0}, {reg}", "s_nop 0"] if e==0 else []
        post=next_chunk_ins() if e==2 else []
        Gs.append(pre+[(f"buffer_load_dwordx4 {vQoff[e]}, {sW}, {sWoff} offen offset:{1024*e} lds", f'wq{n}')]+post)
    return Gs

def setupA(a, opts):
    L=vLane
    a.c("---- setup A")
    a.i(f"v_bfe_u32 v4, {L}, 2, 2"); a.i(f"v_lshrrev_b32 v5, 5, {L}")
    a.i(f"v_lshl_add_u32 v4, v5, 3, v4")
    a.i(f"v_bfe_u32 v6, {L}, 4, 1"); a.i(f"v_and_b32 v7, 3, {L}")
    a.i(f"v_mul_u32_u24 v8, {WPITCH}, v4")
    a.i(f"v_lshlrev_b32 v9, 5, v6"); a.i(f"v_lshl_add_u32 v9, v7, 3, v9")
    a.i(f"v_add_u32 {vWr[0]}, v8, v9"); a.i(f"v_add_u32 {vWr[1]}, {2*SLOT}, {vWr[0]}")
    a.i(f"v_mul_u32_u24 v2, {QPITCH}, v4")
    a.i(f"v_add3_u32 {vQr}, v2, v9, 0"); a.i(f"v_add_u32 {vQr}, {SLOT}, {vQr}")
    a.i(f"v_lshl_add_u32 v9, v6, 2, v7")
    a.i(f"v_lshlrev_b32 v2, 3, v9"); a.i(f"v_add_u32 v2, 128, v2"); a.i(f"v_add_u32 v3, 128, v2")
    a.i(f"v_cmp_lt_u32 vcc, 1, v9"); a.i("s_nop 1")
    a.i(f"v_cndmask_b32 v2, v2, v3, vcc")
    a.i(f"v_add_u32 {vMx[0]}, v8, v2"); a.i(f"v_add_u32 {vMx[1]}, {2*SLOT}, {vMx[0]}")
    a.i(f"v_and_b32 v2, 31, {L}"); a.i(f"v_bfe_u32 v3, {L}, 1, 3"); a.i(f"v_xor_b32 v3, v3, v5")
    a.i(f"v_lshlrev_b32 v3, 4, v3"); a.i(f"v_lshl_add_u32 v3, v2, 7, v3")
    a.i(f"s_lshl_b32 s6, {sWV}, 12"); a.i(f"s_add_u32 s6, s6, {XOFF}")
    a.i(f"v_add_u32 v3, s6, v3")
    for t in range(4):
        a.i(f"v_xor_b32 {vXr[0][t]}, {32*t}, v3"); a.i(f"v_add_u32 {vXr[1][t]}, {2*SLOT}, {vXr[0][t]}")

PADN=[0]
def pagepad(a, opts, where):
    if where in str(opts.get('pads','')).split('+'):
        PADN[0]+=1
        a.i(f"s_branch L_pad{PADN[0]}")
        a.raw(".fill 1024, 4, 0xbf800000")
        a.label(f"L_pad{PADN[0]}")

class Rec:
    def __init__(self): self.l=[]
    def i(self, t, tag=None, cond=False): self.l.append((t,tag,cond) if tag or cond else t)
    def c(self, s): pass

def setupB0(a, opts):
    a.i("s_mov_b32 s20, s48"); a.i("s_mov_b32 s21, s49"); a.i(f"s_mov_b32 s22, {OUT_BYTES}"); a.i("s_mov_b32 s23, 0x00020000")
    a.i("s_mov_b32 s24, s52"); a.i("s_mov_b32 s25, s53"); a.i(f"s_mov_b32 s26, {WS_BYTES}"); a.i("s_mov_b32 s27, 0x00020000")
    a.i("s_mov_b32 s28, s50"); a.i("s_mov_b32 s29, s51"); a.i("s_mov_b32 s30, 256"); a.i("s_mov_b32 s31, 0x00020000")
    a.i(f"s_mov_b32 s18, {WO_BYTES}"); a.i("s_mov_b32 s19, 0x00020000")
    a.i(f"s_or_b32 s3, s2, {sWV}"); a.i("s_cmp_lg_u32 s3, 0"); a.i("s_cbranch_scc1 L_nononce")
    a.i("s_memrealtime s[4:5]"); a.i("s_waitcnt lgkmcnt(0)"); a.i("s_or_b32 s4, s4, 1")
    a.i("v_mov_b32 v2, s4"); a.i("v_mov_b32 v3, s5"); a.i("v_mov_b32 v4, 0")
    a.i("s_mov_b64 exec, 1")
    a.i(f"buffer_store_dwordx2 v[2:3], v4, {sDBG}, 0 offen sc1", cond=True)
    a.i("s_mov_b64 exec, -1")
    a.label("L_nononce"); a.lg_clear()

def setupB(a, opts):
    L=vLane
    a.c("---- setup B")
    a.i("s_mov_b32 s54, 0x3ffff"); a.i("s_mov_b32 s55, 0x3ffff"); a.i("s_not_b64 s[52:53], s[54:55]"); a.i("s_mov_b32 s56, -1"); a.i("s_mov_b32 s57, 0")
    a.i(f"s_mov_b32 {sSC}, {f2u(CSCALE):#x}")
    a.i(f"s_getreg_b32 {sXCC}, hwreg(HW_REG_XCC_ID, 0, 4)")
    a.i(f"s_mul_i32 s6, {sWV}, {16*WROW}"); a.i(f"s_mul_i32 s7, {sG}, 144"); a.i("s_add_u32 s6, s6, s7")
    a.i(f"s_movk_i32 s7, {WROW}"); a.i("v_mov_b32 v9, 0x40000000")
    for e in range(3):
        a.i(f"v_add_u32 v4, {64*e}, {L}")
        a.i(f"v_mul_u32_u24 v5, 21846, v4"); a.i(f"v_lshrrev_b32 v5, 18, v5")
        a.i(f"v_mul_u32_u24 v6, 12, v5"); a.i(f"v_sub_u32 v6, v4, v6")
        a.i(f"v_cmp_lt_u32 vcc, 8, v6")
        a.i(f"v_mul_lo_u32 v5, v5, s7"); a.i(f"v_lshl_add_u32 v5, v6, 4, v5")
        a.i(f"v_add_u32 v5, s6, v5"); a.i(f"v_subrev_u32 v5, {1024*e}, v5")
        a.i(f"v_cndmask_b32 {vQoff[e]}, v5, v9, vcc")
    a.i(f"v_and_b32 v2, 31, {L}"); a.i(f"v_lshrrev_b32 v5, 5, {L}")
    a.i(f"s_mul_i32 s6, {sWV}, {KBLK}"); a.i(f"s_add_u32 s7, s6, {KB0}"); a.i(f"s_cmp_eq_u32 {sWV}, 3"); a.i(f"s_cselect_b32 s7, {KB3}, s7")
    a.i(f"v_mul_u32_u24 v3, {KP}, v2"); a.i(f"v_lshl_add_u32 v3, v5, 3, v3")
    a.i(f"v_add_u32 {vKw}, s7, v3"); a.i(f"s_add_u32 s6, s6, {QBASE}"); a.i(f"v_add_u32 {vQw}, s6, v3")
    a.i(f"s_mul_i32 s6, {sWV}, {VB}"); a.i(f"s_add_u32 s6, s6, {VBASE}")
    a.i(f"v_mul_u32_u24 v3, {VR}, v5"); a.i(f"v_lshl_add_u32 v3, v2, 4, v3"); a.i(f"v_add_u32 {vVw}, s6, v3")
    a.i(f"v_bfe_u32 v3, {L}, 2, 1"); a.i(f"v_mul_u32_u24 v3, {VJ}, v3"); a.i(f"v_bfe_u32 v4, {L}, 1, 1"); a.i(f"v_mul_u32_u24 v4, {VR}, v4")
    a.i(f"v_add_u32 v3, v3, v4"); a.i(f"v_and_b32 v4, 1, {L}"); a.i(f"v_lshl_add_u32 v3, v4, 4, v3"); a.i(f"v_add_u32 v3, {72*16}, v3")
    a.i(f"v_add_u32 {vCw}, s6, v3")
    a.i(f"v_lshrrev_b32 v3, 4, v2"); a.i(f"v_mul_u32_u24 v3, {VJ}, v3"); a.i(f"v_bfe_u32 v4, v2, 2, 1")
    a.i(f"v_mul_u32_u24 v4, {VR}, v4"); a.i(f"v_add_u32 v3, v3, v4"); a.i(f"v_and_b32 v4, 3, v2")
    a.i(f"v_bfe_u32 v6, v2, 3, 1"); a.i(f"v_lshl_add_u32 v4, v6, 2, v4"); a.i(f"v_lshl_add_u32 v3, v4, 1, v3")
    a.i(f"v_lshl_add_u32 v3, v5, 6, v3"); a.i(f"v_add_u32 v3, {64*16}, v3"); a.i(f"v_add_u32 {vVt}, s6, v3")
    a.i(f"s_mul_i32 s6, {sWV}, 36"); a.i(f"v_mul_u32_u24 v3, {KP}, v2"); a.i(f"v_add_u32 v3, s6, v3")
    a.i(f"v_lshl_add_u32 {vKr}, v5, 4, v3")
    a.i(f"v_add_u32 {vKl}, 32, v3")
    a.i(f"s_mul_i32 s6, {sWV}, 18"); a.i(f"v_add_u32 v3, s6, v2"); a.i(f"v_and_b32 v4, 27, v2")
    a.i(f"v_cmp_eq_u32 vcc, 18, v4"); a.i(f"v_mov_b32 v4, 73"); a.i(f"v_mov_b32 v6, 72"); a.i(f"v_cndmask_b32 v4, v4, v6, vcc")
    a.i(f"v_cmp_gt_u32 vcc, 18, v2"); a.i("s_nop 1"); a.i(f"v_cndmask_b32 v3, v4, v3, vcc")
    a.i(f"v_lshlrev_b32 v3, 4, v3"); a.i(f"v_mul_u32_u24 v4, {VR}, v5"); a.i(f"v_add_u32 {vVr}, v3, v4")
    a.i(f"v_lshlrev_b32 {vPk}, 4, {L}"); a.i(f"v_lshlrev_b32 {vPl}, 2, v2"); a.i(f"v_add_u32 {vPl}, 1024, {vPl}")
    a.i(f"v_mul_u32_u24 v3, 288, v5"); a.i(f"v_lshl_add_u32 v3, v2, 4, v3"); a.i(f"v_add_u32 {vPv}, 1152, v3")
    a.i(f"s_lshl_b32 s6, {sWV}, 2"); a.i(f"v_lshrrev_b32 v3, 3, v2"); a.i(f"v_mul_u32_u24 v3, {OUTROW}, v3")
    a.i(f"v_and_b32 v4, 7, v2"); a.i(f"v_lshl_add_u32 v3, v4, 4, v3"); a.i(f"v_add_u32 {vOl}, s6, v3")
    a.i(f"v_and_b32 v3, 27, v2"); a.i(f"v_cmp_eq_u32 vcc, 18, v3"); a.i(f"v_mov_b32 v4, 0x3f803f80"); a.i("s_nop 0")
    a.i(f"v_cndmask_b32 {vVC}, 0, v4, vcc")
    a.i(f"s_lshl_b32 s6, {sB}, 3"); a.i(f"s_add_u32 s6, s6, {sG}"); a.i(f"s_lshl_b32 s6, s6, 4"); a.i(f"s_add_u32 s6, s6, {sC}")
    a.i(f"s_mul_i32 {sKVme}, s6, {SLOT}"); a.i(f"s_mul_i32 s7, {sWV}, 2304"); a.i(f"s_add_u32 {sKVme}, {sKVme}, s7")
    a.i(f"s_sub_u32 {sKV1}, {sKVme}, {SLOT}"); a.i(f"s_sub_u32 {sKV2}, {sKVme}, {2*SLOT}")
    a.i(f"s_cmp_ge_u32 {sC}, 1"); a.i(f"s_cselect_b32 {sKV1}, {sKV1}, 0x70000000")
    a.i(f"s_cmp_ge_u32 {sC}, 2"); a.i(f"s_cselect_b32 {sKV2}, {sKV2}, 0x70000000")
    a.i(f"s_lshl_b32 s6, s6, 2"); a.i(f"s_add_u32 s6, s6, {sWV}"); a.i(f"s_lshl_b32 s6, s6, 7")
    a.i(f"s_add_u32 {sFKV}, s6, {WS_FKV}")
    a.i(f"s_cmp_ge_u32 {sC}, 1"); a.i(f"s_cselect_b32 s6, -1, 0"); a.i(f"s_cmp_ge_u32 {sC}, 2"); a.i(f"s_cselect_b32 s7, -1, 0")
    a.i(f"v_and_b32 v2, s6, {vVC}"); a.i(f"v_and_b32 v3, s7, {vVC}"); a.i(f"v_mov_b32 v4, 0x3f803f80")
    a.i(f"v_and_b32 v6, s7, v4"); a.i(f"v_and_b32 v4, s6, v4")
    for hb in range(8):
        base=HALO+14*hb
        a.i(f"v_accvgpr_write_b32 a{base+5}, {'v6' if hb<4 else 'v4'}")
        for r in range(8): a.i(f"v_accvgpr_write_b32 a{base+6+r}, {'v3' if hb<4 else 'v2'}")
    a.i(f"v_and_b32 v2, 31, {L}"); a.i(f"v_lshlrev_b32 v3, 2, v5"); a.i(f"v_sub_u32 v2, v2, v3")
    a.i(f"v_mov_b32 v6, 0xffff"); a.i(f"v_mov_b32 v7, 0xffff0000")
    for u in range(8):
        r0=2*u; k0=(r0&3)+8*(r0>>2)
        a.i(f"v_cmp_le_i32 vcc, {k0}, v2"); a.i(f"v_cmp_le_i32 s[4:5], {k0+1}, v2"); a.i("s_nop 0")
        a.i(f"v_cndmask_b32 v3, 0, v6, vcc"); a.i(f"v_cndmask_b32 v4, 0, v7, s[4:5]")
        a.i(f"v_or_b32 v{MASKD+u}, v3, v4"); a.i(f"v_not_b32 v{MASKF+u}, v{MASKD+u}")
    a.i(f"s_lshl_b32 s6, {sC}, 7"); a.i(f"s_lshl_b32 s7, {sG}, 2"); a.i("s_add_u32 s6, s6, s7")
    a.i(f"s_mul_i32 s6, s6, {OUTROW}"); a.i(f"s_mul_i32 s7, {sB}, 1152"); a.i("s_add_u32 s6, s6, s7")
    a.i(f"s_add_u32 {sOL}, s6, 1024"); a.i(f"s_mul_i32 s7, {sWV}, {OUTROW}"); a.i(f"s_add_u32 {sOM}, s6, s7")
    a.i(f"s_lshr_b32 {sRH}, {sG}, 2"); a.i(f"s_and_b32 {sNQ}, {sG}, 3")
    a.i(f"s_lshl_b32 s7, {sRH}, 1"); a.i(f"s_lshr_b32 s3, {sWV}, 1"); a.i("s_add_u32 s3, s3, s7"); a.i("s_lshl_b32 s3, s3, 5")
    a.i(f"s_lshl_b32 s7, {sC}, 7"); a.i("s_add_u32 s3, s3, s7"); a.i(f"s_mul_i32 {sPOM}, s3, {OUTROW}")
    a.i(f"s_mul_i32 s7, {sB}, 1152"); a.i(f"s_add_u32 {sPOM}, {sPOM}, s7"); a.i(f"s_add_u32 {sPOL}, {sPOM}, 1024")
    a.i(f"s_lshl_b32 s6, {sC}, 7"); a.i(f"s_lshl_b32 s7, {sRH}, 6"); a.i("s_add_u32 s6, s6, s7")
    a.i(f"s_lshl_b32 s7, {sWV}, 4"); a.i("s_add_u32 s6, s6, s7"); a.i(f"s_mul_i32 {sOUTB}, s6, {OUTROW}")
    a.i(f"s_mul_i32 s7, {sB}, 1152"); a.i(f"s_add_u32 {sOUTB}, {sOUTB}, s7")
    a.i(f"s_mul_i32 s7, {sNQ}, 288"); a.i(f"s_add_u32 {sOUTB}, {sOUTB}, s7")
    a.i(f"s_lshl_b32 s6, {sB}, 4"); a.i(f"s_add_u32 s6, s6, {sC}"); a.i(f"s_lshl_b32 {sFO}, s6, 12")
    a.i(f"s_add_u32 {sFO}, {sFO}, {WS_FO}")
    a.i(f"v_mov_b32 v252, {f2u(2.0**-40):#x}"); a.i(f"v_mov_b32 v253, {f2u(2.0**40):#x}")
    a.i(f"s_mov_b64 {sBAD}, 0")

def wq_reads(tau):
    n,t=divmod(tau,4); b=tau%2
    off=(n%3)*QCH+16*QPITCH*t
    return [[(f"ds_read_b64_tr_b16 {QFh(b,f,h)}, {vQr} offset:{off+4*QPITCH*h+64*f}", f'q{tau}_{f}') for h in range(2)] for f in range(3)]

def drain_side(a, side, n):
    k=0; last=''
    while side and (k<n or last.startswith('s_cmp') or (side[0] if isinstance(side[0],str) else side[0][0]).startswith('s_cselect')):
        x=side.pop(0)
        if isinstance(x,tuple): a.i(*x); last=x[0]
        else: a.i(x); last=x
        k+=1

def phase1a(a, opts, pend):
    a.c("---- phase 1a")
    def reads(tau):
        n,t=divmod(tau,4); slot=n%4; hi=slot>=2; base=(slot%2)*SLOT; b=tau%2
        R=[[(f"ds_read_b128 {XF(tau)}, {vXr[hi][t]} offset:{base}", f'x{tau}')] +
           [(f"ds_read_b64_tr_b16 {WFh(b,0,h)}, {vWr[hi]} offset:{base+5120*t+1280*h}", f'w{tau}_0') for h in range(2)]]
        for f,co in ((1,64),(2,144),(3,208)):
            R.append([(f"ds_read_b64_tr_b16 {WFh(b,f,h)}, {vWr[hi]} offset:{base+5120*t+1280*h+co}", f'w{tau}_{f}') for h in range(2)])
        R.append([(f"ds_read_b64_tr_b16 {WFh(b,4,h)}, {vMx[hi]} offset:{base+5120*t+1280*h}", f'w{tau}_4') for h in range(2)])
        return R
    a.stamp('setup_done')
    a.wait(vm='ch0'); a.i("s_barrier")
    a.stamp('ch0_landed')
    if opts.get('idle_1a'): a.i(f"s_sleep {opts['idle_1a']}")
    for grp in reads(0): a.emit(grp)
    names=['K0','K1','V0','V1','MX']
    side=opts.get('_side',[])
    every=opts.get('dma_every',2)
    slotcnt=0
    for tau in range(36):
        n,t=divmod(tau,4); b=tau%2
        if t==0: a.stamp(f'c{n}')
        if t==0: pagepad(a,opts,f'c{n}')
        if t==3:
            a.wait(vm=f'ch{n+1}' if n<8 else 'wq0')
            a.i("s_barrier")
            if n<=5:
                pend += dma_chunk_groups((n+3)%4, n+3)
                if (n==5 and opts.get('wotouch',2)==1) or (n==0 and opts.get('wotouch',2)==3) or (n==2 and opts.get('wotouch',2)==4):
                    rec=Rec(); touch_wo(rec); pend.append(rec.l)
            elif n==6:
                pend.append([f"s_mov_b32 {sCI}, {sROT}", f"s_mul_i32 {sWoff}, {sCI}, {64*WROW}", f"s_mov_b32 {sIDX}, {sOFF}"])
                for q in range(3): pend += dma_wq_groups(q)
            elif n==7:
                for q in range(3,6): pend += dma_wq_groups(q)
            elif n==8:
                for q in range(6,9): pend += dma_wq_groups(q)
        R = reads(tau+1) if tau<35 else wq_reads(0)
        for m,nm in enumerate(names):
            a.wait(lg=[f'w{tau}_{m}']+([f'x{tau}'] if m==0 else []))
            acc=rng('v',ACC[nm],16); c='0' if tau==0 else acc
            if nm in ('V0','V1'): a.i(f"v_mfma_f32_32x32x16_bf16 {acc}, {XF(tau)}, {WF(b,m)}, {c}")
            else: a.i(f"v_mfma_f32_32x32x16_bf16 {acc}, {WF(b,m)}, {XF(tau)}, {c}")
            if m<len(R): a.emit(R[m])
            slotcnt+=1
            if pend and (slotcnt%every==0 or len(pend)>9): a.emit(pend.pop(0))
            elif side: drain_side(a, side, opts.get('side_n',4))
        if tau==30:
            a.i(f"v_mov_b32 {vT}, 0")
            a.i(f"buffer_load_dwordx2 {vNON}, {vT}, {sDBG}, 0 offen sc1", tag='nonce')
    assert not side, len(side)
    return pend

def epi1a_list():
    A=[]; T=76
    for ti,nm in enumerate(('K0','K1')):
        base=ACC[nm]
        for i in range(4):
            t0=T+2*(i%2)
            A+= [f"v_cvt_pk_bf16_f32 v{t0}, v{base+4*i}, v{base+4*i+1}", f"v_cvt_pk_bf16_f32 v{t0+1}, v{base+4*i+2}, v{base+4*i+3}",
                 (f"ds_write2_b32 {vKw}, v{t0}, v{t0+1} offset0:{16*ti+4*i} offset1:{16*ti+4*i+1}",'e1w')]
    for ti,nm in enumerate(('V0','V1')):
        base=ACC[nm]
        for j in range(2):
            t0=T+4+4*j
            for u in range(4): A.append(f"v_cvt_pk_bf16_f32 v{t0+u}, v{base+8*j+2*u}, v{base+8*j+2*u+1}")
            A.append((f"ds_write_b128 {vVw}, v[{t0}:{t0+3}] offset:{VJ*j+512*ti}",'e1w'))
    base=ACC['MX']; t0=T+12
    A+= [f"v_cvt_pk_bf16_f32 v{t0}, v{base}, v{base+1}", f"v_cvt_pk_bf16_f32 v{t0+1}, v{base+2}, v{base+3}",
         (f"ds_write2_b32 {vKw}, v{t0}, v{t0+1} offset0:32 offset1:33",'e1w'),
         f"v_cvt_pk_bf16_f32 v{t0+2}, v{base+4}, v{base+5}", f"v_cvt_pk_bf16_f32 v{t0+3}, v{base+6}, v{base+7}",
         (f"ds_write_b16 {vVt}, v{t0+2}",'e1w'), (f"ds_write_b16_d16_hi {vVt}, v{t0+2} offset:16",'e1w'),
         (f"ds_write_b16 {vVt}, v{t0+3} offset:32",'e1w'), (f"ds_write_b16_d16_hi {vVt}, v{t0+3} offset:48",'e1w')]
    A+= [f"v_and_b32 v{t0}, 1, {vLane}", f"v_cmp_eq_u32 vcc, 0, v{t0}", f"v_mov_b32 v{t0+1}, 0x3f803f80", "s_nop 0",
         f"v_cndmask_b32 v{t0}, 0, v{t0+1}, vcc", f"v_mov_b32 v{t0+1}, v{t0}", f"v_mov_b32 v{t0+2}, v{t0}", f"v_mov_b32 v{t0+3}, v{t0}",
         "s_mov_b64 exec, 0xff", (f"ds_write_b128 {vCw}, v[{t0}:{t0+3}]",'e1w'), "s_mov_b64 exec, -1"]
    return A

def own_presets():
    L=[f"v_mov_b32 v91, 0x3f803f80"]
    for bt in range(4): L.append(f"v_mov_b32 v{OWN+14*bt+5}, v91")
    return L
def own_reads():
    L=[]
    for bt in range(4):
        base=OWN+14*bt
        kb = KB0+KBLK*bt if bt<3 else KB3
        L.append(f"v_add_u32 v88, {kb}, {vKr}"); L.append(f"v_add_u32 v89, {kb}, {vKl}")
        L.append((f"ds_read2_b32 v[{base}:{base+1}], v88 offset0:0 offset1:1",'own'))
        L.append((f"ds_read2_b32 v[{base+2}:{base+3}], v88 offset0:2 offset1:3",'own'))
        L.append((f"ds_read_b32 v{base+4}, v89",'own'))
    for bt in range(4):
        base=OWN+14*bt
        for j in range(2): L.append((f"ds_read_b128 v[{base+6+4*j}:{base+9+4*j}], {vVr} offset:{VB*bt+VJ*j}",'own'))
    return L
def own_store_groups(mod='sc1'):
    Gs=[]
    for bt in range(4):
        base=OWN+14*bt; tag='pubA' if bt<2 else 'pubB'
        Gs.append([f"s_add_u32 {sT0}, {sKVme}, {9216*bt}", (f"buffer_store_dwordx4 v[{base}:{base+3}], {vPk}, {sWS}, {sT0} offen {mod}",tag)])
        Gs.append([f"s_add_u32 {sT0}, {sKVme}, {9216*bt}", f"s_mov_b64 exec, {sLO}", (f"buffer_store_dword v{base+4}, {vPl}, {sWS}, {sT0} offen {mod}",tag), "s_mov_b64 exec, -1"])
        for j in range(2):
            Gs.append([f"s_add_u32 {sT0}, {sKVme}, {9216*bt}", f"s_mov_b64 exec, {sVM}", (f"buffer_store_dwordx4 v[{base+6+4*j}:{base+9+4*j}], {vPv}, {sWS}, {sT0} offen offset:{576*j} {mod}",tag), "s_mov_b64 exec, -1"])
    return Gs

def flag_store_ins(cnt):
    return [f"s_add_u32 {sT1}, {sNONh}, {cnt}", f"v_mov_b32 v2, {sNONl}", f"v_mov_b32 v3, {sT1}", f"v_mov_b32 v4, 0",
            "s_mov_b64 exec, 1", (f"buffer_store_dwordx2 v[2:3], v4, {sWS}, {sFKV} offen sc1", f'kvflag{cnt}'), "s_mov_b64 exec, -1"]

def xt_base():
    return [f"s_lshl_b32 {sT0}, {sB}, 4", f"s_add_u32 {sT0}, {sT0}, {sC}", f"s_lshl_b32 {sT0}, {sT0}, 10", f"s_add_u32 {sT0}, {sT0}, {WS_XT}"]
def xt_store():
    return xt_base()+[f"s_add_u32 {sLFH}, {sXCC}, 1", f"s_lshl_b32 {sLFH}, {sLFH}, 8", f"s_add_u32 {sLFH}, {sLFH}, {sNONh}",
            f"s_lshl_b32 {sT1}, {sG}, 7", f"s_add_u32 {sT0}, {sT0}, {sT1}",
            f"v_mov_b32 v2, {sNONl}", f"v_mov_b32 v3, {sLFH}", f"v_mov_b32 v4, 0",
            "s_mov_b64 exec, 1", (f"buffer_store_dwordx2 v[2:3], v4, {sWS}, {sT0} offen sc1",'xt'), "s_mov_b64 exec, -1"]
def xt_load():
    return xt_base()+[f"v_lshlrev_b32 v2, 7, {vLane}", "s_mov_b64 exec, 0xff",
            (f"buffer_load_dwordx2 v[8:9], v2, {sWS}, {sT0} offen sc1",'xtl'), "s_mov_b64 exec, -1"]
def xt_check(a):
    a.wait(vm='xtl')
    a.i("s_mov_b64 exec, 0xff")
    a.i(f"v_cmp_eq_u32 vcc, {sNONl}, v8"); a.i(f"v_cmp_eq_u32 s[4:5], {sLFH}, v9")
    a.i("s_mov_b64 exec, -1")
    a.i("s_and_b64 s[4:5], s[4:5], vcc"); a.i("s_and_b32 s4, s4, 0xff"); a.i("s_cmp_eq_u32 s4, 0xff")
    a.i(f"s_cselect_b32 {sLOC}, 1, 0")
    if GOPT.get('force_remote'): a.i(f"s_mov_b32 {sLOC}, 0")

def wo_group_for(kbase):
    setup=[f"s_add_u32 {sT1}, {sWV}, {kbase}", f"s_mul_i32 {sT2}, {sT1}, 41472", f"s_mul_i32 {sT3}, {sT1}, 9216"]
    return wo8_groups(setup)

def phase1b(a, pend, opts):
    a.c("---- phase 1b")
    if opts.get('idle_1b'): a.i(f"s_sleep {opts['idle_1b']}")
    a.stamp('1a_end')
    q=[]; stores=[]; wo=[]
    E2=opts.get('e2',4)
    FAST=opts.get('fastA',1)
    sched={}
    tt=E2+1
    for g in range(16):
        sched.setdefault(tt,[]).append(g)
        tt += 1 if ((g<7 and FAST) or opts.get('fastB',0)) else 2
    FLAGA=opts.get('flagA',24)
    woaddr=[f"v_mov_b32 {d_}, {s_}" for d_,s_ in zip(vWOm+vWOl+vWOt,vWOtmp)]+wo8_setup()
    for tau in range(36):
        n,t=divmod(tau,4); b=tau%2
        a.stamp(f'b{tau}_')
        if tau==1:
            a.i("s_barrier"); q+=epi1a_list()
        if tau==E2:
            a.drain(q,1000); a.wait(lg=0); a.i("s_barrier")
            a.emit(own_reads())
        if tau==E2+1:
            a.wait(lg='own')
            a.stamp('pub_start')
            stores=own_store_groups()
            q+=woaddr
        if tau==E2+3:
            a.i("s_barrier")
        if tau==E2+6: wo+=wo_group_for(0); q+=own_presets()
        if tau==15: wo+=wo_group_for(4)
        if tau==27: wo+=wo_group_for(8)
        if tau==FLAGA:
            a.wait(vm='pubA'); get_nonce(a); a.emit(flag_store_ins(2)); a.stamp('flagA')
            if opts.get('olocal'): a.emit(xt_store())
        if t==3 and tau<35:
            a.wait(vm=f'wq{n+1}')
            a.i("s_barrier")
            if (n+1)%3==0: a.i(f"v_add_u32 {vQr}, {SLOT}, {vQr}")
        R = wq_reads(tau+1) if tau<35 else []
        for m,nm in enumerate(('Q0','Q1','Q2')):
            a.wait(lg=[f'q{tau}_{m}'])
            acc=rng('v',ACC[nm],16); c='0' if tau==0 else acc
            a.i(f"v_mfma_f32_32x32x16_bf16 {acc}, {QF(b,m)}, {XF(tau)}, {c}")
            if m<len(R): a.emit(R[m])
            if m==0 and tau in sched:
                for g in sched[tau]:
                    if opts.get('nopub'):
                        for x in stores[g]:
                            if isinstance(x,tuple): a.vm.append(x[1])
                    else: a.emit(stores[g])
            elif q and tau<E2: a.drain(q,opts.get('epi_rate',7))
            elif pend: a.emit(pend.pop(0))
            elif q: drain_side2(a,q,4)
            elif opts.get('nowo1b',1): pass
            elif wo and m==2: a.emit(wo.pop(0))
            elif wo and m==1 and opts.get('wo2',1): a.emit(wo.pop(0))
    assert not pend and not q, (len(pend),len(q))
    for tt_ in sorted(sched):
        if tt_>35:
            for g in sched[tt_]: a.emit(stores[g])
    opts['_wo_left']=wo
    a.stamp('1b_end')
    a.emit(kv_flag_load(0))
    a.nop(14)
    T=76
    a.i(f"v_mov_b32 v90, {sSC}"); a.i(f"v_mov_b32 v91, {sSC}")
    for ti,nm in enumerate(('Q0','Q1','Q2')):
        base=ACC[nm]; ni=4 if ti<2 else 1
        for r in range(0,4*ni,2): a.i(f"v_pk_mul_f32 v[{base+r}:{base+r+1}], v[90:91], v[{base+r}:{base+r+1}]")
    for ti,nm in enumerate(('Q0','Q1','Q2')):
        base=ACC[nm]; ni=4 if ti<2 else 1
        for i in range(ni):
            t0=T+2*((ti*4+i)%8)
            a.i(f"v_cvt_pk_bf16_f32 v{t0}, v{base+4*i}, v{base+4*i+1}"); a.i(f"v_cvt_pk_bf16_f32 v{t0+1}, v{base+4*i+2}, v{base+4*i+3}")
            a.i(f"ds_write2_b32 {vQw}, v{t0}, v{t0+1} offset0:{16*ti+4*i} offset1:{16*ti+4*i+1}",'e2w')
    a.i(f"v_mov_b32 {vT}, 0")
    for i in range(4):
        for r in range(4,8): a.i(f"v_accvgpr_write_b32 a{8*i+r}, {vT}")
    a.wait(lg=0); a.i("s_barrier")
    for i in range(4):
        a.i(f"v_add_u32 v88, {QBASE+KBLK*i}, {vKr}")
        a.i(f"ds_read2_b32 a[{8*i}:{8*i+1}], v88 offset0:0 offset1:1",'qf')
        a.i(f"ds_read2_b32 a[{8*i+2}:{8*i+3}], v88 offset0:2 offset1:3",'qf')
    a.i(f"s_mov_b64 exec, {sLO}")
    for i in range(4):
        a.i(f"v_add_u32 v89, {QBASE+KBLK*i}, {vKl}")
        a.i(f"ds_read_b32 a{8*i+4}, v89",'qf')
    a.i("s_mov_b64 exec, -1")
    a.wait(lg='qf')
    a.i("s_barrier")
    a.stamp('q_ready')

def drain_side2(a, q, n):
    k=0; inexec=False; last=''
    while q and (k<n or inexec or last.startswith('s_cmp') or (q[0] if isinstance(q[0],str) else q[0][0]).startswith('s_cselect')):
        x=q.pop(0)
        txt=x[0] if isinstance(x,tuple) else x
        if txt.startswith('s_mov_b64 exec'): inexec = not txt.endswith('-1')
        if isinstance(x,tuple): a.i(*x)
        else: a.i(x)
        last=txt; k+=1

vFL='v[6:7]'; vFA='v5'
def kv_flag_load(rnd):
    L=[]
    if rnd==0:
        L+= [f"s_cmp_ge_u32 {sC}, 2", f"s_cselect_b32 {sT1}, 2, 1", f"s_lshl_b32 {sT1}, {sT1}, 9",
             f"s_sub_u32 {sT0}, {sFKV}, 512", f"s_sub_u32 {sT1}, {sFKV}, {sT1}",
             f"s_cmp_eq_u32 {sC}, 0", f"s_cselect_b32 {sT0}, {sFKV}, {sT0}", f"s_cselect_b32 {sT1}, {sFKV}, {sT1}",
             f"v_mov_b32 v8, {sT0}", f"v_mov_b32 v9, {sT1}", f"v_cmp_eq_u32 vcc, 0, {vLane}", "s_nop 1",
             f"v_cndmask_b32 {vFA}, v9, v8, vcc"]
    L+= ["s_mov_b64 exec, 3", (f"buffer_load_dwordx2 {vFL}, {vFA}, {sWS}, 0 offen sc1", f'fl{rnd}'), "s_mov_b64 exec, -1"]
    return L

def kv_flag_check(a, rnd, need):
    a.wait(vm=f'fl{rnd}')
    a.i(f"s_mov_b32 {sCNT}, 200000")
    a.label(f"L_chk{rnd}")
    a.i(f"s_cmp_eq_u32 {sC}, 0"); a.i(f"s_cbranch_scc1 L_ok{rnd}")
    a.i("s_mov_b64 exec, 3")
    a.i(f"v_subrev_u32 v8, {sNONh}, v7")
    a.i(f"v_cmp_eq_u32 vcc, {sNONl}, v6")
    a.i(f"v_cmp_le_u32 s[4:5], {need}, v8")
    a.i(f"v_cmp_ge_u32 s[6:7], 4, v8")
    a.i("s_mov_b64 exec, -1")
    a.i("s_and_b64 s[4:5], s[4:5], vcc"); a.i("s_and_b64 s[4:5], s[4:5], s[6:7]"); a.i("s_and_b32 s4, s4, 3")
    a.i("s_cmp_eq_u32 s4, 3"); a.i(f"s_cbranch_scc1 L_ok{rnd}")
    a.i("s_mov_b64 exec, 3")
    a.i(f"buffer_load_dwordx2 {vFL}, {vFA}, {sWS}, 0 offen sc1", cond=True)
    a.i("s_mov_b64 exec, -1")
    a.i("s_waitcnt vmcnt(0)")
    a.i(f"s_sub_u32 {sCNT}, {sCNT}, 1"); a.i(f"s_cmp_lg_u32 {sCNT}, 0"); a.i(f"s_cbranch_scc1 L_chk{rnd}")
    a.label(f"L_ok{rnd}")
    a.stamp(f'chk{rnd}')

def wo_addr(a):
    L=vLane
    a.i(f"s_mul_i32 s6, {sNQ}, 288")
    a.i(f"v_lshrrev_b32 v4, 4, {L}")
    a.i(f"v_and_b32 v5, 15, {L}")
    for par in range(2):
        a.i(f"v_add_u32 v6, {4*par}, v4"); a.i(f"v_lshlrev_b32 v6, 1, v6"); a.i(f"v_xor_b32 v6, v5, v6")
        a.i(f"v_lshlrev_b32 v6, 4, v6"); a.i(f"v_add_u32 v6, s6, v6")
        a.i(f"v_mul_u32_u24 v7, {XROW}, v4"); a.i(f"v_add_u32 {vWOm[par]}, v6, v7")
        a.i(f"v_lshrrev_b32 v7, 1, v4"); a.i(f"v_mul_u32_u24 v7, 18, v7"); a.i(f"v_and_b32 v8, 1, v4"); a.i(f"v_add_u32 v7, v7, v8")
        a.i(f"v_mul_u32_u24 v7, {XROW}, v7"); a.i(f"v_add_u32 {vWOl[par]}, v6, v7")
    a.i(f"v_lshrrev_b32 v4, 1, {L}")
    a.i(f"v_and_b32 v5, 1, {L}"); a.i(f"v_lshlrev_b32 v5, 4, v5"); a.i(f"v_add_u32 v5, 256, v5"); a.i(f"v_add_u32 v5, s6, v5")
    a.i(f"v_bfe_u32 v6, v4, 2, 2")
    a.i(f"v_and_b32 v7, 3, v4"); a.i(f"v_lshrrev_b32 v8, 4, v4")
    a.i(f"v_lshrrev_b32 v2, 1, v6"); a.i(f"v_mul_u32_u24 v2, 18, v2"); a.i(f"v_add_u32 v2, v2, v7"); a.i(f"v_lshl_add_u32 v2, v8, 3, v2")
    a.i(f"v_and_b32 v3, 1, v6"); a.i(f"v_lshl_add_u32 v2, v3, 2, v2"); a.i(f"v_mul_u32_u24 v2, {XROW}, v2"); a.i(f"v_add_u32 {vWOt[0]}, v2, v5")
    a.i(f"v_lshl_add_u32 v7, v8, 2, v7")
    a.i(f"v_lshrrev_b32 v2, 1, v7"); a.i(f"v_lshl_add_u32 v2, v6, 2, v2"); a.i(f"v_mul_u32_u24 v2, 18, v2")
    a.i(f"v_and_b32 v3, 1, v7"); a.i(f"v_add3_u32 v2, v2, v3, 16"); a.i(f"v_mul_u32_u24 v2, {XROW}, v2"); a.i(f"v_add_u32 {vWOt[1]}, v2, v5")

vWO8=[f'v{22+e}' for e in range(8)]
def wo8_setup():
    L=[]
    for e in range(8):
        const=(((e&3)>>1)*18+8*(e>>2)+4*(e&1))*XROW-1024*(e%4)
        if const>=0: L.append(f"v_add_u32 {vWO8[e]}, {const}, {vWOm[e&1]}")
        else: L.append(f"v_subrev_u32 {vWO8[e]}, {-const}, {vWOm[e&1]}")
    return L
def wo8_groups(uniform_setup):
    Gs=[]
    for e in range(8):
        pre = list(uniform_setup) if e==0 else []
        if e%4==0: pre += [f"s_add_u32 m0, {sT3}, {4096*(e//4)}", "s_nop 0"]
        Gs.append(pre+[(f"buffer_load_dwordx4 {vWO8[e]}, {sWO}, {sT2} offen offset:{1024*(e%4)} lds",'wo')])
    Gs.append([f"s_add_u32 m0, {sT3}, 8192", "s_nop 0", (f"buffer_load_dwordx4 {vWOt[0]}, {sWO}, {sT2} offen lds",'wo')])
    return Gs

def wo_dma_groups(kap, slot, uniform_setup):
    Gs=[]
    left = kap>=16
    for e in range(8):
        if left: const=((4*(e&3)+2*(e>>2))*18+16)*XROW
        else: const=(((e&3)>>1)*18+8*(e>>2)+4*(e&1))*XROW
        pre = list(uniform_setup) if e==0 else []
        if e%4==0: pre += [f"s_add_u32 m0, {sT3}, {4096*(e//4)}"]
        voff=(vWOl if left else vWOm)[e&1]
        Gs.append(pre+[f"s_add_u32 {sWOs}, {sT2}, {const-1024*(e%4)}" if const-1024*(e%4)>=0 else f"s_sub_u32 {sWOs}, {sT2}, {1024*(e%4)-const}",
                       (f"buffer_load_dwordx4 {voff}, {sWO}, {sWOs} offen offset:{1024*(e%4)} lds",'wo')])
    Gs.append([f"s_add_u32 m0, {sT3}, 8192", "s_nop 0", (f"buffer_load_dwordx4 {vWOt[1 if left else 0]}, {sWO}, {sT2} offen lds",'wo')])
    return Gs

def wo_prefetch_groups():
    Gs=[]
    for it in range(4):
        setup=[f"s_add_u32 {sT1}, {sWV}, {4*it}", f"s_mul_i32 {sT2}, {sT1}, 41472", f"s_mul_i32 {sT3}, {sT1}, 9216"]
        Gs+=wo_dma_groups(0,None,setup)
    return Gs

def wo_left_groups(L_, ldsbase, regs=None):
    vl0,vl1,vt = regs or (vWOl[0],vWOl[1],vWOt[1])
    g0=L_*16*18*XROW
    setup=[f"s_lshl_b32 {sT1}, {sWV}, 1", f"s_and_b32 {sT1}, {sT1}, 3", f"s_lshl_b32 {sT1}, {sT1}, 2",
           f"s_lshr_b32 {sT2}, {sWV}, 1", f"s_lshl_b32 {sT2}, {sT2}, 1", f"s_add_u32 {sT1}, {sT1}, {sT2}",
           f"s_mul_i32 {sT1}, {sT1}, {18*XROW}", f"s_add_u32 {sT2}, {sT1}, {g0+16*XROW}",
           f"s_lshl_b32 {sT1}, {sWV}, 11", f"s_add_u32 m0, {sT1}, {ldsbase}", "s_nop 0"]
    G0=setup+[(f"buffer_load_dwordx4 {vl0}, {sWO}, {sT2} offen lds",'wo')]
    G1=[f"s_add_u32 {sT2}, {sT2}, {4*18*XROW-1024}", (f"buffer_load_dwordx4 {vl1}, {sWO}, {sT2} offen offset:1024 lds",'wo')]
    G2=[f"s_mov_b32 {sT2}, {g0}", f"s_mov_b32 m0, {ldsbase+8192}", "s_nop 0", (f"buffer_load_dwordx4 {vt}, {sWO}, {sT2} offen lds",'wo')]
    return [G0,G1,G2]

def halo_load_groups(hb):
    base=HALO+14*hb; src=sKV2 if hb<4 else sKV1; bt=hb%4; tg=f'h{hb}'
    return [[f"s_add_u32 {sT0}, {src}, {9216*bt}",
             (f"buffer_load_dwordx4 a[{base}:{base+3}], {vPk}, {sWS}, {sT0} offen sc1", tg),
             (f"buffer_load_dword a{base+4}, {vPl}, {sWS}, {sT0} offen sc1", tg),
             f"s_mov_b64 exec, {sVM}",
             (f"buffer_load_dwordx4 a[{base+6}:{base+9}], {vPv}, {sWS}, {sT0} offen sc1", tg),
             (f"buffer_load_dwordx4 a[{base+10}:{base+13}], {vPv}, {sWS}, {sT0} offen offset:576 sc1", tg),
             "s_mov_b64 exec, -1"]]

def get_nonce(a):
    a.i(f"v_readfirstlane_b32 {sNONl}, v48"); a.i(f"v_readfirstlane_b32 {sNONh}, v49"); a.i("s_nop 1")
    a.i(f"s_or_b32 {sT0}, {sNONl}, {sNONh}"); a.i(f"s_cmp_lg_u32 {sT0}, 0"); a.i("s_cbranch_scc1 L_have_nonce")
    a.i(f"s_mov_b32 {sCNT}, 100000")
    a.label("L_nonce_poll")
    a.i(f"v_mov_b32 {vT}, 0")
    a.i(f"buffer_load_dwordx2 {vNON}, {vT}, {sDBG}, 0 offen sc1", cond=True)
    a.i("s_waitcnt vmcnt(0)")
    a.i(f"v_readfirstlane_b32 {sNONl}, v48"); a.i(f"v_readfirstlane_b32 {sNONh}, v49"); a.i("s_nop 1")
    a.i(f"s_or_b32 {sT0}, {sNONl}, {sNONh}"); a.i(f"s_cmp_lg_u32 {sT0}, 0"); a.i("s_cbranch_scc1 L_have_nonce")
    a.i("s_sleep 2"); a.i(f"s_sub_u32 {sCNT}, {sCNT}, 1"); a.i(f"s_cmp_lg_u32 {sCNT}, 0"); a.i("s_cbranch_scc1 L_nonce_poll")
    a.label("L_have_nonce")

def kv_regs(jb): return ('v', OWN+14*jb) if jb>=0 else ('a', HALO+14*(jb+8))
HORDER=[-4,-3,-8,-7,-2,-1,-6,-5]
def tile_list():
    T=[(i,bt) for i in range(4) for bt in range(i+1)]
    for jb in HORDER[:4]:
        for i in range(4):
            if i-jb<=8: T.append((i,jb))
    if GOPT.get('r2_by_q',0):
        for i in (3,2,1,0):
            for jb in HORDER[4:]:
                if i-jb<=8: T.append((i,jb))
    else:
        for jb in HORDER[4:]:
            for i in range(4):
                if i-jb<=8: T.append((i,jb))
    return T

def norm_block(i):
    O=OACC+16*i; t=84; L=[]
    L.append(f"v_rcp_f32 v{t}, v{O+10}")
    L.append(f"v_pk_add_f32 v[{t+2}:{t+3}], v[{O}:{O+1}], v[{O+2}:{O+3}]")
    L.append(f"v_pk_add_f32 v[{t+4}:{t+5}], v[{O+4}:{O+5}], v[{O+6}:{O+7}]")
    L.append(f"v_mov_b32 v{t+1}, v{t}")
    L.append(f"v_pk_add_f32 v[{t+2}:{t+3}], v[{t+2}:{t+3}], v[{O+8}:{O+9}]")
    L.append(f"v_pk_add_f32 v[{t+2}:{t+3}], v[{t+2}:{t+3}], v[{t+4}:{t+5}]")
    for r in range(0,10,2): L.append(f"v_pk_mul_f32 v[{O+r}:{O+r+1}], v[{t}:{t+1}], v[{O+r}:{O+r+1}]")
    L.append(f"v_add_f32 v{t+2}, v{t+2}, v{t+3}")
    L.append(f"v_fma_f32 v{t+2}, v{t+2}, 0, v{O+10}")
    for u in range(5): L.append(f"v_cvt_pk_bf16_f32 v{O+u}, v{O+2*u}, v{O+2*u+1}")
    L.append(f"v_cmp_nle_f32 vcc, v252, v{t+2}")
    L.append(f"v_cmp_nge_f32 s[4:5], v253, v{t+2}")
    L.append(f"s_add_u32 {sT0}, {sOM}, {i*32*OUTROW}"); L.append(f"s_add_u32 {sT1}, {sOL}, {i*32*OUTROW}")
    L.append(f"s_or_b64 {sBAD}, {sBAD}, vcc"); L.append(f"s_or_b64 {sBAD}, {sBAD}, s[4:5]")
    L.append(('OSTORE',i))
    return L

def emit_ostore(a, i):
    O=OACC+16*i
    if not GOPT.get('olocal'):
        a.i(f"buffer_store_dwordx4 v[{O}:{O+3}], {vPk}, {sOUT}, {sT0} offen sc1", 'ost')
        a.i(f"s_mov_b64 exec, {sLO}")
        a.i(f"buffer_store_dword v{O+4}, {vOl}, {sOUT}, {sT1} offen sc1", 'ost')
        a.i(f"s_mov_b64 exec, -1")
        return
    a.i(f"s_cmp_eq_u32 {sLOC}, 1"); a.i(f"s_cbranch_scc1 L_osl{i}")
    a.i(f"buffer_store_dwordx4 v[{O}:{O+3}], {vPk}, {sOUT}, {sT0} offen sc1", 'x', True)
    a.i(f"s_mov_b64 exec, {sLO}")
    a.i(f"buffer_store_dword v{O+4}, {vOl}, {sOUT}, {sT1} offen sc1", 'x', True)
    a.i(f"s_mov_b64 exec, -1")
    a.i(f"s_branch L_ose{i}")
    a.label(f"L_osl{i}")
    a.i(f"buffer_store_dwordx4 v[{O}:{O+3}], {vPk}, {sOUT}, {sT0} offen", 'ost')
    a.i(f"s_mov_b64 exec, {sLO}")
    a.i(f"buffer_store_dword v{O+4}, {vOl}, {sOUT}, {sT1} offen", 'ost')
    a.i(f"s_mov_b64 exec, -1")
    a.label(f"L_ose{i}")

def o_pretouch():
    L=vLane
    return [f"v_lshrrev_b32 v2, 3, {L}", f"v_mul_u32_u24 v2, {32*OUTROW}, v2", f"v_and_b32 v3, 7, {L}", f"v_lshl_add_u32 v2, v3, 7, v2",
            f"v_add_u32 v2, {sOM}, v2",
            f"v_bfe_u32 v3, {L}, 2, 2", f"v_mul_u32_u24 v3, {32*OUTROW}, v3", f"v_and_b32 v4, 3, {L}", f"v_mul_u32_u24 v4, {OUTROW}, v4",
            f"v_add3_u32 v3, v3, v4, {sOL}",
            f"v_cmp_le_u32 vcc, 32, {L}", f"s_lshl_b32 {sT0}, {sG}, 2", f"s_add_u32 {sT0}, {sT0}, {sWV}", f"v_cndmask_b32 v2, v2, v3, vcc",
            "s_mov_b32 s4, -1", "s_mov_b32 s5, 0xffff", "s_mov_b64 exec, s[4:5]",
            (f"buffer_load_dword v255, v2, {sOUT}, 0 offen",'touch'), "s_mov_b64 exec, -1",
            f"s_lshl_b32 {sT0}, {sT0}, 7", f"s_add_u32 {sT0}, {sT0}, {sFO}",
            f"v_mul_u32_u24 v2, {WS_FWL-WS_FOL}, {L}", f"v_add_u32 v2, {WS_FOL-WS_FO}, v2",
            "s_mov_b64 exec, 3", (f"buffer_load_dword v255, v2, {sWS}, {sT0} offen",'touch'), "s_mov_b64 exec, -1"]

def attention(a, opts):
    a.c("---- attention")
    T=tile_list(); n=len(T)
    first={}; last={}; firstuse={}
    for k,(i,jb) in enumerate(T):
        first.setdefault(i,k); last[i]=k; firstuse.setdefault(jb,k)
    Sreg=lambda k: (S0 if k%2==0 else S1)
    Preg=lambda k: (P0 if k%2==0 else P1)
    def qk(k):
        i,jb=T[k]; p,base=kv_regs(jb); S=rng('v',Sreg(k),16)
        return [f"v_mfma_f32_32x32x16_bf16 {S}, {rng(p,base,4)}, a[{8*i}:{8*i+3}], 0",
                f"v_mfma_f32_32x32x16_bf16 {S}, {rng(p,base+4,4)}, a[{8*i+4}:{8*i+7}], {S}"]
    def pv(k):
        i,jb=T[k]; p,base=kv_regs(jb); O=rng('v',OACC+16*i,16); P=Preg(k)
        c0='0' if k==first[i] else O
        return [f"v_mfma_f32_32x32x16_bf16 {O}, {rng(p,base+6,4)}, v[{P}:{P+3}], {c0}",
                f"v_mfma_f32_32x32x16_bf16 {O}, {rng(p,base+10,4)}, v[{P+4}:{P+7}], {O}"]
    waited=set()
    wo=list(opts.get('_wo_left',[]))+wo_group_for(12)+wo_left_groups(0,16*9216)
    NW=opts.get('wo_att',39)
    def rn_(t): return t.replace(vWOl[0]+',','v88,').replace(vWOl[1]+',','v89,').replace(vWOt[1]+',','v90,').replace(vWOt[0]+',','v96,')
    def rt(g): return [((rn_(x[0]),'wo2') if isinstance(x,tuple) else x) for x in g]
    opts['_wo_p3']=[rt(g) for g in wo[NW:]]
    wo=wo[:NW]
    WO_START=opts.get('wo_start',0)
    CHK0=opts.get('chk0',0); FLAGB=opts.get('flagB',3); FL1=opts.get('fl1',9); CHK1=opts.get('chk1',14)
    WO_PAUSE=opts.get('wo_pause',1)
    if opts.get('idle_att'): a.i(f"s_sleep {opts['idle_att']}")
    a.i(f"s_mov_b32 {sTRY}, 0")
    a.label("L_att")
    a.i(f"v_mov_b32 v254, 0x207")
    q0=qk(0); a.i(q0[0]); a.i(q0[1])
    extra=[]; hq=[]
    for k in range(n+1):
        a.stamp(f't{k}_')
        pagepad(a,opts,f't{k}')
        if k==CHK0:
            kv_flag_check(a,0,2)
            for jb in HORDER[:4]:
                hq += halo_load_groups(jb+8)
        if k==FLAGB:
            a.wait(vm='pubB'); a.emit(flag_store_ins(4))
        if k==FL1: a.emit(kv_flag_load(1))
        if opts.get('olocal') and k==opts.get('pre_at',19): a.emit(o_pretouch())
        if opts.get('olocal') and k==opts.get('xtl',24): a.emit(xt_load())
        if opts.get('olocal') and k==opts.get('xtc',30): xt_check(a)
        if k==CHK1:
            kv_flag_check(a,1,4)
            for jb in HORDER[4:]:
                hq += halo_load_groups(jb+8)
        mf=[]
        if k+1<n:
            i,jb=T[k+1]
            if jb<0 and jb not in waited:
                if not waited: a.stamp('own_done')
                assert any(t==f'h{jb+8}' for t in a.vm), jb
                waited.add(jb); a.wait(vm=f'h{jb+8}')
                if len(waited)==1: a.stamp('h0_landed')
            mf+=qk(k+1)
        else: mf+=[None,None]
        mf += pv(k-1) if k>=1 else [None,None]
        if k==0: a.nop(12)
        S=Sreg(k); P=Preg(k)
        i,jb=T[k] if k<n else (None,None)
        for seg in range(4):
            pk,ps = (k,seg-1) if seg>0 else (k-1,3)
            if pk>=0 and pk<n:
                Sp=Sreg(pk); Pp=Preg(pk); ip,jp=T[pk]
                for u in (2*ps,2*ps+1): a.i(f"v_cvt_pk_bf16_f32 v{Pp+u}, v{Sp+2*u}, v{Sp+2*u+1}")
                if jp==ip or jp==ip-8:
                    M=MASKD if jp==ip else MASKF
                    for u in (2*ps,2*ps+1): a.i(f"v_and_b32 v{Pp+u}, v{M+u}, v{Pp+u}")
            if k==n and seg==2: a.nop(2)
            if mf[seg]: a.i(mf[seg])
            if k<n:
                for e in range(4): a.i(f"v_exp_f32 v{S+4*seg+e}, v{S+4*seg+e}")
            a.drain(extra, 6 if k<n else 1000)
            if hq and seg in (0,2): a.emit(hq.pop(0))
            paused = WO_PAUSE and ((CHK0<=k<10) or (CHK1<=k<CHK1+9))
            if k>=WO_START and wo and not paused and seg in (0,1,3): a.emit(wo.pop(0))
        if k>=1:
            ib=T[k-1][0]
            if last[ib]==k-1:
                if k==n:
                    a.nop(14); a.emit(norm_block(ib))
                else: extra+=["s_nop 1"]+norm_block(ib)
    assert not extra
    for g in wo: a.emit(g)
    a.i(f"s_or_b32 s4, s74, s75"); a.i(f"s_cmp_eq_u32 s4, 0"); a.i("s_cbranch_scc1 L_att_done")
    a.i(f"s_cmp_eq_u32 {sTRY}, 0"); a.i("s_cbranch_scc1 L_slow")
    a.label("L_att_done")
    a.stamp('att_end')

def slow_path(a):
    a.label("L_slow")
    a.i("s_waitcnt vmcnt(0) lgkmcnt(0)")
    T=tile_list(); L=vLane
    a.i(f"v_and_b32 v84, 31, {L}"); a.i(f"v_lshrrev_b32 v85, 5, {L}"); a.i("v_lshlrev_b32 v85, 2, v85"); a.i("v_sub_u32 v84, v84, v85")
    a.i("v_mov_b32 v86, 0xff800000")
    for i in range(4):
        m=f"v{P0+i}"
        a.i(f"v_mov_b32 {m}, v86")
        for n_,(ii,jb) in enumerate([t for t in T if t[0]==i]):
            lab=f"L_sk{i}_{n_}"
            if jb<0:
                a.i(f"s_cmp_lt_u32 {sC}, {2 if jb<-4 else 1}"); a.i(f"s_cbranch_scc1 {lab}")
            p_,base=kv_regs(jb); S=rng('v',S0,16)
            a.i(f"v_mfma_f32_32x32x16_bf16 {S}, {rng(p_,base,4)}, a[{8*i}:{8*i+3}], 0")
            a.i(f"v_mfma_f32_32x32x16_bf16 {S}, {rng(p_,base+4,4)}, a[{8*i+4}:{8*i+7}], {S}")
            a.nop(16)
            if jb==i or jb==i-8:
                for r in range(16):
                    k0=(r&3)+8*(r>>2)
                    a.i(f"v_cmp_{'le' if jb==i else 'gt'}_i32 vcc, {k0}, v84"); a.i("s_nop 1")
                    a.i(f"v_cndmask_b32 v{S0+r}, v86, v{S0+r}, vcc")
            for r in range(0,16,2): a.i(f"v_max3_f32 {m}, v{S0+r}, v{S0+r+1}, {m}")
            if jb<0: a.label(lab)
        a.i(f"v_mov_b32 v87, {m}"); a.nop(2)
        a.i(f"v_permlane32_swap_b32 {m}, v87"); a.nop(2)
        a.i(f"v_max_f32 {m}, {m}, v87")
        a.i(f"v_sub_f32 v87, 0, {m}")
        a.i(f"v_cvt_pk_bf16_f32 v88, v87, v87"); a.i("v_lshlrev_b32 v89, 16, v88")
        a.i("v_sub_f32 v89, v87, v89")
        a.i("v_cvt_pk_bf16_f32 v88, v87, v89")
        a.i(f"s_mov_b64 exec, {sLO}"); a.i(f"v_accvgpr_write_b32 a{8*i+5}, v88"); a.i("s_mov_b64 exec, -1")
    a.i(f"s_mov_b32 {sTRY}, 1"); a.i(f"s_mov_b64 {sBAD}, 0"); a.nop(4)
    a.i("s_branch L_att")

OF=16
DACC=88
AFV=124
vAr=[f'v{2+t}' for t in range(9)]
vOf='v11'; vOut='v12'; vOf2='v251'

def phase3(a, opts):
    a.c("---- phase 3")
    L=vLane
    a.i(f"v_mov_b32 v88, {vWOl[0]}"); a.i(f"v_mov_b32 v89, {vWOl[1]}"); a.i(f"v_mov_b32 v90, {vWOt[1]}"); a.i(f"v_mov_b32 v96, {vWOt[0]}")
    a.i(f"v_lshrrev_b32 v13, 2, {L}")
    a.i(f"v_and_b32 v14, 7, v13"); a.i(f"v_lshlrev_b32 v14, 5, v14")
    a.i(f"v_lshl_add_u32 v14, v13, 8, v14")
    a.i(f"v_and_b32 v15, 3, {L}"); a.i(f"v_lshl_add_u32 v14, v15, 3, v14")
    for t in range(8): a.i(f"v_xor_b32 {vAr[t]}, {32*t}, v14")
    a.i(f"v_lshlrev_b32 v13, 5, v13"); a.i(f"v_lshl_add_u32 v13, v15, 3, v13"); a.i(f"v_add_u32 {vAr[8]}, 8192, v13")
    a.i(f"v_and_b32 v13, 15, {L}"); a.i(f"v_lshrrev_b32 v14, 4, {L}")
    a.i(f"s_and_b32 s6, {sWV}, 1"); a.i(f"s_lshl_b32 s6, s6, 8")
    a.i(f"v_lshl_add_u32 v15, v13, 4, s6")
    a.i(f"v_and_b32 v93, 1, v14"); a.i(f"v_lshl_add_u32 {vOf}, v93, 9, v15"); a.i(f"v_lshrrev_b32 v93, 1, v14")
    a.i(f"v_mul_u32_u24 v93, {OUTROW}, v93"); a.i(f"v_add_u32 {vOf}, {vOf}, v93")
    a.i(f"v_lshrrev_b32 v93, 7, v15"); a.i(f"v_lshl_add_u32 v93, v14, 2, v93"); a.i(f"v_mul_u32_u24 v93, {OUTROW}, v93")
    a.i(f"v_and_b32 v94, 0x70, v15"); a.i(f"v_add_u32 {vOf2}, v93, v94")
    a.i(f"v_mul_u32_u24 v15, {OUTROW}, v13"); a.i(f"v_lshl_add_u32 {vOut}, v14, 3, v15")
    a.wait(vm='wo')
    a.i("s_barrier")
    a.stamp('wo_ready')
    if opts.get('dumpwo'):
        a.i("s_cmp_lg_u32 s2, 0"); a.i("s_cbranch_scc1 L_nodump")
        a.i("v_lshlrev_b32 v13, 4, v0")
        for it in range(39):
            a.i(f"ds_read_b128 v[124:127], v13 offset:0")
            a.i("s_waitcnt lgkmcnt(0)")
            a.i(f"v_add_u32 v14, {WS_DBG+0x100000}, v13")
            a.i(f"buffer_store_dwordx4 v[124:127], v14, {sWS}, 0 offen", cond=True)
            a.i("s_waitcnt vmcnt(0)")
            a.i("v_add_u32 v13, 4096, v13")
        a.label("L_nodump"); a.lg_clear()
    def frag_reads(kap, dst):
        slot=kap if kap<17 else 0
        R=[]
        for t in range(9):
            p,r=dst(kap,t)
            off=(slot%7)*9216
            hoff=4096 if t<8 else 512
            R.append([(f"ds_read_b64_tr_b16 {p}[{r+2*h}:{r+2*h+1}], {vAr[t]} offset:{off+hoff*h}", f'a{kap}_{t}') for h in range(2)])
        return R
    NA=7; RING=29
    def dst(kap,t):
        if kap<NA: return 'a', (kap*9+t)*4
        idx=((kap-NA)*9+t)%RING
        return 'v', AFV+idx*4
    bump=lambda: [f"v_add_u32 {vAr[t]}, {7*9216}, {vAr[t]}" for t in range(9)]
    def oflag():
        a.i(f"s_lshl_b32 {sT0}, {sG}, 2"); a.i(f"s_add_u32 {sT0}, {sT0}, {sWV}"); a.i(f"s_lshl_b32 {sT0}, {sT0}, 7"); a.i(f"s_add_u32 {sT0}, {sT0}, {sFO}")
        a.i(f"v_mov_b32 v14, {sNONl}"); a.i(f"v_mov_b32 v13, 0")
        if not opts.get('olocal'):
            a.i(f"v_mov_b32 v15, {sNONh}"); a.i("s_mov_b64 exec, 1")
            a.i(f"buffer_store_dwordx2 v[14:15], v13, {sWS}, {sT0} offen sc1", 'oflag'); a.i("s_mov_b64 exec, -1")
            return
        a.i(f"s_cmp_eq_u32 {sLOC}, 1"); a.i("s_cbranch_scc1 L_ofl")
        a.i(f"v_mov_b32 v15, {sNONh}")
        a.i("s_mov_b64 exec, 1")
        a.i(f"buffer_store_dwordx2 v[14:15], v13, {sWS}, {sT0} offen sc1", 'x', True)
        a.i("s_branch L_ofe")
        a.label("L_ofl")
        a.i(f"s_add_u32 {sT0}, {sT0}, {WS_FOL-WS_FO}")
        a.i(f"v_mov_b32 v15, {sLFH}")
        a.i("s_mov_b64 exec, 1")
        a.i(f"buffer_store_dwordx2 v[14:15], v13, {sWS}, {sT0} offen", tag='oflag')
        a.label("L_ofe")
        a.i("s_mov_b64 exec, -1")
    LF_AT=opts.get('lf_at',1)
    w2=list(opts.get('_wo_p3',[]))
    for kap in range(NA):
        if kap==LF_AT:
            a.wait(vm='ost'); oflag(); a.stamp('o_lflag')
        for gi,grp in enumerate(frag_reads(kap,dst)):
            a.emit(grp)
            if w2 and gi%3==0: a.emit(w2.pop(0))
        if kap%2==1: a.wait(lg=8)
    for g in w2: a.emit(g)
    if opts.get('_wo_p3'):
        a.wait(vm='wo2'); a.i("s_barrier")
    a.emit(bump())
    a.i(f"v_and_b32 v13, 31, {L}"); a.i(f"v_lshlrev_b32 v13, 7, v13")
    a.i(f"v_mov_b32 v91, {sNONh}")
    if opts.get('olocal'):
        a.i(f"v_add_u32 v14, {WS_FOL-WS_FO}, v13"); a.i(f"v_cmp_le_u32 vcc, 32, {L}")
        a.i(f"v_mov_b32 v92, {sLFH}"); a.i("s_nop 0")
        a.i(f"v_cndmask_b32 v13, v13, v14, vcc"); a.i(f"v_cndmask_b32 v91, v91, v92, vcc")
    def opoll_load(cond):
        if not opts.get('olocal'): a.i(f"s_mov_b64 exec, {sLO}")
        a.i(f"buffer_load_dwordx2 v[14:15], v13, {sWS}, {sFO} offen sc1", 'opl', cond)
        a.i("s_mov_b64 exec, -1")
    AP=opts.get('apoll',0); W0=opts.get('w0poll',1)
    if AP==1: opoll_load(False)
    for kap in range(NA,NA+3):
        for grp in frag_reads(kap,dst): a.emit(grp)
    OT=9216; OP=304
    a.i(f"v_and_b32 v252, 15, {L}"); a.i(f"v_mul_u32_u24 v252, {OP}, v252"); a.i(f"v_lshrrev_b32 v253, 4, {L}"); a.i(f"v_lshl_add_u32 v252, v253, 3, v252")
    a.i(f"s_mul_i32 {sT2}, {sWV}, {16*OP}"); a.i(f"s_add_u32 {sT2}, {sT2}, {OT}"); a.i(f"v_add_u32 v250, {sT2}, v252")
    for e in range(5):
        a.i(f"v_add_u32 v252, {64*e}, {L}"); a.i(f"v_mul_u32_u24 v253, 58255, v252"); a.i(f"v_lshrrev_b32 v253, 20, v253")
        a.i(f"v_mul_u32_u24 v254, 18, v253"); a.i(f"v_sub_u32 v254, v252, v254"); a.i(f"v_lshlrev_b32 v254, 4, v254")
        a.i(f"v_mul_u32_u24 v252, {OP}, v253"); a.i(f"v_add3_u32 v{240+e}, v252, v254, {sT2}")
        a.i(f"v_mul_u32_u24 v252, {OUTROW}, v253"); a.i(f"v_add_u32 v{245+e}, v252, v254")
    a.wait(lg=0)
    a.i("s_barrier")
    for g in wo_left_groups(1,0,('v88','v89','v90')): a.emit(g)
    a.stamp('frags_pre')
    if W0:
        a.i(f"s_cmp_lg_u32 {sWV}, 0"); a.i("s_cbranch_scc1 L_opoll_done")
    if AP==1: a.wait(vm='opl')
    else:
        opoll_load(True); a.i("s_waitcnt vmcnt(0)")
    a.i(f"s_mov_b32 {sCNT}, 200000")
    a.label("L_opoll")
    if not opts.get('olocal'): a.i(f"s_mov_b64 exec, {sLO}")
    a.i(f"v_cmp_eq_u32 vcc, {sNONl}, v14"); a.i(f"v_cmp_eq_u32 s[4:5], v91, v15")
    a.i("s_mov_b64 exec, -1")
    a.i("s_and_b64 s[4:5], s[4:5], vcc"); a.i("s_or_b32 s4, s4, s5"); a.i("s_cmp_eq_u32 s4, -1"); a.i("s_cbranch_scc1 L_opoll_done")
    if opts.get('psleep',2): a.i(f"s_sleep {opts.get('psleep',2)}")
    opoll_load(True); a.i("s_waitcnt vmcnt(0)")
    a.i(f"s_sub_u32 {sCNT}, {sCNT}, 1"); a.i(f"s_cmp_lg_u32 {sCNT}, 0"); a.i("s_cbranch_scc1 L_opoll")
    a.label("L_opoll_done")
    if W0:
        a.wait(vm='wo'); a.i("s_barrier")
    a.stamp('opoll_done')
    KORD=[7,8,9]+list(range(7))+list(range(10,18))
    def oload(kap):
        if kap<16:
            a.i(f"s_add_u32 {sT0}, {sPOM}, {2*OUTROW*kap}")
            a.i(f"buffer_load_dwordx4 v[{OF+4*kap}:{OF+4*kap+3}], {vOf}, {sOUT}, {sT0} offen sc1", tag=f'of{kap}')
        else:
            a.i(f"s_add_u32 {sT0}, {sPOL}, {16*OUTROW*(kap-16)}")
            a.i(f"buffer_load_dwordx4 v[{OF+4*kap}:{OF+4*kap+3}], {vOf2}, {sOUT}, {sT0} offen sc1", tag=f'of{kap}')
    NFIRST=opts.get('ofirst',7)
    oq=list(KORD)
    for _ in range(NFIRST): oload(oq.pop(0))
    a.stamp('p3_oissued')
    if not W0:
        a.wait(vm='wo'); a.i("s_barrier")
    rq=[]
    for kap in range(NA+3,18):
        R=frag_reads(kap,dst)
        for t in range(9): rq.append((kap,t,R[t]))
    issued=(NA+3-NA)*9
    consumed=0; mcount=0
    def war_store():
        a.wait(vm=f'of{KORD[-1]}')
        a.i(f"s_lshl_b32 {sT0}, {sG}, 2"); a.i(f"s_add_u32 {sT0}, {sT0}, {sWV}"); a.i(f"s_lshl_b32 {sT0}, {sT0}, 7"); a.i(f"s_add_u32 {sT0}, {sT0}, {sFO}")
        a.i(f"v_mov_b32 v252, {sNONl}"); a.i(f"v_mov_b32 v254, 0")
        a.i(f"s_add_u32 {sT0}, {sT0}, {WS_FW-WS_FO}")
        if opts.get('olocal'):
            a.i(f"s_cmp_eq_u32 {sLOC}, 1"); a.i("s_cbranch_scc1 L_wl")
        a.i(f"v_mov_b32 v253, {sNONh}"); a.i("s_mov_b64 exec, 1")
        a.i(f"buffer_store_dwordx2 v[252:253], v254, {sWS}, {sT0} offen sc1", 'war' if not opts.get('olocal') else 'x', bool(opts.get('olocal')))
        if opts.get('olocal'):
            a.i("s_branch L_we"); a.label("L_wl")
            a.i(f"s_add_u32 {sT0}, {sT0}, {WS_FWL-WS_FW}"); a.i(f"v_mov_b32 v253, {sLFH}"); a.i("s_mov_b64 exec, 1")
            a.i(f"buffer_store_dwordx2 v[252:253], v254, {sWS}, {sT0} offen", 'war')
            a.label("L_we")
        a.i("s_mov_b64 exec, -1")
    def war_addr():
        a.i(f"v_and_b32 v13, 15, {L}"); a.i(f"s_lshl_b32 {sT0}, {sRH}, 4"); a.i(f"v_add_u32 v13, {sT0}, v13"); a.i(f"v_lshlrev_b32 v13, 7, v13")
        a.i(f"v_add_u32 v13, {WS_FW-WS_FO}, v13"); a.i(f"v_add_u32 v14, {WS_FWL-WS_FW}, v13"); a.i(f"v_cmp_le_u32 vcc, 16, {L}")
        a.i(f"v_mov_b32 v15, {sNONh}"); a.i(f"v_mov_b32 v1, {sLFH if opts.get('olocal') else sNONh}")
        a.i(f"v_cndmask_b32 v13, v13, v14, vcc"); a.i(f"v_cndmask_b32 v15, v15, v1, vcc")
    def war_load(cond=False):
        a.i(f"s_mov_b64 exec, {sLO}"); a.i(f"buffer_load_dwordx2 v[0:1], v13, {sWS}, {sFO} offen sc1", 'warl', cond); a.i("s_mov_b64 exec, -1")
    base_slot=7
    for kap in KORD:
        a.wait(vm=f'of{kap}')
        for t in range(9):
            p,r=dst(kap,t)
            if kap>=NA:
                n_=a.lg_n(f'a{kap}_{t}')
                if n_ is not None: a.wait(lg=f'a{kap}_{t}')
            acc=rng('v',DACC+4*t,4); c='0' if kap==KORD[0] else acc
            a.i(f"v_mfma_f32_16x16x32_bf16 {acc}, {p}[{r}:{r+3}], v[{OF+4*kap}:{OF+4*kap+3}], {c}")
            if kap>=NA: consumed+=1
            mcount+=1
            if mcount in (1,27,90,126): a.stamp(f'p3_m{mcount}_')
            if oq and mcount%opts.get('oevery',4)==0: oload(oq.pop(0))
            if mcount==opts.get('war_st',100): war_store()
            if mcount==opts.get('war_ld',140): war_addr(); war_load()
            if rq and issued-consumed<RING-1:
                k2,t2,ins=rq[0]
                if k2==14 and t2==0 and base_slot==7:
                    a.emit(bump()); base_slot=14
                if k2==17 and t2==0:
                    a.emit([f"v_subrev_u32 {vAr[tt]}, {14*9216}, {vAr[tt]}" for tt in range(9)])
                rq.pop(0); a.emit(ins); issued+=1
    assert not rq
    a.stamp('p3_mfma_end')
    a.wait(vm='warl')
    a.i(f"s_mov_b32 {sCNT}, 200000")
    a.label("L_wchk")
    a.i(f"s_mov_b64 exec, {sLO}")
    a.i(f"v_cmp_eq_u32 vcc, {sNONl}, v0"); a.i(f"v_cmp_eq_u32 s[4:5], v15, v1")
    a.i("s_mov_b64 exec, -1")
    a.i("s_and_b64 s[4:5], s[4:5], vcc"); a.i("s_lshr_b32 s5, s4, 16"); a.i("s_or_b32 s4, s4, s5"); a.i("s_and_b32 s4, s4, 0xffff")
    a.i("s_cmp_eq_u32 s4, 0xffff"); a.i("s_cbranch_scc1 L_wok")
    war_load(True); a.i("s_waitcnt vmcnt(0)")
    a.i(f"s_sub_u32 {sCNT}, {sCNT}, 1"); a.i(f"s_cmp_lg_u32 {sCNT}, 0"); a.i("s_cbranch_scc1 L_wchk")
    a.label("L_wok")
    a.stamp('p3_war')
    a.nop(10)
    for t in range(9):
        d=DACC+4*t
        a.i(f"v_cvt_pk_bf16_f32 v{d}, v{d}, v{d+1}"); a.i(f"v_cvt_pk_bf16_f32 v{d+1}, v{d+2}, v{d+3}")
        a.i(f"ds_write_b64 v250, v[{d}:{d+1}] offset:{32*t}", 'ow')
    a.wait(lg=0)
    for e in range(5):
        if e==4: a.i(f"s_mov_b64 exec, {sLO}")
        a.i(f"ds_read_b128 v[{32+4*e}:{35+4*e}], v{240+e}", f'or{e}')
    a.i("s_mov_b64 exec, -1")
    for e in range(5):
        a.wait(lg=f'or{e}')
        if e==4: a.i(f"s_mov_b64 exec, {sLO}")
        a.i(f"buffer_store_dwordx4 v[{32+4*e}:{35+4*e}], v{245+e}, {sOUT}, {sOUTB} offen {opts.get('outmod','')}")
    a.i("s_mov_b64 exec, -1")
    a.stamp('p3_stissued')
    a.i("s_waitcnt vmcnt(0)")

def kd(name, vgpr, accum, sgpr=102):
    return f""".section .rodata,"a"
.p2align 6
.amdhsa_kernel {name}
  .amdhsa_next_free_vgpr {vgpr}
  .amdhsa_next_free_sgpr {sgpr}
  .amdhsa_accum_offset {accum}
  .amdhsa_group_segment_fixed_size 0
  .amdhsa_kernarg_size 72
  .amdhsa_user_sgpr_count 2
  .amdhsa_user_sgpr_kernarg_segment_ptr 1
  .amdhsa_system_sgpr_workgroup_id_x 1
.end_amdhsa_kernel
"""
HEADER = """; Kernarg layout (72 bytes, ptrs only, base s[0:1]):
"""
def build(opts):
    ORDER_MODE[0]=opts.get('order','own'); GOPT.update(opts)
    a=G()
    if opts.get('stamps'):
        a.stamps=[]
        a.sel = opts['sel'].split(',') if 'sel' in opts else ['ch0_landed','1a_end','1b_end','q_ready','poll_done','own_done','att_end','wo_ready','frags_pre','opoll_done','p3_mfma_end','drained']
    prologue(a,opts)
    g0=dma_chunk_groups(0,0)
    if opts.get('tlbw',1):
        a.i(f"buffer_load_dword v255, {vWoff[0]}, {sW}, {sWoff} offen", 'touch')
    for g in g0[:4]: a.emit(g)
    setupA(a,opts)
    setupB0(a,opts)
    for g in g0[4:]: a.emit(g)
    if opts.get('xtouch',1):
        L=vLane
        a.i(f"v_mul_u32_u24 v2, 7282, {L}"); a.i("v_lshrrev_b32 v2, 16, v2")
        a.i(f"v_mul_u32_u24 v3, 9, v2"); a.i(f"v_sub_u32 v3, {L}, v3"); a.i("v_min_u32 v2, 3, v2")
        a.i(f"s_lshl_b32 s5, {sC}, 7"); a.i(f"s_lshl_b32 s6, {sG}, 4"); a.i("s_add_u32 s5, s5, s6"); a.i(f"s_lshl_b32 s6, {sWV}, 2"); a.i("s_add_u32 s5, s5, s6")
        a.i(f"v_add_u32 v2, s5, v2"); a.i(f"v_mul_u32_u24 v2, {XROW}, v2"); a.i(f"v_lshl_add_u32 v2, v3, 7, v2")
        a.i("s_mov_b32 s6, -1"); a.i("s_mov_b32 s7, 15")
        a.emit(["s_mov_b64 exec, s[6:7]", (f"buffer_load_dword v255, v2, {sX}, 0 offen",'touch'), "s_mov_b64 exec, -1"])
    if opts.get('wotouch',2)==2: touch_wo(a)
    if opts.get('pfmode',0) in (1,2):
        a.i("v_lshlrev_b32 v2, 7, v0")
        a.raw("    v_min_u32 v2, (L_end-L_pc), v2")
        a.i("global_load_dword v255, v2, s[96:97]", tag='pf')
    if opts.get('qtouch',0): touch_q(a)
    if opts.get('pgw',0):
        L=vLane
        a.i(f"s_lshl_b32 s4, {sB}, 3"); a.i(f"s_add_u32 s4, s4, {sG}"); a.i("s_lshl_b32 s4, s4, 4"); a.i(f"s_add_u32 s4, s4, {sC}")
        a.i(f"s_mul_i32 s4, s4, {SLOT}")
        a.i(f"v_mov_b32 v2, s4"); a.i(f"v_mov_b32 v3, {WS_FKV}"); a.i(f"v_cmp_eq_u32 vcc, 1, {L}"); a.i("s_nop 1"); a.i("v_cndmask_b32 v2, v2, v3, vcc")
        a.i(f"s_sub_u32 s5, s4, {2*SLOT}"); a.i(f"s_max_i32 s5, s5, 0"); a.i("v_mov_b32 v3, s5"); a.i(f"v_cmp_eq_u32 vcc, 2, {L}"); a.i("s_nop 1"); a.i("v_cndmask_b32 v2, v2, v3, vcc")
        a.i("s_mov_b64 exec, 7"); a.i(f"buffer_load_dword v255, v2, {sWS}, 0 offen", 'touch')
        a.i(f"s_lshl_b32 s4, {sC}, 7"); a.i(f"s_mul_i32 s4, s4, {OUTROW}"); a.i("v_mov_b32 v2, 0")
        a.i("s_mov_b64 exec, 1"); a.i(f"buffer_load_dword v255, v2, {sOUT}, s4 offen", 'touch'); a.i("s_mov_b64 exec, -1")
    a.stamp('p_ch0')
    ch1g=dma_chunk_groups(1,1)
    NE=opts.get('ch1_early',9)
    for g in ch1g[:NE]: a.emit(g)
    opts['_ch1rest']=ch1g[NE:]
    a.stamp('p_ch1')
    rec=Rec(); setupB(rec,opts)
    rec2=Rec(); wo_addr(rec2)
    ren=dict(zip(vWOm+vWOl+vWOt,vWOtmp))
    def rn(x):
        for k_,v_ in ren.items(): x=x.replace(f" {k_},",f" {v_},")
        return x
    opts['_side']=rec.l+[rn(x) for x in rec2.l]
    pend=opts['_ch1rest']+dma_chunk_groups(2,2)
    pend=phase1a(a,opts,pend)
    phase1b(a,pend,opts)
    attention(a,opts)
    phase3(a,opts)
    a.stamp('drained'); a.stamp('rt_exit',real=True)
    if opts.get('dbgtime'):
        a.i("s_waitcnt lgkmcnt(0)")
        n=len(a.stamps)
        r0=a.stamps[0][1]; r1=a.stamps[-1][1]
        a.i(f"s_not_b32 s3, s{r0}")
        a.i("v_mov_b32 v2, s3"); a.i("v_mov_b32 v3, 8"); a.i(f"v_mov_b32 v4, s{r1}"); a.i("v_mov_b32 v5, 12")
        a.i("s_mov_b64 exec, 1")
        a.i(f"buffer_atomic_umax v2, v3, {sDBG}, 0 offen sc1"); a.i(f"buffer_atomic_umax v4, v5, {sDBG}, 0 offen sc1")
        a.i(f"s_cmp_lg_u32 s2, 77"); a.i("s_cbranch_scc1 L_nodbg"); a.i(f"s_cmp_lg_u32 {sWV}, 0"); a.i("s_cbranch_scc1 L_nodbg")
        e=a.stamps[1][1]
        for k,(nm,r) in enumerate(a.stamps[2:-1][:12]):
            a.i(f"s_sub_u32 s3, s{r}, s{e}"); a.i("v_mov_b32 v2, s3"); a.i(f"v_mov_b32 v3, {16+4*k}")
            a.i(f"buffer_store_dword v2, v3, {sDBG}, 0 offen")
        a.label("L_nodbg")
        a.i("s_mov_b64 exec, -1"); a.i("s_waitcnt vmcnt(0)")
    else: a.dump_stamps(0)
    a.label("L_end"); a.i("s_endpgm")
    slow_path(a)
    errs=a.check()
    if opts.get('stamps'): print("stamps:",len(a.stamps),[x[0] for x in a.stamps])
    k1=f"{NAME}_kernel"
    txt=HEADER+f"; @launch grid=(256,1,1) block=(256,1,1) lds={LDS_BYTES}\n"
    txt+='.amdgcn_target "amdgcn-amd-amdhsa--gfx950"\n.text\n'
    txt+=f".globl {k1}\n.p2align 8\n.type {k1},@function\n{k1}:\n"+a.text()+kd(k1,512,256)
    return txt
if __name__=="__main__":
    out=sys.argv[1]
    opts={}
    for x in sys.argv[2:]:
        k,_,v=x.partition('='); opts[k]=int(v) if v.lstrip('-').isdigit() else (v or True)
    open(out,'w').write(build(opts)); print("written",out)
```

```python
import sys, os, struct
sys.path.insert(0, os.path.dirname(os.path.abspath(__file__)))
from asm import *
NAME = "concat_heads__sliding_block__sliding_block__prompt"
XROW=1152; WROW=3456; OUTROW=2304
X_BYTES=2048*1152; W_BYTES=576*3456; WO_BYTES=576*1152; OUT_BYTES=2048*2304
SLOT=36864; WPITCH=320; XOFF=20480; QPITCH=192; QCH=12288
VBASE=0; VR=1184; VJ=2368; VB=4736; KB3=18944; KB0=147456; KP=148; KBLK=32*148; QBASE=0
LDS_BYTES=163840
WS_KV=0; WS_OM=0x1000000; WS_OL=0x1400000; WS_FKV=0x1800000; WS_FO=0x1840000; WS_FOL=0x1880000; WS_FW=0x1900000; WS_FWL=0x1940000
WS_XT=0x18C0000
WS_DBG=0x2000000; WS_BYTES=0x4000000
CSCALE = 1.4426950408889634/(18**0.5)
def f2u(x): return struct.unpack('<I',struct.pack('<f',x))[0]
def rng(p,a,n): return f'{p}[{a}:{a+n-1}]'

sX='s[8:11]'; sW='s[12:15]'; sWO='s[16:19]'; sOUT='s[20:23]'; sWS='s[24:27]'; sDBG='s[28:31]'
sB='s32'; sC='s33'; sG='s34'; sWV='s35'
sVM='s[54:55]'; sLO='s[56:57]'
sCI='s58'; sWoff='s59'; sXoff='s60'; sM0='s61'; sKVme='s62'
sT0='s63'; sT1='s64'; sT2='s65'; sFKV='s66'; sT3='s67'
sNONl='s68'; sNONh='s69'; sROT='s70'; sKV1='s71'; sKV2='s72'; sXCC='s73'
sBAD='s[74:75]'; sNVM='s[52:53]'; sCNT='s76'; sOM='s77'; sOL='s78'; sFO='s79'; sSC='s80'; sATT='s81'
sLFH='s70'; sLOC='s81'
sTRY='s52'
sRH='s82'; sNQ='s83'; sPOM='s84'; sPOL='s85'; sOUTB='s86'; sWOs='s87'
sIDX='s76'; sOFF='s81'; sPAIR='s87'; sB2='s65'

vLane='v1'
vWoff=[f'v{10+j}' for j in range(5)]
vXoff=[f'v{15+j}' for j in range(4)]
vQoff=['v19','v20','v21']
vWr=['v22','v23']; vMx=['v24','v25']
vXr=[[f'v{26+t}' for t in range(4)],[f'v{30+t}' for t in range(4)]]
vQr='v34'
vKw='v35'; vQw='v36'; vVw='v37'; vVt='v38'
vKr='v39'; vKl='v40'; vVr='v41'; vCw='v42'; vQl='v43'
vPk='v44'; vPl='v45'; vPv='v46'; vOl='v47'
vNON='v[48:49]'; vVC='v50'; vT='v51'
def WF(b,f): r=52+(b*5+f)*4; return f'v[{r}:{r+3}]'
def WFh(b,f,h): r=52+(b*5+f)*4+2*h; return f'v[{r}:{r+1}]'
def QF(b,f): r=52+(b*3+f)*4; return f'v[{r}:{r+3}]'
def QFh(b,f,h): r=52+(b*3+f)*4+2*h; return f'v[{r}:{r+1}]'
ACC={'K0':92,'K1':108,'V0':124,'V1':140,'MX':156,'Q0':172,'Q1':188,'Q2':204}
def XF(t): return rng('a',4*t,4)
OWN=92; HALO=144
S0=52; S1=68; P0=150; P1=158; OACC=172; MASKD=236; MASKF=244
vWOm=['v10','v11']; vWOl=['v12','v13']; vWOt=['v14','v15']
vWOtmp=['v220','v221','v222','v223','v224','v225']

class G(Asm):
    stamps=None; sel=None; nowait=True
    def stamp(self, name, real=False):
        if self.stamps is None: return
        if self.sel is not None and not (name.startswith('rt_') or name=='entry' or any(name.startswith(x) for x in self.sel)): return
        k=len(self.stamps)
        regs=[88,90,92,94,96,98,100,36,38,40,42,44,46,48,50][k]
        self.stamps.append((name,regs))
        if GOPT.get('allreal'): real_=True
        else: real_=real
        self.i(f"{'s_memrealtime' if real_ else 's_memtime'} s[{regs}:{regs+1}]")
        if self.nowait and not real and name!='entry':
            self.lg.pop()
        else:
            self.i("s_waitcnt lgkmcnt(0)")
            self.lg_clear()
    def dump_stamps(self, base):
        if self.stamps is None: return
        self.i("s_waitcnt lgkmcnt(0)")
        self.i(f"s_lshl_b32 s3, s2, 2"); self.i(f"s_add_u32 s3, s3, {sWV}")
        self.i(f"s_lshl_b32 s3, s3, 6"); self.i(f"s_add_u32 s3, s3, {WS_DBG+base}")
        self.i("s_mov_b64 exec, 1")
        for k,(nm,r) in enumerate(self.stamps):
            self.i(f"v_mov_b32 v2, s{r}"); self.i(f"v_mov_b32 v3, {4*k}")
            self.i(f"buffer_store_dword v2, v3, {sWS}, s3 offen")
        self.i("s_mov_b64 exec, -1"); self.i("s_waitcnt vmcnt(0)")
    def emit(self, lst):
        for x in lst:
            if isinstance(x,tuple) and x[0]=='OSTORE': emit_ostore(self,x[1])
            elif isinstance(x,tuple): self.i(*x)
            else: self.i(x)
    def drain(self, q, budget):
        k=0; inexec=False
        while q and (k<budget or inexec):
            x=q.pop(0)
            txt=x[0] if isinstance(x,tuple) else x
            if txt.startswith('s_mov_b64 exec'): inexec = not txt.endswith('-1')
            if txt=='OSTORE': emit_ostore(self,x[1])
            elif isinstance(x,tuple): self.i(*x)
            else: self.i(x)
            k+=1

def prologue(a, opts):
    L=vLane
    a.c("---- prologue")
    a.stamp('rt_entry',real=True); a.stamp('entry')
    a.i("s_load_dwordx8 s[36:43], s[0:1], 0")
    a.i("s_load_dwordx8 s[44:51], s[0:1], 32")
    a.i("s_load_dwordx2 s[52:53], s[0:1], 64")
    a.i("s_cmp_ge_u32 s2, 256")
    a.i("s_cbranch_scc1 L_end")
    a.i("s_getpc_b64 s[90:91]") if False else None
    a.i("s_getpc_b64 s[4:5]")
    a.label("L_pc")
    PFM=opts.get('pfmode',0)
    if PFM in (1,2):
        a.i("s_mov_b32 s96, s4"); a.i("s_mov_b32 s97, s5")
    a.i("v_lshlrev_b32 v2, 7, v0")
    a.raw("    v_min_u32 v2, (L_end-L_pc), v2")
    if PFM==1:
        a.i("v_cmp_gt_u32 vcc, 64, v0"); a.i("s_and_saveexec_b64 s[6:7], vcc"); a.i("s_cbranch_execz L_pf1")
        a.i("global_load_dword v255, v2, s[4:5]", tag='pf', cond=True)
        a.label("L_pf1"); a.i("s_mov_b64 exec, -1")
    elif PFM==0 and not opts.get('nopf'): a.i("global_load_dword v255, v2, s[4:5]", tag='pf')
    if opts.get('pf2'):
        a.i("v_lshlrev_b32 v2, 7, v0"); a.i("v_add_u32 v2, 32768, v2")
        a.raw("    v_min_u32 v2, (L_end-L_pc), v2")
        a.i("global_load_dword v255, v2, s[4:5]", tag='pf')
    a.i(f"v_and_b32 {L}, 63, v0")
    a.i("v_lshrrev_b32 v2, 6, v0")
    a.i("s_and_b32 s3, s2, 7")
    a.i(f"v_readfirstlane_b32 {sWV}, v2")
    a.i(f"s_lshr_b32 {sB}, s3, 2")
    a.i("s_lshr_b32 s4, s2, 3")
    a.i("s_and_b32 s5, s3, 3")
    a.i(f"s_lshl_b32 {sC}, s5, 2")
    a.i("s_lshr_b32 s5, s4, 3")
    a.i(f"s_add_u32 {sC}, {sC}, s5")
    a.i(f"s_and_b32 {sG}, s4, 7")
    a.i("s_lshl_b32 s5, s5, 1")
    a.i(f"s_add_u32 s6, s5, {sG}")
    a.i("s_sub_u32 s7, s6, 9")
    a.i("s_cmp_ge_u32 s6, 9")
    a.i(f"s_cselect_b32 {sROT}, s7, s6")
    if opts.get('order','own')=='own':
        a.i(f"s_add_u32 {sOFF}, s5, {sG}"); a.i(f"s_and_b32 {sOFF}, {sOFF}, 7")
        a.i("s_and_b32 s6, s3, 3"); a.i("s_lshl_b32 s6, s6, 1"); a.i(f"s_and_b32 s7, {sC}, 1"); a.i(f"s_add_u32 {sROT}, s6, s7")
        a.i(f"s_mov_b32 {sIDX}, {sOFF}")
    elif opts.get('order')=='norot': a.i(f"s_mov_b32 {sROT}, 0")
    if opts.get('order','own')=='pair':
        a.i(f"s_add_u32 {sOFF}, s5, {sG}"); a.i(f"s_sub_u32 s6, {sOFF}, 7"); a.i(f"s_cmp_ge_u32 {sOFF}, 7"); a.i(f"s_cselect_b32 {sOFF}, s6, {sOFF}")
        a.i("s_and_b32 s6, s3, 3"); a.i("s_lshl_b32 s6, s6, 1"); a.i(f"s_add_u32 s7, {sG}, {sC}"); a.i("s_and_b32 s7, s7, 1")
        a.i(f"s_add_u32 {sROT}, s6, s7"); a.i(f"s_xor_b32 s7, s7, 1"); a.i(f"s_add_u32 {sPAIR}, s6, s7"); a.i(f"s_add_u32 {sB2}, s6, 2")
        a.i(f"s_mov_b32 {sIDX}, {sOFF}")
    a.i(f"s_lshl_b32 s6, {sC}, 7"); a.i(f"s_lshl_b32 s7, {sWV}, 5"); a.i("s_add_u32 s6, s6, s7")
    a.i(f"s_mul_i32 s6, s6, {XROW}")
    a.i(f"v_lshrrev_b32 v4, 3, {L}"); a.i(f"v_lshrrev_b32 v5, 4, {L}"); a.i(f"v_and_b32 v6, 7, {L}")
    a.i(f"v_mul_u32_u24 v4, {XROW}, v4")
    a.i(f"v_add_u32 v4, s6, v4")
    for i in range(4):
        a.i(f"v_add_u32 v7, {4*i}, v5"); a.i(f"v_and_b32 v7, 7, v7"); a.i(f"v_xor_b32 v7, v6, v7")
        a.i(f"v_lshl_add_u32 v7, v7, 4, v4")
        a.i(f"v_add_u32 {vXoff[i]}, {8*i*XROW-1024*i}, v7")
    a.i(f"s_mul_i32 s6, {sWV}, {16*WROW}"); a.i(f"s_mul_i32 s7, {sG}, 144"); a.i("s_add_u32 s6, s6, s7")
    a.i(f"s_add_u32 s6, s6, 1152")
    a.i(f"s_movk_i32 s7, {WROW}")
    a.i("v_mov_b32 v9, 0x40000000"); a.i("v_mov_b32 v8, 1008")
    for j in range(5):
        a.i(f"v_add_u32 v4, {64*j}, {L}")
        a.i(f"v_mul_u32_u24 v5, 52429, v4"); a.i(f"v_lshrrev_b32 v5, 20, v5")
        a.i(f"v_mul_u32_u24 v6, 20, v5"); a.i(f"v_sub_u32 v6, v4, v6")
        a.i(f"v_cmp_lt_u32 vcc, 8, v6")
        a.i(f"v_mul_lo_u32 v5, v5, s7")
        a.i(f"v_lshl_add_u32 v5, v6, 4, v5")
        a.i(f"v_cndmask_b32 v7, 0, v8, vcc")
        a.i(f"v_cmp_lt_u32 vcc, 17, v6")
        a.i(f"v_add3_u32 v5, v5, v7, s6")
        comp=1024*j if j<4 else 0
        if comp: a.i(f"v_subrev_u32 v5, {comp}, v5")
        else: a.i("s_nop 0")
        a.i(f"v_cndmask_b32 {vWoff[j]}, v5, v9, vcc")
    a.stamp('p_pre')
    a.wait(lg=0)
    a.stamp('p_karg')
    a.i(f"s_cmp_eq_u32 {sB}, 0")
    a.i("s_cselect_b32 s8, s36, s42");  a.i("s_cselect_b32 s9, s37, s43")
    a.i("s_cselect_b32 s12, s38, s44"); a.i("s_cselect_b32 s13, s39, s45")
    a.i(f"s_mov_b32 s10, {X_BYTES}"); a.i("s_mov_b32 s11, 0x00020000")
    a.i(f"s_mov_b32 s14, {W_BYTES}"); a.i("s_mov_b32 s15, 0x00020000")
    a.i("s_cselect_b32 s16, s40, s46"); a.i("s_cselect_b32 s17, s41, s47")
    a.i(f"s_mov_b32 {sCI}, {sROT}")
    a.i(f"s_mul_i32 {sWoff}, {sCI}, {64*WROW}")
    a.i(f"s_lshl_b32 {sXoff}, {sCI}, 7")

vTA='v[240:241]'
def touch_setup(a, opts):
    L=vLane
    a.i("s_lshr_b32 s4, s2, 3")
    a.i(f"v_cmp_le_u32 vcc, 18, {L}")
    a.i(f"v_mov_b32 v2, {XROW+18*128}")
    a.i(f"v_lshlrev_b32 v3, 7, {L}")
    a.i(f"v_mov_b32 v2, {WROW-18*128}")
    a.i(f"v_cndmask_b32 v2, 0, v2, vcc")
    a.i(f"v_add_u32 v3, v3, v2")
    a.i(f"s_mul_i32 s5, s4, {2*WROW}"); a.i(f"s_add_u32 s5, s5, {9*128}")
    a.i(f"v_add_u32 v3, s5, v3")
    a.i("s_and_b32 s5, s2, 3"); a.i("s_lshl_b32 s5, s5, 9"); a.i("s_lshl_b32 s6, s4, 4"); a.i("s_add_u32 s5, s5, s6")
    a.i(f"v_subrev_u32 v4, 36, {L}"); a.i(f"v_and_b32 v4, 15, v4"); a.i(f"v_add_u32 v4, s5, v4"); a.i(f"v_mul_u32_u24 v4, {XROW}, v4")
    a.i(f"v_cmp_le_u32 vcc, 36, {L}")
    a.i(f"v_mov_b32 v5, s12"); a.i("v_mov_b32 v6, s8"); a.i("v_mov_b32 v7, s13"); a.i("v_mov_b32 v8, s9")
    a.i(f"v_cndmask_b32 v3, v3, v4, vcc")
    a.i(f"v_cndmask_b32 v5, v5, v6, vcc")
    a.i(f"v_cndmask_b32 v7, v7, v8, vcc")
    a.i(f"v_mov_b32 v9, {64*WROW}"); a.i("v_mov_b32 v6, 128")
    a.i(f"v_cndmask_b32 v242, v9, v6, vcc")
    a.i(f"s_add_u32 s5, {sWV}, 1")
    a.i(f"v_mul_lo_u32 v9, v242, s5")
    a.i(f"v_add_u32 v3, v3, v9")
    a.i(f"v_add_co_u32 v240, vcc, v5, v3"); a.i("s_nop 1"); a.i(f"v_addc_co_u32 v241, vcc, 0, v7, vcc")
    a.i(f"v_lshlrev_b32 v242, 2, v242")
def touch_ins(second):
    L=[]
    if second:
        L+= ["v_add_co_u32 v240, vcc, v240, v242", "s_nop 1", "v_addc_co_u32 v241, vcc, 0, v241, vcc"]
    L+= ["s_mov_b64 exec, 0x000fffffffffffff" if False else "s_mov_b64 exec, s[6:7]", (f"global_load_dword v255, {vTA}, off",'touch'), "s_mov_b64 exec, -1"]
    return L
def touch_q(a):
    L=vLane
    a.i("s_lshr_b32 s4, s2, 3")
    a.i(f"v_mul_u32_u24 v2, 7282, {L}"); a.i("v_lshrrev_b32 v2, 16, v2")
    a.i(f"v_mul_u32_u24 v3, 9, v2"); a.i(f"v_sub_u32 v3, {L}, v3")
    a.i(f"v_min_u32 v2, 5, v2")
    a.i(f"s_min_u32 s5, {sWV}, 2"); a.i("s_mul_i32 s5, s5, 6"); a.i("s_mul_i32 s6, s4, 18"); a.i("s_add_u32 s5, s5, s6")
    a.i(f"v_add_u32 v2, s5, v2"); a.i(f"v_mul_u32_u24 v2, {WROW}, v2"); a.i(f"v_lshl_add_u32 v2, v3, 7, v2")
    a.i(f"buffer_load_dword v255, v2, {sW}, 0 offen", 'touch')
def touch_wo(a):
    L=vLane
    a.i(f"s_lshr_b32 {sT0}, s2, 3")
    a.i(f"s_min_u32 {sT1}, {sWV}, 2"); a.i(f"s_mul_i32 {sT1}, {sT1}, 54"); a.i(f"s_mul_i32 {sT0}, {sT0}, 162"); a.i(f"s_add_u32 {sT1}, {sT1}, {sT0}")
    a.i(f"v_min_u32 {vT}, 53, {L}"); a.i(f"v_add_u32 {vT}, {sT1}, {vT}"); a.i(f"v_lshlrev_b32 {vT}, 7, {vT}")
    a.i(f"buffer_load_dword v255, {vT}, {sWO}, 0 offen", 'touch')

ORDER_MODE=['own']
GOPT={}
def next_chunk_ins(step=None):
    if ORDER_MODE[0]=='pair':
        tail=[f"s_mul_i32 {sWoff}, {sCI}, {64*WROW}", f"s_lshl_b32 {sXoff}, {sCI}, 7"]
        if step==1: return [f"s_mov_b32 {sCI}, {sPAIR}"]+tail
        return [f"s_add_u32 {sCI}, {sB2}, {sIDX}", f"s_sub_u32 {sT3}, {sCI}, 9", f"s_cmp_ge_u32 {sCI}, 9", f"s_cselect_b32 {sCI}, {sT3}, {sCI}",
                f"s_add_u32 {sIDX}, {sIDX}, 1", f"s_cmp_eq_u32 {sIDX}, 7", f"s_cselect_b32 {sIDX}, 0, {sIDX}"]+tail
    if ORDER_MODE[0]=='own':
        return [f"s_add_u32 {sCI}, {sROT}, {sIDX}", f"s_add_u32 {sCI}, {sCI}, 1", f"s_sub_u32 {sT3}, {sCI}, 9", f"s_cmp_ge_u32 {sCI}, 9",
                f"s_cselect_b32 {sCI}, {sT3}, {sCI}", f"s_add_u32 {sIDX}, {sIDX}, 1", f"s_and_b32 {sIDX}, {sIDX}, 7",
                f"s_mul_i32 {sWoff}, {sCI}, {64*WROW}", f"s_lshl_b32 {sXoff}, {sCI}, 7"]
    return [f"s_add_u32 {sCI}, {sCI}, 1", f"s_cmp_eq_u32 {sCI}, 9", f"s_cselect_b32 {sCI}, 0, {sCI}",
            f"s_mul_i32 {sWoff}, {sCI}, {64*WROW}", f"s_lshl_b32 {sXoff}, {sCI}, 7"]

def dma_chunk_groups(slot, n):
    base=slot*SLOT; tag=f'ch{n}'; Gs=[]
    for i in range(4):
        pre=[f"s_lshl_b32 {sM0}, {sWV}, 12", f"s_add_u32 m0, {sM0}, {base+XOFF}", "s_nop 0"] if i==0 else []
        Gs.append(pre+[(f"buffer_load_dwordx4 {vXoff[i]}, {sX}, {sXoff} offen offset:{1024*i} lds", tag)])
    for j in range(4):
        pre=[f"s_mul_i32 {sM0}, {sWV}, 5120", f"s_add_u32 m0, {sM0}, {base}", "s_nop 0"] if j==0 else []
        Gs.append(pre+[(f"buffer_load_dwordx4 {vWoff[j]}, {sW}, {sWoff} offen offset:{1024*j} lds", tag)])
    Gs.append([f"s_add_u32 m0, {sM0}, {base+4096}", "s_nop 0", (f"buffer_load_dwordx4 {vWoff[4]}, {sW}, {sWoff} offen lds", tag)]+next_chunk_ins(n+1))
    return Gs

def dma_wq_groups(n):
    reg = SLOT*(1+n//3) + (n%3)*QCH
    Gs=[]
    for e in range(3):
        pre=[f"s_mul_i32 {sM0}, {sWV}, 3072", f"s_add_u32 m0, {sM0}, {reg}", "s_nop 0"] if e==0 else []
        post=next_chunk_ins(n+1) if e==2 else []
        Gs.append(pre+[(f"buffer_load_dwordx4 {vQoff[e]}, {sW}, {sWoff} offen offset:{1024*e} lds", f'wq{n}')]+post)
    return Gs

def setupA(a, opts):
    L=vLane
    a.c("---- setup A")
    a.i(f"v_bfe_u32 v4, {L}, 2, 2"); a.i(f"v_lshrrev_b32 v5, 5, {L}")
    a.i(f"v_lshl_add_u32 v4, v5, 3, v4")
    a.i(f"v_bfe_u32 v6, {L}, 4, 1"); a.i(f"v_and_b32 v7, 3, {L}")
    a.i(f"v_mul_u32_u24 v8, {WPITCH}, v4")
    a.i(f"v_lshlrev_b32 v9, 5, v6"); a.i(f"v_lshl_add_u32 v9, v7, 3, v9")
    a.i(f"v_add_u32 {vWr[0]}, v8, v9"); a.i(f"v_add_u32 {vWr[1]}, {2*SLOT}, {vWr[0]}")
    a.i(f"v_mul_u32_u24 v2, {QPITCH}, v4")
    a.i(f"v_add3_u32 {vQr}, v2, v9, 0"); a.i(f"v_add_u32 {vQr}, {SLOT}, {vQr}")
    a.i(f"v_lshl_add_u32 v9, v6, 2, v7")
    a.i(f"v_lshlrev_b32 v2, 3, v9"); a.i(f"v_add_u32 v2, 128, v2"); a.i(f"v_add_u32 v3, 128, v2")
    a.i(f"v_cmp_lt_u32 vcc, 1, v9"); a.i("s_nop 1")
    a.i(f"v_cndmask_b32 v2, v2, v3, vcc")
    a.i(f"v_add_u32 {vMx[0]}, v8, v2"); a.i(f"v_add_u32 {vMx[1]}, {2*SLOT}, {vMx[0]}")
    a.i(f"v_and_b32 v2, 31, {L}"); a.i(f"v_bfe_u32 v3, {L}, 1, 3"); a.i(f"v_xor_b32 v3, v3, v5")
    a.i(f"v_lshlrev_b32 v3, 4, v3"); a.i(f"v_lshl_add_u32 v3, v2, 7, v3")
    a.i(f"s_lshl_b32 s6, {sWV}, 12"); a.i(f"s_add_u32 s6, s6, {XOFF}")
    a.i(f"v_add_u32 v3, s6, v3")
    for t in range(4):
        a.i(f"v_xor_b32 {vXr[0][t]}, {32*t}, v3"); a.i(f"v_add_u32 {vXr[1][t]}, {2*SLOT}, {vXr[0][t]}")

PADN=[0]
def pagepad(a, opts, where):
    if where in str(opts.get('pads','')).split('+'):
        PADN[0]+=1
        a.i(f"s_branch L_pad{PADN[0]}")
        a.raw(".fill 1024, 4, 0xbf800000")
        a.label(f"L_pad{PADN[0]}")

class Rec:
    def __init__(self): self.l=[]
    def i(self, t, tag=None, cond=False): self.l.append((t,tag,cond) if tag or cond else t)
    def c(self, s): pass

def setupB0(a, opts):
    a.i("s_mov_b32 s20, s48"); a.i("s_mov_b32 s21, s49"); a.i(f"s_mov_b32 s22, {OUT_BYTES}"); a.i("s_mov_b32 s23, 0x00020000")
    a.i("s_mov_b32 s24, s52"); a.i("s_mov_b32 s25, s53"); a.i(f"s_mov_b32 s26, {WS_BYTES}"); a.i("s_mov_b32 s27, 0x00020000")
    a.i("s_mov_b32 s28, s50"); a.i("s_mov_b32 s29, s51"); a.i("s_mov_b32 s30, 256"); a.i("s_mov_b32 s31, 0x00020000")
    a.i(f"s_mov_b32 s18, {WO_BYTES}"); a.i("s_mov_b32 s19, 0x00020000")
    a.i(f"s_or_b32 s3, s2, {sWV}"); a.i("s_cmp_lg_u32 s3, 0"); a.i("s_cbranch_scc1 L_nononce")
    a.i("s_memrealtime s[4:5]"); a.i("s_waitcnt lgkmcnt(0)"); a.i("s_or_b32 s4, s4, 1")
    a.i("v_mov_b32 v2, s4"); a.i("v_mov_b32 v3, s5"); a.i("v_mov_b32 v4, 0")
    a.i("s_mov_b64 exec, 1")
    a.i(f"buffer_store_dwordx2 v[2:3], v4, {sDBG}, 0 offen sc1", cond=True)
    a.i("s_mov_b64 exec, -1")
    a.label("L_nononce"); a.lg_clear()

def setupB(a, opts):
    L=vLane
    a.c("---- setup B")
    a.i("s_mov_b32 s54, 0x3ffff"); a.i("s_mov_b32 s55, 0x3ffff"); a.i("s_not_b64 s[52:53], s[54:55]"); a.i("s_mov_b32 s56, -1"); a.i("s_mov_b32 s57, 0")
    a.i(f"s_mov_b32 {sSC}, {f2u(CSCALE):#x}")
    a.i(f"s_getreg_b32 {sXCC}, hwreg(HW_REG_XCC_ID, 0, 4)")
    a.i(f"s_mul_i32 s6, {sWV}, {16*WROW}"); a.i(f"s_mul_i32 s7, {sG}, 144"); a.i("s_add_u32 s6, s6, s7")
    a.i(f"s_movk_i32 s7, {WROW}"); a.i("v_mov_b32 v9, 0x40000000")
    for e in range(3):
        a.i(f"v_add_u32 v4, {64*e}, {L}")
        a.i(f"v_mul_u32_u24 v5, 21846, v4"); a.i(f"v_lshrrev_b32 v5, 18, v5")
        a.i(f"v_mul_u32_u24 v6, 12, v5"); a.i(f"v_sub_u32 v6, v4, v6")
        a.i(f"v_cmp_lt_u32 vcc, 8, v6")
        a.i(f"v_mul_lo_u32 v5, v5, s7"); a.i(f"v_lshl_add_u32 v5, v6, 4, v5")
        a.i(f"v_add_u32 v5, s6, v5"); a.i(f"v_subrev_u32 v5, {1024*e}, v5")
        a.i(f"v_cndmask_b32 {vQoff[e]}, v5, v9, vcc")
    a.i(f"v_and_b32 v2, 31, {L}"); a.i(f"v_lshrrev_b32 v5, 5, {L}")
    a.i(f"s_mul_i32 s6, {sWV}, {KBLK}"); a.i(f"s_add_u32 s7, s6, {KB0}"); a.i(f"s_cmp_eq_u32 {sWV}, 3"); a.i(f"s_cselect_b32 s7, {KB3}, s7")
    a.i(f"v_mul_u32_u24 v3, {KP}, v2"); a.i(f"v_lshl_add_u32 v3, v5, 3, v3")
    a.i(f"v_add_u32 {vKw}, s7, v3"); a.i(f"s_add_u32 s6, s6, {QBASE}"); a.i(f"v_add_u32 {vQw}, s6, v3")
    a.i(f"s_mul_i32 s6, {sWV}, {VB}"); a.i(f"s_add_u32 s6, s6, {VBASE}")
    a.i(f"v_mul_u32_u24 v3, {VR}, v5"); a.i(f"v_lshl_add_u32 v3, v2, 4, v3"); a.i(f"v_add_u32 {vVw}, s6, v3")
    a.i(f"v_bfe_u32 v3, {L}, 2, 1"); a.i(f"v_mul_u32_u24 v3, {VJ}, v3"); a.i(f"v_bfe_u32 v4, {L}, 1, 1"); a.i(f"v_mul_u32_u24 v4, {VR}, v4")
    a.i(f"v_add_u32 v3, v3, v4"); a.i(f"v_and_b32 v4, 1, {L}"); a.i(f"v_lshl_add_u32 v3, v4, 4, v3"); a.i(f"v_add_u32 v3, {72*16}, v3")
    a.i(f"v_add_u32 {vCw}, s6, v3")
    a.i(f"v_lshrrev_b32 v3, 4, v2"); a.i(f"v_mul_u32_u24 v3, {VJ}, v3"); a.i(f"v_bfe_u32 v4, v2, 2, 1")
    a.i(f"v_mul_u32_u24 v4, {VR}, v4"); a.i(f"v_add_u32 v3, v3, v4"); a.i(f"v_and_b32 v4, 3, v2")
    a.i(f"v_bfe_u32 v6, v2, 3, 1"); a.i(f"v_lshl_add_u32 v4, v6, 2, v4"); a.i(f"v_lshl_add_u32 v3, v4, 1, v3")
    a.i(f"v_lshl_add_u32 v3, v5, 6, v3"); a.i(f"v_add_u32 v3, {64*16}, v3"); a.i(f"v_add_u32 {vVt}, s6, v3")
    a.i(f"s_mul_i32 s6, {sWV}, 36"); a.i(f"v_mul_u32_u24 v3, {KP}, v2"); a.i(f"v_add_u32 v3, s6, v3")
    a.i(f"v_lshl_add_u32 {vKr}, v5, 4, v3")
    a.i(f"v_add_u32 {vKl}, 32, v3")
    a.i(f"s_mul_i32 s6, {sWV}, 18"); a.i(f"v_add_u32 v3, s6, v2"); a.i(f"v_and_b32 v4, 27, v2")
    a.i(f"v_cmp_eq_u32 vcc, 18, v4"); a.i(f"v_mov_b32 v4, 73"); a.i(f"v_mov_b32 v6, 72"); a.i(f"v_cndmask_b32 v4, v4, v6, vcc")
    a.i(f"v_cmp_gt_u32 vcc, 18, v2"); a.i("s_nop 1"); a.i(f"v_cndmask_b32 v3, v4, v3, vcc")
    a.i(f"v_lshlrev_b32 v3, 4, v3"); a.i(f"v_mul_u32_u24 v4, {VR}, v5"); a.i(f"v_add_u32 {vVr}, v3, v4")
    a.i(f"v_lshlrev_b32 {vPk}, 4, {L}"); a.i(f"v_lshlrev_b32 {vPl}, 2, v2"); a.i(f"v_add_u32 {vPl}, 1024, {vPl}")
    a.i(f"v_mul_u32_u24 v3, 288, v5"); a.i(f"v_lshl_add_u32 v3, v2, 4, v3"); a.i(f"v_add_u32 {vPv}, 1152, v3")
    a.i(f"s_lshl_b32 s6, {sWV}, 2"); a.i(f"v_lshrrev_b32 v3, 3, v2"); a.i(f"v_mul_u32_u24 v3, {OUTROW}, v3")
    a.i(f"v_and_b32 v4, 7, v2"); a.i(f"v_lshl_add_u32 v3, v4, 4, v3"); a.i(f"v_add_u32 {vOl}, s6, v3")
    a.i(f"v_and_b32 v3, 27, v2"); a.i(f"v_cmp_eq_u32 vcc, 18, v3"); a.i(f"v_mov_b32 v4, 0x3f803f80"); a.i("s_nop 0")
    a.i(f"v_cndmask_b32 {vVC}, 0, v4, vcc")
    a.i(f"s_lshl_b32 s6, {sB}, 3"); a.i(f"s_add_u32 s6, s6, {sG}"); a.i(f"s_lshl_b32 s6, s6, 4"); a.i(f"s_add_u32 s6, s6, {sC}")
    a.i(f"s_mul_i32 {sKVme}, s6, {SLOT}"); a.i(f"s_mul_i32 s7, {sWV}, 2304"); a.i(f"s_add_u32 {sKVme}, {sKVme}, s7")
    a.i(f"s_sub_u32 {sKV1}, {sKVme}, {SLOT}"); a.i(f"s_sub_u32 {sKV2}, {sKVme}, {2*SLOT}")
    a.i(f"s_cmp_ge_u32 {sC}, 1"); a.i(f"s_cselect_b32 {sKV1}, {sKV1}, 0x70000000")
    a.i(f"s_cmp_ge_u32 {sC}, 2"); a.i(f"s_cselect_b32 {sKV2}, {sKV2}, 0x70000000")
    a.i(f"s_lshl_b32 s6, s6, 2"); a.i(f"s_add_u32 s6, s6, {sWV}"); a.i(f"s_lshl_b32 s6, s6, 7")
    a.i(f"s_add_u32 {sFKV}, s6, {WS_FKV}")
    a.i(f"s_cmp_ge_u32 {sC}, 1"); a.i(f"s_cselect_b32 s6, -1, 0"); a.i(f"s_cmp_ge_u32 {sC}, 2"); a.i(f"s_cselect_b32 s7, -1, 0")
    a.i(f"v_and_b32 v2, s6, {vVC}"); a.i(f"v_and_b32 v3, s7, {vVC}"); a.i(f"v_mov_b32 v4, 0x3f803f80")
    a.i(f"v_and_b32 v6, s7, v4"); a.i(f"v_and_b32 v4, s6, v4")
    for hb in range(8):
        base=HALO+14*hb
        a.i(f"v_accvgpr_write_b32 a{base+5}, {'v6' if hb<4 else 'v4'}")
        for r in range(8): a.i(f"v_accvgpr_write_b32 a{base+6+r}, {'v3' if hb<4 else 'v2'}")
    a.i(f"v_and_b32 v2, 31, {L}"); a.i(f"v_lshlrev_b32 v3, 2, v5"); a.i(f"v_sub_u32 v2, v2, v3")
    a.i(f"v_mov_b32 v6, 0xffff"); a.i(f"v_mov_b32 v7, 0xffff0000")
    for u in range(8):
        r0=2*u; k0=(r0&3)+8*(r0>>2)
        a.i(f"v_cmp_le_i32 vcc, {k0}, v2"); a.i(f"v_cmp_le_i32 s[4:5], {k0+1}, v2"); a.i("s_nop 0")
        a.i(f"v_cndmask_b32 v3, 0, v6, vcc"); a.i(f"v_cndmask_b32 v4, 0, v7, s[4:5]")
        a.i(f"v_or_b32 v{MASKD+u}, v3, v4"); a.i(f"v_not_b32 v{MASKF+u}, v{MASKD+u}")
    a.i(f"s_lshl_b32 s6, {sC}, 7"); a.i(f"s_lshl_b32 s7, {sG}, 2"); a.i("s_add_u32 s6, s6, s7")
    a.i(f"s_mul_i32 s6, s6, {OUTROW}"); a.i(f"s_mul_i32 s7, {sB}, 1152"); a.i("s_add_u32 s6, s6, s7")
    a.i(f"s_add_u32 {sOL}, s6, 1024"); a.i(f"s_mul_i32 s7, {sWV}, {OUTROW}"); a.i(f"s_add_u32 {sOM}, s6, s7")
    a.i(f"s_lshr_b32 {sRH}, {sG}, 2"); a.i(f"s_and_b32 {sNQ}, {sG}, 3")
    a.i(f"s_lshl_b32 s7, {sRH}, 1"); a.i(f"s_lshr_b32 s3, {sWV}, 1"); a.i("s_add_u32 s3, s3, s7"); a.i("s_lshl_b32 s3, s3, 5")
    a.i(f"s_lshl_b32 s7, {sC}, 7"); a.i("s_add_u32 s3, s3, s7"); a.i(f"s_mul_i32 {sPOM}, s3, {OUTROW}")
    a.i(f"s_mul_i32 s7, {sB}, 1152"); a.i(f"s_add_u32 {sPOM}, {sPOM}, s7"); a.i(f"s_add_u32 {sPOL}, {sPOM}, 1024")
    a.i(f"s_lshl_b32 s6, {sC}, 7"); a.i(f"s_lshl_b32 s7, {sRH}, 6"); a.i("s_add_u32 s6, s6, s7")
    a.i(f"s_lshl_b32 s7, {sWV}, 4"); a.i("s_add_u32 s6, s6, s7"); a.i(f"s_mul_i32 {sOUTB}, s6, {OUTROW}")
    a.i(f"s_mul_i32 s7, {sB}, 1152"); a.i(f"s_add_u32 {sOUTB}, {sOUTB}, s7")
    a.i(f"s_mul_i32 s7, {sNQ}, 288"); a.i(f"s_add_u32 {sOUTB}, {sOUTB}, s7")
    a.i(f"s_lshl_b32 s6, {sB}, 4"); a.i(f"s_add_u32 s6, s6, {sC}"); a.i(f"s_lshl_b32 {sFO}, s6, 12")
    a.i(f"s_add_u32 {sFO}, {sFO}, {WS_FO}")
    a.i(f"v_mov_b32 v252, {f2u(2.0**-40):#x}"); a.i(f"v_mov_b32 v253, {f2u(2.0**40):#x}")
    a.i(f"s_mov_b64 {sBAD}, 0")

def wq_reads(tau):
    n,t=divmod(tau,4); b=tau%2
    off=(n%3)*QCH+16*QPITCH*t
    return [[(f"ds_read_b64_tr_b16 {QFh(b,f,h)}, {vQr} offset:{off+4*QPITCH*h+64*f}", f'q{tau}_{f}') for h in range(2)] for f in range(3)]

def drain_side(a, side, n):
    k=0; last=''
    while side and (k<n or last.startswith('s_cmp') or (side[0] if isinstance(side[0],str) else side[0][0]).startswith('s_cselect')):
        x=side.pop(0)
        if isinstance(x,tuple): a.i(*x); last=x[0]
        else: a.i(x); last=x
        k+=1

def phase1a(a, opts, pend):
    a.c("---- phase 1a")
    def reads(tau):
        n,t=divmod(tau,4); slot=n%4; hi=slot>=2; base=(slot%2)*SLOT; b=tau%2
        R=[[(f"ds_read_b128 {XF(tau)}, {vXr[hi][t]} offset:{base}", f'x{tau}')] +
           [(f"ds_read_b64_tr_b16 {WFh(b,0,h)}, {vWr[hi]} offset:{base+5120*t+1280*h}", f'w{tau}_0') for h in range(2)]]
        for f,co in ((1,64),(2,144),(3,208)):
            R.append([(f"ds_read_b64_tr_b16 {WFh(b,f,h)}, {vWr[hi]} offset:{base+5120*t+1280*h+co}", f'w{tau}_{f}') for h in range(2)])
        R.append([(f"ds_read_b64_tr_b16 {WFh(b,4,h)}, {vMx[hi]} offset:{base+5120*t+1280*h}", f'w{tau}_4') for h in range(2)])
        return R
    a.stamp('setup_done')
    a.wait(vm='ch0')
    if opts.get('ch0v',0):
        a.i(f"v_lshlrev_b32 v2, 4, {vLane}")
        a.i(f"s_lshl_b32 {sT0}, {sWV}, 12"); a.i(f"s_add_u32 {sT0}, {sT0}, {XOFF}"); a.i(f"v_add_u32 v3, {sT0}, v2")
        a.i(f"s_mul_i32 {sT0}, {sWV}, 5120"); a.i(f"v_add_u32 v2, {sT0}, v2")
        for i in range(4): a.i(f"ds_write_b128 v3, v[{52+4*i}:{55+4*i}] offset:{1024*i}", 'c0w')
        for j in range(5): a.i(f"ds_write_b128 v2, v[{68+4*j}:{71+4*j}] offset:{1024*j}", 'c0w')
        a.wait(lg=0)
    a.i("s_barrier")
    a.stamp('ch0_landed')
    if opts.get('idle_1a'): a.i(f"s_sleep {opts['idle_1a']}")
    for grp in reads(0): a.emit(grp)
    names=['K0','K1','V0','V1','MX']
    side=opts.get('_side',[])
    every=opts.get('dma_every',2)
    slotcnt=0
    for tau in range(36):
        n,t=divmod(tau,4); b=tau%2
        if t==0: a.stamp(f'c{n}')
        if t==0: pagepad(a,opts,f'c{n}')
        if t==3:
            a.wait(vm=f'ch{n+1}' if n<8 else 'wq0')
            a.i("s_barrier")
            if n<=5:
                pend += dma_chunk_groups((n+3)%4, n+3)
                if (n==5 and opts.get('wotouch',3)==1) or (n==0 and opts.get('wotouch',3)==3) or (n==2 and opts.get('wotouch',3)==4):
                    rec=Rec(); touch_wo(rec); pend.append(rec.l)
            elif n==6:
                pend.append([f"s_mov_b32 {sCI}, {sROT}", f"s_mul_i32 {sWoff}, {sCI}, {64*WROW}", f"s_mov_b32 {sIDX}, {sOFF}"])
                for q in range(3): pend += dma_wq_groups(q)
            elif n==7:
                for q in range(3,6): pend += dma_wq_groups(q)
            elif n==8:
                for q in range(6,9): pend += dma_wq_groups(q)
        R = reads(tau+1) if tau<35 else wq_reads(0)
        for m,nm in enumerate(names):
            a.wait(lg=[f'w{tau}_{m}']+([f'x{tau}'] if m==0 else []))
            acc=rng('v',ACC[nm],16); c='0' if tau==0 else acc
            if nm in ('V0','V1'): a.i(f"v_mfma_f32_32x32x16_bf16 {acc}, {XF(tau)}, {WF(b,m)}, {c}")
            else: a.i(f"v_mfma_f32_32x32x16_bf16 {acc}, {WF(b,m)}, {XF(tau)}, {c}")
            if m<len(R): a.emit(R[m])
            slotcnt+=1
            if pend and (slotcnt%every==0 or len(pend)>9): a.emit(pend.pop(0))
            elif side: drain_side(a, side, opts.get('side_n',5))
        if tau==30:
            a.i(f"v_mov_b32 {vT}, 0")
            a.i(f"buffer_load_dwordx2 {vNON}, {vT}, {sDBG}, 0 offen sc1", tag='nonce')
    assert not side, len(side)
    return pend

def epi1a_list():
    A=[]; T=76
    for ti,nm in enumerate(('K0','K1')):
        base=ACC[nm]
        for i in range(4):
            t0=T+2*(i%2)
            A+= [f"v_cvt_pk_bf16_f32 v{t0}, v{base+4*i}, v{base+4*i+1}", f"v_cvt_pk_bf16_f32 v{t0+1}, v{base+4*i+2}, v{base+4*i+3}",
                 (f"ds_write2_b32 {vKw}, v{t0}, v{t0+1} offset0:{16*ti+4*i} offset1:{16*ti+4*i+1}",'e1w')]
    for ti,nm in enumerate(('V0','V1')):
        base=ACC[nm]
        for j in range(2):
            t0=T+4+4*j
            for u in range(4): A.append(f"v_cvt_pk_bf16_f32 v{t0+u}, v{base+8*j+2*u}, v{base+8*j+2*u+1}")
            A.append((f"ds_write_b128 {vVw}, v[{t0}:{t0+3}] offset:{VJ*j+512*ti}",'e1w'))
    base=ACC['MX']; t0=T+12
    A+= [f"v_cvt_pk_bf16_f32 v{t0}, v{base}, v{base+1}", f"v_cvt_pk_bf16_f32 v{t0+1}, v{base+2}, v{base+3}",
         (f"ds_write2_b32 {vKw}, v{t0}, v{t0+1} offset0:32 offset1:33",'e1w'),
         f"v_cvt_pk_bf16_f32 v{t0+2}, v{base+4}, v{base+5}", f"v_cvt_pk_bf16_f32 v{t0+3}, v{base+6}, v{base+7}",
         (f"ds_write_b16 {vVt}, v{t0+2}",'e1w'), (f"ds_write_b16_d16_hi {vVt}, v{t0+2} offset:16",'e1w'),
         (f"ds_write_b16 {vVt}, v{t0+3} offset:32",'e1w'), (f"ds_write_b16_d16_hi {vVt}, v{t0+3} offset:48",'e1w')]
    A+= [f"v_and_b32 v{t0}, 1, {vLane}", f"v_cmp_eq_u32 vcc, 0, v{t0}", f"v_mov_b32 v{t0+1}, 0x3f803f80", "s_nop 0",
         f"v_cndmask_b32 v{t0}, 0, v{t0+1}, vcc", f"v_mov_b32 v{t0+1}, v{t0}", f"v_mov_b32 v{t0+2}, v{t0}", f"v_mov_b32 v{t0+3}, v{t0}",
         "s_mov_b64 exec, 0xff", (f"ds_write_b128 {vCw}, v[{t0}:{t0+3}]",'e1w'), "s_mov_b64 exec, -1"]
    return A

def own_presets():
    L=[f"v_mov_b32 v91, 0x3f803f80"]
    for bt in range(4): L.append(f"v_mov_b32 v{OWN+14*bt+5}, v91")
    return L
def own_reads():
    L=[]
    for bt in range(4):
        base=OWN+14*bt
        kb = KB0+KBLK*bt if bt<3 else KB3
        L.append(f"v_add_u32 v88, {kb}, {vKr}"); L.append(f"v_add_u32 v89, {kb}, {vKl}")
        L.append((f"ds_read2_b32 v[{base}:{base+1}], v88 offset0:0 offset1:1",'own'))
        L.append((f"ds_read2_b32 v[{base+2}:{base+3}], v88 offset0:2 offset1:3",'own'))
        L.append((f"ds_read_b32 v{base+4}, v89",'own'))
    for bt in range(4):
        base=OWN+14*bt
        for j in range(2): L.append((f"ds_read_b128 v[{base+6+4*j}:{base+9+4*j}], {vVr} offset:{VB*bt+VJ*j}",'own'))
    return L
def own_store_groups(mod='sc1'):
    Gs=[]
    for bt in range(4):
        base=OWN+14*bt; tag='pubA' if bt<2 else 'pubB'
        Gs.append([f"s_add_u32 {sT0}, {sKVme}, {9216*bt}", (f"buffer_store_dwordx4 v[{base}:{base+3}], {vPk}, {sWS}, {sT0} offen {mod}",tag)])
        Gs.append([f"s_add_u32 {sT0}, {sKVme}, {9216*bt}", f"s_mov_b64 exec, {sLO}", (f"buffer_store_dword v{base+4}, {vPl}, {sWS}, {sT0} offen {mod}",tag), "s_mov_b64 exec, -1"])
        for j in range(2):
            Gs.append([f"s_add_u32 {sT0}, {sKVme}, {9216*bt}", f"s_mov_b64 exec, {sVM}", (f"buffer_store_dwordx4 v[{base+6+4*j}:{base+9+4*j}], {vPv}, {sWS}, {sT0} offen offset:{576*j} {mod}",tag), "s_mov_b64 exec, -1"])
    return Gs

def flag_store_ins(cnt):
    return [f"s_add_u32 {sT1}, {sNONh}, {cnt}", f"v_mov_b32 v2, {sNONl}", f"v_mov_b32 v3, {sT1}", f"v_mov_b32 v4, 0",
            "s_mov_b64 exec, 1", (f"buffer_store_dwordx2 v[2:3], v4, {sWS}, {sFKV} offen sc1", f'kvflag{cnt}'), "s_mov_b64 exec, -1"]

def xt_base():
    return [f"s_lshl_b32 {sT0}, {sB}, 4", f"s_add_u32 {sT0}, {sT0}, {sC}", f"s_lshl_b32 {sT0}, {sT0}, 10", f"s_add_u32 {sT0}, {sT0}, {WS_XT}"]
def xt_store():
    return xt_base()+[f"s_add_u32 {sLFH}, {sXCC}, 1", f"s_lshl_b32 {sLFH}, {sLFH}, 8", f"s_add_u32 {sLFH}, {sLFH}, {sNONh}",
            f"s_lshl_b32 {sT1}, {sG}, 7", f"s_add_u32 {sT0}, {sT0}, {sT1}",
            f"v_mov_b32 v2, {sNONl}", f"v_mov_b32 v3, {sLFH}", f"v_mov_b32 v4, 0",
            "s_mov_b64 exec, 1", (f"buffer_store_dwordx2 v[2:3], v4, {sWS}, {sT0} offen sc1",'xt'), "s_mov_b64 exec, -1"]
def xt_load():
    return xt_base()+[f"v_lshlrev_b32 v2, 7, {vLane}", "s_mov_b64 exec, 0xff",
            (f"buffer_load_dwordx2 v[8:9], v2, {sWS}, {sT0} offen sc1",'xtl'), "s_mov_b64 exec, -1"]
def xt_check(a):
    a.wait(vm='xtl')
    a.i("s_mov_b64 exec, 0xff")
    a.i(f"v_cmp_eq_u32 vcc, {sNONl}, v8"); a.i(f"v_cmp_eq_u32 s[4:5], {sLFH}, v9")
    a.i("s_mov_b64 exec, -1")
    a.i("s_and_b64 s[4:5], s[4:5], vcc"); a.i("s_and_b32 s4, s4, 0xff"); a.i("s_cmp_eq_u32 s4, 0xff")
    a.i(f"s_cselect_b32 {sLOC}, 1, 0")
    if GOPT.get('force_remote'): a.i(f"s_mov_b32 {sLOC}, 0")

def wo_group_for(kbase):
    setup=[f"s_add_u32 {sT1}, {sWV}, {kbase}", f"s_mul_i32 {sT2}, {sT1}, 41472", f"s_mul_i32 {sT3}, {sT1}, 9216"]
    return wo8_groups(setup)

def phase1b(a, pend, opts):
    a.c("---- phase 1b")
    if opts.get('idle_1b'): a.i(f"s_sleep {opts['idle_1b']}")
    a.stamp('1a_end')
    q=[]; stores=[]; wo=[]
    E2=opts.get('e2',4)
    FAST=opts.get('fastA',1)
    sched={}
    tt=E2+1
    for g in range(16):
        sched.setdefault(tt,[]).append(g)
        tt += 1 if ((g<7 and FAST) or opts.get('fastB',0)) else 2
    FLAGA=opts.get('flagA',24)
    woaddr=[f"v_mov_b32 {d_}, {s_}" for d_,s_ in zip(vWOm+vWOl+vWOt,vWOtmp)]+wo8_setup()
    for tau in range(36):
        n,t=divmod(tau,4); b=tau%2
        a.stamp(f'b{tau}_')
        if tau==1:
            a.i("s_barrier"); q+=epi1a_list()
        if tau==E2:
            a.drain(q,1000); a.wait(lg=0); a.i("s_barrier")
            a.emit(own_reads())
        if tau==E2+1:
            a.wait(lg='own')
            a.stamp('pub_start')
            stores=own_store_groups()
            q+=woaddr
        if tau==E2+3:
            a.i("s_barrier")
        if tau==E2+6: wo+=wo_group_for(0); q+=own_presets()
        if tau==15: wo+=wo_group_for(4)
        if tau==27: wo+=wo_group_for(8)
        if tau==FLAGA:
            a.wait(vm='pubA'); get_nonce(a); a.emit(flag_store_ins(2)); a.stamp('flagA')
            if opts.get('olocal'): a.emit(xt_store())
        if t==3 and tau<35:
            a.wait(vm=f'wq{n+1}')
            a.i("s_barrier")
            if (n+1)%3==0: a.i(f"v_add_u32 {vQr}, {SLOT}, {vQr}")
        R = wq_reads(tau+1) if tau<35 else []
        for m,nm in enumerate(('Q0','Q1','Q2')):
            a.wait(lg=[f'q{tau}_{m}'])
            acc=rng('v',ACC[nm],16); c='0' if tau==0 else acc
            a.i(f"v_mfma_f32_32x32x16_bf16 {acc}, {QF(b,m)}, {XF(tau)}, {c}")
            if m<len(R): a.emit(R[m])
            if m==0 and tau in sched:
                for g in sched[tau]:
                    if opts.get('nopub'):
                        for x in stores[g]:
                            if isinstance(x,tuple): a.vm.append(x[1])
                    else: a.emit(stores[g])
            elif q and tau<E2: a.drain(q,opts.get('epi_rate',7))
            elif pend: a.emit(pend.pop(0))
            elif q: drain_side2(a,q,4)
            elif opts.get('nowo1b',1): pass
            elif wo and m==2: a.emit(wo.pop(0))
            elif wo and m==1 and opts.get('wo2',1): a.emit(wo.pop(0))
    assert not pend and not q, (len(pend),len(q))
    for tt_ in sorted(sched):
        if tt_>35:
            for g in sched[tt_]: a.emit(stores[g])
    opts['_wo_left']=wo
    a.stamp('1b_end')
    a.emit(kv_flag_load(0))
    a.nop(14)
    T=76
    a.i(f"v_mov_b32 v90, {sSC}"); a.i(f"v_mov_b32 v91, {sSC}")
    for ti,nm in enumerate(('Q0','Q1','Q2')):
        base=ACC[nm]; ni=4 if ti<2 else 1
        for r in range(0,4*ni,2): a.i(f"v_pk_mul_f32 v[{base+r}:{base+r+1}], v[90:91], v[{base+r}:{base+r+1}]")
    for ti,nm in enumerate(('Q0','Q1','Q2')):
        base=ACC[nm]; ni=4 if ti<2 else 1
        for i in range(ni):
            t0=T+2*((ti*4+i)%8)
            a.i(f"v_cvt_pk_bf16_f32 v{t0}, v{base+4*i}, v{base+4*i+1}"); a.i(f"v_cvt_pk_bf16_f32 v{t0+1}, v{base+4*i+2}, v{base+4*i+3}")
            a.i(f"ds_write2_b32 {vQw}, v{t0}, v{t0+1} offset0:{16*ti+4*i} offset1:{16*ti+4*i+1}",'e2w')
    a.i(f"v_mov_b32 {vT}, 0")
    for i in range(4):
        for r in range(4,8): a.i(f"v_accvgpr_write_b32 a{8*i+r}, {vT}")
    a.wait(lg=0); a.i("s_barrier")
    for i in range(4):
        a.i(f"v_add_u32 v88, {QBASE+KBLK*i}, {vKr}")
        a.i(f"ds_read2_b32 a[{8*i}:{8*i+1}], v88 offset0:0 offset1:1",'qf')
        a.i(f"ds_read2_b32 a[{8*i+2}:{8*i+3}], v88 offset0:2 offset1:3",'qf')
    a.i(f"s_mov_b64 exec, {sLO}")
    for i in range(4):
        a.i(f"v_add_u32 v89, {QBASE+KBLK*i}, {vKl}")
        a.i(f"ds_read_b32 a{8*i+4}, v89",'qf')
    a.i("s_mov_b64 exec, -1")
    a.wait(lg='qf')
    a.i("s_barrier")
    a.stamp('q_ready')

def drain_side2(a, q, n):
    k=0; inexec=False; last=''
    while q and (k<n or inexec or last.startswith('s_cmp') or (q[0] if isinstance(q[0],str) else q[0][0]).startswith('s_cselect')):
        x=q.pop(0)
        txt=x[0] if isinstance(x,tuple) else x
        if txt.startswith('s_mov_b64 exec'): inexec = not txt.endswith('-1')
        if isinstance(x,tuple): a.i(*x)
        else: a.i(x)
        last=txt; k+=1

vFL='v[6:7]'; vFA='v5'
def kv_flag_load(rnd):
    L=[]
    if rnd==0:
        L+= [f"s_cmp_ge_u32 {sC}, 2", f"s_cselect_b32 {sT1}, 2, 1", f"s_lshl_b32 {sT1}, {sT1}, 9",
             f"s_sub_u32 {sT0}, {sFKV}, 512", f"s_sub_u32 {sT1}, {sFKV}, {sT1}",
             f"s_cmp_eq_u32 {sC}, 0", f"s_cselect_b32 {sT0}, {sFKV}, {sT0}", f"s_cselect_b32 {sT1}, {sFKV}, {sT1}",
             f"v_mov_b32 v8, {sT0}", f"v_mov_b32 v9, {sT1}", f"v_cmp_eq_u32 vcc, 0, {vLane}", "s_nop 1",
             f"v_cndmask_b32 {vFA}, v9, v8, vcc"]
    L+= ["s_mov_b64 exec, 3", (f"buffer_load_dwordx2 {vFL}, {vFA}, {sWS}, 0 offen sc1", f'fl{rnd}'), "s_mov_b64 exec, -1"]
    return L

def kv_flag_check(a, rnd, need):
    a.wait(vm=f'fl{rnd}')
    a.i(f"s_mov_b32 {sCNT}, 200000")
    if GOPT.get('X_nochk'): a.i(f"s_branch L_ok{rnd}")
    a.label(f"L_chk{rnd}")
    a.i(f"s_cmp_eq_u32 {sC}, 0"); a.i(f"s_cbranch_scc1 L_ok{rnd}")
    a.i("s_mov_b64 exec, 3")
    a.i(f"v_subrev_u32 v8, {sNONh}, v7")
    a.i(f"v_cmp_eq_u32 vcc, {sNONl}, v6")
    a.i(f"v_cmp_le_u32 s[4:5], {need}, v8")
    a.i(f"v_cmp_ge_u32 s[6:7], 4, v8")
    a.i("s_mov_b64 exec, -1")
    a.i("s_and_b64 s[4:5], s[4:5], vcc"); a.i("s_and_b64 s[4:5], s[4:5], s[6:7]"); a.i("s_and_b32 s4, s4, 3")
    a.i("s_cmp_eq_u32 s4, 3"); a.i(f"s_cbranch_scc1 L_ok{rnd}")
    a.i("s_mov_b64 exec, 3")
    a.i(f"buffer_load_dwordx2 {vFL}, {vFA}, {sWS}, 0 offen sc1", cond=True)
    a.i("s_mov_b64 exec, -1")
    a.i("s_waitcnt vmcnt(0)")
    a.i(f"s_sub_u32 {sCNT}, {sCNT}, 1"); a.i(f"s_cmp_lg_u32 {sCNT}, 0"); a.i(f"s_cbranch_scc1 L_chk{rnd}")
    a.label(f"L_ok{rnd}")
    a.stamp(f'chk{rnd}')

def wo_addr(a):
    L=vLane
    a.i(f"s_mul_i32 s6, {sNQ}, 288")
    a.i(f"v_lshrrev_b32 v4, 4, {L}")
    a.i(f"v_and_b32 v5, 15, {L}")
    for par in range(2):
        a.i(f"v_add_u32 v6, {4*par}, v4"); a.i(f"v_lshlrev_b32 v6, 1, v6"); a.i(f"v_xor_b32 v6, v5, v6")
        a.i(f"v_lshlrev_b32 v6, 4, v6"); a.i(f"v_add_u32 v6, s6, v6")
        a.i(f"v_mul_u32_u24 v7, {XROW}, v4"); a.i(f"v_add_u32 {vWOm[par]}, v6, v7")
        a.i(f"v_lshrrev_b32 v7, 1, v4"); a.i(f"v_mul_u32_u24 v7, 18, v7"); a.i(f"v_and_b32 v8, 1, v4"); a.i(f"v_add_u32 v7, v7, v8")
        a.i(f"v_mul_u32_u24 v7, {XROW}, v7"); a.i(f"v_add_u32 {vWOl[par]}, v6, v7")
    a.i(f"v_lshrrev_b32 v4, 1, {L}")
    a.i(f"v_and_b32 v5, 1, {L}"); a.i(f"v_lshlrev_b32 v5, 4, v5"); a.i(f"v_add_u32 v5, 256, v5"); a.i(f"v_add_u32 v5, s6, v5")
    a.i(f"v_bfe_u32 v6, v4, 2, 2")
    a.i(f"v_and_b32 v7, 3, v4"); a.i(f"v_lshrrev_b32 v8, 4, v4")
    a.i(f"v_lshrrev_b32 v2, 1, v6"); a.i(f"v_mul_u32_u24 v2, 18, v2"); a.i(f"v_add_u32 v2, v2, v7"); a.i(f"v_lshl_add_u32 v2, v8, 3, v2")
    a.i(f"v_and_b32 v3, 1, v6"); a.i(f"v_lshl_add_u32 v2, v3, 2, v2"); a.i(f"v_mul_u32_u24 v2, {XROW}, v2"); a.i(f"v_add_u32 {vWOt[0]}, v2, v5")
    a.i(f"v_lshl_add_u32 v7, v8, 2, v7")
    a.i(f"v_lshrrev_b32 v2, 1, v7"); a.i(f"v_lshl_add_u32 v2, v6, 2, v2"); a.i(f"v_mul_u32_u24 v2, 18, v2")
    a.i(f"v_and_b32 v3, 1, v7"); a.i(f"v_add3_u32 v2, v2, v3, 16"); a.i(f"v_mul_u32_u24 v2, {XROW}, v2"); a.i(f"v_add_u32 {vWOt[1]}, v2, v5")

vWO8=[f'v{22+e}' for e in range(8)]
def wo8_setup():
    L=[]
    for e in range(8):
        const=(((e&3)>>1)*18+8*(e>>2)+4*(e&1))*XROW-1024*(e%4)
        if const>=0: L.append(f"v_add_u32 {vWO8[e]}, {const}, {vWOm[e&1]}")
        else: L.append(f"v_subrev_u32 {vWO8[e]}, {-const}, {vWOm[e&1]}")
    return L
def wo8_groups(uniform_setup):
    Gs=[]
    for e in range(8):
        pre = list(uniform_setup) if e==0 else []
        if e%4==0: pre += [f"s_add_u32 m0, {sT3}, {4096*(e//4)}", "s_nop 0"]
        Gs.append(pre+[(f"buffer_load_dwordx4 {vWO8[e]}, {sWO}, {sT2} offen offset:{1024*(e%4)} lds",'wo')])
    Gs.append([f"s_add_u32 m0, {sT3}, 8192", "s_nop 0", (f"buffer_load_dwordx4 {vWOt[0]}, {sWO}, {sT2} offen lds",'wo')])
    return Gs

def wo_dma_groups(kap, slot, uniform_setup):
    Gs=[]
    left = kap>=16
    for e in range(8):
        if left: const=((4*(e&3)+2*(e>>2))*18+16)*XROW
        else: const=(((e&3)>>1)*18+8*(e>>2)+4*(e&1))*XROW
        pre = list(uniform_setup) if e==0 else []
        if e%4==0: pre += [f"s_add_u32 m0, {sT3}, {4096*(e//4)}"]
        voff=(vWOl if left else vWOm)[e&1]
        Gs.append(pre+[f"s_add_u32 {sWOs}, {sT2}, {const-1024*(e%4)}" if const-1024*(e%4)>=0 else f"s_sub_u32 {sWOs}, {sT2}, {1024*(e%4)-const}",
                       (f"buffer_load_dwordx4 {voff}, {sWO}, {sWOs} offen offset:{1024*(e%4)} lds",'wo')])
    Gs.append([f"s_add_u32 m0, {sT3}, 8192", "s_nop 0", (f"buffer_load_dwordx4 {vWOt[1 if left else 0]}, {sWO}, {sT2} offen lds",'wo')])
    return Gs

def wo_prefetch_groups():
    Gs=[]
    for it in range(4):
        setup=[f"s_add_u32 {sT1}, {sWV}, {4*it}", f"s_mul_i32 {sT2}, {sT1}, 41472", f"s_mul_i32 {sT3}, {sT1}, 9216"]
        Gs+=wo_dma_groups(0,None,setup)
    return Gs

def wo_left_groups(L_, ldsbase, regs=None):
    vl0,vl1,vt = regs or (vWOl[0],vWOl[1],vWOt[1])
    g0=L_*16*18*XROW
    setup=[f"s_lshl_b32 {sT1}, {sWV}, 1", f"s_and_b32 {sT1}, {sT1}, 3", f"s_lshl_b32 {sT1}, {sT1}, 2",
           f"s_lshr_b32 {sT2}, {sWV}, 1", f"s_lshl_b32 {sT2}, {sT2}, 1", f"s_add_u32 {sT1}, {sT1}, {sT2}",
           f"s_mul_i32 {sT1}, {sT1}, {18*XROW}", f"s_add_u32 {sT2}, {sT1}, {g0+16*XROW}",
           f"s_lshl_b32 {sT1}, {sWV}, 11", f"s_add_u32 m0, {sT1}, {ldsbase}", "s_nop 0"]
    G0=setup+[(f"buffer_load_dwordx4 {vl0}, {sWO}, {sT2} offen lds",'wo')]
    G1=[f"s_add_u32 {sT2}, {sT2}, {4*18*XROW-1024}", (f"buffer_load_dwordx4 {vl1}, {sWO}, {sT2} offen offset:1024 lds",'wo')]
    G2=[f"s_mov_b32 {sT2}, {g0}", f"s_mov_b32 m0, {ldsbase+8192}", "s_nop 0", (f"buffer_load_dwordx4 {vt}, {sWO}, {sT2} offen lds",'wo')]
    return [G0,G1,G2]

def halo_load_groups(hb):
    base=HALO+14*hb; src=sKV2 if hb<4 else sKV1; bt=hb%4; tg=f'h{hb}'
    return [[f"s_add_u32 {sT0}, {src}, {9216*bt}",
             (f"buffer_load_dwordx4 a[{base}:{base+3}], {vPk}, {sWS}, {sT0} offen sc1", tg),
             (f"buffer_load_dword a{base+4}, {vPl}, {sWS}, {sT0} offen sc1", tg),
             f"s_mov_b64 exec, {sVM}",
             (f"buffer_load_dwordx4 a[{base+6}:{base+9}], {vPv}, {sWS}, {sT0} offen sc1", tg),
             (f"buffer_load_dwordx4 a[{base+10}:{base+13}], {vPv}, {sWS}, {sT0} offen offset:576 sc1", tg),
             "s_mov_b64 exec, -1"]]

def get_nonce(a):
    a.i(f"v_readfirstlane_b32 {sNONl}, v48"); a.i(f"v_readfirstlane_b32 {sNONh}, v49"); a.i("s_nop 1")
    a.i(f"s_or_b32 {sT0}, {sNONl}, {sNONh}"); a.i(f"s_cmp_lg_u32 {sT0}, 0"); a.i("s_cbranch_scc1 L_have_nonce")
    a.i(f"s_mov_b32 {sCNT}, 100000")
    a.label("L_nonce_poll")
    a.i(f"v_mov_b32 {vT}, 0")
    a.i(f"buffer_load_dwordx2 {vNON}, {vT}, {sDBG}, 0 offen sc1", cond=True)
    a.i("s_waitcnt vmcnt(0)")
    a.i(f"v_readfirstlane_b32 {sNONl}, v48"); a.i(f"v_readfirstlane_b32 {sNONh}, v49"); a.i("s_nop 1")
    a.i(f"s_or_b32 {sT0}, {sNONl}, {sNONh}"); a.i(f"s_cmp_lg_u32 {sT0}, 0"); a.i("s_cbranch_scc1 L_have_nonce")
    a.i("s_sleep 2"); a.i(f"s_sub_u32 {sCNT}, {sCNT}, 1"); a.i(f"s_cmp_lg_u32 {sCNT}, 0"); a.i("s_cbranch_scc1 L_nonce_poll")
    a.label("L_have_nonce")

def kv_regs(jb): return ('v', OWN+14*jb) if jb>=0 else ('a', HALO+14*(jb+8))
HORDER=[-4,-3,-8,-7,-2,-1,-6,-5]
def tile_list():
    T=[(i,bt) for i in range(4) for bt in range(i+1)]
    for jb in HORDER[:4]:
        for i in range(4):
            if i-jb<=8: T.append((i,jb))
    if GOPT.get('r2_by_q',0):
        for i in (3,2,1,0):
            for jb in HORDER[4:]:
                if i-jb<=8: T.append((i,jb))
    else:
        for jb in HORDER[4:]:
            for i in range(4):
                if i-jb<=8: T.append((i,jb))
    return T

def norm_block(i):
    O=OACC+16*i; t=84; L=[]
    L.append(f"v_rcp_f32 v{t}, v{O+10}")
    L.append(f"v_pk_add_f32 v[{t+2}:{t+3}], v[{O}:{O+1}], v[{O+2}:{O+3}]")
    L.append(f"v_pk_add_f32 v[{t+4}:{t+5}], v[{O+4}:{O+5}], v[{O+6}:{O+7}]")
    L.append(f"v_mov_b32 v{t+1}, v{t}")
    L.append(f"v_pk_add_f32 v[{t+2}:{t+3}], v[{t+2}:{t+3}], v[{O+8}:{O+9}]")
    L.append(f"v_pk_add_f32 v[{t+2}:{t+3}], v[{t+2}:{t+3}], v[{t+4}:{t+5}]")
    for r in range(0,10,2): L.append(f"v_pk_mul_f32 v[{O+r}:{O+r+1}], v[{t}:{t+1}], v[{O+r}:{O+r+1}]")
    L.append(f"v_add_f32 v{t+2}, v{t+2}, v{t+3}")
    L.append(f"v_fma_f32 v{t+2}, v{t+2}, 0, v{O+10}")
    for u in range(5): L.append(f"v_cvt_pk_bf16_f32 v{O+u}, v{O+2*u}, v{O+2*u+1}")
    L.append(f"v_cmp_nle_f32 vcc, v252, v{t+2}")
    L.append(f"v_cmp_nge_f32 s[4:5], v253, v{t+2}")
    L.append(f"s_add_u32 {sT0}, {sOM}, {i*32*OUTROW}"); L.append(f"s_add_u32 {sT1}, {sOL}, {i*32*OUTROW}")
    L.append(f"s_or_b64 {sBAD}, {sBAD}, vcc"); L.append(f"s_or_b64 {sBAD}, {sBAD}, s[4:5]")
    L.append(('OSTORE',i))
    return L

def emit_ostore(a, i):
    O=OACC+16*i
    if not GOPT.get('olocal'):
        a.i(f"buffer_store_dwordx4 v[{O}:{O+3}], {vPk}, {sOUT}, {sT0} offen sc1", 'ost')
        a.i(f"s_mov_b64 exec, {sLO}")
        a.i(f"buffer_store_dword v{O+4}, {vOl}, {sOUT}, {sT1} offen sc1", 'ost')
        a.i(f"s_mov_b64 exec, -1")
        return
    a.i(f"s_cmp_eq_u32 {sLOC}, 1"); a.i(f"s_cbranch_scc1 L_osl{i}")
    a.i(f"buffer_store_dwordx4 v[{O}:{O+3}], {vPk}, {sOUT}, {sT0} offen sc1", 'x', True)
    a.i(f"s_mov_b64 exec, {sLO}")
    a.i(f"buffer_store_dword v{O+4}, {vOl}, {sOUT}, {sT1} offen sc1", 'x', True)
    a.i(f"s_mov_b64 exec, -1")
    a.i(f"s_branch L_ose{i}")
    a.label(f"L_osl{i}")
    a.i(f"buffer_store_dwordx4 v[{O}:{O+3}], {vPk}, {sOUT}, {sT0} offen", 'ost')
    a.i(f"s_mov_b64 exec, {sLO}")
    a.i(f"buffer_store_dword v{O+4}, {vOl}, {sOUT}, {sT1} offen", 'ost')
    a.i(f"s_mov_b64 exec, -1")
    a.label(f"L_ose{i}")

def o_pretouch():
    L=vLane
    return [f"v_lshrrev_b32 v2, 3, {L}", f"v_mul_u32_u24 v2, {32*OUTROW}, v2", f"v_and_b32 v3, 7, {L}", f"v_lshl_add_u32 v2, v3, 7, v2",
            f"v_add_u32 v2, {sOM}, v2",
            f"v_bfe_u32 v3, {L}, 2, 2", f"v_mul_u32_u24 v3, {32*OUTROW}, v3", f"v_and_b32 v4, 3, {L}", f"v_mul_u32_u24 v4, {OUTROW}, v4",
            f"v_add3_u32 v3, v3, v4, {sOL}",
            f"v_cmp_le_u32 vcc, 32, {L}", f"s_lshl_b32 {sT0}, {sG}, 2", f"s_add_u32 {sT0}, {sT0}, {sWV}", f"v_cndmask_b32 v2, v2, v3, vcc",
            "s_mov_b32 s4, -1", "s_mov_b32 s5, 0xffff", "s_mov_b64 exec, s[4:5]",
            (f"buffer_load_dword v255, v2, {sOUT}, 0 offen",'touch'), "s_mov_b64 exec, -1",
            f"s_lshl_b32 {sT0}, {sT0}, 7", f"s_add_u32 {sT0}, {sT0}, {sFO}",
            f"v_mul_u32_u24 v2, {WS_FWL-WS_FOL}, {L}", f"v_add_u32 v2, {WS_FOL-WS_FO}, v2",
            "s_mov_b64 exec, 3", (f"buffer_load_dword v255, v2, {sWS}, {sT0} offen",'touch'), "s_mov_b64 exec, -1"]

def attention(a, opts):
    a.c("---- attention")
    T=tile_list(); n=len(T)
    first={}; last={}; firstuse={}
    for k,(i,jb) in enumerate(T):
        first.setdefault(i,k); last[i]=k; firstuse.setdefault(jb,k)
    Sreg=lambda k: (S0 if k%2==0 else S1)
    Preg=lambda k: (P0 if k%2==0 else P1)
    def qk(k):
        i,jb=T[k]; p,base=kv_regs(jb); S=rng('v',Sreg(k),16)
        return [f"v_mfma_f32_32x32x16_bf16 {S}, {rng(p,base,4)}, a[{8*i}:{8*i+3}], 0",
                f"v_mfma_f32_32x32x16_bf16 {S}, {rng(p,base+4,4)}, a[{8*i+4}:{8*i+7}], {S}"]
    def pv(k):
        i,jb=T[k]; p,base=kv_regs(jb); O=rng('v',OACC+16*i,16); P=Preg(k)
        c0='0' if k==first[i] else O
        return [f"v_mfma_f32_32x32x16_bf16 {O}, {rng(p,base+6,4)}, v[{P}:{P+3}], {c0}",
                f"v_mfma_f32_32x32x16_bf16 {O}, {rng(p,base+10,4)}, v[{P+4}:{P+7}], {O}"]
    waited=set()
    wo=list(opts.get('_wo_left',[]))+wo_group_for(12)+wo_left_groups(0,16*9216)
    NW=opts.get('wo_att',39)
    def rn_(t): return t.replace(vWOl[0]+',','v88,').replace(vWOl[1]+',','v89,').replace(vWOt[1]+',','v90,').replace(vWOt[0]+',','v96,')
    def rt(g): return [((rn_(x[0]),'wo2') if isinstance(x,tuple) else x) for x in g]
    opts['_wo_p3']=[rt(g) for g in wo[NW:]]
    wo=wo[:NW]
    if opts.get('X_nowo'):
        for g in wo[1:]:
            pass
        wo=wo[:1]; opts['_wo_p3']=[]
    WO_START=opts.get('wo_start',0)
    CHK0=opts.get('chk0',0); FLAGB=opts.get('flagB',3); FL1=opts.get('fl1',9); CHK1=opts.get('chk1',14)
    WO_PAUSE=opts.get('wo_pause',1)
    if opts.get('idle_att'): a.i(f"s_sleep {opts['idle_att']}")
    a.i(f"s_mov_b32 {sTRY}, 0")
    a.label("L_att")
    a.i(f"v_mov_b32 v254, 0x207")
    q0=qk(0); a.i(q0[0]); a.i(q0[1])
    extra=[]; hq=[]
    for k in range(n+1):
        a.stamp(f't{k}_')
        pagepad(a,opts,f't{k}')
        if k==CHK0:
            kv_flag_check(a,0,2)
            for jb in HORDER[:4]:
                hq += halo_load_groups(jb+8)
        if k==FLAGB:
            a.wait(vm='pubB'); a.emit(flag_store_ins(4))
        if k==FL1: a.emit(kv_flag_load(1))
        if opts.get('olocal') and k==opts.get('pre_at',19): a.emit(o_pretouch())
        if opts.get('olocal') and k==opts.get('xtl',24): a.emit(xt_load())
        if opts.get('olocal') and k==opts.get('xtc',30): xt_check(a)
        if k==CHK1:
            kv_flag_check(a,1,4)
            for jb in HORDER[4:]:
                hq += halo_load_groups(jb+8)
        mf=[]
        if k+1<n:
            i,jb=T[k+1]
            if jb<0 and jb not in waited:
                if not waited: a.stamp('own_done')
                assert any(t==f'h{jb+8}' for t in a.vm), jb
                waited.add(jb); a.wait(vm=f'h{jb+8}')
                if len(waited)==1: a.stamp('h0_landed')
            mf+=qk(k+1)
        else: mf+=[None,None]
        mf += pv(k-1) if k>=1 else [None,None]
        if k==0: a.nop(12)
        S=Sreg(k); P=Preg(k)
        i,jb=T[k] if k<n else (None,None)
        for seg in range(4):
            pk,ps = (k,seg-1) if seg>0 else (k-1,3)
            if pk>=0 and pk<n:
                Sp=Sreg(pk); Pp=Preg(pk); ip,jp=T[pk]
                for u in (2*ps,2*ps+1): a.i(f"v_cvt_pk_bf16_f32 v{Pp+u}, v{Sp+2*u}, v{Sp+2*u+1}")
                if jp==ip or jp==ip-8:
                    M=MASKD if jp==ip else MASKF
                    for u in (2*ps,2*ps+1): a.i(f"v_and_b32 v{Pp+u}, v{M+u}, v{Pp+u}")
            if k==n and seg==2: a.nop(2)
            if mf[seg]: a.i(mf[seg])
            if k<n:
                for e in range(4): a.i(f"v_exp_f32 v{S+4*seg+e}, v{S+4*seg+e}")
            a.drain(extra, 6 if k<n else 1000)
            if hq and seg in (0,2): a.emit(hq.pop(0))
            paused = WO_PAUSE and ((CHK0<=k<opts.get('wo_p1',10)) or (CHK1<=k<CHK1+opts.get('wo_p2',9)))
            segs={1:(1,),2:(1,3),3:(0,1,3)}[opts.get('wo_rate',3)]
            if k>=WO_START and wo and not paused and seg in segs: a.emit(wo.pop(0))
        if k>=1:
            ib=T[k-1][0]
            if last[ib]==k-1:
                if k==n:
                    a.nop(14); a.emit(norm_block(ib))
                elif opts.get('X_nonorm'): extra+=["s_nop 1"]+norm_block(ib)[-4:]
                else: extra+=["s_nop 1"]+norm_block(ib)
    assert not extra
    for g in wo: a.emit(g)
    a.i(f"s_or_b32 s4, s74, s75"); a.i(f"s_cmp_eq_u32 s4, 0"); a.i("s_cbranch_scc1 L_att_done")
    a.i(f"s_cmp_eq_u32 {sTRY}, 0"); a.i("s_cbranch_scc1 L_slow")
    a.label("L_att_done")
    a.stamp('att_end')

def slow_path(a):
    a.label("L_slow")
    a.i("s_waitcnt vmcnt(0) lgkmcnt(0)")
    T=tile_list(); L=vLane
    a.i(f"v_and_b32 v84, 31, {L}"); a.i(f"v_lshrrev_b32 v85, 5, {L}"); a.i("v_lshlrev_b32 v85, 2, v85"); a.i("v_sub_u32 v84, v84, v85")
    a.i("v_mov_b32 v86, 0xff800000")
    for i in range(4):
        m=f"v{P0+i}"
        a.i(f"v_mov_b32 {m}, v86")
        for n_,(ii,jb) in enumerate([t for t in T if t[0]==i]):
            lab=f"L_sk{i}_{n_}"
            if jb<0:
                a.i(f"s_cmp_lt_u32 {sC}, {2 if jb<-4 else 1}"); a.i(f"s_cbranch_scc1 {lab}")
            p_,base=kv_regs(jb); S=rng('v',S0,16)
            a.i(f"v_mfma_f32_32x32x16_bf16 {S}, {rng(p_,base,4)}, a[{8*i}:{8*i+3}], 0")
            a.i(f"v_mfma_f32_32x32x16_bf16 {S}, {rng(p_,base+4,4)}, a[{8*i+4}:{8*i+7}], {S}")
            a.nop(16)
            if jb==i or jb==i-8:
                for r in range(16):
                    k0=(r&3)+8*(r>>2)
                    a.i(f"v_cmp_{'le' if jb==i else 'gt'}_i32 vcc, {k0}, v84"); a.i("s_nop 1")
                    a.i(f"v_cndmask_b32 v{S0+r}, v86, v{S0+r}, vcc")
            for r in range(0,16,2): a.i(f"v_max3_f32 {m}, v{S0+r}, v{S0+r+1}, {m}")
            if jb<0: a.label(lab)
        a.i(f"v_mov_b32 v87, {m}"); a.nop(2)
        a.i(f"v_permlane32_swap_b32 {m}, v87"); a.nop(2)
        a.i(f"v_max_f32 {m}, {m}, v87")
        a.i(f"v_sub_f32 v87, 0, {m}")
        a.i(f"v_cvt_pk_bf16_f32 v88, v87, v87"); a.i("v_lshlrev_b32 v89, 16, v88")
        a.i("v_sub_f32 v89, v87, v89")
        a.i("v_cvt_pk_bf16_f32 v88, v87, v89")
        a.i(f"s_mov_b64 exec, {sLO}"); a.i(f"v_accvgpr_write_b32 a{8*i+5}, v88"); a.i("s_mov_b64 exec, -1")
    a.i(f"s_mov_b32 {sTRY}, 1"); a.i(f"s_mov_b64 {sBAD}, 0"); a.nop(4)
    a.i("s_branch L_att")

OF=16
DACC=88
AFV=124
vAr=[f'v{2+t}' for t in range(9)]
vOf='v11'; vOut='v12'; vOf2='v251'

def phase3(a, opts):
    a.c("---- phase 3")
    L=vLane
    a.i(f"v_mov_b32 v88, {vWOl[0]}"); a.i(f"v_mov_b32 v89, {vWOl[1]}"); a.i(f"v_mov_b32 v90, {vWOt[1]}"); a.i(f"v_mov_b32 v96, {vWOt[0]}")
    a.i(f"v_lshrrev_b32 v13, 2, {L}")
    a.i(f"v_and_b32 v14, 7, v13"); a.i(f"v_lshlrev_b32 v14, 5, v14")
    a.i(f"v_lshl_add_u32 v14, v13, 8, v14")
    a.i(f"v_and_b32 v15, 3, {L}"); a.i(f"v_lshl_add_u32 v14, v15, 3, v14")
    for t in range(8): a.i(f"v_xor_b32 {vAr[t]}, {32*t}, v14")
    a.i(f"v_lshlrev_b32 v13, 5, v13"); a.i(f"v_lshl_add_u32 v13, v15, 3, v13"); a.i(f"v_add_u32 {vAr[8]}, 8192, v13")
    a.i(f"v_and_b32 v13, 15, {L}"); a.i(f"v_lshrrev_b32 v14, 4, {L}")
    a.i(f"s_and_b32 s6, {sWV}, 1"); a.i(f"s_lshl_b32 s6, s6, 8")
    a.i(f"v_lshl_add_u32 v15, v13, 4, s6")
    a.i(f"v_and_b32 v93, 1, v14"); a.i(f"v_lshl_add_u32 {vOf}, v93, 9, v15"); a.i(f"v_lshrrev_b32 v93, 1, v14")
    a.i(f"v_mul_u32_u24 v93, {OUTROW}, v93"); a.i(f"v_add_u32 {vOf}, {vOf}, v93")
    a.i(f"v_lshrrev_b32 v93, 7, v15"); a.i(f"v_lshl_add_u32 v93, v14, 2, v93"); a.i(f"v_mul_u32_u24 v93, {OUTROW}, v93")
    a.i(f"v_and_b32 v94, 0x70, v15"); a.i(f"v_add_u32 {vOf2}, v93, v94")
    a.i(f"v_mul_u32_u24 v15, {OUTROW}, v13"); a.i(f"v_lshl_add_u32 {vOut}, v14, 3, v15")
    a.wait(vm='wo')
    a.i("s_barrier")
    a.stamp('wo_ready')
    if opts.get('dumpwo'):
        a.i("s_cmp_lg_u32 s2, 0"); a.i("s_cbranch_scc1 L_nodump")
        a.i("v_lshlrev_b32 v13, 4, v0")
        for it in range(39):
            a.i(f"ds_read_b128 v[124:127], v13 offset:0")
            a.i("s_waitcnt lgkmcnt(0)")
            a.i(f"v_add_u32 v14, {WS_DBG+0x100000}, v13")
            a.i(f"buffer_store_dwordx4 v[124:127], v14, {sWS}, 0 offen", cond=True)
            a.i("s_waitcnt vmcnt(0)")
            a.i("v_add_u32 v13, 4096, v13")
        a.label("L_nodump"); a.lg_clear()
    def frag_reads(kap, dst):
        slot=kap if kap<17 else 0
        R=[]
        for t in range(9):
            p,r=dst(kap,t)
            off=(slot%7)*9216
            hoff=4096 if t<8 else 512
            R.append([(f"ds_read_b64_tr_b16 {p}[{r+2*h}:{r+2*h+1}], {vAr[t]} offset:{off+hoff*h}", f'a{kap}_{t}') for h in range(2)])
        return R
    NA=7; RING=29
    def dst(kap,t):
        if kap<NA: return 'a', (kap*9+t)*4
        idx=((kap-NA)*9+t)%RING
        return 'v', AFV+idx*4
    bump=lambda: [f"v_add_u32 {vAr[t]}, {7*9216}, {vAr[t]}" for t in range(9)]
    def oflag():
        a.i(f"s_lshl_b32 {sT0}, {sG}, 2"); a.i(f"s_add_u32 {sT0}, {sT0}, {sWV}"); a.i(f"s_lshl_b32 {sT0}, {sT0}, 7"); a.i(f"s_add_u32 {sT0}, {sT0}, {sFO}")
        a.i(f"v_mov_b32 v14, {sNONl}"); a.i(f"v_mov_b32 v13, 0")
        if not opts.get('olocal'):
            a.i(f"v_mov_b32 v15, {sNONh}"); a.i("s_mov_b64 exec, 1")
            a.i(f"buffer_store_dwordx2 v[14:15], v13, {sWS}, {sT0} offen sc1", 'oflag'); a.i("s_mov_b64 exec, -1")
            return
        a.i(f"s_cmp_eq_u32 {sLOC}, 1"); a.i("s_cbranch_scc1 L_ofl")
        a.i(f"v_mov_b32 v15, {sNONh}")
        a.i("s_mov_b64 exec, 1")
        a.i(f"buffer_store_dwordx2 v[14:15], v13, {sWS}, {sT0} offen sc1", 'x', True)
        a.i("s_branch L_ofe")
        a.label("L_ofl")
        a.i(f"s_add_u32 {sT0}, {sT0}, {WS_FOL-WS_FO}")
        a.i(f"v_mov_b32 v15, {sLFH}")
        a.i("s_mov_b64 exec, 1")
        a.i(f"buffer_store_dwordx2 v[14:15], v13, {sWS}, {sT0} offen", tag='oflag')
        a.label("L_ofe")
        a.i("s_mov_b64 exec, -1")
    LF_AT=opts.get('lf_at',1)
    w2=list(opts.get('_wo_p3',[]))
    for kap in range(NA):
        if kap==LF_AT:
            if not opts.get('X_noostw'): a.wait(vm='ost')
            oflag(); a.stamp('o_lflag')
        for gi,grp in enumerate(frag_reads(kap,dst)):
            a.emit(grp)
            if w2 and gi%3==0: a.emit(w2.pop(0))
        if kap%2==1: a.wait(lg=8)
    for g in w2: a.emit(g)
    if opts.get('_wo_p3'):
        a.wait(vm='wo2'); a.i("s_barrier")
    a.emit(bump())
    a.i(f"v_and_b32 v13, 31, {L}"); a.i(f"v_lshlrev_b32 v13, 7, v13")
    a.i(f"v_mov_b32 v91, {sNONh}")
    if opts.get('olocal'):
        a.i(f"v_add_u32 v14, {WS_FOL-WS_FO}, v13"); a.i(f"v_cmp_le_u32 vcc, 32, {L}")
        a.i(f"v_mov_b32 v92, {sLFH}"); a.i("s_nop 0")
        a.i(f"v_cndmask_b32 v13, v13, v14, vcc"); a.i(f"v_cndmask_b32 v91, v91, v92, vcc")
    def opoll_load(cond):
        if not opts.get('olocal'): a.i(f"s_mov_b64 exec, {sLO}")
        a.i(f"buffer_load_dwordx2 v[14:15], v13, {sWS}, {sFO} offen sc1", 'opl', cond)
        a.i("s_mov_b64 exec, -1")
    AP=opts.get('apoll',0); W0=opts.get('w0poll',1)
    if AP==1: opoll_load(False)
    for kap in range(NA,NA+3):
        for grp in frag_reads(kap,dst): a.emit(grp)
    OT=9216; OP=304
    a.i(f"v_and_b32 v252, 15, {L}"); a.i(f"v_mul_u32_u24 v252, {OP}, v252"); a.i(f"v_lshrrev_b32 v253, 4, {L}"); a.i(f"v_lshl_add_u32 v252, v253, 3, v252")
    a.i(f"s_mul_i32 {sT2}, {sWV}, {16*OP}"); a.i(f"s_add_u32 {sT2}, {sT2}, {OT}"); a.i(f"v_add_u32 v250, {sT2}, v252")
    for e in range(5):
        a.i(f"v_add_u32 v252, {64*e}, {L}"); a.i(f"v_mul_u32_u24 v253, 58255, v252"); a.i(f"v_lshrrev_b32 v253, 20, v253")
        a.i(f"v_mul_u32_u24 v254, 18, v253"); a.i(f"v_sub_u32 v254, v252, v254"); a.i(f"v_lshlrev_b32 v254, 4, v254")
        a.i(f"v_mul_u32_u24 v252, {OP}, v253"); a.i(f"v_add3_u32 v{240+e}, v252, v254, {sT2}")
        a.i(f"v_mul_u32_u24 v252, {OUTROW}, v253"); a.i(f"v_add_u32 v{245+e}, v252, v254")
    a.wait(lg=0)
    a.i("s_barrier")
    for g in wo_left_groups(1,0,('v88','v89','v90')): a.emit(g)
    a.stamp('frags_pre')
    if opts.get('X_nopoll'): a.i("s_branch L_opoll_done")
    if W0:
        a.i(f"s_cmp_lg_u32 {sWV}, 0"); a.i("s_cbranch_scc1 L_opoll_done")
    if AP==1: a.wait(vm='opl')
    else:
        opoll_load(True); a.i("s_waitcnt vmcnt(0)")
    a.i(f"s_mov_b32 {sCNT}, 200000")
    a.label("L_opoll")
    if not opts.get('olocal'): a.i(f"s_mov_b64 exec, {sLO}")
    a.i(f"v_cmp_eq_u32 vcc, {sNONl}, v14"); a.i(f"v_cmp_eq_u32 s[4:5], v91, v15")
    a.i("s_mov_b64 exec, -1")
    a.i("s_and_b64 s[4:5], s[4:5], vcc"); a.i("s_or_b32 s4, s4, s5"); a.i("s_cmp_eq_u32 s4, -1"); a.i("s_cbranch_scc1 L_opoll_done")
    if opts.get('psleep',2): a.i(f"s_sleep {opts.get('psleep',2)}")
    opoll_load(True); a.i("s_waitcnt vmcnt(0)")
    a.i(f"s_sub_u32 {sCNT}, {sCNT}, 1"); a.i(f"s_cmp_lg_u32 {sCNT}, 0"); a.i("s_cbranch_scc1 L_opoll")
    a.label("L_opoll_done")
    if W0:
        a.wait(vm='wo'); a.i("s_barrier")
    a.stamp('opoll_done')
    if opts.get('kord',1)==1: KORD=[7,0,8,1,9,2,10,3,11,4,12,5,13,6,14,15,16,17]
    else: KORD=[7,8,9]+list(range(7))+list(range(10,18))
    def oload(kap):
        if kap<16:
            a.i(f"s_add_u32 {sT0}, {sPOM}, {2*OUTROW*kap}")
            a.i(f"buffer_load_dwordx4 v[{OF+4*kap}:{OF+4*kap+3}], {vOf}, {sOUT}, {sT0} offen sc1", tag=f'of{kap}')
        else:
            a.i(f"s_add_u32 {sT0}, {sPOL}, {16*OUTROW*(kap-16)}")
            a.i(f"buffer_load_dwordx4 v[{OF+4*kap}:{OF+4*kap+3}], {vOf2}, {sOUT}, {sT0} offen sc1", tag=f'of{kap}')
    NFIRST=opts.get('ofirst',7)
    oq=list(KORD)
    for _ in range(NFIRST): oload(oq.pop(0))
    a.stamp('p3_oissued')
    if not W0:
        a.wait(vm='wo'); a.i("s_barrier")
    rq=[]
    for kap in range(NA+3,18):
        R=frag_reads(kap,dst)
        for t in range(9): rq.append((kap,t,R[t]))
    issued=(NA+3-NA)*9
    consumed=0; mcount=0
    def war_store():
        a.wait(vm=f'of{KORD[-1]}')
        a.i(f"s_lshl_b32 {sT0}, {sG}, 2"); a.i(f"s_add_u32 {sT0}, {sT0}, {sWV}"); a.i(f"s_lshl_b32 {sT0}, {sT0}, 7"); a.i(f"s_add_u32 {sT0}, {sT0}, {sFO}")
        a.i(f"v_mov_b32 v252, {sNONl}"); a.i(f"v_mov_b32 v254, 0")
        a.i(f"s_add_u32 {sT0}, {sT0}, {WS_FW-WS_FO}")
        if opts.get('olocal'):
            a.i(f"s_cmp_eq_u32 {sLOC}, 1"); a.i("s_cbranch_scc1 L_wl")
        a.i(f"v_mov_b32 v253, {sNONh}"); a.i("s_mov_b64 exec, 1")
        a.i(f"buffer_store_dwordx2 v[252:253], v254, {sWS}, {sT0} offen sc1", 'war' if not opts.get('olocal') else 'x', bool(opts.get('olocal')))
        if opts.get('olocal'):
            a.i("s_branch L_we"); a.label("L_wl")
            a.i(f"s_add_u32 {sT0}, {sT0}, {WS_FWL-WS_FW}"); a.i(f"v_mov_b32 v253, {sLFH}"); a.i("s_mov_b64 exec, 1")
            a.i(f"buffer_store_dwordx2 v[252:253], v254, {sWS}, {sT0} offen", 'war')
            a.label("L_we")
        a.i("s_mov_b64 exec, -1")
    def war_addr():
        a.i(f"v_and_b32 v13, 15, {L}"); a.i(f"s_lshl_b32 {sT0}, {sRH}, 4"); a.i(f"v_add_u32 v13, {sT0}, v13"); a.i(f"v_lshlrev_b32 v13, 7, v13")
        a.i(f"v_add_u32 v13, {WS_FW-WS_FO}, v13"); a.i(f"v_add_u32 v14, {WS_FWL-WS_FW}, v13"); a.i(f"v_cmp_le_u32 vcc, 16, {L}")
        a.i(f"v_mov_b32 v15, {sNONh}"); a.i(f"v_mov_b32 v1, {sLFH if opts.get('olocal') else sNONh}")
        a.i(f"v_cndmask_b32 v13, v13, v14, vcc"); a.i(f"v_cndmask_b32 v15, v15, v1, vcc")
    def war_load(cond=False):
        a.i(f"s_mov_b64 exec, {sLO}"); a.i(f"buffer_load_dwordx2 v[0:1], v13, {sWS}, {sFO} offen sc1", 'warl', cond); a.i("s_mov_b64 exec, -1")
    base_slot=7
    for kap in KORD:
        a.wait(vm=f'of{kap}')
        for t in range(9):
            p,r=dst(kap,t)
            if kap>=NA:
                n_=a.lg_n(f'a{kap}_{t}')
                if n_ is not None: a.wait(lg=f'a{kap}_{t}')
            acc=rng('v',DACC+4*t,4); c='0' if kap==KORD[0] else acc
            a.i(f"v_mfma_f32_16x16x32_bf16 {acc}, {p}[{r}:{r+3}], v[{OF+4*kap}:{OF+4*kap+3}], {c}")
            if kap>=NA: consumed+=1
            mcount+=1
            if mcount in (1,27,90,126): a.stamp(f'p3_m{mcount}_')
            if oq and mcount%opts.get('oevery',4)==0: oload(oq.pop(0))
            if mcount==opts.get('war_st',100): war_store()
            if mcount==opts.get('war_ld',140): war_addr(); war_load()
            if rq and issued-consumed<RING-1:
                k2,t2,ins=rq[0]
                if k2==14 and t2==0 and base_slot==7:
                    a.emit(bump()); base_slot=14
                if k2==17 and t2==0:
                    a.emit([f"v_subrev_u32 {vAr[tt]}, {14*9216}, {vAr[tt]}" for tt in range(9)])
                rq.pop(0); a.emit(ins); issued+=1
    assert not rq
    a.stamp('p3_mfma_end')
    a.wait(vm='warl')
    a.i(f"s_mov_b32 {sCNT}, 200000")
    a.label("L_wchk")
    a.i(f"s_mov_b64 exec, {sLO}")
    a.i(f"v_cmp_eq_u32 vcc, {sNONl}, v0"); a.i(f"v_cmp_eq_u32 s[4:5], v15, v1")
    a.i("s_mov_b64 exec, -1")
    a.i("s_and_b64 s[4:5], s[4:5], vcc"); a.i("s_lshr_b32 s5, s4, 16"); a.i("s_or_b32 s4, s4, s5"); a.i("s_and_b32 s4, s4, 0xffff")
    a.i("s_cmp_eq_u32 s4, 0xffff"); a.i("s_cbranch_scc1 L_wok")
    war_load(True); a.i("s_waitcnt vmcnt(0)")
    a.i(f"s_sub_u32 {sCNT}, {sCNT}, 1"); a.i(f"s_cmp_lg_u32 {sCNT}, 0"); a.i("s_cbranch_scc1 L_wchk")
    a.label("L_wok")
    a.stamp('p3_war')
    a.nop(10)
    for t in range(9):
        d=DACC+4*t
        a.i(f"v_cvt_pk_bf16_f32 v{d}, v{d}, v{d+1}"); a.i(f"v_cvt_pk_bf16_f32 v{d+1}, v{d+2}, v{d+3}")
        a.i(f"ds_write_b64 v250, v[{d}:{d+1}] offset:{32*t}", 'ow')
    a.wait(lg=0)
    for e in range(5):
        if e==4: a.i(f"s_mov_b64 exec, {sLO}")
        a.i(f"ds_read_b128 v[{32+4*e}:{35+4*e}], v{240+e}", f'or{e}')
    a.i("s_mov_b64 exec, -1")
    for e in range(5):
        a.wait(lg=f'or{e}')
        if e==4: a.i(f"s_mov_b64 exec, {sLO}")
        a.i(f"buffer_store_dwordx4 v[{32+4*e}:{35+4*e}], v{245+e}, {sOUT}, {sOUTB} offen {opts.get('outmod','')}")
    a.i("s_mov_b64 exec, -1")
    a.stamp('p3_stissued')
    a.i("s_waitcnt vmcnt(0)")

def kd(name, vgpr, accum, sgpr=102):
    return f""".section .rodata,"a"
.p2align 6
.amdhsa_kernel {name}
  .amdhsa_next_free_vgpr {vgpr}
  .amdhsa_next_free_sgpr {sgpr}
  .amdhsa_accum_offset {accum}
  .amdhsa_group_segment_fixed_size 0
  .amdhsa_kernarg_size 72
  .amdhsa_user_sgpr_count 2
  .amdhsa_user_sgpr_kernarg_segment_ptr 1
  .amdhsa_system_sgpr_workgroup_id_x 1
.end_amdhsa_kernel
"""
HEADER = """; Kernarg layout (72 bytes, ptrs only, base s[0:1]):
"""
def build(opts):
    ORDER_MODE[0]=opts.get('order','own'); GOPT.update(opts)
    a=G()
    if opts.get('stamps'):
        a.stamps=[]
        a.sel = opts['sel'].split(',') if 'sel' in opts else ['ch0_landed','1a_end','1b_end','q_ready','poll_done','own_done','att_end','wo_ready','frags_pre','opoll_done','p3_mfma_end','drained']
    prologue(a,opts)
    g0=dma_chunk_groups(0,0)
    if opts.get('ch0v',0):
        for i in range(4):
            a.i(f"v_add_u32 v2, {1024*i}, {vXoff[i]}")
            a.i(f"buffer_load_dwordx4 v[{52+4*i}:{55+4*i}], v2, {sX}, {sXoff} offen", 'ch0')
        for j in range(5):
            if j<4 and j>0: a.i(f"v_add_u32 v2, {1024*j}, {vWoff[j]}")
            src = vWoff[j] if j in (0,4) else 'v2'
            a.i(f"buffer_load_dwordx4 v[{68+4*j}:{71+4*j}], {src}, {sW}, {sWoff} offen", 'ch0')
        a.emit(next_chunk_ins(1))
        setupA(a,opts)
        setupB0(a,opts)
    else:
        if opts.get('tlbw',1):
            a.i(f"buffer_load_dword v255, {vWoff[0]}, {sW}, {sWoff} offen", 'touch')
        for g in g0[:4]: a.emit(g)
        setupA(a,opts)
        setupB0(a,opts)
        for g in g0[4:]: a.emit(g)
    def xtouch_list():
        L=vLane; r_=Rec()
        r_.i(f"v_mul_u32_u24 v226, 7282, {L}"); r_.i("v_lshrrev_b32 v226, 16, v226")
        r_.i(f"v_mul_u32_u24 v227, 9, v226"); r_.i(f"v_sub_u32 v227, {L}, v227"); r_.i("v_min_u32 v226, 3, v226")
        r_.i(f"s_lshl_b32 {sT0}, {sC}, 7"); r_.i(f"s_lshl_b32 {sT1}, {sG}, 4"); r_.i(f"s_add_u32 {sT0}, {sT0}, {sT1}"); r_.i(f"s_lshl_b32 {sT1}, {sWV}, 2"); r_.i(f"s_add_u32 {sT0}, {sT0}, {sT1}")
        r_.i(f"v_add_u32 v226, {sT0}, v226"); r_.i(f"v_mul_u32_u24 v226, {XROW}, v226"); r_.i(f"v_lshl_add_u32 v226, v227, 7, v226")
        r_.l += ["s_mov_b32 exec_hi, 15" , (f"buffer_load_dword v255, v226, {sX}, 0 offen",'touch'), "s_mov_b64 exec, -1"]
        return r_.l
    if opts.get('xtouch',1)==1: a.emit(xtouch_list())
    opts['_xt2']=[xtouch_list()] if opts.get('xtouch',1)==2 else []
    if opts.get('wotouch',3)==2: touch_wo(a)
    if opts.get('pfmode',0) in (1,2):
        a.i("v_lshlrev_b32 v2, 7, v0")
        a.raw("    v_min_u32 v2, (L_end-L_pc), v2")
        a.i("global_load_dword v255, v2, s[96:97]", tag='pf')
    if opts.get('qtouch',0): touch_q(a)
    if opts.get('pgw',0):
        L=vLane
        a.i(f"s_lshl_b32 s4, {sB}, 3"); a.i(f"s_add_u32 s4, s4, {sG}"); a.i("s_lshl_b32 s4, s4, 4"); a.i(f"s_add_u32 s4, s4, {sC}")
        a.i(f"s_mul_i32 s4, s4, {SLOT}")
        a.i(f"v_mov_b32 v2, s4"); a.i(f"v_mov_b32 v3, {WS_FKV}"); a.i(f"v_cmp_eq_u32 vcc, 1, {L}"); a.i("s_nop 1"); a.i("v_cndmask_b32 v2, v2, v3, vcc")
        a.i(f"s_sub_u32 s5, s4, {2*SLOT}"); a.i(f"s_max_i32 s5, s5, 0"); a.i("v_mov_b32 v3, s5"); a.i(f"v_cmp_eq_u32 vcc, 2, {L}"); a.i("s_nop 1"); a.i("v_cndmask_b32 v2, v2, v3, vcc")
        a.i("s_mov_b64 exec, 7"); a.i(f"buffer_load_dword v255, v2, {sWS}, 0 offen", 'touch')
        a.i(f"s_lshl_b32 s4, {sC}, 7"); a.i(f"s_mul_i32 s4, s4, {OUTROW}"); a.i("v_mov_b32 v2, 0")
        a.i("s_mov_b64 exec, 1"); a.i(f"buffer_load_dword v255, v2, {sOUT}, s4 offen", 'touch'); a.i("s_mov_b64 exec, -1")
    a.stamp('p_ch0')
    ch1g=dma_chunk_groups(1,1)
    NE=opts.get('ch1_early',0)
    for g in ch1g[:NE]: a.emit(g)
    opts['_ch1rest']=ch1g[NE:]
    a.stamp('p_ch1')
    rec=Rec(); setupB(rec,opts)
    rec2=Rec(); wo_addr(rec2)
    ren=dict(zip(vWOm+vWOl+vWOt,vWOtmp))
    def rn(x):
        for k_,v_ in ren.items(): x=x.replace(f" {k_},",f" {v_},")
        return x
    opts['_side']=rec.l+[rn(x) for x in rec2.l]
    pend=opts['_ch1rest']+opts['_xt2']+dma_chunk_groups(2,2)
    pend=phase1a(a,opts,pend)
    phase1b(a,pend,opts)
    attention(a,opts)
    phase3(a,opts)
    a.stamp('drained'); a.stamp('rt_exit',real=True)
    if opts.get('dbgtime'):
        a.i("s_waitcnt lgkmcnt(0)")
        n=len(a.stamps)
        r0=a.stamps[0][1]; r1=a.stamps[-1][1]
        a.i(f"s_not_b32 s3, s{r0}")
        a.i("v_mov_b32 v2, s3"); a.i("v_mov_b32 v3, 8"); a.i(f"v_mov_b32 v4, s{r1}"); a.i("v_mov_b32 v5, 12")
        a.i("s_mov_b64 exec, 1")
        a.i(f"buffer_atomic_umax v2, v3, {sDBG}, 0 offen sc1"); a.i(f"buffer_atomic_umax v4, v5, {sDBG}, 0 offen sc1")
        a.i(f"s_cmp_lg_u32 s2, 77"); a.i("s_cbranch_scc1 L_nodbg"); a.i(f"s_cmp_lg_u32 {sWV}, 0"); a.i("s_cbranch_scc1 L_nodbg")
        e=a.stamps[1][1]
        for k,(nm,r) in enumerate(a.stamps[2:-1][:12]):
            a.i(f"s_sub_u32 s3, s{r}, s{e}"); a.i("v_mov_b32 v2, s3"); a.i(f"v_mov_b32 v3, {16+4*k}")
            a.i(f"buffer_store_dword v2, v3, {sDBG}, 0 offen")
        a.label("L_nodbg")
        a.i("s_mov_b64 exec, -1"); a.i("s_waitcnt vmcnt(0)")
    else: a.dump_stamps(0)
    a.label("L_end"); a.i("s_endpgm")
    slow_path(a)
    errs=a.check()
    if opts.get('stamps'): print("stamps:",len(a.stamps),[x[0] for x in a.stamps])
    k1=f"{NAME}_kernel"
    txt=HEADER+f"; @launch grid=(256,1,1) block=(256,1,1) lds={LDS_BYTES}\n"
    txt+='.amdgcn_target "amdgcn-amd-amdhsa--gfx950"\n.text\n'
    txt+=f".globl {k1}\n.p2align 8\n.type {k1},@function\n{k1}:\n"+a.text()+kd(k1,512,256)
    return txt
if __name__=="__main__":
    out=sys.argv[1]
    opts={}
    for x in sys.argv[2:]:
        k,_,v=x.partition('='); opts[k]=int(v) if v.lstrip('-').isdigit() else (v or True)
    open(out,'w').write(build(opts)); print("written",out)
```

```python
import sys, os, struct
sys.path.insert(0, os.path.dirname(os.path.abspath(__file__)))
from asm import *
NAME = "concat_heads__sliding_block__sliding_block__prompt"
XROW=1152; WROW=3456; OUTROW=2304
X_BYTES=2048*1152; W_BYTES=576*3456; WO_BYTES=576*1152; OUT_BYTES=2048*2304
SLOT=36864; WPITCH=320; XOFF=20480; QPITCH=192; QCH=12288
VBASE=0; VR=1184; VJ=2368; VB=4736; KB3=18944; KB0=147456; KP=148; KBLK=32*148; QBASE=0
LDS_BYTES=163840
WS_KV=0; WS_OM=0x1000000; WS_OL=0x1400000; WS_FKV=0x1800000; WS_FO=0x1840000; WS_FOL=0x1880000; WS_FW=0x1900000; WS_FWL=0x1940000
WS_XT=0x18C0000
WS_DBG=0x2000000; WS_BYTES=0x4000000
CSCALE = 1.4426950408889634/(18**0.5)
def f2u(x): return struct.unpack('<I',struct.pack('<f',x))[0]
def rng(p,a,n): return f'{p}[{a}:{a+n-1}]'

sX='s[8:11]'; sW='s[12:15]'; sWO='s[16:19]'; sOUT='s[20:23]'; sWS='s[24:27]'; sDBG='s[28:31]'
sB='s32'; sC='s33'; sG='s34'; sWV='s35'
sVM='s[54:55]'; sLO='s[56:57]'
sCI='s58'; sWoff='s59'; sXoff='s60'; sM0='s61'; sKVme='s62'
sT0='s63'; sT1='s64'; sT2='s65'; sFKV='s66'; sT3='s67'
sNONl='s68'; sNONh='s69'; sROT='s70'; sKV1='s71'; sKV2='s72'; sXCC='s73'
sBAD='s[74:75]'; sNVM='s[52:53]'; sCNT='s76'; sOM='s77'; sOL='s78'; sFO='s79'; sSC='s80'; sATT='s81'
sLFH='s70'; sLOC='s81'
sTRY='s52'
sRH='s82'; sNQ='s83'; sPOM='s84'; sPOL='s85'; sOUTB='s86'; sWOs='s87'
sIDX='s76'; sOFF='s81'; sPAIR='s87'; sB2='s65'

vLane='v1'
vWoff=[f'v{10+j}' for j in range(5)]
vXoff=[f'v{15+j}' for j in range(4)]
vQoff=['v19','v20','v21']
vWr=['v22','v23']; vMx=['v24','v25']
vXr=[[f'v{26+t}' for t in range(4)],[f'v{30+t}' for t in range(4)]]
vQr='v34'; vQr2='v43'
vKw='v35'; vQw='v36'; vVw='v37'; vVt='v38'
vKr='v39'; vKl='v40'; vVr='v41'; vCw='v42'; vQl='v43'
vPk='v44'; vPl='v45'; vPv='v46'; vOl='v47'
vNON='v[48:49]'; vVC='v50'; vT='v51'
def WF(b,f): r=52+(b*5+f)*4; return f'v[{r}:{r+3}]'
def WFh(b,f,h): r=52+(b*5+f)*4+2*h; return f'v[{r}:{r+1}]'
def QF(b,f): r=52+(b*3+f)*4; return f'v[{r}:{r+3}]'
def QFh(b,f,h): r=52+(b*3+f)*4+2*h; return f'v[{r}:{r+1}]'
ACC={'K0':92,'K1':108,'V0':124,'V1':140,'MX':156,'Q0':172,'Q1':188,'Q2':204}
def XF(t): return rng('a',4*t,4)
OWN=92; HALO=144
S0=52; S1=68; P0=150; P1=158; OACC=172; MASKD=236; MASKF=244
vWOm=['v10','v11']; vWOl=['v12','v13']; vWOt=['v14','v15']
vWOtmp=['v220','v221','v222','v223','v224','v225']

class G(Asm):
    stamps=None; sel=None; nowait=True
    def stamp(self, name, real=False):
        if self.stamps is None: return
        if self.sel is not None and not (name.startswith('rt_') or name=='entry' or any(name.startswith(x) for x in self.sel)): return
        k=len(self.stamps)
        regs=[88,90,92,94,96,98,100,36,38,40,42,44,46,48,50][k]
        self.stamps.append((name,regs))
        if GOPT.get('allreal'): real_=True
        else: real_=real
        self.i(f"{'s_memrealtime' if real_ else 's_memtime'} s[{regs}:{regs+1}]")
        if self.nowait and not real and name!='entry':
            self.lg.pop()
        else:
            self.i("s_waitcnt lgkmcnt(0)")
            self.lg_clear()
    def dump_stamps(self, base):
        if self.stamps is None: return
        self.i("s_waitcnt lgkmcnt(0)")
        self.i(f"s_lshl_b32 s3, s2, 2"); self.i(f"s_add_u32 s3, s3, {sWV}")
        self.i(f"s_lshl_b32 s3, s3, 6"); self.i(f"s_add_u32 s3, s3, {WS_DBG+base}")
        self.i("s_mov_b64 exec, 1")
        for k,(nm,r) in enumerate(self.stamps):
            self.i(f"v_mov_b32 v2, s{r}"); self.i(f"v_mov_b32 v3, {4*k}")
            self.i(f"buffer_store_dword v2, v3, {sWS}, s3 offen")
        self.i("s_mov_b64 exec, -1"); self.i("s_waitcnt vmcnt(0)")
    def emit(self, lst):
        for x in lst:
            if isinstance(x,tuple) and x[0]=='OSTORE': emit_ostore(self,x[1])
            elif isinstance(x,tuple): self.i(*x)
            else: self.i(x)
    def drain(self, q, budget):
        k=0; inexec=False
        while q and (k<budget or inexec):
            x=q.pop(0)
            txt=x[0] if isinstance(x,tuple) else x
            if txt.startswith('s_mov_b64 exec'): inexec = not txt.endswith('-1')
            if txt=='OSTORE': emit_ostore(self,x[1])
            elif isinstance(x,tuple): self.i(*x)
            else: self.i(x)
            k+=1

def prologue(a, opts):
    L=vLane
    a.c("---- prologue")
    a.stamp('rt_entry',real=True); a.stamp('entry')
    a.i("s_load_dwordx8 s[36:43], s[0:1], 0")
    a.i("s_load_dwordx8 s[44:51], s[0:1], 32")
    a.i("s_load_dwordx2 s[52:53], s[0:1], 64")
    a.i("s_cmp_ge_u32 s2, 256")
    a.i("s_cbranch_scc1 L_end")
    a.i("s_getpc_b64 s[90:91]") if False else None
    a.i("s_getpc_b64 s[4:5]")
    a.label("L_pc")
    PFM=opts.get('pfmode',0)
    if PFM in (1,2):
        a.i("s_mov_b32 s96, s4"); a.i("s_mov_b32 s97, s5")
    a.i("v_lshlrev_b32 v2, 7, v0")
    a.raw("    v_min_u32 v2, (L_end-L_pc), v2")
    if PFM==1:
        a.i("v_cmp_gt_u32 vcc, 64, v0"); a.i("s_and_saveexec_b64 s[6:7], vcc"); a.i("s_cbranch_execz L_pf1")
        a.i("global_load_dword v255, v2, s[4:5]", tag='pf', cond=True)
        a.label("L_pf1"); a.i("s_mov_b64 exec, -1")
    elif PFM==0 and not opts.get('nopf'): a.i("global_load_dword v255, v2, s[4:5]", tag='pf')
    if opts.get('pf2'):
        a.i("v_lshlrev_b32 v2, 7, v0"); a.i("v_add_u32 v2, 32768, v2")
        a.raw("    v_min_u32 v2, (L_end-L_pc), v2")
        a.i("global_load_dword v255, v2, s[4:5]", tag='pf')
    a.i(f"v_and_b32 {L}, 63, v0")
    a.i("v_lshrrev_b32 v2, 6, v0")
    a.i("s_and_b32 s3, s2, 7")
    a.i(f"v_readfirstlane_b32 {sWV}, v2")
    a.i(f"s_lshr_b32 {sB}, s3, 2")
    a.i("s_lshr_b32 s4, s2, 3")
    a.i("s_and_b32 s5, s3, 3")
    a.i(f"s_lshl_b32 {sC}, s5, 2")
    a.i("s_lshr_b32 s5, s4, 3")
    a.i(f"s_add_u32 {sC}, {sC}, s5")
    a.i(f"s_and_b32 {sG}, s4, 7")
    a.i("s_lshl_b32 s5, s5, 1")
    a.i(f"s_add_u32 s6, s5, {sG}")
    a.i("s_sub_u32 s7, s6, 9")
    a.i("s_cmp_ge_u32 s6, 9")
    a.i(f"s_cselect_b32 {sROT}, s7, s6")
    if opts.get('order','own')=='own':
        a.i(f"s_add_u32 {sOFF}, s5, {sG}"); a.i(f"s_and_b32 {sOFF}, {sOFF}, 7")
        a.i("s_and_b32 s6, s3, 3"); a.i("s_lshl_b32 s6, s6, 1"); a.i(f"s_and_b32 s7, {sC}, 1"); a.i(f"s_add_u32 {sROT}, s6, s7")
        a.i(f"s_mov_b32 {sIDX}, {sOFF}")
    elif opts.get('order')=='norot': a.i(f"s_mov_b32 {sROT}, 0")
    if opts.get('order','own')=='pair':
        a.i(f"s_add_u32 {sOFF}, s5, {sG}"); a.i(f"s_sub_u32 s6, {sOFF}, 7"); a.i(f"s_cmp_ge_u32 {sOFF}, 7"); a.i(f"s_cselect_b32 {sOFF}, s6, {sOFF}")
        a.i("s_and_b32 s6, s3, 3"); a.i("s_lshl_b32 s6, s6, 1"); a.i(f"s_add_u32 s7, {sG}, {sC}"); a.i("s_and_b32 s7, s7, 1")
        a.i(f"s_add_u32 {sROT}, s6, s7"); a.i(f"s_xor_b32 s7, s7, 1"); a.i(f"s_add_u32 {sPAIR}, s6, s7"); a.i(f"s_add_u32 {sB2}, s6, 2")
        a.i(f"s_mov_b32 {sIDX}, {sOFF}")
    a.i(f"s_lshl_b32 s6, {sC}, 7"); a.i(f"s_lshl_b32 s7, {sWV}, 5"); a.i("s_add_u32 s6, s6, s7")
    a.i(f"s_mul_i32 s6, s6, {XROW}")
    a.i(f"v_lshrrev_b32 v4, 3, {L}"); a.i(f"v_lshrrev_b32 v5, 4, {L}"); a.i(f"v_and_b32 v6, 7, {L}")
    a.i(f"v_mul_u32_u24 v4, {XROW}, v4")
    a.i(f"v_add_u32 v4, s6, v4")
    for i in range(4):
        a.i(f"v_add_u32 v7, {4*i}, v5"); a.i(f"v_and_b32 v7, 7, v7"); a.i(f"v_xor_b32 v7, v6, v7")
        a.i(f"v_lshl_add_u32 v7, v7, 4, v4")
        a.i(f"v_add_u32 {vXoff[i]}, {8*i*XROW-1024*i}, v7")
    a.i(f"s_mul_i32 s6, {sWV}, {16*WROW}"); a.i(f"s_mul_i32 s7, {sG}, 144"); a.i("s_add_u32 s6, s6, s7")
    a.i(f"s_add_u32 s6, s6, 1152")
    a.i(f"s_movk_i32 s7, {WROW}")
    a.i("v_mov_b32 v9, 0x40000000"); a.i("v_mov_b32 v8, 1008")
    for j in range(5):
        a.i(f"v_add_u32 v4, {64*j}, {L}")
        a.i(f"v_mul_u32_u24 v5, 52429, v4"); a.i(f"v_lshrrev_b32 v5, 20, v5")
        a.i(f"v_mul_u32_u24 v6, 20, v5"); a.i(f"v_sub_u32 v6, v4, v6")
        a.i(f"v_cmp_lt_u32 vcc, 8, v6")
        a.i(f"v_mul_lo_u32 v5, v5, s7")
        a.i(f"v_lshl_add_u32 v5, v6, 4, v5")
        a.i(f"v_cndmask_b32 v7, 0, v8, vcc")
        a.i(f"v_cmp_lt_u32 vcc, 17, v6")
        a.i(f"v_add3_u32 v5, v5, v7, s6")
        comp=1024*j if j<4 else 0
        if comp: a.i(f"v_subrev_u32 v5, {comp}, v5")
        else: a.i("s_nop 0")
        a.i(f"v_cndmask_b32 {vWoff[j]}, v5, v9, vcc")
    a.stamp('p_pre')
    a.wait(lg=0)
    a.stamp('p_karg')
    a.i(f"s_cmp_eq_u32 {sB}, 0")
    a.i("s_cselect_b32 s8, s36, s42");  a.i("s_cselect_b32 s9, s37, s43")
    a.i("s_cselect_b32 s12, s38, s44"); a.i("s_cselect_b32 s13, s39, s45")
    a.i(f"s_mov_b32 s10, {X_BYTES}"); a.i("s_mov_b32 s11, 0x00020000")
    a.i(f"s_mov_b32 s14, {W_BYTES}"); a.i("s_mov_b32 s15, 0x00020000")
    a.i("s_cselect_b32 s16, s40, s46"); a.i("s_cselect_b32 s17, s41, s47")
    a.i(f"s_mov_b32 {sCI}, {sROT}")
    a.i(f"s_mul_i32 {sWoff}, {sCI}, {64*WROW}")
    a.i(f"s_lshl_b32 {sXoff}, {sCI}, 7")

vTA='v[240:241]'
def touch_setup(a, opts):
    L=vLane
    a.i("s_lshr_b32 s4, s2, 3")
    a.i(f"v_cmp_le_u32 vcc, 18, {L}")
    a.i(f"v_mov_b32 v2, {XROW+18*128}")
    a.i(f"v_lshlrev_b32 v3, 7, {L}")
    a.i(f"v_mov_b32 v2, {WROW-18*128}")
    a.i(f"v_cndmask_b32 v2, 0, v2, vcc")
    a.i(f"v_add_u32 v3, v3, v2")
    a.i(f"s_mul_i32 s5, s4, {2*WROW}"); a.i(f"s_add_u32 s5, s5, {9*128}")
    a.i(f"v_add_u32 v3, s5, v3")
    a.i("s_and_b32 s5, s2, 3"); a.i("s_lshl_b32 s5, s5, 9"); a.i("s_lshl_b32 s6, s4, 4"); a.i("s_add_u32 s5, s5, s6")
    a.i(f"v_subrev_u32 v4, 36, {L}"); a.i(f"v_and_b32 v4, 15, v4"); a.i(f"v_add_u32 v4, s5, v4"); a.i(f"v_mul_u32_u24 v4, {XROW}, v4")
    a.i(f"v_cmp_le_u32 vcc, 36, {L}")
    a.i(f"v_mov_b32 v5, s12"); a.i("v_mov_b32 v6, s8"); a.i("v_mov_b32 v7, s13"); a.i("v_mov_b32 v8, s9")
    a.i(f"v_cndmask_b32 v3, v3, v4, vcc")
    a.i(f"v_cndmask_b32 v5, v5, v6, vcc")
    a.i(f"v_cndmask_b32 v7, v7, v8, vcc")
    a.i(f"v_mov_b32 v9, {64*WROW}"); a.i("v_mov_b32 v6, 128")
    a.i(f"v_cndmask_b32 v242, v9, v6, vcc")
    a.i(f"s_add_u32 s5, {sWV}, 1")
    a.i(f"v_mul_lo_u32 v9, v242, s5")
    a.i(f"v_add_u32 v3, v3, v9")
    a.i(f"v_add_co_u32 v240, vcc, v5, v3"); a.i("s_nop 1"); a.i(f"v_addc_co_u32 v241, vcc, 0, v7, vcc")
    a.i(f"v_lshlrev_b32 v242, 2, v242")
def touch_ins(second):
    L=[]
    if second:
        L+= ["v_add_co_u32 v240, vcc, v240, v242", "s_nop 1", "v_addc_co_u32 v241, vcc, 0, v241, vcc"]
    L+= ["s_mov_b64 exec, 0x000fffffffffffff" if False else "s_mov_b64 exec, s[6:7]", (f"global_load_dword v255, {vTA}, off",'touch'), "s_mov_b64 exec, -1"]
    return L
def touch_q(a):
    L=vLane
    a.i("s_lshr_b32 s4, s2, 3")
    a.i(f"v_mul_u32_u24 v2, 7282, {L}"); a.i("v_lshrrev_b32 v2, 16, v2")
    a.i(f"v_mul_u32_u24 v3, 9, v2"); a.i(f"v_sub_u32 v3, {L}, v3")
    a.i(f"v_min_u32 v2, 5, v2")
    a.i(f"s_min_u32 s5, {sWV}, 2"); a.i("s_mul_i32 s5, s5, 6"); a.i("s_mul_i32 s6, s4, 18"); a.i("s_add_u32 s5, s5, s6")
    a.i(f"v_add_u32 v2, s5, v2"); a.i(f"v_mul_u32_u24 v2, {WROW}, v2"); a.i(f"v_lshl_add_u32 v2, v3, 7, v2")
    a.i(f"buffer_load_dword v255, v2, {sW}, 0 offen", 'touch')
def touch_wo(a):
    L=vLane
    a.i(f"s_lshr_b32 {sT0}, s2, 3")
    a.i(f"s_min_u32 {sT1}, {sWV}, 2"); a.i(f"s_mul_i32 {sT1}, {sT1}, 54"); a.i(f"s_mul_i32 {sT0}, {sT0}, 162"); a.i(f"s_add_u32 {sT1}, {sT1}, {sT0}")
    a.i(f"v_min_u32 {vT}, 53, {L}"); a.i(f"v_add_u32 {vT}, {sT1}, {vT}"); a.i(f"v_lshlrev_b32 {vT}, 7, {vT}")
    a.i(f"buffer_load_dword v255, {vT}, {sWO}, 0 offen", 'touch')

ORDER_MODE=['own']
GOPT={}
def next_chunk_ins(step=None):
    if ORDER_MODE[0]=='pair':
        tail=[f"s_mul_i32 {sWoff}, {sCI}, {64*WROW}", f"s_lshl_b32 {sXoff}, {sCI}, 7"]
        if step==1: return [f"s_mov_b32 {sCI}, {sPAIR}"]+tail
        return [f"s_add_u32 {sCI}, {sB2}, {sIDX}", f"s_sub_u32 {sT3}, {sCI}, 9", f"s_cmp_ge_u32 {sCI}, 9", f"s_cselect_b32 {sCI}, {sT3}, {sCI}",
                f"s_add_u32 {sIDX}, {sIDX}, 1", f"s_cmp_eq_u32 {sIDX}, 7", f"s_cselect_b32 {sIDX}, 0, {sIDX}"]+tail
    if ORDER_MODE[0]=='own':
        return [f"s_add_u32 {sCI}, {sROT}, {sIDX}", f"s_add_u32 {sCI}, {sCI}, 1", f"s_sub_u32 {sT3}, {sCI}, 9", f"s_cmp_ge_u32 {sCI}, 9",
                f"s_cselect_b32 {sCI}, {sT3}, {sCI}", f"s_add_u32 {sIDX}, {sIDX}, 1", f"s_and_b32 {sIDX}, {sIDX}, 7",
                f"s_mul_i32 {sWoff}, {sCI}, {64*WROW}", f"s_lshl_b32 {sXoff}, {sCI}, 7"]
    return [f"s_add_u32 {sCI}, {sCI}, 1", f"s_cmp_eq_u32 {sCI}, 9", f"s_cselect_b32 {sCI}, 0, {sCI}",
            f"s_mul_i32 {sWoff}, {sCI}, {64*WROW}", f"s_lshl_b32 {sXoff}, {sCI}, 7"]

def dma_chunk_groups(slot, n):
    base=slot*SLOT; tag=f'ch{n}'; Gs=[]
    for i in range(4):
        pre=[f"s_lshl_b32 {sM0}, {sWV}, 12", f"s_add_u32 m0, {sM0}, {base+XOFF}", "s_nop 0"] if i==0 else []
        Gs.append(pre+[(f"buffer_load_dwordx4 {vXoff[i]}, {sX}, {sXoff} offen offset:{1024*i} lds", tag)])
    for j in range(4):
        pre=[f"s_mul_i32 {sM0}, {sWV}, 5120", f"s_add_u32 m0, {sM0}, {base}", "s_nop 0"] if j==0 else []
        Gs.append(pre+[(f"buffer_load_dwordx4 {vWoff[j]}, {sW}, {sWoff} offen offset:{1024*j} lds", tag)])
    Gs.append([f"s_add_u32 m0, {sM0}, {base+4096}", "s_nop 0", (f"buffer_load_dwordx4 {vWoff[4]}, {sW}, {sWoff} offen lds", tag)]+next_chunk_ins(n+1))
    return Gs

def dma_wq_groups(n):
    reg = SLOT*(1+n//3) + (n%3)*QCH
    Gs=[]
    for e in range(3):
        pre=[f"s_mul_i32 {sM0}, {sWV}, 3072", f"s_add_u32 m0, {sM0}, {reg}", "s_nop 0"] if e==0 else []
        post=next_chunk_ins(n+1) if e==2 else []
        Gs.append(pre+[(f"buffer_load_dwordx4 {vQoff[e]}, {sW}, {sWoff} offen offset:{1024*e} lds", f'wq{n}')]+post)
    return Gs

def setupA(a, opts):
    L=vLane
    a.c("---- setup A")
    a.i(f"v_bfe_u32 v4, {L}, 2, 2"); a.i(f"v_lshrrev_b32 v5, 5, {L}")
    a.i(f"v_lshl_add_u32 v4, v5, 3, v4")
    a.i(f"v_bfe_u32 v6, {L}, 4, 1"); a.i(f"v_and_b32 v7, 3, {L}")
    a.i(f"v_mul_u32_u24 v8, {WPITCH}, v4")
    a.i(f"v_lshlrev_b32 v9, 5, v6"); a.i(f"v_lshl_add_u32 v9, v7, 3, v9")
    a.i(f"v_add_u32 {vWr[0]}, v8, v9"); a.i(f"v_add_u32 {vWr[1]}, {2*SLOT}, {vWr[0]}")
    a.i(f"v_mul_u32_u24 v2, {QPITCH}, v4")
    a.i(f"v_add3_u32 {vQr}, v2, v9, 0"); a.i(f"v_add_u32 {vQr}, {SLOT}, {vQr}")
    a.i(f"v_lshrrev_b32 v3, 1, v7"); a.i(f"v_cmp_eq_u32 vcc, v3, v6"); a.i(f"v_and_b32 v3, 1, v7"); a.i(f"v_lshlrev_b32 v3, 3, v3")
    a.i(f"v_add_u32 v3, 128, v3"); a.i(f"v_add_u32 {vQr2}, 32, v3"); a.i(f"v_cndmask_b32 v3, {vQr2}, v3, vcc")
    a.i(f"v_add3_u32 {vQr2}, v2, v3, 0"); a.i(f"v_add_u32 {vQr2}, {SLOT}, {vQr2}")
    a.i(f"v_lshl_add_u32 v9, v6, 2, v7")
    a.i(f"v_lshlrev_b32 v2, 3, v9"); a.i(f"v_add_u32 v2, 128, v2"); a.i(f"v_add_u32 v3, 128, v2")
    a.i(f"v_cmp_lt_u32 vcc, 1, v9"); a.i("s_nop 1")
    a.i(f"v_cndmask_b32 v2, v2, v3, vcc")
    a.i(f"v_add_u32 {vMx[0]}, v8, v2"); a.i(f"v_add_u32 {vMx[1]}, {2*SLOT}, {vMx[0]}")
    a.i(f"v_and_b32 v2, 31, {L}"); a.i(f"v_bfe_u32 v3, {L}, 1, 3"); a.i(f"v_xor_b32 v3, v3, v5")
    a.i(f"v_lshlrev_b32 v3, 4, v3"); a.i(f"v_lshl_add_u32 v3, v2, 7, v3")
    a.i(f"s_lshl_b32 s6, {sWV}, 12"); a.i(f"s_add_u32 s6, s6, {XOFF}")
    a.i(f"v_add_u32 v3, s6, v3")
    for t in range(4):
        a.i(f"v_xor_b32 {vXr[0][t]}, {32*t}, v3"); a.i(f"v_add_u32 {vXr[1][t]}, {2*SLOT}, {vXr[0][t]}")

PADN=[0]
def pagepad(a, opts, where):
    if where in str(opts.get('pads','')).split('+'):
        PADN[0]+=1
        a.i(f"s_branch L_pad{PADN[0]}")
        a.raw(".fill 1024, 4, 0xbf800000")
        a.label(f"L_pad{PADN[0]}")

class Rec:
    def __init__(self): self.l=[]
    def i(self, t, tag=None, cond=False): self.l.append((t,tag,cond) if tag or cond else t)
    def c(self, s): pass

def setupB0(a, opts):
    a.i("s_mov_b32 s20, s48"); a.i("s_mov_b32 s21, s49"); a.i(f"s_mov_b32 s22, {OUT_BYTES}"); a.i("s_mov_b32 s23, 0x00020000")
    a.i("s_mov_b32 s24, s52"); a.i("s_mov_b32 s25, s53"); a.i(f"s_mov_b32 s26, {WS_BYTES}"); a.i("s_mov_b32 s27, 0x00020000")
    a.i("s_mov_b32 s28, s50"); a.i("s_mov_b32 s29, s51"); a.i("s_mov_b32 s30, 256"); a.i("s_mov_b32 s31, 0x00020000")
    a.i(f"s_mov_b32 s18, {WO_BYTES}"); a.i("s_mov_b32 s19, 0x00020000")
    a.i(f"s_or_b32 s3, s2, {sWV}"); a.i("s_cmp_lg_u32 s3, 0"); a.i("s_cbranch_scc1 L_nononce")
    a.i("s_memrealtime s[4:5]"); a.i("s_waitcnt lgkmcnt(0)"); a.i("s_or_b32 s4, s4, 1")
    a.i("v_mov_b32 v2, s4"); a.i("v_mov_b32 v3, s5"); a.i("v_mov_b32 v4, 0")
    a.i("s_mov_b64 exec, 1")
    a.i(f"buffer_store_dwordx2 v[2:3], v4, {sDBG}, 0 offen sc1", cond=True)
    a.i("s_mov_b64 exec, -1")
    a.label("L_nononce"); a.lg_clear()

def setupB(a, opts):
    L=vLane
    a.c("---- setup B")
    a.i("s_mov_b32 s54, 0x3ffff"); a.i("s_mov_b32 s55, 0x3ffff"); a.i("s_not_b64 s[52:53], s[54:55]"); a.i("s_mov_b32 s56, -1"); a.i("s_mov_b32 s57, 0")
    a.i(f"s_mov_b32 {sSC}, {f2u(CSCALE):#x}")
    a.i(f"s_getreg_b32 {sXCC}, hwreg(HW_REG_XCC_ID, 0, 4)")
    a.i(f"s_mul_i32 s6, {sWV}, {16*WROW}"); a.i(f"s_mul_i32 s7, {sG}, 144"); a.i("s_add_u32 s6, s6, s7")
    a.i(f"s_movk_i32 s7, {WROW}"); a.i("v_mov_b32 v9, 0x40000000")
    for e in range(3):
        a.i(f"v_add_u32 v4, {64*e}, {L}")
        a.i(f"v_mul_u32_u24 v5, 21846, v4"); a.i(f"v_lshrrev_b32 v5, 18, v5")
        a.i(f"v_mul_u32_u24 v6, 12, v5"); a.i(f"v_sub_u32 v6, v4, v6")
        a.i(f"v_cmp_lt_u32 vcc, 8, v6")
        a.i(f"v_mul_lo_u32 v5, v5, s7"); a.i(f"v_lshl_add_u32 v5, v6, 4, v5")
        a.i(f"v_add_u32 v5, s6, v5"); a.i(f"v_subrev_u32 v5, {1024*e}, v5")
        a.i(f"v_cndmask_b32 {vQoff[e]}, v5, v9, vcc")
    a.i(f"v_and_b32 v2, 31, {L}"); a.i(f"v_lshrrev_b32 v5, 5, {L}")
    a.i(f"s_mul_i32 s6, {sWV}, {KBLK}"); a.i(f"s_add_u32 s7, s6, {KB0}"); a.i(f"s_cmp_eq_u32 {sWV}, 3"); a.i(f"s_cselect_b32 s7, {KB3}, s7")
    a.i(f"v_mul_u32_u24 v3, {KP}, v2"); a.i(f"v_lshl_add_u32 v3, v5, 3, v3")
    a.i(f"v_add_u32 {vKw}, s7, v3"); a.i(f"s_add_u32 s6, s6, {QBASE}"); a.i(f"v_add_u32 {vQw}, s6, v3")
    a.i(f"s_mul_i32 s6, {sWV}, {VB}"); a.i(f"s_add_u32 s6, s6, {VBASE}")
    a.i(f"v_mul_u32_u24 v3, {VR}, v5"); a.i(f"v_lshl_add_u32 v3, v2, 4, v3"); a.i(f"v_add_u32 {vVw}, s6, v3")
    a.i(f"v_bfe_u32 v3, {L}, 2, 1"); a.i(f"v_mul_u32_u24 v3, {VJ}, v3"); a.i(f"v_bfe_u32 v4, {L}, 1, 1"); a.i(f"v_mul_u32_u24 v4, {VR}, v4")
    a.i(f"v_add_u32 v3, v3, v4"); a.i(f"v_and_b32 v4, 1, {L}"); a.i(f"v_lshl_add_u32 v3, v4, 4, v3"); a.i(f"v_add_u32 v3, {72*16}, v3")
    a.i(f"v_add_u32 {vCw}, s6, v3")
    a.i(f"v_lshrrev_b32 v3, 4, v2"); a.i(f"v_mul_u32_u24 v3, {VJ}, v3"); a.i(f"v_bfe_u32 v4, v2, 2, 1")
    a.i(f"v_mul_u32_u24 v4, {VR}, v4"); a.i(f"v_add_u32 v3, v3, v4"); a.i(f"v_and_b32 v4, 3, v2")
    a.i(f"v_bfe_u32 v6, v2, 3, 1"); a.i(f"v_lshl_add_u32 v4, v6, 2, v4"); a.i(f"v_lshl_add_u32 v3, v4, 1, v3")
    a.i(f"v_lshl_add_u32 v3, v5, 6, v3"); a.i(f"v_add_u32 v3, {64*16}, v3"); a.i(f"v_add_u32 {vVt}, s6, v3")
    a.i(f"s_mul_i32 s6, {sWV}, 36"); a.i(f"v_mul_u32_u24 v3, {KP}, v2"); a.i(f"v_add_u32 v3, s6, v3")
    a.i(f"v_lshl_add_u32 {vKr}, v5, 4, v3")
    a.i(f"v_add_u32 {vKl}, 32, v3")
    a.i(f"s_mul_i32 s6, {sWV}, 18"); a.i(f"v_add_u32 v3, s6, v2"); a.i(f"v_and_b32 v4, 27, v2")
    a.i(f"v_cmp_eq_u32 vcc, 18, v4"); a.i(f"v_mov_b32 v4, 73"); a.i(f"v_mov_b32 v6, 72"); a.i(f"v_cndmask_b32 v4, v4, v6, vcc")
    a.i(f"v_cmp_gt_u32 vcc, 18, v2"); a.i("s_nop 1"); a.i(f"v_cndmask_b32 v3, v4, v3, vcc")
    a.i(f"v_lshlrev_b32 v3, 4, v3"); a.i(f"v_mul_u32_u24 v4, {VR}, v5"); a.i(f"v_add_u32 {vVr}, v3, v4")
    a.i(f"v_lshlrev_b32 {vPk}, 4, {L}"); a.i(f"v_lshlrev_b32 {vPl}, 2, v2"); a.i(f"v_add_u32 {vPl}, 1024, {vPl}")
    a.i(f"v_mul_u32_u24 v3, 288, v5"); a.i(f"v_lshl_add_u32 v3, v2, 4, v3"); a.i(f"v_add_u32 {vPv}, 1152, v3")
    a.i(f"s_lshl_b32 s6, {sWV}, 2"); a.i(f"v_lshrrev_b32 v3, 3, v2"); a.i(f"v_mul_u32_u24 v3, {OUTROW}, v3")
    a.i(f"v_and_b32 v4, 7, v2"); a.i(f"v_lshl_add_u32 v3, v4, 4, v3"); a.i(f"v_add_u32 {vOl}, s6, v3")
    a.i(f"v_and_b32 v3, 27, v2"); a.i(f"v_cmp_eq_u32 vcc, 18, v3"); a.i(f"v_mov_b32 v4, 0x3f803f80"); a.i("s_nop 0")
    a.i(f"v_cndmask_b32 {vVC}, 0, v4, vcc")
    a.i(f"s_lshl_b32 s6, {sB}, 3"); a.i(f"s_add_u32 s6, s6, {sG}"); a.i(f"s_lshl_b32 s6, s6, 4"); a.i(f"s_add_u32 s6, s6, {sC}")
    a.i(f"s_mul_i32 {sKVme}, s6, {SLOT}"); a.i(f"s_mul_i32 s7, {sWV}, 2304"); a.i(f"s_add_u32 {sKVme}, {sKVme}, s7")
    a.i(f"s_sub_u32 {sKV1}, {sKVme}, {SLOT}"); a.i(f"s_sub_u32 {sKV2}, {sKVme}, {2*SLOT}")
    a.i(f"s_cmp_ge_u32 {sC}, 1"); a.i(f"s_cselect_b32 {sKV1}, {sKV1}, 0x70000000")
    a.i(f"s_cmp_ge_u32 {sC}, 2"); a.i(f"s_cselect_b32 {sKV2}, {sKV2}, 0x70000000")
    a.i(f"s_lshl_b32 s6, s6, 2"); a.i(f"s_add_u32 s6, s6, {sWV}"); a.i(f"s_lshl_b32 s6, s6, 7")
    a.i(f"s_add_u32 {sFKV}, s6, {WS_FKV}")
    a.i(f"s_cmp_ge_u32 {sC}, 1"); a.i(f"s_cselect_b32 s6, -1, 0"); a.i(f"s_cmp_ge_u32 {sC}, 2"); a.i(f"s_cselect_b32 s7, -1, 0")
    a.i(f"v_and_b32 v2, s6, {vVC}"); a.i(f"v_and_b32 v3, s7, {vVC}"); a.i(f"v_mov_b32 v4, 0x3f803f80")
    a.i(f"v_and_b32 v6, s7, v4"); a.i(f"v_and_b32 v4, s6, v4")
    for hb in range(8):
        base=HALO+14*hb
        a.i(f"v_accvgpr_write_b32 a{base+5}, {'v6' if hb<4 else 'v4'}")
        for r in range(8): a.i(f"v_accvgpr_write_b32 a{base+6+r}, {'v3' if hb<4 else 'v2'}")
    a.i(f"v_and_b32 v2, 31, {L}"); a.i(f"v_lshlrev_b32 v3, 2, v5"); a.i(f"v_sub_u32 v2, v2, v3")
    a.i(f"v_mov_b32 v6, 0xffff"); a.i(f"v_mov_b32 v7, 0xffff0000")
    for u in range(8):
        r0=2*u; k0=(r0&3)+8*(r0>>2)
        a.i(f"v_cmp_le_i32 vcc, {k0}, v2"); a.i(f"v_cmp_le_i32 s[4:5], {k0+1}, v2"); a.i("s_nop 0")
        a.i(f"v_cndmask_b32 v3, 0, v6, vcc"); a.i(f"v_cndmask_b32 v4, 0, v7, s[4:5]")
        a.i(f"v_or_b32 v{MASKD+u}, v3, v4"); a.i(f"v_not_b32 v{MASKF+u}, v{MASKD+u}")
    a.i(f"s_lshl_b32 s6, {sC}, 7"); a.i(f"s_lshl_b32 s7, {sG}, 2"); a.i("s_add_u32 s6, s6, s7")
    a.i(f"s_mul_i32 s6, s6, {OUTROW}"); a.i(f"s_mul_i32 s7, {sB}, 1152"); a.i("s_add_u32 s6, s6, s7")
    a.i(f"s_add_u32 {sOL}, s6, 1024"); a.i(f"s_mul_i32 s7, {sWV}, {OUTROW}"); a.i(f"s_add_u32 {sOM}, s6, s7")
    a.i(f"s_lshr_b32 {sRH}, {sG}, 2"); a.i(f"s_and_b32 {sNQ}, {sG}, 3")
    a.i(f"s_lshl_b32 s7, {sRH}, 1"); a.i(f"s_lshr_b32 s3, {sWV}, 1"); a.i("s_add_u32 s3, s3, s7"); a.i("s_lshl_b32 s3, s3, 5")
    a.i(f"s_lshl_b32 s7, {sC}, 7"); a.i("s_add_u32 s3, s3, s7"); a.i(f"s_mul_i32 {sPOM}, s3, {OUTROW}")
    a.i(f"s_mul_i32 s7, {sB}, 1152"); a.i(f"s_add_u32 {sPOM}, {sPOM}, s7"); a.i(f"s_add_u32 {sPOL}, {sPOM}, 1024")
    a.i(f"s_lshl_b32 s6, {sC}, 7"); a.i(f"s_lshl_b32 s7, {sRH}, 6"); a.i("s_add_u32 s6, s6, s7")
    a.i(f"s_lshl_b32 s7, {sWV}, 4"); a.i("s_add_u32 s6, s6, s7"); a.i(f"s_mul_i32 {sOUTB}, s6, {OUTROW}")
    a.i(f"s_mul_i32 s7, {sB}, 1152"); a.i(f"s_add_u32 {sOUTB}, {sOUTB}, s7")
    a.i(f"s_mul_i32 s7, {sNQ}, 288"); a.i(f"s_add_u32 {sOUTB}, {sOUTB}, s7")
    a.i(f"s_lshl_b32 s6, {sB}, 4"); a.i(f"s_add_u32 s6, s6, {sC}"); a.i(f"s_lshl_b32 {sFO}, s6, 12")
    a.i(f"s_add_u32 {sFO}, {sFO}, {WS_FO}")
    a.i(f"v_mov_b32 v252, {f2u(2.0**-40):#x}"); a.i(f"v_mov_b32 v253, {f2u(2.0**40):#x}")
    a.i(f"s_mov_b64 {sBAD}, 0")

def wq_reads(tau):
    n,t=divmod(tau,4); b=tau%2
    off=(n%3)*QCH+16*QPITCH*t
    R=[[(f"ds_read_b64_tr_b16 {QFh(b,f,h)}, {vQr} offset:{off+4*QPITCH*h+64*f}", f'q{tau}_{f}') for h in range(2)] for f in range(2)]
    R.append([(f"ds_read_b64_tr_b16 {QFh(b,2,h)}, {vQr2} offset:{off+4*QPITCH*h}", f'q{tau}_2') for h in range(2)])
    return R

def drain_side(a, side, n):
    k=0; last=''
    while side and (k<n or last.startswith('s_cmp') or (side[0] if isinstance(side[0],str) else side[0][0]).startswith('s_cselect')):
        x=side.pop(0)
        if isinstance(x,tuple): a.i(*x); last=x[0]
        else: a.i(x); last=x
        k+=1

def phase1a(a, opts, pend):
    a.c("---- phase 1a")
    def reads(tau):
        n,t=divmod(tau,4); slot=n%4; hi=slot>=2; base=(slot%2)*SLOT; b=tau%2
        R=[[(f"ds_read_b128 {XF(tau)}, {vXr[hi][t]} offset:{base}", f'x{tau}')] +
           [(f"ds_read_b64_tr_b16 {WFh(b,0,h)}, {vWr[hi]} offset:{base+5120*t+1280*h}", f'w{tau}_0') for h in range(2)]]
        for f,co in ((1,64),(2,144),(3,208)):
            R.append([(f"ds_read_b64_tr_b16 {WFh(b,f,h)}, {vWr[hi]} offset:{base+5120*t+1280*h+co}", f'w{tau}_{f}') for h in range(2)])
        R.append([(f"ds_read_b64_tr_b16 {WFh(b,4,h)}, {vMx[hi]} offset:{base+5120*t+1280*h}", f'w{tau}_4') for h in range(2)])
        return R
    a.stamp('setup_done')
    a.wait(vm='ch0')
    if opts.get('ch0v',0):
        a.i(f"v_lshlrev_b32 v2, 4, {vLane}")
        a.i(f"s_lshl_b32 {sT0}, {sWV}, 12"); a.i(f"s_add_u32 {sT0}, {sT0}, {XOFF}"); a.i(f"v_add_u32 v3, {sT0}, v2")
        a.i(f"s_mul_i32 {sT0}, {sWV}, 5120"); a.i(f"v_add_u32 v2, {sT0}, v2")
        for i in range(4): a.i(f"ds_write_b128 v3, v[{52+4*i}:{55+4*i}] offset:{1024*i}", 'c0w')
        for j in range(5): a.i(f"ds_write_b128 v2, v[{68+4*j}:{71+4*j}] offset:{1024*j}", 'c0w')
        a.wait(lg=0)
    a.i("s_barrier")
    a.stamp('ch0_landed')
    if opts.get('idle_1a'): a.i(f"s_sleep {opts['idle_1a']}")
    for grp in reads(0): a.emit(grp)
    names=['K0','K1','V0','V1','MX']
    side=opts.get('_side',[])
    every=opts.get('dma_every',2)
    slotcnt=0
    for tau in range(36):
        n,t=divmod(tau,4); b=tau%2
        if t==0: a.stamp(f'c{n}')
        if t==0: pagepad(a,opts,f'c{n}')
        if t==3:
            a.wait(vm=f'ch{n+1}' if n<8 else 'wq0')
            a.i("s_barrier")
            if n<=5:
                pend += dma_chunk_groups((n+3)%4, n+3)
                if (n==5 and opts.get('wotouch',3)==1) or (n==0 and opts.get('wotouch',3)==3) or (n==2 and opts.get('wotouch',3)==4):
                    rec=Rec(); touch_wo(rec); pend.append(rec.l)
            elif n==6:
                pend.append([f"s_mov_b32 {sCI}, {sROT}", f"s_mul_i32 {sWoff}, {sCI}, {64*WROW}", f"s_mov_b32 {sIDX}, {sOFF}"])
                for q in range(3): pend += dma_wq_groups(q)
            elif n==7:
                for q in range(3,6): pend += dma_wq_groups(q)
            elif n==8:
                for q in range(6,9): pend += dma_wq_groups(q)
        R = reads(tau+1) if tau<35 else wq_reads(0)
        for m,nm in enumerate(names):
            a.wait(lg=[f'w{tau}_{m}']+([f'x{tau}'] if m==0 else []))
            acc=rng('v',ACC[nm],16); c='0' if tau==0 else acc
            if nm in ('V0','V1'): a.i(f"v_mfma_f32_32x32x16_bf16 {acc}, {XF(tau)}, {WF(b,m)}, {c}")
            else: a.i(f"v_mfma_f32_32x32x16_bf16 {acc}, {WF(b,m)}, {XF(tau)}, {c}")
            if m<len(R): a.emit(R[m])
            slotcnt+=1
            if pend and (slotcnt%every==0 or len(pend)>9): a.emit(pend.pop(0))
            elif side: drain_side(a, side, opts.get('side_n',5))
        if tau==30:
            a.i(f"v_mov_b32 {vT}, 0")
            a.i(f"buffer_load_dwordx2 {vNON}, {vT}, {sDBG}, 0 offen sc1", tag='nonce')
    assert not side, len(side)
    return pend

def epi1a_list():
    A=[]; T=76
    for ti,nm in enumerate(('K0','K1')):
        base=ACC[nm]
        for i in range(4):
            t0=T+2*(i%2)
            A+= [f"v_cvt_pk_bf16_f32 v{t0}, v{base+4*i}, v{base+4*i+1}", f"v_cvt_pk_bf16_f32 v{t0+1}, v{base+4*i+2}, v{base+4*i+3}",
                 (f"ds_write2_b32 {vKw}, v{t0}, v{t0+1} offset0:{16*ti+4*i} offset1:{16*ti+4*i+1}",'e1w')]
    for ti,nm in enumerate(('V0','V1')):
        base=ACC[nm]
        for j in range(2):
            t0=T+4+4*j
            for u in range(4): A.append(f"v_cvt_pk_bf16_f32 v{t0+u}, v{base+8*j+2*u}, v{base+8*j+2*u+1}")
            A.append((f"ds_write_b128 {vVw}, v[{t0}:{t0+3}] offset:{VJ*j+512*ti}",'e1w'))
    base=ACC['MX']; t0=T+12
    A+= [f"v_cvt_pk_bf16_f32 v{t0}, v{base}, v{base+1}", f"v_cvt_pk_bf16_f32 v{t0+1}, v{base+2}, v{base+3}",
         (f"ds_write2_b32 {vKw}, v{t0}, v{t0+1} offset0:32 offset1:33",'e1w'),
         f"v_cvt_pk_bf16_f32 v{t0+2}, v{base+4}, v{base+5}", f"v_cvt_pk_bf16_f32 v{t0+3}, v{base+6}, v{base+7}",
         (f"ds_write_b16 {vVt}, v{t0+2}",'e1w'), (f"ds_write_b16_d16_hi {vVt}, v{t0+2} offset:16",'e1w'),
         (f"ds_write_b16 {vVt}, v{t0+3} offset:32",'e1w'), (f"ds_write_b16_d16_hi {vVt}, v{t0+3} offset:48",'e1w')]
    A+= [f"v_and_b32 v{t0}, 1, {vLane}", f"v_cmp_eq_u32 vcc, 0, v{t0}", f"v_mov_b32 v{t0+1}, 0x3f803f80", "s_nop 0",
         f"v_cndmask_b32 v{t0}, 0, v{t0+1}, vcc", f"v_mov_b32 v{t0+1}, v{t0}", f"v_mov_b32 v{t0+2}, v{t0}", f"v_mov_b32 v{t0+3}, v{t0}",
         "s_mov_b64 exec, 0xff", (f"ds_write_b128 {vCw}, v[{t0}:{t0+3}]",'e1w'), "s_mov_b64 exec, -1"]
    return A

def own_presets():
    L=[f"v_mov_b32 v91, 0x3f803f80"]
    for bt in range(4): L.append(f"v_mov_b32 v{OWN+14*bt+5}, v91")
    return L
def own_reads():
    L=[]
    for bt in range(4):
        base=OWN+14*bt
        kb = KB0+KBLK*bt if bt<3 else KB3
        L.append(f"v_add_u32 v88, {kb}, {vKr}"); L.append(f"v_add_u32 v89, {kb}, {vKl}")
        L.append((f"ds_read2_b32 v[{base}:{base+1}], v88 offset0:0 offset1:1",'own'))
        L.append((f"ds_read2_b32 v[{base+2}:{base+3}], v88 offset0:2 offset1:3",'own'))
        L.append((f"ds_read_b32 v{base+4}, v89",'own'))
    for bt in range(4):
        base=OWN+14*bt
        for j in range(2): L.append((f"ds_read_b128 v[{base+6+4*j}:{base+9+4*j}], {vVr} offset:{VB*bt+VJ*j}",'own'))
    return L
def own_store_groups(mod='sc1'):
    Gs=[]
    for bt in range(4):
        base=OWN+14*bt; tag='pubA' if bt<2 else 'pubB'
        Gs.append([f"s_add_u32 {sT0}, {sKVme}, {9216*bt}", (f"buffer_store_dwordx4 v[{base}:{base+3}], {vPk}, {sWS}, {sT0} offen {mod}",tag)])
        Gs.append([f"s_add_u32 {sT0}, {sKVme}, {9216*bt}", f"s_mov_b64 exec, {sLO}", (f"buffer_store_dword v{base+4}, {vPl}, {sWS}, {sT0} offen {mod}",tag), "s_mov_b64 exec, -1"])
        for j in range(2):
            Gs.append([f"s_add_u32 {sT0}, {sKVme}, {9216*bt}", f"s_mov_b64 exec, {sVM}", (f"buffer_store_dwordx4 v[{base+6+4*j}:{base+9+4*j}], {vPv}, {sWS}, {sT0} offen offset:{576*j} {mod}",tag), "s_mov_b64 exec, -1"])
    return Gs

def flag_store_ins(cnt):
    return [f"s_add_u32 {sT1}, {sNONh}, {cnt}", f"v_mov_b32 v2, {sNONl}", f"v_mov_b32 v3, {sT1}", f"v_mov_b32 v4, 0",
            "s_mov_b64 exec, 1", (f"buffer_store_dwordx2 v[2:3], v4, {sWS}, {sFKV} offen sc1", f'kvflag{cnt}'), "s_mov_b64 exec, -1"]

def xt_base():
    return [f"s_lshl_b32 {sT0}, {sB}, 4", f"s_add_u32 {sT0}, {sT0}, {sC}", f"s_lshl_b32 {sT0}, {sT0}, 10", f"s_add_u32 {sT0}, {sT0}, {WS_XT}"]
def xt_store():
    return xt_base()+[f"s_add_u32 {sLFH}, {sXCC}, 1", f"s_lshl_b32 {sLFH}, {sLFH}, 8", f"s_add_u32 {sLFH}, {sLFH}, {sNONh}",
            f"s_lshl_b32 {sT1}, {sG}, 7", f"s_add_u32 {sT0}, {sT0}, {sT1}",
            f"v_mov_b32 v2, {sNONl}", f"v_mov_b32 v3, {sLFH}", f"v_mov_b32 v4, 0",
            "s_mov_b64 exec, 1", (f"buffer_store_dwordx2 v[2:3], v4, {sWS}, {sT0} offen sc1",'xt'), "s_mov_b64 exec, -1"]
def xt_load():
    return xt_base()+[f"v_lshlrev_b32 v2, 7, {vLane}", "s_mov_b64 exec, 0xff",
            (f"buffer_load_dwordx2 v[8:9], v2, {sWS}, {sT0} offen sc1",'xtl'), "s_mov_b64 exec, -1"]
def xt_check(a):
    a.wait(vm='xtl')
    a.i("s_mov_b64 exec, 0xff")
    a.i(f"v_cmp_eq_u32 vcc, {sNONl}, v8"); a.i(f"v_cmp_eq_u32 s[4:5], {sLFH}, v9")
    a.i("s_mov_b64 exec, -1")
    a.i("s_and_b64 s[4:5], s[4:5], vcc"); a.i("s_and_b32 s4, s4, 0xff"); a.i("s_cmp_eq_u32 s4, 0xff")
    a.i(f"s_cselect_b32 {sLOC}, 1, 0")
    if GOPT.get('force_remote'): a.i(f"s_mov_b32 {sLOC}, 0")

def wo_group_for(kbase):
    setup=[f"s_add_u32 {sT1}, {sWV}, {kbase}", f"s_mul_i32 {sT2}, {sT1}, 41472", f"s_mul_i32 {sT3}, {sT1}, 9216"]
    return wo8_groups(setup)

def phase1b(a, pend, opts):
    a.c("---- phase 1b")
    if opts.get('idle_1b'): a.i(f"s_sleep {opts['idle_1b']}")
    a.stamp('1a_end')
    q=[]; stores=[]; wo=[]
    E2=opts.get('e2',4)
    FAST=opts.get('fastA',1)
    sched={}
    tt=E2+1
    for g in range(16):
        sched.setdefault(tt,[]).append(g)
        tt += 1 if ((g<7 and FAST) or opts.get('fastB',0)) else 2
    FLAGA=opts.get('flagA',24)
    woaddr=[f"v_mov_b32 {d_}, {s_}" for d_,s_ in zip(vWOm+vWOl+vWOt,vWOtmp)]+wo8_setup()
    for tau in range(36):
        n,t=divmod(tau,4); b=tau%2
        a.stamp(f'b{tau}_')
        if tau==1:
            a.i("s_barrier"); q+=epi1a_list()
        if tau==E2:
            a.drain(q,1000); a.wait(lg=0); a.i("s_barrier")
            a.emit(own_reads())
        if tau==E2+1:
            a.wait(lg='own')
            a.stamp('pub_start')
            stores=own_store_groups()
            q+=woaddr
        if tau==E2+3:
            a.i("s_barrier")
        if tau==E2+6: wo+=wo_group_for(0); q+=own_presets()
        if tau==15: wo+=wo_group_for(4)
        if tau==27: wo+=wo_group_for(8)
        if tau==FLAGA:
            a.wait(vm='pubA'); get_nonce(a); a.emit(flag_store_ins(2)); a.stamp('flagA')
            if opts.get('olocal'): a.emit(xt_store())
        if t==3 and tau<35:
            a.wait(vm=f'wq{n+1}')
            a.i("s_barrier")
            if (n+1)%3==0: a.i(f"v_add_u32 {vQr}, {SLOT}, {vQr}"); a.i(f"v_add_u32 {vQr2}, {SLOT}, {vQr2}")
        R = wq_reads(tau+1) if tau<35 else []
        for m,nm in enumerate(('Q0','Q1','Q2')):
            a.wait(lg=[f'q{tau}_{m}'])
            if nm=='Q2':
                acc=rng('v',ACC[nm],4); c='0' if tau==0 else acc
                a.i(f"v_mfma_f32_16x16x32_bf16 {acc}, {QF(b,m)}, {XF(tau)}, {c}")
            else:
                acc=rng('v',ACC[nm],16); c='0' if tau==0 else acc
                a.i(f"v_mfma_f32_32x32x16_bf16 {acc}, {QF(b,m)}, {XF(tau)}, {c}")
            if m<len(R): a.emit(R[m])
            if m==0 and tau in sched:
                for g in sched[tau]:
                    if opts.get('nopub'):
                        for x in stores[g]:
                            if isinstance(x,tuple): a.vm.append(x[1])
                    else: a.emit(stores[g])
            elif q and tau<E2: a.drain(q,opts.get('epi_rate',7))
            elif pend: a.emit(pend.pop(0))
            elif q: drain_side2(a,q,4)
            elif opts.get('nowo1b',1): pass
            elif wo and m==2: a.emit(wo.pop(0))
            elif wo and m==1 and opts.get('wo2',1): a.emit(wo.pop(0))
    assert not pend and not q, (len(pend),len(q))
    for tt_ in sorted(sched):
        if tt_>35:
            for g in sched[tt_]: a.emit(stores[g])
    opts['_wo_left']=wo
    a.stamp('1b_end')
    a.emit(kv_flag_load(0))
    a.nop(14)
    T=76
    a.i(f"v_mov_b32 v90, {sSC}"); a.i(f"v_mov_b32 v91, {sSC}")
    for ti,nm in enumerate(('Q0','Q1','Q2')):
        base=ACC[nm]; ni=4 if ti<2 else 1
        for r in range(0,4*ni,2): a.i(f"v_pk_mul_f32 v[{base+r}:{base+r+1}], v[90:91], v[{base+r}:{base+r+1}]")
    for ti,nm in enumerate(('Q0','Q1','Q2')):
        base=ACC[nm]; ni=4 if ti<2 else 1
        for i in range(ni):
            t0=T+2*((ti*4+i)%8)
            a.i(f"v_cvt_pk_bf16_f32 v{t0}, v{base+4*i}, v{base+4*i+1}"); a.i(f"v_cvt_pk_bf16_f32 v{t0+1}, v{base+4*i+2}, v{base+4*i+3}")
            if ti==2:
                a.i(f"v_and_b32 v2, 15, {vLane}"); a.i(f"v_lshrrev_b32 v3, 5, {vLane}"); a.i(f"v_lshl_add_u32 v2, v3, 4, v2")
                a.i(f"v_mul_u32_u24 v2, {KP}, v2"); a.i(f"v_bfe_u32 v3, {vLane}, 4, 1"); a.i(f"v_lshl_add_u32 v2, v3, 3, v2")
                a.i(f"s_mul_i32 {sT0}, {sWV}, {KBLK}"); a.i(f"s_add_u32 {sT0}, {sT0}, {QBASE+128}"); a.i(f"v_add_u32 v2, {sT0}, v2")
                a.i(f"ds_write2_b32 v2, v{t0}, v{t0+1} offset0:0 offset1:1",'e2w')
            else: a.i(f"ds_write2_b32 {vQw}, v{t0}, v{t0+1} offset0:{16*ti+4*i} offset1:{16*ti+4*i+1}",'e2w')
    a.i(f"v_mov_b32 {vT}, 0")
    for i in range(4):
        for r in range(4,8): a.i(f"v_accvgpr_write_b32 a{8*i+r}, {vT}")
    a.wait(lg=0); a.i("s_barrier")
    for i in range(4):
        a.i(f"v_add_u32 v88, {QBASE+KBLK*i}, {vKr}")
        a.i(f"ds_read2_b32 a[{8*i}:{8*i+1}], v88 offset0:0 offset1:1",'qf')
        a.i(f"ds_read2_b32 a[{8*i+2}:{8*i+3}], v88 offset0:2 offset1:3",'qf')
    a.i(f"s_mov_b64 exec, {sLO}")
    for i in range(4):
        a.i(f"v_add_u32 v89, {QBASE+KBLK*i}, {vKl}")
        a.i(f"ds_read_b32 a{8*i+4}, v89",'qf')
    a.i("s_mov_b64 exec, -1")
    a.wait(lg='qf')
    a.i("s_barrier")
    a.stamp('q_ready')

def drain_side2(a, q, n):
    k=0; inexec=False; last=''
    while q and (k<n or inexec or last.startswith('s_cmp') or (q[0] if isinstance(q[0],str) else q[0][0]).startswith('s_cselect')):
        x=q.pop(0)
        txt=x[0] if isinstance(x,tuple) else x
        if txt.startswith('s_mov_b64 exec'): inexec = not txt.endswith('-1')
        if isinstance(x,tuple): a.i(*x)
        else: a.i(x)
        last=txt; k+=1

vFL='v[6:7]'; vFA='v5'
def kv_flag_load(rnd):
    L=[]
    if rnd==0:
        L+= [f"s_cmp_ge_u32 {sC}, 2", f"s_cselect_b32 {sT1}, 2, 1", f"s_lshl_b32 {sT1}, {sT1}, 9",
             f"s_sub_u32 {sT0}, {sFKV}, 512", f"s_sub_u32 {sT1}, {sFKV}, {sT1}",
             f"s_cmp_eq_u32 {sC}, 0", f"s_cselect_b32 {sT0}, {sFKV}, {sT0}", f"s_cselect_b32 {sT1}, {sFKV}, {sT1}",
             f"v_mov_b32 v8, {sT0}", f"v_mov_b32 v9, {sT1}", f"v_cmp_eq_u32 vcc, 0, {vLane}", "s_nop 1",
             f"v_cndmask_b32 {vFA}, v9, v8, vcc"]
    L+= ["s_mov_b64 exec, 3", (f"buffer_load_dwordx2 {vFL}, {vFA}, {sWS}, 0 offen sc1", f'fl{rnd}'), "s_mov_b64 exec, -1"]
    return L

def kv_flag_check(a, rnd, need):
    a.wait(vm=f'fl{rnd}')
    a.i(f"s_mov_b32 {sCNT}, 200000")
    if GOPT.get('X_nochk'): a.i(f"s_branch L_ok{rnd}")
    a.label(f"L_chk{rnd}")
    a.i(f"s_cmp_eq_u32 {sC}, 0"); a.i(f"s_cbranch_scc1 L_ok{rnd}")
    a.i("s_mov_b64 exec, 3")
    a.i(f"v_subrev_u32 v8, {sNONh}, v7")
    a.i(f"v_cmp_eq_u32 vcc, {sNONl}, v6")
    a.i(f"v_cmp_le_u32 s[4:5], {need}, v8")
    a.i(f"v_cmp_ge_u32 s[6:7], 4, v8")
    a.i("s_mov_b64 exec, -1")
    a.i("s_and_b64 s[4:5], s[4:5], vcc"); a.i("s_and_b64 s[4:5], s[4:5], s[6:7]"); a.i("s_and_b32 s4, s4, 3")
    a.i("s_cmp_eq_u32 s4, 3"); a.i(f"s_cbranch_scc1 L_ok{rnd}")
    a.i("s_mov_b64 exec, 3")
    a.i(f"buffer_load_dwordx2 {vFL}, {vFA}, {sWS}, 0 offen sc1", cond=True)
    a.i("s_mov_b64 exec, -1")
    a.i("s_waitcnt vmcnt(0)")
    a.i(f"s_sub_u32 {sCNT}, {sCNT}, 1"); a.i(f"s_cmp_lg_u32 {sCNT}, 0"); a.i(f"s_cbranch_scc1 L_chk{rnd}")
    a.label(f"L_ok{rnd}")
    a.stamp(f'chk{rnd}')

def wo_addr(a):
    L=vLane
    a.i(f"s_mul_i32 s6, {sNQ}, 288")
    a.i(f"v_lshrrev_b32 v4, 4, {L}")
    a.i(f"v_and_b32 v5, 15, {L}")
    for par in range(2):
        a.i(f"v_add_u32 v6, {4*par}, v4"); a.i(f"v_lshlrev_b32 v6, 1, v6"); a.i(f"v_xor_b32 v6, v5, v6")
        a.i(f"v_lshlrev_b32 v6, 4, v6"); a.i(f"v_add_u32 v6, s6, v6")
        a.i(f"v_mul_u32_u24 v7, {XROW}, v4"); a.i(f"v_add_u32 {vWOm[par]}, v6, v7")
        a.i(f"v_lshrrev_b32 v7, 1, v4"); a.i(f"v_mul_u32_u24 v7, 18, v7"); a.i(f"v_and_b32 v8, 1, v4"); a.i(f"v_add_u32 v7, v7, v8")
        a.i(f"v_mul_u32_u24 v7, {XROW}, v7"); a.i(f"v_add_u32 {vWOl[par]}, v6, v7")
    a.i(f"v_lshrrev_b32 v4, 1, {L}")
    a.i(f"v_and_b32 v5, 1, {L}"); a.i(f"v_lshlrev_b32 v5, 4, v5"); a.i(f"v_add_u32 v5, 256, v5"); a.i(f"v_add_u32 v5, s6, v5")
    a.i(f"v_bfe_u32 v6, v4, 2, 2")
    a.i(f"v_and_b32 v7, 3, v4"); a.i(f"v_lshrrev_b32 v8, 4, v4")
    a.i(f"v_lshrrev_b32 v2, 1, v6"); a.i(f"v_mul_u32_u24 v2, 18, v2"); a.i(f"v_add_u32 v2, v2, v7"); a.i(f"v_lshl_add_u32 v2, v8, 3, v2")
    a.i(f"v_and_b32 v3, 1, v6"); a.i(f"v_lshl_add_u32 v2, v3, 2, v2"); a.i(f"v_mul_u32_u24 v2, {XROW}, v2"); a.i(f"v_add_u32 {vWOt[0]}, v2, v5")
    a.i(f"v_lshl_add_u32 v7, v8, 2, v7")
    a.i(f"v_lshrrev_b32 v2, 1, v7"); a.i(f"v_lshl_add_u32 v2, v6, 2, v2"); a.i(f"v_mul_u32_u24 v2, 18, v2")
    a.i(f"v_and_b32 v3, 1, v7"); a.i(f"v_add3_u32 v2, v2, v3, 16"); a.i(f"v_mul_u32_u24 v2, {XROW}, v2"); a.i(f"v_add_u32 {vWOt[1]}, v2, v5")

vWO8=[f'v{22+e}' for e in range(8)]
def wo8_setup():
    L=[]
    for e in range(8):
        const=(((e&3)>>1)*18+8*(e>>2)+4*(e&1))*XROW-1024*(e%4)
        if const>=0: L.append(f"v_add_u32 {vWO8[e]}, {const}, {vWOm[e&1]}")
        else: L.append(f"v_subrev_u32 {vWO8[e]}, {-const}, {vWOm[e&1]}")
    return L
def wo8_groups(uniform_setup):
    Gs=[]
    for e in range(8):
        pre = list(uniform_setup) if e==0 else []
        if e%4==0: pre += [f"s_add_u32 m0, {sT3}, {4096*(e//4)}", "s_nop 0"]
        Gs.append(pre+[(f"buffer_load_dwordx4 {vWO8[e]}, {sWO}, {sT2} offen offset:{1024*(e%4)} lds",'wo')])
    Gs.append([f"s_add_u32 m0, {sT3}, 8192", "s_nop 0", (f"buffer_load_dwordx4 {vWOt[0]}, {sWO}, {sT2} offen lds",'wo')])
    return Gs

def wo_dma_groups(kap, slot, uniform_setup):
    Gs=[]
    left = kap>=16
    for e in range(8):
        if left: const=((4*(e&3)+2*(e>>2))*18+16)*XROW
        else: const=(((e&3)>>1)*18+8*(e>>2)+4*(e&1))*XROW
        pre = list(uniform_setup) if e==0 else []
        if e%4==0: pre += [f"s_add_u32 m0, {sT3}, {4096*(e//4)}"]
        voff=(vWOl if left else vWOm)[e&1]
        Gs.append(pre+[f"s_add_u32 {sWOs}, {sT2}, {const-1024*(e%4)}" if const-1024*(e%4)>=0 else f"s_sub_u32 {sWOs}, {sT2}, {1024*(e%4)-const}",
                       (f"buffer_load_dwordx4 {voff}, {sWO}, {sWOs} offen offset:{1024*(e%4)} lds",'wo')])
    Gs.append([f"s_add_u32 m0, {sT3}, 8192", "s_nop 0", (f"buffer_load_dwordx4 {vWOt[1 if left else 0]}, {sWO}, {sT2} offen lds",'wo')])
    return Gs

def wo_prefetch_groups():
    Gs=[]
    for it in range(4):
        setup=[f"s_add_u32 {sT1}, {sWV}, {4*it}", f"s_mul_i32 {sT2}, {sT1}, 41472", f"s_mul_i32 {sT3}, {sT1}, 9216"]
        Gs+=wo_dma_groups(0,None,setup)
    return Gs

def wo_left_groups(L_, ldsbase, regs=None):
    vl0,vl1,vt = regs or (vWOl[0],vWOl[1],vWOt[1])
    g0=L_*16*18*XROW
    setup=[f"s_lshl_b32 {sT1}, {sWV}, 1", f"s_and_b32 {sT1}, {sT1}, 3", f"s_lshl_b32 {sT1}, {sT1}, 2",
           f"s_lshr_b32 {sT2}, {sWV}, 1", f"s_lshl_b32 {sT2}, {sT2}, 1", f"s_add_u32 {sT1}, {sT1}, {sT2}",
           f"s_mul_i32 {sT1}, {sT1}, {18*XROW}", f"s_add_u32 {sT2}, {sT1}, {g0+16*XROW}",
           f"s_lshl_b32 {sT1}, {sWV}, 11", f"s_add_u32 m0, {sT1}, {ldsbase}", "s_nop 0"]
    G0=setup+[(f"buffer_load_dwordx4 {vl0}, {sWO}, {sT2} offen lds",'wo')]
    G1=[f"s_add_u32 {sT2}, {sT2}, {4*18*XROW-1024}", (f"buffer_load_dwordx4 {vl1}, {sWO}, {sT2} offen offset:1024 lds",'wo')]
    G2=[f"s_mov_b32 {sT2}, {g0}", f"s_mov_b32 m0, {ldsbase+8192}", "s_nop 0", (f"buffer_load_dwordx4 {vt}, {sWO}, {sT2} offen lds",'wo')]
    return [G0,G1,G2]

def halo_load_groups(hb):
    base=HALO+14*hb; src=sKV2 if hb<4 else sKV1; bt=hb%4; tg=f'h{hb}'
    return [[f"s_add_u32 {sT0}, {src}, {9216*bt}",
             (f"buffer_load_dwordx4 a[{base}:{base+3}], {vPk}, {sWS}, {sT0} offen sc1", tg),
             (f"buffer_load_dword a{base+4}, {vPl}, {sWS}, {sT0} offen sc1", tg),
             f"s_mov_b64 exec, {sVM}",
             (f"buffer_load_dwordx4 a[{base+6}:{base+9}], {vPv}, {sWS}, {sT0} offen sc1", tg),
             (f"buffer_load_dwordx4 a[{base+10}:{base+13}], {vPv}, {sWS}, {sT0} offen offset:576 sc1", tg),
             "s_mov_b64 exec, -1"]]

def get_nonce(a):
    a.i(f"v_readfirstlane_b32 {sNONl}, v48"); a.i(f"v_readfirstlane_b32 {sNONh}, v49"); a.i("s_nop 1")
    a.i(f"s_or_b32 {sT0}, {sNONl}, {sNONh}"); a.i(f"s_cmp_lg_u32 {sT0}, 0"); a.i("s_cbranch_scc1 L_have_nonce")
    a.i(f"s_mov_b32 {sCNT}, 100000")
    a.label("L_nonce_poll")
    a.i(f"v_mov_b32 {vT}, 0")
    a.i(f"buffer_load_dwordx2 {vNON}, {vT}, {sDBG}, 0 offen sc1", cond=True)
    a.i("s_waitcnt vmcnt(0)")
    a.i(f"v_readfirstlane_b32 {sNONl}, v48"); a.i(f"v_readfirstlane_b32 {sNONh}, v49"); a.i("s_nop 1")
    a.i(f"s_or_b32 {sT0}, {sNONl}, {sNONh}"); a.i(f"s_cmp_lg_u32 {sT0}, 0"); a.i("s_cbranch_scc1 L_have_nonce")
    a.i(f"s_sub_u32 {sCNT}, {sCNT}, 1"); a.i(f"s_cmp_lg_u32 {sCNT}, 0"); a.i("s_cbranch_scc1 L_nonce_poll")
    a.label("L_have_nonce")

def kv_regs(jb): return ('v', OWN+14*jb) if jb>=0 else ('a', HALO+14*(jb+8))
HORDER=[-4,-3,-8,-7,-2,-1,-6,-5]
def tile_list():
    T=[(i,bt) for i in range(4) for bt in range(i+1)]
    for jb in HORDER[:4]:
        for i in range(4):
            if i-jb<=8: T.append((i,jb))
    if GOPT.get('r2_by_q',0):
        for i in (3,2,1,0):
            for jb in HORDER[4:]:
                if i-jb<=8: T.append((i,jb))
    else:
        for jb in HORDER[4:]:
            for i in range(4):
                if i-jb<=8: T.append((i,jb))
    return T

def norm_block(i):
    O=OACC+16*i; t=84; L=[]
    L.append(f"v_rcp_f32 v{t}, v{O+10}")
    L.append(f"v_pk_add_f32 v[{t+2}:{t+3}], v[{O}:{O+1}], v[{O+2}:{O+3}]")
    L.append(f"v_pk_add_f32 v[{t+4}:{t+5}], v[{O+4}:{O+5}], v[{O+6}:{O+7}]")
    L.append(f"v_mov_b32 v{t+1}, v{t}")
    L.append(f"v_pk_add_f32 v[{t+2}:{t+3}], v[{t+2}:{t+3}], v[{O+8}:{O+9}]")
    L.append(f"v_pk_add_f32 v[{t+2}:{t+3}], v[{t+2}:{t+3}], v[{t+4}:{t+5}]")
    for r in range(0,10,2): L.append(f"v_pk_mul_f32 v[{O+r}:{O+r+1}], v[{t}:{t+1}], v[{O+r}:{O+r+1}]")
    L.append(f"v_add_f32 v{t+2}, v{t+2}, v{t+3}")
    L.append(f"v_fma_f32 v{t+2}, v{t+2}, 0, v{O+10}")
    for u in range(5): L.append(f"v_cvt_pk_bf16_f32 v{O+u}, v{O+2*u}, v{O+2*u+1}")
    L.append(f"v_cmp_nle_f32 vcc, v252, v{t+2}")
    L.append(f"v_cmp_nge_f32 s[4:5], v253, v{t+2}")
    L.append(f"s_add_u32 {sT0}, {sOM}, {i*32*OUTROW}"); L.append(f"s_add_u32 {sT1}, {sOL}, {i*32*OUTROW}")
    L.append(f"s_or_b64 {sBAD}, {sBAD}, vcc"); L.append(f"s_or_b64 {sBAD}, {sBAD}, s[4:5]")
    L.append(('OSTORE',i))
    return L

def emit_ostore(a, i):
    O=OACC+16*i
    if not GOPT.get('olocal'):
        a.i(f"buffer_store_dwordx4 v[{O}:{O+3}], {vPk}, {sOUT}, {sT0} offen sc1", 'ost')
        a.i(f"s_mov_b64 exec, {sLO}")
        a.i(f"buffer_store_dword v{O+4}, {vOl}, {sOUT}, {sT1} offen sc1", 'ost')
        a.i(f"s_mov_b64 exec, -1")
        return
    a.i(f"s_cmp_eq_u32 {sLOC}, 1"); a.i(f"s_cbranch_scc1 L_osl{i}")
    a.i(f"buffer_store_dwordx4 v[{O}:{O+3}], {vPk}, {sOUT}, {sT0} offen sc1", 'x', True)
    a.i(f"s_mov_b64 exec, {sLO}")
    a.i(f"buffer_store_dword v{O+4}, {vOl}, {sOUT}, {sT1} offen sc1", 'x', True)
    a.i(f"s_mov_b64 exec, -1")
    a.i(f"s_branch L_ose{i}")
    a.label(f"L_osl{i}")
    a.i(f"buffer_store_dwordx4 v[{O}:{O+3}], {vPk}, {sOUT}, {sT0} offen", 'ost')
    a.i(f"s_mov_b64 exec, {sLO}")
    a.i(f"buffer_store_dword v{O+4}, {vOl}, {sOUT}, {sT1} offen", 'ost')
    a.i(f"s_mov_b64 exec, -1")
    a.label(f"L_ose{i}")

def o_pretouch():
    L=vLane
    return [f"v_lshrrev_b32 v2, 3, {L}", f"v_mul_u32_u24 v2, {32*OUTROW}, v2", f"v_and_b32 v3, 7, {L}", f"v_lshl_add_u32 v2, v3, 7, v2",
            f"v_add_u32 v2, {sOM}, v2",
            f"v_bfe_u32 v3, {L}, 2, 2", f"v_mul_u32_u24 v3, {32*OUTROW}, v3", f"v_and_b32 v4, 3, {L}", f"v_mul_u32_u24 v4, {OUTROW}, v4",
            f"v_add3_u32 v3, v3, v4, {sOL}",
            f"v_cmp_le_u32 vcc, 32, {L}", f"s_lshl_b32 {sT0}, {sG}, 2", f"s_add_u32 {sT0}, {sT0}, {sWV}", f"v_cndmask_b32 v2, v2, v3, vcc",
            "s_mov_b32 s4, -1", "s_mov_b32 s5, 0xffff", "s_mov_b64 exec, s[4:5]",
            (f"buffer_load_dword v255, v2, {sOUT}, 0 offen",'touch'), "s_mov_b64 exec, -1",
            f"s_lshl_b32 {sT0}, {sT0}, 7", f"s_add_u32 {sT0}, {sT0}, {sFO}",
            f"v_mul_u32_u24 v2, {WS_FWL-WS_FOL}, {L}", f"v_add_u32 v2, {WS_FOL-WS_FO}, v2",
            "s_mov_b64 exec, 3", (f"buffer_load_dword v255, v2, {sWS}, {sT0} offen",'touch'), "s_mov_b64 exec, -1"]

def attention(a, opts):
    a.c("---- attention")
    T=tile_list(); n=len(T)
    first={}; last={}; firstuse={}
    for k,(i,jb) in enumerate(T):
        first.setdefault(i,k); last[i]=k; firstuse.setdefault(jb,k)
    Sreg=lambda k: (S0 if k%2==0 else S1)
    Preg=lambda k: (P0 if k%2==0 else P1)
    def qk(k):
        i,jb=T[k]; p,base=kv_regs(jb); S=rng('v',Sreg(k),16)
        return [f"v_mfma_f32_32x32x16_bf16 {S}, {rng(p,base,4)}, a[{8*i}:{8*i+3}], 0",
                f"v_mfma_f32_32x32x16_bf16 {S}, {rng(p,base+4,4)}, a[{8*i+4}:{8*i+7}], {S}"]
    def pv(k):
        i,jb=T[k]; p,base=kv_regs(jb); O=rng('v',OACC+16*i,16); P=Preg(k)
        c0='0' if k==first[i] else O
        return [f"v_mfma_f32_32x32x16_bf16 {O}, {rng(p,base+6,4)}, v[{P}:{P+3}], {c0}",
                f"v_mfma_f32_32x32x16_bf16 {O}, {rng(p,base+10,4)}, v[{P+4}:{P+7}], {O}"]
    waited=set()
    wo=list(opts.get('_wo_left',[]))+wo_group_for(12)+wo_left_groups(0,16*9216)
    NW=opts.get('wo_att',39)
    def rn_(t): return t.replace(vWOl[0]+',','v88,').replace(vWOl[1]+',','v89,').replace(vWOt[1]+',','v90,').replace(vWOt[0]+',','v96,')
    def rt(g): return [((rn_(x[0]),'wo2') if isinstance(x,tuple) else x) for x in g]
    opts['_wo_p3']=[rt(g) for g in wo[NW:]]
    wo=wo[:NW]
    if opts.get('X_nowo'):
        for g in wo[1:]:
            pass
        wo=wo[:1]; opts['_wo_p3']=[]
    WO_START=opts.get('wo_start',0)
    CHK0=opts.get('chk0',0); FLAGB=opts.get('flagB',3); FL1=opts.get('fl1',9); CHK1=opts.get('chk1',14)
    WO_PAUSE=opts.get('wo_pause',1)
    if opts.get('idle_att'): a.i(f"s_sleep {opts['idle_att']}")
    a.i(f"s_mov_b32 {sTRY}, 0")
    a.label("L_att")
    a.i(f"v_mov_b32 v254, 0x207")
    q0=qk(0); a.i(q0[0]); a.i(q0[1])
    extra=[]; hq=[]
    for k in range(n+1):
        a.stamp(f't{k}_')
        pagepad(a,opts,f't{k}')
        if k==CHK0:
            kv_flag_check(a,0,2)
            for jb in HORDER[:4]:
                hq += halo_load_groups(jb+8)
        if k==FLAGB:
            a.wait(vm='pubB'); a.emit(flag_store_ins(4))
        if k==FL1: a.emit(kv_flag_load(1))
        if opts.get('olocal') and k==opts.get('pre_at',19): a.emit(o_pretouch())
        if opts.get('olocal') and k==opts.get('xtl',24): a.emit(xt_load())
        if opts.get('olocal') and k==opts.get('xtc',30): xt_check(a)
        if k==CHK1:
            kv_flag_check(a,1,4)
            for jb in HORDER[4:]:
                hq += halo_load_groups(jb+8)
        mf=[]
        if k+1<n:
            i,jb=T[k+1]
            if jb<0 and jb not in waited:
                if not waited: a.stamp('own_done')
                assert any(t==f'h{jb+8}' for t in a.vm), jb
                waited.add(jb); a.wait(vm=f'h{jb+8}')
                if len(waited)==1: a.stamp('h0_landed')
            mf+=qk(k+1)
        else: mf+=[None,None]
        mf += pv(k-1) if k>=1 else [None,None]
        if k==0: a.nop(12)
        S=Sreg(k); P=Preg(k)
        i,jb=T[k] if k<n else (None,None)
        for seg in range(4):
            pk,ps = (k,seg-1) if seg>0 else (k-1,3)
            if pk>=0 and pk<n:
                Sp=Sreg(pk); Pp=Preg(pk); ip,jp=T[pk]
                for u in (2*ps,2*ps+1): a.i(f"v_cvt_pk_bf16_f32 v{Pp+u}, v{Sp+2*u}, v{Sp+2*u+1}")
                if jp==ip or jp==ip-8:
                    M=MASKD if jp==ip else MASKF
                    for u in (2*ps,2*ps+1): a.i(f"v_and_b32 v{Pp+u}, v{M+u}, v{Pp+u}")
            if k==n and seg==2: a.nop(2)
            if mf[seg]: a.i(mf[seg])
            if k<n:
                for e in range(4): a.i(f"v_exp_f32 v{S+4*seg+e}, v{S+4*seg+e}")
            a.drain(extra, 6 if k<n else 1000)
            if hq and seg in (0,2): a.emit(hq.pop(0))
            paused = WO_PAUSE and ((CHK0<=k<opts.get('wo_p1',10)) or (CHK1<=k<CHK1+opts.get('wo_p2',9)))
            segs={1:(1,),2:(1,3),3:(0,1,3)}[opts.get('wo_rate',3)]
            if k>=WO_START and wo and not paused and seg in segs: a.emit(wo.pop(0))
        if k>=1:
            ib=T[k-1][0]
            if last[ib]==k-1:
                if k==n:
                    a.nop(14); a.emit(norm_block(ib))
                elif opts.get('X_nonorm'): extra+=["s_nop 1"]+norm_block(ib)[-4:]
                else: extra+=["s_nop 1"]+norm_block(ib)
    assert not extra
    for g in wo: a.emit(g)
    a.i(f"s_or_b32 s4, s74, s75"); a.i(f"s_cmp_eq_u32 s4, 0"); a.i("s_cbranch_scc1 L_att_done")
    a.i(f"s_cmp_eq_u32 {sTRY}, 0"); a.i("s_cbranch_scc1 L_slow")
    a.label("L_att_done")
    a.stamp('att_end')

def slow_path(a):
    a.label("L_slow")
    a.i("s_waitcnt vmcnt(0) lgkmcnt(0)")
    T=tile_list(); L=vLane
    a.i(f"v_and_b32 v84, 31, {L}"); a.i(f"v_lshrrev_b32 v85, 5, {L}"); a.i("v_lshlrev_b32 v85, 2, v85"); a.i("v_sub_u32 v84, v84, v85")
    a.i("v_mov_b32 v86, 0xff800000")
    for i in range(4):
        m=f"v{P0+i}"
        a.i(f"v_mov_b32 {m}, v86")
        for n_,(ii,jb) in enumerate([t for t in T if t[0]==i]):
            lab=f"L_sk{i}_{n_}"
            if jb<0:
                a.i(f"s_cmp_lt_u32 {sC}, {2 if jb<-4 else 1}"); a.i(f"s_cbranch_scc1 {lab}")
            p_,base=kv_regs(jb); S=rng('v',S0,16)
            a.i(f"v_mfma_f32_32x32x16_bf16 {S}, {rng(p_,base,4)}, a[{8*i}:{8*i+3}], 0")
            a.i(f"v_mfma_f32_32x32x16_bf16 {S}, {rng(p_,base+4,4)}, a[{8*i+4}:{8*i+7}], {S}")
            a.nop(16)
            if jb==i or jb==i-8:
                for r in range(16):
                    k0=(r&3)+8*(r>>2)
                    a.i(f"v_cmp_{'le' if jb==i else 'gt'}_i32 vcc, {k0}, v84"); a.i("s_nop 1")
                    a.i(f"v_cndmask_b32 v{S0+r}, v86, v{S0+r}, vcc")
            for r in range(0,16,2): a.i(f"v_max3_f32 {m}, v{S0+r}, v{S0+r+1}, {m}")
            if jb<0: a.label(lab)
        a.i(f"v_mov_b32 v87, {m}"); a.nop(2)
        a.i(f"v_permlane32_swap_b32 {m}, v87"); a.nop(2)
        a.i(f"v_max_f32 {m}, {m}, v87")
        a.i(f"v_sub_f32 v87, 0, {m}")
        a.i(f"v_cvt_pk_bf16_f32 v88, v87, v87"); a.i("v_lshlrev_b32 v89, 16, v88")
        a.i("v_sub_f32 v89, v87, v89")
        a.i("v_cvt_pk_bf16_f32 v88, v87, v89")
        a.i(f"s_mov_b64 exec, {sLO}"); a.i(f"v_accvgpr_write_b32 a{8*i+5}, v88"); a.i("s_mov_b64 exec, -1")
    a.i(f"s_mov_b32 {sTRY}, 1"); a.i(f"s_mov_b64 {sBAD}, 0"); a.nop(4)
    a.i("s_branch L_att")

OF=16
DACC=88
AFV=124
vAr=[f'v{2+t}' for t in range(9)]
vOf='v11'; vOut='v12'; vOf2='v251'

def phase3(a, opts):
    a.c("---- phase 3")
    L=vLane
    a.i(f"v_mov_b32 v88, {vWOl[0]}"); a.i(f"v_mov_b32 v89, {vWOl[1]}"); a.i(f"v_mov_b32 v90, {vWOt[1]}"); a.i(f"v_mov_b32 v96, {vWOt[0]}")
    a.i(f"v_lshrrev_b32 v13, 2, {L}")
    a.i(f"v_and_b32 v14, 7, v13"); a.i(f"v_lshlrev_b32 v14, 5, v14")
    a.i(f"v_lshl_add_u32 v14, v13, 8, v14")
    a.i(f"v_and_b32 v15, 3, {L}"); a.i(f"v_lshl_add_u32 v14, v15, 3, v14")
    for t in range(8): a.i(f"v_xor_b32 {vAr[t]}, {32*t}, v14")
    a.i(f"v_lshlrev_b32 v13, 5, v13"); a.i(f"v_lshl_add_u32 v13, v15, 3, v13"); a.i(f"v_add_u32 {vAr[8]}, 8192, v13")
    a.i(f"v_and_b32 v13, 15, {L}"); a.i(f"v_lshrrev_b32 v14, 4, {L}")
    a.i(f"s_and_b32 s6, {sWV}, 1"); a.i(f"s_lshl_b32 s6, s6, 8")
    a.i(f"v_lshl_add_u32 v15, v13, 4, s6")
    a.i(f"v_and_b32 v93, 1, v14"); a.i(f"v_lshl_add_u32 {vOf}, v93, 9, v15"); a.i(f"v_lshrrev_b32 v93, 1, v14")
    a.i(f"v_mul_u32_u24 v93, {OUTROW}, v93"); a.i(f"v_add_u32 {vOf}, {vOf}, v93")
    a.i(f"v_lshrrev_b32 v93, 7, v15"); a.i(f"v_lshl_add_u32 v93, v14, 2, v93"); a.i(f"v_mul_u32_u24 v93, {OUTROW}, v93")
    a.i(f"v_and_b32 v94, 0x70, v15"); a.i(f"v_add_u32 {vOf2}, v93, v94")
    a.i(f"v_mul_u32_u24 v15, {OUTROW}, v13"); a.i(f"v_lshl_add_u32 {vOut}, v14, 3, v15")
    a.wait(vm='wo')
    a.i("s_barrier")
    a.stamp('wo_ready')
    if opts.get('dumpwo'):
        a.i("s_cmp_lg_u32 s2, 0"); a.i("s_cbranch_scc1 L_nodump")
        a.i("v_lshlrev_b32 v13, 4, v0")
        for it in range(39):
            a.i(f"ds_read_b128 v[124:127], v13 offset:0")
            a.i("s_waitcnt lgkmcnt(0)")
            a.i(f"v_add_u32 v14, {WS_DBG+0x100000}, v13")
            a.i(f"buffer_store_dwordx4 v[124:127], v14, {sWS}, 0 offen", cond=True)
            a.i("s_waitcnt vmcnt(0)")
            a.i("v_add_u32 v13, 4096, v13")
        a.label("L_nodump"); a.lg_clear()
    def frag_reads(kap, dst):
        slot=kap if kap<17 else 0
        R=[]
        for t in range(9):
            p,r=dst(kap,t)
            off=(slot%7)*9216
            hoff=4096 if t<8 else 512
            R.append([(f"ds_read_b64_tr_b16 {p}[{r+2*h}:{r+2*h+1}], {vAr[t]} offset:{off+hoff*h}", f'a{kap}_{t}') for h in range(2)])
        return R
    NA=7; RING=29
    def dst(kap,t):
        if kap<NA: return 'a', (kap*9+t)*4
        idx=((kap-NA)*9+t)%RING
        return 'v', AFV+idx*4
    bump=lambda: [f"v_add_u32 {vAr[t]}, {7*9216}, {vAr[t]}" for t in range(9)]
    def oflag():
        a.i(f"s_lshl_b32 {sT0}, {sG}, 2"); a.i(f"s_add_u32 {sT0}, {sT0}, {sWV}"); a.i(f"s_lshl_b32 {sT0}, {sT0}, 7"); a.i(f"s_add_u32 {sT0}, {sT0}, {sFO}")
        a.i(f"v_mov_b32 v14, {sNONl}"); a.i(f"v_mov_b32 v13, 0")
        if not opts.get('olocal'):
            a.i(f"v_mov_b32 v15, {sNONh}"); a.i("s_mov_b64 exec, 1")
            a.i(f"buffer_store_dwordx2 v[14:15], v13, {sWS}, {sT0} offen sc1", 'oflag'); a.i("s_mov_b64 exec, -1")
            return
        a.i(f"s_cmp_eq_u32 {sLOC}, 1"); a.i("s_cbranch_scc1 L_ofl")
        a.i(f"v_mov_b32 v15, {sNONh}")
        a.i("s_mov_b64 exec, 1")
        a.i(f"buffer_store_dwordx2 v[14:15], v13, {sWS}, {sT0} offen sc1", 'x', True)
        a.i("s_branch L_ofe")
        a.label("L_ofl")
        a.i(f"s_add_u32 {sT0}, {sT0}, {WS_FOL-WS_FO}")
        a.i(f"v_mov_b32 v15, {sLFH}")
        a.i("s_mov_b64 exec, 1")
        a.i(f"buffer_store_dwordx2 v[14:15], v13, {sWS}, {sT0} offen", tag='oflag')
        a.label("L_ofe")
        a.i("s_mov_b64 exec, -1")
    LF_AT=opts.get('lf_at',3)
    w2=list(opts.get('_wo_p3',[]))
    for kap in range(NA):
        if kap==LF_AT:
            if not opts.get('X_noostw'): a.wait(vm='ost')
            oflag(); a.stamp('o_lflag')
        for gi,grp in enumerate(frag_reads(kap,dst)):
            a.emit(grp)
            if w2 and gi%3==0: a.emit(w2.pop(0))
        if kap%2==1: a.wait(lg=8)
    for g in w2: a.emit(g)
    if opts.get('_wo_p3'):
        a.wait(vm='wo2'); a.i("s_barrier")
    a.emit(bump())
    a.i(f"v_and_b32 v13, 31, {L}"); a.i(f"v_lshlrev_b32 v13, 7, v13")
    a.i(f"v_mov_b32 v91, {sNONh}")
    if opts.get('olocal'):
        a.i(f"v_add_u32 v14, {WS_FOL-WS_FO}, v13"); a.i(f"v_cmp_le_u32 vcc, 32, {L}")
        a.i(f"v_mov_b32 v92, {sLFH}"); a.i("s_nop 0")
        a.i(f"v_cndmask_b32 v13, v13, v14, vcc"); a.i(f"v_cndmask_b32 v91, v91, v92, vcc")
    def opoll_load(cond):
        if not opts.get('olocal'): a.i(f"s_mov_b64 exec, {sLO}")
        a.i(f"buffer_load_dwordx2 v[14:15], v13, {sWS}, {sFO} offen sc1", 'opl', cond)
        a.i("s_mov_b64 exec, -1")
    AP=opts.get('apoll',0); W0=opts.get('w0poll',1)
    if AP==1: opoll_load(False)
    for kap in range(NA,NA+3):
        for grp in frag_reads(kap,dst): a.emit(grp)
    OT=9216; OP=304
    a.i(f"v_and_b32 v252, 15, {L}"); a.i(f"v_mul_u32_u24 v252, {OP}, v252"); a.i(f"v_lshrrev_b32 v253, 4, {L}"); a.i(f"v_lshl_add_u32 v252, v253, 3, v252")
    a.i(f"s_mul_i32 {sT2}, {sWV}, {16*OP}"); a.i(f"s_add_u32 {sT2}, {sT2}, {OT}"); a.i(f"v_add_u32 v250, {sT2}, v252")
    for e in range(5):
        a.i(f"v_add_u32 v252, {64*e}, {L}"); a.i(f"v_mul_u32_u24 v253, 58255, v252"); a.i(f"v_lshrrev_b32 v253, 20, v253")
        a.i(f"v_mul_u32_u24 v254, 18, v253"); a.i(f"v_sub_u32 v254, v252, v254"); a.i(f"v_lshlrev_b32 v254, 4, v254")
        a.i(f"v_mul_u32_u24 v252, {OP}, v253"); a.i(f"v_add3_u32 v{240+e}, v252, v254, {sT2}")
        a.i(f"v_mul_u32_u24 v252, {OUTROW}, v253"); a.i(f"v_add_u32 v{245+e}, v252, v254")
    a.wait(lg=0)
    a.i("s_barrier")
    for g in wo_left_groups(1,0,('v88','v89','v90')): a.emit(g)
    a.stamp('frags_pre')
    if opts.get('X_nopoll'): a.i("s_branch L_opoll_done")
    if W0:
        a.i(f"s_cmp_lg_u32 {sWV}, 0"); a.i("s_cbranch_scc1 L_opoll_done")
    if AP==1: a.wait(vm='opl')
    else:
        opoll_load(True); a.i("s_waitcnt vmcnt(0)")
    a.i(f"s_mov_b32 {sCNT}, 200000")
    a.label("L_opoll")
    if not opts.get('olocal'): a.i(f"s_mov_b64 exec, {sLO}")
    a.i(f"v_cmp_eq_u32 vcc, {sNONl}, v14"); a.i(f"v_cmp_eq_u32 s[4:5], v91, v15")
    a.i("s_mov_b64 exec, -1")
    a.i("s_and_b64 s[4:5], s[4:5], vcc"); a.i("s_or_b32 s4, s4, s5"); a.i("s_cmp_eq_u32 s4, -1"); a.i("s_cbranch_scc1 L_opoll_done")
    if opts.get('psleep',0): a.i(f"s_sleep {opts.get('psleep',0)}")
    opoll_load(True); a.i("s_waitcnt vmcnt(0)")
    a.i(f"s_sub_u32 {sCNT}, {sCNT}, 1"); a.i(f"s_cmp_lg_u32 {sCNT}, 0"); a.i("s_cbranch_scc1 L_opoll")
    a.label("L_opoll_done")
    if W0:
        a.wait(vm='wo'); a.i("s_barrier")
    a.stamp('opoll_done')
    if opts.get('kord',1)==1: KORD=[7,0,8,1,9,2,10,3,11,4,12,5,13,6,14,15,16,17]
    else: KORD=[7,8,9]+list(range(7))+list(range(10,18))
    def oload(kap):
        if kap<16:
            a.i(f"s_add_u32 {sT0}, {sPOM}, {2*OUTROW*kap}")
            a.i(f"buffer_load_dwordx4 v[{OF+4*kap}:{OF+4*kap+3}], {vOf}, {sOUT}, {sT0} offen sc1", tag=f'of{kap}')
        else:
            a.i(f"s_add_u32 {sT0}, {sPOL}, {16*OUTROW*(kap-16)}")
            a.i(f"buffer_load_dwordx4 v[{OF+4*kap}:{OF+4*kap+3}], {vOf2}, {sOUT}, {sT0} offen sc1", tag=f'of{kap}')
    NFIRST=opts.get('ofirst',7)
    oq=list(KORD)
    for _ in range(NFIRST): oload(oq.pop(0))
    a.stamp('p3_oissued')
    if not W0:
        a.wait(vm='wo'); a.i("s_barrier")
    rq=[]
    for kap in range(NA+3,18):
        R=frag_reads(kap,dst)
        for t in range(9): rq.append((kap,t,R[t]))
    issued=(NA+3-NA)*9
    consumed=0; mcount=0
    def war_store():
        a.wait(vm=f'of{KORD[-1]}')
        a.i(f"s_lshl_b32 {sT0}, {sG}, 2"); a.i(f"s_add_u32 {sT0}, {sT0}, {sWV}"); a.i(f"s_lshl_b32 {sT0}, {sT0}, 7"); a.i(f"s_add_u32 {sT0}, {sT0}, {sFO}")
        a.i(f"v_mov_b32 v252, {sNONl}"); a.i(f"v_mov_b32 v254, 0")
        a.i(f"s_add_u32 {sT0}, {sT0}, {WS_FW-WS_FO}")
        if opts.get('olocal'):
            a.i(f"s_cmp_eq_u32 {sLOC}, 1"); a.i("s_cbranch_scc1 L_wl")
        a.i(f"v_mov_b32 v253, {sNONh}"); a.i("s_mov_b64 exec, 1")
        a.i(f"buffer_store_dwordx2 v[252:253], v254, {sWS}, {sT0} offen sc1", 'war' if not opts.get('olocal') else 'x', bool(opts.get('olocal')))
        if opts.get('olocal'):
            a.i("s_branch L_we"); a.label("L_wl")
            a.i(f"s_add_u32 {sT0}, {sT0}, {WS_FWL-WS_FW}"); a.i(f"v_mov_b32 v253, {sLFH}"); a.i("s_mov_b64 exec, 1")
            a.i(f"buffer_store_dwordx2 v[252:253], v254, {sWS}, {sT0} offen", 'war')
            a.label("L_we")
        a.i("s_mov_b64 exec, -1")
    def war_addr():
        a.i(f"v_and_b32 v13, 15, {L}"); a.i(f"s_lshl_b32 {sT0}, {sRH}, 4"); a.i(f"v_add_u32 v13, {sT0}, v13"); a.i(f"v_lshlrev_b32 v13, 7, v13")
        a.i(f"v_add_u32 v13, {WS_FW-WS_FO}, v13"); a.i(f"v_add_u32 v14, {WS_FWL-WS_FW}, v13"); a.i(f"v_cmp_le_u32 vcc, 16, {L}")
        a.i(f"v_mov_b32 v15, {sNONh}"); a.i(f"v_mov_b32 v1, {sLFH if opts.get('olocal') else sNONh}")
        a.i(f"v_cndmask_b32 v13, v13, v14, vcc"); a.i(f"v_cndmask_b32 v15, v15, v1, vcc")
    def war_load(cond=False):
        a.i(f"s_mov_b64 exec, {sLO}"); a.i(f"buffer_load_dwordx2 v[0:1], v13, {sWS}, {sFO} offen sc1", 'warl', cond); a.i("s_mov_b64 exec, -1")
    base_slot=7
    for kap in KORD:
        a.wait(vm=f'of{kap}')
        for t in range(9):
            p,r=dst(kap,t)
            if kap>=NA:
                n_=a.lg_n(f'a{kap}_{t}')
                if n_ is not None: a.wait(lg=f'a{kap}_{t}')
            acc=rng('v',DACC+4*t,4); c='0' if kap==KORD[0] else acc
            a.i(f"v_mfma_f32_16x16x32_bf16 {acc}, {p}[{r}:{r+3}], v[{OF+4*kap}:{OF+4*kap+3}], {c}")
            if kap>=NA: consumed+=1
            mcount+=1
            if mcount in (1,27,90,126): a.stamp(f'p3_m{mcount}_')
            if oq and mcount%opts.get('oevery',4)==0: oload(oq.pop(0))
            if mcount==opts.get('war_st',100): war_store()
            if mcount==opts.get('war_ld',140): war_addr(); war_load()
            if rq and issued-consumed<RING-1:
                k2,t2,ins=rq[0]
                if k2==14 and t2==0 and base_slot==7:
                    a.emit(bump()); base_slot=14
                if k2==17 and t2==0:
                    a.emit([f"v_subrev_u32 {vAr[tt]}, {14*9216}, {vAr[tt]}" for tt in range(9)])
                rq.pop(0); a.emit(ins); issued+=1
    assert not rq
    a.stamp('p3_mfma_end')
    a.wait(vm='warl')
    a.i(f"s_mov_b32 {sCNT}, 200000")
    a.label("L_wchk")
    a.i(f"s_mov_b64 exec, {sLO}")
    a.i(f"v_cmp_eq_u32 vcc, {sNONl}, v0"); a.i(f"v_cmp_eq_u32 s[4:5], v15, v1")
    a.i("s_mov_b64 exec, -1")
    a.i("s_and_b64 s[4:5], s[4:5], vcc"); a.i("s_lshr_b32 s5, s4, 16"); a.i("s_or_b32 s4, s4, s5"); a.i("s_and_b32 s4, s4, 0xffff")
    a.i("s_cmp_eq_u32 s4, 0xffff"); a.i("s_cbranch_scc1 L_wok")
    war_load(True); a.i("s_waitcnt vmcnt(0)")
    a.i(f"s_sub_u32 {sCNT}, {sCNT}, 1"); a.i(f"s_cmp_lg_u32 {sCNT}, 0"); a.i("s_cbranch_scc1 L_wchk")
    a.label("L_wok")
    a.stamp('p3_war')
    a.nop(10)
    for t in range(9):
        d=DACC+4*t
        a.i(f"v_cvt_pk_bf16_f32 v{d}, v{d}, v{d+1}"); a.i(f"v_cvt_pk_bf16_f32 v{d+1}, v{d+2}, v{d+3}")
        a.i(f"ds_write_b64 v250, v[{d}:{d+1}] offset:{32*t}", 'ow')
    a.wait(lg=0)
    for e in range(5):
        if e==4: a.i(f"s_mov_b64 exec, {sLO}")
        a.i(f"ds_read_b128 v[{32+4*e}:{35+4*e}], v{240+e}", f'or{e}')
    a.i("s_mov_b64 exec, -1")
    for e in range(5):
        a.wait(lg=f'or{e}')
        if e==4: a.i(f"s_mov_b64 exec, {sLO}")
        a.i(f"buffer_store_dwordx4 v[{32+4*e}:{35+4*e}], v{245+e}, {sOUT}, {sOUTB} offen {opts.get('outmod','')}")
    a.i("s_mov_b64 exec, -1")
    a.stamp('p3_stissued')
    a.i("s_waitcnt vmcnt(0)")

def kd(name, vgpr, accum, sgpr=102):
    return f""".section .rodata,"a"
.p2align 6
.amdhsa_kernel {name}
  .amdhsa_next_free_vgpr {vgpr}
  .amdhsa_next_free_sgpr {sgpr}
  .amdhsa_accum_offset {accum}
  .amdhsa_group_segment_fixed_size 0
  .amdhsa_kernarg_size 72
  .amdhsa_user_sgpr_count 2
  .amdhsa_user_sgpr_kernarg_segment_ptr 1
  .amdhsa_system_sgpr_workgroup_id_x 1
.end_amdhsa_kernel
"""
HEADER = """; Kernarg layout (72 bytes, ptrs only, base s[0:1]):
"""
def build(opts):
    ORDER_MODE[0]=opts.get('order','own'); GOPT.update(opts)
    a=G()
    if opts.get('stamps'):
        a.stamps=[]
        a.sel = opts['sel'].split(',') if 'sel' in opts else ['ch0_landed','1a_end','1b_end','q_ready','poll_done','own_done','att_end','wo_ready','frags_pre','opoll_done','p3_mfma_end','drained']
    prologue(a,opts)
    g0=dma_chunk_groups(0,0)
    if opts.get('ch0v',0):
        for i in range(4):
            a.i(f"v_add_u32 v2, {1024*i}, {vXoff[i]}")
            a.i(f"buffer_load_dwordx4 v[{52+4*i}:{55+4*i}], v2, {sX}, {sXoff} offen", 'ch0')
        for j in range(5):
            if j<4 and j>0: a.i(f"v_add_u32 v2, {1024*j}, {vWoff[j]}")
            src = vWoff[j] if j in (0,4) else 'v2'
            a.i(f"buffer_load_dwordx4 v[{68+4*j}:{71+4*j}], {src}, {sW}, {sWoff} offen", 'ch0')
        a.emit(next_chunk_ins(1))
        setupA(a,opts)
        setupB0(a,opts)
    else:
        if opts.get('tlbw',1):
            a.i(f"buffer_load_dword v255, {vWoff[0]}, {sW}, {sWoff} offen", 'touch')
        for g in g0[:4]: a.emit(g)
        setupA(a,opts)
        setupB0(a,opts)
        for g in g0[4:]: a.emit(g)
    def xtouch_list():
        L=vLane; r_=Rec()
        r_.i(f"v_mul_u32_u24 v226, 7282, {L}"); r_.i("v_lshrrev_b32 v226, 16, v226")
        r_.i(f"v_mul_u32_u24 v227, 9, v226"); r_.i(f"v_sub_u32 v227, {L}, v227"); r_.i("v_min_u32 v226, 3, v226")
        r_.i(f"s_lshl_b32 {sT0}, {sC}, 7"); r_.i(f"s_lshl_b32 {sT1}, {sG}, 4"); r_.i(f"s_add_u32 {sT0}, {sT0}, {sT1}"); r_.i(f"s_lshl_b32 {sT1}, {sWV}, 2"); r_.i(f"s_add_u32 {sT0}, {sT0}, {sT1}")
        r_.i(f"v_add_u32 v226, {sT0}, v226"); r_.i(f"v_mul_u32_u24 v226, {XROW}, v226"); r_.i(f"v_lshl_add_u32 v226, v227, 7, v226")
        r_.l += ["s_mov_b32 exec_hi, 15" , (f"buffer_load_dword v255, v226, {sX}, 0 offen",'touch'), "s_mov_b64 exec, -1"]
        return r_.l
    if opts.get('xtouch',1)==1: a.emit(xtouch_list())
    opts['_xt2']=[xtouch_list()] if opts.get('xtouch',1)==2 else []
    if opts.get('wotouch',3)==2: touch_wo(a)
    if opts.get('pfmode',0) in (1,2):
        a.i("v_lshlrev_b32 v2, 7, v0")
        a.raw("    v_min_u32 v2, (L_end-L_pc), v2")
        a.i("global_load_dword v255, v2, s[96:97]", tag='pf')
    if opts.get('qtouch',0): touch_q(a)
    if opts.get('pgw',0):
        L=vLane
        a.i(f"s_lshl_b32 s4, {sB}, 3"); a.i(f"s_add_u32 s4, s4, {sG}"); a.i("s_lshl_b32 s4, s4, 4"); a.i(f"s_add_u32 s4, s4, {sC}")
        a.i(f"s_mul_i32 s4, s4, {SLOT}")
        a.i(f"v_mov_b32 v2, s4"); a.i(f"v_mov_b32 v3, {WS_FKV}"); a.i(f"v_cmp_eq_u32 vcc, 1, {L}"); a.i("s_nop 1"); a.i("v_cndmask_b32 v2, v2, v3, vcc")
        a.i(f"s_sub_u32 s5, s4, {2*SLOT}"); a.i(f"s_max_i32 s5, s5, 0"); a.i("v_mov_b32 v3, s5"); a.i(f"v_cmp_eq_u32 vcc, 2, {L}"); a.i("s_nop 1"); a.i("v_cndmask_b32 v2, v2, v3, vcc")
        a.i("s_mov_b64 exec, 7"); a.i(f"buffer_load_dword v255, v2, {sWS}, 0 offen", 'touch')
        a.i(f"s_lshl_b32 s4, {sC}, 7"); a.i(f"s_mul_i32 s4, s4, {OUTROW}"); a.i("v_mov_b32 v2, 0")
        a.i("s_mov_b64 exec, 1"); a.i(f"buffer_load_dword v255, v2, {sOUT}, s4 offen", 'touch'); a.i("s_mov_b64 exec, -1")
    a.stamp('p_ch0')
    ch1g=dma_chunk_groups(1,1)
    NE=opts.get('ch1_early',0)
    for g in ch1g[:NE]: a.emit(g)
    opts['_ch1rest']=ch1g[NE:]
    a.stamp('p_ch1')
    rec=Rec(); setupB(rec,opts)
    rec2=Rec(); wo_addr(rec2)
    ren=dict(zip(vWOm+vWOl+vWOt,vWOtmp))
    def rn(x):
        for k_,v_ in ren.items(): x=x.replace(f" {k_},",f" {v_},")
        return x
    opts['_side']=rec.l+[rn(x) for x in rec2.l]
    pend=opts['_ch1rest']+opts['_xt2']+dma_chunk_groups(2,2)
    pend=phase1a(a,opts,pend)
    phase1b(a,pend,opts)
    attention(a,opts)
    phase3(a,opts)
    a.stamp('drained'); a.stamp('rt_exit',real=True)
    if opts.get('dbgtime'):
        a.i("s_waitcnt lgkmcnt(0)")
        n=len(a.stamps)
        r0=a.stamps[0][1]; r1=a.stamps[-1][1]
        a.i(f"s_not_b32 s3, s{r0}")
        a.i("v_mov_b32 v2, s3"); a.i("v_mov_b32 v3, 8"); a.i(f"v_mov_b32 v4, s{r1}"); a.i("v_mov_b32 v5, 12")
        a.i("s_mov_b64 exec, 1")
        a.i(f"buffer_atomic_umax v2, v3, {sDBG}, 0 offen sc1"); a.i(f"buffer_atomic_umax v4, v5, {sDBG}, 0 offen sc1")
        a.i(f"s_cmp_lg_u32 s2, 77"); a.i("s_cbranch_scc1 L_nodbg"); a.i(f"s_cmp_lg_u32 {sWV}, 0"); a.i("s_cbranch_scc1 L_nodbg")
        e=a.stamps[1][1]
        for k,(nm,r) in enumerate(a.stamps[2:-1][:12]):
            a.i(f"s_sub_u32 s3, s{r}, s{e}"); a.i("v_mov_b32 v2, s3"); a.i(f"v_mov_b32 v3, {16+4*k}")
            a.i(f"buffer_store_dword v2, v3, {sDBG}, 0 offen")
        a.label("L_nodbg")
        a.i("s_mov_b64 exec, -1"); a.i("s_waitcnt vmcnt(0)")
    else: a.dump_stamps(0)
    a.label("L_end"); a.i("s_endpgm")
    slow_path(a)
    errs=a.check()
    if opts.get('stamps'): print("stamps:",len(a.stamps),[x[0] for x in a.stamps])
    k1=f"{NAME}_kernel"
    txt=HEADER+f"; @launch grid=(256,1,1) block=(256,1,1) lds={LDS_BYTES}\n"
    txt+='.amdgcn_target "amdgcn-amd-amdhsa--gfx950"\n.text\n'
    txt+=f".globl {k1}\n.p2align 8\n.type {k1},@function\n{k1}:\n"+a.text()+kd(k1,512,256)
    return txt
if __name__=="__main__":
    out=sys.argv[1]
    opts={}
    for x in sys.argv[2:]:
        k,_,v=x.partition('='); opts[k]=int(v) if v.lstrip('-').isdigit() else (v or True)
    open(out,'w').write(build(opts)); print("written",out)
```

```python
import sys, os, struct
sys.path.insert(0, os.path.dirname(os.path.abspath(__file__)))
from asm import *
NAME = "concat_heads__sliding_block__sliding_block__prompt"
XROW=1152; WROW=3456; OUTROW=2304
X_BYTES=2048*1152; W_BYTES=576*3456; WO_BYTES=576*1152; OUT_BYTES=2048*2304
SLOT=36864; WPITCH=320; XOFF=20480; QPITCH=192; QCH=12288
VBASE=0; VR=1184; VJ=2368; VB=4736; KB3=18944; KB0=147456; KP=148; KBLK=32*148; QBASE=0
LDS_BYTES=163840
WS_KV=0; WS_OM=0x1000000; WS_OL=0x1400000; WS_FKV=0x1800000; WS_FO=0x1840000; WS_FOL=0x1880000; WS_FW=0x1900000; WS_FWL=0x1940000
WS_XT=0x18C0000
WS_DBG=0x2000000; WS_BYTES=0x4000000
CSCALE = 1.4426950408889634/(18**0.5)
def f2u(x): return struct.unpack('<I',struct.pack('<f',x))[0]
def rng(p,a,n): return f'{p}[{a}:{a+n-1}]'

sX='s[8:11]'; sW='s[12:15]'; sWO='s[16:19]'; sOUT='s[20:23]'; sWS='s[24:27]'; sDBG='s[28:31]'
sB='s32'; sC='s33'; sG='s34'; sWV='s35'
sVM='s[54:55]'; sLO='s[56:57]'
sCI='s58'; sWoff='s59'; sXoff='s60'; sM0='s61'; sKVme='s62'
sT0='s63'; sT1='s64'; sT2='s65'; sFKV='s66'; sT3='s67'
sNONl='s68'; sNONh='s69'; sROT='s70'; sKV1='s71'; sKV2='s72'; sXCC='s73'
sBAD='s[74:75]'; sNVM='s[52:53]'; sCNT='s76'; sOM='s77'; sOL='s78'; sFO='s79'; sSC='s80'; sATT='s81'
sLFH='s70'; sLOC='s81'
sTRY='s52'
sRH='s82'; sNQ='s83'; sPOM='s84'; sPOL='s85'; sOUTB='s86'; sWOs='s87'
sIDX='s76'; sOFF='s81'; sPAIR='s87'; sB2='s65'

vLane='v1'
vWoff=[f'v{10+j}' for j in range(5)]
vXoff=[f'v{15+j}' for j in range(4)]
vQoff=['v19','v20','v21']
vWr=['v22','v23']; vMx=['v24','v25']
vXr=[[f'v{26+t}' for t in range(4)],[f'v{30+t}' for t in range(4)]]
vQr='v34'; vQr2='v43'
vKw='v35'; vQw='v36'; vVw='v37'; vVt='v38'
vKr='v39'; vKl='v40'; vVr='v41'; vCw='v42'; vQl='v43'
vPk='v44'; vPl='v45'; vPv='v46'; vOl='v47'
vNON='v[48:49]'; vVC='v50'; vT='v51'
def WF(b,f): r=52+(b*5+f)*4; return f'v[{r}:{r+3}]'
def WFh(b,f,h): r=52+(b*5+f)*4+2*h; return f'v[{r}:{r+1}]'
def QF(b,f): r=52+(b*3+f)*4; return f'v[{r}:{r+3}]'
def QFh(b,f,h): r=52+(b*3+f)*4+2*h; return f'v[{r}:{r+1}]'
ACC={'K0':92,'K1':108,'V0':124,'V1':140,'MX':156,'Q0':172,'Q1':188,'Q2':204}
def XF(t): return rng('a',4*t,4)
OWN=92; HALO=144
S0=52; S1=68; P0=150; P1=158; OACC=172; MASKD=236; MASKF=244
vWOm=['v10','v11']; vWOl=['v12','v13']; vWOt=['v14','v15']
vWOtmp=['v220','v221','v222','v223','v224','v225']

class G(Asm):
    stamps=None; sel=None; nowait=True
    def stamp(self, name, real=False):
        if self.stamps is None: return
        if self.sel is not None and not (name.startswith('rt_') or name=='entry' or any(name.startswith(x) for x in self.sel)): return
        k=len(self.stamps)
        regs=[88,90,92,94,96,98,100,36,38,40,42,44,46,48,50][k]
        self.stamps.append((name,regs))
        if GOPT.get('allreal'): real_=True
        else: real_=real
        self.i(f"{'s_memrealtime' if real_ else 's_memtime'} s[{regs}:{regs+1}]")
        if self.nowait and not real and name!='entry':
            self.lg.pop()
        else:
            self.i("s_waitcnt lgkmcnt(0)")
            self.lg_clear()
    def dump_stamps(self, base):
        if self.stamps is None: return
        self.i("s_waitcnt lgkmcnt(0)")
        self.i(f"s_lshl_b32 s3, s2, 2"); self.i(f"s_add_u32 s3, s3, {sWV}")
        self.i(f"s_lshl_b32 s3, s3, 6"); self.i(f"s_add_u32 s3, s3, {WS_DBG+base}")
        self.i("s_mov_b64 exec, 1")
        for k,(nm,r) in enumerate(self.stamps):
            self.i(f"v_mov_b32 v2, s{r}"); self.i(f"v_mov_b32 v3, {4*k}")
            self.i(f"buffer_store_dword v2, v3, {sWS}, s3 offen")
        self.i("s_mov_b64 exec, -1"); self.i("s_waitcnt vmcnt(0)")
    def emit(self, lst):
        for x in lst:
            if isinstance(x,tuple) and x[0]=='OSTORE': emit_ostore(self,x[1])
            elif isinstance(x,tuple): self.i(*x)
            else: self.i(x)
    def drain(self, q, budget):
        k=0; inexec=False
        while q and (k<budget or inexec):
            x=q.pop(0)
            txt=x[0] if isinstance(x,tuple) else x
            if txt.startswith('s_mov_b64 exec'): inexec = not txt.endswith('-1')
            if txt=='OSTORE': emit_ostore(self,x[1])
            elif isinstance(x,tuple): self.i(*x)
            else: self.i(x)
            k+=1

def w_offsets(a):
    L=vLane
    a.i(f"s_mul_i32 s6, {sWV}, {16*WROW}"); a.i(f"s_mul_i32 s7, {sG}, 144"); a.i("s_add_u32 s6, s6, s7")
    a.i(f"s_add_u32 s6, s6, 1152")
    a.i(f"s_movk_i32 s7, {WROW}")
    a.i("v_mov_b32 v9, 0x40000000"); a.i("v_mov_b32 v8, 1008")
    for j in range(5):
        a.i(f"v_add_u32 v4, {64*j}, {L}")
        a.i(f"v_mul_u32_u24 v5, 52429, v4"); a.i(f"v_lshrrev_b32 v5, 20, v5")
        a.i(f"v_mul_u32_u24 v6, 20, v5"); a.i(f"v_sub_u32 v6, v4, v6")
        a.i(f"v_cmp_lt_u32 vcc, 8, v6")
        a.i(f"v_mul_lo_u32 v5, v5, s7")
        a.i(f"v_lshl_add_u32 v5, v6, 4, v5")
        a.i(f"v_cndmask_b32 v7, 0, v8, vcc")
        a.i(f"v_cmp_lt_u32 vcc, 17, v6")
        a.i(f"v_add3_u32 v5, v5, v7, s6")
        comp=1024*j if j<4 else 0
        if comp: a.i(f"v_subrev_u32 v5, {comp}, v5")
        else: a.i("s_nop 0")
        a.i(f"v_cndmask_b32 {vWoff[j]}, v5, v9, vcc")

def prologue(a, opts):
    L=vLane
    a.c("---- prologue")
    a.stamp('rt_entry',real=True); a.stamp('entry')
    a.i("s_load_dwordx8 s[36:43], s[0:1], 0")
    a.i("s_load_dwordx8 s[44:51], s[0:1], 32")
    a.i("s_load_dwordx2 s[52:53], s[0:1], 64")
    a.i("s_cmp_ge_u32 s2, 256")
    a.i("s_cbranch_scc1 L_end")
    a.i("s_getpc_b64 s[90:91]") if False else None
    a.i("s_getpc_b64 s[4:5]")
    a.label("L_pc")
    PFM=opts.get('pfmode',0)
    if PFM in (1,2):
        a.i("s_mov_b32 s96, s4"); a.i("s_mov_b32 s97, s5")
    a.i("v_lshlrev_b32 v2, 7, v0")
    a.raw("    v_min_u32 v2, (L_end-L_pc), v2")
    if PFM==1:
        a.i("v_cmp_gt_u32 vcc, 64, v0"); a.i("s_and_saveexec_b64 s[6:7], vcc"); a.i("s_cbranch_execz L_pf1")
        a.i("global_load_dword v255, v2, s[4:5]", tag='pf', cond=True)
        a.label("L_pf1"); a.i("s_mov_b64 exec, -1")
    elif PFM==0 and not opts.get('nopf'): a.i("global_load_dword v255, v2, s[4:5]", tag='pf')
    if opts.get('pf2'):
        a.i("v_lshlrev_b32 v2, 7, v0"); a.i("v_add_u32 v2, 32768, v2")
        a.raw("    v_min_u32 v2, (L_end-L_pc), v2")
        a.i("global_load_dword v255, v2, s[4:5]", tag='pf')
    a.i(f"v_and_b32 {L}, 63, v0")
    a.i("v_lshrrev_b32 v2, 6, v0")
    a.i("s_and_b32 s3, s2, 7")
    a.i(f"v_readfirstlane_b32 {sWV}, v2")
    a.i(f"s_lshr_b32 {sB}, s3, 2")
    a.i("s_lshr_b32 s4, s2, 3")
    a.i("s_and_b32 s5, s3, 3")
    a.i(f"s_lshl_b32 {sC}, s5, 2")
    a.i("s_lshr_b32 s5, s4, 3")
    a.i(f"s_add_u32 {sC}, {sC}, s5")
    a.i(f"s_and_b32 {sG}, s4, 7")
    a.i("s_lshl_b32 s5, s5, 1")
    a.i(f"s_add_u32 s6, s5, {sG}")
    a.i("s_sub_u32 s7, s6, 9")
    a.i("s_cmp_ge_u32 s6, 9")
    a.i(f"s_cselect_b32 {sROT}, s7, s6")
    if opts.get('order','own')=='own':
        a.i(f"s_add_u32 {sOFF}, s5, {sG}"); a.i(f"s_and_b32 {sOFF}, {sOFF}, 7")
        a.i("s_and_b32 s6, s3, 3"); a.i("s_lshl_b32 s6, s6, 1"); a.i(f"s_and_b32 s7, {sC}, 1"); a.i(f"s_add_u32 {sROT}, s6, s7")
        a.i(f"s_mov_b32 {sIDX}, {sOFF}")
    elif opts.get('order')=='norot': a.i(f"s_mov_b32 {sROT}, 0")
    if opts.get('order','own')=='pair':
        a.i(f"s_add_u32 {sOFF}, s5, {sG}"); a.i(f"s_sub_u32 s6, {sOFF}, 7"); a.i(f"s_cmp_ge_u32 {sOFF}, 7"); a.i(f"s_cselect_b32 {sOFF}, s6, {sOFF}")
        a.i("s_and_b32 s6, s3, 3"); a.i("s_lshl_b32 s6, s6, 1"); a.i(f"s_add_u32 s7, {sG}, {sC}"); a.i("s_and_b32 s7, s7, 1")
        a.i(f"s_add_u32 {sROT}, s6, s7"); a.i(f"s_xor_b32 s7, s7, 1"); a.i(f"s_add_u32 {sPAIR}, s6, s7"); a.i(f"s_add_u32 {sB2}, s6, 2")
        a.i(f"s_mov_b32 {sIDX}, {sOFF}")
    a.i(f"s_lshl_b32 s6, {sC}, 7"); a.i(f"s_lshl_b32 s7, {sWV}, 5"); a.i("s_add_u32 s6, s6, s7")
    a.i(f"s_mul_i32 s6, s6, {XROW}")
    a.i(f"v_lshrrev_b32 v4, 3, {L}"); a.i(f"v_lshrrev_b32 v5, 4, {L}"); a.i(f"v_and_b32 v6, 7, {L}")
    a.i(f"v_mul_u32_u24 v4, {XROW}, v4")
    a.i(f"v_add_u32 v4, s6, v4")
    for i in range(4):
        a.i(f"v_add_u32 v7, {4*i}, v5"); a.i(f"v_and_b32 v7, 7, v7"); a.i(f"v_xor_b32 v7, v6, v7")
        a.i(f"v_lshl_add_u32 v7, v7, 4, v4")
        a.i(f"v_add_u32 {vXoff[i]}, {8*i*XROW-1024*i}, v7")
    if not opts.get('xfirst',1): w_offsets(a)
    a.stamp('p_pre')
    a.wait(lg=0)
    a.stamp('p_karg')
    a.i(f"s_cmp_eq_u32 {sB}, 0")
    a.i("s_cselect_b32 s8, s36, s42");  a.i("s_cselect_b32 s9, s37, s43")
    a.i("s_cselect_b32 s12, s38, s44"); a.i("s_cselect_b32 s13, s39, s45")
    a.i(f"s_mov_b32 s10, {X_BYTES}"); a.i("s_mov_b32 s11, 0x00020000")
    a.i(f"s_mov_b32 s14, {W_BYTES}"); a.i("s_mov_b32 s15, 0x00020000")
    a.i("s_cselect_b32 s16, s40, s46"); a.i("s_cselect_b32 s17, s41, s47")
    a.i(f"s_mov_b32 {sCI}, {sROT}")
    a.i(f"s_mul_i32 {sWoff}, {sCI}, {64*WROW}")
    a.i(f"s_lshl_b32 {sXoff}, {sCI}, 7")

vTA='v[240:241]'
def touch_setup(a, opts):
    L=vLane
    a.i("s_lshr_b32 s4, s2, 3")
    a.i(f"v_cmp_le_u32 vcc, 18, {L}")
    a.i(f"v_mov_b32 v2, {XROW+18*128}")
    a.i(f"v_lshlrev_b32 v3, 7, {L}")
    a.i(f"v_mov_b32 v2, {WROW-18*128}")
    a.i(f"v_cndmask_b32 v2, 0, v2, vcc")
    a.i(f"v_add_u32 v3, v3, v2")
    a.i(f"s_mul_i32 s5, s4, {2*WROW}"); a.i(f"s_add_u32 s5, s5, {9*128}")
    a.i(f"v_add_u32 v3, s5, v3")
    a.i("s_and_b32 s5, s2, 3"); a.i("s_lshl_b32 s5, s5, 9"); a.i("s_lshl_b32 s6, s4, 4"); a.i("s_add_u32 s5, s5, s6")
    a.i(f"v_subrev_u32 v4, 36, {L}"); a.i(f"v_and_b32 v4, 15, v4"); a.i(f"v_add_u32 v4, s5, v4"); a.i(f"v_mul_u32_u24 v4, {XROW}, v4")
    a.i(f"v_cmp_le_u32 vcc, 36, {L}")
    a.i(f"v_mov_b32 v5, s12"); a.i("v_mov_b32 v6, s8"); a.i("v_mov_b32 v7, s13"); a.i("v_mov_b32 v8, s9")
    a.i(f"v_cndmask_b32 v3, v3, v4, vcc")
    a.i(f"v_cndmask_b32 v5, v5, v6, vcc")
    a.i(f"v_cndmask_b32 v7, v7, v8, vcc")
    a.i(f"v_mov_b32 v9, {64*WROW}"); a.i("v_mov_b32 v6, 128")
    a.i(f"v_cndmask_b32 v242, v9, v6, vcc")
    a.i(f"s_add_u32 s5, {sWV}, 1")
    a.i(f"v_mul_lo_u32 v9, v242, s5")
    a.i(f"v_add_u32 v3, v3, v9")
    a.i(f"v_add_co_u32 v240, vcc, v5, v3"); a.i("s_nop 1"); a.i(f"v_addc_co_u32 v241, vcc, 0, v7, vcc")
    a.i(f"v_lshlrev_b32 v242, 2, v242")
def touch_ins(second):
    L=[]
    if second:
        L+= ["v_add_co_u32 v240, vcc, v240, v242", "s_nop 1", "v_addc_co_u32 v241, vcc, 0, v241, vcc"]
    L+= ["s_mov_b64 exec, 0x000fffffffffffff" if False else "s_mov_b64 exec, s[6:7]", (f"global_load_dword v255, {vTA}, off",'touch'), "s_mov_b64 exec, -1"]
    return L
def touch_q(a):
    L=vLane
    a.i("s_lshr_b32 s4, s2, 3")
    a.i(f"v_mul_u32_u24 v2, 7282, {L}"); a.i("v_lshrrev_b32 v2, 16, v2")
    a.i(f"v_mul_u32_u24 v3, 9, v2"); a.i(f"v_sub_u32 v3, {L}, v3")
    a.i(f"v_min_u32 v2, 5, v2")
    a.i(f"s_min_u32 s5, {sWV}, 2"); a.i("s_mul_i32 s5, s5, 6"); a.i("s_mul_i32 s6, s4, 18"); a.i("s_add_u32 s5, s5, s6")
    a.i(f"v_add_u32 v2, s5, v2"); a.i(f"v_mul_u32_u24 v2, {WROW}, v2"); a.i(f"v_lshl_add_u32 v2, v3, 7, v2")
    a.i(f"buffer_load_dword v255, v2, {sW}, 0 offen", 'touch')
def touch_wo(a):
    L=vLane
    a.i(f"s_lshr_b32 {sT0}, s2, 3")
    a.i(f"s_min_u32 {sT1}, {sWV}, 2"); a.i(f"s_mul_i32 {sT1}, {sT1}, 54"); a.i(f"s_mul_i32 {sT0}, {sT0}, 162"); a.i(f"s_add_u32 {sT1}, {sT1}, {sT0}")
    a.i(f"v_min_u32 {vT}, 53, {L}"); a.i(f"v_add_u32 {vT}, {sT1}, {vT}"); a.i(f"v_lshlrev_b32 {vT}, 7, {vT}")
    a.i(f"buffer_load_dword v255, {vT}, {sWO}, 0 offen", 'touch')

ORDER_MODE=['own']
GOPT={}
def next_chunk_ins(step=None):
    if ORDER_MODE[0]=='pair':
        tail=[f"s_mul_i32 {sWoff}, {sCI}, {64*WROW}", f"s_lshl_b32 {sXoff}, {sCI}, 7"]
        if step==1: return [f"s_mov_b32 {sCI}, {sPAIR}"]+tail
        return [f"s_add_u32 {sCI}, {sB2}, {sIDX}", f"s_sub_u32 {sT3}, {sCI}, 9", f"s_cmp_ge_u32 {sCI}, 9", f"s_cselect_b32 {sCI}, {sT3}, {sCI}",
                f"s_add_u32 {sIDX}, {sIDX}, 1", f"s_cmp_eq_u32 {sIDX}, 7", f"s_cselect_b32 {sIDX}, 0, {sIDX}"]+tail
    if ORDER_MODE[0]=='own':
        return [f"s_add_u32 {sCI}, {sROT}, {sIDX}", f"s_add_u32 {sCI}, {sCI}, 1", f"s_sub_u32 {sT3}, {sCI}, 9", f"s_cmp_ge_u32 {sCI}, 9",
                f"s_cselect_b32 {sCI}, {sT3}, {sCI}", f"s_add_u32 {sIDX}, {sIDX}, 1", f"s_and_b32 {sIDX}, {sIDX}, 7",
                f"s_mul_i32 {sWoff}, {sCI}, {64*WROW}", f"s_lshl_b32 {sXoff}, {sCI}, 7"]
    return [f"s_add_u32 {sCI}, {sCI}, 1", f"s_cmp_eq_u32 {sCI}, 9", f"s_cselect_b32 {sCI}, 0, {sCI}",
            f"s_mul_i32 {sWoff}, {sCI}, {64*WROW}", f"s_lshl_b32 {sXoff}, {sCI}, 7"]

def dma_chunk_groups(slot, n):
    base=slot*SLOT; tag=f'ch{n}'; Gs=[]
    for i in range(4):
        pre=[f"s_lshl_b32 {sM0}, {sWV}, 12", f"s_add_u32 m0, {sM0}, {base+XOFF}", "s_nop 0"] if i==0 else []
        Gs.append(pre+[(f"buffer_load_dwordx4 {vXoff[i]}, {sX}, {sXoff} offen offset:{1024*i} lds", tag)])
    for j in range(4):
        pre=[f"s_mul_i32 {sM0}, {sWV}, 5120", f"s_add_u32 m0, {sM0}, {base}", "s_nop 0"] if j==0 else []
        Gs.append(pre+[(f"buffer_load_dwordx4 {vWoff[j]}, {sW}, {sWoff} offen offset:{1024*j} lds", tag)])
    Gs.append([f"s_add_u32 m0, {sM0}, {base+4096}", "s_nop 0", (f"buffer_load_dwordx4 {vWoff[4]}, {sW}, {sWoff} offen lds", tag)]+next_chunk_ins(n+1))
    return Gs

def dma_wq_groups(n):
    reg = SLOT*(1+n//3) + (n%3)*QCH
    Gs=[]
    for e in range(3):
        pre=[f"s_mul_i32 {sM0}, {sWV}, 3072", f"s_add_u32 m0, {sM0}, {reg}", "s_nop 0"] if e==0 else []
        post=next_chunk_ins(n+1) if e==2 else []
        Gs.append(pre+[(f"buffer_load_dwordx4 {vQoff[e]}, {sW}, {sWoff} offen offset:{1024*e} lds", f'wq{n}')]+post)
    return Gs

def setupA(a, opts):
    L=vLane
    a.c("---- setup A")
    a.i(f"v_bfe_u32 v4, {L}, 2, 2"); a.i(f"v_lshrrev_b32 v5, 5, {L}")
    a.i(f"v_lshl_add_u32 v4, v5, 3, v4")
    a.i(f"v_bfe_u32 v6, {L}, 4, 1"); a.i(f"v_and_b32 v7, 3, {L}")
    a.i(f"v_mul_u32_u24 v8, {WPITCH}, v4")
    a.i(f"v_lshlrev_b32 v9, 5, v6"); a.i(f"v_lshl_add_u32 v9, v7, 3, v9")
    a.i(f"v_add_u32 {vWr[0]}, v8, v9"); a.i(f"v_add_u32 {vWr[1]}, {2*SLOT}, {vWr[0]}")
    a.i(f"v_mul_u32_u24 v2, {QPITCH}, v4")
    a.i(f"v_add3_u32 {vQr}, v2, v9, 0"); a.i(f"v_add_u32 {vQr}, {SLOT}, {vQr}")
    a.i(f"v_lshrrev_b32 v3, 1, v7"); a.i(f"v_cmp_eq_u32 vcc, v3, v6"); a.i(f"v_and_b32 v3, 1, v7"); a.i(f"v_lshlrev_b32 v3, 3, v3")
    a.i(f"v_add_u32 v3, 128, v3"); a.i(f"v_add_u32 {vQr2}, 32, v3"); a.i(f"v_cndmask_b32 v3, {vQr2}, v3, vcc")
    a.i(f"v_add3_u32 {vQr2}, v2, v3, 0"); a.i(f"v_add_u32 {vQr2}, {SLOT}, {vQr2}")
    a.i(f"v_lshl_add_u32 v9, v6, 2, v7")
    a.i(f"v_lshlrev_b32 v2, 3, v9"); a.i(f"v_add_u32 v2, 128, v2"); a.i(f"v_add_u32 v3, 128, v2")
    a.i(f"v_cmp_lt_u32 vcc, 1, v9"); a.i("s_nop 1")
    a.i(f"v_cndmask_b32 v2, v2, v3, vcc")
    a.i(f"v_add_u32 {vMx[0]}, v8, v2"); a.i(f"v_add_u32 {vMx[1]}, {2*SLOT}, {vMx[0]}")
    a.i(f"v_and_b32 v2, 31, {L}"); a.i(f"v_bfe_u32 v3, {L}, 1, 3"); a.i(f"v_xor_b32 v3, v3, v5")
    a.i(f"v_lshlrev_b32 v3, 4, v3"); a.i(f"v_lshl_add_u32 v3, v2, 7, v3")
    a.i(f"s_lshl_b32 s6, {sWV}, 12"); a.i(f"s_add_u32 s6, s6, {XOFF}")
    a.i(f"v_add_u32 v3, s6, v3")
    for t in range(4):
        a.i(f"v_xor_b32 {vXr[0][t]}, {32*t}, v3"); a.i(f"v_add_u32 {vXr[1][t]}, {2*SLOT}, {vXr[0][t]}")

PADN=[0]
def pagepad(a, opts, where):
    if where in str(opts.get('pads','')).split('+'):
        PADN[0]+=1
        a.i(f"s_branch L_pad{PADN[0]}")
        a.raw(".fill 1024, 4, 0xbf800000")
        a.label(f"L_pad{PADN[0]}")

class Rec:
    def __init__(self): self.l=[]
    def i(self, t, tag=None, cond=False): self.l.append((t,tag,cond) if tag or cond else t)
    def c(self, s): pass

def setupB0(a, opts):
    a.i("s_mov_b32 s20, s48"); a.i("s_mov_b32 s21, s49"); a.i(f"s_mov_b32 s22, {OUT_BYTES}"); a.i("s_mov_b32 s23, 0x00020000")
    a.i("s_mov_b32 s24, s52"); a.i("s_mov_b32 s25, s53"); a.i(f"s_mov_b32 s26, {WS_BYTES}"); a.i("s_mov_b32 s27, 0x00020000")
    a.i("s_mov_b32 s28, s50"); a.i("s_mov_b32 s29, s51"); a.i("s_mov_b32 s30, 256"); a.i("s_mov_b32 s31, 0x00020000")
    a.i(f"s_mov_b32 s18, {WO_BYTES}"); a.i("s_mov_b32 s19, 0x00020000")
    a.i(f"s_or_b32 s3, s2, {sWV}"); a.i("s_cmp_lg_u32 s3, 0"); a.i("s_cbranch_scc1 L_nononce")
    a.i("s_memrealtime s[4:5]"); a.i("s_waitcnt lgkmcnt(0)"); a.i("s_or_b32 s4, s4, 1")
    a.i("v_mov_b32 v2, s4"); a.i("v_mov_b32 v3, s5"); a.i("v_mov_b32 v4, 0")
    a.i("s_mov_b64 exec, 1")
    a.i(f"buffer_store_dwordx2 v[2:3], v4, {sDBG}, 0 offen sc1", cond=True)
    a.i("s_mov_b64 exec, -1")
    a.label("L_nononce"); a.lg_clear()

def setupB(a, opts):
    L=vLane
    a.c("---- setup B")
    a.i("s_mov_b32 s54, 0x3ffff"); a.i("s_mov_b32 s55, 0x3ffff"); a.i("s_not_b64 s[52:53], s[54:55]"); a.i("s_mov_b32 s56, -1"); a.i("s_mov_b32 s57, 0")
    a.i(f"s_mov_b32 {sSC}, {f2u(CSCALE):#x}")
    a.i(f"s_getreg_b32 {sXCC}, hwreg(HW_REG_XCC_ID, 0, 4)")
    a.i(f"s_mul_i32 s6, {sWV}, {16*WROW}"); a.i(f"s_mul_i32 s7, {sG}, 144"); a.i("s_add_u32 s6, s6, s7")
    a.i(f"s_movk_i32 s7, {WROW}"); a.i("v_mov_b32 v9, 0x40000000")
    for e in range(3):
        a.i(f"v_add_u32 v4, {64*e}, {L}")
        a.i(f"v_mul_u32_u24 v5, 21846, v4"); a.i(f"v_lshrrev_b32 v5, 18, v5")
        a.i(f"v_mul_u32_u24 v6, 12, v5"); a.i(f"v_sub_u32 v6, v4, v6")
        a.i(f"v_cmp_lt_u32 vcc, 8, v6")
        a.i(f"v_mul_lo_u32 v5, v5, s7"); a.i(f"v_lshl_add_u32 v5, v6, 4, v5")
        a.i(f"v_add_u32 v5, s6, v5"); a.i(f"v_subrev_u32 v5, {1024*e}, v5")
        a.i(f"v_cndmask_b32 {vQoff[e]}, v5, v9, vcc")
    a.i(f"v_and_b32 v2, 31, {L}"); a.i(f"v_lshrrev_b32 v5, 5, {L}")
    a.i(f"s_mul_i32 s6, {sWV}, {KBLK}"); a.i(f"s_add_u32 s7, s6, {KB0}"); a.i(f"s_cmp_eq_u32 {sWV}, 3"); a.i(f"s_cselect_b32 s7, {KB3}, s7")
    a.i(f"v_mul_u32_u24 v3, {KP}, v2"); a.i(f"v_lshl_add_u32 v3, v5, 3, v3")
    a.i(f"v_add_u32 {vKw}, s7, v3"); a.i(f"s_add_u32 s6, s6, {QBASE}"); a.i(f"v_add_u32 {vQw}, s6, v3")
    a.i(f"s_mul_i32 s6, {sWV}, {VB}"); a.i(f"s_add_u32 s6, s6, {VBASE}")
    a.i(f"v_mul_u32_u24 v3, {VR}, v5"); a.i(f"v_lshl_add_u32 v3, v2, 4, v3"); a.i(f"v_add_u32 {vVw}, s6, v3")
    a.i(f"v_bfe_u32 v3, {L}, 2, 1"); a.i(f"v_mul_u32_u24 v3, {VJ}, v3"); a.i(f"v_bfe_u32 v4, {L}, 1, 1"); a.i(f"v_mul_u32_u24 v4, {VR}, v4")
    a.i(f"v_add_u32 v3, v3, v4"); a.i(f"v_and_b32 v4, 1, {L}"); a.i(f"v_lshl_add_u32 v3, v4, 4, v3"); a.i(f"v_add_u32 v3, {72*16}, v3")
    a.i(f"v_add_u32 {vCw}, s6, v3")
    a.i(f"v_lshrrev_b32 v3, 4, v2"); a.i(f"v_mul_u32_u24 v3, {VJ}, v3"); a.i(f"v_bfe_u32 v4, v2, 2, 1")
    a.i(f"v_mul_u32_u24 v4, {VR}, v4"); a.i(f"v_add_u32 v3, v3, v4"); a.i(f"v_and_b32 v4, 3, v2")
    a.i(f"v_bfe_u32 v6, v2, 3, 1"); a.i(f"v_lshl_add_u32 v4, v6, 2, v4"); a.i(f"v_lshl_add_u32 v3, v4, 1, v3")
    a.i(f"v_lshl_add_u32 v3, v5, 6, v3"); a.i(f"v_add_u32 v3, {64*16}, v3"); a.i(f"v_add_u32 {vVt}, s6, v3")
    a.i(f"s_mul_i32 s6, {sWV}, 36"); a.i(f"v_mul_u32_u24 v3, {KP}, v2"); a.i(f"v_add_u32 v3, s6, v3")
    a.i(f"v_lshl_add_u32 {vKr}, v5, 4, v3")
    a.i(f"v_add_u32 {vKl}, 32, v3")
    a.i(f"s_mul_i32 s6, {sWV}, 18"); a.i(f"v_add_u32 v3, s6, v2"); a.i(f"v_and_b32 v4, 27, v2")
    a.i(f"v_cmp_eq_u32 vcc, 18, v4"); a.i(f"v_mov_b32 v4, 73"); a.i(f"v_mov_b32 v6, 72"); a.i(f"v_cndmask_b32 v4, v4, v6, vcc")
    a.i(f"v_cmp_gt_u32 vcc, 18, v2"); a.i("s_nop 1"); a.i(f"v_cndmask_b32 v3, v4, v3, vcc")
    a.i(f"v_lshlrev_b32 v3, 4, v3"); a.i(f"v_mul_u32_u24 v4, {VR}, v5"); a.i(f"v_add_u32 {vVr}, v3, v4")
    a.i(f"v_lshlrev_b32 {vPk}, 4, {L}"); a.i(f"v_lshlrev_b32 {vPl}, 2, v2"); a.i(f"v_add_u32 {vPl}, 1024, {vPl}")
    a.i(f"v_mul_u32_u24 v3, 288, v5"); a.i(f"v_lshl_add_u32 v3, v2, 4, v3"); a.i(f"v_add_u32 {vPv}, 1152, v3")
    a.i(f"s_lshl_b32 s6, {sWV}, 2"); a.i(f"v_lshrrev_b32 v3, 3, v2"); a.i(f"v_mul_u32_u24 v3, {OUTROW}, v3")
    a.i(f"v_and_b32 v4, 7, v2"); a.i(f"v_lshl_add_u32 v3, v4, 4, v3"); a.i(f"v_add_u32 {vOl}, s6, v3")
    a.i(f"v_and_b32 v3, 27, v2"); a.i(f"v_cmp_eq_u32 vcc, 18, v3"); a.i(f"v_mov_b32 v4, 0x3f803f80"); a.i("s_nop 0")
    a.i(f"v_cndmask_b32 {vVC}, 0, v4, vcc")
    a.i(f"s_lshl_b32 s6, {sB}, 3"); a.i(f"s_add_u32 s6, s6, {sG}"); a.i(f"s_lshl_b32 s6, s6, 4"); a.i(f"s_add_u32 s6, s6, {sC}")
    a.i(f"s_mul_i32 {sKVme}, s6, {SLOT}"); a.i(f"s_mul_i32 s7, {sWV}, 2304"); a.i(f"s_add_u32 {sKVme}, {sKVme}, s7")
    a.i(f"s_sub_u32 {sKV1}, {sKVme}, {SLOT}"); a.i(f"s_sub_u32 {sKV2}, {sKVme}, {2*SLOT}")
    a.i(f"s_cmp_ge_u32 {sC}, 1"); a.i(f"s_cselect_b32 {sKV1}, {sKV1}, 0x70000000")
    a.i(f"s_cmp_ge_u32 {sC}, 2"); a.i(f"s_cselect_b32 {sKV2}, {sKV2}, 0x70000000")
    a.i(f"s_lshl_b32 s6, s6, 2"); a.i(f"s_add_u32 s6, s6, {sWV}"); a.i(f"s_lshl_b32 s6, s6, 7")
    a.i(f"s_add_u32 {sFKV}, s6, {WS_FKV}")
    a.i(f"s_cmp_ge_u32 {sC}, 1"); a.i(f"s_cselect_b32 s6, -1, 0"); a.i(f"s_cmp_ge_u32 {sC}, 2"); a.i(f"s_cselect_b32 s7, -1, 0")
    a.i(f"v_and_b32 v2, s6, {vVC}"); a.i(f"v_and_b32 v3, s7, {vVC}"); a.i(f"v_mov_b32 v4, 0x3f803f80")
    a.i(f"v_and_b32 v6, s7, v4"); a.i(f"v_and_b32 v4, s6, v4")
    for hb in range(8):
        base=HALO+14*hb
        a.i(f"v_accvgpr_write_b32 a{base+5}, {'v6' if hb<4 else 'v4'}")
        for r in range(8): a.i(f"v_accvgpr_write_b32 a{base+6+r}, {'v3' if hb<4 else 'v2'}")
    a.i(f"v_and_b32 v2, 31, {L}"); a.i(f"v_lshlrev_b32 v3, 2, v5"); a.i(f"v_sub_u32 v2, v2, v3")
    a.i(f"v_mov_b32 v6, 0xffff"); a.i(f"v_mov_b32 v7, 0xffff0000")
    for u in range(8):
        r0=2*u; k0=(r0&3)+8*(r0>>2)
        a.i(f"v_cmp_le_i32 vcc, {k0}, v2"); a.i(f"v_cmp_le_i32 s[4:5], {k0+1}, v2"); a.i("s_nop 0")
        a.i(f"v_cndmask_b32 v3, 0, v6, vcc"); a.i(f"v_cndmask_b32 v4, 0, v7, s[4:5]")
        a.i(f"v_or_b32 v{MASKD+u}, v3, v4"); a.i(f"v_not_b32 v{MASKF+u}, v{MASKD+u}")
    a.i(f"s_lshl_b32 s6, {sC}, 7"); a.i(f"s_lshl_b32 s7, {sG}, 2"); a.i("s_add_u32 s6, s6, s7")
    a.i(f"s_mul_i32 s6, s6, {OUTROW}"); a.i(f"s_mul_i32 s7, {sB}, 1152"); a.i("s_add_u32 s6, s6, s7")
    a.i(f"s_add_u32 {sOL}, s6, 1024"); a.i(f"s_mul_i32 s7, {sWV}, {OUTROW}"); a.i(f"s_add_u32 {sOM}, s6, s7")
    a.i(f"s_lshr_b32 {sRH}, {sG}, 2"); a.i(f"s_and_b32 {sNQ}, {sG}, 3")
    a.i(f"s_lshl_b32 s7, {sRH}, 1"); a.i(f"s_lshr_b32 s3, {sWV}, 1"); a.i("s_add_u32 s3, s3, s7"); a.i("s_lshl_b32 s3, s3, 5")
    a.i(f"s_lshl_b32 s7, {sC}, 7"); a.i("s_add_u32 s3, s3, s7"); a.i(f"s_mul_i32 {sPOM}, s3, {OUTROW}")
    a.i(f"s_mul_i32 s7, {sB}, 1152"); a.i(f"s_add_u32 {sPOM}, {sPOM}, s7"); a.i(f"s_add_u32 {sPOL}, {sPOM}, 1024")
    a.i(f"s_lshl_b32 s6, {sC}, 7"); a.i(f"s_lshl_b32 s7, {sRH}, 6"); a.i("s_add_u32 s6, s6, s7")
    a.i(f"s_lshl_b32 s7, {sWV}, 4"); a.i("s_add_u32 s6, s6, s7"); a.i(f"s_mul_i32 {sOUTB}, s6, {OUTROW}")
    a.i(f"s_mul_i32 s7, {sB}, 1152"); a.i(f"s_add_u32 {sOUTB}, {sOUTB}, s7")
    a.i(f"s_mul_i32 s7, {sNQ}, 288"); a.i(f"s_add_u32 {sOUTB}, {sOUTB}, s7")
    a.i(f"s_lshl_b32 s6, {sB}, 4"); a.i(f"s_add_u32 s6, s6, {sC}"); a.i(f"s_lshl_b32 {sFO}, s6, 12")
    a.i(f"s_add_u32 {sFO}, {sFO}, {WS_FO}")
    a.i(f"v_mov_b32 v252, {f2u(2.0**-40):#x}"); a.i(f"v_mov_b32 v253, {f2u(2.0**40):#x}")
    a.i(f"s_mov_b64 {sBAD}, 0")

def wq_reads(tau):
    n,t=divmod(tau,4); b=tau%2
    off=(n%3)*QCH+16*QPITCH*t
    R=[[(f"ds_read_b64_tr_b16 {QFh(b,f,h)}, {vQr} offset:{off+4*QPITCH*h+64*f}", f'q{tau}_{f}') for h in range(2)] for f in range(2)]
    R.append([(f"ds_read_b64_tr_b16 {QFh(b,2,h)}, {vQr2} offset:{off+4*QPITCH*h}", f'q{tau}_2') for h in range(2)])
    return R

def drain_side(a, side, n):
    k=0; last=''
    while side and (k<n or last.startswith('s_cmp') or (side[0] if isinstance(side[0],str) else side[0][0]).startswith('s_cselect')):
        x=side.pop(0)
        if isinstance(x,tuple): a.i(*x); last=x[0]
        else: a.i(x); last=x
        k+=1

def phase1a(a, opts, pend):
    a.c("---- phase 1a")
    def reads(tau):
        n,t=divmod(tau,4); slot=n%4; hi=slot>=2; base=(slot%2)*SLOT; b=tau%2
        R=[[(f"ds_read_b128 {XF(tau)}, {vXr[hi][t]} offset:{base}", f'x{tau}')] +
           [(f"ds_read_b64_tr_b16 {WFh(b,0,h)}, {vWr[hi]} offset:{base+5120*t+1280*h}", f'w{tau}_0') for h in range(2)]]
        for f,co in ((1,64),(2,144),(3,208)):
            R.append([(f"ds_read_b64_tr_b16 {WFh(b,f,h)}, {vWr[hi]} offset:{base+5120*t+1280*h+co}", f'w{tau}_{f}') for h in range(2)])
        R.append([(f"ds_read_b64_tr_b16 {WFh(b,4,h)}, {vMx[hi]} offset:{base+5120*t+1280*h}", f'w{tau}_4') for h in range(2)])
        return R
    a.stamp('setup_done')
    a.wait(vm='ch0')
    if opts.get('ch0v',0):
        a.i(f"v_lshlrev_b32 v2, 4, {vLane}")
        a.i(f"s_lshl_b32 {sT0}, {sWV}, 12"); a.i(f"s_add_u32 {sT0}, {sT0}, {XOFF}"); a.i(f"v_add_u32 v3, {sT0}, v2")
        a.i(f"s_mul_i32 {sT0}, {sWV}, 5120"); a.i(f"v_add_u32 v2, {sT0}, v2")
        for i in range(4): a.i(f"ds_write_b128 v3, v[{52+4*i}:{55+4*i}] offset:{1024*i}", 'c0w')
        for j in range(5): a.i(f"ds_write_b128 v2, v[{68+4*j}:{71+4*j}] offset:{1024*j}", 'c0w')
        a.wait(lg=0)
    a.i("s_barrier")
    a.stamp('ch0_landed')
    if opts.get('idle_1a'): a.i(f"s_sleep {opts['idle_1a']}")
    for grp in reads(0): a.emit(grp)
    names=['K0','K1','V0','V1','MX']
    side=opts.get('_side',[])
    every=opts.get('dma_every',2)
    slotcnt=0
    for tau in range(36):
        n,t=divmod(tau,4); b=tau%2
        if t==0: a.stamp(f'c{n}')
        if t==0: pagepad(a,opts,f'c{n}')
        if t==3:
            a.wait(vm=f'ch{n+1}' if n<8 else 'wq0')
            a.i("s_barrier")
            if n<=5:
                pend += dma_chunk_groups((n+3)%4, n+3)
                if (n==5 and opts.get('wotouch',3)==1) or (n==0 and opts.get('wotouch',3)==3) or (n==2 and opts.get('wotouch',3)==4):
                    rec=Rec(); touch_wo(rec); pend.append(rec.l)
            elif n==6:
                pend.append([f"s_mov_b32 {sCI}, {sROT}", f"s_mul_i32 {sWoff}, {sCI}, {64*WROW}", f"s_mov_b32 {sIDX}, {sOFF}"])
                for q in range(3): pend += dma_wq_groups(q)
            elif n==7:
                for q in range(3,6): pend += dma_wq_groups(q)
            elif n==8:
                for q in range(6,9): pend += dma_wq_groups(q)
        R = reads(tau+1) if tau<35 else wq_reads(0)
        for m,nm in enumerate(names):
            a.wait(lg=[f'w{tau}_{m}']+([f'x{tau}'] if m==0 else []))
            acc=rng('v',ACC[nm],16); c='0' if tau==0 else acc
            if nm in ('V0','V1'): a.i(f"v_mfma_f32_32x32x16_bf16 {acc}, {XF(tau)}, {WF(b,m)}, {c}")
            else: a.i(f"v_mfma_f32_32x32x16_bf16 {acc}, {WF(b,m)}, {XF(tau)}, {c}")
            if m<len(R): a.emit(R[m])
            slotcnt+=1
            if pend and (slotcnt%every==0 or len(pend)>9): a.emit(pend.pop(0))
            elif side: drain_side(a, side, opts.get('side_n',5))
        if tau==30:
            a.i(f"v_mov_b32 {vT}, 0")
            a.i(f"buffer_load_dwordx2 {vNON}, {vT}, {sDBG}, 0 offen sc1", tag='nonce')
    assert not side, len(side)
    return pend

def epi1a_list():
    A=[]; T=76
    for ti,nm in enumerate(('K0','K1')):
        base=ACC[nm]
        for i in range(4):
            t0=T+2*(i%2)
            A+= [f"v_cvt_pk_bf16_f32 v{t0}, v{base+4*i}, v{base+4*i+1}", f"v_cvt_pk_bf16_f32 v{t0+1}, v{base+4*i+2}, v{base+4*i+3}",
                 (f"ds_write2_b32 {vKw}, v{t0}, v{t0+1} offset0:{16*ti+4*i} offset1:{16*ti+4*i+1}",'e1w')]
    for ti,nm in enumerate(('V0','V1')):
        base=ACC[nm]
        for j in range(2):
            t0=T+4+4*j
            for u in range(4): A.append(f"v_cvt_pk_bf16_f32 v{t0+u}, v{base+8*j+2*u}, v{base+8*j+2*u+1}")
            A.append((f"ds_write_b128 {vVw}, v[{t0}:{t0+3}] offset:{VJ*j+512*ti}",'e1w'))
    base=ACC['MX']; t0=T+12
    A+= [f"v_cvt_pk_bf16_f32 v{t0}, v{base}, v{base+1}", f"v_cvt_pk_bf16_f32 v{t0+1}, v{base+2}, v{base+3}",
         (f"ds_write2_b32 {vKw}, v{t0}, v{t0+1} offset0:32 offset1:33",'e1w'),
         f"v_cvt_pk_bf16_f32 v{t0+2}, v{base+4}, v{base+5}", f"v_cvt_pk_bf16_f32 v{t0+3}, v{base+6}, v{base+7}",
         (f"ds_write_b16 {vVt}, v{t0+2}",'e1w'), (f"ds_write_b16_d16_hi {vVt}, v{t0+2} offset:16",'e1w'),
         (f"ds_write_b16 {vVt}, v{t0+3} offset:32",'e1w'), (f"ds_write_b16_d16_hi {vVt}, v{t0+3} offset:48",'e1w')]
    A+= [f"v_and_b32 v{t0}, 1, {vLane}", f"v_cmp_eq_u32 vcc, 0, v{t0}", f"v_mov_b32 v{t0+1}, 0x3f803f80", "s_nop 0",
         f"v_cndmask_b32 v{t0}, 0, v{t0+1}, vcc", f"v_mov_b32 v{t0+1}, v{t0}", f"v_mov_b32 v{t0+2}, v{t0}", f"v_mov_b32 v{t0+3}, v{t0}",
         "s_mov_b64 exec, 0xff", (f"ds_write_b128 {vCw}, v[{t0}:{t0+3}]",'e1w'), "s_mov_b64 exec, -1"]
    return A

def own_presets():
    L=[f"v_mov_b32 v91, 0x3f803f80"]
    for bt in range(4): L.append(f"v_mov_b32 v{OWN+14*bt+5}, v91")
    return L
def own_reads():
    L=[]
    for bt in range(4):
        base=OWN+14*bt
        kb = KB0+KBLK*bt if bt<3 else KB3
        L.append(f"v_add_u32 v88, {kb}, {vKr}"); L.append(f"v_add_u32 v89, {kb}, {vKl}")
        L.append((f"ds_read2_b32 v[{base}:{base+1}], v88 offset0:0 offset1:1",'own'))
        L.append((f"ds_read2_b32 v[{base+2}:{base+3}], v88 offset0:2 offset1:3",'own'))
        L.append((f"ds_read_b32 v{base+4}, v89",'own'))
    for bt in range(4):
        base=OWN+14*bt
        for j in range(2): L.append((f"ds_read_b128 v[{base+6+4*j}:{base+9+4*j}], {vVr} offset:{VB*bt+VJ*j}",'own'))
    return L
def own_store_groups(mod='sc1'):
    Gs=[]
    for bt in range(4):
        base=OWN+14*bt; tag='pubA' if bt<2 else 'pubB'
        Gs.append([f"s_add_u32 {sT0}, {sKVme}, {9216*bt}", (f"buffer_store_dwordx4 v[{base}:{base+3}], {vPk}, {sWS}, {sT0} offen {mod}",tag)])
        Gs.append([f"s_add_u32 {sT0}, {sKVme}, {9216*bt}", f"s_mov_b64 exec, {sLO}", (f"buffer_store_dword v{base+4}, {vPl}, {sWS}, {sT0} offen {mod}",tag), "s_mov_b64 exec, -1"])
        for j in range(2):
            Gs.append([f"s_add_u32 {sT0}, {sKVme}, {9216*bt}", f"s_mov_b64 exec, {sVM}", (f"buffer_store_dwordx4 v[{base+6+4*j}:{base+9+4*j}], {vPv}, {sWS}, {sT0} offen offset:{576*j} {mod}",tag), "s_mov_b64 exec, -1"])
    return Gs

def flag_store_ins(cnt):
    return [f"s_add_u32 {sT1}, {sNONh}, {cnt}", f"v_mov_b32 v2, {sNONl}", f"v_mov_b32 v3, {sT1}", f"v_mov_b32 v4, 0",
            "s_mov_b64 exec, 1", (f"buffer_store_dwordx2 v[2:3], v4, {sWS}, {sFKV} offen sc1", f'kvflag{cnt}'), "s_mov_b64 exec, -1"]

def xt_base():
    return [f"s_lshl_b32 {sT0}, {sB}, 4", f"s_add_u32 {sT0}, {sT0}, {sC}", f"s_lshl_b32 {sT0}, {sT0}, 10", f"s_add_u32 {sT0}, {sT0}, {WS_XT}"]
def xt_store():
    return xt_base()+[f"s_add_u32 {sLFH}, {sXCC}, 1", f"s_lshl_b32 {sLFH}, {sLFH}, 8", f"s_add_u32 {sLFH}, {sLFH}, {sNONh}",
            f"s_lshl_b32 {sT1}, {sG}, 7", f"s_add_u32 {sT0}, {sT0}, {sT1}",
            f"v_mov_b32 v2, {sNONl}", f"v_mov_b32 v3, {sLFH}", f"v_mov_b32 v4, 0",
            "s_mov_b64 exec, 1", (f"buffer_store_dwordx2 v[2:3], v4, {sWS}, {sT0} offen sc1",'xt'), "s_mov_b64 exec, -1"]
def xt_load():
    return xt_base()+[f"v_lshlrev_b32 v2, 7, {vLane}", "s_mov_b64 exec, 0xff",
            (f"buffer_load_dwordx2 v[8:9], v2, {sWS}, {sT0} offen sc1",'xtl'), "s_mov_b64 exec, -1"]
def xt_check(a):
    a.wait(vm='xtl')
    a.i("s_mov_b64 exec, 0xff")
    a.i(f"v_cmp_eq_u32 vcc, {sNONl}, v8"); a.i(f"v_cmp_eq_u32 s[4:5], {sLFH}, v9")
    a.i("s_mov_b64 exec, -1")
    a.i("s_and_b64 s[4:5], s[4:5], vcc"); a.i("s_and_b32 s4, s4, 0xff"); a.i("s_cmp_eq_u32 s4, 0xff")
    a.i(f"s_cselect_b32 {sLOC}, 1, 0")
    if GOPT.get('force_remote'): a.i(f"s_mov_b32 {sLOC}, 0")

def wo_group_for(kbase):
    setup=[f"s_add_u32 {sT1}, {sWV}, {kbase}", f"s_mul_i32 {sT2}, {sT1}, 41472", f"s_mul_i32 {sT3}, {sT1}, 9216"]
    return wo8_groups(setup)

def phase1b(a, pend, opts):
    a.c("---- phase 1b")
    if opts.get('idle_1b'): a.i(f"s_sleep {opts['idle_1b']}")
    a.stamp('1a_end')
    q=[]; stores=[]; wo=[]
    E2=opts.get('e2',4)
    FAST=opts.get('fastA',1)
    sched={}
    tt=E2+1
    for g in range(16):
        sched.setdefault(tt,[]).append(g)
        tt += 1 if ((g<7 and FAST) or opts.get('fastB',0)) else 2
    FLAGA=opts.get('flagA',24)
    woaddr=[f"v_mov_b32 {d_}, {s_}" for d_,s_ in zip(vWOm+vWOl+vWOt,vWOtmp)]+wo8_setup()
    for tau in range(36):
        n,t=divmod(tau,4); b=tau%2
        a.stamp(f'b{tau}_')
        if tau==1:
            a.i("s_barrier"); q+=epi1a_list()
        if tau==E2:
            a.drain(q,1000); a.wait(lg=0); a.i("s_barrier")
            a.emit(own_reads())
        if tau==E2+1:
            a.wait(lg='own')
            a.stamp('pub_start')
            stores=own_store_groups()
            q+=woaddr
        if tau==E2+3:
            a.i("s_barrier")
        if tau==E2+6: wo+=wo_group_for(0); q+=own_presets()
        if tau==15: wo+=wo_group_for(4)
        if tau==27: wo+=wo_group_for(8)
        if tau==FLAGA:
            a.wait(vm='pubA'); get_nonce(a); a.emit(flag_store_ins(2)); a.stamp('flagA')
            if opts.get('olocal'): a.emit(xt_store())
        if t==3 and tau<35:
            a.wait(vm=f'wq{n+1}')
            a.i("s_barrier")
            if (n+1)%3==0: a.i(f"v_add_u32 {vQr}, {SLOT}, {vQr}"); a.i(f"v_add_u32 {vQr2}, {SLOT}, {vQr2}")
        R = wq_reads(tau+1) if tau<35 else []
        if opts.get('b1burst',0) and R:
            R=[R[0]+R[1]+R[2],[],[]]
        for m,nm in enumerate(('Q0','Q1','Q2')):
            if opts.get('b1burst',0) and tau>0:
                if m==0: a.wait(lg=[f'q{tau}_2'])
            else: a.wait(lg=[f'q{tau}_{m}'])
            if nm=='Q2':
                acc=rng('v',ACC[nm],4); c='0' if tau==0 else acc
                a.i(f"v_mfma_f32_16x16x32_bf16 {acc}, {QF(b,m)}, {XF(tau)}, {c}")
            else:
                acc=rng('v',ACC[nm],16); c='0' if tau==0 else acc
                a.i(f"v_mfma_f32_32x32x16_bf16 {acc}, {QF(b,m)}, {XF(tau)}, {c}")
            if m<len(R): a.emit(R[m])
            if m==0 and tau in sched:
                for g in sched[tau]:
                    if opts.get('nopub'):
                        for x in stores[g]:
                            if isinstance(x,tuple): a.vm.append(x[1])
                    else: a.emit(stores[g])
            elif q and tau<E2: a.drain(q,opts.get('epi_rate',7))
            elif pend: a.emit(pend.pop(0))
            elif q: drain_side2(a,q,4)
            elif opts.get('nowo1b',1): pass
            elif wo and m==2: a.emit(wo.pop(0))
            elif wo and m==1 and opts.get('wo2',1): a.emit(wo.pop(0))
    assert not pend and not q, (len(pend),len(q))
    for tt_ in sorted(sched):
        if tt_>35:
            for g in sched[tt_]: a.emit(stores[g])
    opts['_wo_left']=wo
    a.stamp('1b_end')
    a.emit(kv_flag_load(0))
    a.nop(14)
    T=76
    a.i(f"v_mov_b32 v90, {sSC}"); a.i(f"v_mov_b32 v91, {sSC}")
    for ti,nm in enumerate(('Q0','Q1','Q2')):
        base=ACC[nm]; ni=4 if ti<2 else 1
        for r in range(0,4*ni,2): a.i(f"v_pk_mul_f32 v[{base+r}:{base+r+1}], v[90:91], v[{base+r}:{base+r+1}]")
    for ti,nm in enumerate(('Q0','Q1','Q2')):
        base=ACC[nm]; ni=4 if ti<2 else 1
        for i in range(ni):
            t0=T+2*((ti*4+i)%8)
            a.i(f"v_cvt_pk_bf16_f32 v{t0}, v{base+4*i}, v{base+4*i+1}"); a.i(f"v_cvt_pk_bf16_f32 v{t0+1}, v{base+4*i+2}, v{base+4*i+3}")
            if ti==2:
                a.i(f"v_and_b32 v2, 15, {vLane}"); a.i(f"v_lshrrev_b32 v3, 5, {vLane}"); a.i(f"v_lshl_add_u32 v2, v3, 4, v2")
                a.i(f"v_mul_u32_u24 v2, {KP}, v2"); a.i(f"v_bfe_u32 v3, {vLane}, 4, 1"); a.i(f"v_lshl_add_u32 v2, v3, 3, v2")
                a.i(f"s_mul_i32 {sT0}, {sWV}, {KBLK}"); a.i(f"s_add_u32 {sT0}, {sT0}, {QBASE+128}"); a.i(f"v_add_u32 v2, {sT0}, v2")
                a.i(f"ds_write2_b32 v2, v{t0}, v{t0+1} offset0:0 offset1:1",'e2w')
            else: a.i(f"ds_write2_b32 {vQw}, v{t0}, v{t0+1} offset0:{16*ti+4*i} offset1:{16*ti+4*i+1}",'e2w')
    a.i(f"v_mov_b32 {vT}, 0")
    for i in range(4):
        for r in range(4,8): a.i(f"v_accvgpr_write_b32 a{8*i+r}, {vT}")
    a.wait(lg=0); a.i("s_barrier")
    for i in range(4):
        a.i(f"v_add_u32 v88, {QBASE+KBLK*i}, {vKr}")
        a.i(f"ds_read2_b32 a[{8*i}:{8*i+1}], v88 offset0:0 offset1:1",'qf')
        a.i(f"ds_read2_b32 a[{8*i+2}:{8*i+3}], v88 offset0:2 offset1:3",'qf')
    a.i(f"s_mov_b64 exec, {sLO}")
    for i in range(4):
        a.i(f"v_add_u32 v89, {QBASE+KBLK*i}, {vKl}")
        a.i(f"ds_read_b32 a{8*i+4}, v89",'qf')
    a.i("s_mov_b64 exec, -1")
    a.wait(lg='qf')
    a.i("s_barrier")
    a.stamp('q_ready')

def drain_side2(a, q, n):
    k=0; inexec=False; last=''
    while q and (k<n or inexec or last.startswith('s_cmp') or (q[0] if isinstance(q[0],str) else q[0][0]).startswith('s_cselect')):
        x=q.pop(0)
        txt=x[0] if isinstance(x,tuple) else x
        if txt.startswith('s_mov_b64 exec'): inexec = not txt.endswith('-1')
        if isinstance(x,tuple): a.i(*x)
        else: a.i(x)
        last=txt; k+=1

vFL='v[6:7]'; vFA='v5'
def kv_flag_load(rnd):
    L=[]
    if rnd==0:
        L+= [f"s_cmp_ge_u32 {sC}, 2", f"s_cselect_b32 {sT1}, 2, 1", f"s_lshl_b32 {sT1}, {sT1}, 9",
             f"s_sub_u32 {sT0}, {sFKV}, 512", f"s_sub_u32 {sT1}, {sFKV}, {sT1}",
             f"s_cmp_eq_u32 {sC}, 0", f"s_cselect_b32 {sT0}, {sFKV}, {sT0}", f"s_cselect_b32 {sT1}, {sFKV}, {sT1}",
             f"v_mov_b32 v8, {sT0}", f"v_mov_b32 v9, {sT1}", f"v_cmp_eq_u32 vcc, 0, {vLane}", "s_nop 1",
             f"v_cndmask_b32 {vFA}, v9, v8, vcc"]
    L+= ["s_mov_b64 exec, 3", (f"buffer_load_dwordx2 {vFL}, {vFA}, {sWS}, 0 offen sc1", f'fl{rnd}'), "s_mov_b64 exec, -1"]
    return L

def kv_flag_check(a, rnd, need):
    a.wait(vm=f'fl{rnd}')
    a.i(f"s_mov_b32 {sCNT}, 200000")
    if GOPT.get('X_nochk'): a.i(f"s_branch L_ok{rnd}")
    a.label(f"L_chk{rnd}")
    a.i(f"s_cmp_eq_u32 {sC}, 0"); a.i(f"s_cbranch_scc1 L_ok{rnd}")
    a.i("s_mov_b64 exec, 3")
    a.i(f"v_subrev_u32 v8, {sNONh}, v7")
    a.i(f"v_cmp_eq_u32 vcc, {sNONl}, v6")
    a.i(f"v_cmp_le_u32 s[4:5], {need}, v8")
    a.i(f"v_cmp_ge_u32 s[6:7], 4, v8")
    a.i("s_mov_b64 exec, -1")
    a.i("s_and_b64 s[4:5], s[4:5], vcc"); a.i("s_and_b64 s[4:5], s[4:5], s[6:7]"); a.i("s_and_b32 s4, s4, 3")
    a.i("s_cmp_eq_u32 s4, 3"); a.i(f"s_cbranch_scc1 L_ok{rnd}")
    a.i("s_mov_b64 exec, 3")
    a.i(f"buffer_load_dwordx2 {vFL}, {vFA}, {sWS}, 0 offen sc1", cond=True)
    a.i("s_mov_b64 exec, -1")
    a.i("s_waitcnt vmcnt(0)")
    a.i(f"s_sub_u32 {sCNT}, {sCNT}, 1"); a.i(f"s_cmp_lg_u32 {sCNT}, 0"); a.i(f"s_cbranch_scc1 L_chk{rnd}")
    a.label(f"L_ok{rnd}")
    a.stamp(f'chk{rnd}')

def wo_addr(a):
    L=vLane
    a.i(f"s_mul_i32 s6, {sNQ}, 288")
    a.i(f"v_lshrrev_b32 v4, 4, {L}")
    a.i(f"v_and_b32 v5, 15, {L}")
    for par in range(2):
        a.i(f"v_add_u32 v6, {4*par}, v4"); a.i(f"v_lshlrev_b32 v6, 1, v6"); a.i(f"v_xor_b32 v6, v5, v6")
        a.i(f"v_lshlrev_b32 v6, 4, v6"); a.i(f"v_add_u32 v6, s6, v6")
        a.i(f"v_mul_u32_u24 v7, {XROW}, v4"); a.i(f"v_add_u32 {vWOm[par]}, v6, v7")
        a.i(f"v_lshrrev_b32 v7, 1, v4"); a.i(f"v_mul_u32_u24 v7, 18, v7"); a.i(f"v_and_b32 v8, 1, v4"); a.i(f"v_add_u32 v7, v7, v8")
        a.i(f"v_mul_u32_u24 v7, {XROW}, v7"); a.i(f"v_add_u32 {vWOl[par]}, v6, v7")
    a.i(f"v_lshrrev_b32 v4, 1, {L}")
    a.i(f"v_and_b32 v5, 1, {L}"); a.i(f"v_lshlrev_b32 v5, 4, v5"); a.i(f"v_add_u32 v5, 256, v5"); a.i(f"v_add_u32 v5, s6, v5")
    a.i(f"v_bfe_u32 v6, v4, 2, 2")
    a.i(f"v_and_b32 v7, 3, v4"); a.i(f"v_lshrrev_b32 v8, 4, v4")
    a.i(f"v_lshrrev_b32 v2, 1, v6"); a.i(f"v_mul_u32_u24 v2, 18, v2"); a.i(f"v_add_u32 v2, v2, v7"); a.i(f"v_lshl_add_u32 v2, v8, 3, v2")
    a.i(f"v_and_b32 v3, 1, v6"); a.i(f"v_lshl_add_u32 v2, v3, 2, v2"); a.i(f"v_mul_u32_u24 v2, {XROW}, v2"); a.i(f"v_add_u32 {vWOt[0]}, v2, v5")
    a.i(f"v_lshl_add_u32 v7, v8, 2, v7")
    a.i(f"v_lshrrev_b32 v2, 1, v7"); a.i(f"v_lshl_add_u32 v2, v6, 2, v2"); a.i(f"v_mul_u32_u24 v2, 18, v2")
    a.i(f"v_and_b32 v3, 1, v7"); a.i(f"v_add3_u32 v2, v2, v3, 16"); a.i(f"v_mul_u32_u24 v2, {XROW}, v2"); a.i(f"v_add_u32 {vWOt[1]}, v2, v5")

vWO8=[f'v{22+e}' for e in range(8)]
def wo8_setup():
    L=[]
    for e in range(8):
        const=(((e&3)>>1)*18+8*(e>>2)+4*(e&1))*XROW-1024*(e%4)
        if const>=0: L.append(f"v_add_u32 {vWO8[e]}, {const}, {vWOm[e&1]}")
        else: L.append(f"v_subrev_u32 {vWO8[e]}, {-const}, {vWOm[e&1]}")
    return L
def wo8_groups(uniform_setup):
    Gs=[]
    for e in range(8):
        pre = list(uniform_setup) if e==0 else []
        if e%4==0: pre += [f"s_add_u32 m0, {sT3}, {4096*(e//4)}", "s_nop 0"]
        Gs.append(pre+[(f"buffer_load_dwordx4 {vWO8[e]}, {sWO}, {sT2} offen offset:{1024*(e%4)} lds",'wo')])
    Gs.append([f"s_add_u32 m0, {sT3}, 8192", "s_nop 0", (f"buffer_load_dwordx4 {vWOt[0]}, {sWO}, {sT2} offen lds",'wo')])
    return Gs

def wo_dma_groups(kap, slot, uniform_setup):
    Gs=[]
    left = kap>=16
    for e in range(8):
        if left: const=((4*(e&3)+2*(e>>2))*18+16)*XROW
        else: const=(((e&3)>>1)*18+8*(e>>2)+4*(e&1))*XROW
        pre = list(uniform_setup) if e==0 else []
        if e%4==0: pre += [f"s_add_u32 m0, {sT3}, {4096*(e//4)}"]
        voff=(vWOl if left else vWOm)[e&1]
        Gs.append(pre+[f"s_add_u32 {sWOs}, {sT2}, {const-1024*(e%4)}" if const-1024*(e%4)>=0 else f"s_sub_u32 {sWOs}, {sT2}, {1024*(e%4)-const}",
                       (f"buffer_load_dwordx4 {voff}, {sWO}, {sWOs} offen offset:{1024*(e%4)} lds",'wo')])
    Gs.append([f"s_add_u32 m0, {sT3}, 8192", "s_nop 0", (f"buffer_load_dwordx4 {vWOt[1 if left else 0]}, {sWO}, {sT2} offen lds",'wo')])
    return Gs

def wo_prefetch_groups():
    Gs=[]
    for it in range(4):
        setup=[f"s_add_u32 {sT1}, {sWV}, {4*it}", f"s_mul_i32 {sT2}, {sT1}, 41472", f"s_mul_i32 {sT3}, {sT1}, 9216"]
        Gs+=wo_dma_groups(0,None,setup)
    return Gs

def wo_left_groups(L_, ldsbase, regs=None):
    vl0,vl1,vt = regs or (vWOl[0],vWOl[1],vWOt[1])
    g0=L_*16*18*XROW
    setup=[f"s_lshl_b32 {sT1}, {sWV}, 1", f"s_and_b32 {sT1}, {sT1}, 3", f"s_lshl_b32 {sT1}, {sT1}, 2",
           f"s_lshr_b32 {sT2}, {sWV}, 1", f"s_lshl_b32 {sT2}, {sT2}, 1", f"s_add_u32 {sT1}, {sT1}, {sT2}",
           f"s_mul_i32 {sT1}, {sT1}, {18*XROW}", f"s_add_u32 {sT2}, {sT1}, {g0+16*XROW}",
           f"s_lshl_b32 {sT1}, {sWV}, 11", f"s_add_u32 m0, {sT1}, {ldsbase}", "s_nop 0"]
    G0=setup+[(f"buffer_load_dwordx4 {vl0}, {sWO}, {sT2} offen lds",'wo')]
    G1=[f"s_add_u32 {sT2}, {sT2}, {4*18*XROW-1024}", (f"buffer_load_dwordx4 {vl1}, {sWO}, {sT2} offen offset:1024 lds",'wo')]
    G2=[f"s_mov_b32 {sT2}, {g0}", f"s_mov_b32 m0, {ldsbase+8192}", "s_nop 0", (f"buffer_load_dwordx4 {vt}, {sWO}, {sT2} offen lds",'wo')]
    return [G0,G1,G2]

def halo_load_groups(hb):
    base=HALO+14*hb; src=sKV2 if hb<4 else sKV1; bt=hb%4; tg=f'h{hb}'
    return [[f"s_add_u32 {sT0}, {src}, {9216*bt}",
             (f"buffer_load_dwordx4 a[{base}:{base+3}], {vPk}, {sWS}, {sT0} offen sc1", tg),
             (f"buffer_load_dword a{base+4}, {vPl}, {sWS}, {sT0} offen sc1", tg),
             f"s_mov_b64 exec, {sVM}",
             (f"buffer_load_dwordx4 a[{base+6}:{base+9}], {vPv}, {sWS}, {sT0} offen sc1", tg),
             (f"buffer_load_dwordx4 a[{base+10}:{base+13}], {vPv}, {sWS}, {sT0} offen offset:576 sc1", tg),
             "s_mov_b64 exec, -1"]]

def get_nonce(a):
    a.i(f"v_readfirstlane_b32 {sNONl}, v48"); a.i(f"v_readfirstlane_b32 {sNONh}, v49"); a.i("s_nop 1")
    a.i(f"s_or_b32 {sT0}, {sNONl}, {sNONh}"); a.i(f"s_cmp_lg_u32 {sT0}, 0"); a.i("s_cbranch_scc1 L_have_nonce")
    a.i(f"s_mov_b32 {sCNT}, 100000")
    a.label("L_nonce_poll")
    a.i(f"v_mov_b32 {vT}, 0")
    a.i(f"buffer_load_dwordx2 {vNON}, {vT}, {sDBG}, 0 offen sc1", cond=True)
    a.i("s_waitcnt vmcnt(0)")
    a.i(f"v_readfirstlane_b32 {sNONl}, v48"); a.i(f"v_readfirstlane_b32 {sNONh}, v49"); a.i("s_nop 1")
    a.i(f"s_or_b32 {sT0}, {sNONl}, {sNONh}"); a.i(f"s_cmp_lg_u32 {sT0}, 0"); a.i("s_cbranch_scc1 L_have_nonce")
    a.i(f"s_sub_u32 {sCNT}, {sCNT}, 1"); a.i(f"s_cmp_lg_u32 {sCNT}, 0"); a.i("s_cbranch_scc1 L_nonce_poll")
    a.label("L_have_nonce")

def kv_regs(jb): return ('v', OWN+14*jb) if jb>=0 else ('a', HALO+14*(jb+8))
HORDER=[-4,-3,-8,-7,-2,-1,-6,-5]
def tile_list():
    T=[(i,bt) for i in range(4) for bt in range(i+1)]
    for jb in HORDER[:4]:
        for i in range(4):
            if i-jb<=8: T.append((i,jb))
    if GOPT.get('r2_by_q',0):
        for i in (3,2,1,0):
            for jb in HORDER[4:]:
                if i-jb<=8: T.append((i,jb))
    else:
        for jb in HORDER[4:]:
            for i in range(4):
                if i-jb<=8: T.append((i,jb))
    return T

def norm_block(i):
    O=OACC+16*i; t=84; L=[]
    L.append(f"v_rcp_f32 v{t}, v{O+10}")
    L.append(f"v_pk_add_f32 v[{t+2}:{t+3}], v[{O}:{O+1}], v[{O+2}:{O+3}]")
    L.append(f"v_pk_add_f32 v[{t+4}:{t+5}], v[{O+4}:{O+5}], v[{O+6}:{O+7}]")
    L.append(f"v_mov_b32 v{t+1}, v{t}")
    L.append(f"v_pk_add_f32 v[{t+2}:{t+3}], v[{t+2}:{t+3}], v[{O+8}:{O+9}]")
    L.append(f"v_pk_add_f32 v[{t+2}:{t+3}], v[{t+2}:{t+3}], v[{t+4}:{t+5}]")
    for r in range(0,10,2): L.append(f"v_pk_mul_f32 v[{O+r}:{O+r+1}], v[{t}:{t+1}], v[{O+r}:{O+r+1}]")
    L.append(f"v_add_f32 v{t+2}, v{t+2}, v{t+3}")
    L.append(f"v_fma_f32 v{t+2}, v{t+2}, 0, v{O+10}")
    for u in range(5): L.append(f"v_cvt_pk_bf16_f32 v{O+u}, v{O+2*u}, v{O+2*u+1}")
    L.append(f"v_cmp_nle_f32 vcc, v252, v{t+2}")
    L.append(f"v_cmp_nge_f32 s[4:5], v253, v{t+2}")
    L.append(f"s_add_u32 {sT0}, {sOM}, {i*32*OUTROW}"); L.append(f"s_add_u32 {sT1}, {sOL}, {i*32*OUTROW}")
    L.append(f"s_or_b64 {sBAD}, {sBAD}, vcc"); L.append(f"s_or_b64 {sBAD}, {sBAD}, s[4:5]")
    L.append(('OSTORE',i))
    return L

def emit_ostore(a, i):
    O=OACC+16*i
    if not GOPT.get('olocal'):
        a.i(f"buffer_store_dwordx4 v[{O}:{O+3}], {vPk}, {sOUT}, {sT0} offen sc1", 'ost')
        a.i(f"s_mov_b64 exec, {sLO}")
        a.i(f"buffer_store_dword v{O+4}, {vOl}, {sOUT}, {sT1} offen sc1", 'ost')
        a.i(f"s_mov_b64 exec, -1")
        return
    a.i(f"s_cmp_eq_u32 {sLOC}, 1"); a.i(f"s_cbranch_scc1 L_osl{i}")
    a.i(f"buffer_store_dwordx4 v[{O}:{O+3}], {vPk}, {sOUT}, {sT0} offen sc1", 'x', True)
    a.i(f"s_mov_b64 exec, {sLO}")
    a.i(f"buffer_store_dword v{O+4}, {vOl}, {sOUT}, {sT1} offen sc1", 'x', True)
    a.i(f"s_mov_b64 exec, -1")
    a.i(f"s_branch L_ose{i}")
    a.label(f"L_osl{i}")
    a.i(f"buffer_store_dwordx4 v[{O}:{O+3}], {vPk}, {sOUT}, {sT0} offen", 'ost')
    a.i(f"s_mov_b64 exec, {sLO}")
    a.i(f"buffer_store_dword v{O+4}, {vOl}, {sOUT}, {sT1} offen", 'ost')
    a.i(f"s_mov_b64 exec, -1")
    a.label(f"L_ose{i}")

def o_pretouch():
    L=vLane
    return [f"v_lshrrev_b32 v2, 3, {L}", f"v_mul_u32_u24 v2, {32*OUTROW}, v2", f"v_and_b32 v3, 7, {L}", f"v_lshl_add_u32 v2, v3, 7, v2",
            f"v_add_u32 v2, {sOM}, v2",
            f"v_bfe_u32 v3, {L}, 2, 2", f"v_mul_u32_u24 v3, {32*OUTROW}, v3", f"v_and_b32 v4, 3, {L}", f"v_mul_u32_u24 v4, {OUTROW}, v4",
            f"v_add3_u32 v3, v3, v4, {sOL}",
            f"v_cmp_le_u32 vcc, 32, {L}", f"s_lshl_b32 {sT0}, {sG}, 2", f"s_add_u32 {sT0}, {sT0}, {sWV}", f"v_cndmask_b32 v2, v2, v3, vcc",
            "s_mov_b32 s4, -1", "s_mov_b32 s5, 0xffff", "s_mov_b64 exec, s[4:5]",
            (f"buffer_load_dword v255, v2, {sOUT}, 0 offen",'touch'), "s_mov_b64 exec, -1",
            f"s_lshl_b32 {sT0}, {sT0}, 7", f"s_add_u32 {sT0}, {sT0}, {sFO}",
            f"v_mul_u32_u24 v2, {WS_FWL-WS_FOL}, {L}", f"v_add_u32 v2, {WS_FOL-WS_FO}, v2",
            "s_mov_b64 exec, 3", (f"buffer_load_dword v255, v2, {sWS}, {sT0} offen",'touch'), "s_mov_b64 exec, -1"]

def attention(a, opts):
    a.c("---- attention")
    T=tile_list(); n=len(T)
    first={}; last={}; firstuse={}
    for k,(i,jb) in enumerate(T):
        first.setdefault(i,k); last[i]=k; firstuse.setdefault(jb,k)
    Sreg=lambda k: (S0 if k%2==0 else S1)
    Preg=lambda k: (P0 if k%2==0 else P1)
    def qk(k):
        i,jb=T[k]; p,base=kv_regs(jb); S=rng('v',Sreg(k),16)
        return [f"v_mfma_f32_32x32x16_bf16 {S}, {rng(p,base,4)}, a[{8*i}:{8*i+3}], 0",
                f"v_mfma_f32_32x32x16_bf16 {S}, {rng(p,base+4,4)}, a[{8*i+4}:{8*i+7}], {S}"]
    def pv(k):
        i,jb=T[k]; p,base=kv_regs(jb); O=rng('v',OACC+16*i,16); P=Preg(k)
        c0='0' if k==first[i] else O
        return [f"v_mfma_f32_32x32x16_bf16 {O}, {rng(p,base+6,4)}, v[{P}:{P+3}], {c0}",
                f"v_mfma_f32_32x32x16_bf16 {O}, {rng(p,base+10,4)}, v[{P+4}:{P+7}], {O}"]
    waited=set()
    wo=list(opts.get('_wo_left',[]))+wo_group_for(12)+wo_left_groups(0,16*9216)
    NW=opts.get('wo_att',39)
    def rn_(t): return t.replace(vWOl[0]+',','v88,').replace(vWOl[1]+',','v89,').replace(vWOt[1]+',','v90,').replace(vWOt[0]+',','v96,')
    def rt(g): return [((rn_(x[0]),'wo2') if isinstance(x,tuple) else x) for x in g]
    opts['_wo_p3']=[rt(g) for g in wo[NW:]]
    wo=wo[:NW]
    if opts.get('X_nowo'):
        for g in wo[1:]:
            pass
        wo=wo[:1]; opts['_wo_p3']=[]
    WO_START=opts.get('wo_start',0)
    CHK0=opts.get('chk0',0); FLAGB=opts.get('flagB',3); FL1=opts.get('fl1',9); CHK1=opts.get('chk1',14)
    WO_PAUSE=opts.get('wo_pause',1)
    if opts.get('idle_att'): a.i(f"s_sleep {opts['idle_att']}")
    a.i(f"s_mov_b32 {sTRY}, 0")
    a.label("L_att")
    a.i(f"v_mov_b32 v254, 0x207")
    q0=qk(0); a.i(q0[0]); a.i(q0[1])
    extra=[]; hq=[]
    for k in range(n+1):
        a.stamp(f't{k}_')
        pagepad(a,opts,f't{k}')
        if k==CHK0:
            kv_flag_check(a,0,2)
            for jb in HORDER[:4]:
                hq += halo_load_groups(jb+8)
        if k==FLAGB:
            a.wait(vm='pubB'); a.emit(flag_store_ins(4))
        if k==FL1: a.emit(kv_flag_load(1))
        if opts.get('olocal') and k==opts.get('pre_at',19): a.emit(o_pretouch())
        if opts.get('olocal') and k==opts.get('xtl',24): a.emit(xt_load())
        if opts.get('olocal') and k==opts.get('xtc',30): xt_check(a)
        if k==CHK1:
            kv_flag_check(a,1,4)
            for jb in HORDER[4:]:
                hq += halo_load_groups(jb+8)
        mf=[]
        if k+1<n:
            i,jb=T[k+1]
            if jb<0 and jb not in waited:
                if not waited: a.stamp('own_done')
                assert any(t==f'h{jb+8}' for t in a.vm), jb
                waited.add(jb); a.wait(vm=f'h{jb+8}')
                if len(waited)==1: a.stamp('h0_landed')
            mf+=qk(k+1)
        else: mf+=[None,None]
        mf += pv(k-1) if k>=1 else [None,None]
        if k==0: a.nop(12)
        S=Sreg(k); P=Preg(k)
        i,jb=T[k] if k<n else (None,None)
        for seg in range(4):
            pk,ps = (k,seg-1) if seg>0 else (k-1,3)
            if pk>=0 and pk<n:
                Sp=Sreg(pk); Pp=Preg(pk); ip,jp=T[pk]
                for u in (2*ps,2*ps+1): a.i(f"v_cvt_pk_bf16_f32 v{Pp+u}, v{Sp+2*u}, v{Sp+2*u+1}")
                if jp==ip or jp==ip-8:
                    M=MASKD if jp==ip else MASKF
                    for u in (2*ps,2*ps+1): a.i(f"v_and_b32 v{Pp+u}, v{M+u}, v{Pp+u}")
            if k==n and seg==2: a.nop(2)
            if mf[seg]: a.i(mf[seg])
            if k<n:
                for e in range(4): a.i(f"v_exp_f32 v{S+4*seg+e}, v{S+4*seg+e}")
            a.drain(extra, 6 if k<n else 1000)
            if hq and seg in (0,2): a.emit(hq.pop(0))
            paused = WO_PAUSE and ((CHK0<=k<opts.get('wo_p1',10)) or (CHK1<=k<CHK1+opts.get('wo_p2',9)))
            segs={1:(1,),2:(1,3),3:(0,1,3)}[opts.get('wo_rate',3)]
            if k>=WO_START and wo and not paused and seg in segs: a.emit(wo.pop(0))
        if k>=1:
            ib=T[k-1][0]
            if last[ib]==k-1:
                if k==n:
                    a.nop(14); a.emit(norm_block(ib))
                elif opts.get('X_nonorm'): extra+=["s_nop 1"]+norm_block(ib)[-4:]
                else: extra+=["s_nop 1"]+norm_block(ib)
    assert not extra
    for g in wo: a.emit(g)
    a.i(f"s_or_b32 s4, s74, s75"); a.i(f"s_cmp_eq_u32 s4, 0"); a.i("s_cbranch_scc1 L_att_done")
    a.i(f"s_cmp_eq_u32 {sTRY}, 0"); a.i("s_cbranch_scc1 L_slow")
    a.label("L_att_done")
    a.stamp('att_end')

def slow_path(a):
    a.label("L_slow")
    a.i("s_waitcnt vmcnt(0) lgkmcnt(0)")
    T=tile_list(); L=vLane
    a.i(f"v_and_b32 v84, 31, {L}"); a.i(f"v_lshrrev_b32 v85, 5, {L}"); a.i("v_lshlrev_b32 v85, 2, v85"); a.i("v_sub_u32 v84, v84, v85")
    a.i("v_mov_b32 v86, 0xff800000")
    for i in range(4):
        m=f"v{P0+i}"
        a.i(f"v_mov_b32 {m}, v86")
        for n_,(ii,jb) in enumerate([t for t in T if t[0]==i]):
            lab=f"L_sk{i}_{n_}"
            if jb<0:
                a.i(f"s_cmp_lt_u32 {sC}, {2 if jb<-4 else 1}"); a.i(f"s_cbranch_scc1 {lab}")
            p_,base=kv_regs(jb); S=rng('v',S0,16)
            a.i(f"v_mfma_f32_32x32x16_bf16 {S}, {rng(p_,base,4)}, a[{8*i}:{8*i+3}], 0")
            a.i(f"v_mfma_f32_32x32x16_bf16 {S}, {rng(p_,base+4,4)}, a[{8*i+4}:{8*i+7}], {S}")
            a.nop(16)
            if jb==i or jb==i-8:
                for r in range(16):
                    k0=(r&3)+8*(r>>2)
                    a.i(f"v_cmp_{'le' if jb==i else 'gt'}_i32 vcc, {k0}, v84"); a.i("s_nop 1")
                    a.i(f"v_cndmask_b32 v{S0+r}, v86, v{S0+r}, vcc")
            for r in range(0,16,2): a.i(f"v_max3_f32 {m}, v{S0+r}, v{S0+r+1}, {m}")
            if jb<0: a.label(lab)
        a.i(f"v_mov_b32 v87, {m}"); a.nop(2)
        a.i(f"v_permlane32_swap_b32 {m}, v87"); a.nop(2)
        a.i(f"v_max_f32 {m}, {m}, v87")
        a.i(f"v_sub_f32 v87, 0, {m}")
        a.i(f"v_cvt_pk_bf16_f32 v88, v87, v87"); a.i("v_lshlrev_b32 v89, 16, v88")
        a.i("v_sub_f32 v89, v87, v89")
        a.i("v_cvt_pk_bf16_f32 v88, v87, v89")
        a.i(f"s_mov_b64 exec, {sLO}"); a.i(f"v_accvgpr_write_b32 a{8*i+5}, v88"); a.i("s_mov_b64 exec, -1")
    a.i(f"s_mov_b32 {sTRY}, 1"); a.i(f"s_mov_b64 {sBAD}, 0"); a.nop(4)
    a.i("s_branch L_att")

OF=16
DACC=88
AFV=124
vAr=[f'v{2+t}' for t in range(9)]
vOf='v11'; vOut='v12'; vOf2='v251'

def phase3(a, opts):
    a.c("---- phase 3")
    L=vLane
    a.i(f"v_mov_b32 v88, {vWOl[0]}"); a.i(f"v_mov_b32 v89, {vWOl[1]}"); a.i(f"v_mov_b32 v90, {vWOt[1]}"); a.i(f"v_mov_b32 v96, {vWOt[0]}")
    a.i(f"v_lshrrev_b32 v13, 2, {L}")
    a.i(f"v_and_b32 v14, 7, v13"); a.i(f"v_lshlrev_b32 v14, 5, v14")
    a.i(f"v_lshl_add_u32 v14, v13, 8, v14")
    a.i(f"v_and_b32 v15, 3, {L}"); a.i(f"v_lshl_add_u32 v14, v15, 3, v14")
    for t in range(8): a.i(f"v_xor_b32 {vAr[t]}, {32*t}, v14")
    a.i(f"v_lshlrev_b32 v13, 5, v13"); a.i(f"v_lshl_add_u32 v13, v15, 3, v13"); a.i(f"v_add_u32 {vAr[8]}, 8192, v13")
    a.i(f"v_and_b32 v13, 15, {L}"); a.i(f"v_lshrrev_b32 v14, 4, {L}")
    a.i(f"s_and_b32 s6, {sWV}, 1"); a.i(f"s_lshl_b32 s6, s6, 8")
    a.i(f"v_lshl_add_u32 v15, v13, 4, s6")
    a.i(f"v_and_b32 v93, 1, v14"); a.i(f"v_lshl_add_u32 {vOf}, v93, 9, v15"); a.i(f"v_lshrrev_b32 v93, 1, v14")
    a.i(f"v_mul_u32_u24 v93, {OUTROW}, v93"); a.i(f"v_add_u32 {vOf}, {vOf}, v93")
    a.i(f"v_lshrrev_b32 v93, 7, v15"); a.i(f"v_lshl_add_u32 v93, v14, 2, v93"); a.i(f"v_mul_u32_u24 v93, {OUTROW}, v93")
    a.i(f"v_and_b32 v94, 0x70, v15"); a.i(f"v_add_u32 {vOf2}, v93, v94")
    a.i(f"v_mul_u32_u24 v15, {OUTROW}, v13"); a.i(f"v_lshl_add_u32 {vOut}, v14, 3, v15")
    a.wait(vm='wo')
    a.i("s_barrier")
    a.stamp('wo_ready')
    if opts.get('dumpwo'):
        a.i("s_cmp_lg_u32 s2, 0"); a.i("s_cbranch_scc1 L_nodump")
        a.i("v_lshlrev_b32 v13, 4, v0")
        for it in range(39):
            a.i(f"ds_read_b128 v[124:127], v13 offset:0")
            a.i("s_waitcnt lgkmcnt(0)")
            a.i(f"v_add_u32 v14, {WS_DBG+0x100000}, v13")
            a.i(f"buffer_store_dwordx4 v[124:127], v14, {sWS}, 0 offen", cond=True)
            a.i("s_waitcnt vmcnt(0)")
            a.i("v_add_u32 v13, 4096, v13")
        a.label("L_nodump"); a.lg_clear()
    def frag_reads(kap, dst):
        slot=kap if kap<17 else 0
        R=[]
        for t in range(9):
            p,r=dst(kap,t)
            off=(slot%7)*9216
            hoff=4096 if t<8 else 512
            R.append([(f"ds_read_b64_tr_b16 {p}[{r+2*h}:{r+2*h+1}], {vAr[t]} offset:{off+hoff*h}", f'a{kap}_{t}') for h in range(2)])
        return R
    NA=7; RING=29
    def dst(kap,t):
        if kap<NA: return 'a', (kap*9+t)*4
        idx=((kap-NA)*9+t)%RING
        return 'v', AFV+idx*4
    bump=lambda: [f"v_add_u32 {vAr[t]}, {7*9216}, {vAr[t]}" for t in range(9)]
    def oflag():
        a.i(f"s_lshl_b32 {sT0}, {sG}, 2"); a.i(f"s_add_u32 {sT0}, {sT0}, {sWV}"); a.i(f"s_lshl_b32 {sT0}, {sT0}, 7"); a.i(f"s_add_u32 {sT0}, {sT0}, {sFO}")
        a.i(f"v_mov_b32 v14, {sNONl}"); a.i(f"v_mov_b32 v13, 0")
        if not opts.get('olocal'):
            a.i(f"v_mov_b32 v15, {sNONh}"); a.i("s_mov_b64 exec, 1")
            a.i(f"buffer_store_dwordx2 v[14:15], v13, {sWS}, {sT0} offen sc1", 'oflag'); a.i("s_mov_b64 exec, -1")
            return
        a.i(f"s_cmp_eq_u32 {sLOC}, 1"); a.i("s_cbranch_scc1 L_ofl")
        a.i(f"v_mov_b32 v15, {sNONh}")
        a.i("s_mov_b64 exec, 1")
        a.i(f"buffer_store_dwordx2 v[14:15], v13, {sWS}, {sT0} offen sc1", 'x', True)
        a.i("s_branch L_ofe")
        a.label("L_ofl")
        a.i(f"s_add_u32 {sT0}, {sT0}, {WS_FOL-WS_FO}")
        a.i(f"v_mov_b32 v15, {sLFH}")
        a.i("s_mov_b64 exec, 1")
        a.i(f"buffer_store_dwordx2 v[14:15], v13, {sWS}, {sT0} offen", tag='oflag')
        a.label("L_ofe")
        a.i("s_mov_b64 exec, -1")
    LF_AT=opts.get('lf_at',3)
    w2=list(opts.get('_wo_p3',[]))
    for kap in range(NA):
        if kap==LF_AT:
            if not opts.get('X_noostw'): a.wait(vm='ost')
            oflag(); a.stamp('o_lflag')
        for gi,grp in enumerate(frag_reads(kap,dst)):
            a.emit(grp)
            if w2 and gi%3==0: a.emit(w2.pop(0))
        if kap%2==1: a.wait(lg=8)
    for g in w2: a.emit(g)
    if opts.get('_wo_p3'):
        a.wait(vm='wo2'); a.i("s_barrier")
    a.emit(bump())
    a.i(f"v_and_b32 v13, 31, {L}"); a.i(f"v_lshlrev_b32 v13, 7, v13")
    a.i(f"v_mov_b32 v91, {sNONh}")
    if opts.get('olocal'):
        a.i(f"v_add_u32 v14, {WS_FOL-WS_FO}, v13"); a.i(f"v_cmp_le_u32 vcc, 32, {L}")
        a.i(f"v_mov_b32 v92, {sLFH}"); a.i("s_nop 0")
        a.i(f"v_cndmask_b32 v13, v13, v14, vcc"); a.i(f"v_cndmask_b32 v91, v91, v92, vcc")
    def opoll_load(cond):
        if not opts.get('olocal'): a.i(f"s_mov_b64 exec, {sLO}")
        a.i(f"buffer_load_dwordx2 v[14:15], v13, {sWS}, {sFO} offen sc1", 'opl', cond)
        a.i("s_mov_b64 exec, -1")
    AP=opts.get('apoll',0); W0=opts.get('w0poll',1)
    if AP==1: opoll_load(False)
    for kap in range(NA,NA+3):
        for grp in frag_reads(kap,dst): a.emit(grp)
    OT=9216; OP=304
    a.i(f"v_and_b32 v252, 15, {L}"); a.i(f"v_mul_u32_u24 v252, {OP}, v252"); a.i(f"v_lshrrev_b32 v253, 4, {L}"); a.i(f"v_lshl_add_u32 v252, v253, 3, v252")
    a.i(f"s_mul_i32 {sT2}, {sWV}, {16*OP}"); a.i(f"s_add_u32 {sT2}, {sT2}, {OT}"); a.i(f"v_add_u32 v250, {sT2}, v252")
    for e in range(5):
        a.i(f"v_add_u32 v252, {64*e}, {L}"); a.i(f"v_mul_u32_u24 v253, 58255, v252"); a.i(f"v_lshrrev_b32 v253, 20, v253")
        a.i(f"v_mul_u32_u24 v254, 18, v253"); a.i(f"v_sub_u32 v254, v252, v254"); a.i(f"v_lshlrev_b32 v254, 4, v254")
        a.i(f"v_mul_u32_u24 v252, {OP}, v253"); a.i(f"v_add3_u32 v{240+e}, v252, v254, {sT2}")
        a.i(f"v_mul_u32_u24 v252, {OUTROW}, v253"); a.i(f"v_add_u32 v{245+e}, v252, v254")
    a.wait(lg=0)
    a.i("s_barrier")
    for g in wo_left_groups(1,0,('v88','v89','v90')): a.emit(g)
    a.stamp('frags_pre')
    if opts.get('X_nopoll'): a.i("s_branch L_opoll_done")
    if W0:
        a.i(f"s_cmp_lg_u32 {sWV}, 0"); a.i("s_cbranch_scc1 L_opoll_done")
    if AP==1: a.wait(vm='opl')
    else:
        opoll_load(True); a.i("s_waitcnt vmcnt(0)")
    a.i(f"s_mov_b32 {sCNT}, 200000")
    a.label("L_opoll")
    if not opts.get('olocal'): a.i(f"s_mov_b64 exec, {sLO}")
    a.i(f"v_cmp_eq_u32 vcc, {sNONl}, v14"); a.i(f"v_cmp_eq_u32 s[4:5], v91, v15")
    a.i("s_mov_b64 exec, -1")
    a.i("s_and_b64 s[4:5], s[4:5], vcc"); a.i("s_or_b32 s4, s4, s5"); a.i("s_cmp_eq_u32 s4, -1"); a.i("s_cbranch_scc1 L_opoll_done")
    if opts.get('psleep',0): a.i(f"s_sleep {opts.get('psleep',0)}")
    opoll_load(True); a.i("s_waitcnt vmcnt(0)")
    a.i(f"s_sub_u32 {sCNT}, {sCNT}, 1"); a.i(f"s_cmp_lg_u32 {sCNT}, 0"); a.i("s_cbranch_scc1 L_opoll")
    a.label("L_opoll_done")
    if W0:
        a.wait(vm='wo'); a.i("s_barrier")
    a.stamp('opoll_done')
    if opts.get('kord',1)==1: KORD=[7,0,8,1,9,2,10,3,11,4,12,5,13,6,14,15,16,17]
    else: KORD=[7,8,9]+list(range(7))+list(range(10,18))
    def oload(kap):
        if kap<16:
            a.i(f"s_add_u32 {sT0}, {sPOM}, {2*OUTROW*kap}")
            a.i(f"buffer_load_dwordx4 v[{OF+4*kap}:{OF+4*kap+3}], {vOf}, {sOUT}, {sT0} offen sc1", tag=f'of{kap}')
        else:
            a.i(f"s_add_u32 {sT0}, {sPOL}, {16*OUTROW*(kap-16)}")
            a.i(f"buffer_load_dwordx4 v[{OF+4*kap}:{OF+4*kap+3}], {vOf2}, {sOUT}, {sT0} offen sc1", tag=f'of{kap}')
    NFIRST=opts.get('ofirst',7)
    oq=list(KORD)
    for _ in range(NFIRST): oload(oq.pop(0))
    a.stamp('p3_oissued')
    if not W0:
        a.wait(vm='wo'); a.i("s_barrier")
    rq=[]
    for kap in range(NA+3,18):
        R=frag_reads(kap,dst)
        for t in range(9): rq.append((kap,t,R[t]))
    issued=(NA+3-NA)*9
    consumed=0; mcount=0
    def war_store():
        a.wait(vm=f'of{KORD[-1]}')
        a.i(f"s_lshl_b32 {sT0}, {sG}, 2"); a.i(f"s_add_u32 {sT0}, {sT0}, {sWV}"); a.i(f"s_lshl_b32 {sT0}, {sT0}, 7"); a.i(f"s_add_u32 {sT0}, {sT0}, {sFO}")
        a.i(f"v_mov_b32 v252, {sNONl}"); a.i(f"v_mov_b32 v254, 0")
        a.i(f"s_add_u32 {sT0}, {sT0}, {WS_FW-WS_FO}")
        if opts.get('olocal'):
            a.i(f"s_cmp_eq_u32 {sLOC}, 1"); a.i("s_cbranch_scc1 L_wl")
        a.i(f"v_mov_b32 v253, {sNONh}"); a.i("s_mov_b64 exec, 1")
        a.i(f"buffer_store_dwordx2 v[252:253], v254, {sWS}, {sT0} offen sc1", 'war' if not opts.get('olocal') else 'x', bool(opts.get('olocal')))
        if opts.get('olocal'):
            a.i("s_branch L_we"); a.label("L_wl")
            a.i(f"s_add_u32 {sT0}, {sT0}, {WS_FWL-WS_FW}"); a.i(f"v_mov_b32 v253, {sLFH}"); a.i("s_mov_b64 exec, 1")
            a.i(f"buffer_store_dwordx2 v[252:253], v254, {sWS}, {sT0} offen", 'war')
            a.label("L_we")
        a.i("s_mov_b64 exec, -1")
    def war_addr():
        a.i(f"v_and_b32 v13, 15, {L}"); a.i(f"s_lshl_b32 {sT0}, {sRH}, 4"); a.i(f"v_add_u32 v13, {sT0}, v13"); a.i(f"v_lshlrev_b32 v13, 7, v13")
        a.i(f"v_add_u32 v13, {WS_FW-WS_FO}, v13"); a.i(f"v_add_u32 v14, {WS_FWL-WS_FW}, v13"); a.i(f"v_cmp_le_u32 vcc, 16, {L}")
        a.i(f"v_mov_b32 v15, {sNONh}"); a.i(f"v_mov_b32 v1, {sLFH if opts.get('olocal') else sNONh}")
        a.i(f"v_cndmask_b32 v13, v13, v14, vcc"); a.i(f"v_cndmask_b32 v15, v15, v1, vcc")
    def war_load(cond=False):
        a.i(f"s_mov_b64 exec, {sLO}"); a.i(f"buffer_load_dwordx2 v[0:1], v13, {sWS}, {sFO} offen sc1", 'warl', cond); a.i("s_mov_b64 exec, -1")
    base_slot=7
    for kap in KORD:
        a.wait(vm=f'of{kap}')
        for t in range(9):
            p,r=dst(kap,t)
            if kap>=NA:
                if opts.get('batchw',0):
                    if t%3==0:
                        tg=f'a{kap}_{t+2}'
                        if tg in a.lg or tg in a.lgdone:
                            if a.lg_n(tg) is not None: a.wait(lg=tg)
                        else:
                            for tt_ in (t+2,t+1,t):
                                tg2=f'a{kap}_{tt_}'
                                if tg2 in a.lg or tg2 in a.lgdone: break
                            raise Exception("ring underflow %d %d"%(kap,t))
                else:
                    n_=a.lg_n(f'a{kap}_{t}')
                    if n_ is not None: a.wait(lg=f'a{kap}_{t}')
            acc=rng('v',DACC+4*t,4); c='0' if kap==KORD[0] else acc
            a.i(f"v_mfma_f32_16x16x32_bf16 {acc}, {p}[{r}:{r+3}], v[{OF+4*kap}:{OF+4*kap+3}], {c}")
            if kap>=NA: consumed+=1
            mcount+=1
            if mcount in (1,27,90,126): a.stamp(f'p3_m{mcount}_')
            if oq and mcount%opts.get('oevery',4)==0: oload(oq.pop(0))
            if mcount==opts.get('war_st',100): war_store()
            if mcount==opts.get('war_ld',140): war_addr(); war_load()
            if rq and issued-consumed<RING-1:
                k2,t2,ins=rq[0]
                if k2==14 and t2==0 and base_slot==7:
                    a.emit(bump()); base_slot=14
                if k2==17 and t2==0:
                    a.emit([f"v_subrev_u32 {vAr[tt]}, {14*9216}, {vAr[tt]}" for tt in range(9)])
                rq.pop(0); a.emit(ins); issued+=1
    assert not rq
    a.stamp('p3_mfma_end')
    a.wait(vm='warl')
    a.i(f"s_mov_b32 {sCNT}, 200000")
    a.label("L_wchk")
    a.i(f"s_mov_b64 exec, {sLO}")
    a.i(f"v_cmp_eq_u32 vcc, {sNONl}, v0"); a.i(f"v_cmp_eq_u32 s[4:5], v15, v1")
    a.i("s_mov_b64 exec, -1")
    a.i("s_and_b64 s[4:5], s[4:5], vcc"); a.i("s_lshr_b32 s5, s4, 16"); a.i("s_or_b32 s4, s4, s5"); a.i("s_and_b32 s4, s4, 0xffff")
    a.i("s_cmp_eq_u32 s4, 0xffff"); a.i("s_cbranch_scc1 L_wok")
    war_load(True); a.i("s_waitcnt vmcnt(0)")
    a.i(f"s_sub_u32 {sCNT}, {sCNT}, 1"); a.i(f"s_cmp_lg_u32 {sCNT}, 0"); a.i("s_cbranch_scc1 L_wchk")
    a.label("L_wok")
    a.stamp('p3_war')
    a.nop(10)
    for t in range(9):
        d=DACC+4*t
        a.i(f"v_cvt_pk_bf16_f32 v{d}, v{d}, v{d+1}"); a.i(f"v_cvt_pk_bf16_f32 v{d+1}, v{d+2}, v{d+3}")
        a.i(f"ds_write_b64 v250, v[{d}:{d+1}] offset:{32*t}", 'ow')
    a.wait(lg=0)
    for e in range(5):
        if e==4: a.i(f"s_mov_b64 exec, {sLO}")
        a.i(f"ds_read_b128 v[{32+4*e}:{35+4*e}], v{240+e}", f'or{e}')
    a.i("s_mov_b64 exec, -1")
    for e in range(5):
        a.wait(lg=f'or{e}')
        if e==4: a.i(f"s_mov_b64 exec, {sLO}")
        a.i(f"buffer_store_dwordx4 v[{32+4*e}:{35+4*e}], v{245+e}, {sOUT}, {sOUTB} offen {opts.get('outmod','')}")
    a.i("s_mov_b64 exec, -1")
    a.stamp('p3_stissued')
    a.i("s_waitcnt vmcnt(0)")

def kd(name, vgpr, accum, sgpr=102):
    return f""".section .rodata,"a"
.p2align 6
.amdhsa_kernel {name}
  .amdhsa_next_free_vgpr {vgpr}
  .amdhsa_next_free_sgpr {sgpr}
  .amdhsa_accum_offset {accum}
  .amdhsa_group_segment_fixed_size 0
  .amdhsa_kernarg_size 72
  .amdhsa_user_sgpr_count 2
  .amdhsa_user_sgpr_kernarg_segment_ptr 1
  .amdhsa_system_sgpr_workgroup_id_x 1
.end_amdhsa_kernel
"""
HEADER = """; Kernarg layout (72 bytes, ptrs only, base s[0:1]):
;
"""
def build(opts):
    ORDER_MODE[0]=opts.get('order','own'); GOPT.update(opts)
    a=G()
    if opts.get('stamps'):
        a.stamps=[]
        a.sel = opts['sel'].split(',') if 'sel' in opts else ['ch0_landed','1a_end','1b_end','q_ready','poll_done','own_done','att_end','wo_ready','frags_pre','opoll_done','p3_mfma_end','drained']
    prologue(a,opts)
    g0=dma_chunk_groups(0,0)
    if opts.get('ch0v',0):
        for i in range(4):
            a.i(f"v_add_u32 v2, {1024*i}, {vXoff[i]}")
            a.i(f"buffer_load_dwordx4 v[{52+4*i}:{55+4*i}], v2, {sX}, {sXoff} offen", 'ch0')
        for j in range(5):
            if j<4 and j>0: a.i(f"v_add_u32 v2, {1024*j}, {vWoff[j]}")
            src = vWoff[j] if j in (0,4) else 'v2'
            a.i(f"buffer_load_dwordx4 v[{68+4*j}:{71+4*j}], {src}, {sW}, {sWoff} offen", 'ch0')
        a.emit(next_chunk_ins(1))
        setupA(a,opts)
        setupB0(a,opts)
    else:
        if opts.get('tlbw',1) and not opts.get('xfirst',1):
            a.i(f"buffer_load_dword v255, {vWoff[0]}, {sW}, {sWoff} offen", 'touch')
        for g in g0[:4]: a.emit(g)
        if opts.get('xfirst',1):
            w_offsets(a)
            if opts.get('xfirst',1)==2:
                for g in g0[4:]: a.emit(g)
        setupA(a,opts)
        setupB0(a,opts)
        if opts.get('xfirst',1)!=2:
            for g in g0[4:]: a.emit(g)
    def xtouch_list():
        L=vLane; r_=Rec()
        r_.i(f"v_mul_u32_u24 v226, 7282, {L}"); r_.i("v_lshrrev_b32 v226, 16, v226")
        r_.i(f"v_mul_u32_u24 v227, 9, v226"); r_.i(f"v_sub_u32 v227, {L}, v227"); r_.i("v_min_u32 v226, 3, v226")
        r_.i(f"s_lshl_b32 {sT0}, {sC}, 7"); r_.i(f"s_lshl_b32 {sT1}, {sG}, 4"); r_.i(f"s_add_u32 {sT0}, {sT0}, {sT1}"); r_.i(f"s_lshl_b32 {sT1}, {sWV}, 2"); r_.i(f"s_add_u32 {sT0}, {sT0}, {sT1}")
        r_.i(f"v_add_u32 v226, {sT0}, v226"); r_.i(f"v_mul_u32_u24 v226, {XROW}, v226"); r_.i(f"v_lshl_add_u32 v226, v227, 7, v226")
        r_.l += ["s_mov_b32 exec_hi, 15" , (f"buffer_load_dword v255, v226, {sX}, 0 offen",'touch'), "s_mov_b64 exec, -1"]
        return r_.l
    if opts.get('xtouch',1)==1: a.emit(xtouch_list())
    opts['_xt2']=[xtouch_list()] if opts.get('xtouch',1)==2 else []
    if opts.get('wotouch',3)==2: touch_wo(a)
    if opts.get('pfmode',0) in (1,2):
        a.i("v_lshlrev_b32 v2, 7, v0")
        a.raw("    v_min_u32 v2, (L_end-L_pc), v2")
        a.i("global_load_dword v255, v2, s[96:97]", tag='pf')
    if opts.get('qtouch',0): touch_q(a)
    if opts.get('pgw',0):
        L=vLane
        a.i(f"s_lshl_b32 s4, {sB}, 3"); a.i(f"s_add_u32 s4, s4, {sG}"); a.i("s_lshl_b32 s4, s4, 4"); a.i(f"s_add_u32 s4, s4, {sC}")
        a.i(f"s_mul_i32 s4, s4, {SLOT}")
        a.i(f"v_mov_b32 v2, s4"); a.i(f"v_mov_b32 v3, {WS_FKV}"); a.i(f"v_cmp_eq_u32 vcc, 1, {L}"); a.i("s_nop 1"); a.i("v_cndmask_b32 v2, v2, v3, vcc")
        a.i(f"s_sub_u32 s5, s4, {2*SLOT}"); a.i(f"s_max_i32 s5, s5, 0"); a.i("v_mov_b32 v3, s5"); a.i(f"v_cmp_eq_u32 vcc, 2, {L}"); a.i("s_nop 1"); a.i("v_cndmask_b32 v2, v2, v3, vcc")
        a.i("s_mov_b64 exec, 7"); a.i(f"buffer_load_dword v255, v2, {sWS}, 0 offen", 'touch')
        a.i(f"s_lshl_b32 s4, {sC}, 7"); a.i(f"s_mul_i32 s4, s4, {OUTROW}"); a.i("v_mov_b32 v2, 0")
        a.i("s_mov_b64 exec, 1"); a.i(f"buffer_load_dword v255, v2, {sOUT}, s4 offen", 'touch'); a.i("s_mov_b64 exec, -1")
    a.stamp('p_ch0')
    ch1g=dma_chunk_groups(1,1)
    NE=opts.get('ch1_early',0)
    for g in ch1g[:NE]: a.emit(g)
    opts['_ch1rest']=ch1g[NE:]
    a.stamp('p_ch1')
    rec=Rec(); setupB(rec,opts)
    rec2=Rec(); wo_addr(rec2)
    ren=dict(zip(vWOm+vWOl+vWOt,vWOtmp))
    def rn(x):
        for k_,v_ in ren.items(): x=x.replace(f" {k_},",f" {v_},")
        return x
    opts['_side']=rec.l+[rn(x) for x in rec2.l]
    pend=opts['_ch1rest']+opts['_xt2']+dma_chunk_groups(2,2)
    pend=phase1a(a,opts,pend)
    phase1b(a,pend,opts)
    attention(a,opts)
    phase3(a,opts)
    a.stamp('drained'); a.stamp('rt_exit',real=True)
    if opts.get('dbgtime'):
        a.i("s_waitcnt lgkmcnt(0)")
        n=len(a.stamps)
        r0=a.stamps[0][1]; r1=a.stamps[-1][1]
        a.i(f"s_not_b32 s3, s{r0}")
        a.i("v_mov_b32 v2, s3"); a.i("v_mov_b32 v3, 8"); a.i(f"v_mov_b32 v4, s{r1}"); a.i("v_mov_b32 v5, 12")
        a.i("s_mov_b64 exec, 1")
        a.i(f"buffer_atomic_umax v2, v3, {sDBG}, 0 offen sc1"); a.i(f"buffer_atomic_umax v4, v5, {sDBG}, 0 offen sc1")
        a.i(f"s_cmp_lg_u32 s2, 77"); a.i("s_cbranch_scc1 L_nodbg"); a.i(f"s_cmp_lg_u32 {sWV}, 0"); a.i("s_cbranch_scc1 L_nodbg")
        e=a.stamps[1][1]
        for k,(nm,r) in enumerate(a.stamps[2:-1][:12]):
            a.i(f"s_sub_u32 s3, s{r}, s{e}"); a.i("v_mov_b32 v2, s3"); a.i(f"v_mov_b32 v3, {16+4*k}")
            a.i(f"buffer_store_dword v2, v3, {sDBG}, 0 offen")
        a.label("L_nodbg")
        a.i("s_mov_b64 exec, -1"); a.i("s_waitcnt vmcnt(0)")
    else: a.dump_stamps(0)
    a.label("L_end"); a.i("s_endpgm")
    slow_path(a)
    errs=a.check()
    if opts.get('stamps'): print("stamps:",len(a.stamps),[x[0] for x in a.stamps])
    k1=f"{NAME}_kernel"
    txt=HEADER+f"; @launch grid=(256,1,1) block=(256,1,1) lds={LDS_BYTES}\n"
    txt+='.amdgcn_target "amdgcn-amd-amdhsa--gfx950"\n.text\n'
    txt+=f".globl {k1}\n.p2align 8\n.type {k1},@function\n{k1}:\n"+a.text()+kd(k1,512,256)
    return txt
if __name__=="__main__":
    out=sys.argv[1]
    opts={}
    for x in sys.argv[2:]:
        k,_,v=x.partition('='); opts[k]=int(v) if v.lstrip('-').isdigit() else (v or True)
    open(out,'w').write(build(opts)); print("written",out)
```

```python
import sys, os, struct
sys.path.insert(0, os.path.dirname(os.path.abspath(__file__)))
from asm import *
NAME = "concat_heads__sliding_block__sliding_block__prompt"
XROW=1152; WROW=3456; OUTROW=2304
X_BYTES=2048*1152; W_BYTES=576*3456; WO_BYTES=576*1152; OUT_BYTES=2048*2304
SLOT=36864; WPITCH=320; XOFF=20480; QPITCH=192; QCH=12288
VBASE=0; VR=1184; VJ=2368; VB=4736; KB3=18944; KB0=147456; KP=148; KBLK=32*148; QBASE=0
LDS_BYTES=163840
WS_KV=0; WS_OM=0x1000000; WS_OL=0x1400000; WS_FKV=0x1800000; WS_FO=0x1840000; WS_FOL=0x1880000; WS_FW=0x1900000; WS_FWL=0x1940000
WS_XT=0x18C0000
WS_DBG=0x2000000; WS_BYTES=0x4000000
CSCALE = 1.4426950408889634/(18**0.5)
def f2u(x): return struct.unpack('<I',struct.pack('<f',x))[0]
def rng(p,a,n): return f'{p}[{a}:{a+n-1}]'

sX='s[8:11]'; sW='s[12:15]'; sWO='s[16:19]'; sOUT='s[20:23]'; sWS='s[24:27]'; sDBG='s[28:31]'
sB='s32'; sC='s33'; sG='s34'; sWV='s35'
sVM='s[54:55]'; sLO='s[56:57]'
sCI='s58'; sWoff='s59'; sXoff='s60'; sM0='s61'; sKVme='s62'
sT0='s63'; sT1='s64'; sT2='s65'; sFKV='s66'; sT3='s67'
sNONl='s68'; sNONh='s69'; sROT='s70'; sKV1='s71'; sKV2='s72'; sXCC='s73'
sBAD='s[74:75]'; sNVM='s[52:53]'; sCNT='s76'; sOM='s77'; sOL='s78'; sFO='s79'; sSC='s80'; sATT='s81'
sLFH='s70'; sLOC='s81'
sTRY='s52'
sRH='s82'; sNQ='s83'; sPOM='s84'; sPOL='s85'; sOUTB='s86'; sWOs='s87'
sIDX='s76'; sOFF='s81'; sPAIR='s87'; sB2='s65'

vLane='v1'
vWoff=[f'v{10+j}' for j in range(5)]
vXoff=[f'v{15+j}' for j in range(4)]
vQoff=['v19','v20','v21']
vWr=['v22','v23']; vMx=['v24','v25']
vXr=[[f'v{26+t}' for t in range(4)],[f'v{30+t}' for t in range(4)]]
vQr='v34'; vQr2='v43'
vKw='v35'; vQw='v36'; vVw='v37'; vVt='v38'
vKr='v39'; vKl='v40'; vVr='v41'; vCw='v42'; vQl='v43'
vPk='v44'; vPl='v45'; vPv='v46'; vOl='v47'
vNON='v[48:49]'; vVC='v50'; vT='v51'
def WF(b,f): r=52+(b*5+f)*4; return f'v[{r}:{r+3}]'
def WFh(b,f,h): r=52+(b*5+f)*4+2*h; return f'v[{r}:{r+1}]'
def QF(b,f): r=52+(b*3+f)*4; return f'v[{r}:{r+3}]'
def QFh(b,f,h): r=52+(b*3+f)*4+2*h; return f'v[{r}:{r+1}]'
ACC={'K0':92,'K1':108,'V0':124,'V1':140,'MX':156,'Q0':172,'Q1':188,'Q2':204}
def XF(t): return rng('a',4*t,4)
OWN=92; HALO=144
S0=52; S1=68; P0=150; P1=158; OACC=172; MASKD=236; MASKF=244
vWOm=['v10','v11']; vWOl=['v12','v13']; vWOt=['v14','v15']
vWOtmp=['v220','v221','v222','v223','v224','v225']

class G(Asm):
    stamps=None; sel=None; nowait=True
    def stamp(self, name, real=False):
        if self.stamps is None: return
        if self.sel is not None and not (name.startswith('rt_') or name=='entry' or any(name.startswith(x) for x in self.sel)): return
        k=len(self.stamps)
        regs=[88,90,92,94,96,98,100,36,38,40,42,44,46,48,50][k]
        self.stamps.append((name,regs))
        if GOPT.get('allreal'): real_=True
        else: real_=real
        self.i(f"{'s_memrealtime' if real_ else 's_memtime'} s[{regs}:{regs+1}]")
        if self.nowait and not real and name!='entry':
            self.lg.pop()
        else:
            self.i("s_waitcnt lgkmcnt(0)")
            self.lg_clear()
    def dump_stamps(self, base):
        if self.stamps is None: return
        self.i("s_waitcnt lgkmcnt(0)")
        self.i(f"s_lshl_b32 s3, s2, 2"); self.i(f"s_add_u32 s3, s3, {sWV}")
        self.i(f"s_lshl_b32 s3, s3, 6"); self.i(f"s_add_u32 s3, s3, {WS_DBG+base}")
        self.i("s_mov_b64 exec, 1")
        for k,(nm,r) in enumerate(self.stamps):
            self.i(f"v_mov_b32 v2, s{r}"); self.i(f"v_mov_b32 v3, {4*k}")
            self.i(f"buffer_store_dword v2, v3, {sWS}, s3 offen")
        self.i("s_mov_b64 exec, -1"); self.i("s_waitcnt vmcnt(0)")
    def emit(self, lst):
        for x in lst:
            if isinstance(x,tuple) and x[0]=='OSTORE': emit_ostore(self,x[1])
            elif isinstance(x,tuple): self.i(*x)
            else: self.i(x)
    def drain(self, q, budget):
        k=0; inexec=False
        while q and (k<budget or inexec):
            x=q.pop(0)
            txt=x[0] if isinstance(x,tuple) else x
            if txt.startswith('s_mov_b64 exec'): inexec = not txt.endswith('-1')
            if txt=='OSTORE': emit_ostore(self,x[1])
            elif isinstance(x,tuple): self.i(*x)
            else: self.i(x)
            k+=1

def w_offsets(a):
    L=vLane
    a.i(f"s_mul_i32 s6, {sWV}, {16*WROW}"); a.i(f"s_mul_i32 s7, {sG}, 144"); a.i("s_add_u32 s6, s6, s7")
    a.i(f"s_add_u32 s6, s6, 1152")
    a.i(f"s_movk_i32 s7, {WROW}")
    a.i("v_mov_b32 v9, 0x40000000"); a.i("v_mov_b32 v8, 1008")
    for j in range(5):
        a.i(f"v_add_u32 v4, {64*j}, {L}")
        a.i(f"v_mul_u32_u24 v5, 52429, v4"); a.i(f"v_lshrrev_b32 v5, 20, v5")
        a.i(f"v_mul_u32_u24 v6, 20, v5"); a.i(f"v_sub_u32 v6, v4, v6")
        a.i(f"v_cmp_lt_u32 vcc, 8, v6")
        a.i(f"v_mul_lo_u32 v5, v5, s7")
        a.i(f"v_lshl_add_u32 v5, v6, 4, v5")
        a.i(f"v_cndmask_b32 v7, 0, v8, vcc")
        a.i(f"v_cmp_lt_u32 vcc, 17, v6")
        a.i(f"v_add3_u32 v5, v5, v7, s6")
        comp=1024*j if j<4 else 0
        if comp: a.i(f"v_subrev_u32 v5, {comp}, v5")
        else: a.i("s_nop 0")
        a.i(f"v_cndmask_b32 {vWoff[j]}, v5, v9, vcc")

def prologue(a, opts):
    L=vLane
    a.c("---- prologue")
    a.stamp('rt_entry',real=True); a.stamp('entry')
    a.i("s_load_dwordx8 s[36:43], s[0:1], 0")
    a.i("s_cmp_ge_u32 s2, 256")
    a.i("s_cbranch_scc1 L_end")
    if opts.get('pf_first',1): code_prefetch(a)
    a.i("v_lshrrev_b32 v2, 6, v0")
    a.i(f"v_and_b32 {L}, 63, v0")
    a.i("s_and_b32 s3, s2, 7")
    a.i(f"v_readfirstlane_b32 {sWV}, v2")
    a.i("s_lshr_b32 s4, s2, 3")
    a.i("s_and_b32 s6, s3, 3")
    a.i("s_lshr_b32 s5, s4, 3")
    a.i(f"s_lshl2_add_u32 {sC}, s6, s5")
    a.i("s_and_b32 s7, s5, 1")
    a.i(f"s_lshl1_add_u32 {sROT}, s6, s7")
    a.i(f"s_lshl2_add_u32 s6, {sC}, {sWV}")
    a.i(f"s_mul_i32 s6, s6, {32*XROW}")
    a.i(f"v_lshrrev_b32 v4, 3, {L}"); a.i(f"v_lshrrev_b32 v5, 4, {L}"); a.i(f"v_and_b32 v6, 7, {L}")
    a.i(f"v_mul_u32_u24 v4, {XROW}, v4"); a.i("v_xor_b32 v6, v6, v5"); a.i("v_add_u32 v4, s6, v4")
    a.i(f"v_lshl_add_u32 {vXoff[0]}, v6, 4, v4"); a.i("v_xor_b32 v6, 4, v6"); a.i("v_lshl_add_u32 v7, v6, 4, v4")
    a.i(f"v_add_u32 {vXoff[1]}, {8*XROW-1024}, v7"); a.i(f"v_add_u32 {vXoff[2]}, {16*XROW-2048}, {vXoff[0]}"); a.i(f"v_add_u32 {vXoff[3]}, {16*XROW-2048}, {vXoff[1]}")
    a.i(f"s_lshl_b32 {sXoff}, {sROT}, 7")
    a.i(f"s_lshr_b32 {sB}, s3, 2")
    a.i(f"s_mov_b32 s10, {X_BYTES}"); a.i("s_mov_b32 s11, 0x00020000")
    a.i(f"s_cmp_eq_u32 {sB}, 0")
    a.wait(lg=0)
    a.stamp('p_karg')
    a.i("s_cselect_b32 s8, s36, s42");  a.i("s_cselect_b32 s9, s37, s43")

def code_prefetch(a):
    a.i("s_getpc_b64 s[4:5]")
    a.label("L_pc")
    a.i("v_lshlrev_b32 v2, 7, v0")
    a.raw("    v_min_u32 v2, (L_end-L_pc), v2")
    a.i("global_load_dword v255, v2, s[4:5]", tag='pf')

def prologue2(a, opts):
    a.i("s_load_dwordx8 s[44:51], s[0:1], 32")
    a.i("s_load_dwordx2 s[52:53], s[0:1], 64")
    if not opts.get('pf_first',1): code_prefetch(a)
    a.i("s_lshr_b32 s4, s2, 3")
    a.i(f"s_and_b32 {sG}, s4, 7")
    a.i("s_lshr_b32 s5, s4, 3"); a.i("s_lshl_b32 s5, s5, 1")
    a.i(f"s_add_u32 {sOFF}, s5, {sG}"); a.i(f"s_and_b32 {sOFF}, {sOFF}, 7")
    a.i(f"s_mov_b32 {sIDX}, {sOFF}")
    a.i(f"s_mov_b32 {sCI}, {sROT}")
    a.i(f"s_mul_i32 {sWoff}, {sCI}, {64*WROW}")
    w_offsets(a)
    a.wait(lg=0)
    a.i(f"s_cmp_eq_u32 {sB}, 0")
    a.i("s_cselect_b32 s12, s38, s44"); a.i("s_cselect_b32 s13, s39, s45")
    a.i(f"s_mov_b32 s14, {W_BYTES}"); a.i("s_mov_b32 s15, 0x00020000")
    a.i("s_cselect_b32 s16, s40, s46"); a.i("s_cselect_b32 s17, s41, s47")

vTA='v[240:241]'
def touch_setup(a, opts):
    L=vLane
    a.i("s_lshr_b32 s4, s2, 3")
    a.i(f"v_cmp_le_u32 vcc, 18, {L}")
    a.i(f"v_mov_b32 v2, {XROW+18*128}")
    a.i(f"v_lshlrev_b32 v3, 7, {L}")
    a.i(f"v_mov_b32 v2, {WROW-18*128}")
    a.i(f"v_cndmask_b32 v2, 0, v2, vcc")
    a.i(f"v_add_u32 v3, v3, v2")
    a.i(f"s_mul_i32 s5, s4, {2*WROW}"); a.i(f"s_add_u32 s5, s5, {9*128}")
    a.i(f"v_add_u32 v3, s5, v3")
    a.i("s_and_b32 s5, s2, 3"); a.i("s_lshl_b32 s5, s5, 9"); a.i("s_lshl_b32 s6, s4, 4"); a.i("s_add_u32 s5, s5, s6")
    a.i(f"v_subrev_u32 v4, 36, {L}"); a.i(f"v_and_b32 v4, 15, v4"); a.i(f"v_add_u32 v4, s5, v4"); a.i(f"v_mul_u32_u24 v4, {XROW}, v4")
    a.i(f"v_cmp_le_u32 vcc, 36, {L}")
    a.i(f"v_mov_b32 v5, s12"); a.i("v_mov_b32 v6, s8"); a.i("v_mov_b32 v7, s13"); a.i("v_mov_b32 v8, s9")
    a.i(f"v_cndmask_b32 v3, v3, v4, vcc")
    a.i(f"v_cndmask_b32 v5, v5, v6, vcc")
    a.i(f"v_cndmask_b32 v7, v7, v8, vcc")
    a.i(f"v_mov_b32 v9, {64*WROW}"); a.i("v_mov_b32 v6, 128")
    a.i(f"v_cndmask_b32 v242, v9, v6, vcc")
    a.i(f"s_add_u32 s5, {sWV}, 1")
    a.i(f"v_mul_lo_u32 v9, v242, s5")
    a.i(f"v_add_u32 v3, v3, v9")
    a.i(f"v_add_co_u32 v240, vcc, v5, v3"); a.i("s_nop 1"); a.i(f"v_addc_co_u32 v241, vcc, 0, v7, vcc")
    a.i(f"v_lshlrev_b32 v242, 2, v242")
def touch_ins(second):
    L=[]
    if second:
        L+= ["v_add_co_u32 v240, vcc, v240, v242", "s_nop 1", "v_addc_co_u32 v241, vcc, 0, v241, vcc"]
    L+= ["s_mov_b64 exec, 0x000fffffffffffff" if False else "s_mov_b64 exec, s[6:7]", (f"global_load_dword v255, {vTA}, off",'touch'), "s_mov_b64 exec, -1"]
    return L
def touch_q(a):
    L=vLane
    a.i("s_lshr_b32 s4, s2, 3")
    a.i(f"v_mul_u32_u24 v2, 7282, {L}"); a.i("v_lshrrev_b32 v2, 16, v2")
    a.i(f"v_mul_u32_u24 v3, 9, v2"); a.i(f"v_sub_u32 v3, {L}, v3")
    a.i(f"v_min_u32 v2, 5, v2")
    a.i(f"s_min_u32 s5, {sWV}, 2"); a.i("s_mul_i32 s5, s5, 6"); a.i("s_mul_i32 s6, s4, 18"); a.i("s_add_u32 s5, s5, s6")
    a.i(f"v_add_u32 v2, s5, v2"); a.i(f"v_mul_u32_u24 v2, {WROW}, v2"); a.i(f"v_lshl_add_u32 v2, v3, 7, v2")
    a.i(f"buffer_load_dword v255, v2, {sW}, 0 offen", 'touch')
def touch_wo(a):
    L=vLane
    a.i(f"s_lshr_b32 {sT0}, s2, 3")
    a.i(f"s_min_u32 {sT1}, {sWV}, 2"); a.i(f"s_mul_i32 {sT1}, {sT1}, 54"); a.i(f"s_mul_i32 {sT0}, {sT0}, 162"); a.i(f"s_add_u32 {sT1}, {sT1}, {sT0}")
    a.i(f"v_min_u32 {vT}, 53, {L}"); a.i(f"v_add_u32 {vT}, {sT1}, {vT}"); a.i(f"v_lshlrev_b32 {vT}, 7, {vT}")
    a.i(f"buffer_load_dword v255, {vT}, {sWO}, 0 offen", 'touch')

ORDER_MODE=['own']
GOPT={}
def next_chunk_ins(step=None):
    if ORDER_MODE[0]=='pair':
        tail=[f"s_mul_i32 {sWoff}, {sCI}, {64*WROW}", f"s_lshl_b32 {sXoff}, {sCI}, 7"]
        if step==1: return [f"s_mov_b32 {sCI}, {sPAIR}"]+tail
        return [f"s_add_u32 {sCI}, {sB2}, {sIDX}", f"s_sub_u32 {sT3}, {sCI}, 9", f"s_cmp_ge_u32 {sCI}, 9", f"s_cselect_b32 {sCI}, {sT3}, {sCI}",
                f"s_add_u32 {sIDX}, {sIDX}, 1", f"s_cmp_eq_u32 {sIDX}, 7", f"s_cselect_b32 {sIDX}, 0, {sIDX}"]+tail
    if ORDER_MODE[0]=='own':
        return [f"s_add_u32 {sCI}, {sROT}, {sIDX}", f"s_add_u32 {sCI}, {sCI}, 1", f"s_sub_u32 {sT3}, {sCI}, 9", f"s_cmp_ge_u32 {sCI}, 9",
                f"s_cselect_b32 {sCI}, {sT3}, {sCI}", f"s_add_u32 {sIDX}, {sIDX}, 1", f"s_and_b32 {sIDX}, {sIDX}, 7",
                f"s_mul_i32 {sWoff}, {sCI}, {64*WROW}", f"s_lshl_b32 {sXoff}, {sCI}, 7"]
    return [f"s_add_u32 {sCI}, {sCI}, 1", f"s_cmp_eq_u32 {sCI}, 9", f"s_cselect_b32 {sCI}, 0, {sCI}",
            f"s_mul_i32 {sWoff}, {sCI}, {64*WROW}", f"s_lshl_b32 {sXoff}, {sCI}, 7"]

def dma_chunk_groups(slot, n):
    base=slot*SLOT; tag=f'ch{n}'; Gs=[]
    for i in range(4):
        pre=[f"s_lshl_b32 {sM0}, {sWV}, 12", f"s_add_u32 m0, {sM0}, {base+XOFF}", "s_nop 0"] if i==0 else []
        Gs.append(pre+[(f"buffer_load_dwordx4 {vXoff[i]}, {sX}, {sXoff} offen offset:{1024*i} lds", tag)])
    for j in range(4):
        pre=[f"s_mul_i32 {sM0}, {sWV}, 5120", f"s_add_u32 m0, {sM0}, {base}", "s_nop 0"] if j==0 else []
        Gs.append(pre+[(f"buffer_load_dwordx4 {vWoff[j]}, {sW}, {sWoff} offen offset:{1024*j} lds", tag)])
    Gs.append([f"s_add_u32 m0, {sM0}, {base+4096}", "s_nop 0", (f"buffer_load_dwordx4 {vWoff[4]}, {sW}, {sWoff} offen lds", tag)]+next_chunk_ins(n+1))
    return Gs

def dma_wq_groups(n):
    reg = SLOT*(1+n//3) + (n%3)*QCH
    Gs=[]
    for e in range(3):
        pre=[f"s_mul_i32 {sM0}, {sWV}, 3072", f"s_add_u32 m0, {sM0}, {reg}", "s_nop 0"] if e==0 else []
        post=next_chunk_ins(n+1) if e==2 else []
        Gs.append(pre+[(f"buffer_load_dwordx4 {vQoff[e]}, {sW}, {sWoff} offen offset:{1024*e} lds", f'wq{n}')]+post)
    return Gs

def setupA(a, opts):
    L=vLane
    a.c("---- setup A")
    a.i(f"v_bfe_u32 v4, {L}, 2, 2"); a.i(f"v_lshrrev_b32 v5, 5, {L}")
    a.i(f"v_lshl_add_u32 v4, v5, 3, v4")
    a.i(f"v_bfe_u32 v6, {L}, 4, 1"); a.i(f"v_and_b32 v7, 3, {L}")
    a.i(f"v_mul_u32_u24 v8, {WPITCH}, v4")
    a.i(f"v_lshlrev_b32 v9, 5, v6"); a.i(f"v_lshl_add_u32 v9, v7, 3, v9")
    a.i(f"v_add_u32 {vWr[0]}, v8, v9"); a.i(f"v_add_u32 {vWr[1]}, {2*SLOT}, {vWr[0]}")
    a.i(f"v_mul_u32_u24 v2, {QPITCH}, v4")
    a.i(f"v_add3_u32 {vQr}, v2, v9, 0"); a.i(f"v_add_u32 {vQr}, {SLOT}, {vQr}")
    a.i(f"v_lshrrev_b32 v3, 1, v7"); a.i(f"v_cmp_eq_u32 vcc, v3, v6"); a.i(f"v_and_b32 v3, 1, v7"); a.i(f"v_lshlrev_b32 v3, 3, v3")
    a.i(f"v_add_u32 v3, 128, v3"); a.i(f"v_add_u32 {vQr2}, 32, v3"); a.i(f"v_cndmask_b32 v3, {vQr2}, v3, vcc")
    a.i(f"v_add3_u32 {vQr2}, v2, v3, 0"); a.i(f"v_add_u32 {vQr2}, {SLOT}, {vQr2}")
    a.i(f"v_lshl_add_u32 v9, v6, 2, v7")
    a.i(f"v_lshlrev_b32 v2, 3, v9"); a.i(f"v_add_u32 v2, 128, v2"); a.i(f"v_add_u32 v3, 128, v2")
    a.i(f"v_cmp_lt_u32 vcc, 1, v9"); a.i("s_nop 1")
    a.i(f"v_cndmask_b32 v2, v2, v3, vcc")
    a.i(f"v_add_u32 {vMx[0]}, v8, v2"); a.i(f"v_add_u32 {vMx[1]}, {2*SLOT}, {vMx[0]}")
    a.i(f"v_and_b32 v2, 31, {L}"); a.i(f"v_bfe_u32 v3, {L}, 1, 3"); a.i(f"v_xor_b32 v3, v3, v5")
    a.i(f"v_lshlrev_b32 v3, 4, v3"); a.i(f"v_lshl_add_u32 v3, v2, 7, v3")
    a.i(f"s_lshl_b32 s6, {sWV}, 12"); a.i(f"s_add_u32 s6, s6, {XOFF}")
    a.i(f"v_add_u32 v3, s6, v3")
    for t in range(4):
        a.i(f"v_xor_b32 {vXr[0][t]}, {32*t}, v3"); a.i(f"v_add_u32 {vXr[1][t]}, {2*SLOT}, {vXr[0][t]}")

PADN=[0]
def pagepad(a, opts, where):
    if where in str(opts.get('pads','')).split('+'):
        PADN[0]+=1
        a.i(f"s_branch L_pad{PADN[0]}")
        a.raw(".fill 1024, 4, 0xbf800000")
        a.label(f"L_pad{PADN[0]}")

class Rec:
    def __init__(self): self.l=[]
    def i(self, t, tag=None, cond=False): self.l.append((t,tag,cond) if tag or cond else t)
    def c(self, s): pass

def setupB0(a, opts):
    a.i("s_mov_b32 s20, s48"); a.i("s_mov_b32 s21, s49"); a.i(f"s_mov_b32 s22, {OUT_BYTES}"); a.i("s_mov_b32 s23, 0x00020000")
    a.i("s_mov_b32 s24, s52"); a.i("s_mov_b32 s25, s53"); a.i(f"s_mov_b32 s26, {WS_BYTES}"); a.i("s_mov_b32 s27, 0x00020000")
    a.i("s_mov_b32 s28, s50"); a.i("s_mov_b32 s29, s51"); a.i("s_mov_b32 s30, 256"); a.i("s_mov_b32 s31, 0x00020000")
    a.i(f"s_mov_b32 s18, {WO_BYTES}"); a.i("s_mov_b32 s19, 0x00020000")
    a.i(f"s_or_b32 s3, s2, {sWV}"); a.i("s_cmp_lg_u32 s3, 0"); a.i("s_cbranch_scc1 L_nononce")
    a.i("s_memrealtime s[4:5]"); a.i("s_waitcnt lgkmcnt(0)"); a.i("s_or_b32 s4, s4, 1")
    a.i("v_mov_b32 v2, s4"); a.i("v_mov_b32 v3, s5"); a.i("v_mov_b32 v4, 0")
    a.i("s_mov_b64 exec, 1")
    a.i(f"buffer_store_dwordx2 v[2:3], v4, {sDBG}, 0 offen sc1", cond=True)
    a.i("s_mov_b64 exec, -1")
    a.label("L_nononce"); a.lg_clear()

def setupB(a, opts):
    L=vLane
    a.c("---- setup B")
    a.i("s_mov_b32 s54, 0x3ffff"); a.i("s_mov_b32 s55, 0x3ffff"); a.i("s_not_b64 s[52:53], s[54:55]"); a.i("s_mov_b32 s56, -1"); a.i("s_mov_b32 s57, 0")
    a.i(f"s_mov_b32 {sSC}, {f2u(CSCALE):#x}")
    a.i(f"s_getreg_b32 {sXCC}, hwreg(HW_REG_XCC_ID, 0, 4)")
    a.i(f"s_mul_i32 s6, {sWV}, {16*WROW}"); a.i(f"s_mul_i32 s7, {sG}, 144"); a.i("s_add_u32 s6, s6, s7")
    a.i(f"s_movk_i32 s7, {WROW}"); a.i("v_mov_b32 v9, 0x40000000")
    for e in range(3):
        a.i(f"v_add_u32 v4, {64*e}, {L}")
        a.i(f"v_mul_u32_u24 v5, 21846, v4"); a.i(f"v_lshrrev_b32 v5, 18, v5")
        a.i(f"v_mul_u32_u24 v6, 12, v5"); a.i(f"v_sub_u32 v6, v4, v6")
        a.i(f"v_cmp_lt_u32 vcc, 8, v6")
        a.i(f"v_mul_lo_u32 v5, v5, s7"); a.i(f"v_lshl_add_u32 v5, v6, 4, v5")
        a.i(f"v_add_u32 v5, s6, v5"); a.i(f"v_subrev_u32 v5, {1024*e}, v5")
        a.i(f"v_cndmask_b32 {vQoff[e]}, v5, v9, vcc")
    a.i(f"v_and_b32 v2, 31, {L}"); a.i(f"v_lshrrev_b32 v5, 5, {L}")
    a.i(f"s_mul_i32 s6, {sWV}, {KBLK}"); a.i(f"s_add_u32 s7, s6, {KB0}"); a.i(f"s_cmp_eq_u32 {sWV}, 3"); a.i(f"s_cselect_b32 s7, {KB3}, s7")
    a.i(f"v_mul_u32_u24 v3, {KP}, v2"); a.i(f"v_lshl_add_u32 v3, v5, 3, v3")
    a.i(f"v_add_u32 {vKw}, s7, v3"); a.i(f"s_add_u32 s6, s6, {QBASE}"); a.i(f"v_add_u32 {vQw}, s6, v3")
    a.i(f"s_mul_i32 s6, {sWV}, {VB}"); a.i(f"s_add_u32 s6, s6, {VBASE}")
    a.i(f"v_mul_u32_u24 v3, {VR}, v5"); a.i(f"v_lshl_add_u32 v3, v2, 4, v3"); a.i(f"v_add_u32 {vVw}, s6, v3")
    a.i(f"v_bfe_u32 v3, {L}, 2, 1"); a.i(f"v_mul_u32_u24 v3, {VJ}, v3"); a.i(f"v_bfe_u32 v4, {L}, 1, 1"); a.i(f"v_mul_u32_u24 v4, {VR}, v4")
    a.i(f"v_add_u32 v3, v3, v4"); a.i(f"v_and_b32 v4, 1, {L}"); a.i(f"v_lshl_add_u32 v3, v4, 4, v3"); a.i(f"v_add_u32 v3, {72*16}, v3")
    a.i(f"v_add_u32 {vCw}, s6, v3")
    a.i(f"v_lshrrev_b32 v3, 4, v2"); a.i(f"v_mul_u32_u24 v3, {VJ}, v3"); a.i(f"v_bfe_u32 v4, v2, 2, 1")
    a.i(f"v_mul_u32_u24 v4, {VR}, v4"); a.i(f"v_add_u32 v3, v3, v4"); a.i(f"v_and_b32 v4, 3, v2")
    a.i(f"v_bfe_u32 v6, v2, 3, 1"); a.i(f"v_lshl_add_u32 v4, v6, 2, v4"); a.i(f"v_lshl_add_u32 v3, v4, 1, v3")
    a.i(f"v_lshl_add_u32 v3, v5, 6, v3"); a.i(f"v_add_u32 v3, {64*16}, v3"); a.i(f"v_add_u32 {vVt}, s6, v3")
    a.i(f"s_mul_i32 s6, {sWV}, 36"); a.i(f"v_mul_u32_u24 v3, {KP}, v2"); a.i(f"v_add_u32 v3, s6, v3")
    a.i(f"v_lshl_add_u32 {vKr}, v5, 4, v3")
    a.i(f"v_add_u32 {vKl}, 32, v3")
    a.i(f"s_mul_i32 s6, {sWV}, 18"); a.i(f"v_add_u32 v3, s6, v2"); a.i(f"v_and_b32 v4, 27, v2")
    a.i(f"v_cmp_eq_u32 vcc, 18, v4"); a.i(f"v_mov_b32 v4, 73"); a.i(f"v_mov_b32 v6, 72"); a.i(f"v_cndmask_b32 v4, v4, v6, vcc")
    a.i(f"v_cmp_gt_u32 vcc, 18, v2"); a.i("s_nop 1"); a.i(f"v_cndmask_b32 v3, v4, v3, vcc")
    a.i(f"v_lshlrev_b32 v3, 4, v3"); a.i(f"v_mul_u32_u24 v4, {VR}, v5"); a.i(f"v_add_u32 {vVr}, v3, v4")
    a.i(f"v_lshlrev_b32 {vPk}, 4, {L}"); a.i(f"v_lshlrev_b32 {vPl}, 2, v2"); a.i(f"v_add_u32 {vPl}, 1024, {vPl}")
    a.i(f"v_mul_u32_u24 v3, 288, v5"); a.i(f"v_lshl_add_u32 v3, v2, 4, v3"); a.i(f"v_add_u32 {vPv}, 1152, v3")
    a.i(f"s_lshl_b32 s6, {sWV}, 2"); a.i(f"v_lshrrev_b32 v3, 3, v2"); a.i(f"v_mul_u32_u24 v3, {OUTROW}, v3")
    a.i(f"v_and_b32 v4, 7, v2"); a.i(f"v_lshl_add_u32 v3, v4, 4, v3"); a.i(f"v_add_u32 {vOl}, s6, v3")
    a.i(f"v_and_b32 v3, 27, v2"); a.i(f"v_cmp_eq_u32 vcc, 18, v3"); a.i(f"v_mov_b32 v4, 0x3f803f80"); a.i("s_nop 0")
    a.i(f"v_cndmask_b32 {vVC}, 0, v4, vcc")
    a.i(f"s_lshl_b32 s6, {sB}, 3"); a.i(f"s_add_u32 s6, s6, {sG}"); a.i(f"s_lshl_b32 s6, s6, 4"); a.i(f"s_add_u32 s6, s6, {sC}")
    a.i(f"s_mul_i32 {sKVme}, s6, {SLOT}"); a.i(f"s_mul_i32 s7, {sWV}, 2304"); a.i(f"s_add_u32 {sKVme}, {sKVme}, s7")
    a.i(f"s_sub_u32 {sKV1}, {sKVme}, {SLOT}"); a.i(f"s_sub_u32 {sKV2}, {sKVme}, {2*SLOT}")
    a.i(f"s_cmp_ge_u32 {sC}, 1"); a.i(f"s_cselect_b32 {sKV1}, {sKV1}, 0x70000000")
    a.i(f"s_cmp_ge_u32 {sC}, 2"); a.i(f"s_cselect_b32 {sKV2}, {sKV2}, 0x70000000")
    a.i(f"s_lshl_b32 s6, s6, 2"); a.i(f"s_add_u32 s6, s6, {sWV}"); a.i(f"s_lshl_b32 s6, s6, 7")
    a.i(f"s_add_u32 {sFKV}, s6, {WS_FKV}")
    a.i(f"s_cmp_ge_u32 {sC}, 1"); a.i(f"s_cselect_b32 s6, -1, 0"); a.i(f"s_cmp_ge_u32 {sC}, 2"); a.i(f"s_cselect_b32 s7, -1, 0")
    a.i(f"v_and_b32 v2, s6, {vVC}"); a.i(f"v_and_b32 v3, s7, {vVC}"); a.i(f"v_mov_b32 v4, 0x3f803f80")
    a.i(f"v_and_b32 v6, s7, v4"); a.i(f"v_and_b32 v4, s6, v4")
    for hb in range(8):
        base=HALO+14*hb
        a.i(f"v_accvgpr_write_b32 a{base+5}, {'v6' if hb<4 else 'v4'}")
        for r in range(8): a.i(f"v_accvgpr_write_b32 a{base+6+r}, {'v3' if hb<4 else 'v2'}")
    a.i(f"v_and_b32 v2, 31, {L}"); a.i(f"v_lshlrev_b32 v3, 2, v5"); a.i(f"v_sub_u32 v2, v2, v3")
    a.i(f"v_mov_b32 v6, 0xffff"); a.i(f"v_mov_b32 v7, 0xffff0000")
    for u in range(8):
        r0=2*u; k0=(r0&3)+8*(r0>>2)
        a.i(f"v_cmp_le_i32 vcc, {k0}, v2"); a.i(f"v_cmp_le_i32 s[4:5], {k0+1}, v2"); a.i("s_nop 0")
        a.i(f"v_cndmask_b32 v3, 0, v6, vcc"); a.i(f"v_cndmask_b32 v4, 0, v7, s[4:5]")
        a.i(f"v_or_b32 v{MASKD+u}, v3, v4"); a.i(f"v_not_b32 v{MASKF+u}, v{MASKD+u}")
    a.i(f"s_lshl_b32 s6, {sC}, 7"); a.i(f"s_lshl_b32 s7, {sG}, 2"); a.i("s_add_u32 s6, s6, s7")
    a.i(f"s_mul_i32 s6, s6, {OUTROW}"); a.i(f"s_mul_i32 s7, {sB}, 1152"); a.i("s_add_u32 s6, s6, s7")
    a.i(f"s_add_u32 {sOL}, s6, 1024"); a.i(f"s_mul_i32 s7, {sWV}, {OUTROW}"); a.i(f"s_add_u32 {sOM}, s6, s7")
    a.i(f"s_lshr_b32 {sRH}, {sG}, 2"); a.i(f"s_and_b32 {sNQ}, {sG}, 3")
    a.i(f"s_lshl_b32 s7, {sRH}, 1"); a.i(f"s_lshr_b32 s3, {sWV}, 1"); a.i("s_add_u32 s3, s3, s7"); a.i("s_lshl_b32 s3, s3, 5")
    a.i(f"s_lshl_b32 s7, {sC}, 7"); a.i("s_add_u32 s3, s3, s7"); a.i(f"s_mul_i32 {sPOM}, s3, {OUTROW}")
    a.i(f"s_mul_i32 s7, {sB}, 1152"); a.i(f"s_add_u32 {sPOM}, {sPOM}, s7"); a.i(f"s_add_u32 {sPOL}, {sPOM}, 1024")
    a.i(f"s_lshl_b32 s6, {sC}, 7"); a.i(f"s_lshl_b32 s7, {sRH}, 6"); a.i("s_add_u32 s6, s6, s7")
    a.i(f"s_lshl_b32 s7, {sWV}, 4"); a.i("s_add_u32 s6, s6, s7"); a.i(f"s_mul_i32 {sOUTB}, s6, {OUTROW}")
    a.i(f"s_mul_i32 s7, {sB}, 1152"); a.i(f"s_add_u32 {sOUTB}, {sOUTB}, s7")
    a.i(f"s_mul_i32 s7, {sNQ}, 288"); a.i(f"s_add_u32 {sOUTB}, {sOUTB}, s7")
    a.i(f"s_lshl_b32 s6, {sB}, 4"); a.i(f"s_add_u32 s6, s6, {sC}"); a.i(f"s_lshl_b32 {sFO}, s6, 12")
    a.i(f"s_add_u32 {sFO}, {sFO}, {WS_FO}")
    a.i(f"v_mov_b32 v252, {f2u(2.0**-40):#x}"); a.i(f"v_mov_b32 v253, {f2u(2.0**40):#x}")
    a.i(f"s_mov_b64 {sBAD}, 0")

def wq_reads(tau):
    n,t=divmod(tau,4); b=tau%2
    off=(n%3)*QCH+16*QPITCH*t
    R=[[(f"ds_read_b64_tr_b16 {QFh(b,f,h)}, {vQr} offset:{off+4*QPITCH*h+64*f}", f'q{tau}_{f}') for h in range(2)] for f in range(2)]
    R.append([(f"ds_read_b64_tr_b16 {QFh(b,2,h)}, {vQr2} offset:{off+4*QPITCH*h}", f'q{tau}_2') for h in range(2)])
    return R

def drain_side(a, side, n):
    k=0; last=''
    while side and (k<n or last.startswith('s_cmp') or (side[0] if isinstance(side[0],str) else side[0][0]).startswith('s_cselect')):
        x=side.pop(0)
        if isinstance(x,tuple): a.i(*x); last=x[0]
        else: a.i(x); last=x
        k+=1

def phase1a(a, opts, pend):
    a.c("---- phase 1a")
    def reads(tau):
        n,t=divmod(tau,4); slot=n%4; hi=slot>=2; base=(slot%2)*SLOT; b=tau%2
        R=[[(f"ds_read_b128 {XF(tau)}, {vXr[hi][t]} offset:{base}", f'x{tau}')] +
           [(f"ds_read_b64_tr_b16 {WFh(b,0,h)}, {vWr[hi]} offset:{base+5120*t+1280*h}", f'w{tau}_0') for h in range(2)]]
        for f,co in ((1,64),(2,144),(3,208)):
            R.append([(f"ds_read_b64_tr_b16 {WFh(b,f,h)}, {vWr[hi]} offset:{base+5120*t+1280*h+co}", f'w{tau}_{f}') for h in range(2)])
        R.append([(f"ds_read_b64_tr_b16 {WFh(b,4,h)}, {vMx[hi]} offset:{base+5120*t+1280*h}", f'w{tau}_4') for h in range(2)])
        return R
    a.stamp('setup_done')
    a.wait(vm='ch0')
    if opts.get('ch0v',0):
        a.i(f"v_lshlrev_b32 v2, 4, {vLane}")
        a.i(f"s_lshl_b32 {sT0}, {sWV}, 12"); a.i(f"s_add_u32 {sT0}, {sT0}, {XOFF}"); a.i(f"v_add_u32 v3, {sT0}, v2")
        a.i(f"s_mul_i32 {sT0}, {sWV}, 5120"); a.i(f"v_add_u32 v2, {sT0}, v2")
        for i in range(4): a.i(f"ds_write_b128 v3, v[{52+4*i}:{55+4*i}] offset:{1024*i}", 'c0w')
        for j in range(5): a.i(f"ds_write_b128 v2, v[{68+4*j}:{71+4*j}] offset:{1024*j}", 'c0w')
        a.wait(lg=0)
    a.i("s_barrier")
    a.stamp('ch0_landed')
    if opts.get('idle_1a'): a.i(f"s_sleep {opts['idle_1a']}")
    for grp in reads(0): a.emit(grp)
    names=['K0','K1','V0','V1','MX']
    side=opts.get('_side',[])
    every=opts.get('dma_every',2)
    slotcnt=0
    for tau in range(36):
        n,t=divmod(tau,4); b=tau%2
        if t==0: a.stamp(f'c{n}')
        if t==0: pagepad(a,opts,f'c{n}')
        if t==3:
            a.wait(vm=f'ch{n+1}' if n<8 else 'wq0')
            a.i("s_barrier")
            if n<=5:
                pend += dma_chunk_groups((n+3)%4, n+3)
                if (n==5 and opts.get('wotouch',3)==1) or (n==0 and opts.get('wotouch',3)==3) or (n==2 and opts.get('wotouch',3)==4):
                    rec=Rec(); touch_wo(rec); pend.append(rec.l)
            elif n==6:
                pend.append([f"s_mov_b32 {sCI}, {sROT}", f"s_mul_i32 {sWoff}, {sCI}, {64*WROW}", f"s_mov_b32 {sIDX}, {sOFF}"])
                for q in range(3): pend += dma_wq_groups(q)
            elif n==7:
                for q in range(3,6): pend += dma_wq_groups(q)
            elif n==8:
                for q in range(6,9): pend += dma_wq_groups(q)
        R = reads(tau+1) if tau<35 else wq_reads(0)
        for m,nm in enumerate(names):
            a.wait(lg=[f'w{tau}_{m}']+([f'x{tau}'] if m==0 else []))
            acc=rng('v',ACC[nm],16); c='0' if tau==0 else acc
            if nm in ('V0','V1'): a.i(f"v_mfma_f32_32x32x16_bf16 {acc}, {XF(tau)}, {WF(b,m)}, {c}")
            else: a.i(f"v_mfma_f32_32x32x16_bf16 {acc}, {WF(b,m)}, {XF(tau)}, {c}")
            if m<len(R): a.emit(R[m])
            slotcnt+=1
            if pend and (slotcnt%every==0 or len(pend)>9): a.emit(pend.pop(0))
            elif side: drain_side(a, side, opts.get('side_n',5))
        if tau==30:
            a.i(f"v_mov_b32 {vT}, 0")
            a.i(f"buffer_load_dwordx2 {vNON}, {vT}, {sDBG}, 0 offen sc1", tag='nonce')
    assert not side, len(side)
    return pend

def epi1a_list():
    A=[]; T=76
    for ti,nm in enumerate(('K0','K1')):
        base=ACC[nm]
        for i in range(4):
            t0=T+2*(i%2)
            A+= [f"v_cvt_pk_bf16_f32 v{t0}, v{base+4*i}, v{base+4*i+1}", f"v_cvt_pk_bf16_f32 v{t0+1}, v{base+4*i+2}, v{base+4*i+3}",
                 (f"ds_write2_b32 {vKw}, v{t0}, v{t0+1} offset0:{16*ti+4*i} offset1:{16*ti+4*i+1}",'e1w')]
    for ti,nm in enumerate(('V0','V1')):
        base=ACC[nm]
        for j in range(2):
            t0=T+4+4*j
            for u in range(4): A.append(f"v_cvt_pk_bf16_f32 v{t0+u}, v{base+8*j+2*u}, v{base+8*j+2*u+1}")
            A.append((f"ds_write_b128 {vVw}, v[{t0}:{t0+3}] offset:{VJ*j+512*ti}",'e1w'))
    base=ACC['MX']; t0=T+12
    A+= [f"v_cvt_pk_bf16_f32 v{t0}, v{base}, v{base+1}", f"v_cvt_pk_bf16_f32 v{t0+1}, v{base+2}, v{base+3}",
         (f"ds_write2_b32 {vKw}, v{t0}, v{t0+1} offset0:32 offset1:33",'e1w'),
         f"v_cvt_pk_bf16_f32 v{t0+2}, v{base+4}, v{base+5}", f"v_cvt_pk_bf16_f32 v{t0+3}, v{base+6}, v{base+7}",
         (f"ds_write_b16 {vVt}, v{t0+2}",'e1w'), (f"ds_write_b16_d16_hi {vVt}, v{t0+2} offset:16",'e1w'),
         (f"ds_write_b16 {vVt}, v{t0+3} offset:32",'e1w'), (f"ds_write_b16_d16_hi {vVt}, v{t0+3} offset:48",'e1w')]
    A+= [f"v_and_b32 v{t0}, 1, {vLane}", f"v_cmp_eq_u32 vcc, 0, v{t0}", f"v_mov_b32 v{t0+1}, 0x3f803f80", "s_nop 0",
         f"v_cndmask_b32 v{t0}, 0, v{t0+1}, vcc", f"v_mov_b32 v{t0+1}, v{t0}", f"v_mov_b32 v{t0+2}, v{t0}", f"v_mov_b32 v{t0+3}, v{t0}",
         "s_mov_b64 exec, 0xff", (f"ds_write_b128 {vCw}, v[{t0}:{t0+3}]",'e1w'), "s_mov_b64 exec, -1"]
    return A

def own_presets():
    L=[f"v_mov_b32 v91, 0x3f803f80"]
    for bt in range(4): L.append(f"v_mov_b32 v{OWN+14*bt+5}, v91")
    return L
def own_reads():
    L=[]
    for bt in range(4):
        base=OWN+14*bt
        kb = KB0+KBLK*bt if bt<3 else KB3
        L.append(f"v_add_u32 v88, {kb}, {vKr}"); L.append(f"v_add_u32 v89, {kb}, {vKl}")
        L.append((f"ds_read2_b32 v[{base}:{base+1}], v88 offset0:0 offset1:1",'own'))
        L.append((f"ds_read2_b32 v[{base+2}:{base+3}], v88 offset0:2 offset1:3",'own'))
        L.append((f"ds_read_b32 v{base+4}, v89",'own'))
    for bt in range(4):
        base=OWN+14*bt
        for j in range(2): L.append((f"ds_read_b128 v[{base+6+4*j}:{base+9+4*j}], {vVr} offset:{VB*bt+VJ*j}",'own'))
    return L
def own_store_groups(mod='sc1'):
    Gs=[]
    for bt in range(4):
        base=OWN+14*bt; tag='pubA' if bt<2 else 'pubB'
        Gs.append([f"s_add_u32 {sT0}, {sKVme}, {9216*bt}", (f"buffer_store_dwordx4 v[{base}:{base+3}], {vPk}, {sWS}, {sT0} offen {mod}",tag)])
        Gs.append([f"s_add_u32 {sT0}, {sKVme}, {9216*bt}", f"s_mov_b64 exec, {sLO}", (f"buffer_store_dword v{base+4}, {vPl}, {sWS}, {sT0} offen {mod}",tag), "s_mov_b64 exec, -1"])
        for j in range(2):
            Gs.append([f"s_add_u32 {sT0}, {sKVme}, {9216*bt}", f"s_mov_b64 exec, {sVM}", (f"buffer_store_dwordx4 v[{base+6+4*j}:{base+9+4*j}], {vPv}, {sWS}, {sT0} offen offset:{576*j} {mod}",tag), "s_mov_b64 exec, -1"])
    return Gs

def flag_store_ins(cnt):
    return [f"s_add_u32 {sT1}, {sNONh}, {cnt}", f"v_mov_b32 v2, {sNONl}", f"v_mov_b32 v3, {sT1}", f"v_mov_b32 v4, 0",
            "s_mov_b64 exec, 1", (f"buffer_store_dwordx2 v[2:3], v4, {sWS}, {sFKV} offen sc1", f'kvflag{cnt}'), "s_mov_b64 exec, -1"]

def xt_base():
    return [f"s_lshl_b32 {sT0}, {sB}, 4", f"s_add_u32 {sT0}, {sT0}, {sC}", f"s_lshl_b32 {sT0}, {sT0}, 10", f"s_add_u32 {sT0}, {sT0}, {WS_XT}"]
def xt_store():
    return xt_base()+[f"s_add_u32 {sLFH}, {sXCC}, 1", f"s_lshl_b32 {sLFH}, {sLFH}, 8", f"s_add_u32 {sLFH}, {sLFH}, {sNONh}",
            f"s_lshl_b32 {sT1}, {sG}, 7", f"s_add_u32 {sT0}, {sT0}, {sT1}",
            f"v_mov_b32 v2, {sNONl}", f"v_mov_b32 v3, {sLFH}", f"v_mov_b32 v4, 0",
            "s_mov_b64 exec, 1", (f"buffer_store_dwordx2 v[2:3], v4, {sWS}, {sT0} offen sc1",'xt'), "s_mov_b64 exec, -1"]
def xt_load():
    return xt_base()+[f"v_lshlrev_b32 v2, 7, {vLane}", "s_mov_b64 exec, 0xff",
            (f"buffer_load_dwordx2 v[8:9], v2, {sWS}, {sT0} offen sc1",'xtl'), "s_mov_b64 exec, -1"]
def xt_check(a):
    a.wait(vm='xtl')
    a.i("s_mov_b64 exec, 0xff")
    a.i(f"v_cmp_eq_u32 vcc, {sNONl}, v8"); a.i(f"v_cmp_eq_u32 s[4:5], {sLFH}, v9")
    a.i("s_mov_b64 exec, -1")
    a.i("s_and_b64 s[4:5], s[4:5], vcc"); a.i("s_and_b32 s4, s4, 0xff"); a.i("s_cmp_eq_u32 s4, 0xff")
    a.i(f"s_cselect_b32 {sLOC}, 1, 0")
    if GOPT.get('force_remote'): a.i(f"s_mov_b32 {sLOC}, 0")

def wo_group_for(kbase):
    setup=[f"s_add_u32 {sT1}, {sWV}, {kbase}", f"s_mul_i32 {sT2}, {sT1}, 41472", f"s_mul_i32 {sT3}, {sT1}, 9216"]
    return wo8_groups(setup)

def phase1b(a, pend, opts):
    a.c("---- phase 1b")
    if opts.get('idle_1b'): a.i(f"s_sleep {opts['idle_1b']}")
    a.stamp('1a_end')
    q=[]; stores=[]; wo=[]
    E2=opts.get('e2',4)
    FAST=opts.get('fastA',1)
    sched={}
    tt=E2+1
    for g in range(16):
        sched.setdefault(tt,[]).append(g)
        tt += 1 if ((g<7 and FAST) or opts.get('fastB',0)) else 2
    FLAGA=opts.get('flagA',24)
    woaddr=[f"v_mov_b32 {d_}, {s_}" for d_,s_ in zip(vWOm+vWOl+vWOt,vWOtmp)]+wo8_setup()
    for tau in range(36):
        n,t=divmod(tau,4); b=tau%2
        a.stamp(f'b{tau}_')
        if tau==1:
            a.i("s_barrier"); q+=epi1a_list()
        if tau==E2:
            a.drain(q,1000); a.wait(lg=0); a.i("s_barrier")
            a.emit(own_reads())
        if tau==E2+1:
            a.wait(lg='own')
            a.stamp('pub_start')
            stores=own_store_groups()
            q+=woaddr
        if tau==E2+3:
            a.i("s_barrier")
        if tau==E2+6: wo+=wo_group_for(0); q+=own_presets()
        if tau==15: wo+=wo_group_for(4)
        if tau==27: wo+=wo_group_for(8)
        if tau==FLAGA:
            a.wait(vm='pubA'); get_nonce(a); a.emit(flag_store_ins(2)); a.stamp('flagA')
            if opts.get('olocal'): a.emit(xt_store())
        if t==3 and tau<35:
            a.wait(vm=f'wq{n+1}')
            a.i("s_barrier")
            if (n+1)%3==0: a.i(f"v_add_u32 {vQr}, {SLOT}, {vQr}"); a.i(f"v_add_u32 {vQr2}, {SLOT}, {vQr2}")
        R = wq_reads(tau+1) if tau<35 else []
        if opts.get('b1burst',0) and R:
            R=[R[0]+R[1]+R[2],[],[]]
        for m,nm in enumerate(('Q0','Q1','Q2')):
            if opts.get('b1burst',0) and tau>0:
                if m==0: a.wait(lg=[f'q{tau}_2'])
            else: a.wait(lg=[f'q{tau}_{m}'])
            if nm=='Q2':
                acc=rng('v',ACC[nm],4); c='0' if tau==0 else acc
                a.i(f"v_mfma_f32_16x16x32_bf16 {acc}, {QF(b,m)}, {XF(tau)}, {c}")
            else:
                acc=rng('v',ACC[nm],16); c='0' if tau==0 else acc
                a.i(f"v_mfma_f32_32x32x16_bf16 {acc}, {QF(b,m)}, {XF(tau)}, {c}")
            if m<len(R): a.emit(R[m])
            if m==0 and tau in sched:
                for g in sched[tau]:
                    if opts.get('nopub'):
                        for x in stores[g]:
                            if isinstance(x,tuple): a.vm.append(x[1])
                    else: a.emit(stores[g])
            elif q and tau<E2: a.drain(q,opts.get('epi_rate',7))
            elif pend: a.emit(pend.pop(0))
            elif q: drain_side2(a,q,4)
            elif opts.get('nowo1b',1): pass
            elif wo and m==2: a.emit(wo.pop(0))
            elif wo and m==1 and opts.get('wo2',1): a.emit(wo.pop(0))
    assert not pend and not q, (len(pend),len(q))
    for tt_ in sorted(sched):
        if tt_>35:
            for g in sched[tt_]: a.emit(stores[g])
    opts['_wo_left']=wo
    a.stamp('1b_end')
    a.emit(kv_flag_load(0))
    a.nop(14)
    T=76
    a.i(f"v_mov_b32 v90, {sSC}"); a.i(f"v_mov_b32 v91, {sSC}")
    for ti,nm in enumerate(('Q0','Q1','Q2')):
        base=ACC[nm]; ni=4 if ti<2 else 1
        for r in range(0,4*ni,2): a.i(f"v_pk_mul_f32 v[{base+r}:{base+r+1}], v[90:91], v[{base+r}:{base+r+1}]")
    for ti,nm in enumerate(('Q0','Q1','Q2')):
        base=ACC[nm]; ni=4 if ti<2 else 1
        for i in range(ni):
            t0=T+2*((ti*4+i)%8)
            a.i(f"v_cvt_pk_bf16_f32 v{t0}, v{base+4*i}, v{base+4*i+1}"); a.i(f"v_cvt_pk_bf16_f32 v{t0+1}, v{base+4*i+2}, v{base+4*i+3}")
            if ti==2:
                a.i(f"v_and_b32 v2, 15, {vLane}"); a.i(f"v_lshrrev_b32 v3, 5, {vLane}"); a.i(f"v_lshl_add_u32 v2, v3, 4, v2")
                a.i(f"v_mul_u32_u24 v2, {KP}, v2"); a.i(f"v_bfe_u32 v3, {vLane}, 4, 1"); a.i(f"v_lshl_add_u32 v2, v3, 3, v2")
                a.i(f"s_mul_i32 {sT0}, {sWV}, {KBLK}"); a.i(f"s_add_u32 {sT0}, {sT0}, {QBASE+128}"); a.i(f"v_add_u32 v2, {sT0}, v2")
                a.i(f"ds_write2_b32 v2, v{t0}, v{t0+1} offset0:0 offset1:1",'e2w')
            else: a.i(f"ds_write2_b32 {vQw}, v{t0}, v{t0+1} offset0:{16*ti+4*i} offset1:{16*ti+4*i+1}",'e2w')
    a.i(f"v_mov_b32 {vT}, 0")
    for i in range(4):
        for r in range(4,8): a.i(f"v_accvgpr_write_b32 a{8*i+r}, {vT}")
    a.wait(lg=0); a.i("s_barrier")
    for i in range(4):
        a.i(f"v_add_u32 v88, {QBASE+KBLK*i}, {vKr}")
        a.i(f"ds_read2_b32 a[{8*i}:{8*i+1}], v88 offset0:0 offset1:1",'qf')
        a.i(f"ds_read2_b32 a[{8*i+2}:{8*i+3}], v88 offset0:2 offset1:3",'qf')
    a.i(f"s_mov_b64 exec, {sLO}")
    for i in range(4):
        a.i(f"v_add_u32 v89, {QBASE+KBLK*i}, {vKl}")
        a.i(f"ds_read_b32 a{8*i+4}, v89",'qf')
    a.i("s_mov_b64 exec, -1")
    a.wait(lg='qf')
    a.i("s_barrier")
    a.stamp('q_ready')

def drain_side2(a, q, n):
    k=0; inexec=False; last=''
    while q and (k<n or inexec or last.startswith('s_cmp') or (q[0] if isinstance(q[0],str) else q[0][0]).startswith('s_cselect')):
        x=q.pop(0)
        txt=x[0] if isinstance(x,tuple) else x
        if txt.startswith('s_mov_b64 exec'): inexec = not txt.endswith('-1')
        if isinstance(x,tuple): a.i(*x)
        else: a.i(x)
        last=txt; k+=1

vFL='v[6:7]'; vFA='v5'
def kv_flag_load(rnd):
    L=[]
    if rnd==0:
        L+= [f"s_cmp_ge_u32 {sC}, 2", f"s_cselect_b32 {sT1}, 2, 1", f"s_lshl_b32 {sT1}, {sT1}, 9",
             f"s_sub_u32 {sT0}, {sFKV}, 512", f"s_sub_u32 {sT1}, {sFKV}, {sT1}",
             f"s_cmp_eq_u32 {sC}, 0", f"s_cselect_b32 {sT0}, {sFKV}, {sT0}", f"s_cselect_b32 {sT1}, {sFKV}, {sT1}",
             f"v_mov_b32 v8, {sT0}", f"v_mov_b32 v9, {sT1}", f"v_cmp_eq_u32 vcc, 0, {vLane}", "s_nop 1",
             f"v_cndmask_b32 {vFA}, v9, v8, vcc"]
    L+= ["s_mov_b64 exec, 3", (f"buffer_load_dwordx2 {vFL}, {vFA}, {sWS}, 0 offen sc1", f'fl{rnd}'), "s_mov_b64 exec, -1"]
    return L

def kv_flag_check(a, rnd, need):
    a.wait(vm=f'fl{rnd}')
    a.i(f"s_mov_b32 {sCNT}, 200000")
    if GOPT.get('X_nochk'): a.i(f"s_branch L_ok{rnd}")
    a.label(f"L_chk{rnd}")
    a.i(f"s_cmp_eq_u32 {sC}, 0"); a.i(f"s_cbranch_scc1 L_ok{rnd}")
    a.i("s_mov_b64 exec, 3")
    a.i(f"v_subrev_u32 v8, {sNONh}, v7")
    a.i(f"v_cmp_eq_u32 vcc, {sNONl}, v6")
    a.i(f"v_cmp_le_u32 s[4:5], {need}, v8")
    a.i(f"v_cmp_ge_u32 s[6:7], 4, v8")
    a.i("s_mov_b64 exec, -1")
    a.i("s_and_b64 s[4:5], s[4:5], vcc"); a.i("s_and_b64 s[4:5], s[4:5], s[6:7]"); a.i("s_and_b32 s4, s4, 3")
    a.i("s_cmp_eq_u32 s4, 3"); a.i(f"s_cbranch_scc1 L_ok{rnd}")
    a.i("s_mov_b64 exec, 3")
    a.i(f"buffer_load_dwordx2 {vFL}, {vFA}, {sWS}, 0 offen sc1", cond=True)
    a.i("s_mov_b64 exec, -1")
    a.i("s_waitcnt vmcnt(0)")
    a.i(f"s_sub_u32 {sCNT}, {sCNT}, 1"); a.i(f"s_cmp_lg_u32 {sCNT}, 0"); a.i(f"s_cbranch_scc1 L_chk{rnd}")
    a.label(f"L_ok{rnd}")
    a.stamp(f'chk{rnd}')

def wo_addr(a):
    L=vLane
    a.i(f"s_mul_i32 s6, {sNQ}, 288")
    a.i(f"v_lshrrev_b32 v4, 4, {L}")
    a.i(f"v_and_b32 v5, 15, {L}")
    for par in range(2):
        a.i(f"v_add_u32 v6, {4*par}, v4"); a.i(f"v_lshlrev_b32 v6, 1, v6"); a.i(f"v_xor_b32 v6, v5, v6")
        a.i(f"v_lshlrev_b32 v6, 4, v6"); a.i(f"v_add_u32 v6, s6, v6")
        a.i(f"v_mul_u32_u24 v7, {XROW}, v4"); a.i(f"v_add_u32 {vWOm[par]}, v6, v7")
        a.i(f"v_lshrrev_b32 v7, 1, v4"); a.i(f"v_mul_u32_u24 v7, 18, v7"); a.i(f"v_and_b32 v8, 1, v4"); a.i(f"v_add_u32 v7, v7, v8")
        a.i(f"v_mul_u32_u24 v7, {XROW}, v7"); a.i(f"v_add_u32 {vWOl[par]}, v6, v7")
    a.i(f"v_lshrrev_b32 v4, 1, {L}")
    a.i(f"v_and_b32 v5, 1, {L}"); a.i(f"v_lshlrev_b32 v5, 4, v5"); a.i(f"v_add_u32 v5, 256, v5"); a.i(f"v_add_u32 v5, s6, v5")
    a.i(f"v_bfe_u32 v6, v4, 2, 2")
    a.i(f"v_and_b32 v7, 3, v4"); a.i(f"v_lshrrev_b32 v8, 4, v4")
    a.i(f"v_lshrrev_b32 v2, 1, v6"); a.i(f"v_mul_u32_u24 v2, 18, v2"); a.i(f"v_add_u32 v2, v2, v7"); a.i(f"v_lshl_add_u32 v2, v8, 3, v2")
    a.i(f"v_and_b32 v3, 1, v6"); a.i(f"v_lshl_add_u32 v2, v3, 2, v2"); a.i(f"v_mul_u32_u24 v2, {XROW}, v2"); a.i(f"v_add_u32 {vWOt[0]}, v2, v5")
    a.i(f"v_lshl_add_u32 v7, v8, 2, v7")
    a.i(f"v_lshrrev_b32 v2, 1, v7"); a.i(f"v_lshl_add_u32 v2, v6, 2, v2"); a.i(f"v_mul_u32_u24 v2, 18, v2")
    a.i(f"v_and_b32 v3, 1, v7"); a.i(f"v_add3_u32 v2, v2, v3, 16"); a.i(f"v_mul_u32_u24 v2, {XROW}, v2"); a.i(f"v_add_u32 {vWOt[1]}, v2, v5")

vWO8=[f'v{22+e}' for e in range(8)]
def wo8_setup():
    L=[]
    for e in range(8):
        const=(((e&3)>>1)*18+8*(e>>2)+4*(e&1))*XROW-1024*(e%4)
        if const>=0: L.append(f"v_add_u32 {vWO8[e]}, {const}, {vWOm[e&1]}")
        else: L.append(f"v_subrev_u32 {vWO8[e]}, {-const}, {vWOm[e&1]}")
    return L
def wo8_groups(uniform_setup):
    Gs=[]
    for e in range(8):
        pre = list(uniform_setup) if e==0 else []
        if e%4==0: pre += [f"s_add_u32 m0, {sT3}, {4096*(e//4)}", "s_nop 0"]
        Gs.append(pre+[(f"buffer_load_dwordx4 {vWO8[e]}, {sWO}, {sT2} offen offset:{1024*(e%4)} lds",'wo')])
    Gs.append([f"s_add_u32 m0, {sT3}, 8192", "s_nop 0", (f"buffer_load_dwordx4 {vWOt[0]}, {sWO}, {sT2} offen lds",'wo')])
    return Gs

def wo_dma_groups(kap, slot, uniform_setup):
    Gs=[]
    left = kap>=16
    for e in range(8):
        if left: const=((4*(e&3)+2*(e>>2))*18+16)*XROW
        else: const=(((e&3)>>1)*18+8*(e>>2)+4*(e&1))*XROW
        pre = list(uniform_setup) if e==0 else []
        if e%4==0: pre += [f"s_add_u32 m0, {sT3}, {4096*(e//4)}"]
        voff=(vWOl if left else vWOm)[e&1]
        Gs.append(pre+[f"s_add_u32 {sWOs}, {sT2}, {const-1024*(e%4)}" if const-1024*(e%4)>=0 else f"s_sub_u32 {sWOs}, {sT2}, {1024*(e%4)-const}",
                       (f"buffer_load_dwordx4 {voff}, {sWO}, {sWOs} offen offset:{1024*(e%4)} lds",'wo')])
    Gs.append([f"s_add_u32 m0, {sT3}, 8192", "s_nop 0", (f"buffer_load_dwordx4 {vWOt[1 if left else 0]}, {sWO}, {sT2} offen lds",'wo')])
    return Gs

def wo_prefetch_groups():
    Gs=[]
    for it in range(4):
        setup=[f"s_add_u32 {sT1}, {sWV}, {4*it}", f"s_mul_i32 {sT2}, {sT1}, 41472", f"s_mul_i32 {sT3}, {sT1}, 9216"]
        Gs+=wo_dma_groups(0,None,setup)
    return Gs

def wo_left_groups(L_, ldsbase, regs=None):
    vl0,vl1,vt = regs or (vWOl[0],vWOl[1],vWOt[1])
    g0=L_*16*18*XROW
    setup=[f"s_lshl_b32 {sT1}, {sWV}, 1", f"s_and_b32 {sT1}, {sT1}, 3", f"s_lshl_b32 {sT1}, {sT1}, 2",
           f"s_lshr_b32 {sT2}, {sWV}, 1", f"s_lshl_b32 {sT2}, {sT2}, 1", f"s_add_u32 {sT1}, {sT1}, {sT2}",
           f"s_mul_i32 {sT1}, {sT1}, {18*XROW}", f"s_add_u32 {sT2}, {sT1}, {g0+16*XROW}",
           f"s_lshl_b32 {sT1}, {sWV}, 11", f"s_add_u32 m0, {sT1}, {ldsbase}", "s_nop 0"]
    G0=setup+[(f"buffer_load_dwordx4 {vl0}, {sWO}, {sT2} offen lds",'wo')]
    G1=[f"s_add_u32 {sT2}, {sT2}, {4*18*XROW-1024}", (f"buffer_load_dwordx4 {vl1}, {sWO}, {sT2} offen offset:1024 lds",'wo')]
    G2=[f"s_mov_b32 {sT2}, {g0}", f"s_mov_b32 m0, {ldsbase+8192}", "s_nop 0", (f"buffer_load_dwordx4 {vt}, {sWO}, {sT2} offen lds",'wo')]
    return [G0,G1,G2]

def halo_load_groups(hb):
    base=HALO+14*hb; src=sKV2 if hb<4 else sKV1; bt=hb%4; tg=f'h{hb}'
    return [[f"s_add_u32 {sT0}, {src}, {9216*bt}",
             (f"buffer_load_dwordx4 a[{base}:{base+3}], {vPk}, {sWS}, {sT0} offen sc1", tg),
             (f"buffer_load_dword a{base+4}, {vPl}, {sWS}, {sT0} offen sc1", tg),
             f"s_mov_b64 exec, {sVM}",
             (f"buffer_load_dwordx4 a[{base+6}:{base+9}], {vPv}, {sWS}, {sT0} offen sc1", tg),
             (f"buffer_load_dwordx4 a[{base+10}:{base+13}], {vPv}, {sWS}, {sT0} offen offset:576 sc1", tg),
             "s_mov_b64 exec, -1"]]

def get_nonce(a):
    a.i(f"v_readfirstlane_b32 {sNONl}, v48"); a.i(f"v_readfirstlane_b32 {sNONh}, v49"); a.i("s_nop 1")
    a.i(f"s_or_b32 {sT0}, {sNONl}, {sNONh}"); a.i(f"s_cmp_lg_u32 {sT0}, 0"); a.i("s_cbranch_scc1 L_have_nonce")
    a.i(f"s_mov_b32 {sCNT}, 100000")
    a.label("L_nonce_poll")
    a.i(f"v_mov_b32 {vT}, 0")
    a.i(f"buffer_load_dwordx2 {vNON}, {vT}, {sDBG}, 0 offen sc1", cond=True)
    a.i("s_waitcnt vmcnt(0)")
    a.i(f"v_readfirstlane_b32 {sNONl}, v48"); a.i(f"v_readfirstlane_b32 {sNONh}, v49"); a.i("s_nop 1")
    a.i(f"s_or_b32 {sT0}, {sNONl}, {sNONh}"); a.i(f"s_cmp_lg_u32 {sT0}, 0"); a.i("s_cbranch_scc1 L_have_nonce")
    a.i(f"s_sub_u32 {sCNT}, {sCNT}, 1"); a.i(f"s_cmp_lg_u32 {sCNT}, 0"); a.i("s_cbranch_scc1 L_nonce_poll")
    a.label("L_have_nonce")

def kv_regs(jb): return ('v', OWN+14*jb) if jb>=0 else ('a', HALO+14*(jb+8))
HORDER=[-4,-3,-8,-7,-2,-1,-6,-5]
def tile_list():
    T=[(i,bt) for i in range(4) for bt in range(i+1)]
    for jb in HORDER[:4]:
        for i in range(4):
            if i-jb<=8: T.append((i,jb))
    if GOPT.get('r2_by_q',0):
        for i in (3,2,1,0):
            for jb in HORDER[4:]:
                if i-jb<=8: T.append((i,jb))
    else:
        for jb in HORDER[4:]:
            for i in range(4):
                if i-jb<=8: T.append((i,jb))
    return T

def norm_block(i):
    O=OACC+16*i; t=84; L=[]
    L.append(f"v_rcp_f32 v{t}, v{O+10}")
    L.append(f"v_pk_add_f32 v[{t+2}:{t+3}], v[{O}:{O+1}], v[{O+2}:{O+3}]")
    L.append(f"v_pk_add_f32 v[{t+4}:{t+5}], v[{O+4}:{O+5}], v[{O+6}:{O+7}]")
    L.append(f"v_mov_b32 v{t+1}, v{t}")
    L.append(f"v_pk_add_f32 v[{t+2}:{t+3}], v[{t+2}:{t+3}], v[{O+8}:{O+9}]")
    L.append(f"v_pk_add_f32 v[{t+2}:{t+3}], v[{t+2}:{t+3}], v[{t+4}:{t+5}]")
    for r in range(0,10,2): L.append(f"v_pk_mul_f32 v[{O+r}:{O+r+1}], v[{t}:{t+1}], v[{O+r}:{O+r+1}]")
    L.append(f"v_add_f32 v{t+2}, v{t+2}, v{t+3}")
    L.append(f"v_fma_f32 v{t+2}, v{t+2}, 0, v{O+10}")
    for u in range(5): L.append(f"v_cvt_pk_bf16_f32 v{O+u}, v{O+2*u}, v{O+2*u+1}")
    L.append(f"v_cmp_nle_f32 vcc, v252, v{t+2}")
    L.append(f"v_cmp_nge_f32 s[4:5], v253, v{t+2}")
    L.append(f"s_add_u32 {sT0}, {sOM}, {i*32*OUTROW}"); L.append(f"s_add_u32 {sT1}, {sOL}, {i*32*OUTROW}")
    L.append(f"s_or_b64 {sBAD}, {sBAD}, vcc"); L.append(f"s_or_b64 {sBAD}, {sBAD}, s[4:5]")
    L.append(('OSTORE',i))
    return L

def emit_ostore(a, i):
    O=OACC+16*i
    if not GOPT.get('olocal'):
        a.i(f"buffer_store_dwordx4 v[{O}:{O+3}], {vPk}, {sOUT}, {sT0} offen sc1", 'ost')
        a.i(f"s_mov_b64 exec, {sLO}")
        a.i(f"buffer_store_dword v{O+4}, {vOl}, {sOUT}, {sT1} offen sc1", 'ost')
        a.i(f"s_mov_b64 exec, -1")
        return
    a.i(f"s_cmp_eq_u32 {sLOC}, 1"); a.i(f"s_cbranch_scc1 L_osl{i}")
    a.i(f"buffer_store_dwordx4 v[{O}:{O+3}], {vPk}, {sOUT}, {sT0} offen sc1", 'x', True)
    a.i(f"s_mov_b64 exec, {sLO}")
    a.i(f"buffer_store_dword v{O+4}, {vOl}, {sOUT}, {sT1} offen sc1", 'x', True)
    a.i(f"s_mov_b64 exec, -1")
    a.i(f"s_branch L_ose{i}")
    a.label(f"L_osl{i}")
    a.i(f"buffer_store_dwordx4 v[{O}:{O+3}], {vPk}, {sOUT}, {sT0} offen", 'ost')
    a.i(f"s_mov_b64 exec, {sLO}")
    a.i(f"buffer_store_dword v{O+4}, {vOl}, {sOUT}, {sT1} offen", 'ost')
    a.i(f"s_mov_b64 exec, -1")
    a.label(f"L_ose{i}")

def o_pretouch():
    L=vLane
    return [f"v_lshrrev_b32 v2, 3, {L}", f"v_mul_u32_u24 v2, {32*OUTROW}, v2", f"v_and_b32 v3, 7, {L}", f"v_lshl_add_u32 v2, v3, 7, v2",
            f"v_add_u32 v2, {sOM}, v2",
            f"v_bfe_u32 v3, {L}, 2, 2", f"v_mul_u32_u24 v3, {32*OUTROW}, v3", f"v_and_b32 v4, 3, {L}", f"v_mul_u32_u24 v4, {OUTROW}, v4",
            f"v_add3_u32 v3, v3, v4, {sOL}",
            f"v_cmp_le_u32 vcc, 32, {L}", f"s_lshl_b32 {sT0}, {sG}, 2", f"s_add_u32 {sT0}, {sT0}, {sWV}", f"v_cndmask_b32 v2, v2, v3, vcc",
            "s_mov_b32 s4, -1", "s_mov_b32 s5, 0xffff", "s_mov_b64 exec, s[4:5]",
            (f"buffer_load_dword v255, v2, {sOUT}, 0 offen",'touch'), "s_mov_b64 exec, -1",
            f"s_lshl_b32 {sT0}, {sT0}, 7", f"s_add_u32 {sT0}, {sT0}, {sFO}",
            f"v_mul_u32_u24 v2, {WS_FWL-WS_FOL}, {L}", f"v_add_u32 v2, {WS_FOL-WS_FO}, v2",
            "s_mov_b64 exec, 3", (f"buffer_load_dword v255, v2, {sWS}, {sT0} offen",'touch'), "s_mov_b64 exec, -1"]

def attention(a, opts):
    a.c("---- attention")
    T=tile_list(); n=len(T)
    first={}; last={}; firstuse={}
    for k,(i,jb) in enumerate(T):
        first.setdefault(i,k); last[i]=k; firstuse.setdefault(jb,k)
    Sreg=lambda k: (S0 if k%2==0 else S1)
    Preg=lambda k: (P0 if k%2==0 else P1)
    def qk(k):
        i,jb=T[k]; p,base=kv_regs(jb); S=rng('v',Sreg(k),16)
        return [f"v_mfma_f32_32x32x16_bf16 {S}, {rng(p,base,4)}, a[{8*i}:{8*i+3}], 0",
                f"v_mfma_f32_32x32x16_bf16 {S}, {rng(p,base+4,4)}, a[{8*i+4}:{8*i+7}], {S}"]
    def pv(k):
        i,jb=T[k]; p,base=kv_regs(jb); O=rng('v',OACC+16*i,16); P=Preg(k)
        c0='0' if k==first[i] else O
        return [f"v_mfma_f32_32x32x16_bf16 {O}, {rng(p,base+6,4)}, v[{P}:{P+3}], {c0}",
                f"v_mfma_f32_32x32x16_bf16 {O}, {rng(p,base+10,4)}, v[{P+4}:{P+7}], {O}"]
    waited=set()
    wo=list(opts.get('_wo_left',[]))+wo_group_for(12)+wo_left_groups(0,16*9216)
    NW=opts.get('wo_att',39)
    def rn_(t): return t.replace(vWOl[0]+',','v88,').replace(vWOl[1]+',','v89,').replace(vWOt[1]+',','v90,').replace(vWOt[0]+',','v96,')
    def rt(g): return [((rn_(x[0]),'wo2') if isinstance(x,tuple) else x) for x in g]
    opts['_wo_p3']=[rt(g) for g in wo[NW:]]
    wo=wo[:NW]
    if opts.get('X_nowo'):
        for g in wo[1:]:
            pass
        wo=wo[:1]; opts['_wo_p3']=[]
    WO_START=opts.get('wo_start',0)
    CHK0=opts.get('chk0',0); FLAGB=opts.get('flagB',3); FL1=opts.get('fl1',9); CHK1=opts.get('chk1',14)
    WO_PAUSE=opts.get('wo_pause',1)
    if opts.get('idle_att'): a.i(f"s_sleep {opts['idle_att']}")
    a.i(f"s_mov_b32 {sTRY}, 0")
    a.label("L_att")
    a.i(f"v_mov_b32 v254, 0x207")
    q0=qk(0); a.i(q0[0]); a.i(q0[1])
    extra=[]; hq=[]
    for k in range(n+1):
        a.stamp(f't{k}_')
        pagepad(a,opts,f't{k}')
        if k==CHK0:
            kv_flag_check(a,0,2)
            for jb in HORDER[:4]:
                hq += halo_load_groups(jb+8)
        if k==FLAGB:
            a.wait(vm='pubB'); a.emit(flag_store_ins(4))
        if k==FL1: a.emit(kv_flag_load(1))
        if opts.get('olocal') and k==opts.get('pre_at',19): a.emit(o_pretouch())
        if opts.get('olocal') and k==opts.get('xtl',24): a.emit(xt_load())
        if opts.get('olocal') and k==opts.get('xtc',30): xt_check(a)
        if k==CHK1:
            kv_flag_check(a,1,4)
            for jb in HORDER[4:]:
                hq += halo_load_groups(jb+8)
        mf=[]
        if k+1<n:
            i,jb=T[k+1]
            if jb<0 and jb not in waited:
                if not waited: a.stamp('own_done')
                assert any(t==f'h{jb+8}' for t in a.vm), jb
                waited.add(jb); a.wait(vm=f'h{jb+8}')
                if len(waited)==1: a.stamp('h0_landed')
            mf+=qk(k+1)
        else: mf+=[None,None]
        mf += pv(k-1) if k>=1 else [None,None]
        if k==0: a.nop(12)
        S=Sreg(k); P=Preg(k)
        i,jb=T[k] if k<n else (None,None)
        for seg in range(4):
            pk,ps = (k,seg-1) if seg>0 else (k-1,3)
            if pk>=0 and pk<n:
                Sp=Sreg(pk); Pp=Preg(pk); ip,jp=T[pk]
                for u in (2*ps,2*ps+1): a.i(f"v_cvt_pk_bf16_f32 v{Pp+u}, v{Sp+2*u}, v{Sp+2*u+1}")
                if jp==ip or jp==ip-8:
                    M=MASKD if jp==ip else MASKF
                    for u in (2*ps,2*ps+1): a.i(f"v_and_b32 v{Pp+u}, v{M+u}, v{Pp+u}")
            if k==n and seg==2: a.nop(2)
            if mf[seg]: a.i(mf[seg])
            if k<n:
                for e in range(4): a.i(f"v_exp_f32 v{S+4*seg+e}, v{S+4*seg+e}")
            a.drain(extra, 6 if k<n else 1000)
            if hq and seg in (0,2): a.emit(hq.pop(0))
            paused = WO_PAUSE and ((CHK0<=k<opts.get('wo_p1',10)) or (CHK1<=k<CHK1+opts.get('wo_p2',9)))
            segs={1:(1,),2:(1,3),3:(0,1,3)}[opts.get('wo_rate',3)]
            if k>=WO_START and wo and not paused and seg in segs: a.emit(wo.pop(0))
        if k>=1:
            ib=T[k-1][0]
            if last[ib]==k-1:
                if k==n:
                    a.nop(14); a.emit(norm_block(ib))
                elif opts.get('X_nonorm'): extra+=["s_nop 1"]+norm_block(ib)[-4:]
                else: extra+=["s_nop 1"]+norm_block(ib)
    assert not extra
    for g in wo: a.emit(g)
    a.i(f"s_or_b32 s4, s74, s75"); a.i(f"s_cmp_eq_u32 s4, 0"); a.i("s_cbranch_scc1 L_att_done")
    a.i(f"s_cmp_eq_u32 {sTRY}, 0"); a.i("s_cbranch_scc1 L_slow")
    a.label("L_att_done")
    a.stamp('att_end')

def slow_path(a):
    a.label("L_slow")
    a.i("s_waitcnt vmcnt(0) lgkmcnt(0)")
    T=tile_list(); L=vLane
    a.i(f"v_and_b32 v84, 31, {L}"); a.i(f"v_lshrrev_b32 v85, 5, {L}"); a.i("v_lshlrev_b32 v85, 2, v85"); a.i("v_sub_u32 v84, v84, v85")
    a.i("v_mov_b32 v86, 0xff800000")
    for i in range(4):
        m=f"v{P0+i}"
        a.i(f"v_mov_b32 {m}, v86")
        for n_,(ii,jb) in enumerate([t for t in T if t[0]==i]):
            lab=f"L_sk{i}_{n_}"
            if jb<0:
                a.i(f"s_cmp_lt_u32 {sC}, {2 if jb<-4 else 1}"); a.i(f"s_cbranch_scc1 {lab}")
            p_,base=kv_regs(jb); S=rng('v',S0,16)
            a.i(f"v_mfma_f32_32x32x16_bf16 {S}, {rng(p_,base,4)}, a[{8*i}:{8*i+3}], 0")
            a.i(f"v_mfma_f32_32x32x16_bf16 {S}, {rng(p_,base+4,4)}, a[{8*i+4}:{8*i+7}], {S}")
            a.nop(16)
            if jb==i or jb==i-8:
                for r in range(16):
                    k0=(r&3)+8*(r>>2)
                    a.i(f"v_cmp_{'le' if jb==i else 'gt'}_i32 vcc, {k0}, v84"); a.i("s_nop 1")
                    a.i(f"v_cndmask_b32 v{S0+r}, v86, v{S0+r}, vcc")
            for r in range(0,16,2): a.i(f"v_max3_f32 {m}, v{S0+r}, v{S0+r+1}, {m}")
            if jb<0: a.label(lab)
        a.i(f"v_mov_b32 v87, {m}"); a.nop(2)
        a.i(f"v_permlane32_swap_b32 {m}, v87"); a.nop(2)
        a.i(f"v_max_f32 {m}, {m}, v87")
        a.i(f"v_sub_f32 v87, 0, {m}")
        a.i(f"v_cvt_pk_bf16_f32 v88, v87, v87"); a.i("v_lshlrev_b32 v89, 16, v88")
        a.i("v_sub_f32 v89, v87, v89")
        a.i("v_cvt_pk_bf16_f32 v88, v87, v89")
        a.i(f"s_mov_b64 exec, {sLO}"); a.i(f"v_accvgpr_write_b32 a{8*i+5}, v88"); a.i("s_mov_b64 exec, -1")
    a.i(f"s_mov_b32 {sTRY}, 1"); a.i(f"s_mov_b64 {sBAD}, 0"); a.nop(4)
    a.i("s_branch L_att")

OF=16
DACC=88
AFV=124
vAr=[f'v{2+t}' for t in range(9)]
vOf='v11'; vOut='v12'; vOf2='v251'

def phase3(a, opts):
    a.c("---- phase 3")
    L=vLane
    a.i(f"v_mov_b32 v88, {vWOl[0]}"); a.i(f"v_mov_b32 v89, {vWOl[1]}"); a.i(f"v_mov_b32 v90, {vWOt[1]}"); a.i(f"v_mov_b32 v96, {vWOt[0]}")
    a.i(f"v_lshrrev_b32 v13, 2, {L}")
    a.i(f"v_and_b32 v14, 7, v13"); a.i(f"v_lshlrev_b32 v14, 5, v14")
    a.i(f"v_lshl_add_u32 v14, v13, 8, v14")
    a.i(f"v_and_b32 v15, 3, {L}"); a.i(f"v_lshl_add_u32 v14, v15, 3, v14")
    for t in range(8): a.i(f"v_xor_b32 {vAr[t]}, {32*t}, v14")
    a.i(f"v_lshlrev_b32 v13, 5, v13"); a.i(f"v_lshl_add_u32 v13, v15, 3, v13"); a.i(f"v_add_u32 {vAr[8]}, 8192, v13")
    a.i(f"v_and_b32 v13, 15, {L}"); a.i(f"v_lshrrev_b32 v14, 4, {L}")
    a.i(f"s_and_b32 s6, {sWV}, 1"); a.i(f"s_lshl_b32 s6, s6, 8")
    a.i(f"v_lshl_add_u32 v15, v13, 4, s6")
    a.i(f"v_and_b32 v93, 1, v14"); a.i(f"v_lshl_add_u32 {vOf}, v93, 9, v15"); a.i(f"v_lshrrev_b32 v93, 1, v14")
    a.i(f"v_mul_u32_u24 v93, {OUTROW}, v93"); a.i(f"v_add_u32 {vOf}, {vOf}, v93")
    a.i(f"v_lshrrev_b32 v93, 7, v15"); a.i(f"v_lshl_add_u32 v93, v14, 2, v93"); a.i(f"v_mul_u32_u24 v93, {OUTROW}, v93")
    a.i(f"v_and_b32 v94, 0x70, v15"); a.i(f"v_add_u32 {vOf2}, v93, v94")
    a.i(f"v_mul_u32_u24 v15, {OUTROW}, v13"); a.i(f"v_lshl_add_u32 {vOut}, v14, 3, v15")
    a.wait(vm='wo')
    a.i("s_barrier")
    a.stamp('wo_ready')
    if opts.get('dumpwo'):
        a.i("s_cmp_lg_u32 s2, 0"); a.i("s_cbranch_scc1 L_nodump")
        a.i("v_lshlrev_b32 v13, 4, v0")
        for it in range(39):
            a.i(f"ds_read_b128 v[124:127], v13 offset:0")
            a.i("s_waitcnt lgkmcnt(0)")
            a.i(f"v_add_u32 v14, {WS_DBG+0x100000}, v13")
            a.i(f"buffer_store_dwordx4 v[124:127], v14, {sWS}, 0 offen", cond=True)
            a.i("s_waitcnt vmcnt(0)")
            a.i("v_add_u32 v13, 4096, v13")
        a.label("L_nodump"); a.lg_clear()
    def frag_reads(kap, dst):
        slot=kap if kap<17 else 0
        R=[]
        for t in range(9):
            p,r=dst(kap,t)
            off=(slot%7)*9216
            hoff=4096 if t<8 else 512
            R.append([(f"ds_read_b64_tr_b16 {p}[{r+2*h}:{r+2*h+1}], {vAr[t]} offset:{off+hoff*h}", f'a{kap}_{t}') for h in range(2)])
        return R
    NA=7; RING=29
    def dst(kap,t):
        if kap<NA: return 'a', (kap*9+t)*4
        idx=((kap-NA)*9+t)%RING
        return 'v', AFV+idx*4
    bump=lambda: [f"v_add_u32 {vAr[t]}, {7*9216}, {vAr[t]}" for t in range(9)]
    def oflag():
        a.i(f"s_lshl_b32 {sT0}, {sG}, 2"); a.i(f"s_add_u32 {sT0}, {sT0}, {sWV}"); a.i(f"s_lshl_b32 {sT0}, {sT0}, 7"); a.i(f"s_add_u32 {sT0}, {sT0}, {sFO}")
        a.i(f"v_mov_b32 v14, {sNONl}"); a.i(f"v_mov_b32 v13, 0")
        if not opts.get('olocal'):
            a.i(f"v_mov_b32 v15, {sNONh}"); a.i("s_mov_b64 exec, 1")
            a.i(f"buffer_store_dwordx2 v[14:15], v13, {sWS}, {sT0} offen sc1", 'oflag'); a.i("s_mov_b64 exec, -1")
            return
        a.i(f"s_cmp_eq_u32 {sLOC}, 1"); a.i("s_cbranch_scc1 L_ofl")
        a.i(f"v_mov_b32 v15, {sNONh}")
        a.i("s_mov_b64 exec, 1")
        a.i(f"buffer_store_dwordx2 v[14:15], v13, {sWS}, {sT0} offen sc1", 'x', True)
        a.i("s_branch L_ofe")
        a.label("L_ofl")
        a.i(f"s_add_u32 {sT0}, {sT0}, {WS_FOL-WS_FO}")
        a.i(f"v_mov_b32 v15, {sLFH}")
        a.i("s_mov_b64 exec, 1")
        a.i(f"buffer_store_dwordx2 v[14:15], v13, {sWS}, {sT0} offen", tag='oflag')
        a.label("L_ofe")
        a.i("s_mov_b64 exec, -1")
    LF_AT=opts.get('lf_at',3)
    w2=list(opts.get('_wo_p3',[]))
    for kap in range(NA):
        if kap==LF_AT:
            if not opts.get('X_noostw'): a.wait(vm='ost')
            oflag(); a.stamp('o_lflag')
        for gi,grp in enumerate(frag_reads(kap,dst)):
            a.emit(grp)
            if w2 and gi%3==0: a.emit(w2.pop(0))
        if kap%2==1: a.wait(lg=8)
    for g in w2: a.emit(g)
    if opts.get('_wo_p3'):
        a.wait(vm='wo2'); a.i("s_barrier")
    a.emit(bump())
    a.i(f"v_and_b32 v13, 31, {L}"); a.i(f"v_lshlrev_b32 v13, 7, v13")
    a.i(f"v_mov_b32 v91, {sNONh}")
    if opts.get('olocal'):
        a.i(f"v_add_u32 v14, {WS_FOL-WS_FO}, v13"); a.i(f"v_cmp_le_u32 vcc, 32, {L}")
        a.i(f"v_mov_b32 v92, {sLFH}"); a.i("s_nop 0")
        a.i(f"v_cndmask_b32 v13, v13, v14, vcc"); a.i(f"v_cndmask_b32 v91, v91, v92, vcc")
    def opoll_load(cond):
        if not opts.get('olocal'): a.i(f"s_mov_b64 exec, {sLO}")
        a.i(f"buffer_load_dwordx2 v[14:15], v13, {sWS}, {sFO} offen sc1", 'opl', cond)
        a.i("s_mov_b64 exec, -1")
    AP=opts.get('apoll',0); W0=opts.get('w0poll',1)
    if AP==1: opoll_load(False)
    for kap in range(NA,NA+3):
        for grp in frag_reads(kap,dst): a.emit(grp)
    OT=9216; OP=304
    a.i(f"v_and_b32 v252, 15, {L}"); a.i(f"v_mul_u32_u24 v252, {OP}, v252"); a.i(f"v_lshrrev_b32 v253, 4, {L}"); a.i(f"v_lshl_add_u32 v252, v253, 3, v252")
    a.i(f"s_mul_i32 {sT2}, {sWV}, {16*OP}"); a.i(f"s_add_u32 {sT2}, {sT2}, {OT}"); a.i(f"v_add_u32 v250, {sT2}, v252")
    for e in range(5):
        a.i(f"v_add_u32 v252, {64*e}, {L}"); a.i(f"v_mul_u32_u24 v253, 58255, v252"); a.i(f"v_lshrrev_b32 v253, 20, v253")
        a.i(f"v_mul_u32_u24 v254, 18, v253"); a.i(f"v_sub_u32 v254, v252, v254"); a.i(f"v_lshlrev_b32 v254, 4, v254")
        a.i(f"v_mul_u32_u24 v252, {OP}, v253"); a.i(f"v_add3_u32 v{240+e}, v252, v254, {sT2}")
        a.i(f"v_mul_u32_u24 v252, {OUTROW}, v253"); a.i(f"v_add_u32 v{245+e}, v252, v254")
    a.wait(lg=0)
    a.i("s_barrier")
    for g in wo_left_groups(1,0,('v88','v89','v90')): a.emit(g)
    a.stamp('frags_pre')
    if opts.get('X_nopoll'): a.i("s_branch L_opoll_done")
    if W0:
        a.i(f"s_cmp_lg_u32 {sWV}, 0"); a.i("s_cbranch_scc1 L_opoll_done")
    if AP==1: a.wait(vm='opl')
    else:
        opoll_load(True); a.i("s_waitcnt vmcnt(0)")
    a.i(f"s_mov_b32 {sCNT}, 200000")
    a.label("L_opoll")
    if not opts.get('olocal'): a.i(f"s_mov_b64 exec, {sLO}")
    a.i(f"v_cmp_eq_u32 vcc, {sNONl}, v14"); a.i(f"v_cmp_eq_u32 s[4:5], v91, v15")
    a.i("s_mov_b64 exec, -1")
    a.i("s_and_b64 s[4:5], s[4:5], vcc"); a.i("s_or_b32 s4, s4, s5"); a.i("s_cmp_eq_u32 s4, -1"); a.i("s_cbranch_scc1 L_opoll_done")
    if opts.get('psleep',0): a.i(f"s_sleep {opts.get('psleep',0)}")
    opoll_load(True); a.i("s_waitcnt vmcnt(0)")
    a.i(f"s_sub_u32 {sCNT}, {sCNT}, 1"); a.i(f"s_cmp_lg_u32 {sCNT}, 0"); a.i("s_cbranch_scc1 L_opoll")
    a.label("L_opoll_done")
    if W0:
        a.wait(vm='wo'); a.i("s_barrier")
    a.stamp('opoll_done')
    if opts.get('kord',1)==1: KORD=[7,0,8,1,9,2,10,3,11,4,12,5,13,6,14,15,16,17]
    else: KORD=[7,8,9]+list(range(7))+list(range(10,18))
    def oload(kap):
        if kap<16:
            a.i(f"s_add_u32 {sT0}, {sPOM}, {2*OUTROW*kap}")
            a.i(f"buffer_load_dwordx4 v[{OF+4*kap}:{OF+4*kap+3}], {vOf}, {sOUT}, {sT0} offen sc1", tag=f'of{kap}')
        else:
            a.i(f"s_add_u32 {sT0}, {sPOL}, {16*OUTROW*(kap-16)}")
            a.i(f"buffer_load_dwordx4 v[{OF+4*kap}:{OF+4*kap+3}], {vOf2}, {sOUT}, {sT0} offen sc1", tag=f'of{kap}')
    NFIRST=opts.get('ofirst',7)
    oq=list(KORD)
    for _ in range(NFIRST): oload(oq.pop(0))
    a.stamp('p3_oissued')
    if not W0:
        a.wait(vm='wo'); a.i("s_barrier")
    rq=[]
    for kap in range(NA+3,18):
        R=frag_reads(kap,dst)
        for t in range(9): rq.append((kap,t,R[t]))
    issued=(NA+3-NA)*9
    consumed=0; mcount=0
    def war_store():
        a.wait(vm=f'of{KORD[-1]}')
        a.i(f"s_lshl_b32 {sT0}, {sG}, 2"); a.i(f"s_add_u32 {sT0}, {sT0}, {sWV}"); a.i(f"s_lshl_b32 {sT0}, {sT0}, 7"); a.i(f"s_add_u32 {sT0}, {sT0}, {sFO}")
        a.i(f"v_mov_b32 v252, {sNONl}"); a.i(f"v_mov_b32 v254, 0")
        a.i(f"s_add_u32 {sT0}, {sT0}, {WS_FW-WS_FO}")
        if opts.get('olocal'):
            a.i(f"s_cmp_eq_u32 {sLOC}, 1"); a.i("s_cbranch_scc1 L_wl")
        a.i(f"v_mov_b32 v253, {sNONh}"); a.i("s_mov_b64 exec, 1")
        a.i(f"buffer_store_dwordx2 v[252:253], v254, {sWS}, {sT0} offen sc1", 'war' if not opts.get('olocal') else 'x', bool(opts.get('olocal')))
        if opts.get('olocal'):
            a.i("s_branch L_we"); a.label("L_wl")
            a.i(f"s_add_u32 {sT0}, {sT0}, {WS_FWL-WS_FW}"); a.i(f"v_mov_b32 v253, {sLFH}"); a.i("s_mov_b64 exec, 1")
            a.i(f"buffer_store_dwordx2 v[252:253], v254, {sWS}, {sT0} offen", 'war')
            a.label("L_we")
        a.i("s_mov_b64 exec, -1")
    def war_addr():
        a.i(f"v_and_b32 v13, 15, {L}"); a.i(f"s_lshl_b32 {sT0}, {sRH}, 4"); a.i(f"v_add_u32 v13, {sT0}, v13"); a.i(f"v_lshlrev_b32 v13, 7, v13")
        a.i(f"v_add_u32 v13, {WS_FW-WS_FO}, v13"); a.i(f"v_add_u32 v14, {WS_FWL-WS_FW}, v13"); a.i(f"v_cmp_le_u32 vcc, 16, {L}")
        a.i(f"v_mov_b32 v15, {sNONh}"); a.i(f"v_mov_b32 v1, {sLFH if opts.get('olocal') else sNONh}")
        a.i(f"v_cndmask_b32 v13, v13, v14, vcc"); a.i(f"v_cndmask_b32 v15, v15, v1, vcc")
    def war_load(cond=False):
        a.i(f"s_mov_b64 exec, {sLO}"); a.i(f"buffer_load_dwordx2 v[0:1], v13, {sWS}, {sFO} offen sc1", 'warl', cond); a.i("s_mov_b64 exec, -1")
    base_slot=7
    for kap in KORD:
        a.wait(vm=f'of{kap}')
        for t in range(9):
            p,r=dst(kap,t)
            if kap>=NA:
                if opts.get('batchw',0):
                    if t%3==0:
                        tg=f'a{kap}_{t+2}'
                        if tg in a.lg or tg in a.lgdone:
                            if a.lg_n(tg) is not None: a.wait(lg=tg)
                        else:
                            for tt_ in (t+2,t+1,t):
                                tg2=f'a{kap}_{tt_}'
                                if tg2 in a.lg or tg2 in a.lgdone: break
                            raise Exception("ring underflow %d %d"%(kap,t))
                else:
                    n_=a.lg_n(f'a{kap}_{t}')
                    if n_ is not None: a.wait(lg=f'a{kap}_{t}')
            acc=rng('v',DACC+4*t,4); c='0' if kap==KORD[0] else acc
            a.i(f"v_mfma_f32_16x16x32_bf16 {acc}, {p}[{r}:{r+3}], v[{OF+4*kap}:{OF+4*kap+3}], {c}")
            if kap>=NA: consumed+=1
            mcount+=1
            if mcount in (1,27,90,126): a.stamp(f'p3_m{mcount}_')
            if oq and mcount%opts.get('oevery',4)==0: oload(oq.pop(0))
            if mcount==opts.get('war_st',100): war_store()
            if mcount==opts.get('war_ld',140): war_addr(); war_load()
            if rq and issued-consumed<RING-1:
                k2,t2,ins=rq[0]
                if k2==14 and t2==0 and base_slot==7:
                    a.emit(bump()); base_slot=14
                if k2==17 and t2==0:
                    a.emit([f"v_subrev_u32 {vAr[tt]}, {14*9216}, {vAr[tt]}" for tt in range(9)])
                rq.pop(0); a.emit(ins); issued+=1
    assert not rq
    a.stamp('p3_mfma_end')
    a.wait(vm='warl')
    a.i(f"s_mov_b32 {sCNT}, 200000")
    a.label("L_wchk")
    a.i(f"s_mov_b64 exec, {sLO}")
    a.i(f"v_cmp_eq_u32 vcc, {sNONl}, v0"); a.i(f"v_cmp_eq_u32 s[4:5], v15, v1")
    a.i("s_mov_b64 exec, -1")
    a.i("s_and_b64 s[4:5], s[4:5], vcc"); a.i("s_lshr_b32 s5, s4, 16"); a.i("s_or_b32 s4, s4, s5"); a.i("s_and_b32 s4, s4, 0xffff")
    a.i("s_cmp_eq_u32 s4, 0xffff"); a.i("s_cbranch_scc1 L_wok")
    war_load(True); a.i("s_waitcnt vmcnt(0)")
    a.i(f"s_sub_u32 {sCNT}, {sCNT}, 1"); a.i(f"s_cmp_lg_u32 {sCNT}, 0"); a.i("s_cbranch_scc1 L_wchk")
    a.label("L_wok")
    a.stamp('p3_war')
    a.nop(10)
    for t in range(9):
        d=DACC+4*t
        a.i(f"v_cvt_pk_bf16_f32 v{d}, v{d}, v{d+1}"); a.i(f"v_cvt_pk_bf16_f32 v{d+1}, v{d+2}, v{d+3}")
        a.i(f"ds_write_b64 v250, v[{d}:{d+1}] offset:{32*t}", 'ow')
    a.wait(lg=0)
    for e in range(5):
        if e==4: a.i(f"s_mov_b64 exec, {sLO}")
        a.i(f"ds_read_b128 v[{32+4*e}:{35+4*e}], v{240+e}", f'or{e}')
    a.i("s_mov_b64 exec, -1")
    for e in range(5):
        a.wait(lg=f'or{e}')
        if e==4: a.i(f"s_mov_b64 exec, {sLO}")
        a.i(f"buffer_store_dwordx4 v[{32+4*e}:{35+4*e}], v{245+e}, {sOUT}, {sOUTB} offen {opts.get('outmod','')}")
    a.i("s_mov_b64 exec, -1")
    a.stamp('p3_stissued')
    a.i("s_waitcnt vmcnt(0)")

def kd(name, vgpr, accum, sgpr=102):
    return f""".section .rodata,"a"
.p2align 6
.amdhsa_kernel {name}
  .amdhsa_next_free_vgpr {vgpr}
  .amdhsa_next_free_sgpr {sgpr}
  .amdhsa_accum_offset {accum}
  .amdhsa_group_segment_fixed_size 0
  .amdhsa_kernarg_size 72
  .amdhsa_user_sgpr_count 2
  .amdhsa_user_sgpr_kernarg_segment_ptr 1
  .amdhsa_system_sgpr_workgroup_id_x 1
.end_amdhsa_kernel
"""
HEADER = """; Kernarg layout (72 bytes, ptrs only, base s[0:1]):
"""
def build(opts):
    ORDER_MODE[0]=opts.get('order','own'); GOPT.update(opts)
    a=G()
    if opts.get('stamps'):
        a.stamps=[]
        a.sel = opts['sel'].split(',') if 'sel' in opts else ['ch0_landed','1a_end','1b_end','q_ready','poll_done','own_done','att_end','wo_ready','frags_pre','opoll_done','p3_mfma_end','drained']
    prologue(a,opts)
    g0=dma_chunk_groups(0,0)
    if opts.get('ch0v',0):
        for i in range(4):
            a.i(f"v_add_u32 v2, {1024*i}, {vXoff[i]}")
            a.i(f"buffer_load_dwordx4 v[{52+4*i}:{55+4*i}], v2, {sX}, {sXoff} offen", 'ch0')
        for j in range(5):
            if j<4 and j>0: a.i(f"v_add_u32 v2, {1024*j}, {vWoff[j]}")
            src = vWoff[j] if j in (0,4) else 'v2'
            a.i(f"buffer_load_dwordx4 v[{68+4*j}:{71+4*j}], {src}, {sW}, {sWoff} offen", 'ch0')
        a.emit(next_chunk_ins(1))
        setupA(a,opts)
        setupB0(a,opts)
    else:
        for g in g0[:4]: a.emit(g)
        prologue2(a,opts)
        if opts.get('xfirst',1)==2:
            for g in g0[4:]: a.emit(g)
        setupA(a,opts)
        setupB0(a,opts)
        if opts.get('xfirst',1)!=2:
            for g in g0[4:]: a.emit(g)
    def xtouch_list():
        L=vLane; r_=Rec()
        r_.i(f"v_mul_u32_u24 v226, 7282, {L}"); r_.i("v_lshrrev_b32 v226, 16, v226")
        r_.i(f"v_mul_u32_u24 v227, 9, v226"); r_.i(f"v_sub_u32 v227, {L}, v227"); r_.i("v_min_u32 v226, 3, v226")
        r_.i(f"s_lshl_b32 {sT0}, {sC}, 7"); r_.i(f"s_lshl_b32 {sT1}, {sG}, 4"); r_.i(f"s_add_u32 {sT0}, {sT0}, {sT1}"); r_.i(f"s_lshl_b32 {sT1}, {sWV}, 2"); r_.i(f"s_add_u32 {sT0}, {sT0}, {sT1}")
        r_.i(f"v_add_u32 v226, {sT0}, v226"); r_.i(f"v_mul_u32_u24 v226, {XROW}, v226"); r_.i(f"v_lshl_add_u32 v226, v227, 7, v226")
        r_.l += ["s_mov_b32 exec_hi, 15" , (f"buffer_load_dword v255, v226, {sX}, 0 offen",'touch'), "s_mov_b64 exec, -1"]
        return r_.l
    if opts.get('xtouch',1)==1: a.emit(xtouch_list())
    opts['_xt2']=[xtouch_list()] if opts.get('xtouch',1)==2 else []
    if opts.get('wotouch',3)==2: touch_wo(a)
    if opts.get('pfmode',0) in (1,2):
        a.i("v_lshlrev_b32 v2, 7, v0")
        a.raw("    v_min_u32 v2, (L_end-L_pc), v2")
        a.i("global_load_dword v255, v2, s[96:97]", tag='pf')
    if opts.get('qtouch',0): touch_q(a)
    if opts.get('pgw',0):
        L=vLane
        a.i(f"s_lshl_b32 s4, {sB}, 3"); a.i(f"s_add_u32 s4, s4, {sG}"); a.i("s_lshl_b32 s4, s4, 4"); a.i(f"s_add_u32 s4, s4, {sC}")
        a.i(f"s_mul_i32 s4, s4, {SLOT}")
        a.i(f"v_mov_b32 v2, s4"); a.i(f"v_mov_b32 v3, {WS_FKV}"); a.i(f"v_cmp_eq_u32 vcc, 1, {L}"); a.i("s_nop 1"); a.i("v_cndmask_b32 v2, v2, v3, vcc")
        a.i(f"s_sub_u32 s5, s4, {2*SLOT}"); a.i(f"s_max_i32 s5, s5, 0"); a.i("v_mov_b32 v3, s5"); a.i(f"v_cmp_eq_u32 vcc, 2, {L}"); a.i("s_nop 1"); a.i("v_cndmask_b32 v2, v2, v3, vcc")
        a.i("s_mov_b64 exec, 7"); a.i(f"buffer_load_dword v255, v2, {sWS}, 0 offen", 'touch')
        a.i(f"s_lshl_b32 s4, {sC}, 7"); a.i(f"s_mul_i32 s4, s4, {OUTROW}"); a.i("v_mov_b32 v2, 0")
        a.i("s_mov_b64 exec, 1"); a.i(f"buffer_load_dword v255, v2, {sOUT}, s4 offen", 'touch'); a.i("s_mov_b64 exec, -1")
    a.stamp('p_ch0')
    ch1g=dma_chunk_groups(1,1)
    NE=opts.get('ch1_early',0)
    for g in ch1g[:NE]: a.emit(g)
    opts['_ch1rest']=ch1g[NE:]
    a.stamp('p_ch1')
    rec=Rec(); setupB(rec,opts)
    rec2=Rec(); wo_addr(rec2)
    ren=dict(zip(vWOm+vWOl+vWOt,vWOtmp))
    def rn(x):
        for k_,v_ in ren.items(): x=x.replace(f" {k_},",f" {v_},")
        return x
    opts['_side']=rec.l+[rn(x) for x in rec2.l]
    pend=opts['_ch1rest']+opts['_xt2']+dma_chunk_groups(2,2)
    pend=phase1a(a,opts,pend)
    phase1b(a,pend,opts)
    attention(a,opts)
    phase3(a,opts)
    a.stamp('drained'); a.stamp('rt_exit',real=True)
    if opts.get('dbgtime'):
        a.i("s_waitcnt lgkmcnt(0)")
        n=len(a.stamps)
        r0=a.stamps[0][1]; r1=a.stamps[-1][1]
        a.i(f"s_not_b32 s3, s{r0}")
        a.i("v_mov_b32 v2, s3"); a.i("v_mov_b32 v3, 8"); a.i(f"v_mov_b32 v4, s{r1}"); a.i("v_mov_b32 v5, 12")
        a.i("s_mov_b64 exec, 1")
        a.i(f"buffer_atomic_umax v2, v3, {sDBG}, 0 offen sc1"); a.i(f"buffer_atomic_umax v4, v5, {sDBG}, 0 offen sc1")
        a.i(f"s_cmp_lg_u32 s2, 77"); a.i("s_cbranch_scc1 L_nodbg"); a.i(f"s_cmp_lg_u32 {sWV}, 0"); a.i("s_cbranch_scc1 L_nodbg")
        e=a.stamps[1][1]
        for k,(nm,r) in enumerate(a.stamps[2:-1][:12]):
            a.i(f"s_sub_u32 s3, s{r}, s{e}"); a.i("v_mov_b32 v2, s3"); a.i(f"v_mov_b32 v3, {16+4*k}")
            a.i(f"buffer_store_dword v2, v3, {sDBG}, 0 offen")
        a.label("L_nodbg")
        a.i("s_mov_b64 exec, -1"); a.i("s_waitcnt vmcnt(0)")
    else: a.dump_stamps(0)
    a.label("L_end"); a.i("s_endpgm")
    slow_path(a)
    errs=a.check()
    if opts.get('stamps'): print("stamps:",len(a.stamps),[x[0] for x in a.stamps])
    k1=f"{NAME}_kernel"
    txt=HEADER+f"; @launch grid=(256,1,1) block=(256,1,1) lds={LDS_BYTES}\n"
    txt+='.amdgcn_target "amdgcn-amd-amdhsa--gfx950"\n.text\n'
    txt+=f".globl {k1}\n.p2align 8\n.type {k1},@function\n{k1}:\n"+a.text()+kd(k1,512,256)
    return txt
if __name__=="__main__":
    out=sys.argv[1]
    opts={}
    for x in sys.argv[2:]:
        k,_,v=x.partition('='); opts[k]=int(v) if v.lstrip('-').isdigit() else (v or True)
    open(out,'w').write(build(opts)); print("written",out)
```
